```python
import torch

def _softmax(x, axis=-1):
    return torch.softmax(x, dim=axis)
def _gelu(x):
    return torch.nn.functional.gelu(x, approximate="tanh")
def _silu(x):
    return torch.nn.functional.silu(x)
def _sigmoid(x):
    return torch.sigmoid(x)
def _layernorm(x, axis=-1, eps=1e-5):
    m = x.mean(dim=axis, keepdim=True)
    v = x.var(dim=axis, keepdim=True, unbiased=False)
    return (x - m) / torch.sqrt(v + eps)
def _scatter_add(tgt, idx, src, axis=0):
    return tgt.clone().index_add_(axis, idx, src)
def _segment_sum(src, seg, n):
    out = torch.zeros((n,) + src.shape[1:], dtype=src.dtype)
    return out.index_add_(0, seg, src)
def _pad(x, pw):
    flat = tuple(v for pair in reversed(pw) for v in pair)
    return torch.nn.functional.pad(x, flat)

kernel_name = 'parallel_sum__ssm_conv_s4__mixer_token_mlp__prompt'

def setup_inputs():

    _w = (lambda a: (lambda t: t.to(torch.bfloat16) if t.is_floating_point() else t)(torch.as_tensor(a)))
    def _A_setup():
        B, L, D, N = 1, 2048, 640, 192
        A_re = -(lambda _x: torch.exp(torch.as_tensor(_x)))((lambda *s: torch.randn(*s, dtype=torch.bfloat16) * 6.4)(D, N))
        A_im = torch.pi * (lambda *s: torch.randn(*s, dtype=torch.bfloat16) * 0.05)(D, N)
        B_re = (lambda *s: torch.randn(*s, dtype=torch.bfloat16) * 0.1)(D, N)
        B_im = (lambda *s: torch.randn(*s, dtype=torch.bfloat16) * 0.1)(D, N)
        C_re = (lambda *s: torch.randn(*s, dtype=torch.bfloat16) * 0.1)(D, N)
        C_im = (lambda *s: torch.randn(*s, dtype=torch.bfloat16) * 0.1)(D, N)
        log_dt = (lambda *s: torch.randn(*s, dtype=torch.bfloat16) * 0.05)(D) * 0.5 - 4.0
        Dskip = (lambda *s: torch.randn(*s, dtype=torch.bfloat16) * 0.05)(D)
        return {
            "u": _w((lambda *s: torch.randn(*s, dtype=torch.bfloat16) * 0.05)(B, L, D)),
            "A_re": _w(A_re),
            "A_im": _w(A_im),
            "B_re": _w(B_re),
            "B_im": _w(B_im),
            "C_re": _w(C_re),
            "C_im": _w(C_im),
            "log_dt": _w(log_dt),
            "Dskip": _w(Dskip),
        }
    _A_in = _A_setup()

    def _B_setup():
        B, S, D, F = 1, 2048, 640, 1536
        return {
            "x": _w((lambda *s: torch.randn(*s, dtype=torch.bfloat16) * 0.05)(B, S, D)),
            "w1": _w((lambda *s: torch.randn(*s, dtype=torch.bfloat16) * 0.8)(S, F) * (S ** -0.5)),
            "b1": _w((lambda *s: torch.randn(*s, dtype=torch.bfloat16) * 0.2)(F) * 0.02),
            "w2": _w((lambda *s: torch.randn(*s, dtype=torch.bfloat16) * 0.2)(F, S) * (F ** -0.5)),
            "b2": _w((lambda *s: torch.randn(*s, dtype=torch.bfloat16) * 0.2)(S) * 0.02),
        }
    _B_in = _B_setup()

    return {
        "A_u": _A_in["u"],
        "A_A_re": _A_in["A_re"],
        "A_A_im": _A_in["A_im"],
        "A_B_re": _A_in["B_re"],
        "A_B_im": _A_in["B_im"],
        "A_C_re": _A_in["C_re"],
        "A_C_im": _A_in["C_im"],
        "A_log_dt": _A_in["log_dt"],
        "A_Dskip": _A_in["Dskip"],
        "B_x": _B_in["x"],
        "B_w1": _B_in["w1"],
        "B_b1": _B_in["b1"],
        "B_w2": _B_in["w2"],
        "B_b2": _B_in["b2"],
    }

def reference(A_u, A_A_re, A_A_im, A_B_re, A_B_im, A_C_re, A_C_im, A_log_dt, A_Dskip, B_x, B_w1, B_b1, B_w2, B_b2):
    def _A_ref(u, A_re, A_im, B_re, B_im, C_re, C_im, log_dt, Dskip):
        Bsz, L, D = u.shape
        dt = torch.exp(log_dt)[:, None]
        A = A_re + 1j * A_im
        Bc = B_re + 1j * B_im
        Cc = C_re + 1j * C_im
        logdA = dt * A
        dB = dt * Bc
        l = (lambda x, dt: x.to(dt))(torch.arange(L), A_re.dtype)
        P = torch.exp(logdA[:, :, None] * l[None, None, :])
        K = torch.einsum("dn,dnl,dn->dl", Cc, P, dB).real
        L2 = 2 * L
        Kp = _pad(K, ((0, 0), (0, L)))
        up = (lambda x, *d: x.permute(*d))(u, 0, 2, 1)
        up = _pad(up, ((0, 0), (0, 0), (0, L)))
        Kf = (lambda x, axes=(-2,-1): torch.fft.rfft2(x.float(), dim=axes))(Kp[:, None, :], axes=(-2, -1))
        Uf = (lambda x, axes=(-2,-1): torch.fft.rfft2(x.float(), dim=axes))(up[:, :, None, :], axes=(-2, -1))
        Yf = Uf * Kf[None, :, :, :]
        y = (lambda x, s, axes=(-2,-1): torch.fft.irfft2(x, s=s, dim=axes).to(torch.bfloat16))(Yf, (1, L2), axes=(-2, -1))[:, :, 0, :L]
        y = (lambda x, *d: x.permute(*d))(y, 0, 2, 1) + u * Dskip[None, None, :]
        return y

    def _B_ref(x, w1, b1, w2, b2):
        B, S, D = x.shape
        h = _layernorm(x, axis=-1)
        u = torch.einsum("bsd,sf->bdf", h, w1) + b1
        u = _gelu(u)
        y = torch.einsum("bdf,fs->bds", u, w2) + b2
        return (lambda x, *d: x.permute(*d))(y, 0, 2, 1)

    x = A_u
    xn = _layernorm(x, axis=-1)
    return x + _A_ref(xn, A_A_re, A_A_im, A_B_re, A_B_im, A_C_re, A_C_im, A_log_dt, A_Dskip) + _B_ref(xn, B_w1, B_b1, B_w2, B_b2)
```

```python
import re

TRANS = ("v_exp_f32", "v_log_f32", "v_rcp_f32", "v_rsq_f32", "v_sqrt_f32", "v_sin_f32", "v_cos_f32")
_reg_re = re.compile(r"^(-|\|)?(abs\()?([vas])(\d+|\[(\d+):(\d+)\])\)?\|?$")

def regs_of(tok):
    tok = tok.strip()
    if tok in ("vcc", "exec"): return {(tok, 0)}
    if tok in ("vcc_lo", "vcc_hi"): return {("vcc", 0)}
    if tok in ("exec_lo", "exec_hi"): return {("exec", 0)}
    if tok == "m0": return {("m0", 0)}
    m = _reg_re.match(tok)
    if not m: return set()
    k = m.group(3)
    if m.group(5) is not None:
        return {(k, i) for i in range(int(m.group(5)), int(m.group(6)) + 1)}
    return {(k, int(m.group(4)))}

class Ins:
    __slots__ = ("text", "op", "dst", "src", "kind", "tag", "srcc", "passes", "dpp", "data")
    def __init__(self, text, tag=None):
        self.text = text; self.tag = tag
        t = text.split(";")[0].strip()
        parts = t.split(None, 1)
        op = parts[0]; self.op = op
        rest = parts[1] if len(parts) > 1 else ""
        ops = []; cur = ""; depth = 0
        for ch in rest:
            if ch in "[(": depth += 1
            if ch in "])": depth -= 1
            if ch == "," and depth == 0: ops.append(cur); cur = ""
            else: cur += ch
        if cur.strip(): ops.append(cur)
        mods = ""
        if ops:
            last = ops[-1].strip().split(None, 1)
            ops[-1] = last[0]; mods = last[1] if len(last) > 1 else ""
        ops = [o.strip() for o in ops]
        R = [regs_of(o) for o in ops]
        allr = lambda l: set().union(*l) if l else set()
        self.dst = set(); self.src = set(); self.srcc = set(); self.passes = 0; self.data = set()
        self.dpp = ("_dpp" in op) or ("quad_perm" in mods) or ("row_" in mods)
        if op.endswith(":"): self.kind = "label"
        elif op.startswith("v_mfma"):
            self.kind = "mfma"; self.dst = R[0]; self.src = R[1] | R[2]; self.srcc = R[3]
            self.passes = 8 if "32x32" in op else 4
        elif op.startswith("v_"):
            self.kind = "valu"
            if "swap" in op: self.dst = R[0] | R[1]; self.src = R[0] | R[1]
            elif "_co_" in op: self.dst = R[0] | R[1]; self.src = allr(R[2:])
            else:
                self.dst = R[0]; self.src = allr(R[1:])
                if op.startswith(("v_fmac", "v_dot2c", "v_writelane")) : self.src |= R[0]
                if op.startswith("v_cndmask") and len(ops) == 3: self.src |= {("vcc", 0)}
        elif op.startswith("ds_"):
            self.kind = "ds"
            if op.startswith(("ds_read", "ds_bpermute", "ds_permute", "ds_swizzle")):
                self.dst = R[0]; self.src = allr(R[1:])
            else: self.src = allr(R)
        elif op.startswith(("buffer_", "global_")):
            self.kind = "vmem"
            is_lds = bool(re.search(r"\blds\b", mods))
            if "load" in op and not is_lds: self.dst = R[0]; self.src = allr(R[1:])
            else:
                self.src = allr(R)
                if is_lds: self.src |= {("m0", 0)}
                if "store" in op and ("x4" in op or "x3" in op):
                    self.data = R[0] if op.startswith("buffer_") else R[1]
        elif op.startswith(("s_load", "s_memtime", "s_memrealtime", "s_buffer_load")):
            self.kind = "smem"; self.dst = R[0]; self.src = allr(R[1:])
        elif op.startswith("s_"):
            self.kind = "salu"
            if op.startswith(("s_cmp", "s_waitcnt", "s_nop", "s_barrier", "s_branch", "s_cbranch", "s_endpgm", "s_sleep", "s_setprio")):
                self.src = allr(R)
            else: self.dst = R[0]; self.src = allr(R[1:])
        else:
            self.kind = "dir"
    def slots(self):
        if self.op == "s_nop": return int(self.text.split()[1]) + 1
        if self.kind in ("label", "dir"): return 0
        return 1

def need(p, c):
    n = 0
    vec = lambda s: {r for r in s if r[0] in "va" and len(r[0]) == 1}
    sca = lambda s: {r for r in s if r[0] in ("s", "vcc")}
    if p.kind == "valu":
        pv = vec(p.dst); ps = sca(p.dst)
        if c.kind == "mfma" and pv & (c.src | c.srcc): n = max(n, 2)
        if c.kind == "valu":
            if pv & c.src:
                if p.op in TRANS: n = max(n, 1)
                if c.dpp or "permlane" in c.op: n = max(n, 2)
                if c.op.startswith(("v_readlane", "v_readfirstlane")): n = max(n, 1)
            if ps & c.src: n = max(n, 4 if c.op.startswith(("v_readlane", "v_writelane")) else 2)
        if c.kind in ("vmem", "ds") and p.op in TRANS and pv & c.src: n = max(n, 1)
        if c.kind == "vmem" and ps & c.src: n = max(n, 5)
        if c.kind in ("salu", "smem") and ps & c.src: n = max(n, 1)
    if p.kind == "mfma":
        big = p.passes == 8
        if c.kind == "mfma":
            if p.dst & c.src: n = max(n, 12 if big else 8)
            if p.dst & c.srcc and not (p.dst == c.srcc and p.passes == c.passes): n = max(n, 10 if big else 6)
            if p.dst & c.dst and not (p.dst & c.srcc): n = max(n, 12 if big else 8)
        elif c.kind in ("valu", "vmem", "ds"):
            if p.dst & (c.src | c.dst): n = max(n, 12 if big else 8)
            if c.kind == "valu" and p.srcc & c.dst: n = max(n, 7 if big else 3)
    if p.kind == "salu" and ("m0", 0) in p.dst and c.kind == "vmem" and ("m0", 0) in c.src: n = max(n, 1)
    if p.kind == "vmem" and p.data and c.kind in ("valu", "mfma") and p.data & c.dst: n = max(n, 2)
    if p.kind == "vmem" and p.data and c.kind in ("ds", "vmem") and p.data & c.dst: n = max(n, 1)
    return n

class Prog:
    def __init__(self): self.items = []
    def e(self, text, tag=None):
        for line in text.split("\n"):
            line = line.strip()
            if line: self.items.append((line, tag))
    def wvm(self, tag): self.items.append((("wvm", tag), None))
    def wlg(self, tag): self.items.append((("wlg", tag), None))
    def ext(self, other): self.items.extend(other.items)
    def __len__(self): return len(self.items)

def interleave(main, sides):
    out = Prog(); n = len(main.items); k = len(sides)
    pos = [int((i + 0.5) * n / k) for i in range(k)] if k else []
    j = 0
    for i, it in enumerate(main.items):
        while j < k and pos[j] <= i:
            out.ext(sides[j]); j += 1
        out.items.append(it)
    while j < k: out.ext(sides[j]); j += 1
    return out

def finalize(prog):
    out = []
    vm = []
    lg = []
    for it, tag in prog.items:
        if isinstance(it, tuple):
            kind, t = it
            lst = vm if kind == "wvm" else lg
            idx = max((i for i, x in enumerate(lst) if x == t), default=None)
            if idx is None: continue
            n = len(lst) - 1 - idx
            if kind == "wlg":
                if "SMEM" in lst: n = 0
                n = min(n, 15); text = f"s_waitcnt lgkmcnt({n})"
            else:
                n = min(n, 63); text = f"s_waitcnt vmcnt({n})"
            del lst[:len(lst) - n]
            ins = Ins(text)
        else:
            ins = Ins(it, tag)
            if ins.op == "s_waitcnt":
                m = re.search(r"vmcnt\((\d+)\)", it)
                if m: del vm[:max(0, len(vm) - int(m.group(1)))]
                m = re.search(r"lgkmcnt\((\d+)\)", it)
                if m: del lg[:max(0, len(lg) - int(m.group(1)))]
            if ins.kind == "vmem": vm.append(tag); assert len(vm) <= 63, ("too many vmem in flight", it)
            if ins.kind == "ds": lg.append(tag)
            if ins.kind == "smem": lg.append("SMEM")
        dist = 0; pad = 0
        for p in reversed(out[-24:]):
            r = need(p, ins)
            if r > dist: pad = max(pad, r - dist)
            dist += p.slots()
            if dist >= 13: break
        if pad: out.append(Ins(f"s_nop {pad-1}"))
        out.append(ins)
    return "\n".join(("" if i.kind == "label" else "    ") + i.text for i in out) + "\n"
```

```python
import sys, struct
import numpy as np
from asmlib import Prog, interleave, finalize

NAME = "parallel_sum__ssm_conv_s4__mixer_token_mlp__prompt"
F1, F1B, F2, F3, TM = 0x1000, 0x2000, 0x3000, 0x4000, 0x8000
HB, XB, GB, YT, WSEND = 0x100000, 0x400000, 0x700000, 0x900000, 0xC00000
RING, RINGW = 0, 16384
REG0, REGSZ = 65536, 14592
AUX = REG0 + 3 * REGSZ
LNT = REG0 + 4 * REGSZ
PT = 1344
R0O, R1O, UO, KCO = 0, 4160, 8448, 13056 + 32
KP = 272
LDS_BYTES = 163840

def fbits(x): return "0x%08x" % struct.unpack("<I", struct.pack("<f", x))[0]
def bf16r(l):
    u = struct.unpack("<I", struct.pack("<f", float(l)))[0]
    u = ((u + 0x7FFF + ((u >> 16) & 1)) >> 16) << 16
    return int(struct.unpack("<f", struct.pack("<I", u))[0])
def ci(l):
    v = bf16r(l)
    if v <= 256: return v
    if v <= 512: return 256 + (v - 256) // 2
    if v <= 1024: return 384 + (v - 512) // 4
    return 512 + (v - 1024) // 8

WG, WV, XCD, IDX, DT, FT, DT2, ST2, TAG, CB = "s2", "s3", "s4", "s5", "s6", "s7", "s8", "s9", "s10", "s14"
SX, SW1, SW2, SOUT, SWS = "s[52:55]", "s[56:59]", "s[60:63]", "s[64:67]", "s[68:71]"
RINGB, REGB = "s73", "s77"
LANE, L16, L4, VW1, VTR0, VTR1, VH0, VH1, VTAG, VZ, VDBG = "v1", "v2", "v3", "v4", "v5", "v6", "v7", "v8", "v9", "v10", "v11"

def v(i, n=1): return f"v{i}" if n == 1 else f"v[{i}:{i+n-1}]"
def a(i, n=1): return f"a{i}" if n == 1 else f"a[{i}:{i+n-1}]"

class G:
    def __init__(self, debug=False, n0=8, hdepth=16, gdepth=20, wflag="nt", **kw):
        self.debug = debug; self.n0 = n0; self.hdepth = hdepth; self.gdepth = gdepth; self.wflag = wflag
        self.nst = 0; self.nlab = 0
        self.opt = kw
    def stamp(self, p):
        if not self.debug: return
        p.e("s_memrealtime s[82:83]\ns_waitcnt lgkmcnt(0)")
        p.e(f"v_writelane_b32 {VDBG}, s82, {self.nst}")
        self.nst += 1
    def label(self, s):
        self.nlab += 1; return f"L{s}_{self.nlab}"
    def flag_store(self, p, soff):
        p.e(f"s_mov_b64 exec, 1\nbuffer_store_dword {VTAG}, {VZ}, {SWS}, {soff} offen sc1\ns_mov_b64 exec, -1")
    def poll(self, p, voff, soff, tmp, wide=False):
        l = self.label("poll"); d = self.label("polld")
        p.e("s_mov_b32 s78, 0")
        p.e(f"{l}:")
        if wide:
            p.e(f"buffer_load_dwordx4 {v(tmp,4)}, {voff}, {SWS}, {soff} offen sc1")
            p.e("s_add_u32 s78, s78, 1\ns_waitcnt vmcnt(0)")
            for i in range(4): p.e(f"v_xor_b32 {v(tmp+i)}, {TAG}, {v(tmp+i)}")
            p.e(f"v_or3_b32 {v(tmp)}, {v(tmp)}, {v(tmp+1)}, {v(tmp+2)}\nv_or_b32 {v(tmp)}, {v(tmp)}, {v(tmp+3)}")
            p.e(f"v_cmp_ne_u32 vcc, 0, {v(tmp)}")
        else:
            p.e(f"buffer_load_dword {v(tmp)}, {voff}, {SWS}, {soff} offen sc1")
            p.e("s_add_u32 s78, s78, 1\ns_waitcnt vmcnt(0)")
            p.e(f"v_cmp_ne_u32 vcc, {TAG}, {v(tmp)}")
        p.e(f"s_cmp_gt_u32 s78, 0x8000\ns_cbranch_scc1 {d}\ns_cbranch_vccnz {l}")
        p.e(f"{d}:")

    def prologue(self, p):
        e = p.e
        e(f"s_cmp_ge_u32 {WG}, 256\ns_cbranch_scc1 L_end")
        e("s_load_dwordx16 s[16:31], s[0:1], 0\ns_load_dwordx16 s[32:47], s[0:1], 64\ns_load_dwordx2 s[48:49], s[0:1], 128")
        e(f"v_and_b32 {LANE}, 63, v0\nv_lshrrev_b32 v12, 6, v0\nv_readfirstlane_b32 {WV}, v12")
        e(f"v_lshlrev_b32 {L16}, 4, {LANE}\nv_lshlrev_b32 {L4}, 2, {LANE}\nv_mov_b32 {VZ}, 0\nv_mov_b32 {VDBG}, 0")
        e(f"s_and_b32 {XCD}, {WG}, 7\ns_lshr_b32 {IDX}, {WG}, 3")
        e(f"v_lshrrev_b32 v12, 5, {LANE}\nv_mul_u32_u24 v12, 1280, v12\nv_and_b32 v15, 31, {LANE}")
        e("v_lshl_add_u32 v13, v15, 4, v12\nv_lshl_add_u32 v14, v15, 3, v12")
        e(f"s_lshl_b32 s50, {WG}, 3\ns_lshl_b32 s51, {WV}, 1\ns_add_u32 s50, s50, s51\ns_mul_i32 s50, s50, 1280")
        e(f"s_min_u32 s15, {IDX}, 29\ns_mul_i32 {FT}, s15, 52\ns_lshr_b32 {FT}, {FT}, 8")
        e(f"s_mul_i32 s51, {FT}, 5\ns_sub_u32 {DT}, s15, s51")
        e(f"s_mul_i32 s11, {DT}, 6\ns_add_u32 s11, s11, s51\ns_and_b32 s11, s11, 31")
        e(f"s_and_b32 s51, {XCD}, 1\ns_mul_i32 s51, s51, 5\ns_add_u32 {DT}, {DT}, s51")
        e(f"s_lshr_b32 s51, {XCD}, 1\ns_mul_i32 s51, s51, 6\ns_add_u32 {FT}, {FT}, s51")
        e(f"s_lshr_b32 s51, {IDX}, 1\ns_mul_i32 {CB}, s51, 5\ns_mul_i32 s51, {XCD}, 80\ns_add_u32 {CB}, {CB}, s51")
        e(f"s_and_b32 s51, {IDX}, 1\ns_lshl_b32 s51, s51, 1\ns_add_u32 {CB}, {CB}, s51")
        e(f"s_min_u32 s13, {WV}, 2\ns_add_u32 s13, s13, {CB}")
        e(f"s_lshl_b32 {RINGB}, {WV}, 14\ns_mul_i32 {REGB}, {WV}, {REGSZ}\ns_add_u32 {REGB}, {REGB}, {REG0}")
        e(f"v_lshrrev_b32 v12, 3, {LANE}\nv_and_b32 v15, 7, {LANE}\nv_lshlrev_b32 v16, 1, v12\nv_and_b32 v16, 4, v16\nv_xor_b32 v15, v15, v16")
        e(f"v_mul_u32_u24 v12, 3072, v12\nv_lshl_add_u32 {VW1}, v15, 4, v12")
        e(f"s_mul_i32 s84, {WV}, {512*3072}\ns_lshl_b32 s51, {FT}, 7\ns_add_u32 s84, s84, s51\ns_add_u32 s85, s84, {512*3072}")
        e(f"s_mul_i32 s72, s11, {16*3072}\ns_add_u32 s72, s72, s84")
        e(f"s_mul_i32 s51, s13, 384\nv_add_u32 v16, s51, {L4}\nv_lshlrev_b32 v17, 1, {LANE}\nv_add_u32 v17, s51, v17")
        e("s_lshr_b32 s79, s13, 1\ns_lshl_b32 s79, s79, 2")
        e("s_waitcnt lgkmcnt(0)")
        def srd(d, lo, size): e(f"s_mov_b32 s{d}, s{lo}\ns_mov_b32 s{d+1}, s{lo+1}\ns_mov_b32 s{d+2}, {size}\ns_mov_b32 s{d+3}, 0x20000")
        srd(52, 16, 2621440)
        e(f"buffer_load_dwordx4 v[20:23], v13, {SX}, s50 offen", "x")
        e(f"buffer_load_dwordx4 v[24:27], v13, {SX}, s50 offen offset:512", "x")
        e(f"buffer_load_dwordx2 v[28:29], v14, {SX}, s50 offen offset:1024", "x")
        e(f"s_load_dword {TAG}, s[48:49], 0\ns_load_dword s80, s[30:31], s79\ns_load_dword s81, s[32:33], s79")
        srd(56, 36, 6291456); srd(60, 40, 6291456); srd(64, 44, 2621440); srd(68, 48, WSEND)
        for i in range(6):
            e(f"global_load_dword v{124+2*i}, v16, s[{18+2*i}:{19+2*i}]", "par")
            e(f"global_load_ushort v{125+2*i}, v17, s[{18+2*i}:{19+2*i}] offset:256", "par")
        self.stamp(p)

    def dma_w1(self, ks):
        p = Prog()
        sl = (ks % 8) * 2048
        p.e(f"s_add_u32 m0, {RINGB}, {sl}\ns_add_u32 s51, s72, {8*3072}")
        p.e(f"buffer_load_dwordx4 {VW1}, {SW1}, s72 offen {self.wflag} lds", f"w1_{ks}")
        p.e(f"s_add_u32 m0, {RINGB}, {sl+1024}\ns_add_u32 s72, s72, {16*3072}")
        p.e(f"buffer_load_dwordx4 {VW1}, {SW1}, s51 offen {self.wflag} lds", f"w1_{ks}")
        p.e("s_cmp_eq_u32 s72, s85\ns_cselect_b32 s72, s84, s72")
        return p
    def tr_w1(self, ks):
        p = Prog()
        sl = (ks % 8) * 2048
        p.wvm(f"w1_{ks}")
        for fs, ad in enumerate((VTR0, VTR1)):
            p.e(f"ds_read_b64_tr_b16 {a(8*ks+4*fs,2)}, {ad} offset:{sl}", f"t1_{ks}")
            p.e(f"ds_read_b64_tr_b16 {a(8*ks+4*fs+2,2)}, {ad} offset:{sl+512}", f"t1_{ks}")
        return p

    def setup2(self, p):
        e = p.e
        e(f"v_bfe_u32 v12, {LANE}, 2, 2\nv_and_b32 v13, 3, {LANE}\nv_bfe_u32 v14, {LANE}, 4, 1\nv_lshrrev_b32 v15, 5, {LANE}")
        e("v_lshlrev_b32 v16, 10, v15\nv_lshl_add_u32 v16, v12, 7, v16\nv_lshl_add_u32 v16, v14, 5, v16\nv_lshl_add_u32 v16, v13, 3, v16")
        e(f"v_lshlrev_b32 v17, 5, v12\nv_and_b32 v17, 64, v17\ns_lshr_b32 s51, {WV}, 1\ns_lshl_b32 s51, s51, 6\nv_xor_b32 v17, s51, v17")
        e(f"v_add3_u32 {VTR0}, v16, v17, {RINGB}\nv_xor_b32 {VTR1}, 64, {VTR0}")
        e(f"v_mul_u32_u24 v16, 10240, v15\nv_and_b32 v17, 31, {LANE}\nv_lshl_add_u32 v16, v17, 4, v16")
        e(f"s_and_b32 s51, {WV}, 1\ns_lshl_b32 s51, s51, 9\nv_add_u32 {VH0}, s51, v16\ns_xor_b32 s51, s51, 512\nv_add_u32 {VH1}, s51, v16")
        e(f"s_lshl_b32 s51, {FT}, 7\ns_lshr_b32 s15, {WV}, 1\ns_lshl_b32 s15, s15, 6\ns_add_u32 s51, s51, s15\nv_lshl_add_u32 v136, v15, 3, s51")
        for j in range(4): e(f"global_load_dwordx2 {v(12+2*j,2)}, v136, s[38:39] offset:{16*j}", "b1")
        e(f"s_and_b32 {DT2}, {IDX}, 3\ns_lshr_b32 {ST2}, {IDX}, 2")
        e(f"s_mul_i32 s12, {ST2}, 3\ns_lshr_b32 s12, s12, 1\ns_mul_i32 s51, {DT2}, 3\ns_add_u32 s12, s12, s51\ns_sub_u32 s51, s12, 12\ns_cmp_ge_u32 s12, 12\ns_cselect_b32 s12, s51, s12")
        e(f"s_and_b32 s51, {XCD}, 1\ns_lshl_b32 s51, s51, 2\ns_add_u32 {DT2}, {DT2}, s51")
        e(f"s_lshr_b32 s51, {XCD}, 1\ns_lshl_b32 s51, s51, 3\ns_add_u32 {ST2}, {ST2}, s51")

    def red32(self, p, regs, tmp):
        for m in ("quad_perm:[1,0,3,2]", "quad_perm:[2,3,0,1]", "row_half_mirror", "row_mirror"):
            for r in regs: p.e(f"v_add_f32_dpp v{r}, v{r}, v{r} {m} row_mask:0xf bank_mask:0xf")
        for i, r in enumerate(regs): p.e(f"v_mov_b32 v{tmp+i}, v{r}")
        for i, r in enumerate(regs): p.e(f"v_permlane16_swap_b32 v{r}, v{tmp+i}")
        for i, r in enumerate(regs): p.e(f"v_add_f32 v{r}, v{r}, v{tmp+i}")
    def unpack(self, p, src, dst, n):
        for i in range(n):
            p.e(f"v_lshlrev_b32 v{dst+2*i}, 16, v{src+i}\nv_and_b32 v{dst+2*i+1}, 0xffff0000, v{src+i}")
    def rbf(self, p, r):
        p.e(f"v_cvt_pk_bf16_f32 v{r}, v{r}, v{r}\nv_lshlrev_b32 v{r}, 16, v{r}")
    def ln(self, p):
        e = p.e
        RAW, F, D, T, XN, H = 20, 30, 50, 70, 80, 90
        inv = fbits(1.0 / 640)
        p.wvm("x")
        self.stamp(p)
        self.unpack(p, RAW, F, 10)
        def psum(src, dst):
            e(f"v_pk_add_f32 {v(dst,2)}, {v(src,2)}, {v(src+2,2)}\nv_pk_add_f32 {v(dst+2,2)}, {v(src+4,2)}, {v(src+6,2)}")
            for i in range(4, 10): e(f"v_pk_add_f32 {v(dst+2*(i&1),2)}, {v(dst+2*(i&1),2)}, {v(src+2*i,2)}")
            e(f"v_pk_add_f32 {v(dst,2)}, {v(dst,2)}, {v(dst+2,2)}\nv_add_f32 v{dst}, v{dst}, v{dst+1}")
        def psq(src, dst):
            e(f"v_pk_mul_f32 {v(dst,2)}, {v(src,2)}, {v(src,2)}\nv_pk_mul_f32 {v(dst+2,2)}, {v(src+2,2)}, {v(src+2,2)}")
            for i in range(2, 10): e(f"v_pk_fma_f32 {v(dst+2*(i&1),2)}, {v(src+2*i,2)}, {v(src+2*i,2)}, {v(dst+2*(i&1),2)}")
            e(f"v_pk_add_f32 {v(dst,2)}, {v(dst,2)}, {v(dst+2,2)}\nv_add_f32 v{dst}, v{dst}, v{dst+1}")
        def rstd(var, out):
            e(f"v_max_f32 v{var}, 0, v{var}")
            self.rbf(p, var); e(f"v_add_f32 v{var}, {fbits(1e-5)}, v{var}"); self.rbf(p, var)
            e(f"v_sqrt_f32 v{var}, v{var}"); self.rbf(p, var); e(f"v_rcp_f32 v{out}, v{var}")
        def center(mb):
            for i in range(10): e(f"v_pk_add_f32 {v(D+2*i,2)}, {v(F+2*i,2)}, {v(mb,2)} op_sel_hi:[1,0] neg_lo:[0,1] neg_hi:[0,1]")
        def roundD():
            for i in range(10): e(f"v_cvt_pk_bf16_f32 v{RAW+i}, v{D+2*i}, v{D+2*i+1}")
            self.unpack(p, RAW, D, 10)
        def scale(r, out):
            for i in range(10): e(f"v_pk_mul_f32 {v(D+2*i,2)}, {v(D+2*i,2)}, {v(r,2)} op_sel_hi:[1,0]")
            for i in range(10): e(f"v_cvt_pk_bf16_f32 v{out+i}, v{D+2*i}, v{D+2*i+1}")
        psum(F, T); self.red32(p, [T], T + 2)
        e(f"v_mul_f32 v{T}, {inv}, v{T}\nv_mov_b32 v{T+4}, v{T}"); self.rbf(p, T + 4)
        center(T + 4)
        e(f"v_sub_f32 v{T+5}, v{T}, v{T+4}")
        psq(D, T); self.red32(p, [T], T + 2)
        e(f"v_mul_f32 v{T}, {inv}, v{T}\nv_fma_f32 v{T}, -v{T+5}, v{T+5}, v{T}")
        rstd(T, T + 6)
        roundD(); scale(T + 6, XN)
        self.unpack(p, XN, F, 10)
        e(f"v_lshrrev_b32 v100, 5, {LANE}\ns_lshl_b32 s51, {WV}, 1\nv_add_u32 v100, s51, v100\nv_mul_u32_u24 v100, {PT}, v100\nv_add_u32 v100, {LNT}, v100")
        e(f"v_and_b32 v102, 31, {LANE}\nv_lshl_add_u32 v101, v102, 3, v100\nv_lshl_add_u32 v100, v102, 4, v100")
        def wrow(src, off):
            e(f"ds_write_b128 v100, {v(src,4)} offset:{off}\nds_write_b128 v100, {v(src+4,4)} offset:{off+512}\nds_write_b64 v101, {v(src+8,2)} offset:{off+1024}", "lnw")
        wrow(XN, 8 * PT)
        psum(F, T); psq(F, T + 4); self.red32(p, [T, T + 4], T + 2)
        e(f"v_mul_f32 v{T}, {inv}, v{T}\nv_mul_f32 v{T+4}, {inv}, v{T+4}\nv_fma_f32 v{T+4}, -v{T}, v{T}, v{T+4}")
        self.rbf(p, T)
        rstd(T + 4, T + 6)
        center(T); roundD(); scale(T + 6, H)
        wrow(H, 0)
        e(f"v_bfe_u32 v102, {LANE}, 2, 2\nv_mul_u32_u24 v102, {PT}, v102\nv_lshrrev_b32 v103, 4, {LANE}\nv_lshl_add_u32 v102, v103, 5, v102")
        e(f"v_and_b32 v103, 3, {LANE}\nv_lshl_add_u32 v102, v103, 3, v102\ns_lshl_b32 s51, {WV}, 7\ns_add_u32 s51, s51, {LNT}\nv_add_u32 v102, s51, v102")
        e(f"s_mul_i32 {TAG}, {TAG}, 0x9E3779B1\ns_add_u32 {TAG}, {TAG}, 0x7F4A7C15\nv_mov_b32 {VTAG}, {TAG}")
        e("s_waitcnt lgkmcnt(0)\ns_barrier")
    def publish_ln(self, p):
        e = p.e
        for arr in range(2):
            for j in range(3):
                o = arr * 8 * PT + j * 512
                e(f"ds_read_b64_tr_b16 {v(30+arr*12+4*j,2)}, v102 offset:{o}\nds_read_b64_tr_b16 {v(32+arr*12+4*j,2)}, v102 offset:{o+4*PT}", f"lnr{arr}")
        e(f"s_mul_i32 s50, {WG}, 10240\ns_lshl_b32 s51, {WV}, 10\ns_add_u32 s50, s50, s51")
        e(f"s_mov_b32 s15, 0x4000000\ns_cmp_lt_u32 {WV}, 2\ns_cselect_b32 s15, 8192, s15")
        for arr, base in enumerate((HB, XB)):
            e(f"s_add_u32 s86, s50, {base}\ns_add_u32 s87, s86, 4096\ns_add_u32 s88, s86, s15")
            p.wlg(f"lnr{arr}")
            for j in range(3): e(f"buffer_store_dwordx4 {v(30+arr*12+4*j,4)}, {L16}, {SWS}, s{86+j} offen sc1", f"lns{arr}")
            if arr == 0:
                e(f"s_lshl_b32 s51, {WV}, 10\ns_lshl_b32 s89, {WG}, 2\ns_add_u32 s89, s89, s51\ns_add_u32 s89, s89, {F1}")
                e("s_waitcnt vmcnt(0)")
                self.flag_store(p, "s89")
                self.stamp(p)
    def flag_xn(self, p):
        p.e(f"s_lshl_b32 s51, {WV}, 2\ns_lshl_b32 s89, {WG}, 4\ns_add_u32 s89, s89, s51\ns_add_u32 s89, s89, {F1B}")
        p.e("s_waitcnt vmcnt(0)")
        self.flag_store(p, "s89")

    def kgen(self, p):
        e = p.e
        L2E = 1.4426950408889634
        l2e_hi = struct.unpack("<f", struct.pack("<f", L2E))[0]; l2e_lo = L2E - l2e_hi
        VDT, VD1, VD2, VDS, WA, RA, RB = 54, 55, 56, 57, 58, 59, 60
        ACC = 140
        e(f"s_and_b32 s51, s13, 1\ns_lshl_b32 s51, s51, 4\ns_lshr_b32 s80, s80, s51\ns_lshl_b32 s80, s80, 16\ns_lshr_b32 s81, s81, s51\ns_lshl_b32 s81, s81, 16")
        e(f"v_mov_b32 v62, s80\nv_mov_b32 v63, {fbits(l2e_hi)}\nv_mul_f32 v64, v62, v63\nv_fma_f32 v65, v62, v63, -v64\nv_fmac_f32 v65, {fbits(l2e_lo)}, v62")
        e(f"v_exp_f32 v64, v64\nv_mul_f32 v65, {fbits(0.6931471805599453)}, v65\nv_fma_f32 v{VDT}, v64, v65, v64")
        self.rbf(p, VDT)
        e(f"v_mul_f32 v{VD1}, {fbits(L2E)}, v{VDT}\nv_mul_f32 v{VD2}, 0.15915494, v{VDT}")
        e(f"v_cmp_eq_u32 vcc, 0, {LANE}\nv_mov_b32 v62, s81\nv_cndmask_b32 v{VDS}, 0, v62, vcc")
        e(f"v_add_u32 v{WA}, {REGB}, {L4}")
        e(f"v_and_b32 v62, 31, {LANE}\nv_lshrrev_b32 v63, 5, {LANE}\nv_lshlrev_b32 v63, 4, v63\nv_add_u32 v63, {REGB}, v63")
        e(f"v_mul_u32_u24 v64, {KP}, v62\nv_add_u32 v{RB}, v64, v63")
        e(f"v_min_u32 v62, 20, v62\nv_add_u32 v62, 32, v62\nv_mul_u32_u24 v64, {KP}, v62\nv_add_u32 v{RA}, v64, v63")
        p.wvm("par")
        def cmul(sets):
            for d, x, y in sets: e(f"v_pk_mul_f32 {v(d,2)}, {v(x,2)}, {v(y,2)} op_sel_hi:[0,1]")
            for d, x, y in sets: e(f"v_pk_fma_f32 {v(d,2)}, {v(x,2)}, {v(y,2)}, {v(d,2)} op_sel:[1,1,0] op_sel_hi:[1,0,1] neg_lo:[1,0,0]")
        PK = 116
        pk = [0]
        def put(row, z, neg):
            r = PK + pk[0] % 8; pk[0] += 1
            e(f"v_cvt_pk_bf16_f32 v{r}, v{z}, {'-' if neg else ''}v{z+1}")
            e(f"ds_write_b32 v{WA}, v{r} offset:{row*KP}", "kw")
        P = 62
        for rd in range(3):
            for i in range(6):
                if rd == 0: e(f"v_lshlrev_b32 v{P+i}, 16, v{124+2*i}")
                elif rd == 1: e(f"v_and_b32 v{P+i}, 0xffff0000, v{124+2*i}")
                else: e(f"v_lshlrev_b32 v{P+i}, 16, v{125+2*i}")
            AR, AI = 68, 69
            e(f"v_mul_f32 v{AR}, v{P}, v{VD1}\nv_mul_f32 v{AI}, v{P+1}, v{VD2}")
            e(f"v_pk_mul_f32 {v(P+2,2)}, {v(P+2,2)}, {v(VDT,2)} op_sel_hi:[1,0]")
            E1, E8, E256 = 70, 72, 74
            TM_, TA = 76, 79
            for i, t in enumerate((1.0, 8.0, 256.0)):
                if i == 0: e(f"v_mov_b32 v{TM_}, v{AR}\nv_fract_f32 v{TA}, v{AI}")
                else: e(f"v_mul_f32 v{TM_+i}, {fbits(t)}, v{AR}\nv_mul_f32 v{TA+i}, {fbits(t)}, v{AI}\nv_fract_f32 v{TA+i}, v{TA+i}")
            X = 82
            cmul([(X, P + 4, P + 2)])
            for i in range(3):
                e(f"v_exp_f32 v{TM_+i}, v{TM_+i}\nv_cos_f32 v{E1+2*i}, v{TA+i}\nv_sin_f32 v{E1+2*i+1}, v{TA+i}")
            for i in range(3): e(f"v_mul_f32 v{E1+2*i}, v{E1+2*i}, v{TM_+i}\nv_mul_f32 v{E1+2*i+1}, v{E1+2*i+1}, v{TM_+i}")
            if rd > 0: p.wlg("kr")
            put(32, X, True)
            E2, E4, E16, E512 = 98, 100, 102, 104
            cmul([(E2, E1, E1), (E16, E8, E8), (E512, E256, E256), (X + 2, X, E1)])
            EA = 106
            EB = 20
            E32 = 114
            cmul([(E4, E2, E2), (EA + 6, E16, E8), (E32, E16, E16), (X + 4, X, E2), (X + 6, X + 2, E2)])
            if rd == 0:
                e(f"v_mov_b32 v28, 0x3f80\nds_write_b32 v{WA}, v28", "kw")
            put(1, E8, False); put(2, E16, False); put(3, EA + 6, False); put(4, E32, False)
            put(33, X + 2, True); put(34, X + 4, True); put(35, X + 6, True)
            cmul([(X + 8 + 2 * i, X + 2 * i, E4) for i in range(4)])
            cmul([(EB, E8, E32), (EB + 2, E16, E32), (EB + 4, EA + 6, E32), (EB + 6, E32, E32)])
            for i in range(4): put(36 + i, X + 8 + 2 * i, True)
            Y = 30
            cmul([(Y + 2 * i, X + 4 * i, E256) for i in range(4)])
            cur, nxt = EB, EA
            for i in range(4): put(5 + i, cur + 2 * i, False)
            Z = 38
            extra = [[(Z, X, E512), (Z + 2, X + 8, E512), (Z + 4, Y, E512), (Z + 6, Y + 4, E512)],
                     [(Z + 8, Z, E512), (Z + 10, Z + 4, E512)], [(Z + 12, Z + 8, E512), (Z + 14, Z + 10, E512)], [(X + 2, Z + 12, E512)], [], []]
            extra_put = [[(40 + i, Y + 2 * i) for i in range(4)], [(44 + i, Z + 2 * i) for i in range(4)], [(48, Z + 8), (49, Z + 10)], [(50, Z + 12), (51, Z + 14)], [(52, X + 2)], []]
            for st in range(6):
                j0 = 9 + 4 * st
                n = min(4, 32 - j0)
                cmul([(nxt + 2 * i, cur + 2 * i, E32) for i in range(n)] + extra[st])
                for row, z in extra_put[st]: put(row, z, True)
                for i in range(n): put(j0 + i, nxt + 2 * i, False)
                cur, nxt = nxt, cur
            p.wlg("kw")
            FA, FB = 156, 172
            for half in range(2):
                for s in range(4):
                    st = half * 4 + s
                    e(f"ds_read_b128 {v(FA+4*s,4)}, v{RA} offset:{st*32}\nds_read_b128 {v(FB+4*s,4)}, v{RB} offset:{st*32}", f"kr")
                p.wlg("kr")
                for s in range(4):
                    c = "0" if (rd == 0 and half == 0 and s == 0) else v(ACC, 16)
                    e(f"v_mfma_f32_32x32x16_bf16 {v(ACC,16)}, {v(FA+4*s,4)}, {v(FB+4*s,4)}, {c}")
        e(f"v_and_b32 v62, 31, {LANE}\nv_lshrrev_b32 v63, 5, {LANE}\ns_add_u32 s51, {REGB}, {KCO}")
        e(f"v_lshlrev_b32 v64, 4, v62\nv_lshl_add_u32 v64, v63, 3, v64\nv_add_u32 v64, s51, v64")
        e(f"v_cmp_eq_u32 vcc, 0, v63\nv_lshlrev_b32 v65, 3, v62\nv_add_u32 v65, 512, v65\nv_lshlrev_b32 v66, 2, v62\nv_add_u32 v66, 768, v66")
        e(f"v_cndmask_b32 v65, v66, v65, vcc\nv_add_u32 v65, s51, v65\nv_mov_b32 v66, 128\nv_cndmask_b32 v66, v66, 4, vcc\nv_add_u32 v66, v65, v66")
        e(f"v_lshlrev_b32 v67, 1, v62\nv_lshl_add_u32 v67, v63, 8, v67\nv_add_u32 v67, s51, v67")
        e(f"v_add_f32 v{ACC}, v{ACC}, v{VDS}")
        for i in range(6): e(f"v_cvt_pk_bf16_f32 v{70+i}, v{ACC+2*i}, v{ACC+2*i+1}")
        e(f"ds_write_b64 v64, v[70:71]\nds_write_b32 v65, v72\nds_write_b32 v66, v73\nds_write_b16 v67, v74 offset:1024", "kc")
        e("s_mov_b32 exec_hi, 0")
        e(f"ds_write_b16_d16_hi v67, v74 offset:{1024+64}\nds_write_b16 v67, v75 offset:{1024+128}\nds_write_b16_d16_hi v67, v75 offset:{1024+192}", "kc")
        e("s_mov_b64 exec, 0xff")
        e(f"v_add_u32 v64, {REGB}, {L4}\nds_write_b32 v64, {VZ} offset:{KCO-32}", "kc")
        e("s_mov_b32 exec_lo, -1")
        e(f"v_mov_b32 v76, 0\nv_mov_b32 v77, 0\nv_mov_b32 v78, 0\nv_mov_b32 v79, 0\nv_add_u32 v64, {REGB}, {L16}\nds_write_b128 v64, v[76:79] offset:{UO}", "kc")
        e("s_mov_b64 exec, -1")
        p.wlg("kc")
        vrs = []
        blocks = [(-2, 34, 8), (32, 32, 4), (64, 64, 2), (128, 64, 1), (192, 64, 1)]
        for bi, (v0, nl, stride) in enumerate(blocks):
            cis = lambda y: y if y < 0 else ci(y)
            base = cis(8 * v0) if v0 >= 0 else 8 * v0
            offs = {}
            for t in range(-1, 8):
                o = [cis(8 * (v0 + l) + 7 - t) - (base + stride * l) for l in range(nl)]
                offs[t] = (o[0], o[1])
                assert all(o[l] == o[l & 1] for l in range(nl)), (bi, t, o)
                assert o[1] - o[0] in (0, 1)
            RR = 20 + 9 * bi
            AD = 100 + 3 * bi
            e(f"s_add_u32 s51, {REGB}, {KCO + 2*base}\nv_mul_u32_u24 v{AD}, {2*stride}, {LANE}\nv_add_u32 v{AD}, s51, v{AD}")
            par = any(o[0] != o[1] for o in offs.values())
            if par: e(f"v_and_b32 v{AD+1}, 1, {LANE}\nv_lshl_add_u32 v{AD+1}, v{AD+1}, 1, v{AD}")
            e(f"s_add_u32 s51, {REGB}, {(255 - v0) * 16}\nv_sub_u32 v{AD+2}, s51, {L16}")
            if nl < 64: e(f"s_mov_b32 exec_hi, {(1 << (nl - 32)) - 1}")
            seen = {}; vr = {}
            for t in range(-1, 8):
                o = offs[t]
                if o not in seen:
                    seen[o] = RR + len(seen)
                    e(f"ds_read_u16 v{seen[o]}, v{AD + (1 if o[0] != o[1] else 0)} offset:{2*o[0]}", f"kx{bi}")
                vr[t] = seen[o]
            vrs.append(vr)
            if nl < 64: e("s_mov_b64 exec, -1")
        for bi, (v0, nl, stride) in enumerate(blocks):
            AD = 100 + 3 * bi; O = 70 + 8 * (bi & 1); vr = vrs[bi]
            p.wlg(f"kx{bi}")
            for i in range(4): e(f"v_lshl_or_b32 v{O+i}, v{vr[2*i+1]}, 16, v{vr[2*i]}")
            for i in range(4): e(f"v_lshl_or_b32 v{O+4+i}, v{vr[2*i]}, 16, v{vr[2*i-1]}")
            if nl < 64: e(f"s_mov_b32 exec_hi, {(1 << (nl - 32)) - 1}")
            e(f"ds_write_b128 v{AD+2}, {v(O,4)} offset:{R0O}\nds_write_b128 v{AD+2}, {v(O+4,4)} offset:{R1O}", "kt")
            if nl < 64: e("s_mov_b64 exec, -1")

    def gemm1(self, p):
        e = p.e
        ACC, HR, ns = 192, 112, self.hdepth
        assert HR + 4 * ns <= ACC and ns % 2 == 0
        p.wvm("b1")
        self.unpack(p, 12, ACC, 8)
        e(f"s_and_b32 s50, {DT}, 3\ns_lshl_b32 s50, s50, 10\ns_lshl_b32 s51, {WV}, 8\ns_add_u32 s50, s50, s51\ns_add_u32 s50, s50, {F1}")
        e(f"s_mul_i32 s84, {WV}, {64*10240}\ns_lshl_b32 s51, {DT}, 10\ns_add_u32 s84, s84, s51\ns_add_u32 s84, s84, {HB}\ns_add_u32 s85, s84, {64*10240}")
        e(f"s_mul_i32 s74, s11, 20480\ns_add_u32 s74, s74, s84")
        e("s_waitcnt lgkmcnt(0)\ns_barrier")
        self.stamp(p)
        self.poll(p, L4, "s50", 20)
        self.stamp(p)
        def ld(ks):
            for ds, vo in enumerate((VH0, VH1)):
                r = HR + 4 * ((2 * ks + ds) % ns)
                e(f"buffer_load_dwordx4 {v(r,4)}, {vo}, {SWS}, s74 offen sc1", f"h{ks}")
            e("s_add_u32 s74, s74, 20480\ns_cmp_eq_u32 s74, s85\ns_cselect_b32 s74, s84, s74")
        pre = ns // 2
        for ks in range(pre): ld(ks)
        for ks in range(32):
            p.wvm(f"h{ks}")
            for fs in range(2):
                for ds in range(2):
                    r = HR + 4 * ((2 * ks + ds) % ns); t = fs * 2 + ds; c = ACC + 16 * t
                    src = "0" if (ks == 0 and t > 0) else v(c, 16)
                    e(f"v_mfma_f32_32x32x16_bf16 {v(c,16)}, {a(8*ks+4*fs,4)}, {v(r,4)}, {src}")
            if ks + pre < 32: ld(ks + pre)
        self.stamp(p)
    def gemm1_epi(self, p):
        e = p.e
        ACC, RD = 192, 112
        for t in range(1, 4):
            e(f"s_xor_b32 s51, {WV}, {t}\ns_mul_i32 s51, s51, 12288\ns_add_u32 s51, s51, {AUX + (t-1)*4096}\nv_add_u32 v{20+t}, s51, {L16}")
        e(f"s_mul_i32 s51, {WV}, 12288\ns_add_u32 s51, s51, {AUX}\nv_add_u32 v20, s51, {L16}")
        for t in range(1, 4):
            for j in range(4): e(f"ds_write_b128 v{20+t}, {v(ACC+16*t+4*j,4)} offset:{j*1024}", "r1w")
        e(f"s_lshl_b32 s50, {FT}, 3\ns_lshr_b32 s51, {WV}, 1\ns_lshl_b32 s51, s51, 2\ns_add_u32 s50, s50, s51\ns_mul_i32 s50, s50, 10240")
        e(f"s_lshl_b32 s51, {DT}, 10\ns_add_u32 s50, s50, s51\ns_add_u32 s86, s50, {GB}\ns_add_u32 s87, s86, 20480")
        e(f"s_mul_i32 s89, {DT}, 24\ns_add_u32 s89, s89, {FT}\ns_lshl_b32 s89, s89, 4\ns_lshl_b32 s51, {WV}, 2\ns_add_u32 s89, s89, s51\ns_add_u32 s89, s89, {F2}")
        c1 = -2 * 0.7978845608028654 * 1.4426950408889634; c3 = c1 * 0.044715
        e(f"s_mov_b32 s90, {fbits(c3)}\ns_mov_b32 s91, {fbits(c3)}\nv_mov_b32 v24, {fbits(c1)}\nv_mov_b32 v25, {fbits(c1)}")
        e("s_waitcnt lgkmcnt(0)\ns_barrier")
        for j in range(4):
            for t in range(3): e(f"ds_read_b128 {v(RD+16*t+4*j,4)}, v20 offset:{t*4096+j*1024}", f"r1r{j}")
        T = 30; O = 60
        for j in range(4):
            p.wlg(f"r1r{j}")
            for hq in range(2):
                x = ACC + 4 * j + 2 * hq; r = RD + 4 * j + 2 * hq
                e(f"v_pk_add_f32 {v(x,2)}, {v(x,2)}, {v(r,2)}\nv_pk_add_f32 {v(r+16,2)}, {v(r+16,2)}, {v(r+32,2)}")
            for hq in range(2):
                x = ACC + 4 * j + 2 * hq; r = RD + 4 * j + 2 * hq
                e(f"v_pk_add_f32 {v(x,2)}, {v(x,2)}, {v(r+16,2)}")
            for hq in range(2):
                x = ACC + 4 * j + 2 * hq; t = T + 4 * j + 2 * hq
                e(f"v_pk_mul_f32 {v(t,2)}, {v(x,2)}, {v(x,2)}")
            for hq in range(2):
                t = T + 4 * j + 2 * hq
                e(f"v_pk_fma_f32 {v(t,2)}, {v(t,2)}, s[90:91], v[24:25]")
            for hq in range(2):
                x = ACC + 4 * j + 2 * hq; t = T + 4 * j + 2 * hq
                e(f"v_pk_mul_f32 {v(t,2)}, {v(t,2)}, {v(x,2)}")
            for i in range(4): e(f"v_exp_f32 v{T+4*j+i}, v{T+4*j+i}")
            for hq in range(2):
                t = T + 4 * j + 2 * hq
                e(f"v_pk_add_f32 {v(t,2)}, {v(t,2)}, 1.0 op_sel_hi:[1,0]")
            for i in range(4): e(f"v_rcp_f32 v{T+4*j+i}, v{T+4*j+i}")
            for hq in range(2):
                x = ACC + 4 * j + 2 * hq; t = T + 4 * j + 2 * hq
                e(f"v_pk_mul_f32 {v(t,2)}, {v(t,2)}, {v(x,2)}")
            for hq in range(2):
                t = T + 4 * j + 2 * hq
                e(f"v_cvt_pk_bf16_f32 v{O+2*j+hq}, v{t}, v{t+1}")
            if j & 1:
                o = O + 2 * (j - 1)
                e(f"v_permlane32_swap_b32 v{o}, v{o+2}\nv_permlane32_swap_b32 v{o+1}, v{o+3}")
                e(f"buffer_store_dwordx4 {v(o,4)}, {VH0}, {SWS}, s{86 + j//2} offen sc1", "gs")
        self.stamp(p)
        e("s_waitcnt vmcnt(0)")
        self.flag_store(p, "s89")
        self.stamp(p)

    def setup_w2(self, p):
        e = p.e
        e(f"v_lshrrev_b32 v20, 3, {LANE}\nv_and_b32 v21, 7, {LANE}\nv_and_b32 v22, 2, v20\nv_xor_b32 v21, v21, v22")
        e("v_lshlrev_b32 v20, 12, v20\nv_lshl_add_u32 v12, v21, 4, v20\nv_xor_b32 v13, 64, v12")
        e(f"v_bfe_u32 v20, {LANE}, 2, 2\nv_and_b32 v21, 3, {LANE}\nv_lshrrev_b32 v22, 4, {LANE}")
        e("v_lshlrev_b32 v23, 10, v22\nv_lshl_add_u32 v23, v20, 7, v23\nv_lshl_add_u32 v23, v21, 3, v23")
        e(f"v_lshrrev_b32 v20, 1, v20\nv_and_b32 v22, 1, v22\nv_lshl_or_b32 v20, v22, 1, v20\nv_xor_b32 v20, {WV}, v20\nv_lshlrev_b32 v20, 5, v20")
        e(f"v_add3_u32 v14, v23, v20, {RINGB}\nv_xor_b32 v15, 32, v14\nv_xor_b32 v16, 64, v14\nv_xor_b32 v17, 0x60, v14")
        e(f"s_mul_i32 s92, {WV}, {384*4096}\ns_lshl_b32 s51, {ST2}, 7\ns_add_u32 s92, s92, s51\ns_add_u32 s93, s92, {384*4096}")
        e(f"s_lshl_b32 s75, s12, 17\ns_add_u32 s75, s75, s92")
    def dma_w2(self, ks):
        p = Prog()
        for g in range(4):
            p.e(f"s_add_u32 m0, {RINGB}, {(ks % 4) * 4096 + g * 1024}")
            p.e(f"buffer_load_dwordx4 v{12 + (g & 1)}, {SW2}, s75 offen {self.wflag} lds", f"w2_{ks}")
            p.e("s_add_u32 s75, s75, 32768")
        p.e("s_cmp_eq_u32 s75, s93\ns_cselect_b32 s75, s92, s75")
        return p
    def tr_w2(self, ks):
        p = Prog()
        p.wvm(f"w2_{ks}")
        for ss in range(4):
            p.e(f"ds_read_b64_tr_b16 {a(16*ks+4*ss,2)}, v{14+ss} offset:{(ks%4)*4096}", f"t2_{ks}")
            p.e(f"ds_read_b64_tr_b16 {a(16*ks+4*ss+2,2)}, v{14+ss} offset:{(ks%4)*4096+512}", f"t2_{ks}")
        return p

    def load_u(self, p):
        e = p.e
        e(f"s_lshl_b32 s50, {WV}, 10\ns_add_u32 s50, s50, {F1B}")
        self.poll(p, L16, "s50", 20, wide=True)
        e(f"v_mul_u32_u24 v20, 10240, {LANE}\ns_mul_i32 s50, {WV}, {64*10240}\ns_lshl_b32 s51, {CB}, 4\ns_add_u32 s50, s50, s51\ns_add_u32 s50, s50, {XB}")
        for c in range(3): e(f"buffer_load_dwordx4 {v(24+4*c,4)}, v20, {SWS}, s50 offen offset:{16*c} sc1", "u")
    def stage_u(self, p):
        e = p.e
        e(f"s_lshl_b32 s51, {WV}, 10\ns_add_u32 s51, s51, {REG0 + UO + 512}\nv_add_u32 v20, s51, {L16}")
        p.wvm("u")
        for c in range(3): e(f"ds_write_b128 v20, {v(24+4*c,4)} offset:{c*REGSZ}", "uw")
        e("s_waitcnt lgkmcnt(0)\ns_barrier")
    def conv(self, p):
        e = p.e
        AA, BA, WR, RD_, YO = 20, 24, 26, 30, 31
        FA, FB, ACC = 40, 104, 168
        S = 200
        e(f"v_lshrrev_b32 v32, 4, {LANE}\nv_bfe_u32 v33, {LANE}, 1, 3\nv_lshlrev_b32 v34, 2, v32\nv_sub_u32 v34, v34, v33")
        e(f"v_and_b32 v33, 1, {LANE}\nv_xor_b32 v33, 1, v33\nv_mul_u32_u24 v33, {R1O//4 + 1}, v33\nv_add_u32 v34, v34, v33")
        e(f"s_lshl_b32 s51, {WV}, 5\ns_sub_u32 s51, {1015 - 16*(56+1) + REG0//4}, s51\nv_add_u32 v34, s51, v34\nv_lshlrev_b32 v{AA+3}, 2, v34")
        for mp in range(3): e(f"v_add_u32 v{AA+mp}, {(3-mp)*1024}, v{AA+3}")
        e(f"v_and_b32 v33, 15, {LANE}\nv_lshl_add_u32 v34, v33, 1, v32\ns_lshl_b32 s51, {WV}, 7\ns_sub_u32 s51, {REG0 + UO + 16*26}, s51\nv_lshl_add_u32 v{BA}, v34, 4, s51")
        for k in range(4):
            e(f"s_sub_u32 s51, {WV}, {k+1}\ns_and_b32 s51, s51, 3\ns_lshl_b32 s51, s51, 11\ns_add_u32 s51, s51, {AUX + k*6144}\nv_add_u32 v{WR+k}, s51, {L16}")
        e(f"s_mul_i32 s51, {WV}, 6144\ns_add_u32 s51, s51, {AUX}\nv_add_u32 v{RD_}, s51, {L16}")
        e(f"v_and_b32 v34, 1, v32\nv_lshlrev_b32 v34, 9, v34\nv_lshl_add_u32 v34, v33, 5, v34\nv_lshrrev_b32 v32, 1, v32\nv_lshl_add_u32 v{YO}, v32, 4, v34")
        e(f"s_lshl_b32 s86, {CB}, 12\ns_lshl_b32 s51, {WV}, 10\ns_add_u32 s86, s86, s51\ns_add_u32 s86, s86, {YT}")
        def loads(c, ph):
            q = Prog()
            st = ph
            order = [0, 1, 2, 3, 4, 5, 6, 7]
            for i in order:
                mu = i; off = (1 - (mu & 1)) * 128 + (1 - ph) * 16
                r = FA + 32 * st + 4 * mu
                q.e(f"ds_read2_b32 {v(r,2)}, v{AA + mu//2} offset0:{off} offset1:{off+1}", f"c{c}{ph}_{i}")
                q.e(f"ds_read2_b32 {v(r+2,2)}, v{AA + mu//2} offset0:{off+2} offset1:{off+3}", f"c{c}{ph}_{i}")
                q.e(f"ds_read_b128 {v(FB + 32*st + 4*i,4)}, v{BA} offset:{c*REGSZ + 512*i + (1-ph)*64}", f"c{c}{ph}_{i}")
            return q
        def mfmas(c, ph):
            q = Prog(); st = ph; first = set()
            for n in range(8):
                prs = [(mu, n) for mu in range(n + 1) if mu + n <= 7] + [(n, d) for d in range(n) if n + d <= 7]
                q.wlg(f"c{c}{ph}_{n}")
                for mu, d in prs:
                    I = mu + d; acc = v(ACC + 4 * I, 4)
                    src = "0" if (ph == 0 and I not in first) else acc
                    first.add(I)
                    q.e(f"v_mfma_f32_16x16x32_bf16 {acc}, {v(FA+32*st+4*mu,4)}, {v(FB+32*st+4*d,4)}, {src}")
            return q
        for c in range(3):
            if c > 0:
                for mp in range(4): e(f"v_add_u32 v{AA+mp}, {REGSZ}, v{AA+mp}")
            p.ext(loads(c, 0)); p.ext(loads(c, 1))
            p.ext(mfmas(c, 0)); p.ext(mfmas(c, 1))
            bo = (c & 1) * 24576
            e("s_nop 7")
            for k in range(4):
                lo, ld = self.label("cown"), self.label("cdone")
                e(f"s_cmp_eq_u32 {WV}, {k}\ns_cbranch_scc1 {lo}")
                e(f"ds_write_b128 v{WR+k}, {v(ACC+8*k,4)} offset:{bo}\nds_write_b128 v{WR+k}, {v(ACC+8*k+4,4)} offset:{bo+1024}", "cw")
                e(f"s_branch {ld}\n{lo}:")
                for i in range(8): e(f"v_mov_b32 v{232+i}, v{ACC+8*k+i}")
                e(f"{ld}:")
            e("s_waitcnt lgkmcnt(0)\ns_barrier")
            for s in range(3):
                for i in range(2): e(f"ds_read_b128 {v(S+8*s+4*i,4)}, v{RD_} offset:{bo + s*2048 + i*1024}", "cr")
            p.wlg("cr")
            for i in range(4):
                e(f"v_pk_add_f32 {v(232+2*i,2)}, {v(232+2*i,2)}, {v(S+2*i,2)}\nv_pk_add_f32 {v(S+8+2*i,2)}, {v(S+8+2*i,2)}, {v(S+16+2*i,2)}")
            for i in range(4): e(f"v_pk_add_f32 {v(232+2*i,2)}, {v(232+2*i,2)}, {v(S+8+2*i,2)}")
            PKR = 240 + 4 * c
            for i in range(4): e(f"v_cvt_pk_bf16_f32 v{PKR+i}, v{232+2*i}, v{233+2*i}")
            e(f"v_permlane16_swap_b32 v{PKR}, v{PKR+2}\nv_permlane16_swap_b32 v{PKR+1}, v{PKR+3}")
            e(f"buffer_store_dwordx4 {v(PKR,4)}, v{YO}, {SWS}, s86 offen sc1", "ys")
            e("s_add_u32 s86, s86, 4096")
    def flag_y(self, p):
        p.e(f"s_lshl_b32 s89, {WV}, 10\ns_lshl_b32 s51, {XCD}, 7\ns_add_u32 s89, s89, s51\ns_lshl_b32 s51, {IDX}, 2\ns_add_u32 s89, s89, s51\ns_add_u32 s89, s89, {F3}")
        p.e("s_waitcnt vmcnt(0)")
        self.flag_store(p, "s89")

    def load_xinit(self, p):
        e = p.e
        e(f"v_and_b32 v20, 15, {LANE}\nv_mul_u32_u24 v18, 1280, v20\nv_lshrrev_b32 v21, 4, {LANE}\nv_lshl_add_u32 v18, v21, 3, v18")
        e(f"s_lshl_b32 s94, {ST2}, 6\ns_lshl_b32 s51, {WV}, 4\ns_add_u32 s94, s94, s51\ns_lshl_b32 s95, s94, 1\nv_lshl_add_u32 v20, v20, 1, s95")
        e(f"s_mul_i32 s94, s94, 1280\ns_mul_i32 s51, {DT2}, 160\ns_add_u32 s94, s94, s51")
        for di in range(5): e(f"buffer_load_dwordx2 {v(24+2*di,2)}, v18, {SX}, s94 offen offset:{32*di}", "xi")
        e("global_load_ushort v34, v20, s[42:43]", "xi")
    def gemm2(self, p):
        e = p.e
        ACC, GR, ns = 176, 60, self.gdepth
        YR, SEL = 40, 36
        assert GR + 4 * ns <= ACC and ns % 5 == 0
        e(f"v_lshrrev_b32 v20, 4, {LANE}\nv_and_b32 v21, 15, {LANE}\nv_mul_u32_u24 v19, 10240, v20\nv_lshl_add_u32 v19, v21, 4, v19")
        e(f"v_and_b32 v22, 1, v20\nv_lshlrev_b32 v35, 12, v21\nv_lshl_add_u32 v35, v22, 4, v35")
        e(f"v_lshlrev_b32 v22, 3, v20\nv_sub_u32 v22, v21, v22\nv_and_b32 v23, 1, v22\nv_lshlrev_b32 v23, 4, v23\nv_mov_b32 v20, 0x3f80\nv_lshlrev_b32 v23, v23, v20\nv_ashrrev_i32 v22, 1, v22")
        for q in range(4): e(f"v_cmp_eq_u32 vcc, {q}, v22\nv_cndmask_b32 v{SEL+q}, 0, v23, vcc")
        p.wvm("xi")
        e("v_lshlrev_b32 v34, 16, v34")
        for di in range(5):
            c = ACC + 16 * di
            self.unpack(p, 24 + 2 * di, c, 2)
            for i in range(4): e(f"v_add_f32 v{c+i}, v{c+i}, v34")
        e(f"s_mul_i32 s50, {DT2}, 80\ns_lshr_b32 s50, s50, 6\ns_mul_i32 s50, s50, 24\ns_mul_i32 s51, {WV}, 6\ns_add_u32 s50, s50, s51\ns_lshl_b32 s50, s50, 4\ns_add_u32 s50, s50, {F2}")
        e(f"v_min_u32 v21, 47, {LANE}\nv_cmp_lt_u32 vcc, 23, v21\nv_mov_b32 v22, 288\nv_cndmask_b32 v22, 0, v22, vcc\nv_lshl_add_u32 v21, v21, 2, v22")
        e(f"s_mul_i32 s84, {WV}, {48*10240}\ns_mul_i32 s51, {DT2}, 1280\ns_add_u32 s84, s84, s51\ns_add_u32 s84, s84, {GB}\ns_add_u32 s85, s84, {48*10240}")
        e(f"s_mul_i32 s76, s12, 40960\ns_add_u32 s76, s76, s84")
        e("s_waitcnt lgkmcnt(0)\ns_barrier")
        self.stamp(p)
        self.poll(p, "v21", "s50", 20)
        self.stamp(p)
        def ld(ks):
            for di in range(5):
                r = GR + 4 * ((5 * ks + di) % ns)
                e(f"buffer_load_dwordx4 {v(r,4)}, v19, {SWS}, s76 offen offset:{256*di} sc1", f"g{ks}_{di}")
            e("s_add_u32 s76, s76, 40960\ns_cmp_eq_u32 s76, s85\ns_cselect_b32 s76, s84, s76")
        pre = ns // 5
        for ks in range(pre): ld(ks)
        for ks in range(12):
            for di in range(5):
                p.wvm(f"g{ks}_{di}")
                for ss in range(4):
                    r = GR + 4 * ((5 * ks + di) % ns); c = ACC + 4 * (di * 4 + ss)
                    src = "0" if (ks == 0 and ss > 0) else v(c, 4)
                    e(f"v_mfma_f32_16x16x32_bf16 {v(c,4)}, {v(r,4)}, {a(16*ks+4*ss,4)}, {src}")
            if ks + pre < 12: ld(ks + pre)
        self.stamp(p)
        for t in range(1, 4):
            e(f"s_xor_b32 s51, {WV}, {t}\ns_mul_i32 s51, s51, 15360\ns_add_u32 s51, s51, {(t-1)*5120}\nv_add_u32 v{20+t}, s51, {L16}")
        e(f"s_mul_i32 s51, {WV}, 15360\nv_add_u32 v24, s51, {L16}")
        for t in range(1, 4):
            for di in range(5): e(f"ds_write_b128 v{20+t}, {v(ACC+4*(di*4+t),4)} offset:{di*1024}", "r2w")
        e(f"s_lshr_b32 s50, {ST2}, 3\ns_lshl_b32 s50, s50, 10\ns_lshl_b32 s51, {DT2}, 7\ns_add_u32 s50, s50, s51\ns_add_u32 s50, s50, {F3}")
        e(f"v_and_b32 v25, 0x7c, {L4}")
        self.poll(p, "v25", "s50", 20)
        e(f"s_mul_i32 s50, {DT2}, {80*4096}\ns_add_u32 s50, s50, s95\ns_add_u32 s50, s50, {YT}")
        for di in range(5):
            e(f"buffer_load_dwordx4 {v(YR+4*di,4)}, v35, {SWS}, s50 offen sc1", f"y{di}")
            e("s_add_u32 s50, s50, 65536")
        e("s_waitcnt lgkmcnt(0)\ns_barrier")
        for di in range(5):
            for t in range(3): e(f"ds_read_b128 {v(GR+12*di+4*t,4)}, v24 offset:{t*5120+di*1024}", f"r2r{di}")
        for di in range(5):
            c = ACC + 16 * di
            p.wvm(f"y{di}")
            e(f"v_mfma_f32_16x16x32_bf16 {v(c,4)}, {v(YR+4*di,4)}, {v(SEL,4)}, {v(c,4)}")
        for di in range(5):
            c = ACC + 16 * di; r = GR + 12 * di
            p.wlg(f"r2r{di}")
            for hq in range(2): e(f"v_pk_add_f32 {v(r+2*hq,2)}, {v(r+2*hq,2)}, {v(r+4+2*hq,2)}\nv_pk_add_f32 {v(c+2*hq,2)}, {v(c+2*hq,2)}, {v(r+8+2*hq,2)}")
            for hq in range(2): e(f"v_pk_add_f32 {v(c+2*hq,2)}, {v(c+2*hq,2)}, {v(r+2*hq,2)}")
            for hq in range(2): e(f"v_cvt_pk_bf16_f32 v{26+2*di+hq}, v{c+2*hq}, v{c+2*hq+1}")
            e(f"buffer_store_dwordx2 {v(26+2*di,2)}, v18, {SOUT}, s94 offen offset:{32*di}", "os")
        self.stamp(p)

    def build(self):
        p = Prog(); e = p.e
        self.prologue(p)
        n0 = self.n0 // 2
        for ks in range(n0): p.ext(self.dma_w1(ks))
        self.setup2(p)
        e("s_waitcnt lgkmcnt(0)")
        self.ln(p)
        self.publish_ln(p)
        for ks in range(n0, 8): p.ext(self.dma_w1(ks))
        kg = Prog(); self.kgen(kg)
        sides = []
        for ks in range(32):
            b = Prog()
            if ks >= 1 and ks - 1 + 8 < 32:
                b.wlg(f"t1_{ks-1}"); b.ext(self.dma_w1(ks - 1 + 8))
            b.ext(self.tr_w1(ks))
            sides.append(b)
        cut = next(i for i, (it, _) in enumerate(kg.items) if isinstance(it, str) and "exec" in it)
        cut = max(i for i in range(cut) if isinstance(kg.items[i][0], str) and kg.items[i][0].startswith("v_mfma")) + 1
        head = Prog(); head.items = kg.items[:cut]; tail = Prog(); tail.items = kg.items[cut:]
        c0 = next(i for i, (it, _) in enumerate(head.items) if it == ("wvm", "par"))
        pre = Prog(); pre.items = head.items[:c0]; head.items = head.items[c0:]
        p.ext(pre)
        p.ext(interleave(head, sides))
        self.flag_xn(p)
        p.ext(tail)
        self.gemm1(p)
        self.setup_w2(p)
        self.gemm1_epi(p)
        self.load_u(p)
        for ks in range(4): p.ext(self.dma_w2(ks))
        self.stage_u(p)
        for ks in range(4):
            p.ext(self.tr_w2(ks))
        for ks in range(4):
            p.wlg(f"t2_{ks}"); p.ext(self.dma_w2(ks + 4))
        self.stamp(p)
        self.conv(p)
        self.flag_y(p)
        self.stamp(p)
        self.load_xinit(p)
        for ks in range(4, 8): p.ext(self.tr_w2(ks))
        for ks in range(4, 8):
            p.wlg(f"t2_{ks}"); p.ext(self.dma_w2(ks + 4))
        for ks in range(8, 12): p.ext(self.tr_w2(ks))
        self.gemm2(p)
        e(f"s_or_b32 s51, {WG}, {WV}\ns_cmp_lg_u32 s51, 0\ns_cbranch_scc1 L_noep")
        e(f"s_mov_b64 exec, 1\nbuffer_store_dword {VTAG}, {VZ}, {SWS}, 0 offen\ns_mov_b64 exec, -1")
        e("L_noep:")
        if self.debug:
            e("s_waitcnt vmcnt(0)")
            self.stamp(p)
            e(f"s_lshl_b32 s50, {WG}, 2\ns_add_u32 s50, s50, {WV}\ns_lshl_b32 s50, s50, 7\ns_add_u32 s50, s50, {TM}")
            e(f"s_mov_b32 exec_hi, 0\nbuffer_store_dword {VDBG}, {L4}, {SWS}, s50 offen")
        e("L_end:\ns_endpgm")
        body = finalize(p)
        ref = open("cdna_kernels/" + NAME + ".s.ref").read()
        head = [l for l in ref.split("\n") if l.startswith(";") and "@launch" not in l]
        k = NAME + "_kernel"
        s = "\n".join(head) + f"\n; @launch grid=(256,1,1) block=(256,1,1) lds={LDS_BYTES}\n"
        s += f'.amdgcn_target "amdgcn-amd-amdhsa--gfx950"\n.text\n.globl {k}\n.p2align 8\n.type {k},@function\n{k}:\n'
        s += body
        s += f""".section .rodata,"a"
.p2align 6
.amdhsa_kernel {k}
  .amdhsa_next_free_vgpr 512
  .amdhsa_next_free_sgpr 102
  .amdhsa_accum_offset 256
  .amdhsa_group_segment_fixed_size 0
  .amdhsa_kernarg_size 136
  .amdhsa_user_sgpr_count 2
  .amdhsa_user_sgpr_kernarg_segment_ptr 1
  .amdhsa_system_sgpr_workgroup_id_x 1
.end_amdhsa_kernel
"""
        return s

if __name__ == "__main__":
    out = sys.argv[1]
    kw = eval("dict(" + (sys.argv[2] if len(sys.argv) > 2 else "") + ")")
    open(out, "w").write(G(**kw).build())
```

```python
import sys, struct
import numpy as np
from asmlib import Prog, interleave, finalize

NAME = "parallel_sum__ssm_conv_s4__mixer_token_mlp__prompt"
F1, F1B, F2, F3, TM = 0x1000, 0x2000, 0x3000, 0x4000, 0x8000
HB, XB, GB, YT, WSEND = 0x100000, 0x400000, 0x700000, 0x900000, 0xC00000
RING, RINGW = 0, 16384
REG0, REGSZ = 65536, 14592
AUX = REG0 + 3 * REGSZ
LNT = REG0 + 4 * REGSZ
PT = 1344
R0O, R1O, UO, KCO = 0, 4160, 8448, 13056 + 32
KP = 272
LDS_BYTES = 163840

def fbits(x): return "0x%08x" % struct.unpack("<I", struct.pack("<f", x))[0]
def bf16r(l):
    u = struct.unpack("<I", struct.pack("<f", float(l)))[0]
    u = ((u + 0x7FFF + ((u >> 16) & 1)) >> 16) << 16
    return int(struct.unpack("<f", struct.pack("<I", u))[0])
def ci(l):
    v = bf16r(l)
    if v <= 256: return v
    if v <= 512: return 256 + (v - 256) // 2
    if v <= 1024: return 384 + (v - 512) // 4
    return 512 + (v - 1024) // 8

WG, WV, XCD, IDX, DT, FT, DT2, ST2, TAG, CB = "s2", "s3", "s4", "s5", "s6", "s7", "s8", "s9", "s10", "s14"
SX, SW1, SW2, SOUT, SWS = "s[52:55]", "s[56:59]", "s[60:63]", "s[64:67]", "s[68:71]"
RINGB, REGB = "s73", "s77"
LANE, L16, L4, VW1, VTR0, VTR1, VH0, VH1, VTAG, VZ, VDBG = "v1", "v2", "v3", "v4", "v5", "v6", "v7", "v8", "v9", "v10", "v11"

def v(i, n=1): return f"v{i}" if n == 1 else f"v[{i}:{i+n-1}]"
def a(i, n=1): return f"a{i}" if n == 1 else f"a[{i}:{i+n-1}]"

class G:
    def __init__(self, debug=False, n0=8, hdepth=16, gdepth=20, wflag="nt", **kw):
        self.debug = debug; self.n0 = n0; self.hdepth = hdepth; self.gdepth = gdepth; self.wflag = wflag
        self.nst = 0; self.nlab = 0
        self.opt = kw
    def stamp(self, p):
        if not self.debug: return
        p.e("s_memrealtime s[82:83]\ns_waitcnt lgkmcnt(0)")
        p.e(f"v_writelane_b32 {VDBG}, s82, {self.nst}")
        self.nst += 1
    def label(self, s):
        self.nlab += 1; return f"L{s}_{self.nlab}"
    def flag_store(self, p, soff):
        p.e(f"s_mov_b64 exec, 1\nbuffer_store_dword {VTAG}, {VZ}, {SWS}, {soff} offen sc1\ns_mov_b64 exec, -1")
    def poll(self, p, voff, soff, tmp, wide=False):
        l = self.label("poll"); d = self.label("polld")
        p.e("s_mov_b32 s78, 0")
        p.e(f"{l}:")
        if wide:
            p.e(f"buffer_load_dwordx4 {v(tmp,4)}, {voff}, {SWS}, {soff} offen sc1")
            p.e("s_add_u32 s78, s78, 1\ns_waitcnt vmcnt(0)")
            for i in range(4): p.e(f"v_xor_b32 {v(tmp+i)}, {TAG}, {v(tmp+i)}")
            p.e(f"v_or3_b32 {v(tmp)}, {v(tmp)}, {v(tmp+1)}, {v(tmp+2)}\nv_or_b32 {v(tmp)}, {v(tmp)}, {v(tmp+3)}")
            p.e(f"v_cmp_ne_u32 vcc, 0, {v(tmp)}")
        else:
            p.e(f"buffer_load_dword {v(tmp)}, {voff}, {SWS}, {soff} offen sc1")
            p.e("s_add_u32 s78, s78, 1\ns_waitcnt vmcnt(0)")
            p.e(f"v_cmp_ne_u32 vcc, {TAG}, {v(tmp)}")
        p.e(f"s_cmp_gt_u32 s78, 0x8000\ns_cbranch_scc1 {d}\ns_cbranch_vccnz {l}")
        p.e(f"{d}:")

    def prologue(self, p):
        e = p.e
        e(f"s_cmp_ge_u32 {WG}, 256\ns_cbranch_scc1 L_end")
        e("s_load_dwordx16 s[16:31], s[0:1], 0\ns_load_dwordx16 s[32:47], s[0:1], 64\ns_load_dwordx2 s[48:49], s[0:1], 128")
        e(f"v_and_b32 {LANE}, 63, v0\nv_lshrrev_b32 v12, 6, v0\nv_readfirstlane_b32 {WV}, v12")
        e(f"v_lshlrev_b32 {L16}, 4, {LANE}\nv_lshlrev_b32 {L4}, 2, {LANE}\nv_mov_b32 {VZ}, 0\nv_mov_b32 {VDBG}, 0")
        e(f"s_and_b32 {XCD}, {WG}, 7\ns_lshr_b32 {IDX}, {WG}, 3")
        e(f"v_lshrrev_b32 v12, 5, {LANE}\nv_mul_u32_u24 v12, 1280, v12\nv_and_b32 v15, 31, {LANE}")
        e("v_lshl_add_u32 v13, v15, 4, v12\nv_lshl_add_u32 v14, v15, 3, v12")
        e(f"s_lshl_b32 s50, {WG}, 3\ns_lshl_b32 s51, {WV}, 1\ns_add_u32 s50, s50, s51\ns_mul_i32 s50, s50, 1280")
        e(f"s_min_u32 s15, {IDX}, 29\ns_mul_i32 {FT}, s15, 52\ns_lshr_b32 {FT}, {FT}, 8")
        e(f"s_mul_i32 s51, {FT}, 5\ns_sub_u32 {DT}, s15, s51")
        e(f"s_mul_i32 s11, {DT}, 6\ns_add_u32 s11, s11, s51\ns_and_b32 s11, s11, 31")
        e(f"s_and_b32 s51, {XCD}, 1\ns_mul_i32 s51, s51, 5\ns_add_u32 {DT}, {DT}, s51")
        e(f"s_lshr_b32 s51, {XCD}, 1\ns_mul_i32 s51, s51, 6\ns_add_u32 {FT}, {FT}, s51")
        e(f"s_lshr_b32 s51, {IDX}, 1\ns_mul_i32 {CB}, s51, 5\ns_mul_i32 s51, {XCD}, 80\ns_add_u32 {CB}, {CB}, s51")
        e(f"s_and_b32 s51, {IDX}, 1\ns_lshl_b32 s51, s51, 1\ns_add_u32 {CB}, {CB}, s51")
        e(f"s_min_u32 s13, {WV}, 2\ns_add_u32 s13, s13, {CB}")
        e(f"s_lshl_b32 {RINGB}, {WV}, 14\ns_mul_i32 {REGB}, {WV}, {REGSZ}\ns_add_u32 {REGB}, {REGB}, {REG0}")
        e(f"v_lshrrev_b32 v12, 3, {LANE}\nv_and_b32 v15, 7, {LANE}\nv_lshlrev_b32 v16, 1, v12\nv_and_b32 v16, 4, v16\nv_xor_b32 v15, v15, v16")
        e(f"v_mul_u32_u24 v12, 3072, v12\nv_lshl_add_u32 {VW1}, v15, 4, v12")
        e(f"s_mul_i32 s84, {WV}, {512*3072}\ns_lshl_b32 s51, {FT}, 7\ns_add_u32 s84, s84, s51\ns_add_u32 s85, s84, {512*3072}")
        e(f"s_mul_i32 s72, s11, {16*3072}\ns_add_u32 s72, s72, s84")
        e(f"s_mul_i32 s51, s13, 384\nv_add_u32 v16, s51, {L4}\nv_lshlrev_b32 v17, 1, {LANE}\nv_add_u32 v17, s51, v17")
        e("s_lshr_b32 s79, s13, 1\ns_lshl_b32 s79, s79, 2")
        e("s_waitcnt lgkmcnt(0)")
        def srd(d, lo, size): e(f"s_mov_b32 s{d}, s{lo}\ns_mov_b32 s{d+1}, s{lo+1}\ns_mov_b32 s{d+2}, {size}\ns_mov_b32 s{d+3}, 0x20000")
        srd(52, 16, 2621440)
        e(f"buffer_load_dwordx4 v[20:23], v13, {SX}, s50 offen", "x")
        e(f"buffer_load_dwordx4 v[24:27], v13, {SX}, s50 offen offset:512", "x")
        e(f"buffer_load_dwordx2 v[28:29], v14, {SX}, s50 offen offset:1024", "x")
        e(f"s_load_dword {TAG}, s[48:49], 0\ns_load_dword s80, s[30:31], s79\ns_load_dword s81, s[32:33], s79")
        srd(56, 36, 6291456); srd(60, 40, 6291456); srd(64, 44, 2621440); srd(68, 48, WSEND)
        for i in range(6):
            e(f"global_load_dword v{124+2*i}, v16, s[{18+2*i}:{19+2*i}]", "par")
            e(f"global_load_ushort v{125+2*i}, v17, s[{18+2*i}:{19+2*i}] offset:256", "par")
        self.stamp(p)

    def dma_w1(self, ks):
        p = Prog()
        sl = (ks % 8) * 2048
        p.e(f"s_add_u32 m0, {RINGB}, {sl}\ns_add_u32 s51, s72, {8*3072}")
        p.e(f"buffer_load_dwordx4 {VW1}, {SW1}, s72 offen {self.wflag} lds", f"w1_{ks}")
        p.e(f"s_add_u32 m0, {RINGB}, {sl+1024}\ns_add_u32 s72, s72, {16*3072}")
        p.e(f"buffer_load_dwordx4 {VW1}, {SW1}, s51 offen {self.wflag} lds", f"w1_{ks}")
        p.e("s_cmp_eq_u32 s72, s85\ns_cselect_b32 s72, s84, s72")
        return p
    def tr_w1(self, ks):
        p = Prog()
        sl = (ks % 8) * 2048
        p.wvm(f"w1_{ks}")
        for fs, ad in enumerate((VTR0, VTR1)):
            p.e(f"ds_read_b64_tr_b16 {a(8*ks+4*fs,2)}, {ad} offset:{sl}", f"t1_{ks}")
            p.e(f"ds_read_b64_tr_b16 {a(8*ks+4*fs+2,2)}, {ad} offset:{sl+512}", f"t1_{ks}")
        return p

    def setup2(self, p):
        e = p.e
        e(f"v_bfe_u32 v12, {LANE}, 2, 2\nv_and_b32 v13, 3, {LANE}\nv_bfe_u32 v14, {LANE}, 4, 1\nv_lshrrev_b32 v15, 5, {LANE}")
        e("v_lshlrev_b32 v16, 10, v15\nv_lshl_add_u32 v16, v12, 7, v16\nv_lshl_add_u32 v16, v14, 5, v16\nv_lshl_add_u32 v16, v13, 3, v16")
        e(f"v_lshlrev_b32 v17, 5, v12\nv_and_b32 v17, 64, v17\ns_lshr_b32 s51, {WV}, 1\ns_lshl_b32 s51, s51, 6\nv_xor_b32 v17, s51, v17")
        e(f"v_add3_u32 {VTR0}, v16, v17, {RINGB}\nv_xor_b32 {VTR1}, 64, {VTR0}")
        e(f"v_mul_u32_u24 v16, 10240, v15\nv_and_b32 v17, 31, {LANE}\nv_lshl_add_u32 v16, v17, 4, v16")
        e(f"s_and_b32 s51, {WV}, 1\ns_lshl_b32 s51, s51, 9\nv_add_u32 {VH0}, s51, v16\ns_xor_b32 s51, s51, 512\nv_add_u32 {VH1}, s51, v16")
        e(f"s_lshl_b32 s51, {FT}, 7\ns_lshr_b32 s15, {WV}, 1\ns_lshl_b32 s15, s15, 6\ns_add_u32 s51, s51, s15\nv_lshl_add_u32 v136, v15, 3, s51")
        for j in range(4): e(f"global_load_dwordx2 {v(12+2*j,2)}, v136, s[38:39] offset:{16*j}", "b1")
        e(f"s_and_b32 {DT2}, {IDX}, 3\ns_lshr_b32 {ST2}, {IDX}, 2")
        e(f"s_mul_i32 s12, {ST2}, 3\ns_lshr_b32 s12, s12, 1\ns_mul_i32 s51, {DT2}, 3\ns_add_u32 s12, s12, s51\ns_sub_u32 s51, s12, 12\ns_cmp_ge_u32 s12, 12\ns_cselect_b32 s12, s51, s12")
        e(f"s_and_b32 s51, {XCD}, 1\ns_lshl_b32 s51, s51, 2\ns_add_u32 {DT2}, {DT2}, s51")
        e(f"s_lshr_b32 s51, {XCD}, 1\ns_lshl_b32 s51, s51, 3\ns_add_u32 {ST2}, {ST2}, s51")

    def red32(self, p, regs, tmp):
        for m in ("quad_perm:[1,0,3,2]", "quad_perm:[2,3,0,1]", "row_half_mirror", "row_mirror"):
            for r in regs: p.e(f"v_add_f32_dpp v{r}, v{r}, v{r} {m} row_mask:0xf bank_mask:0xf")
        for i, r in enumerate(regs): p.e(f"v_mov_b32 v{tmp+i}, v{r}")
        for i, r in enumerate(regs): p.e(f"v_permlane16_swap_b32 v{r}, v{tmp+i}")
        for i, r in enumerate(regs): p.e(f"v_add_f32 v{r}, v{r}, v{tmp+i}")
    def unpack(self, p, src, dst, n):
        for i in range(n):
            p.e(f"v_lshlrev_b32 v{dst+2*i}, 16, v{src+i}\nv_and_b32 v{dst+2*i+1}, 0xffff0000, v{src+i}")
    def rbf(self, p, r):
        p.e(f"v_cvt_pk_bf16_f32 v{r}, v{r}, v{r}\nv_lshlrev_b32 v{r}, 16, v{r}")
    def ln(self, p):
        e = p.e
        RAW, F, D, T, XN, H = 20, 30, 50, 70, 80, 90
        inv = fbits(1.0 / 640)
        p.wvm("x")
        self.stamp(p)
        self.unpack(p, RAW, F, 10)
        def psum(src, dst):
            e(f"v_pk_add_f32 {v(dst,2)}, {v(src,2)}, {v(src+2,2)}\nv_pk_add_f32 {v(dst+2,2)}, {v(src+4,2)}, {v(src+6,2)}")
            for i in range(4, 10): e(f"v_pk_add_f32 {v(dst+2*(i&1),2)}, {v(dst+2*(i&1),2)}, {v(src+2*i,2)}")
            e(f"v_pk_add_f32 {v(dst,2)}, {v(dst,2)}, {v(dst+2,2)}\nv_add_f32 v{dst}, v{dst}, v{dst+1}")
        def psq(src, dst):
            e(f"v_pk_mul_f32 {v(dst,2)}, {v(src,2)}, {v(src,2)}\nv_pk_mul_f32 {v(dst+2,2)}, {v(src+2,2)}, {v(src+2,2)}")
            for i in range(2, 10): e(f"v_pk_fma_f32 {v(dst+2*(i&1),2)}, {v(src+2*i,2)}, {v(src+2*i,2)}, {v(dst+2*(i&1),2)}")
            e(f"v_pk_add_f32 {v(dst,2)}, {v(dst,2)}, {v(dst+2,2)}\nv_add_f32 v{dst}, v{dst}, v{dst+1}")
        def rstd(var, out):
            e(f"v_max_f32 v{var}, 0, v{var}")
            self.rbf(p, var); e(f"v_add_f32 v{var}, {fbits(1e-5)}, v{var}"); self.rbf(p, var)
            e(f"v_sqrt_f32 v{var}, v{var}"); self.rbf(p, var); e(f"v_rcp_f32 v{out}, v{var}")
        def center(mb):
            for i in range(10): e(f"v_pk_add_f32 {v(D+2*i,2)}, {v(F+2*i,2)}, {v(mb,2)} op_sel_hi:[1,0] neg_lo:[0,1] neg_hi:[0,1]")
        def roundD():
            for i in range(10): e(f"v_cvt_pk_bf16_f32 v{RAW+i}, v{D+2*i}, v{D+2*i+1}")
            self.unpack(p, RAW, D, 10)
        def scale(r, out):
            for i in range(10): e(f"v_pk_mul_f32 {v(D+2*i,2)}, {v(D+2*i,2)}, {v(r,2)} op_sel_hi:[1,0]")
            for i in range(10): e(f"v_cvt_pk_bf16_f32 v{out+i}, v{D+2*i}, v{D+2*i+1}")
        psum(F, T); self.red32(p, [T], T + 2)
        e(f"v_mul_f32 v{T}, {inv}, v{T}\nv_mov_b32 v{T+4}, v{T}"); self.rbf(p, T + 4)
        center(T + 4)
        e(f"v_sub_f32 v{T+5}, v{T}, v{T+4}")
        psq(D, T); self.red32(p, [T], T + 2)
        e(f"v_mul_f32 v{T}, {inv}, v{T}\nv_fma_f32 v{T}, -v{T+5}, v{T+5}, v{T}")
        rstd(T, T + 6)
        roundD(); scale(T + 6, XN)
        self.unpack(p, XN, F, 10)
        e(f"v_lshrrev_b32 v100, 5, {LANE}\ns_lshl_b32 s51, {WV}, 1\nv_add_u32 v100, s51, v100\nv_mul_u32_u24 v100, {PT}, v100\nv_add_u32 v100, {LNT}, v100")
        e(f"v_and_b32 v102, 31, {LANE}\nv_lshl_add_u32 v101, v102, 3, v100\nv_lshl_add_u32 v100, v102, 4, v100")
        def wrow(src, off):
            e(f"ds_write_b128 v100, {v(src,4)} offset:{off}\nds_write_b128 v100, {v(src+4,4)} offset:{off+512}\nds_write_b64 v101, {v(src+8,2)} offset:{off+1024}", "lnw")
        wrow(XN, 8 * PT)
        psum(F, T); psq(F, T + 4); self.red32(p, [T, T + 4], T + 2)
        e(f"v_mul_f32 v{T}, {inv}, v{T}\nv_mul_f32 v{T+4}, {inv}, v{T+4}\nv_fma_f32 v{T+4}, -v{T}, v{T}, v{T+4}")
        self.rbf(p, T)
        rstd(T + 4, T + 6)
        center(T); roundD(); scale(T + 6, H)
        wrow(H, 0)
        e(f"v_bfe_u32 v102, {LANE}, 2, 2\nv_mul_u32_u24 v102, {PT}, v102\nv_lshrrev_b32 v103, 4, {LANE}\nv_lshl_add_u32 v102, v103, 5, v102")
        e(f"v_and_b32 v103, 3, {LANE}\nv_lshl_add_u32 v102, v103, 3, v102\ns_lshl_b32 s51, {WV}, 7\ns_add_u32 s51, s51, {LNT}\nv_add_u32 v102, s51, v102")
        e(f"s_mul_i32 {TAG}, {TAG}, 0x9E3779B1\ns_add_u32 {TAG}, {TAG}, 0x7F4A7C15\nv_mov_b32 {VTAG}, {TAG}")
        e("s_waitcnt lgkmcnt(0)\ns_barrier")
    def publish_ln(self, p):
        e = p.e
        for arr in range(2):
            for j in range(3):
                o = arr * 8 * PT + j * 512
                e(f"ds_read_b64_tr_b16 {v(30+arr*12+4*j,2)}, v102 offset:{o}\nds_read_b64_tr_b16 {v(32+arr*12+4*j,2)}, v102 offset:{o+4*PT}", f"lnr{arr}")
        e(f"s_mul_i32 s50, {WG}, 10240\ns_lshl_b32 s51, {WV}, 10\ns_add_u32 s50, s50, s51")
        e(f"s_mov_b32 s15, 0x4000000\ns_cmp_lt_u32 {WV}, 2\ns_cselect_b32 s15, 8192, s15")
        for arr, base in enumerate((HB, XB)):
            e(f"s_add_u32 s86, s50, {base}\ns_add_u32 s87, s86, 4096\ns_add_u32 s88, s86, s15")
            p.wlg(f"lnr{arr}")
            for j in range(3): e(f"buffer_store_dwordx4 {v(30+arr*12+4*j,4)}, {L16}, {SWS}, s{86+j} offen sc1", f"lns{arr}")
            if arr == 0:
                e(f"s_lshl_b32 s51, {WV}, 10\ns_lshl_b32 s89, {WG}, 2\ns_add_u32 s89, s89, s51\ns_add_u32 s89, s89, {F1}")
                e("s_waitcnt vmcnt(0)")
                self.flag_store(p, "s89")
                self.stamp(p)
    def flag_xn(self, p):
        p.e(f"s_lshl_b32 s51, {WV}, 2\ns_lshl_b32 s89, {WG}, 4\ns_add_u32 s89, s89, s51\ns_add_u32 s89, s89, {F1B}")
        p.e("s_waitcnt vmcnt(0)")
        self.flag_store(p, "s89")

    def kgen(self, p):
        e = p.e
        L2E = 1.4426950408889634
        l2e_hi = struct.unpack("<f", struct.pack("<f", L2E))[0]; l2e_lo = L2E - l2e_hi
        VDT, VD1, VD2, VDS, WA, RA, RB = 54, 55, 56, 57, 58, 59, 60
        ACC = 140
        e(f"s_and_b32 s51, s13, 1\ns_lshl_b32 s51, s51, 4\ns_lshr_b32 s80, s80, s51\ns_lshl_b32 s80, s80, 16\ns_lshr_b32 s81, s81, s51\ns_lshl_b32 s81, s81, 16")
        e(f"v_mov_b32 v62, s80\nv_mov_b32 v63, {fbits(l2e_hi)}\nv_mul_f32 v64, v62, v63\nv_fma_f32 v65, v62, v63, -v64\nv_fmac_f32 v65, {fbits(l2e_lo)}, v62")
        e(f"v_exp_f32 v64, v64\nv_mul_f32 v65, {fbits(0.6931471805599453)}, v65\nv_fma_f32 v{VDT}, v64, v65, v64")
        self.rbf(p, VDT)
        e(f"v_mul_f32 v{VD1}, {fbits(L2E)}, v{VDT}\nv_mul_f32 v{VD2}, 0.15915494, v{VDT}")
        e(f"v_cmp_eq_u32 vcc, 0, {LANE}\nv_mov_b32 v62, s81\nv_cndmask_b32 v{VDS}, 0, v62, vcc")
        e(f"v_add_u32 v{WA}, {REGB}, {L4}")
        e(f"v_and_b32 v62, 31, {LANE}\nv_lshrrev_b32 v63, 5, {LANE}\nv_lshlrev_b32 v63, 4, v63\nv_add_u32 v63, {REGB}, v63")
        e(f"v_mul_u32_u24 v64, {KP}, v62\nv_add_u32 v{RB}, v64, v63")
        e(f"v_min_u32 v62, 20, v62\nv_add_u32 v62, 32, v62\nv_mul_u32_u24 v64, {KP}, v62\nv_add_u32 v{RA}, v64, v63")
        p.wvm("par")
        def cmul(sets):
            for d, x, y in sets: e(f"v_pk_mul_f32 {v(d,2)}, {v(x,2)}, {v(y,2)} op_sel_hi:[0,1]")
            for d, x, y in sets: e(f"v_pk_fma_f32 {v(d,2)}, {v(x,2)}, {v(y,2)}, {v(d,2)} op_sel:[1,1,0] op_sel_hi:[1,0,1] neg_lo:[1,0,0]")
        PK = 116
        pk = [0]
        def put(row, z, neg):
            r = PK + pk[0] % 8; pk[0] += 1
            e(f"v_cvt_pk_bf16_f32 v{r}, v{z}, {'-' if neg else ''}v{z+1}")
            e(f"ds_write_b32 v{WA}, v{r} offset:{row*KP}", "kw")
        P = 62
        for rd in range(3):
            for i in range(6):
                if rd == 0: e(f"v_lshlrev_b32 v{P+i}, 16, v{124+2*i}")
                elif rd == 1: e(f"v_and_b32 v{P+i}, 0xffff0000, v{124+2*i}")
                else: e(f"v_lshlrev_b32 v{P+i}, 16, v{125+2*i}")
            AR, AI = 68, 69
            e(f"v_mul_f32 v{AR}, v{P}, v{VD1}\nv_mul_f32 v{AI}, v{P+1}, v{VD2}")
            e(f"v_pk_mul_f32 {v(P+2,2)}, {v(P+2,2)}, {v(VDT,2)} op_sel_hi:[1,0]")
            E1, E8, E256 = 70, 72, 74
            TM_, TA = 76, 79
            for i, t in enumerate((1.0, 8.0, 256.0)):
                if i == 0: e(f"v_mov_b32 v{TM_}, v{AR}\nv_fract_f32 v{TA}, v{AI}")
                else: e(f"v_mul_f32 v{TM_+i}, {fbits(t)}, v{AR}\nv_mul_f32 v{TA+i}, {fbits(t)}, v{AI}\nv_fract_f32 v{TA+i}, v{TA+i}")
            X = 82
            cmul([(X, P + 4, P + 2)])
            for i in range(3):
                e(f"v_exp_f32 v{TM_+i}, v{TM_+i}\nv_cos_f32 v{E1+2*i}, v{TA+i}\nv_sin_f32 v{E1+2*i+1}, v{TA+i}")
            for i in range(3): e(f"v_mul_f32 v{E1+2*i}, v{E1+2*i}, v{TM_+i}\nv_mul_f32 v{E1+2*i+1}, v{E1+2*i+1}, v{TM_+i}")
            if rd > 0: p.wlg("kr")
            put(32, X, True)
            E2, E4, E16, E512 = 98, 100, 102, 104
            cmul([(E2, E1, E1), (E16, E8, E8), (E512, E256, E256), (X + 2, X, E1)])
            EA = 106
            EB = 20
            E32 = 114
            cmul([(E4, E2, E2), (EA + 6, E16, E8), (E32, E16, E16), (X + 4, X, E2), (X + 6, X + 2, E2)])
            if rd == 0:
                e(f"v_mov_b32 v28, 0x3f80\nds_write_b32 v{WA}, v28", "kw")
            put(1, E8, False); put(2, E16, False); put(3, EA + 6, False); put(4, E32, False)
            put(33, X + 2, True); put(34, X + 4, True); put(35, X + 6, True)
            cmul([(X + 8 + 2 * i, X + 2 * i, E4) for i in range(4)])
            cmul([(EB, E8, E32), (EB + 2, E16, E32), (EB + 4, EA + 6, E32), (EB + 6, E32, E32)])
            for i in range(4): put(36 + i, X + 8 + 2 * i, True)
            Y = 30
            cmul([(Y + 2 * i, X + 4 * i, E256) for i in range(4)])
            cur, nxt = EB, EA
            for i in range(4): put(5 + i, cur + 2 * i, False)
            Z = 38
            extra = [[(Z, X, E512), (Z + 2, X + 8, E512), (Z + 4, Y, E512), (Z + 6, Y + 4, E512)],
                     [(Z + 8, Z, E512), (Z + 10, Z + 4, E512)], [(Z + 12, Z + 8, E512), (Z + 14, Z + 10, E512)], [(X + 2, Z + 12, E512)], [], []]
            extra_put = [[(40 + i, Y + 2 * i) for i in range(4)], [(44 + i, Z + 2 * i) for i in range(4)], [(48, Z + 8), (49, Z + 10)], [(50, Z + 12), (51, Z + 14)], [(52, X + 2)], []]
            for st in range(6):
                j0 = 9 + 4 * st
                n = min(4, 32 - j0)
                cmul([(nxt + 2 * i, cur + 2 * i, E32) for i in range(n)] + extra[st])
                for row, z in extra_put[st]: put(row, z, True)
                for i in range(n): put(j0 + i, nxt + 2 * i, False)
                cur, nxt = nxt, cur
            p.wlg("kw")
            FA, FB = 156, 172
            for half in range(2):
                for s in range(4):
                    st = half * 4 + s
                    e(f"ds_read_b128 {v(FA+4*s,4)}, v{RA} offset:{st*32}\nds_read_b128 {v(FB+4*s,4)}, v{RB} offset:{st*32}", f"kr")
                p.wlg("kr")
                for s in range(4):
                    c = "0" if (rd == 0 and half == 0 and s == 0) else v(ACC, 16)
                    e(f"v_mfma_f32_32x32x16_bf16 {v(ACC,16)}, {v(FA+4*s,4)}, {v(FB+4*s,4)}, {c}")
        e(f"v_and_b32 v62, 31, {LANE}\nv_lshrrev_b32 v63, 5, {LANE}\ns_add_u32 s51, {REGB}, {KCO}")
        e(f"v_lshlrev_b32 v64, 4, v62\nv_lshl_add_u32 v64, v63, 3, v64\nv_add_u32 v64, s51, v64")
        e(f"v_cmp_eq_u32 vcc, 0, v63\nv_lshlrev_b32 v65, 3, v62\nv_add_u32 v65, 512, v65\nv_lshlrev_b32 v66, 2, v62\nv_add_u32 v66, 768, v66")
        e(f"v_cndmask_b32 v65, v66, v65, vcc\nv_add_u32 v65, s51, v65\nv_mov_b32 v66, 128\nv_cndmask_b32 v66, v66, 4, vcc\nv_add_u32 v66, v65, v66")
        e(f"v_lshlrev_b32 v67, 1, v62\nv_lshl_add_u32 v67, v63, 8, v67\nv_add_u32 v67, s51, v67")
        e(f"v_add_f32 v{ACC}, v{ACC}, v{VDS}")
        for i in range(6): e(f"v_cvt_pk_bf16_f32 v{70+i}, v{ACC+2*i}, v{ACC+2*i+1}")
        e(f"ds_write_b64 v64, v[70:71]\nds_write_b32 v65, v72\nds_write_b32 v66, v73\nds_write_b16 v67, v74 offset:1024", "kc")
        e("s_mov_b32 exec_hi, 0")
        e(f"ds_write_b16_d16_hi v67, v74 offset:{1024+64}\nds_write_b16 v67, v75 offset:{1024+128}\nds_write_b16_d16_hi v67, v75 offset:{1024+192}", "kc")
        e("s_mov_b64 exec, 0xff")
        e(f"v_add_u32 v64, {REGB}, {L4}\nds_write_b32 v64, {VZ} offset:{KCO-32}", "kc")
        e("s_mov_b32 exec_lo, -1")
        e(f"v_mov_b32 v76, 0\nv_mov_b32 v77, 0\nv_mov_b32 v78, 0\nv_mov_b32 v79, 0\nv_add_u32 v64, {REGB}, {L16}\nds_write_b128 v64, v[76:79] offset:{UO}", "kc")
        e("s_mov_b64 exec, -1")
        p.wlg("kc")
        vrs = []
        blocks = [(-2, 34, 8), (32, 32, 4), (64, 64, 2), (128, 64, 1), (192, 64, 1)]
        for bi, (v0, nl, stride) in enumerate(blocks):
            cis = lambda y: y if y < 0 else ci(y)
            base = cis(8 * v0) if v0 >= 0 else 8 * v0
            offs = {}
            for t in range(-1, 8):
                o = [cis(8 * (v0 + l) + 7 - t) - (base + stride * l) for l in range(nl)]
                offs[t] = (o[0], o[1])
                assert all(o[l] == o[l & 1] for l in range(nl)), (bi, t, o)
                assert o[1] - o[0] in (0, 1)
            RR = 20 + 9 * bi
            AD = 100 + 3 * bi
            e(f"s_add_u32 s51, {REGB}, {KCO + 2*base}\nv_mul_u32_u24 v{AD}, {2*stride}, {LANE}\nv_add_u32 v{AD}, s51, v{AD}")
            par = any(o[0] != o[1] for o in offs.values())
            if par: e(f"v_and_b32 v{AD+1}, 1, {LANE}\nv_lshl_add_u32 v{AD+1}, v{AD+1}, 1, v{AD}")
            e(f"s_add_u32 s51, {REGB}, {(255 - v0) * 16}\nv_sub_u32 v{AD+2}, s51, {L16}")
            if nl < 64: e(f"s_mov_b32 exec_hi, {(1 << (nl - 32)) - 1}")
            seen = {}; vr = {}
            for t in range(-1, 8):
                o = offs[t]
                if o not in seen:
                    seen[o] = RR + len(seen)
                    e(f"ds_read_u16 v{seen[o]}, v{AD + (1 if o[0] != o[1] else 0)} offset:{2*o[0]}", f"kx{bi}")
                vr[t] = seen[o]
            vrs.append(vr)
            if nl < 64: e("s_mov_b64 exec, -1")
        for bi, (v0, nl, stride) in enumerate(blocks):
            AD = 100 + 3 * bi; O = 70 + 8 * (bi & 1); vr = vrs[bi]
            p.wlg(f"kx{bi}")
            for i in range(4): e(f"v_lshl_or_b32 v{O+i}, v{vr[2*i+1]}, 16, v{vr[2*i]}")
            for i in range(4): e(f"v_lshl_or_b32 v{O+4+i}, v{vr[2*i]}, 16, v{vr[2*i-1]}")
            if nl < 64: e(f"s_mov_b32 exec_hi, {(1 << (nl - 32)) - 1}")
            e(f"ds_write_b128 v{AD+2}, {v(O,4)} offset:{R0O}\nds_write_b128 v{AD+2}, {v(O+4,4)} offset:{R1O}", "kt")
            if nl < 64: e("s_mov_b64 exec, -1")

    def gemm1(self, p):
        e = p.e
        ACC, HR, ns = 192, 112, self.hdepth
        assert HR + 4 * ns <= ACC and ns % 2 == 0
        p.wvm("b1")
        self.unpack(p, 12, ACC, 8)
        e(f"s_and_b32 s50, {DT}, 3\ns_lshl_b32 s50, s50, 10\ns_lshl_b32 s51, {WV}, 8\ns_add_u32 s50, s50, s51\ns_add_u32 s50, s50, {F1}")
        e(f"s_mul_i32 s84, {WV}, {64*10240}\ns_lshl_b32 s51, {DT}, 10\ns_add_u32 s84, s84, s51\ns_add_u32 s84, s84, {HB}\ns_add_u32 s85, s84, {64*10240}")
        e(f"s_mul_i32 s74, s11, 20480\ns_add_u32 s74, s74, s84")
        e("s_waitcnt lgkmcnt(0)\ns_barrier")
        self.stamp(p)
        self.poll(p, L4, "s50", 20)
        self.stamp(p)
        def ld(ks):
            for ds, vo in enumerate((VH0, VH1)):
                r = HR + 4 * ((2 * ks + ds) % ns)
                e(f"buffer_load_dwordx4 {v(r,4)}, {vo}, {SWS}, s74 offen sc1", f"h{ks}")
            e("s_add_u32 s74, s74, 20480\ns_cmp_eq_u32 s74, s85\ns_cselect_b32 s74, s84, s74")
        pre = ns // 2
        for ks in range(pre): ld(ks)
        for ks in range(32):
            p.wvm(f"h{ks}")
            for fs in range(2):
                for ds in range(2):
                    r = HR + 4 * ((2 * ks + ds) % ns); t = fs * 2 + ds; c = ACC + 16 * t
                    src = "0" if (ks == 0 and t > 0) else v(c, 16)
                    e(f"v_mfma_f32_32x32x16_bf16 {v(c,16)}, {a(8*ks+4*fs,4)}, {v(r,4)}, {src}")
            if ks + pre < 32: ld(ks + pre)
        self.stamp(p)
    def gemm1_epi(self, p):
        e = p.e
        ACC, RD = 192, 112
        for t in range(1, 4):
            e(f"s_xor_b32 s51, {WV}, {t}\ns_mul_i32 s51, s51, 12288\ns_add_u32 s51, s51, {AUX + (t-1)*4096}\nv_add_u32 v{20+t}, s51, {L16}")
        e(f"s_mul_i32 s51, {WV}, 12288\ns_add_u32 s51, s51, {AUX}\nv_add_u32 v20, s51, {L16}")
        for t in range(1, 4):
            for j in range(4): e(f"ds_write_b128 v{20+t}, {v(ACC+16*t+4*j,4)} offset:{j*1024}", "r1w")
        e(f"s_lshl_b32 s50, {FT}, 3\ns_lshr_b32 s51, {WV}, 1\ns_lshl_b32 s51, s51, 2\ns_add_u32 s50, s50, s51\ns_mul_i32 s50, s50, 10240")
        e(f"s_lshl_b32 s51, {DT}, 10\ns_add_u32 s50, s50, s51\ns_add_u32 s86, s50, {GB}\ns_add_u32 s87, s86, 20480")
        e(f"s_mul_i32 s89, {DT}, 24\ns_add_u32 s89, s89, {FT}\ns_lshl_b32 s89, s89, 4\ns_lshl_b32 s51, {WV}, 2\ns_add_u32 s89, s89, s51\ns_add_u32 s89, s89, {F2}")
        c1 = -2 * 0.7978845608028654 * 1.4426950408889634; c3 = c1 * 0.044715
        e(f"s_mov_b32 s90, {fbits(c3)}\ns_mov_b32 s91, {fbits(c3)}\nv_mov_b32 v24, {fbits(c1)}\nv_mov_b32 v25, {fbits(c1)}")
        e("s_waitcnt lgkmcnt(0)\ns_barrier")
        for j in range(4):
            for t in range(3): e(f"ds_read_b128 {v(RD+16*t+4*j,4)}, v20 offset:{t*4096+j*1024}", f"r1r{j}")
        T = 30; O = 60
        for j in range(4):
            p.wlg(f"r1r{j}")
            for hq in range(2):
                x = ACC + 4 * j + 2 * hq; r = RD + 4 * j + 2 * hq
                e(f"v_pk_add_f32 {v(x,2)}, {v(x,2)}, {v(r,2)}\nv_pk_add_f32 {v(r+16,2)}, {v(r+16,2)}, {v(r+32,2)}")
            for hq in range(2):
                x = ACC + 4 * j + 2 * hq; r = RD + 4 * j + 2 * hq
                e(f"v_pk_add_f32 {v(x,2)}, {v(x,2)}, {v(r+16,2)}")
            for hq in range(2):
                x = ACC + 4 * j + 2 * hq; t = T + 4 * j + 2 * hq
                e(f"v_pk_mul_f32 {v(t,2)}, {v(x,2)}, {v(x,2)}")
            for hq in range(2):
                t = T + 4 * j + 2 * hq
                e(f"v_pk_fma_f32 {v(t,2)}, {v(t,2)}, s[90:91], v[24:25]")
            for hq in range(2):
                x = ACC + 4 * j + 2 * hq; t = T + 4 * j + 2 * hq
                e(f"v_pk_mul_f32 {v(t,2)}, {v(t,2)}, {v(x,2)}")
            for i in range(4): e(f"v_exp_f32 v{T+4*j+i}, v{T+4*j+i}")
            for hq in range(2):
                t = T + 4 * j + 2 * hq
                e(f"v_pk_add_f32 {v(t,2)}, {v(t,2)}, 1.0 op_sel_hi:[1,0]")
            for i in range(4): e(f"v_rcp_f32 v{T+4*j+i}, v{T+4*j+i}")
            for hq in range(2):
                x = ACC + 4 * j + 2 * hq; t = T + 4 * j + 2 * hq
                e(f"v_pk_mul_f32 {v(t,2)}, {v(t,2)}, {v(x,2)}")
            for hq in range(2):
                t = T + 4 * j + 2 * hq
                e(f"v_cvt_pk_bf16_f32 v{O+2*j+hq}, v{t}, v{t+1}")
            if j & 1:
                o = O + 2 * (j - 1)
                e(f"v_permlane32_swap_b32 v{o}, v{o+2}\nv_permlane32_swap_b32 v{o+1}, v{o+3}")
                e(f"buffer_store_dwordx4 {v(o,4)}, {VH0}, {SWS}, s{86 + j//2} offen sc1", "gs")
        self.stamp(p)
        e("s_waitcnt vmcnt(0)")
        self.flag_store(p, "s89")
        self.stamp(p)

    def setup_w2(self, p):
        e = p.e
        e(f"v_lshrrev_b32 v20, 3, {LANE}\nv_and_b32 v21, 7, {LANE}\nv_and_b32 v22, 2, v20\nv_xor_b32 v21, v21, v22")
        e("v_lshlrev_b32 v20, 12, v20\nv_lshl_add_u32 v12, v21, 4, v20\nv_xor_b32 v13, 64, v12")
        e(f"v_bfe_u32 v20, {LANE}, 2, 2\nv_and_b32 v21, 3, {LANE}\nv_lshrrev_b32 v22, 4, {LANE}")
        e("v_lshlrev_b32 v23, 10, v22\nv_lshl_add_u32 v23, v20, 7, v23\nv_lshl_add_u32 v23, v21, 3, v23")
        e(f"v_lshrrev_b32 v20, 1, v20\nv_and_b32 v22, 1, v22\nv_lshl_or_b32 v20, v22, 1, v20\nv_xor_b32 v20, {WV}, v20\nv_lshlrev_b32 v20, 5, v20")
        e(f"v_add3_u32 v14, v23, v20, {RINGB}\nv_xor_b32 v15, 32, v14\nv_xor_b32 v16, 64, v14\nv_xor_b32 v17, 0x60, v14")
        e(f"s_mul_i32 s92, {WV}, {384*4096}\ns_lshl_b32 s51, {ST2}, 7\ns_add_u32 s92, s92, s51\ns_add_u32 s93, s92, {384*4096}")
        e(f"s_lshl_b32 s75, s12, 17\ns_add_u32 s75, s75, s92")
    def dma_w2(self, ks):
        p = Prog()
        for g in range(4):
            p.e(f"s_add_u32 m0, {RINGB}, {(ks % 4) * 4096 + g * 1024}")
            p.e(f"buffer_load_dwordx4 v{12 + (g & 1)}, {SW2}, s75 offen {self.wflag} lds", f"w2_{ks}")
            p.e("s_add_u32 s75, s75, 32768")
        p.e("s_cmp_eq_u32 s75, s93\ns_cselect_b32 s75, s92, s75")
        return p
    def tr_w2(self, ks):
        p = Prog()
        p.wvm(f"w2_{ks}")
        for ss in range(4):
            p.e(f"ds_read_b64_tr_b16 {a(16*ks+4*ss,2)}, v{14+ss} offset:{(ks%4)*4096}", f"t2_{ks}")
            p.e(f"ds_read_b64_tr_b16 {a(16*ks+4*ss+2,2)}, v{14+ss} offset:{(ks%4)*4096+512}", f"t2_{ks}")
        return p

    def load_u(self, p):
        e = p.e
        e(f"s_lshl_b32 s50, {WV}, 10\ns_add_u32 s50, s50, {F1B}")
        self.poll(p, L16, "s50", 20, wide=True)
        e(f"v_mul_u32_u24 v20, 10240, {LANE}\ns_mul_i32 s50, {WV}, {64*10240}\ns_lshl_b32 s51, {CB}, 4\ns_add_u32 s50, s50, s51\ns_add_u32 s50, s50, {XB}")
        for c in range(3): e(f"buffer_load_dwordx4 {v(24+4*c,4)}, v20, {SWS}, s50 offen offset:{16*c} sc1", "u")
    def stage_u(self, p):
        e = p.e
        e(f"s_lshl_b32 s51, {WV}, 10\ns_add_u32 s51, s51, {REG0 + UO + 512}\nv_add_u32 v20, s51, {L16}")
        p.wvm("u")
        for c in range(3): e(f"ds_write_b128 v20, {v(24+4*c,4)} offset:{c*REGSZ}", "uw")
        e("s_waitcnt lgkmcnt(0)\ns_barrier")
    def conv(self, p):
        e = p.e
        AA, BA, WR, RD_, YO = 20, 24, 26, 30, 31
        FA, FB, ACC = 40, 104, 168
        S = 200
        e(f"v_lshrrev_b32 v32, 4, {LANE}\nv_bfe_u32 v33, {LANE}, 1, 3\nv_lshlrev_b32 v34, 2, v32\nv_sub_u32 v34, v34, v33")
        e(f"v_and_b32 v33, 1, {LANE}\nv_xor_b32 v33, 1, v33\nv_mul_u32_u24 v33, {R1O//4 + 1}, v33\nv_add_u32 v34, v34, v33")
        e(f"s_lshl_b32 s51, {WV}, 5\ns_sub_u32 s51, {1015 - 16*(56+1) + REG0//4}, s51\nv_add_u32 v34, s51, v34\nv_lshlrev_b32 v{AA+3}, 2, v34")
        for mp in range(3): e(f"v_add_u32 v{AA+mp}, {(3-mp)*1024}, v{AA+3}")
        e(f"v_and_b32 v33, 15, {LANE}\nv_lshl_add_u32 v34, v33, 1, v32\ns_lshl_b32 s51, {WV}, 7\ns_sub_u32 s51, {REG0 + UO + 16*26}, s51\nv_lshl_add_u32 v{BA}, v34, 4, s51")
        for k in range(4):
            e(f"s_sub_u32 s51, {WV}, {k+1}\ns_and_b32 s51, s51, 3\ns_lshl_b32 s51, s51, 11\ns_add_u32 s51, s51, {AUX + k*6144}\nv_add_u32 v{WR+k}, s51, {L16}")
        e(f"s_mul_i32 s51, {WV}, 6144\ns_add_u32 s51, s51, {AUX}\nv_add_u32 v{RD_}, s51, {L16}")
        e(f"v_and_b32 v34, 1, v32\nv_lshlrev_b32 v34, 9, v34\nv_lshl_add_u32 v34, v33, 5, v34\nv_lshrrev_b32 v32, 1, v32\nv_lshl_add_u32 v{YO}, v32, 4, v34")
        e(f"s_lshl_b32 s86, {CB}, 12\ns_lshl_b32 s51, {WV}, 10\ns_add_u32 s86, s86, s51\ns_add_u32 s86, s86, {YT}")
        def loads(c, ph):
            q = Prog()
            st = ph
            order = [0, 1, 2, 3, 4, 5, 6, 7]
            for i in order:
                mu = i; off = (1 - (mu & 1)) * 128 + (1 - ph) * 16
                r = FA + 32 * st + 4 * mu
                q.e(f"ds_read2_b32 {v(r,2)}, v{AA + mu//2} offset0:{off} offset1:{off+1}", f"c{c}{ph}_{i}")
                q.e(f"ds_read2_b32 {v(r+2,2)}, v{AA + mu//2} offset0:{off+2} offset1:{off+3}", f"c{c}{ph}_{i}")
                q.e(f"ds_read_b128 {v(FB + 32*st + 4*i,4)}, v{BA} offset:{c*REGSZ + 512*i + (1-ph)*64}", f"c{c}{ph}_{i}")
            return q
        def mfmas(c, ph):
            q = Prog(); st = ph; first = set()
            for n in range(8):
                prs = [(mu, n) for mu in range(n + 1) if mu + n <= 7] + [(n, d) for d in range(n) if n + d <= 7]
                q.wlg(f"c{c}{ph}_{n}")
                for mu, d in prs:
                    I = mu + d; acc = v(ACC + 4 * I, 4)
                    src = "0" if (ph == 0 and I not in first) else acc
                    first.add(I)
                    q.e(f"v_mfma_f32_16x16x32_bf16 {acc}, {v(FA+32*st+4*mu,4)}, {v(FB+32*st+4*d,4)}, {src}")
            return q
        for c in range(3):
            if c > 0:
                for mp in range(4): e(f"v_add_u32 v{AA+mp}, {REGSZ}, v{AA+mp}")
            p.ext(loads(c, 0)); p.ext(loads(c, 1))
            p.ext(mfmas(c, 0)); p.ext(mfmas(c, 1))
            bo = (c & 1) * 24576
            e("s_nop 7")
            for k in range(4):
                lo, ld = self.label("cown"), self.label("cdone")
                e(f"s_cmp_eq_u32 {WV}, {k}\ns_cbranch_scc1 {lo}")
                e(f"ds_write_b128 v{WR+k}, {v(ACC+8*k,4)} offset:{bo}\nds_write_b128 v{WR+k}, {v(ACC+8*k+4,4)} offset:{bo+1024}", "cw")
                e(f"s_branch {ld}\n{lo}:")
                for i in range(8): e(f"v_mov_b32 v{232+i}, v{ACC+8*k+i}")
                e(f"{ld}:")
            e("s_waitcnt lgkmcnt(0)\ns_barrier")
            for s in range(3):
                for i in range(2): e(f"ds_read_b128 {v(S+8*s+4*i,4)}, v{RD_} offset:{bo + s*2048 + i*1024}", "cr")
            p.wlg("cr")
            for i in range(4):
                e(f"v_pk_add_f32 {v(232+2*i,2)}, {v(232+2*i,2)}, {v(S+2*i,2)}\nv_pk_add_f32 {v(S+8+2*i,2)}, {v(S+8+2*i,2)}, {v(S+16+2*i,2)}")
            for i in range(4): e(f"v_pk_add_f32 {v(232+2*i,2)}, {v(232+2*i,2)}, {v(S+8+2*i,2)}")
            PKR = 240 + 4 * c
            for i in range(4): e(f"v_cvt_pk_bf16_f32 v{PKR+i}, v{232+2*i}, v{233+2*i}")
            e(f"v_permlane16_swap_b32 v{PKR}, v{PKR+2}\nv_permlane16_swap_b32 v{PKR+1}, v{PKR+3}")
            e(f"buffer_store_dwordx4 {v(PKR,4)}, v{YO}, {SWS}, s86 offen sc1", "ys")
            e("s_add_u32 s86, s86, 4096")
    def flag_y(self, p):
        p.e(f"s_lshl_b32 s89, {WV}, 10\ns_lshl_b32 s51, {XCD}, 7\ns_add_u32 s89, s89, s51\ns_lshl_b32 s51, {IDX}, 2\ns_add_u32 s89, s89, s51\ns_add_u32 s89, s89, {F3}")
        p.e("s_waitcnt vmcnt(0)")
        self.flag_store(p, "s89")

    def load_xinit(self, p):
        e = p.e
        e(f"v_and_b32 v20, 15, {LANE}\nv_mul_u32_u24 v18, 1280, v20\nv_lshrrev_b32 v21, 4, {LANE}\nv_lshl_add_u32 v18, v21, 3, v18")
        e(f"s_lshl_b32 s94, {ST2}, 6\ns_lshl_b32 s51, {WV}, 4\ns_add_u32 s94, s94, s51\ns_lshl_b32 s95, s94, 1\nv_lshl_add_u32 v20, v20, 1, s95")
        e(f"s_mul_i32 s94, s94, 1280\ns_mul_i32 s51, {DT2}, 160\ns_add_u32 s94, s94, s51")
        for di in range(5): e(f"buffer_load_dwordx2 {v(24+2*di,2)}, v18, {SX}, s94 offen offset:{32*di}", "xi")
        e("global_load_ushort v34, v20, s[42:43]", "xi")
    def gemm2(self, p):
        e = p.e
        ACC, GR, ns = 176, 60, self.gdepth
        YR, SEL = 40, 36
        assert GR + 4 * ns <= ACC and ns % 5 == 0
        e(f"v_lshrrev_b32 v20, 4, {LANE}\nv_and_b32 v21, 15, {LANE}\nv_mul_u32_u24 v19, 10240, v20\nv_lshl_add_u32 v19, v21, 4, v19")
        e(f"v_and_b32 v22, 1, v20\nv_lshlrev_b32 v35, 12, v21\nv_lshl_add_u32 v35, v22, 4, v35")
        e(f"v_lshlrev_b32 v22, 3, v20\nv_sub_u32 v22, v21, v22\nv_and_b32 v23, 1, v22\nv_lshlrev_b32 v23, 4, v23\nv_mov_b32 v20, 0x3f80\nv_lshlrev_b32 v23, v23, v20\nv_ashrrev_i32 v22, 1, v22")
        for q in range(4): e(f"v_cmp_eq_u32 vcc, {q}, v22\nv_cndmask_b32 v{SEL+q}, 0, v23, vcc")
        p.wvm("xi")
        e("v_lshlrev_b32 v34, 16, v34")
        if self.opt.get("perturb"):
            e(f"s_or_b32 s51, {WG}, {WV}\ns_cmp_lg_u32 s51, 0\ns_cbranch_scc1 L_nop\nv_add_f32 v34, {fbits(self.opt['perturb'])}, v34\nL_nop:")
        for di in range(5):
            c = ACC + 16 * di
            self.unpack(p, 24 + 2 * di, c, 2)
            for i in range(4): e(f"v_add_f32 v{c+i}, v{c+i}, v34")
        e(f"s_mul_i32 s50, {DT2}, 80\ns_lshr_b32 s50, s50, 6\ns_mul_i32 s50, s50, 24\ns_mul_i32 s51, {WV}, 6\ns_add_u32 s50, s50, s51\ns_lshl_b32 s50, s50, 4\ns_add_u32 s50, s50, {F2}")
        e(f"v_min_u32 v21, 47, {LANE}\nv_cmp_lt_u32 vcc, 23, v21\nv_mov_b32 v22, 288\nv_cndmask_b32 v22, 0, v22, vcc\nv_lshl_add_u32 v21, v21, 2, v22")
        e(f"s_mul_i32 s84, {WV}, {48*10240}\ns_mul_i32 s51, {DT2}, 1280\ns_add_u32 s84, s84, s51\ns_add_u32 s84, s84, {GB}\ns_add_u32 s85, s84, {48*10240}")
        e(f"s_mul_i32 s76, s12, 40960\ns_add_u32 s76, s76, s84")
        e("s_waitcnt lgkmcnt(0)\ns_barrier")
        self.stamp(p)
        self.poll(p, "v21", "s50", 20)
        self.stamp(p)
        def ld(ks):
            for di in range(5):
                r = GR + 4 * ((5 * ks + di) % ns)
                e(f"buffer_load_dwordx4 {v(r,4)}, v19, {SWS}, s76 offen offset:{256*di} sc1", f"g{ks}_{di}")
            e("s_add_u32 s76, s76, 40960\ns_cmp_eq_u32 s76, s85\ns_cselect_b32 s76, s84, s76")
        pre = ns // 5
        for ks in range(pre): ld(ks)
        for ks in range(12):
            for di in range(5):
                p.wvm(f"g{ks}_{di}")
                for ss in range(4):
                    r = GR + 4 * ((5 * ks + di) % ns); c = ACC + 4 * (di * 4 + ss)
                    src = "0" if (ks == 0 and ss > 0) else v(c, 4)
                    e(f"v_mfma_f32_16x16x32_bf16 {v(c,4)}, {v(r,4)}, {a(16*ks+4*ss,4)}, {src}")
            if ks + pre < 12: ld(ks + pre)
        self.stamp(p)
        for t in range(1, 4):
            e(f"s_xor_b32 s51, {WV}, {t}\ns_mul_i32 s51, s51, 15360\ns_add_u32 s51, s51, {(t-1)*5120}\nv_add_u32 v{20+t}, s51, {L16}")
        e(f"s_mul_i32 s51, {WV}, 15360\nv_add_u32 v24, s51, {L16}")
        for t in range(1, 4):
            for di in range(5): e(f"ds_write_b128 v{20+t}, {v(ACC+4*(di*4+t),4)} offset:{di*1024}", "r2w")
        e(f"s_lshr_b32 s50, {ST2}, 3\ns_lshl_b32 s50, s50, 10\ns_lshl_b32 s51, {DT2}, 7\ns_add_u32 s50, s50, s51\ns_add_u32 s50, s50, {F3}")
        e(f"v_and_b32 v25, 0x7c, {L4}")
        self.poll(p, "v25", "s50", 20)
        e(f"s_mul_i32 s50, {DT2}, {80*4096}\ns_add_u32 s50, s50, s95\ns_add_u32 s50, s50, {YT}")
        for di in range(5):
            e(f"buffer_load_dwordx4 {v(YR+4*di,4)}, v35, {SWS}, s50 offen sc1", f"y{di}")
            e("s_add_u32 s50, s50, 65536")
        e("s_waitcnt lgkmcnt(0)\ns_barrier")
        for di in range(5):
            for t in range(3): e(f"ds_read_b128 {v(GR+12*di+4*t,4)}, v24 offset:{t*5120+di*1024}", f"r2r{di}")
        for di in range(5):
            c = ACC + 16 * di
            p.wvm(f"y{di}")
            e(f"v_mfma_f32_16x16x32_bf16 {v(c,4)}, {v(YR+4*di,4)}, {v(SEL,4)}, {v(c,4)}")
        for di in range(5):
            c = ACC + 16 * di; r = GR + 12 * di
            p.wlg(f"r2r{di}")
            for hq in range(2): e(f"v_pk_add_f32 {v(r+2*hq,2)}, {v(r+2*hq,2)}, {v(r+4+2*hq,2)}\nv_pk_add_f32 {v(c+2*hq,2)}, {v(c+2*hq,2)}, {v(r+8+2*hq,2)}")
            for hq in range(2): e(f"v_pk_add_f32 {v(c+2*hq,2)}, {v(c+2*hq,2)}, {v(r+2*hq,2)}")
            for hq in range(2): e(f"v_cvt_pk_bf16_f32 v{26+2*di+hq}, v{c+2*hq}, v{c+2*hq+1}")
            e(f"buffer_store_dwordx2 {v(26+2*di,2)}, v18, {SOUT}, s94 offen offset:{32*di}", "os")
        self.stamp(p)

    def build(self):
        p = Prog(); e = p.e
        self.prologue(p)
        n0 = self.n0 // 2
        for ks in range(n0): p.ext(self.dma_w1(ks))
        self.setup2(p)
        e("s_waitcnt lgkmcnt(0)")
        self.ln(p)
        self.publish_ln(p)
        for ks in range(n0, 8): p.ext(self.dma_w1(ks))
        kg = Prog(); self.kgen(kg)
        sides = []
        for ks in range(32):
            b = Prog()
            if ks >= 1 and ks - 1 + 8 < 32:
                b.wlg(f"t1_{ks-1}"); b.ext(self.dma_w1(ks - 1 + 8))
            b.ext(self.tr_w1(ks))
            sides.append(b)
        cut = next(i for i, (it, _) in enumerate(kg.items) if isinstance(it, str) and "exec" in it)
        cut = max(i for i in range(cut) if isinstance(kg.items[i][0], str) and kg.items[i][0].startswith("v_mfma")) + 1
        head = Prog(); head.items = kg.items[:cut]; tail = Prog(); tail.items = kg.items[cut:]
        c0 = next(i for i, (it, _) in enumerate(head.items) if it == ("wvm", "par"))
        pre = Prog(); pre.items = head.items[:c0]; head.items = head.items[c0:]
        p.ext(pre)
        if self.opt.get("skip_kgen"): head.items = head.items[:2]
        if self.opt.get("skip_w1"): sides = sides[:1]
        p.ext(interleave(head, sides))
        self.stamp(p)
        self.flag_xn(p)
        p.ext(tail)
        self.gemm1(p)
        self.setup_w2(p)
        self.gemm1_epi(p)
        self.load_u(p)
        for ks in range(4): p.ext(self.dma_w2(ks))
        self.stage_u(p)
        for ks in range(4):
            p.ext(self.tr_w2(ks))
        for ks in range(4):
            p.wlg(f"t2_{ks}"); p.ext(self.dma_w2(ks + 4))
        self.stamp(p)
        self.conv(p)
        self.flag_y(p)
        self.stamp(p)
        self.load_xinit(p)
        for ks in range(4, 8): p.ext(self.tr_w2(ks))
        for ks in range(4, 8):
            p.wlg(f"t2_{ks}"); p.ext(self.dma_w2(ks + 4))
        for ks in range(8, 12): p.ext(self.tr_w2(ks))
        self.gemm2(p)
        e(f"s_or_b32 s51, {WG}, {WV}\ns_cmp_lg_u32 s51, 0\ns_cbranch_scc1 L_noep")
        e(f"s_mov_b64 exec, 1\nbuffer_store_dword {VTAG}, {VZ}, {SWS}, 0 offen\ns_mov_b64 exec, -1")
        e("L_noep:")
        if self.debug:
            e("s_waitcnt vmcnt(0)")
            self.stamp(p)
            e(f"s_lshl_b32 s50, {WG}, 2\ns_add_u32 s50, s50, {WV}\ns_lshl_b32 s50, s50, 7\ns_add_u32 s50, s50, {TM}")
            e(f"s_mov_b32 exec_hi, 0\nbuffer_store_dword {VDBG}, {L4}, {SWS}, s50 offen")
            if self.opt.get("dbg2"):
                e("s_mov_b32 s52, s46\ns_mov_b32 s53, s47\ns_mov_b32 s54, 256\ns_mov_b32 s55, 0x20000")
                e(f"v_readlane_b32 s51, {VDBG}, 0\ns_not_b32 s51, s51\nv_writelane_b32 {VDBG}, s51, 0")
                e(f"s_cmp_lg_u32 {WV}, 0\ns_cbranch_scc1 L_end\ns_mov_b64 exec, 0xffff\nbuffer_atomic_umax {VDBG}, {L4}, s[52:55], 0 offen")
        e("L_end:\ns_endpgm")
        body = finalize(p)
        ref = open("cdna_kernels/" + NAME + ".s.ref").read()
        head = [l for l in ref.split("\n") if l.startswith(";") and "@launch" not in l]
        k = NAME + "_kernel"
        s = "\n".join(head) + f"\n; @launch grid=(256,1,1) block=(256,1,1) lds={LDS_BYTES}\n"
        s += f'.amdgcn_target "amdgcn-amd-amdhsa--gfx950"\n.text\n.globl {k}\n.p2align 8\n.type {k},@function\n{k}:\n'
        s += body
        s += f""".section .rodata,"a"
.p2align 6
.amdhsa_kernel {k}
  .amdhsa_next_free_vgpr 512
  .amdhsa_next_free_sgpr 102
  .amdhsa_accum_offset 256
  .amdhsa_group_segment_fixed_size 0
  .amdhsa_kernarg_size 136
  .amdhsa_user_sgpr_count 2
  .amdhsa_user_sgpr_kernarg_segment_ptr 1
  .amdhsa_system_sgpr_workgroup_id_x 1
.end_amdhsa_kernel
"""
        return s

if __name__ == "__main__":
    out = sys.argv[1]
    kw = eval("dict(" + (sys.argv[2] if len(sys.argv) > 2 else "") + ")")
    open(out, "w").write(G(**kw).build())
```

```python
import sys, struct
from asmlib import Prog, interleave, finalize

NAME = "parallel_sum__ssm_conv_s4__mixer_token_mlp__prompt"
F1, F3, STAT, TM, F2 = 0x1000, 0x3000, 0x4000, 0x8000, 0x50000
HB, GB, YT, WSEND = 0x80000, 0x300000, 0x4E0000, 0x760000
RINGW = 16384
PART = 65536
LNT = 3 * RINGW + 4096
PT = 1344
REG0, REGSZ = PART + 49152, 14592
SYNC = REG0 + 3 * REGSZ
R0O, R1O, UO, KCO = 0, 4160, 8448, 13056 + 32
KP = 272
LDS_BYTES = 163840
assert SYNC + 64 <= LDS_BYTES

def fbits(x): return "0x%08x" % struct.unpack("<I", struct.pack("<f", x))[0]
def bf16r(l):
    u = struct.unpack("<I", struct.pack("<f", float(l)))[0]
    u = ((u + 0x7FFF + ((u >> 16) & 1)) >> 16) << 16
    return int(struct.unpack("<f", struct.pack("<I", u))[0])
def ci(l):
    v = bf16r(l)
    if v <= 256: return v
    if v <= 512: return 256 + (v - 256) // 2
    if v <= 1024: return 384 + (v - 512) // 4
    return 512 + (v - 1024) // 8

WG, WV, XCD, IDX, DT, FT, DT2, ST2, TAG, CH = "s2", "s3", "s4", "s5", "s6", "s7", "s8", "s9", "s10", "s13"
SX, SW1, SW2, SOUT, SWS = "s[52:55]", "s[56:59]", "s[60:63]", "s[64:67]", "s[68:71]"
RINGB, REGB = "s73", "s77"
LANE, L16, L4, VW1, VTR0, VTR1, VH0, VH1, VTAG, VZ, VDBG = "v1", "v2", "v3", "v4", "v5", "v6", "v7", "v8", "v9", "v10", "v11"
VSY = "v0"

def v(i, n=1): return f"v{i}" if n == 1 else f"v[{i}:{i+n-1}]"
def a(i, n=1): return f"a{i}" if n == 1 else f"a[{i}:{i+n-1}]"

class G:
    def __init__(self, debug=False, n0=1, P1=6, P2=4, wflag="", xflag="", trig=26, **kw):
        self.debug = debug; self.n0 = n0; self.P1 = P1; self.P2 = P2; self.wflag = wflag; self.xflag = xflag
        self.trig = trig
        assert n0 <= 2
        self.nst = {}; self.nlab = 0; self.role = None
        self.opt = kw; self.NSP = kw.get("nsp", 40)
    def stamp(self, p):
        if not self.debug: return
        n = self.nst.get(self.role, 0)
        p.e("s_memrealtime s[82:83]\ns_waitcnt lgkmcnt(0)")
        p.e(f"v_writelane_b32 {VDBG}, s82, {n}")
        self.nst[self.role] = n + 1
    def label(self, s):
        self.nlab += 1; return f"L{s}_{self.nlab}"
    def flag_store(self, p, soff):
        p.e(f"s_mov_b64 exec, 1\nbuffer_store_dword {VTAG}, {VZ}, {SWS}, {soff} offen sc1\ns_mov_b64 exec, -1")
    def poll(self, p, voff, soff, tmp, wide=False, sleep=0):
        l = self.label("poll"); d = self.label("polld"); f = self.label("pollf")
        p.e("s_mov_b32 s78, 0")
        if sleep: p.e(f"s_branch {f}")
        p.e(f"{l}:")
        if sleep: p.e(f"s_sleep {sleep}\n{f}:")
        if wide:
            p.e(f"buffer_load_dwordx4 {v(tmp,4)}, {voff}, {SWS}, {soff} offen sc1")
            p.e("s_add_u32 s78, s78, 1\ns_waitcnt vmcnt(0)")
            for i in range(4): p.e(f"v_xor_b32 {v(tmp+i)}, {TAG}, {v(tmp+i)}")
            p.e(f"v_or3_b32 {v(tmp)}, {v(tmp)}, {v(tmp+1)}, {v(tmp+2)}\nv_or_b32 {v(tmp)}, {v(tmp)}, {v(tmp+3)}")
            p.e(f"v_cmp_ne_u32 vcc, 0, {v(tmp)}")
        else:
            p.e(f"buffer_load_dword {v(tmp)}, {voff}, {SWS}, {soff} offen sc1")
            p.e("s_add_u32 s78, s78, 1\ns_waitcnt vmcnt(0)")
            p.e(f"v_cmp_ne_u32 vcc, {TAG}, {v(tmp)}")
        p.e(f"s_cmp_gt_u32 s78, 0x8000\ns_cbranch_scc1 {d}\ns_cbranch_vccnz {l}")
        p.e(f"{d}:")
    def sig(self, p, word, tmp):
        p.e(f"v_mov_b32 v{tmp}, 1\ns_mov_b64 exec, 1\nds_add_u32 {VSY}, v{tmp} offset:{4*word}\ns_mov_b64 exec, -1", "sig")
    def spin(self, p, word, n, tmp, sleep=0):
        l = self.label("spin"); d = self.label("spind")
        p.e("s_mov_b32 s78, 0")
        p.e(f"{l}:")
        if sleep: p.e(f"s_sleep {sleep}")
        p.e(f"ds_read_b32 v{tmp}, {VSY} offset:{4*word}\ns_add_u32 s78, s78, 1\ns_waitcnt lgkmcnt(0)\nv_readfirstlane_b32 s79, v{tmp}")
        p.e(f"s_cmp_gt_u32 s78, 0x40000\ns_cbranch_scc1 {d}\ns_cmp_lt_u32 s79, {n}\ns_cbranch_scc1 {l}")
        p.e(f"{d}:")
    def mktag(self, p):
        p.e(f"s_mul_i32 {TAG}, {TAG}, 0x9E3779B1\ns_add_u32 {TAG}, {TAG}, 0x7F4A7C15\nv_mov_b32 {VTAG}, {TAG}")
    def finish(self, p):
        e = p.e
        if self.debug:
            e("s_waitcnt vmcnt(0)")
            self.stamp(p)
            e(f"s_lshl_b32 s50, {WG}, 3\ns_add_u32 s50, s50, {WV}\ns_lshl_b32 s50, s50, 7\ns_add_u32 s50, s50, {TM}")
            e(f"s_mov_b32 exec_hi, 0\nbuffer_store_dword {VDBG}, {L4}, {SWS}, s50 offen")
        e("s_endpgm")

    def prologue(self, p):
        e = p.e
        e(f"s_cmp_ge_u32 {WG}, 256\ns_cbranch_scc1 L_end")
        e("s_load_dwordx16 s[16:31], s[0:1], 0\ns_load_dwordx16 s[32:47], s[0:1], 64\ns_load_dwordx2 s[48:49], s[0:1], 128")
        e(f"v_and_b32 {LANE}, 63, v0\nv_lshrrev_b32 v12, 6, v0\nv_readfirstlane_b32 {WV}, v12")
        e(f"v_lshlrev_b32 {L16}, 4, {LANE}\nv_lshlrev_b32 {L4}, 2, {LANE}\nv_mov_b32 {VZ}, 0\nv_mov_b32 {VDBG}, 0\nv_mov_b32 {VSY}, {SYNC}")
        e(f"s_and_b32 {XCD}, {WG}, 7\ns_lshr_b32 {IDX}, {WG}, 3")
        e(f"s_min_u32 s15, {IDX}, 29\ns_mul_i32 {FT}, s15, 52\ns_lshr_b32 {FT}, {FT}, 8")
        e(f"s_mul_i32 s51, {FT}, 5\ns_sub_u32 {DT}, s15, s51")
        e(f"s_mul_i32 s11, {DT}, 6\ns_add_u32 s11, s11, s51\ns_and_b32 s11, s11, 31")
        e(f"s_and_b32 s51, {XCD}, 1\ns_mul_i32 s51, s51, 5\ns_add_u32 {DT}, {DT}, s51")
        e(f"s_lshr_b32 s51, {XCD}, 1\ns_mul_i32 s51, s51, 6\ns_add_u32 {FT}, {FT}, s51")
        e(f"s_lshr_b32 s97, {XCD}, 2\ns_mul_i32 s51, s97, 12\ns_sub_u32 s51, {FT}, s51\ns_mul_i32 s98, s51, 3")
        e(f"s_sub_i32 s99, 32, s98\ns_max_i32 s99, s99, 0\ns_min_i32 s99, s99, 3\ns_cmp_ge_u32 {IDX}, 30\ns_cselect_b32 s99, 0, s99")
        e(f"s_cmp_ge_u32 {WV}, 4\ns_cbranch_scc1 L_aux")
    def srd(self, p, d, lo, size): p.e(f"s_mov_b32 s{d}, s{lo}\ns_mov_b32 s{d+1}, s{lo+1}\ns_mov_b32 s{d+2}, {size}\ns_mov_b32 s{d+3}, 0x20000")
    def tile2(self, p):
        e = p.e
        e(f"s_and_b32 {DT2}, {IDX}, 3\ns_lshr_b32 {ST2}, {IDX}, 2")
        e(f"s_mul_i32 s12, {ST2}, 3\ns_lshr_b32 s12, s12, 1\ns_mul_i32 s51, {DT2}, 3\ns_add_u32 s12, s12, s51\ns_sub_u32 s51, s12, 12\ns_cmp_ge_u32 s12, 12\ns_cselect_b32 s12, s51, s12")
        e(f"s_and_b32 s51, {XCD}, 1\ns_lshl_b32 s51, s51, 2\ns_add_u32 {DT2}, {DT2}, s51")
        e(f"s_lshr_b32 s51, {XCD}, 1\ns_lshl_b32 s51, s51, 3\ns_add_u32 {ST2}, {ST2}, s51")

    def main_start(self, p):
        e = p.e
        e("s_setprio 2")
        e(f"v_lshrrev_b32 v12, 5, {LANE}\nv_mul_u32_u24 v12, 1280, v12\nv_and_b32 v15, 31, {LANE}")
        e("v_lshl_add_u32 v13, v15, 4, v12\nv_lshl_add_u32 v14, v15, 3, v12")
        e(f"s_lshl_b32 s50, {WG}, 3\ns_lshl_b32 s51, {WV}, 1\ns_add_u32 s50, s50, s51\ns_mul_i32 s50, s50, 1280")
        e(f"s_lshl_b32 {RINGB}, {WV}, 14")
        e(f"v_lshrrev_b32 v12, 3, {LANE}\nv_and_b32 v15, 7, {LANE}\nv_lshlrev_b32 v16, 1, v12\nv_and_b32 v16, 4, v16\nv_xor_b32 v15, v15, v16")
        e(f"v_mul_u32_u24 v12, 3072, v12\nv_lshl_add_u32 {VW1}, v15, 4, v12")
        e(f"s_mul_i32 s84, {WV}, {512*3072}\ns_lshl_b32 s51, {FT}, 7\ns_add_u32 s84, s84, s51\ns_add_u32 s85, s84, {512*3072}")
        e(f"s_mul_i32 s72, s11, {16*3072}\ns_add_u32 s72, s72, s84")
        e("s_waitcnt lgkmcnt(0)")
        self.srd(p, 52, 16, 2621440)
        e(f"buffer_load_dwordx4 v[20:23], v13, {SX}, s50 offen {self.xflag}", "x")
        e(f"buffer_load_dwordx4 v[24:27], v13, {SX}, s50 offen offset:512 {self.xflag}", "x")
        e(f"buffer_load_dwordx2 v[28:29], v14, {SX}, s50 offen offset:1024 {self.xflag}", "x")
        e(f"s_load_dword {TAG}, s[48:49], 0")
        self.srd(p, 56, 36, 6291456); self.srd(p, 60, 40, 6291456); self.srd(p, 64, 44, 2621440); self.srd(p, 68, 48, WSEND)
        self.stamp(p)
    def dma_w1(self, ks):
        p = Prog()
        sl = (ks % 8) * 2048
        p.e(f"s_add_u32 m0, {RINGB}, {sl}\ns_add_u32 s51, s72, {8*3072}")
        p.e(f"buffer_load_dwordx4 {VW1}, {SW1}, s72 offen {self.wflag} lds", f"w1_{ks}")
        p.e(f"s_add_u32 m0, {RINGB}, {sl+1024}\ns_add_u32 s72, s72, {16*3072}")
        p.e(f"buffer_load_dwordx4 {VW1}, {SW1}, s51 offen {self.wflag} lds", f"w1_{ks}")
        p.e("s_cmp_eq_u32 s72, s85\ns_cselect_b32 s72, s84, s72")
        return p
    NB1 = 12
    def tr_w1(self, ks):
        p = Prog()
        sl = (ks % 8) * 2048; r = 8 * (ks % self.NB1)
        p.wvm(f"w1_{ks}")
        for fs, ad in enumerate((VTR0, VTR1)):
            p.e(f"ds_read_b64_tr_b16 {a(r+4*fs,2)}, {ad} offset:{sl}", f"t1_{ks}")
            p.e(f"ds_read_b64_tr_b16 {a(r+4*fs+2,2)}, {ad} offset:{sl+512}", f"t1_{ks}")
        return p
    def main_setup2(self, p):
        e = p.e
        e(f"v_bfe_u32 v12, {LANE}, 2, 2\nv_and_b32 v13, 3, {LANE}\nv_bfe_u32 v14, {LANE}, 4, 1\nv_lshrrev_b32 v15, 5, {LANE}")
        e("v_lshlrev_b32 v16, 10, v15\nv_lshl_add_u32 v16, v12, 7, v16\nv_lshl_add_u32 v16, v13, 3, v16")
        e(f"v_and_b32 v17, 2, v12\nv_or_b32 v17, v17, v14\nv_xor_b32 v17, {WV}, v17\nv_lshlrev_b32 v17, 5, v17")
        e(f"v_add3_u32 {VTR0}, v16, v17, {RINGB}\nv_xor_b32 {VTR1}, 64, {VTR0}")
        e(f"v_mul_u32_u24 v16, 10240, v15\nv_and_b32 v17, 31, {LANE}\nv_lshl_add_u32 v16, v17, 4, v16")
        e(f"s_lshl_b32 s51, s97, 9\nv_add_u32 {VH0}, s51, v16\ns_xor_b32 s51, s51, 512\nv_add_u32 {VH1}, s51, v16")
        e(f"s_lshl_b32 s51, {FT}, 7\ns_lshl_b32 s15, {WV}, 5\ns_add_u32 s51, s51, s15\nv_lshl_add_u32 v12, v15, 3, s51")
        for j in range(2): e(f"global_load_dwordx2 {v(104+2*j,2)}, v12, s[38:39] offset:{16*j}", "b1")
        e(f"v_subrev_u32 v124, s98, v17\nv_mul_u32_u24 v124, {REGSZ}, v124\nv_lshl_add_u32 v124, v15, 4, v124")
        e(f"s_lshl_b32 s51, {WV}, 10\ns_add_u32 s51, s51, {REG0 + UO + 512}\nv_add_u32 v124, s51, v124")
        e(f"s_bfm_b32 s100, s99, s98\ns_mov_b32 s101, s100\ns_lshl_b32 s14, s11, 5")
        e(f"s_lshl_b32 s51, {WV}, 1\nv_add_u32 v102, s51, v15\nv_mul_u32_u24 v102, {PT}, v102\nv_add_u32 v102, {LNT}, v102")
        e(f"v_lshl_add_u32 v101, v17, 3, v102\nv_lshl_add_u32 v100, v17, 4, v102")
        self.tile2(p)
        e(f"v_lshrrev_b32 v112, 3, {LANE}\nv_and_b32 v113, 7, {LANE}\nv_and_b32 v114, 2, v112\nv_xor_b32 v113, v113, v114")
        e("v_lshlrev_b32 v112, 12, v112\nv_lshl_add_u32 v12, v113, 4, v112\nv_xor_b32 v13, 64, v12")
        e(f"v_bfe_u32 v112, {LANE}, 2, 2\nv_and_b32 v113, 3, {LANE}\nv_lshrrev_b32 v114, 4, {LANE}")
        e("v_lshlrev_b32 v115, 10, v114\nv_lshl_add_u32 v115, v112, 7, v115\nv_lshl_add_u32 v115, v113, 3, v115")
        e(f"v_lshrrev_b32 v112, 1, v112\nv_and_b32 v113, 1, v114\nv_lshl_or_b32 v112, v113, 1, v112\nv_xor_b32 v112, {WV}, v112\nv_lshlrev_b32 v112, 5, v112")
        e(f"v_add3_u32 v14, v115, v112, {RINGB}\nv_xor_b32 v15, 32, v14\nv_xor_b32 v16, 64, v14\nv_xor_b32 v17, 0x60, v14")
        e(f"s_mul_i32 s92, {WV}, {384*4096}\ns_lshl_b32 s51, {ST2}, 7\ns_add_u32 s92, s92, s51\ns_add_u32 s93, s92, {384*4096}")
        e(f"s_lshl_b32 s75, s12, 17\ns_add_u32 s75, s75, s92")
        e(f"v_and_b32 v112, 15, {LANE}\nv_mul_u32_u24 v18, 1280, v112\nv_lshl_add_u32 v18, v114, 3, v18")
        e(f"v_mul_u32_u24 v19, 10240, v114\nv_lshl_add_u32 v19, v112, 4, v19")
        e(f"v_lshlrev_b32 v115, 12, v112\nv_lshl_add_u32 v115, v113, 4, v115")
        e(f"s_lshl_b32 s94, {ST2}, 6\ns_lshl_b32 s51, {WV}, 4\ns_add_u32 s94, s94, s51\ns_lshl_b32 s95, s94, 1\nv_lshl_add_u32 v120, v112, 1, s95")
        e(f"s_mul_i32 s94, s94, 1280\ns_mul_i32 s51, {DT2}, 160\ns_add_u32 s94, s94, s51")
        e(f"v_lshlrev_b32 v113, 3, v114\nv_sub_u32 v113, v112, v113\nv_and_b32 v122, 1, v113\nv_lshlrev_b32 v122, 4, v122\nv_mov_b32 v123, 0x3f80\nv_lshlrev_b32 v122, v122, v123\nv_ashrrev_i32 v113, 1, v113")
        for q in range(4): e(f"v_cmp_eq_u32 vcc, {q}, v113\nv_cndmask_b32 v{116+q}, 0, v122, vcc")

    def red32(self, p, regs, tmp):
        for m in ("quad_perm:[1,0,3,2]", "quad_perm:[2,3,0,1]", "row_half_mirror", "row_mirror"):
            for r in regs: p.e(f"v_add_f32_dpp v{r}, v{r}, v{r} {m} row_mask:0xf bank_mask:0xf")
        for i, r in enumerate(regs): p.e(f"v_mov_b32 v{tmp+i}, v{r}")
        for i, r in enumerate(regs): p.e(f"v_permlane16_swap_b32 v{r}, v{tmp+i}")
        for i, r in enumerate(regs): p.e(f"v_add_f32 v{r}, v{r}, v{tmp+i}")
    def unpack(self, p, src, dst, n):
        for i in range(n):
            p.e(f"v_lshlrev_b32 v{dst+2*i}, 16, v{src+i}\nv_and_b32 v{dst+2*i+1}, 0xffff0000, v{src+i}")
    def rbf(self, p, r):
        p.e(f"v_cvt_pk_bf16_f32 v{r}, v{r}, v{r}\nv_lshlrev_b32 v{r}, 16, v{r}")
    def ln(self, p):
        e = p.e
        RAW, F, D, T, H = 20, 30, 50, 70, 90
        inv = fbits(1.0 / 640)
        p.wvm("x")
        self.stamp(p)
        self.unpack(p, RAW, F, 10)
        def psum(src, dst):
            e(f"v_pk_add_f32 {v(dst,2)}, {v(src,2)}, {v(src+2,2)}\nv_pk_add_f32 {v(dst+2,2)}, {v(src+4,2)}, {v(src+6,2)}")
            for i in range(4, 10): e(f"v_pk_add_f32 {v(dst+2*(i&1),2)}, {v(dst+2*(i&1),2)}, {v(src+2*i,2)}")
            e(f"v_pk_add_f32 {v(dst,2)}, {v(dst,2)}, {v(dst+2,2)}\nv_add_f32 v{dst}, v{dst}, v{dst+1}")
        def psq(src, dst):
            e(f"v_pk_mul_f32 {v(dst,2)}, {v(src,2)}, {v(src,2)}\nv_pk_mul_f32 {v(dst+2,2)}, {v(src+2,2)}, {v(src+2,2)}")
            for i in range(2, 10): e(f"v_pk_fma_f32 {v(dst+2*(i&1),2)}, {v(src+2*i,2)}, {v(src+2*i,2)}, {v(dst+2*(i&1),2)}")
            e(f"v_pk_add_f32 {v(dst,2)}, {v(dst,2)}, {v(dst+2,2)}\nv_add_f32 v{dst}, v{dst}, v{dst+1}")
        def rstd(var, out):
            e(f"v_max_f32 v{var}, 0, v{var}")
            self.rbf(p, var); e(f"v_add_f32 v{var}, {fbits(1e-5)}, v{var}"); self.rbf(p, var)
            e(f"v_sqrt_f32 v{var}, v{var}"); self.rbf(p, var); e(f"v_rcp_f32 v{out}, v{var}")
        psum(F, T); self.red32(p, [T], T + 2)
        e(f"v_mul_f32 v{T}, {inv}, v{T}\nv_mov_b32 v{T+4}, v{T}"); self.rbf(p, T + 4)
        for i in range(10): e(f"v_pk_add_f32 {v(D+2*i,2)}, {v(F+2*i,2)}, {v(T+4,2)} op_sel_hi:[1,0] neg_lo:[0,1] neg_hi:[0,1]")
        e(f"v_sub_f32 v{T+5}, v{T}, v{T+4}")
        psq(D, T); self.red32(p, [T], T + 2)
        e(f"v_mul_f32 v{T}, {inv}, v{T}\nv_fma_f32 v{T}, -v{T+5}, v{T+5}, v{T}")
        rstd(T, T + 6)
        for i in range(10): e(f"v_pk_mul_f32 {v(D+2*i,2)}, {v(D+2*i,2)}, {v(T+6,2)} op_sel_hi:[1,0]")
        for i in range(10): e(f"v_cvt_pk_bf16_f32 v{RAW+i}, v{D+2*i}, v{D+2*i+1}")
        self.unpack(p, RAW, F, 10)
        psum(F, T); psq(F, T + 4); self.red32(p, [T, T + 4], T + 2)
        e(f"v_mul_f32 v{T}, {inv}, v{T}\nv_mul_f32 v{T+4}, {inv}, v{T+4}\nv_fma_f32 v{T+4}, -v{T}, v{T}, v{T+4}")
        self.rbf(p, T)
        rstd(T + 4, T + 6)
        e(f"v_mul_f32 v{T+2}, v{T}, v{T+6}\nv_lshrrev_b32 v{T+4}, 16, v{T+4}\nv_or_b32 v{T+4}, v{T+4}, v{T}")
        for i in range(10): e(f"v_pk_fma_f32 {v(D+2*i,2)}, {v(F+2*i,2)}, {v(T+6,2)}, {v(T+2,2)} op_sel_hi:[1,0,0] neg_lo:[0,0,1] neg_hi:[0,0,1]")
        e(f"ds_write_b32 v102, v{T+4} offset:1280", "lnw")
        for i in range(10): e(f"v_cvt_pk_bf16_f32 v{H+i}, v{D+2*i}, v{D+2*i+1}")
        e(f"ds_write_b128 v100, {v(H,4)}\nds_write_b128 v100, {v(H+4,4)} offset:512\nds_write_b64 v101, {v(H+8,2)} offset:1024", "lnw")
        self.sig(p, 0, T)
        self.stamp(p)

    def acc1(self, t): return [v(72, 16), v(88, 16), a(96, 16), a(112, 16)][t]
    def gemm1(self, p):
        e = p.e
        HR, ns, HD = 24, 12, 6
        P1, NB = self.P1, self.NB1
        p.wvm("b1")
        self.unpack(p, 104, 72, 4); self.unpack(p, 104, 88, 4)
        for i in range(8): e(f"v_mov_b32 v{80+i}, 0\nv_mov_b32 v{96+i}, 0")
        e(f"s_mul_i32 s86, {WV}, {64*10240}\ns_lshl_b32 s51, {DT}, 10\ns_add_u32 s86, s86, s51\ns_add_u32 s86, s86, {HB}\ns_add_u32 s87, s86, {64*10240}")
        e(f"s_mul_i32 s74, s11, 20480\ns_add_u32 s74, s74, s86")
        nd = self.n0
        self.spin(p, 4, 1, 20)
        while nd < self.n0 + self.opt.get("n1", 3): p.ext(self.dma_w1(nd)); nd += 1
        self.spin(p, 4, 2, 20, sleep=1)
        self.stamp(p)
        while nd < 8: p.ext(self.dma_w1(nd)); nd += 1
        for j in range(P1):
            p.ext(self.tr_w1(j))
            if j >= 1 and nd < self.opt.get("D1", P1 + 7):
                p.wlg(f"t1_{j-1}"); p.ext(self.dma_w1(nd)); nd += 1
        self.stamp(p)
        self.sig(p, 5, 20)
        self.spin(p, 1, 1, 20, sleep=1)
        self.stamp(p)
        def ld(ks):
            for ds, vo in enumerate((VH0, VH1)):
                r = HR + 4 * ((2 * ks + ds) % ns)
                e(f"buffer_load_dwordx4 {v(r,4)}, {vo}, {SWS}, s74 offen sc1", f"h{ks}")
            e("s_add_u32 s74, s74, 20480\ns_cmp_eq_u32 s74, s87\ns_cselect_b32 s74, s86, s74")
        for ks in range(HD): ld(ks)
        nt = P1
        for ks in range(32):
            p.wvm(f"h{ks}"); p.wlg(f"t1_{ks}")
            for fs in range(2):
                for ds in range(2):
                    r = HR + 4 * ((2 * ks + ds) % ns); t = fs * 2 + ds; c = self.acc1(t)
                    src = "0" if (ks == 0 and t > 1) else c
                    e(f"v_mfma_f32_32x32x16_bf16 {c}, {a(8*(ks%NB)+4*fs,4)}, {v(r,4)}, {src}")
                    if t == 0: e("v_add_u32 v125, s14, v124\ns_add_u32 s14, s14, 32\ns_and_b32 s14, s14, 1023")
                    if t == 1: e(f"s_mov_b64 exec, s[100:101]\nds_write_b128 v125, {v(HR + 4 * ((2 * ks) % ns), 4)}\ns_mov_b64 exec, -1", "uc")
            if ks + HD < 32: ld(ks + HD)
            if nd < 32 and nd - 8 < nt:
                p.wlg(f"t1_{nd-8}"); p.ext(self.dma_w1(nd)); nd += 1
            if nt < 32 and nt < nd and nt - NB <= ks:
                p.ext(self.tr_w1(nt)); nt += 1
            if ks == self.trig: self.sig(p, 3, 20)
            if ks == 24: self.spin(p, 11, "s99", 20)
            if ks in (0, 6, 12, 20): self.stamp(p)
        assert nt == 32 and nd == 32
        self.stamp(p)
    def gemm1_epi(self, p):
        e = p.e
        RD = 24
        for t in range(1, 4):
            e(f"s_xor_b32 s51, {WV}, {t}\ns_mul_i32 s51, s51, 12288\ns_add_u32 s51, s51, {PART + (t-1)*4096}\nv_add_u32 v{20+t}, s51, {L16}")
        for t in range(1, 4):
            for ds in range(2):
                for j in range(2):
                    o = 16 * ds + 8 * (t & 1) + 4 * j
                    src = v(72 + o, 4) if t < 2 else a(96 + o, 4)
                    e(f"ds_write_b128 v{20+t}, {src} offset:{(2*ds+j)*1024}", "r1w")
        self.sig(p, 2, 20)
        e(f"s_mul_i32 s51, {WV}, 12288\ns_add_u32 s51, s51, {PART}\nv_add_u32 v21, s51, {L16}")
        e(f"s_lshl_b32 s50, {FT}, 3\ns_lshl_b32 s51, {WV}, 1\ns_add_u32 s50, s50, s51\ns_mul_i32 s50, s50, 10240")
        e(f"s_lshl_b32 s51, {DT}, 10\ns_add_u32 s50, s50, s51\ns_add_u32 s86, s50, {GB}")
        c1 = -2 * 0.7978845608028654 * 1.4426950408889634; c3 = c1 * 0.044715
        e(f"s_mov_b32 s90, {fbits(c3)}\nv_mov_b32 v22, {fbits(c1)}")
        self.spin(p, 2, 4, 20)
        for q in range(4):
            for t in range(3): e(f"ds_read_b128 {v(RD+16*t+4*q,4)}, v21 offset:{t*4096+q*1024}", f"r1r{q}")
        O = 104
        for ds in range(2):
            p.wlg(f"r1r{2*ds+1}")
            q = [(72 + 16 * ds + i, RD + 8 * ds + i, 80 + 16 * ds + i) for i in range(8)]
            for x, r, t in q: e(f"v_add_f32 v{x}, v{x}, v{r}\nv_add_f32 v{r+16}, v{r+16}, v{r+32}")
            for x, r, t in q: e(f"v_add_f32 v{x}, v{x}, v{r+16}")
            for x, r, t in q: e(f"v_mul_f32 v{t}, v{x}, v{x}")
            for x, r, t in q: e(f"v_fma_f32 v{t}, v{t}, s90, v22")
            for x, r, t in q: e(f"v_mul_f32 v{t}, v{t}, v{x}")
            for x, r, t in q: e(f"v_exp_f32 v{t}, v{t}")
            for x, r, t in q: e(f"v_add_f32 v{t}, 1.0, v{t}")
            for x, r, t in q: e(f"v_rcp_f32 v{t}, v{t}")
            for x, r, t in q: e(f"v_mul_f32 v{t}, v{t}, v{x}")
            o = O + 4 * ds
            for i in range(4): e(f"v_cvt_pk_bf16_f32 v{o+i}, v{q[2*i][2]}, v{q[2*i+1][2]}")
            e(f"v_permlane32_swap_b32 v{o}, v{o+2}\nv_permlane32_swap_b32 v{o+1}, v{o+3}")
            e(f"buffer_store_dwordx4 {v(o,4)}, {(VH0, VH1)[ds]}, {SWS}, s86 offen sc1", "gs")
        self.stamp(p)
        e("s_waitcnt vmcnt(0)")
        self.sig(p, 6, 20)
        self.spin(p, 6, 5, 20)
        self.stamp(p)

    def dma_w2(self, ks):
        p = Prog()
        for g in range(4):
            p.e(f"s_add_u32 m0, {RINGB}, {(ks % 4) * 4096 + g * 1024}")
            p.e(f"buffer_load_dwordx4 v{12 + (g & 1)}, {SW2}, s75 offen {self.wflag} lds", f"w2_{ks}")
            p.e("s_add_u32 s75, s75, 32768")
        p.e("s_cmp_eq_u32 s75, s93\ns_cselect_b32 s75, s92, s75")
        return p
    NB2 = 4
    def tr_w2(self, ks):
        p = Prog()
        r = 16 * (ks % self.NB2)
        p.wvm(f"w2_{ks}")
        for ss in range(4):
            p.e(f"ds_read_b64_tr_b16 {a(r+4*ss,2)}, v{14+ss} offset:{(ks%4)*4096}", f"t2_{ks}")
            p.e(f"ds_read_b64_tr_b16 {a(r+4*ss+2,2)}, v{14+ss} offset:{(ks%4)*4096+512}", f"t2_{ks}")
        return p
    def acc2(self, di, ss): return v(84 + 4 * di, 4) if ss == 0 else a(68 + 4 * (di * 3 + ss - 1), 4)
    def gemm2(self, p):
        e = p.e
        GR, ns, GD = 24, 15, 3
        P2, NB = self.P2, self.NB2
        e(f"s_mul_i32 s86, {WV}, {48*10240}\ns_mul_i32 s51, {DT2}, 1280\ns_add_u32 s86, s86, s51\ns_add_u32 s86, s86, {GB}\ns_add_u32 s87, s86, {48*10240}")
        e(f"s_mul_i32 s76, s12, 40960\ns_add_u32 s76, s76, s86")
        e(f"s_mul_i32 s88, {DT2}, {80*4096}\ns_add_u32 s88, s88, s95\ns_add_u32 s88, s88, {YT}")
        for di in range(5): e(f"buffer_load_dwordx2 {v(104+2*di,2)}, v18, {SX}, s94 offen offset:{32*di}", "xi")
        e("global_load_ushort v114, v120, s[42:43]", "xi")
        nd = 0
        while nd < 4: p.ext(self.dma_w2(nd)); nd += 1
        p.wvm("xi")
        e("v_lshlrev_b32 v114, 16, v114")
        for di in range(5):
            c = 84 + 4 * di
            self.unpack(p, 104 + 2 * di, c, 2)
            for i in range(4): e(f"v_add_f32 v{c+i}, v{c+i}, v114")
        for j in range(P2):
            p.ext(self.tr_w2(j))
            if nd < self.opt.get("D2", P2 + 4):
                p.wlg(f"t2_{j}"); p.ext(self.dma_w2(nd)); nd += 1
        self.stamp(p)
        self.sig(p, 7, 20)
        self.spin(p, 8, 1, 20, sleep=1)
        self.stamp(p)
        def ldy(base):
            for di in range(5):
                e(f"buffer_load_dwordx4 {base(di)}, v115, {SWS}, s88 offen sc1", f"y{di}")
                e("s_add_u32 s88, s88, 65536")
        def mmy(base):
            for di in range(5):
                p.wvm(f"y{di}")
                e(f"v_mfma_f32_16x16x32_bf16 {self.acc2(di,0)}, {base(di)}, v[116:119], {self.acc2(di,0)}")
        def ld(ks):
            for di in range(5):
                r = GR + 4 * ((5 * ks + di) % ns)
                e(f"buffer_load_dwordx4 {v(r,4)}, v19, {SWS}, s76 offen offset:{256*di} sc1", f"g{ks}_{di}")
            e("s_add_u32 s76, s76, 40960\ns_cmp_eq_u32 s76, s87\ns_cselect_b32 s76, s86, s76")
        for ks in range(GD): ld(ks)
        nt = P2
        for ks in range(12):
            p.wlg(f"t2_{ks}")
            for di in range(5):
                p.wvm(f"g{ks}_{di}")
                for ss in range(4):
                    r = GR + 4 * ((5 * ks + di) % ns); c = self.acc2(di, ss)
                    src = "0" if (ks == 0 and ss > 0) else c
                    e(f"v_mfma_f32_16x16x32_bf16 {c}, {v(r,4)}, {a(16*(ks%NB)+4*ss,4)}, {src}")
            if ks + GD < 12: ld(ks + GD)
            if nd < 12 and nd - 4 < nt:
                p.wlg(f"t2_{nd-4}"); p.ext(self.dma_w2(nd)); nd += 1
            if nt < 12 and nt < nd and nt - NB <= ks:
                p.ext(self.tr_w2(nt)); nt += 1
            if ks == self.opt.get("ytrig", 8): self.sig(p, 9, 20)
            if ks in (0, 3, 7): self.stamp(p)
        assert nt == 12 and nd == 12
        self.stamp(p)
        self.spin(p, 10, 1, 20)
        yb = lambda di: a(4 * di, 4)
        ldy(yb)
        e(f"v_add_u32 v20, {RINGB}, {L16}")
        for t in range(1, 4):
            for di in range(5): e(f"ds_write_b128 v20, {self.acc2(di,t)} offset:{(t-1)*5120+di*1024}", "r2w")
        for t in range(1, 4):
            e(f"s_xor_b32 s51, {WV}, {t}\ns_lshl_b32 s51, s51, 14\ns_add_u32 s51, s51, {(t-1)*5120}\nv_add_u32 v{20+t}, s51, {L16}")
        e("s_waitcnt lgkmcnt(0)\ns_barrier")
        for di in range(5):
            for t in range(3): e(f"ds_read_b128 {v(GR+12*di+4*t,4)}, v{21+t} offset:{di*1024}", f"r2r{di}")
        for di in range(5):
            c = 84 + 4 * di; r = GR + 12 * di
            p.wlg(f"r2r{di}")
            for hq in range(2): e(f"v_pk_add_f32 {v(r+2*hq,2)}, {v(r+2*hq,2)}, {v(r+4+2*hq,2)}")
            for hq in range(2): e(f"v_pk_add_f32 {v(r+2*hq,2)}, {v(r+2*hq,2)}, {v(r+8+2*hq,2)}")
        mmy(yb)
        for di in range(5):
            c = 84 + 4 * di; r = GR + 12 * di
            for hq in range(2): e(f"v_pk_add_f32 {v(c+2*hq,2)}, {v(c+2*hq,2)}, {v(r+2*hq,2)}")
            for hq in range(2): e(f"v_cvt_pk_bf16_f32 v{104+2*di+hq}, v{c+2*hq}, v{c+2*hq+1}")
            e(f"buffer_store_dwordx2 {v(104+2*di,2)}, v18, {SOUT}, s94 offen offset:{32*di}", "os")
        self.stamp(p)

    def main(self):
        self.role = "main"
        p = Prog(); e = p.e
        self.main_start(p)
        e("s_barrier")
        for ks in range(self.n0): p.ext(self.dma_w1(ks))
        self.main_setup2(p)
        e("s_waitcnt lgkmcnt(0)")
        self.ln(p)
        self.mktag(p)
        e(f"s_cmp_lt_u32 {IDX}, 30\ns_cbranch_scc1 L_g1")
        self.spin(p, 4, 2, 20, sleep=1)
        e("s_branch L_g2\nL_g1:")
        self.gemm1(p)
        self.gemm1_epi(p)
        e("L_g2:\ns_waitcnt vmcnt(0) lgkmcnt(0)")
        self.gemm2(p)
        e(f"s_or_b32 s51, {WG}, {WV}\ns_cmp_lg_u32 s51, 0\ns_cbranch_scc1 L_noep")
        e(f"s_mov_b64 exec, 1\nbuffer_store_dword {VTAG}, {VZ}, {SWS}, 0 offen\ns_mov_b64 exec, -1")
        e("L_noep:")
        self.finish(p)
        return p

    def serv(self):
        self.role = "serv"
        p = Prog(); e = p.e
        e("s_setprio 3")
        e(f"v_add_u32 v12, {SYNC}, {L4}\ns_mov_b64 exec, 0xffff\nds_write_b32 v12, {VZ}\ns_mov_b64 exec, -1")
        e("s_waitcnt lgkmcnt(0)")
        e(f"s_load_dword {TAG}, s[48:49], 0")
        self.srd(p, 60, 40, 6291456); self.srd(p, 68, 48, WSEND)
        e("s_barrier")
        self.stamp(p)
        self.tile2(p)
        e(f"v_bfe_u32 v12, {LANE}, 2, 2\nv_mul_u32_u24 v12, {PT}, v12\nv_lshrrev_b32 v13, 4, {LANE}\nv_lshl_add_u32 v12, v13, 5, v12")
        e(f"v_and_b32 v13, 3, {LANE}\nv_lshl_add_u32 v12, v13, 3, v12\nv_add_u32 v12, {LNT}, v12")
        e(f"s_mul_i32 s84, {WG}, 10240\ns_add_u32 s84, s84, {HB}\ns_add_u32 s85, s84, 4096\ns_add_u32 s86, s84, 8192")
        e(f"s_lshl_b32 s87, {WG}, 4\ns_add_u32 s87, s87, {STAT}\nv_lshlrev_b32 v13, 12, {LANE}")
        e(f"s_lshl_b32 s89, {WG}, 2\ns_add_u32 s89, s89, {F1}")
        e(f"v_lshlrev_b32 v14, 14, {LANE}\ns_and_b32 s51, {IDX}, 3\ns_lshl_b32 s51, s51, 12\ns_lshl_b32 s88, {ST2}, 7\ns_add_u32 s88, s88, s51\ns_add_u32 s88, s88, {self.NSP * 16 * 4096}")
        e("s_waitcnt lgkmcnt(0)")
        self.mktag(p)
        self.spin(p, 0, 4, 20, sleep=1)
        self.stamp(p)
        for b in range(11):
            e(f"ds_read_b64_tr_b16 {v(24+4*b,2)}, v12 offset:{128*b}\nds_read_b64_tr_b16 {v(26+4*b,2)}, v12 offset:{128*b+4*PT}", f"lr{b}")
            if b >= 3:
                c = b - 3; p.wlg(f"lr{c}")
                e(f"buffer_store_dwordx4 {v(24+4*c,4)}, {L16}, {SWS}, s{84 + c//4} offen offset:{(c%4)*1024} sc1")
        for c in range(8, 10):
            p.wlg(f"lr{c}")
            e(f"buffer_store_dwordx4 {v(24+4*c,4)}, {L16}, {SWS}, s{84 + c//4} offen offset:{(c%4)*1024} sc1")
        p.wlg("lr10")
        e(f"s_mov_b64 exec, 3\nbuffer_store_dwordx4 v[64:67], v13, {SWS}, s87 offen sc1\ns_mov_b64 exec, -1")
        self.sig(p, 4, 20)
        e("s_waitcnt vmcnt(0)")
        self.flag_store(p, "s89")
        self.sig(p, 4, 20)
        self.stamp(p)
        e(f"s_mul_i32 s50, {DT2}, 80\ns_lshr_b32 s50, s50, 6\ns_mul_i32 s92, s50, {24*128}\ns_add_u32 s92, s92, {F2}")
        e(f"v_min_u32 v15, 47, {LANE}\nv_lshlrev_b32 v15, 7, v15\nv_min_u32 v16, 19, {LANE}\nv_lshlrev_b32 v16, 4, v16")
        e(f"s_mul_i32 s93, {DT2}, 320\ns_add_u32 s93, s93, {F3}")
        e(f"s_mul_i32 s89, {DT}, 24\ns_add_u32 s89, s89, {FT}\ns_lshl_b32 s89, s89, 7\ns_add_u32 s89, s89, {F2}")
        e(f"s_cmp_lt_u32 {IDX}, 30\ns_cbranch_scc1 L_s1")
        e(f"v_lshrrev_b32 v17, 3, {LANE}\nv_lshlrev_b32 v17, 12, v17\nv_and_b32 v18, 7, {LANE}\nv_lshl_add_u32 v17, v18, 7, v17")
        e(f"s_lshr_b32 s88, {XCD}, 1\ns_lshl_b32 s88, s88, 10\ns_and_b32 s51, {IDX}, 1\ns_lshl_b32 s51, s51, 15\ns_add_u32 s88, s88, s51")
        for i in range(self.NSP):
            e(f"buffer_load_dword v{24+i}, v17, {SW2}, s88 offen {self.wflag}\ns_add_u32 s88, s88, 65536")
        e("s_waitcnt vmcnt(0)\ns_branch L_s2\nL_s1:")
        self.spin(p, 5, self.opt.get("pw", 1), 20, sleep=1)
        self.stamp(p)
        e(f"s_mov_b32 s50, {F1}")
        self.poll(p, L16, "s50", 20, wide=True, sleep=self.opt.get("psleep", 4))
        self.sig(p, 1, 20)
        self.stamp(p)
        if self.debug: e(f"v_writelane_b32 {VDBG}, s78, 31")
        if self.trig >= 0:
            self.spin(p, 3, 1, 20, sleep=4)
            for i in range((1536 - self.NSP * 16 + 255) // 256):
                e(f"buffer_load_dword v{24+i}, v14, {SW2}, s88 offen {self.wflag}\ns_add_u32 s88, s88, {256*4096}")
        self.stamp(p)
        self.spin(p, 6, 4, 20, sleep=1)
        self.flag_store(p, "s89")
        self.sig(p, 6, 20)
        self.stamp(p)
        e("L_s2:")
        self.spin(p, 7, self.opt.get("pw2", 4), 20, sleep=2)
        self.stamp(p)
        self.poll(p, "v15", "s92", 20, sleep=self.opt.get("psleep2", 8))
        self.sig(p, 8, 20)
        self.stamp(p)
        if self.debug: e(f"v_writelane_b32 {VDBG}, s78, 30")
        self.spin(p, 9, self.opt.get("pw3", 4), 20, sleep=2)
        self.poll(p, "v16", "s93", 20, wide=True, sleep=self.opt.get("psleep2", 8))
        self.sig(p, 10, 20)
        if self.debug: e(f"v_writelane_b32 {VDBG}, s78, 29")
        self.finish(p)
        return p

    def kgen(self, p):
        e = p.e
        RAW = [4, 5, 6, 7, 8, 12, 13, 14, 15, 16, 17, 18]
        L2E = 1.4426950408889634
        l2e_hi = struct.unpack("<f", struct.pack("<f", L2E))[0]; l2e_lo = L2E - l2e_hi
        VDT, VD1, VD2, VDS, WA, RA, RB = 54, 55, 56, 57, 58, 59, 60
        e(f"s_and_b32 s51, {CH}, 1\ns_lshl_b32 s51, s51, 4\ns_lshr_b32 s80, s80, s51\ns_lshl_b32 s80, s80, 16\ns_lshr_b32 s81, s81, s51\ns_lshl_b32 s81, s81, 16")
        e(f"v_mov_b32 v62, s80\nv_mov_b32 v63, {fbits(l2e_hi)}\nv_mul_f32 v64, v62, v63\nv_fma_f32 v65, v62, v63, -v64\nv_fmac_f32 v65, {fbits(l2e_lo)}, v62")
        e(f"v_exp_f32 v64, v64\nv_mul_f32 v65, {fbits(0.6931471805599453)}, v65\nv_fma_f32 v{VDT}, v64, v65, v64")
        self.rbf(p, VDT)
        e(f"v_mul_f32 v{VD1}, {fbits(L2E)}, v{VDT}\nv_mul_f32 v{VD2}, 0.15915494, v{VDT}")
        e(f"v_cmp_eq_u32 vcc, 0, {LANE}\nv_mov_b32 v62, s81\nv_cndmask_b32 v{VDS}, 0, v62, vcc")
        e(f"s_sub_u32 s76, {REGB}, {REG0 - PART}\nv_add_u32 v{WA}, s76, {L4}")
        e(f"v_and_b32 v62, 31, {LANE}\nv_lshrrev_b32 v63, 5, {LANE}\nv_lshlrev_b32 v63, 4, v63\nv_add_u32 v63, s76, v63")
        e(f"v_mul_u32_u24 v64, {KP}, v62\nv_add_u32 v{RB}, v64, v63")
        e(f"v_min_u32 v62, 20, v62\nv_add_u32 v62, 32, v62\nv_mul_u32_u24 v64, {KP}, v62\nv_add_u32 v{RA}, v64, v63")
        e(f"v_mov_b32 v28, 0x3f80\nds_write_b32 v{WA}, v28", "kw")
        p.wvm("par")
        self.stamp(p)
        PK = 116; pk = [0]; P = 62
        FA, FB = 16, 48
        def mf(rd):
            l = []
            for s in range(8):
                q = Prog()
                c = "0" if (rd == 0 and s == 0) else a(0, 16)
                q.e(f"v_mfma_f32_32x32x16_bf16 {a(0,16)}, {a(FA+4*s,4)}, {a(FB+4*s,4)}, {c}")
                l.append(q)
            return l
        for rd in range(3):
            q = Prog(); e = q.e
            def cmul(sets):
                for d, x, y in sets: e(f"v_pk_mul_f32 {v(d,2)}, {v(x,2)}, {v(y,2)} op_sel_hi:[0,1]")
                for d, x, y in sets: e(f"v_pk_fma_f32 {v(d,2)}, {v(x,2)}, {v(y,2)}, {v(d,2)} op_sel:[1,1,0] op_sel_hi:[1,0,1] neg_lo:[1,0,0]")
            def puts(l, neg):
                rs = []
                for row, z in l:
                    r = PK + pk[0] % 8; pk[0] += 1; rs.append(r)
                    e(f"v_cvt_pk_bf16_f32 v{r}, v{z}, {'-' if neg else ''}v{z+1}")
                for (row, z), r in zip(l, rs): e(f"ds_write_b32 v{WA}, v{r} offset:{row*KP}", "kw")
            for i in range(6):
                if rd == 0: e(f"v_lshlrev_b32 v{P+i}, 16, v{RAW[2*i]}")
                elif rd == 1: e(f"v_and_b32 v{P+i}, 0xffff0000, v{RAW[2*i]}")
                else: e(f"v_lshlrev_b32 v{P+i}, 16, v{RAW[2*i+1]}")
            AR, AI = 68, 69
            e(f"v_mul_f32 v{AR}, v{P}, v{VD1}\nv_mul_f32 v{AI}, v{P+1}, v{VD2}")
            e(f"v_pk_mul_f32 {v(P+2,2)}, {v(P+2,2)}, {v(VDT,2)} op_sel_hi:[1,0]")
            E1, E8, E256 = 70, 72, 74
            TM_, TA = 76, 79
            for i, t in enumerate((1.0, 8.0, 256.0)):
                if i == 0: e(f"v_mov_b32 v{TM_}, v{AR}\nv_fract_f32 v{TA}, v{AI}")
                else: e(f"v_mul_f32 v{TM_+i}, {fbits(t)}, v{AR}\nv_mul_f32 v{TA+i}, {fbits(t)}, v{AI}\nv_fract_f32 v{TA+i}, v{TA+i}")
            X = 82
            cmul([(X, P + 4, P + 2)])
            for i in range(3):
                e(f"v_exp_f32 v{TM_+i}, v{TM_+i}\nv_cos_f32 v{E1+2*i}, v{TA+i}\nv_sin_f32 v{E1+2*i+1}, v{TA+i}")
            for i in range(3): e(f"v_mul_f32 v{E1+2*i}, v{E1+2*i}, v{TM_+i}\nv_mul_f32 v{E1+2*i+1}, v{E1+2*i+1}, v{TM_+i}")
            E2, E4, E16, E512 = 98, 100, 102, 104
            EA, EB, E32, Y, Z = 106, 20, 114, 30, 38
            cmul([(E2, E1, E1), (E16, E8, E8), (E512, E256, E256), (X + 2, X, E1)])
            cmul([(E4, E2, E2), (EA + 6, E16, E8), (E32, E16, E16), (X + 4, X, E2), (X + 6, X + 2, E2)])
            p.ext(q)
            if rd > 0: p.wlg("kr")
            q = Prog(); e = q.e
            puts([(1, E8), (2, E16), (3, EA + 6), (4, E32)], False)
            cmul([(X + 8 + 2 * i, X + 2 * i, E4) for i in range(4)])
            puts([(32 + i, X + 2 * i) for i in range(4)], True)
            cmul([(EB, E8, E32), (EB + 2, E16, E32), (EB + 4, EA + 6, E32), (EB + 6, E32, E32)])
            puts([(36 + i, X + 8 + 2 * i) for i in range(4)], True)
            cmul([(Y + 2 * i, X + 4 * i, E256) for i in range(4)])
            cur, nxt = EB, EA
            puts([(5 + i, cur + 2 * i) for i in range(4)], False)
            extra = [[(Z, X, E512), (Z + 2, X + 8, E512), (Z + 4, Y, E512), (Z + 6, Y + 4, E512)],
                     [(Z + 8, Z, E512), (Z + 10, Z + 4, E512)], [(Z + 12, Z + 8, E512), (Z + 14, Z + 10, E512)], [(X + 2, Z + 12, E512)], [], []]
            extra_put = [[(40 + i, Y + 2 * i) for i in range(4)], [(44 + i, Z + 2 * i) for i in range(4)], [(48, Z + 8), (49, Z + 10)], [(50, Z + 12), (51, Z + 14)], [(52, X + 2)], []]
            for st in range(6):
                j0 = 9 + 4 * st
                n = min(4, 32 - j0)
                cmul([(nxt + 2 * i, cur + 2 * i, E32) for i in range(n)])
                if extra_put[st]: puts(extra_put[st], True)
                if extra[st]: cmul(extra[st])
                puts([(j0 + i, nxt + 2 * i) for i in range(n)], False)
                cur, nxt = nxt, cur
            if rd > 0:
                half = Prog(); half.items = q.items[:len(q.items) * 2 // 3]; rest = Prog(); rest.items = q.items[len(q.items) * 2 // 3:]
                p.ext(interleave(half, mf(rd - 1))); p.ext(rest)
            else: p.ext(q)
            for s in range(8):
                p.e(f"ds_read_b128 {a(FA+4*s,4)}, v{RA} offset:{s*32}\nds_read_b128 {a(FB+4*s,4)}, v{RB} offset:{s*32}", f"kr")
        e = p.e
        e(f"v_and_b32 v62, 31, {LANE}\nv_lshrrev_b32 v63, 5, {LANE}\ns_add_u32 s51, {REGB}, {KCO}")
        e(f"v_lshlrev_b32 v64, 4, v62\nv_lshl_add_u32 v64, v63, 3, v64\nv_add_u32 v64, s51, v64")
        e(f"v_cmp_eq_u32 vcc, 0, v63\nv_lshlrev_b32 v65, 3, v62\nv_add_u32 v65, 512, v65\nv_lshlrev_b32 v66, 2, v62\nv_add_u32 v66, 768, v66")
        e(f"v_cndmask_b32 v65, v66, v65, vcc\nv_add_u32 v65, s51, v65\nv_mov_b32 v66, 128\nv_cndmask_b32 v66, v66, 4, vcc\nv_add_u32 v66, v65, v66")
        e(f"v_lshlrev_b32 v67, 1, v62\nv_lshl_add_u32 v67, v63, 8, v67\nv_add_u32 v67, s51, v67")
        p.wlg("kr")
        self.sig(p, 11, 68)
        for q in mf(2): p.ext(q)
        blocks = [(-2, 34, 8), (32, 32, 4), (64, 64, 2), (128, 64, 1), (192, 64, 1)]
        info = []
        for bi, (v0, nl, stride) in enumerate(blocks):
            cis = lambda y: y if y < 0 else ci(y)
            base = cis(8 * v0)
            offs = {}
            for t in range(-1, 8):
                o = [cis(8 * (v0 + l) + 7 - t) - (base + stride * l) for l in range(nl)]
                offs[t] = (o[0], o[1])
                assert all(o[l] == o[l & 1] for l in range(nl)) and o[1] - o[0] in (0, 1)
            AD = 100 + 3 * bi
            e(f"s_add_u32 s51, {REGB}, {KCO + 2*base}\nv_mul_u32_u24 v{AD}, {2*stride}, {LANE}\nv_add_u32 v{AD}, s51, v{AD}")
            if any(o[0] != o[1] for o in offs.values()): e(f"v_and_b32 v{AD+1}, 1, {LANE}\nv_lshl_add_u32 v{AD+1}, v{AD+1}, 1, v{AD}")
            e(f"s_add_u32 s51, {REGB}, {(255 - v0) * 16}\nv_sub_u32 v{AD+2}, s51, {L16}")
            info.append(offs)
        e("s_mov_b64 exec, 0xff")
        e(f"ds_write_b32 v{WA}, {VZ} offset:{REG0 - PART + KCO - 32}", "kc")
        e("s_mov_b32 exec_lo, -1")
        e(f"v_mov_b32 v76, 0\nv_mov_b32 v77, 0\nv_mov_b32 v78, 0\nv_mov_b32 v79, 0\nv_add_u32 v68, {REGB}, {L16}\nds_write_b128 v68, v[76:79] offset:{UO}", "kc")
        e("s_mov_b64 exec, -1")
        for i in range(12): e(f"v_accvgpr_read_b32 v{82+i}, a{i}")
        e(f"v_add_f32 v82, v82, v{VDS}")
        for i in range(6): e(f"v_cvt_pk_bf16_f32 v{70+i}, v{82+2*i}, v{83+2*i}")
        e(f"ds_write_b64 v64, v[70:71]\nds_write_b32 v65, v72\nds_write_b32 v66, v73\nds_write_b16 v67, v74 offset:1024", "kc")
        e("s_mov_b32 exec_hi, 0")
        e(f"ds_write_b16_d16_hi v67, v74 offset:{1024+64}\nds_write_b16 v67, v75 offset:{1024+128}\nds_write_b16_d16_hi v67, v75 offset:{1024+192}", "kc")
        e("s_mov_b64 exec, -1")
        vrs = []
        for bi, (v0, nl, stride) in enumerate(blocks):
            RR = 20 + 9 * bi; AD = 100 + 3 * bi; offs = info[bi]
            if nl < 64: e(f"s_mov_b32 exec_hi, {(1 << (nl - 32)) - 1}")
            seen = {}; vr = {}
            for t in range(-1, 8):
                o = offs[t]
                if o not in seen:
                    seen[o] = RR + len(seen)
                    e(f"ds_read_u16 v{seen[o]}, v{AD + (1 if o[0] != o[1] else 0)} offset:{2*o[0]}", f"kx{bi}")
                vr[t] = seen[o]
            vrs.append(vr)
            if nl < 64: e("s_mov_b64 exec, -1")
        for bi, (v0, nl, stride) in enumerate(blocks):
            AD = 100 + 3 * bi; O = 70 + 8 * (bi & 1); vr = vrs[bi]
            p.wlg(f"kx{bi}")
            for i in range(4): e(f"v_lshl_or_b32 v{O+i}, v{vr[2*i+1]}, 16, v{vr[2*i]}")
            for i in range(4): e(f"v_lshl_or_b32 v{O+4+i}, v{vr[2*i]}, 16, v{vr[2*i-1]}")
            if nl < 64: e(f"s_mov_b32 exec_hi, {(1 << (nl - 32)) - 1}")
            e(f"ds_write_b128 v{AD+2}, {v(O,4)} offset:{R0O}\nds_write_b128 v{AD+2}, {v(O+4,4)} offset:{R1O}", "kt")
            if nl < 64: e("s_mov_b64 exec, -1")

    def gather(self, p):
        e = p.e
        S2, M2, SF, MF = 24, 40, 56, 88
        e(f"s_mov_b32 s84, {STAT}\ns_mov_b32 s85, {STAT+4096}")
        e(f"s_add_u32 s51, {REGB}, {UO+512}\nv_add_u32 v21, s51, {L16}")
        self.spin(p, 1, 1, 22, sleep=2)
        for q in range(4):
            e(f"buffer_load_dwordx4 {v(S2+4*q,4)}, {L16}, {SWS}, s84 offen offset:{1024*q} sc1", f"u")
            e(f"buffer_load_dwordx4 {v(M2+4*q,4)}, {L16}, {SWS}, s85 offen offset:{1024*q} sc1", f"u")
        p.wvm("u")
        self.unpack(p, S2, SF, 16); self.unpack(p, M2, MF, 16)
        self.stamp(p)
        self.spin(p, 2, 4, 22, sleep=2)
        self.stamp(p)
        for q in range(4): e(f"ds_read_b128 {v(24+4*q,4)}, v21 offset:{1024*q}", f"ur{q}")
        for q in range(4):
            p.wlg(f"ur{q}")
            self.unpack(p, 24 + 4 * q, 40, 4)
            for i in range(8): e(f"v_fma_f32 v{40+i}, v{40+i}, v{SF+8*q+i}, v{MF+8*q+i}")
            for i in range(4): e(f"v_cvt_pk_bf16_f32 v{48+4*(q&1)+i}, v{40+2*i}, v{41+2*i}")
            e(f"ds_write_b128 v21, {v(48+4*(q&1),4)} offset:{1024*q}", "uw")
        self.stamp(p)
    def conv(self, p):
        e = p.e
        AA, BA, YO, ACC = 20, 24, 25, 64
        e(f"v_lshrrev_b32 v32, 4, {LANE}\nv_bfe_u32 v33, {LANE}, 1, 3\nv_lshlrev_b32 v34, 2, v32\nv_sub_u32 v34, v34, v33")
        e(f"v_and_b32 v33, 1, {LANE}\nv_xor_b32 v33, 1, v33\nv_mul_u32_u24 v33, {R1O//4 + 1}, v33\nv_add_u32 v34, v34, v33")
        e(f"s_add_u32 s51, {REGB}, {4*(1015 - 16*63)}\nv_lshl_add_u32 v{AA+3}, v34, 2, s51")
        for mp in range(3): e(f"v_add_u32 v{AA+mp}, {(3-mp)*1024}, v{AA+3}")
        e(f"v_and_b32 v33, 15, {LANE}\nv_lshl_add_u32 v34, v33, 1, v32\ns_add_u32 s51, {REGB}, {UO + 16*2}\nv_lshl_add_u32 v{BA}, v34, 4, s51")
        e(f"v_and_b32 v34, 1, v32\nv_lshlrev_b32 v34, 9, v34\nv_lshl_add_u32 v34, v33, 5, v34\nv_lshrrev_b32 v32, 1, v32\nv_lshl_add_u32 v{YO}, v32, 4, v34")
        e(f"s_lshl_b32 s86, {CH}, 12\ns_add_u32 s86, s86, {YT}\ns_lshl_b32 s89, {CH}, 2\ns_add_u32 s89, s89, {F3}")
        def loads(ph):
            l = []; st = ph & 1
            for i in range(8):
                off = (1 - (i & 1)) * 128 + (7 - ph) * 16
                r = 64 * st + 4 * i
                for txt in (f"ds_read2_b32 {a(r,2)}, v{AA + i//2} offset0:{off} offset1:{off+1}",
                            f"ds_read2_b32 {a(r+2,2)}, v{AA + i//2} offset0:{off+2} offset1:{off+3}",
                            f"ds_read_b128 {a(r+32,4)}, v{BA} offset:{512*i + (7-ph)*64}"):
                    q = Prog(); q.e(txt, f"c{ph}_{i}"); l.append(q)
            return l
        first = set()
        def mfmas(ph):
            q = Prog(); st = ph & 1
            for n in range(8):
                prs = [(mu, n) for mu in range(n + 1) if mu + n <= 7] + [(n, d) for d in range(n) if n + d <= 7]
                q.wlg(f"c{ph}_{n}")
                for mu, d in prs:
                    I = mu + d; acc = v(ACC + 4 * I, 4)
                    src = acc if I in first else "0"
                    first.add(I)
                    q.e(f"v_mfma_f32_16x16x32_bf16 {acc}, {a(64*st+4*mu,4)}, {a(64*st+32+4*d,4)}, {src}")
            return q
        for q in loads(0): p.ext(q)
        for ph in range(8):
            m = mfmas(ph)
            p.ext(interleave(m, loads(ph + 1)) if ph < 7 else m)
        for k in range(4):
            o = 100 + 4 * k
            for i in range(4): e(f"v_cvt_pk_bf16_f32 v{o+i}, v{ACC+8*k+2*i}, v{ACC+8*k+2*i+1}")
            e(f"v_permlane16_swap_b32 v{o}, v{o+2}\nv_permlane16_swap_b32 v{o+1}, v{o+3}")
            e(f"buffer_store_dwordx4 {v(o,4)}, v{YO}, {SWS}, s86 offen offset:{1024*k} sc1", "ys")
        self.stamp(p)
        e("s_waitcnt vmcnt(0)")
        self.flag_store(p, "s89")
    def convw(self):
        self.role = "conv"
        p = Prog(); e = p.e
        RAW = [4, 5, 6, 7, 8, 12, 13, 14, 15, 16, 17, 18]
        e(f"s_sub_u32 s14, {WV}, 4\ns_cmp_ge_u32 s14, s99\ns_cbranch_scc1 L_end")
        e(f"s_lshl_b32 {CH}, {DT}, 6\ns_lshl_b32 s51, s97, 5\ns_add_u32 {CH}, {CH}, s51\ns_add_u32 {CH}, {CH}, s98\ns_add_u32 {CH}, {CH}, s14")
        e(f"s_mul_i32 {REGB}, s14, {REGSZ}\ns_add_u32 {REGB}, {REGB}, {REG0}")
        e(f"s_mul_i32 s51, {CH}, 384\nv_add_u32 v20, s51, {L4}\nv_lshlrev_b32 v21, 1, {LANE}\nv_add_u32 v21, s51, v21")
        e(f"s_lshr_b32 s79, {CH}, 1\ns_lshl_b32 s79, s79, 2")
        e("s_waitcnt lgkmcnt(0)")
        e(f"s_load_dword {TAG}, s[48:49], 0\ns_load_dword s80, s[30:31], s79\ns_load_dword s81, s[32:33], s79")
        e("s_barrier")
        for i in range(6):
            e(f"global_load_dword v{RAW[2*i]}, v20, s[{18+2*i}:{19+2*i}]", "par")
            e(f"global_load_ushort v{RAW[2*i+1]}, v21, s[{18+2*i}:{19+2*i}] offset:256", "par")
        self.srd(p, 68, 48, WSEND)
        e("s_waitcnt lgkmcnt(0)")
        self.stamp(p)
        self.mktag(p)
        self.kgen(p)
        self.stamp(p)
        self.gather(p)
        self.conv(p)
        self.finish(p)
        return p

    def build(self):
        p = Prog(); self.prologue(p)
        p.ext(self.main())
        body = finalize(p)
        q = Prog(); q.e(f"L_aux:\ns_cmp_eq_u32 {WV}, 7\ns_cbranch_scc1 L_serv"); q.ext(self.convw())
        body += finalize(q)
        q = Prog(); q.e("L_serv:"); q.ext(self.serv()); q.e("L_end:\ns_endpgm")
        body += finalize(q)
        ref = open("cdna_kernels/" + NAME + ".s.ref").read()
        head = [l for l in ref.split("\n") if l.startswith(";") and "@launch" not in l]
        k = NAME + "_kernel"
        s = "\n".join(head) + f"\n; @launch grid=(256,1,1) block=(512,1,1) lds={LDS_BYTES}\n"
        s += f'.amdgcn_target "amdgcn-amd-amdhsa--gfx950"\n.text\n.globl {k}\n.p2align 8\n.type {k},@function\n{k}:\n'
        s += body
        s += f""".section .rodata,"a"
.p2align 6
.amdhsa_kernel {k}
  .amdhsa_next_free_vgpr 256
  .amdhsa_next_free_sgpr 102
  .amdhsa_accum_offset 128
  .amdhsa_group_segment_fixed_size 0
  .amdhsa_kernarg_size 136
  .amdhsa_user_sgpr_count 2
  .amdhsa_user_sgpr_kernarg_segment_ptr 1
  .amdhsa_system_sgpr_workgroup_id_x 1
.end_amdhsa_kernel
"""
        return s

if __name__ == "__main__":
    out = sys.argv[1]
    kw = eval("dict(" + (sys.argv[2] if len(sys.argv) > 2 else "") + ")")
    open(out, "w").write(G(**kw).build())
```

```python
import sys, struct
from asmlib import Prog, interleave, finalize

NAME = "parallel_sum__ssm_conv_s4__mixer_token_mlp__prompt"
F1, F3, STAT, TM, F2 = 0x1000, 0x3000, 0x4000, 0x8000, 0x50000
HB, GB, YT, WSEND = 0x80000, 0x300000, 0x4E0000, 0x760000
RINGW, RS = 28672, 7
PT = 1344
REG0, REGSZ = 4 * RINGW, 14848
SYNC = REG0 + 3 * REGSZ
R0O, R1O, UO, KCO = 0, 4160, 8704, 13312 + 32
LNT = REG0 + UO
KP = 272
LDS_BYTES = 163840
assert SYNC + 128 <= LDS_BYTES
Y_EPI = 3
Y_LN, Y_F1, Y_PART, Y_PUB, Y_P1, Y_G, Y_P2, Y_F2, Y_P3, Y_F3, Y_TAG, Y_U = 0, 1, 2, 4, 5, 6, 7, 8, 9, 10, 11, 12

def fbits(x): return "0x%08x" % struct.unpack("<I", struct.pack("<f", x))[0]
def bf16r(l):
    u = struct.unpack("<I", struct.pack("<f", float(l)))[0]
    u = ((u + 0x7FFF + ((u >> 16) & 1)) >> 16) << 16
    return int(struct.unpack("<f", struct.pack("<I", u))[0])
def ci(l):
    v = bf16r(l)
    if v <= 256: return v
    if v <= 512: return 256 + (v - 256) // 2
    if v <= 1024: return 384 + (v - 512) // 4
    return 512 + (v - 1024) // 8

WG, WV, XCD, IDX, DT, FT, DT2, ST2, TAG, ROT1, ROT2, CH = "s2", "s3", "s4", "s5", "s6", "s7", "s8", "s9", "s10", "s11", "s12", "s13"
SUB, C0, NCH = "s97", "s98", "s99"
SX, SW1, SW2, SOUT, SWS = "s[52:55]", "s[56:59]", "s[60:63]", "s[64:67]", "s[68:71]"
RINGB, REGB = "s73", "s77"
VSY, LANE, L16, L4, VTAG, VZ, VDBG = "v0", "v1", "v2", "v3", "v9", "v10", "v11"

def v(i, n=1): return f"v{i}" if n == 1 else f"v[{i}:{i+n-1}]"
def a(i, n=1): return f"a{i}" if n == 1 else f"a[{i}:{i+n-1}]"

def groups_of(prog):
    groups = []
    for it in prog.items:
        prev = groups[-1][-1][0] if groups else None
        if isinstance(prev, str) and (prev.startswith(("s_add_u32 m0", "s_cmp", "s_sub_u32 s51", "s_mov_b64 exec, s", "s_mov_b64 exec, 1", "ds_write_b128 v125", "ds_add"))):
            groups[-1].append(it)
        else: groups.append([it])
    return groups

class G:
    def __init__(self, debug=False, **kw):
        self.debug = debug
        self.o = dict(P1=6, D1=13, PS1=11, lead1=4, xat=9, P2=4, D2=11, PS2=9, lead2=4, wflag="", xflag="nt", nsp=30, thr=2,
                      ytrig=5, ychk=10, pk=0, psleep=4, psleep2=8, rot1=2, rot2=2, eb=2, free1=2, pflag='nt', cwait=0)
        self.o.update(kw)
        self.nst = {}; self.nlab = 0; self.role = None
    def stamp(self, p):
        if not self.debug: return
        n = self.nst.get(self.role, 0)
        p.e(("s_memtime" if self.o.get("cyc") else "s_memrealtime") + " s[82:83]\ns_waitcnt lgkmcnt(0)")
        p.e(f"v_writelane_b32 {VDBG}, s82, {n}")
        self.nst[self.role] = n + 1
    def label(self, s):
        self.nlab += 1; return f"L{s}_{self.nlab}"
    def flag_store(self, p, soff, pre=""):
        p.e(f"s_mov_b64 exec, 1\n{pre}buffer_store_dword {VTAG}, {VZ}, {SWS}, {soff} offen sc1\ns_mov_b64 exec, -1")
    def poll(self, p, voff, soff, tmp, wide=False, sleep=0):
        l = self.label("poll"); d = self.label("polld"); f = self.label("pollf")
        p.e("s_mov_b32 s78, 0")
        if sleep: p.e(f"s_branch {f}")
        p.e(f"{l}:")
        if sleep: p.e(f"s_sleep {sleep}\n{f}:")
        if wide:
            p.e(f"buffer_load_dwordx4 {v(tmp,4)}, {voff}, {SWS}, {soff} offen sc1")
            p.e("s_add_u32 s78, s78, 1\ns_waitcnt vmcnt(0)")
            for i in range(4): p.e(f"v_xor_b32 {v(tmp+i)}, {TAG}, {v(tmp+i)}")
            p.e(f"v_or3_b32 {v(tmp)}, {v(tmp)}, {v(tmp+1)}, {v(tmp+2)}\nv_or_b32 {v(tmp)}, {v(tmp)}, {v(tmp+3)}")
            p.e(f"v_cmp_ne_u32 vcc, 0, {v(tmp)}")
        else:
            p.e(f"buffer_load_dword {v(tmp)}, {voff}, {SWS}, {soff} offen sc1")
            p.e("s_add_u32 s78, s78, 1\ns_waitcnt vmcnt(0)")
            p.e(f"v_cmp_ne_u32 vcc, {TAG}, {v(tmp)}")
        p.e(f"s_cmp_gt_u32 s78, 0x8000\ns_cbranch_scc1 {d}\ns_cbranch_vccnz {l}")
        p.e(f"{d}:")
    def sig(self, p, word, tmp):
        p.e(f"v_mov_b32 v{tmp}, 1\ns_mov_b64 exec, 1\nds_add_u32 {VSY}, v{tmp} offset:{4*word}\ns_mov_b64 exec, -1", "sig")
    def spin(self, p, word, n, tmp, sleep=0):
        l = self.label("spin"); d = self.label("spind"); f = self.label("spinf")
        p.e("s_mov_b32 s78, 0")
        if sleep: p.e(f"s_branch {f}")
        p.e(f"{l}:")
        if sleep: p.e(f"s_sleep {sleep}\n{f}:")
        p.e(f"ds_read_b32 v{tmp}, {VSY} offset:{4*word}\ns_add_u32 s78, s78, 1\ns_waitcnt lgkmcnt(0)\nv_readfirstlane_b32 s79, v{tmp}")
        p.e(f"s_cmp_gt_u32 s78, 0x40000\ns_cbranch_scc1 {d}\ns_cmp_lt_u32 s79, {n}\ns_cbranch_scc1 {l}")
        p.e(f"{d}:")
    def mktag(self, p):
        p.e(f"s_mul_i32 {TAG}, {TAG}, 0x9E3779B1\ns_add_u32 {TAG}, {TAG}, 0x7F4A7C15\nv_mov_b32 {VTAG}, {TAG}")
    def finish(self, p):
        e = p.e
        if self.debug:
            e("s_waitcnt vmcnt(0)")
            self.stamp(p)
            e(f"s_lshl_b32 s50, {WG}, 3\ns_add_u32 s50, s50, {WV}\ns_lshl_b32 s50, s50, 7\ns_add_u32 s50, s50, {TM}")
            e(f"s_mov_b32 exec_hi, 0\nbuffer_store_dword {VDBG}, {L4}, {SWS}, s50 offen")
        e("s_endpgm")
    def srd(self, p, d, lo, size): p.e(f"s_mov_b32 s{d}, s{lo}\ns_mov_b32 s{d+1}, s{lo+1}\ns_mov_b32 s{d+2}, {size}\ns_mov_b32 s{d+3}, 0x20000")
    def unpack(self, p, src, dst, n):
        for i in range(n):
            p.e(f"v_lshlrev_b32 v{dst+2*i}, 16, v{src+i}\nv_and_b32 v{dst+2*i+1}, 0xffff0000, v{src+i}")
    def rbf(self, p, r):
        p.e(f"v_cvt_pk_bf16_f32 v{r}, v{r}, v{r}\nv_lshlrev_b32 v{r}, 16, v{r}")

    def prologue(self, p):
        e = p.e
        e(f"s_cmp_ge_u32 {WG}, 256\ns_cbranch_scc1 L_end")
        e("s_load_dwordx16 s[16:31], s[0:1], 0\ns_load_dwordx16 s[32:47], s[0:1], 64\ns_load_dwordx2 s[48:49], s[0:1], 128")
        e(f"v_and_b32 {LANE}, 63, v0\nv_lshrrev_b32 v12, 6, v0\nv_readfirstlane_b32 {WV}, v12")
        e(f"v_lshlrev_b32 {L16}, 4, {LANE}\nv_lshlrev_b32 {L4}, 2, {LANE}\nv_mov_b32 {VZ}, 0\nv_mov_b32 {VDBG}, 0\nv_mov_b32 {VSY}, {SYNC}")
        e(f"s_and_b32 {XCD}, {WG}, 7\ns_lshr_b32 {IDX}, {WG}, 3\ns_lshr_b32 {SUB}, {XCD}, 1\ns_and_b32 s14, {XCD}, 1")
        e(f"s_min_u32 s15, {IDX}, 29\ns_mul_i32 {FT}, s15, 52\ns_lshr_b32 {FT}, {FT}, 8")
        e(f"s_mul_i32 s51, {FT}, 5\ns_sub_u32 {DT}, s15, s51")
        if self.o["rot1"] == 2: e(f"s_lshl1_add_u32 {ROT1}, {DT}, s14\ns_mul_i32 {ROT1}, {ROT1}, 205\ns_lshr_b32 {ROT1}, {ROT1}, 7")
        else: e(f"s_mul_i32 {ROT1}, {DT}, 205\ns_lshr_b32 {ROT1}, {ROT1}, 6")
        e(f"s_mul_i32 {C0}, {FT}, 3\ns_min_u32 {C0}, {C0}, 14\ns_cmp_lt_u32 {FT}, 4\ns_cselect_b32 {NCH}, 3, 2\ns_cmp_ge_u32 {IDX}, 30\ns_cselect_b32 {NCH}, 0, {NCH}")
        e(f"s_mul_i32 s51, s14, 5\ns_add_u32 {DT}, {DT}, s51\ns_mul_i32 s51, {SUB}, 6\ns_add_u32 {FT}, {FT}, s51")
        e(f"s_and_b32 {DT2}, {IDX}, 3\ns_lshr_b32 {ST2}, {IDX}, 2")
        if self.o["rot2"] == 2: e(f"s_lshl1_add_u32 {ROT2}, {DT2}, s14\ns_mul_i32 {ROT2}, {ROT2}, 3\ns_lshr_b32 {ROT2}, {ROT2}, 1")
        else: e(f"s_mul_i32 {ROT2}, {DT2}, 3")
        e(f"s_lshl2_add_u32 {DT2}, s14, {DT2}\ns_lshl3_add_u32 {ST2}, {SUB}, {ST2}")
        e(f"s_cmp_ge_u32 {WV}, 4\ns_cbranch_scc1 L_aux")

    def kk(self, p, g, ks, dst, stride, base):
        if g == 1: p.e(f"s_add_u32 {dst}, {ROT1}, {ks}\ns_and_b32 {dst}, {dst}, 15")
        else: p.e(f"s_add_u32 {dst}, {ROT2}, {ks}\ns_sub_u32 s51, {dst}, 12\ns_cmp_ge_u32 {dst}, 12\ns_cselect_b32 {dst}, s51, {dst}")
        p.e(f"s_mul_i32 {dst}, {dst}, {stride}")
        if base: p.e(f"s_add_u32 {dst}, {dst}, {base}")
    def slot(self, g, ks): return ((ks + (3 if g == 2 else 0)) % RS) * 4096
    def throttle(self, p):
        l = self.label("thr")
        p.e(f"s_cmp_lg_u32 s85, 0\ns_cbranch_scc1 {l}")
        p.e(f"@ds_read_b32 v20, {VSY} offset:{4*Y_PUB}\n@s_waitcnt vmcnt({self.o['thr']}) lgkmcnt(0)\nv_readfirstlane_b32 s85, v20\ns_nop 0\ns_lshr_b32 s85, s85, 1")
        p.e(f"{l}:")
    def dma(self, g, ks, thr=False):
        p = Prog()
        rs, vo, srd, base = (3072, 4, SW1, "s84") if g == 1 else (4096, 12, SW2, "s92")
        self.kk(p, g, ks, "s72", 32 * rs, base)
        for q in range(4):
            if thr and q % 2 == 0: self.throttle(p)
            p.e(f"s_add_u32 m0, {RINGB}, {self.slot(g, ks) + q * 1024}")
            p.e(f"buffer_load_dwordx4 v{vo + (q & 1)}, {srd}, s72 offen {self.o['wflag']} lds", f"w{g}_{ks}")
            if q < 3: p.e(f"s_add_u32 s72, s72, {8*rs}")
        return p
    NB = {1: 6, 2: 4}
    def tr(self, g, ks):
        p = Prog()
        r = 16 * (ks % self.NB[g]); o = self.slot(g, ks)
        p.wvm(f"w{g}_{ks}")
        for ss in range(4):
            p.e(f"ds_read_b64_tr_b16 {a(r+4*ss,2)}, v{14+ss} offset:{o}", f"t{g}_{ks}")
            p.e(f"ds_read_b64_tr_b16 {a(r+4*ss+2,2)}, v{14+ss} offset:{o+512}", f"t{g}_{ks}")
        return p
    def main_start(self, p):
        e = p.e
        e("s_setprio 2")
        e(f"s_mul_i32 {RINGB}, {WV}, {RINGW}\ns_mov_b32 s85, 0")
        e(f"v_lshrrev_b32 v20, 3, {LANE}\nv_and_b32 v21, 7, {LANE}\nv_and_b32 v22, 2, v20\nv_xor_b32 v21, v21, v22\nv_lshlrev_b32 v21, 4, v21")
        e("v_mul_u32_u24 v4, 3072, v20\nv_add_u32 v4, v4, v21\nv_xor_b32 v5, 64, v4\nv_lshl_add_u32 v12, v20, 12, v21\nv_xor_b32 v13, 64, v12")
        e(f"s_mul_i32 s84, {WV}, {512*3072}\ns_lshl_b32 s51, {FT}, 7\ns_add_u32 s84, s84, s51")
        e(f"s_mul_i32 s92, {WV}, {384*4096}\ns_lshl_b32 s51, {ST2}, 7\ns_add_u32 s92, s92, s51")
        e("s_waitcnt lgkmcnt(0)")
        self.srd(p, 56, 36, 6291456); self.srd(p, 52, 16, 2621440); self.srd(p, 60, 40, 6291456); self.srd(p, 64, 44, 2621440); self.srd(p, 68, 48, WSEND)
        e("s_barrier")
        self.stamp(p)
    def main_setup2(self, p):
        e = p.e
        e(f"v_bfe_u32 v20, {LANE}, 2, 2\nv_and_b32 v21, 3, {LANE}\nv_lshrrev_b32 v22, 4, {LANE}\nv_and_b32 v23, 15, {LANE}")
        e("v_lshlrev_b32 v24, 10, v22\nv_lshl_add_u32 v24, v20, 7, v24\nv_lshl_add_u32 v24, v21, 3, v24")
        e(f"v_lshrrev_b32 v20, 1, v20\nv_and_b32 v21, 1, v22\nv_lshl_or_b32 v20, v21, 1, v20\nv_xor_b32 v20, {WV}, v20\nv_lshlrev_b32 v20, 5, v20")
        e(f"v_add3_u32 v14, v24, v20, {RINGB}\nv_xor_b32 v15, 32, v14\nv_xor_b32 v16, 64, v14\nv_xor_b32 v17, 0x60, v14")
        e(f"s_lshl_b32 s51, {FT}, 7\ns_lshl_b32 s15, {WV}, 5\ns_add_u32 s51, s51, s15\nv_lshl_add_u32 v24, v22, 3, s51")
        e("global_load_dwordx2 v[126:127], v24, s[38:39]", "b1")
        e(f"v_mul_u32_u24 v19, 10240, v22\nv_lshl_add_u32 v19, v23, 4, v19\ns_lshl_b32 s51, {SUB}, 8\nv_add_u32 v120, s51, v19")
        e("v_xor_b32 v121, 0x100, v120\nv_xor_b32 v122, 0x200, v120\nv_xor_b32 v123, 0x300, v120")
        e(f"v_lshrrev_b32 v24, 1, v22\nv_mul_u32_u24 v24, 10240, v24\nv_lshl_add_u32 v24, v23, 4, v24\nv_xor_b32 v25, {SUB}, v21\nv_lshl_add_u32 v6, v25, 8, v24\nv_xor_b32 v7, 0x200, v6")
        e(f"v_subrev_u32 v124, {C0}, v23\nv_mul_u32_u24 v124, {REGSZ}, v124\nv_lshl_add_u32 v124, v22, 4, v124")
        e(f"s_lshl_b32 s51, {WV}, 10\ns_add_u32 s51, s51, {REG0 + UO + 512}\nv_add_u32 v124, s51, v124")
        e(f"s_bfm_b32 s100, {NCH}, {C0}\ns_lshl_b32 s51, s100, 16\ns_or_b32 s100, s100, s51\ns_mov_b32 s101, s100")
        e("v_mul_u32_u24 v18, 1280, v23\nv_lshl_add_u32 v18, v22, 3, v18\nv_lshlrev_b32 v115, 12, v23\nv_lshl_add_u32 v115, v21, 4, v115")
        e(f"s_lshl_b32 s94, {ST2}, 6\ns_lshl_b32 s51, {WV}, 4\ns_add_u32 s94, s94, s51\ns_lshl_b32 s95, s94, 1\nv_lshl_add_u32 v8, v23, 1, s95")
        e(f"s_mul_i32 s94, s94, 1280\ns_mul_i32 s51, {DT2}, 160\ns_add_u32 s94, s94, s51")
        e("v_lshlrev_b32 v24, 3, v22\nv_sub_u32 v24, v23, v24\nv_and_b32 v25, 1, v24\nv_lshlrev_b32 v25, 4, v25\nv_mov_b32 v26, 0x3f80\nv_lshlrev_b32 v25, v25, v26\nv_ashrrev_i32 v24, 1, v24")
        for q in range(4): e(f"v_cmp_eq_u32 vcc, {q}, v24\nv_cndmask_b32 v{116+q}, 0, v25, vcc")
        e(f"s_mul_i32 s86, {WV}, {64*10240}\ns_lshl_b32 s51, {DT}, 10\ns_add_u32 s86, s86, s51\ns_add_u32 s86, s86, {HB}")
    def xinit_load(self, p, pre=""):
        for di in range(5): p.e(f"{pre}buffer_load_dwordx2 {v(104+2*di,2)}, v18, {SX}, s94 offen offset:{32*di}", "xi")
        p.e(f"{pre}global_load_ushort v114, v8, s[42:43]", "xi")
    def acc1(self, t, ds): return [v(72 + 4 * ds, 4), v(88 + 4 * ds, 4), a(96 + 4 * ds, 4), a(112 + 4 * ds, 4)][t]
    def acc2(self, di, ss): return v(84 + 4 * di, 4) if ss == 0 else a(68 + 4 * (di * 3 + ss - 1), 4)

    def gemm_loop(self, p, g, nks, nf, ns, nd, nt, ld, mfma, extra):
        NB = self.NB[g]; n = nks * nf
        for i in range(ns): p.ext(ld(i))
        nl = ns
        for ks in range(nks):
            side = Prog()
            if nd < nks and nd - RS < nt:
                if nd >= RS: side.wlg(f"t{g}_{nd-RS}")
                side.ext(self.dma(g, nd)); nd += 1
            if nt < nks and nt < nd and nt - NB < ks:
                side.ext(self.tr(g, nt)); nt += 1
            pre, post = extra(ks)
            gs = groups_of(pre) + groups_of(side)
            p.wlg(f"t{g}_{ks}")
            gi = 0; tot = 3 * nf
            for di in range(nf):
                p.wvm(f"act{ks}_{di}")
                for ss in range(4):
                    p.e(mfma(ks, di, ss))
                    if ss == 0:
                        if nf * ks + di >= 1 and nl < n: p.ext(ld(nl)); nl += 1
                    else:
                        sl = di * 3 + ss
                        while gi < len(gs) and gi < (sl * len(gs) + tot - 1) // tot:
                            p.items.extend(gs[gi]); gi += 1
            assert gi == len(gs)
            p.ext(post)
        assert nl == n and nd == nks and nt == nks

    def gemm1(self, p):
        e = p.e; o = self.o
        HR, ns = 24, 12
        nd = 0
        def more():
            nonlocal nd
            if nd >= RS: p.wlg(f"t1_{nd-RS}")
            p.ext(self.dma(1, nd, thr=nd >= o['free1'])); nd += 1
            if nd == o['free1']: self.main_setup2(p)
            if nd == o["xat"]: self.xinit_load(p)
            if nd == o["PS1"]: self.sig(p, Y_P1, 20)
            if o.get("fine"): self.stamp(p)
        while nd < o["lead1"]: more()
        p.wvm("b1")
        for ds in range(4): self.unpack(p, 126, 72 + 4 * ds, 2)
        for j in range(o["P1"]):
            p.ext(self.tr(1, j))
            if j == 2 and not o.get('fine'): self.stamp(p)
            if nd < o["D1"]: more()
        while nd < o["D1"]:
            p.wvm(f"w1_{nd-o['lead1']}"); more()
        self.stamp(p)
        self.spin(p, Y_F1, 1, 20, sleep=1)
        e(f"ds_read_b32 {VTAG}, {VSY} offset:{4*Y_TAG}", "tag")
        self.stamp(p)
        def ld(i):
            ks, ds = divmod(i, 4); q = Prog()
            if ds == 0: self.kk(q, 1, ks, "s74", 40960, "s86")
            q.e(f"buffer_load_dwordx4 {v(HR + 4 * (i % ns), 4)}, v{120+ds}, {SWS}, s74 offen sc1", f"act{ks}_{ds}")
            return q
        def mfma(ks, ds, t):
            c = self.acc1(t, ds); src = "0" if (ks == 0 and t > 0) else c
            return f"v_mfma_f32_16x16x32_bf16 {c}, {a(16*(ks%6)+4*t,4)}, {v(HR + 4 * ((4*ks+ds) % ns), 4)}, {src}"
        def extra(ks):
            pre = Prog(); post = Prog()
            q = Prog(); self.kk(q, 1, ks, "s14", 64, None); q.e("v_add_u32 v125, s14, v124")
            q.e(f"s_mov_b64 exec, s[100:101]\nds_write_b128 v125, {v(HR + 4 * ((4 * ks) % ns), 4)}\ns_mov_b64 exec, -1", "uc")
            self._uc = q
            if ks % 4 == 3: self.sig(pre, Y_U + ks // 4, 20)
            if ks in (0, 5, 10): self.stamp(post)
            return pre, post
        def mfma_uc(ks, ds, t):
            s = mfma(ks, ds, t)
            if ds == 0 and t == 0: s = s + "\n" + "\n".join(x for x, _ in self._uc.items)
            return s
        self.gemm_loop(p, 1, 16, 4, ns, nd, o["P1"], ld, mfma_uc, extra)
        self.stamp(p)
    def gemm1_epi(self, p):
        e = p.e; RD = 24
        for ks in range(self.o["eb"]): p.ext(self.dma(2, ks))
        e(f"v_add_u32 v20, {RINGB}, {L16}")
        for t in range(1, 4):
            for ds in range(4): e(f"ds_write_b128 v20, {self.acc1(t, ds)} offset:{(t-1)*4096+ds*1024}", "r1w")
        self.sig(p, Y_PART, 21)
        for t in range(1, 4):
            e(f"s_xor_b32 s51, {WV}, {t}\ns_mul_i32 s51, s51, {RINGW}\ns_add_u32 s51, s51, {(t-1)*4096}\nv_add_u32 v{20+t}, s51, {L16}")
        e(f"s_lshl_b32 s50, {FT}, 3\ns_lshl_b32 s51, {WV}, 1\ns_add_u32 s50, s50, s51\ns_mul_i32 s50, s50, 10240")
        e(f"s_lshl_b32 s51, {DT}, 10\ns_add_u32 s50, s50, s51\ns_add_u32 s86, s50, {GB}")
        e(f"s_mul_i32 s89, {DT}, 24\ns_add_u32 s89, s89, {FT}\ns_lshl_b32 s89, s89, 7\ns_add_u32 s89, s89, {F2}")
        c1 = -2 * 0.7978845608028654 * 1.4426950408889634; c3 = c1 * 0.044715
        e(f"s_mov_b32 s90, {fbits(c3)}\nv_mov_b32 v126, {fbits(c1)}")
        self.spin(p, Y_PART, 4, 20)
        for q in range(4):
            for t in range(3): e(f"ds_read_b128 {v(RD+16*t+4*q,4)}, v{21+t} offset:{q*1024}", f"r1r{q}")
        for pr in range(2):
            p.wlg(f"r1r{2*pr+1}")
            q = [(72 + 8 * pr + i, RD + 8 * pr + i, 88 + 8 * pr + i) for i in range(8)]
            for x, r, t in q: e(f"v_add_f32 v{x}, v{x}, v{r}\nv_add_f32 v{r+16}, v{r+16}, v{r+32}")
            for x, r, t in q: e(f"v_add_f32 v{x}, v{x}, v{r+16}")
            for x, r, t in q: e(f"v_mul_f32 v{t}, v{x}, v{x}")
            for x, r, t in q: e(f"v_fma_f32 v{t}, v{t}, s90, v126")
            for x, r, t in q: e(f"v_mul_f32 v{t}, v{t}, v{x}")
            for x, r, t in q: e(f"v_exp_f32 v{t}, v{t}")
            for x, r, t in q: e(f"v_add_f32 v{t}, 1.0, v{t}")
            for x, r, t in q: e(f"v_rcp_f32 v{t}, v{t}")
            for x, r, t in q: e(f"v_mul_f32 v{t}, v{t}, v{x}")
            o = 56 + 8 * pr
            for i in range(4): e(f"v_cvt_pk_bf16_f32 v{o+i}, v{q[2*i][2]}, v{q[2*i+1][2]}")
            e(f"v_permlane16_swap_b32 v{o}, v{o+2}\nv_permlane16_swap_b32 v{o+1}, v{o+3}")
            e(f"buffer_store_dwordx4 {v(o,4)}, v{6+pr}, {SWS}, s86 offen sc1", "gs")
        self.sig(p, Y_EPI, 20)
        self.stamp(p)
        for ks in range(min(self.o["eb"], self.o["P2"])): p.ext(self.tr(2, ks))
        e("s_waitcnt vmcnt(0)")
        l = self.label("nolast")
        e(f"v_mov_b32 v20, 1\ns_mov_b64 exec, 1\nds_add_rtn_u32 v20, {VSY}, v20 offset:{4*Y_G}\ns_mov_b64 exec, -1\ns_waitcnt lgkmcnt(0)\nv_readfirstlane_b32 s79, v20")
        e(f"s_cmp_lg_u32 s79, 3\ns_cbranch_scc1 {l}")
        self.flag_store(p, "s89", "@")
        e(f"{l}:")
        self.stamp(p)
    def gemm2(self, p, spare):
        e = p.e; o = self.o
        GR, ns = 24, 15
        e(f"s_mul_i32 s86, {WV}, {48*10240}\ns_mul_i32 s51, {DT2}, 1280\ns_add_u32 s86, s86, s51\ns_add_u32 s86, s86, {GB}")
        e(f"s_mul_i32 s88, {DT2}, {80*4096}\ns_add_u32 s88, s88, s95\ns_add_u32 s88, s88, {YT}")
        nd = o["eb"]; nt = min(o["eb"], o["P2"])
        e("v_lshlrev_b32 v114, 16, v114")
        for di in range(5):
            c = 84 + 4 * di
            self.unpack(p, 104 + 2 * di, c, 2)
            for i in range(4): e(f"v_add_f32 v{c+i}, v{c+i}, v114")
        self.spin(p, Y_G, 4, 20)
        def more():
            nonlocal nd
            if nd >= RS: p.wlg(f"t2_{nd-RS}")
            p.ext(self.dma(2, nd)); nd += 1
            if nd == o["PS2"]: self.sig(p, Y_P2, 20)
        while nd < min(o["D2"], nt + o["lead2"]): more()
        while nt < o["P2"]:
            p.ext(self.tr(2, nt)); nt += 1
            if nd < o["D2"]: more()
        while nd < o["D2"]:
            p.wvm(f"w2_{nd-o['lead2']}"); more()
        self.stamp(p)
        self.spin(p, Y_F2, 1, 20, sleep=1)
        self.stamp(p)
        def ld(i):
            ks, di = divmod(i, 5); q = Prog()
            if di == 0: self.kk(q, 2, ks, "s74", 40960, "s86")
            q.e(f"buffer_load_dwordx4 {v(GR + 4 * (i % ns), 4)}, v19, {SWS}, s74 offen offset:{256*di} sc1", f"act{ks}_{di}")
            return q
        def mfma(ks, di, ss):
            c = self.acc2(di, ss); src = "0" if (ks == 0 and ss > 0) else c
            return f"v_mfma_f32_16x16x32_bf16 {c}, {v(GR + 4 * ((5*ks+di) % ns), 4)}, {a(16*(ks%4)+4*ss,4)}, {src}"
        yk = o["ychk"]; assert yk >= 9
        def extra(ks):
            pre = Prog(); post = Prog()
            if ks == o["ytrig"]: self.sig(post, Y_P3, 20)
            if ks == yk:
                self.spin(post, Y_F3, 1, 20, sleep=2)
                for di in range(5):
                    post.e(f"buffer_load_dwordx4 {a(4*di,4)}, v115, {SWS}, s88 offen sc1", f"y{di}")
                    post.e("s_add_u32 s88, s88, 65536")
            if ks in (0, 3, 7): self.stamp(post)
            return pre, post
        self.gemm_loop(p, 2, 12, 5, ns, nd, nt, ld, mfma, extra)
        self.stamp(p)
        e(f"v_add_u32 v20, {RINGB}, {L16}")
        for t in range(1, 4):
            for di in range(5): e(f"ds_write_b128 v20, {self.acc2(di,t)} offset:{(t-1)*5120+di*1024}", "r2w")
        for t in range(1, 4):
            e(f"s_xor_b32 s51, {WV}, {t}\ns_mul_i32 s51, s51, {RINGW}\ns_add_u32 s51, s51, {(t-1)*5120}\nv_add_u32 v{20+t}, s51, {L16}")
        for di in range(5):
            p.wvm(f"y{di}")
            e(f"v_mfma_f32_16x16x32_bf16 {self.acc2(di,0)}, {a(4*di,4)}, v[116:119], {self.acc2(di,0)}")
        e("s_waitcnt lgkmcnt(0)\ns_barrier")
        for di in range(5):
            for t in range(3): e(f"ds_read_b128 {v(GR+12*di+4*t,4)}, v{21+t} offset:{di*1024}", f"r2r{di}")
        for di in range(5):
            c = 84 + 4 * di; r = GR + 12 * di
            p.wlg(f"r2r{di}")
            for hq in range(2): e(f"v_pk_add_f32 {v(r+2*hq,2)}, {v(r+2*hq,2)}, {v(r+4+2*hq,2)}\nv_pk_add_f32 {v(c+2*hq,2)}, {v(c+2*hq,2)}, {v(r+8+2*hq,2)}")
            for hq in range(2): e(f"v_pk_add_f32 {v(c+2*hq,2)}, {v(c+2*hq,2)}, {v(r+2*hq,2)}")
            for hq in range(2): e(f"v_cvt_pk_bf16_f32 v{104+2*di+hq}, v{c+2*hq}, v{c+2*hq+1}")
            e(f"buffer_store_dwordx2 {v(104+2*di,2)}, v18, {SOUT}, s94 offen offset:{32*di}", "os")
        self.stamp(p)

    def main(self):
        self.role = "main"
        p = Prog(); e = p.e
        self.main_start(p)
        e(f"s_cmp_lt_u32 {IDX}, 30\ns_cbranch_scc1 L_g1")
        q = Prog()
        self.main_setup2(q)
        self.spin(q, Y_PUB, 2, 20, sleep=4)
        self.xinit_load(q)
        for ks in range(self.o["eb"]): q.ext(self.dma(2, ks))
        for ks in range(min(self.o["eb"], self.o["P2"])): q.ext(self.tr(2, ks))
        self.sig(q, Y_G, 20)
        q.e("s_waitcnt vmcnt(0) lgkmcnt(0)\ns_branch L_g2")
        for line in finalize(q).split("\n"):
            if line.strip(): e(line.strip() if line.strip().endswith(":") else "@" + line.strip())
        e("L_g1:")
        self.gemm1(p)
        self.gemm1_epi(p)
        e("L_g2:")
        self.gemm2(p, False)
        e(f"s_or_b32 s51, {WG}, {WV}\ns_cmp_lg_u32 s51, 0\ns_cbranch_scc1 L_noep")
        e(f"s_mov_b64 exec, 1\nbuffer_store_dword {VTAG}, {VZ}, {SWS}, 0 offen\ns_mov_b64 exec, -1")
        e("L_noep:")
        self.finish(p)
        return p

    def red32(self, p, regs, tmp):
        for m in ("quad_perm:[1,0,3,2]", "quad_perm:[2,3,0,1]", "row_half_mirror", "row_mirror"):
            for r in regs: p.e(f"v_add_f32_dpp v{r}, v{r}, v{r} {m} row_mask:0xf bank_mask:0xf")
        for i, r in enumerate(regs): p.e(f"v_mov_b32 v{tmp+i}, v{r}")
        for i, r in enumerate(regs): p.e(f"v_permlane16_swap_b32 v{r}, v{tmp+i}")
        for i, r in enumerate(regs): p.e(f"v_add_f32 v{r}, v{r}, v{tmp+i}")
    RAW = [4, 5, 6, 7, 8, 12, 13, 14, 15, 16, 17, 18]
    def aux_start(self, p):
        e = p.e; RAW = self.RAW; xf = self.o["xflag"]
        e("s_setprio 3")
        e(f"s_sub_u32 s14, {WV}, 4")
        e(f"v_lshrrev_b32 v104, 5, {LANE}\nv_mul_u32_u24 v105, 1280, v104\nv_and_b32 v106, 31, {LANE}")
        e("v_lshl_add_u32 v107, v106, 4, v105\nv_lshl_add_u32 v108, v106, 3, v105")
        e(f"s_lshl_b32 s50, {WG}, 3\ns_lshl1_add_u32 s50, s14, s50\ns_mul_i32 s50, s50, 1280")
        e(f"v_add_u32 v109, {SYNC}, {L4}\ns_mov_b32 exec_hi, 0\nds_write_b32 v109, {VZ}\ns_mov_b64 exec, -1")
        e(f"s_lshl_b32 {CH}, {DT}, 6\ns_lshl4_add_u32 {CH}, {SUB}, {CH}\ns_add_u32 {CH}, {CH}, {C0}\ns_add_u32 {CH}, {CH}, s14\ns_min_u32 {CH}, {CH}, 639")
        e(f"s_mul_i32 {REGB}, s14, {REGSZ}\ns_add_u32 {REGB}, {REGB}, {REG0}")
        e(f"s_mul_i32 s51, {CH}, 384\nv_add_u32 v110, s51, {L4}\nv_lshlrev_b32 v111, 1, {LANE}\nv_add_u32 v111, s51, v111")
        e(f"s_lshr_b32 s79, {CH}, 1\ns_lshl_b32 s79, s79, 2")
        e("s_waitcnt lgkmcnt(0)")
        self.srd(p, 52, 16, 2621440)
        e(f"buffer_load_dwordx4 v[20:23], v107, {SX}, s50 offen {xf}", "x")
        e(f"buffer_load_dwordx4 v[24:27], v107, {SX}, s50 offen offset:512 {xf}", "x")
        e(f"buffer_load_dwordx2 v[28:29], v108, {SX}, s50 offen offset:1024 {xf}", "x")
        e(f"s_load_dword {TAG}, s[48:49], 0\ns_load_dword s80, s[30:31], s79\ns_load_dword s81, s[32:33], s79")
        e("s_barrier")
        l = self.label("nopar")
        e(f"s_cmp_ge_u32 s14, {NCH}\ns_cbranch_scc1 {l}")
        for i in range(6):
            e(f"@global_load_dword v{RAW[2*i]}, v110, s[{18+2*i}:{19+2*i}] {self.o['pflag']}")
            e(f"@global_load_ushort v{RAW[2*i+1]}, v111, s[{18+2*i}:{19+2*i}] offset:256 {self.o['pflag']}")
        e(f"@s_waitcnt vmcnt(12)\n@s_branch {l}x\n{l}:\n@s_waitcnt vmcnt(0)\n{l}x:")
        self.srd(p, 60, 40, 6291456); self.srd(p, 68, 48, WSEND)
        e(f"s_lshr_b32 s51, s14, 1\ns_mul_i32 s51, s51, {REGSZ}\ns_and_b32 s15, s14, 1\ns_mul_i32 s15, s15, {2*PT}\ns_add_u32 s51, s51, s15\ns_add_u32 s51, s51, {LNT}")
        e(f"v_mul_u32_u24 v102, {PT}, v104\nv_add_u32 v102, s51, v102\nv_lshl_add_u32 v101, v106, 3, v102\nv_lshl_add_u32 v100, v106, 4, v102")
    def ln(self, p):
        e = p.e
        RAW, F, D, T, H = 20, 30, 50, 70, 90
        inv = fbits(1.0 / 640)
        self.unpack(p, RAW, F, 10)
        def psum(src, dst):
            e(f"v_pk_add_f32 {v(dst,2)}, {v(src,2)}, {v(src+2,2)}\nv_pk_add_f32 {v(dst+2,2)}, {v(src+4,2)}, {v(src+6,2)}")
            for i in range(4, 10): e(f"v_pk_add_f32 {v(dst+2*(i&1),2)}, {v(dst+2*(i&1),2)}, {v(src+2*i,2)}")
            e(f"v_pk_add_f32 {v(dst,2)}, {v(dst,2)}, {v(dst+2,2)}\nv_add_f32 v{dst}, v{dst}, v{dst+1}")
        def psq(src, dst):
            e(f"v_pk_mul_f32 {v(dst,2)}, {v(src,2)}, {v(src,2)}\nv_pk_mul_f32 {v(dst+2,2)}, {v(src+2,2)}, {v(src+2,2)}")
            for i in range(2, 10): e(f"v_pk_fma_f32 {v(dst+2*(i&1),2)}, {v(src+2*i,2)}, {v(src+2*i,2)}, {v(dst+2*(i&1),2)}")
            e(f"v_pk_add_f32 {v(dst,2)}, {v(dst,2)}, {v(dst+2,2)}\nv_add_f32 v{dst}, v{dst}, v{dst+1}")
        def rstd(var, out):
            e(f"v_max_f32 v{var}, 0, v{var}")
            self.rbf(p, var); e(f"v_add_f32 v{var}, {fbits(1e-5)}, v{var}"); self.rbf(p, var)
            e(f"v_sqrt_f32 v{var}, v{var}"); self.rbf(p, var); e(f"v_rcp_f32 v{out}, v{var}")
        psum(F, T); self.red32(p, [T], T + 2)
        e(f"v_mul_f32 v{T}, {inv}, v{T}\nv_mov_b32 v{T+4}, v{T}"); self.rbf(p, T + 4)
        for i in range(10): e(f"v_pk_add_f32 {v(D+2*i,2)}, {v(F+2*i,2)}, {v(T+4,2)} op_sel_hi:[1,0] neg_lo:[0,1] neg_hi:[0,1]")
        e(f"v_sub_f32 v{T+5}, v{T}, v{T+4}")
        psq(D, T); self.red32(p, [T], T + 2)
        e(f"v_mul_f32 v{T}, {inv}, v{T}\nv_fma_f32 v{T}, -v{T+5}, v{T+5}, v{T}")
        rstd(T, T + 6)
        for i in range(10): e(f"v_pk_mul_f32 {v(D+2*i,2)}, {v(D+2*i,2)}, {v(T+6,2)} op_sel_hi:[1,0]")
        for i in range(10): e(f"v_cvt_pk_bf16_f32 v{RAW+i}, v{D+2*i}, v{D+2*i+1}")
        self.unpack(p, RAW, F, 10)
        psum(F, T); psq(F, T + 4); self.red32(p, [T, T + 4], T + 2)
        e(f"v_mul_f32 v{T}, {inv}, v{T}\nv_mul_f32 v{T+4}, {inv}, v{T+4}\nv_fma_f32 v{T+4}, -v{T}, v{T}, v{T+4}")
        self.rbf(p, T)
        rstd(T + 4, T + 6)
        e(f"v_mul_f32 v{T+2}, v{T}, v{T+6}\nv_lshrrev_b32 v{T+4}, 16, v{T+4}\nv_or_b32 v{T+4}, v{T+4}, v{T}")
        for i in range(10): e(f"v_pk_fma_f32 {v(D+2*i,2)}, {v(F+2*i,2)}, {v(T+6,2)}, {v(T+2,2)} op_sel_hi:[1,0,0] neg_lo:[0,0,1] neg_hi:[0,0,1]")
        e(f"ds_write_b32 v102, v{T+4} offset:1280", "lnw")
        for i in range(10): e(f"v_cvt_pk_bf16_f32 v{H+i}, v{D+2*i}, v{D+2*i+1}")
        e(f"ds_write_b128 v100, {v(H,4)}\nds_write_b128 v100, {v(H+4,4)} offset:512\nds_write_b64 v101, {v(H+8,2)} offset:1024", "lnw")
        e("s_waitcnt lgkmcnt(0)")
        self.sig(p, Y_LN, T)
        self.mktag(p)

    def serv(self):
        self.role = "serv"
        p = Prog(); e = p.e; o = self.o
        self.stamp(p)
        e(f"v_bfe_u32 v12, {LANE}, 2, 2\nv_mul_u32_u24 v12, {PT}, v12\nv_lshrrev_b32 v13, 4, {LANE}\nv_lshl_add_u32 v12, v13, 5, v12")
        e(f"v_and_b32 v13, 3, {LANE}\nv_lshl_add_u32 v12, v13, 3, v12\nv_add_u32 v12, {LNT}, v12")
        e(f"s_mul_i32 s84, {WG}, 10240\ns_add_u32 s84, s84, {HB}\ns_add_u32 s85, s84, 4096\ns_add_u32 s86, s84, 8192")
        e(f"s_lshl_b32 s87, {WG}, 4\ns_add_u32 s87, s87, {STAT}\nv_lshlrev_b32 v13, 12, {LANE}")
        e(f"s_lshl_b32 s89, {WG}, 2\ns_add_u32 s89, s89, {F1}")
        e(f"ds_write_b32 {VSY}, {VTAG} offset:{4*Y_TAG}")
        self.spin(p, Y_LN, 4, 20)
        self.stamp(p)
        for b in range(11):
            e(f"ds_read_b64_tr_b16 {v(24+4*b,2)}, v12 offset:{128*b}\nds_read_b64_tr_b16 {v(26+4*b,2)}, v12 offset:{128*b+REGSZ}", f"lr{b}")
            if b >= 3:
                c = b - 3; p.wlg(f"lr{c}")
                e(f"buffer_store_dwordx4 {v(24+4*c,4)}, {L16}, {SWS}, s{84 + c//4} offen offset:{(c%4)*1024} sc1")
        for c in range(8, 10):
            p.wlg(f"lr{c}")
            e(f"buffer_store_dwordx4 {v(24+4*c,4)}, {L16}, {SWS}, s{84 + c//4} offen offset:{(c%4)*1024} sc1")
        p.wlg("lr10")
        e(f"s_mov_b64 exec, 3\nbuffer_store_dwordx4 v[64:67], v13, {SWS}, s87 offen sc1\ns_mov_b64 exec, -1")
        self.sig(p, Y_PUB, 20)
        self.stamp(p)
        e(f"s_mul_i32 s50, {DT2}, 80\ns_lshr_b32 s50, s50, 6\ns_mul_i32 s92, s50, {24*128}\ns_add_u32 s92, s92, {F2}")
        e(f"v_min_u32 v15, 47, {LANE}\nv_lshlrev_b32 v15, 7, v15\nv_min_u32 v16, 19, {LANE}\nv_lshlrev_b32 v16, 4, v16")
        e(f"s_mul_i32 s93, {DT2}, 320\ns_add_u32 s93, s93, {F3}")
        e("s_waitcnt vmcnt(0)")
        self.flag_store(p, "s89")
        self.sig(p, Y_PUB, 20)
        self.stamp(p)
        e(f"s_cmp_lt_u32 {IDX}, 30\ns_cbranch_scc1 L_s1")
        e(f"v_lshrrev_b32 v17, 3, {LANE}\nv_lshlrev_b32 v17, 12, v17\nv_and_b32 v18, 7, {LANE}\nv_lshl_add_u32 v17, v18, 7, v17")
        e(f"s_lshl_b32 s88, {SUB}, 10\ns_and_b32 s51, {IDX}, 1\ns_lshl_b32 s51, s51, 15\ns_add_u32 s88, s88, s51\ns_and_b32 s51, {XCD}, 1\ns_lshl_b32 s51, s51, 16\ns_add_u32 s88, s88, s51")
        for i in range(o["nsp"]):
            e(f"buffer_load_dword v{24+i}, v17, {SW2}, s88 offen\ns_add_u32 s88, s88, 131072")
        e("s_waitcnt vmcnt(0)\ns_branch L_s2\nL_s1:")
        self.spin(p, Y_P1, 1, 20, sleep=2)
        self.stamp(p)
        e(f"s_mov_b32 s50, {F1}")
        self.poll(p, L16, "s50", 20, wide=True, sleep=o["psleep"])
        self.sig(p, Y_F1, 20)
        self.stamp(p)
        if self.debug: e(f"v_writelane_b32 {VDBG}, s78, 31")
        e("L_s2:")
        self.spin(p, Y_P2, 1, 20, sleep=4)
        self.stamp(p)
        self.poll(p, "v15", "s92", 20, sleep=o["psleep2"])
        self.sig(p, Y_F2, 20)
        self.stamp(p)
        if self.debug: e(f"v_writelane_b32 {VDBG}, s78, 30")
        self.spin(p, Y_P3, 1, 20, sleep=4)
        self.poll(p, "v16", "s93", 20, wide=True, sleep=o["psleep2"])
        self.sig(p, Y_F3, 20)
        if self.debug: e(f"v_writelane_b32 {VDBG}, s78, 29")
        self.finish(p)
        return p

    def kgen(self, p):
        e = p.e; RAW = self.RAW
        L2E = 1.4426950408889634
        l2e_hi = struct.unpack("<f", struct.pack("<f", L2E))[0]; l2e_lo = L2E - l2e_hi
        VDT, VD1, VD2, VDS, WA, RA, RB = 54, 55, 56, 57, 58, 59, 60
        e(f"s_and_b32 s51, {CH}, 1\ns_lshl_b32 s51, s51, 4\ns_lshr_b32 s80, s80, s51\ns_lshl_b32 s80, s80, 16\ns_lshr_b32 s81, s81, s51\ns_lshl_b32 s81, s81, 16")
        e(f"v_mov_b32 v62, s80\nv_mov_b32 v63, {fbits(l2e_hi)}\nv_mul_f32 v64, v62, v63\nv_fma_f32 v65, v62, v63, -v64\nv_fmac_f32 v65, {fbits(l2e_lo)}, v62")
        e(f"v_exp_f32 v64, v64\nv_mul_f32 v65, {fbits(0.6931471805599453)}, v65\nv_fma_f32 v{VDT}, v64, v65, v64")
        self.rbf(p, VDT)
        e(f"v_mul_f32 v{VD1}, {fbits(L2E)}, v{VDT}\nv_mul_f32 v{VD2}, 0.15915494, v{VDT}")
        e(f"v_cmp_eq_u32 vcc, 0, {LANE}\nv_mov_b32 v62, s81\nv_cndmask_b32 v{VDS}, 0, v62, vcc")
        e(f"v_add_u32 v{WA}, {REGB}, {L4}")
        e(f"v_and_b32 v62, 31, {LANE}\nv_lshrrev_b32 v63, 5, {LANE}\nv_lshlrev_b32 v63, 4, v63\nv_add_u32 v63, {REGB}, v63")
        e(f"v_mul_u32_u24 v64, {KP}, v62\nv_add_u32 v{RB}, v64, v63")
        e(f"v_min_u32 v62, 20, v62\nv_mul_u32_u24 v64, {KP}, v62\nv_add_u32 v{RA}, v64, v63")
        e("v_mov_b32 v28, 0x3f80")
        e("s_waitcnt vmcnt(0)")
        self.stamp(p)
        PK = 116; pk = [0]; P = 62
        FA, FB = 16, 48
        def mf(rd):
            l = []
            for s in range(8):
                q = Prog()
                c = "0" if (rd == 0 and s == 0) else a(0, 16)
                q.e(f"v_mfma_f32_32x32x16_bf16 {a(0,16)}, {a(FA+4*s,4)}, {a(FB+4*s,4)}, {c}")
                l.append(q)
            return l
        for rd in range(3):
            usepk = rd < self.o["pk"]
            q = Prog(); e = q.e
            def cmul(sets):
                if usepk:
                    for d, x, y in sets: e(f"v_pk_mul_f32 {v(d,2)}, {v(x,2)}, {v(y,2)} op_sel_hi:[0,1]")
                    for d, x, y in sets: e(f"v_pk_fma_f32 {v(d,2)}, {v(x,2)}, {v(y,2)}, {v(d,2)} op_sel:[1,1,0] op_sel_hi:[1,0,1] neg_lo:[1,0,0]")
                else:
                    for d, x, y in sets: e(f"v_mul_f32 v{d}, v{x}, v{y}\nv_mul_f32 v{d+1}, v{x}, v{y+1}")
                    for d, x, y in sets: e(f"v_fma_f32 v{d}, -v{x+1}, v{y+1}, v{d}\nv_fmac_f32 v{d+1}, v{x+1}, v{y}")
            def puts(l, neg):
                rs = []
                for row, z in l:
                    r = PK + pk[0] % 8; pk[0] += 1; rs.append(r)
                    e(f"v_cvt_pk_bf16_f32 v{r}, v{z}, {'-' if neg else ''}v{z+1}")
                for (row, z), r in zip(l, rs): e(f"ds_write_b32 v{WA}, v{r} offset:{row*KP}", "kw")
            for i in range(6):
                if rd == 0: e(f"v_lshlrev_b32 v{P+i}, 16, v{RAW[2*i]}")
                elif rd == 1: e(f"v_and_b32 v{P+i}, 0xffff0000, v{RAW[2*i]}")
                else: e(f"v_lshlrev_b32 v{P+i}, 16, v{RAW[2*i+1]}")
            AR, AI = 68, 69
            e(f"v_mul_f32 v{AR}, v{P}, v{VD1}\nv_mul_f32 v{AI}, v{P+1}, v{VD2}")
            e(f"v_mul_f32 v{P+2}, v{P+2}, v{VDT}\nv_mul_f32 v{P+3}, v{P+3}, v{VDT}")
            E1, E8, E256 = 70, 72, 74
            TM_, TA = 76, 79
            for i, t in enumerate((1.0, 8.0, 256.0)):
                if i == 0: e(f"v_mov_b32 v{TM_}, v{AR}\nv_fract_f32 v{TA}, v{AI}")
                else: e(f"v_mul_f32 v{TM_+i}, {fbits(t)}, v{AR}\nv_mul_f32 v{TA+i}, {fbits(t)}, v{AI}\nv_fract_f32 v{TA+i}, v{TA+i}")
            X = 82
            cmul([(X, P + 4, P + 2)])
            for i in range(3):
                e(f"v_exp_f32 v{TM_+i}, v{TM_+i}\nv_cos_f32 v{E1+2*i}, v{TA+i}\nv_sin_f32 v{E1+2*i+1}, v{TA+i}")
            for i in range(3): e(f"v_mul_f32 v{E1+2*i}, v{E1+2*i}, v{TM_+i}\nv_mul_f32 v{E1+2*i+1}, v{E1+2*i+1}, v{TM_+i}")
            E2, E4, E16, E512 = 98, 100, 102, 104
            EA, EB, E32, Y, Z = 106, 20, 114, 30, 38
            cmul([(E2, E1, E1), (E16, E8, E8), (E512, E256, E256), (X + 2, X, E1)])
            cmul([(E4, E2, E2), (EA + 6, E16, E8), (E32, E16, E16), (X + 4, X, E2), (X + 6, X + 2, E2)])
            p.ext(q)
            if rd > 0: p.wlg("kr")
            q = Prog(); e = q.e
            e(f"ds_write_b32 v{WA}, v28", "kw")
            puts([(1, E8), (2, E16), (3, EA + 6), (4, E32)], False)
            cmul([(EB, E8, E32), (EB + 2, E16, E32), (EB + 4, EA + 6, E32), (EB + 6, E32, E32)])
            cur, nxt = EB, EA
            extra = [[(X + 8 + 2 * i, X + 2 * i, E4) for i in range(4)], [(Y + 2 * i, X + 4 * i, E256) for i in range(4)],
                     [(Z, X, E512), (Z + 2, X + 8, E512), (Z + 4, Y, E512), (Z + 6, Y + 4, E512)],
                     [(Z + 8, Z, E512), (Z + 10, Z + 4, E512)], [(Z + 12, Z + 8, E512), (Z + 14, Z + 10, E512)], [(E1, Z + 12, E512)]]
            for st in range(6):
                j0 = 9 + 4 * st
                n = min(4, 32 - j0)
                cmul([(nxt + 2 * i, cur + 2 * i, E32) for i in range(n)])
                puts([(j0 - 4 + i, cur + 2 * i) for i in range(4)], False)
                cmul(extra[st])
                cur, nxt = nxt, cur
            puts([(29 + i, cur + 2 * i) for i in range(3)], False)
            if rd > 0: p.ext(interleave(q, mf(rd - 1)))
            else: p.ext(q)
            for s_ in range(8): p.e(f"ds_read_b128 {a(FB+4*s_,4)}, v{RB} offset:{s_*32}", "kr")
            e = p.e
            puts([(i, X + 2 * i) for i in range(4)], True); puts([(4 + i, X + 8 + 2 * i) for i in range(4)], True)
            puts([(8 + i, Y + 2 * i) for i in range(4)], True); puts([(12 + i, Z + 2 * i) for i in range(4)], True)
            puts([(16 + i, Z + 8 + 2 * i) for i in range(4)] + [(20, E1)], True)
            for s_ in range(8): p.e(f"ds_read_b128 {a(FA+4*s_,4)}, v{RA} offset:{s_*32}", "kr")
        e = p.e
        e(f"v_and_b32 v62, 31, {LANE}\nv_lshrrev_b32 v63, 5, {LANE}\ns_add_u32 s51, {REGB}, {KCO}")
        e(f"v_lshlrev_b32 v64, 4, v62\nv_lshl_add_u32 v64, v63, 3, v64\nv_add_u32 v64, s51, v64")
        e(f"v_cmp_eq_u32 vcc, 0, v63\nv_lshlrev_b32 v65, 3, v62\nv_add_u32 v65, 512, v65\nv_lshlrev_b32 v66, 2, v62\nv_add_u32 v66, 768, v66")
        e(f"v_cndmask_b32 v65, v66, v65, vcc\nv_add_u32 v65, s51, v65\nv_mov_b32 v66, 128\nv_cndmask_b32 v66, v66, 4, vcc\nv_add_u32 v66, v65, v66")
        e(f"v_lshlrev_b32 v67, 1, v62\nv_lshl_add_u32 v67, v63, 8, v67\nv_add_u32 v67, s51, v67")
        self.spin(p, Y_PUB, 1, 68)
        for q in mf(2): p.ext(q)
        blocks = [(-2, 34, 8), (32, 32, 4), (64, 64, 2), (128, 64, 1), (192, 64, 1)]
        info = []
        for bi, (v0, nl, stride) in enumerate(blocks):
            cis = lambda y: y if y < 0 else ci(y)
            base = cis(8 * v0)
            offs = {}
            for t in range(-1, 8):
                o = [cis(8 * (v0 + l) + 7 - t) - (base + stride * l) for l in range(nl)]
                offs[t] = (o[0], o[1])
                assert all(o[l] == o[l & 1] for l in range(nl)) and o[1] - o[0] in (0, 1)
            AD = 100 + 3 * bi
            e(f"s_add_u32 s51, {REGB}, {KCO + 2*base}\nv_mul_u32_u24 v{AD}, {2*stride}, {LANE}\nv_add_u32 v{AD}, s51, v{AD}")
            if any(o[0] != o[1] for o in offs.values()): e(f"v_and_b32 v{AD+1}, 1, {LANE}\nv_lshl_add_u32 v{AD+1}, v{AD+1}, 1, v{AD}")
            e(f"s_add_u32 s51, {REGB}, {(255 - v0) * 16}\nv_sub_u32 v{AD+2}, s51, {L16}")
            info.append(offs)
        e("s_mov_b64 exec, 0xff")
        e(f"ds_write_b32 v{WA}, {VZ} offset:{KCO - 32}", "kc")
        e("s_mov_b32 exec_lo, -1")
        e(f"v_mov_b32 v76, 0\nv_mov_b32 v77, 0\nv_mov_b32 v78, 0\nv_mov_b32 v79, 0\nv_add_u32 v68, {REGB}, {L16}\nds_write_b128 v68, v[76:79] offset:{UO}", "kc")
        e("s_mov_b64 exec, -1")
        for i in range(12): e(f"v_accvgpr_read_b32 v{82+i}, a{i}")
        e(f"v_add_f32 v82, v82, v{VDS}")
        for i in range(6): e(f"v_cvt_pk_bf16_f32 v{70+i}, v{82+2*i}, v{83+2*i}")
        e(f"ds_write_b64 v64, v[70:71]\nds_write_b32 v65, v72\nds_write_b32 v66, v73\nds_write_b16 v67, v74 offset:1024", "kc")
        e("s_mov_b32 exec_hi, 0")
        e(f"ds_write_b16_d16_hi v67, v74 offset:{1024+64}\nds_write_b16 v67, v75 offset:{1024+128}\nds_write_b16_d16_hi v67, v75 offset:{1024+192}", "kc")
        e("s_mov_b64 exec, -1")
        vrs = []
        for bi, (v0, nl, stride) in enumerate(blocks):
            RR = 20 + 9 * bi; AD = 100 + 3 * bi; offs = info[bi]
            if nl < 64: e(f"s_mov_b32 exec_hi, {(1 << (nl - 32)) - 1}")
            seen = {}; vr = {}
            for t in range(-1, 8):
                o = offs[t]
                if o not in seen:
                    seen[o] = RR + len(seen)
                    e(f"ds_read_u16 v{seen[o]}, v{AD + (1 if o[0] != o[1] else 0)} offset:{2*o[0]}", f"kx{bi}")
                vr[t] = seen[o]
            vrs.append(vr)
            if nl < 64: e("s_mov_b64 exec, -1")
        for bi, (v0, nl, stride) in enumerate(blocks):
            AD = 100 + 3 * bi; O = 70 + 8 * (bi & 1); vr = vrs[bi]
            p.wlg(f"kx{bi}")
            for i in range(4): e(f"v_lshl_or_b32 v{O+i}, v{vr[2*i+1]}, 16, v{vr[2*i]}")
            for i in range(4): e(f"v_lshl_or_b32 v{O+4+i}, v{vr[2*i]}, 16, v{vr[2*i-1]}")
            if nl < 64: e(f"s_mov_b32 exec_hi, {(1 << (nl - 32)) - 1}")
            e(f"ds_write_b128 v{AD+2}, {v(O,4)} offset:{R0O}\nds_write_b128 v{AD+2}, {v(O+4,4)} offset:{R1O}", "kt")
            if nl < 64: e("s_mov_b64 exec, -1")

    def conv_setup(self, p):
        e = p.e
        AA, BA, YO = 12, 16, 17
        e(f"v_lshrrev_b32 v32, 4, {LANE}\nv_bfe_u32 v33, {LANE}, 1, 3\nv_lshlrev_b32 v34, 2, v32\nv_sub_u32 v34, v34, v33")
        e(f"v_and_b32 v33, 1, {LANE}\nv_xor_b32 v33, 1, v33\nv_mul_u32_u24 v33, {R1O//4 + 1}, v33\nv_add_u32 v34, v34, v33")
        e(f"s_add_u32 s51, {REGB}, {4*(1015 - 16*63)}\nv_lshl_add_u32 v{AA+3}, v34, 2, s51")
        for mp in range(3): e(f"v_add_u32 v{AA+mp}, {(3-mp)*1024}, v{AA+3}")
        e(f"v_and_b32 v33, 15, {LANE}\nv_lshl_add_u32 v34, v33, 1, v32\ns_add_u32 s51, {REGB}, {UO + 16*2}\nv_lshl_add_u32 v{BA}, v34, 4, s51")
        e(f"v_and_b32 v34, 1, v32\nv_lshlrev_b32 v34, 9, v34\nv_lshl_add_u32 v34, v33, 5, v34\nv_lshrrev_b32 v32, 1, v32\nv_lshl_add_u32 v{YO}, v32, 4, v34")
        e(f"s_lshl_b32 s86, {CH}, 12\ns_add_u32 s86, s86, {YT}\ns_lshl_b32 s89, {CH}, 2\ns_add_u32 s89, s89, {F3}")
    def inverse(self, p):
        e = p.e
        S2, M2, SF, MF = 24, 40, 56, 88
        e(f"v_lshrrev_b32 v20, 4, {LANE}\nv_lshlrev_b32 v20, 10, v20\nv_and_b32 v21, 3, {LANE}\nv_lshl_add_u32 v20, v21, 4, v20\nv_bfe_u32 v21, {LANE}, 2, 2\nv_add_u32 v21, {ROT1}, v21")
        e(f"s_add_u32 s51, {REGB}, {UO+512}")
        for q in range(4):
            e(f"v_add_u32 v22, {4*q}, v21\nv_and_b32 v22, 15, v22\nv_lshl_add_u32 v{4+q}, v22, 6, v20\nv_add_u32 v{120+q}, s51, v{4+q}")
        e(f"s_mov_b32 s84, {STAT}\ns_mov_b32 s85, {STAT+4096}")
        self.spin(p, Y_F1, 1, 22, sleep=2)
        for q in range(4):
            e(f"buffer_load_dwordx4 {v(S2+4*q,4)}, v{4+q}, {SWS}, s84 offen sc1", "u")
            e(f"buffer_load_dwordx4 {v(M2+4*q,4)}, v{4+q}, {SWS}, s85 offen sc1", "u")
        for q in self.conv_loads(0, "A"): p.ext(q)
        p.wvm("u")
        self.unpack(p, S2, SF, 16); self.unpack(p, M2, MF, 16)
        self.stamp(p)
        for q in range(4):
            self.spin(p, Y_U + q, 4, 22, sleep=(2 if q < 3 else 1))
            if q == 3: self.stamp(p)
            e(f"ds_read_b128 v[24:27], v{120+q}", f"ur{q}")
            p.wlg(f"ur{q}")
            self.unpack(p, 24, 40, 4)
            for i in range(8): e(f"v_fma_f32 v{40+i}, v{40+i}, v{SF+8*q+i}, v{MF+8*q+i}")
            for i in range(4): e(f"v_cvt_pk_bf16_f32 v{48+i}, v{40+2*i}, v{41+2*i}")
            e(f"ds_write_b128 v{120+q}, v[48:51]", "uw")
    def conv_loads(self, ph, which="AB"):
        AA, BA = 12, 16
        l = []; st = ph & 1
        for i in range(8):
            off = (1 - (i & 1)) * 128 + (7 - ph) * 16
            r = 64 * st + 4 * i
            txts = []
            if "A" in which:
                txts += [f"ds_read2_b32 {a(r,2)}, v{AA + i//2} offset0:{off} offset1:{off+1}", f"ds_read2_b32 {a(r+2,2)}, v{AA + i//2} offset0:{off+2} offset1:{off+3}"]
            if "B" in which: txts += [f"ds_read_b128 {a(r+32,4)}, v{BA} offset:{512*i + (7-ph)*64}"]
            for txt in txts:
                q = Prog(); q.e(txt, f"c{ph}_{i}"); l.append(q)
        return l
    def conv(self, p):
        e = p.e
        YO, ACC = 17, 64
        first = set()
        def mfmas(ph):
            q = Prog(); st = ph & 1
            for n in range(8):
                prs = [(mu, n) for mu in range(n + 1) if mu + n <= 7] + [(n, d) for d in range(n) if n + d <= 7]
                q.wlg(f"c{ph}_{n}")
                for mu, d in prs:
                    I = mu + d; acc = v(ACC + 4 * I, 4)
                    src = acc if I in first else "0"
                    first.add(I)
                    q.e(f"v_mfma_f32_16x16x32_bf16 {acc}, {a(64*st+4*mu,4)}, {a(64*st+32+4*d,4)}, {src}")
            return q
        for q in self.conv_loads(0, "B"): p.ext(q)
        if self.o["cwait"]: self.spin(p, Y_EPI, self.o["cwait"], 22, sleep=2)
        for ph in range(8):
            m = mfmas(ph)
            p.ext(interleave(m, self.conv_loads(ph + 1)) if ph < 7 else m)
        for k in range(4):
            o = 100 + 4 * k
            for i in range(4): e(f"v_cvt_pk_bf16_f32 v{o+i}, v{ACC+8*k+2*i}, v{ACC+8*k+2*i+1}")
            e(f"v_permlane16_swap_b32 v{o}, v{o+2}\nv_permlane16_swap_b32 v{o+1}, v{o+3}")
            e(f"buffer_store_dwordx4 {v(o,4)}, v{YO}, {SWS}, s86 offen offset:{1024*k} sc1", "ys")
        self.stamp(p)
        e("s_waitcnt vmcnt(0)")
        self.flag_store(p, "s89")
    def convw(self):
        self.role = "conv"
        p = Prog(); e = p.e
        e(f"s_cmp_ge_u32 s14, {NCH}\ns_cbranch_scc1 L_end\ns_setprio 0")
        self.stamp(p)
        if not self.o.get("skip_kgen"): self.kgen(p)
        else: self.stamp(p)
        self.stamp(p)
        self.conv_setup(p)
        self.inverse(p)
        self.conv(p)
        self.finish(p)
        return p

    def build(self):
        p = Prog(); self.prologue(p)
        p.ext(self.main())
        body = finalize(p)
        q = Prog(); q.e("L_aux:"); self.aux_start(q); self.ln(q)
        q.e(f"s_cmp_eq_u32 {WV}, 7\ns_cbranch_scc1 L_serv"); q.ext(self.convw())
        body += finalize(q)
        q = Prog(); q.e("L_serv:"); q.ext(self.serv()); q.e("L_end:\ns_endpgm")
        body += finalize(q)
        body = body.replace("@", "")
        ref = open("cdna_kernels/" + NAME + ".s.ref").read()
        head = [l for l in ref.split("\n") if l.startswith(";") and "@launch" not in l]
        k = NAME + "_kernel"
        s = "\n".join(head) + f"\n; @launch grid=(256,1,1) block=(512,1,1) lds={LDS_BYTES}\n"
        s += f'.amdgcn_target "amdgcn-amd-amdhsa--gfx950"\n.text\n.globl {k}\n.p2align 8\n.type {k},@function\n{k}:\n'
        s += body
        s += f""".section .rodata,"a"
.p2align 6
.amdhsa_kernel {k}
  .amdhsa_next_free_vgpr 256
  .amdhsa_next_free_sgpr 102
  .amdhsa_accum_offset 128
  .amdhsa_group_segment_fixed_size 0
  .amdhsa_kernarg_size 136
  .amdhsa_user_sgpr_count 2
  .amdhsa_user_sgpr_kernarg_segment_ptr 1
  .amdhsa_system_sgpr_workgroup_id_x 1
.end_amdhsa_kernel
"""
        return s

if __name__ == "__main__":
    out = sys.argv[1]
    kw = eval("dict(" + (sys.argv[2] if len(sys.argv) > 2 else "") + ")")
    open(out, "w").write(G(**kw).build())
```

```python
import sys, struct
from asmlib import Prog, interleave, finalize

NAME = "parallel_sum__ssm_conv_s4__mixer_token_mlp__prompt"
F1, F3, STAT, TM, F2 = 0x1000, 0x3000, 0x4000, 0x8000, 0x50000
HB, GB, YT, WSEND = 0x80000, 0x300000, 0x4E0000, 0x760000
RINGW, RS = 28672, 7
PT = 1344
REG0, REGSZ = 0, 14976
SYNC = 3 * REGSZ
RING0 = 45056
KCO, R0O, R1O, Q2O, Q3O = 32, 1408, 1408 + 1344, 4096, 4608
Z5O, Z3O, Z9O, Z7O, UO = 0, 3104, 6208, 8288, 10368
LNT = REG0 + 8704
KP = 272
LDS_BYTES = 163840
assert SYNC + 128 <= RING0 and RING0 + 4 * RINGW <= LDS_BYTES
Y_EPI = 3
Y_LN, Y_F1, Y_PART, Y_PUB, Y_P1, Y_G, Y_P2, Y_F2, Y_P3, Y_F3, Y_TAG, Y_U = 0, 1, 2, 4, 5, 6, 7, 8, 9, 10, 11, 12

def fbits(x): return "0x%08x" % struct.unpack("<I", struct.pack("<f", x))[0]
def bf16r(l):
    u = struct.unpack("<I", struct.pack("<f", float(l)))[0]
    u = ((u + 0x7FFF + ((u >> 16) & 1)) >> 16) << 16
    return int(struct.unpack("<f", struct.pack("<I", u))[0])
def ci(l):
    v = bf16r(l)
    if v <= 256: return v
    if v <= 512: return 256 + (v - 256) // 2
    if v <= 1024: return 384 + (v - 512) // 4
    return 512 + (v - 1024) // 8

WG, WV, XCD, IDX, DT, FT, DT2, ST2, TAG, ROT1, ROT2, CH = "s2", "s3", "s4", "s5", "s6", "s7", "s8", "s9", "s10", "s11", "s12", "s13"
SUB, C0, NCH = "s97", "s98", "s99"
SX, SW1, SW2, SOUT, SWS = "s[52:55]", "s[56:59]", "s[60:63]", "s[64:67]", "s[68:71]"
RINGB, REGB = "s73", "s77"
VSY, LANE, L16, L4, VTAG, VZ, VDBG = "v0", "v1", "v2", "v3", "v9", "v10", "v11"

def v(i, n=1): return f"v{i}" if n == 1 else f"v[{i}:{i+n-1}]"
def a(i, n=1): return f"a{i}" if n == 1 else f"a[{i}:{i+n-1}]"

def groups_of(prog):
    groups = []
    for it in prog.items:
        prev = groups[-1][-1][0] if groups else None
        if isinstance(prev, str) and (prev.startswith(("s_add_u32 m0", "s_cmp", "s_sub_u32 s51", "s_mov_b64 exec, s", "s_mov_b64 exec, 1", "ds_write_b128 v125", "ds_add"))):
            groups[-1].append(it)
        else: groups.append([it])
    return groups

def make_perm(n, nw, first, duty0):
    own = list(range(0, n, 2)); oth = list(range(1, n, 2))
    order = [[] for _ in range(nw)]; touched = {}
    pool = own[:]
    for pos in range(first):
        for j in range(nw):
            pass
    deal = [[] for _ in range(nw)]
    k = 0
    for pos in range(first):
        for j in range(nw):
            if pool: st = pool.pop(0)
            else: st = oth.pop(0)
            deal[j].append(st); touched[st] = pos
    rest = pool + oth
    duty = {}
    for i, st in enumerate(rest): duty[(duty0 + i, i % nw)] = st
    for j in range(nw): order[j] = list(deal[j])
    for pos in range(first, n):
        for j in range(nw):
            if (pos, j) in duty: touched[duty[(pos, j)]] = pos
        for j in range(nw):
            if (pos, j) in duty: order[j].append(duty[(pos, j)]); continue
            mine = {st for (pp, jj), st in duty.items() if jj == j and pp > pos}
            cand = [st for st in range(n) if st not in order[j] and st not in mine]
            cand.sort(key=lambda st: (touched.get(st, 99), (st - 2 * j) % n))
            order[j].append(cand[0])
    for o in order: assert sorted(o) == list(range(n)), o
    return order
def pack_perm(o):
    x = sum(st << (4 * i) for i, st in enumerate(o)); return x & 0xffffffff, x >> 32

class G:
    def __init__(self, debug=False, **kw):
        self.debug = debug
        self.o = dict(P1=6, D1=13, PS1=11, lead1=4, xk=8, P2=4, D2=11, PS2=9, lead2=4, wflag="", xflag="", nsp=30, thr=2,
                      ytrig=5, ychk=10, pk=0, psleep=4, psleep2=8, kprio=0, cprio=3, ipf=1, ns1=12, ns2=15, perm=1, duty1=3, duty2=3, oflag='', eb=2, free1=2, pflag='nt', cwait=4)
        self.o.update(kw)
        self.nst = {}; self.nlab = 0; self.role = None
    def stamp(self, p):
        if not self.debug: return
        n = self.nst.get(self.role, 0)
        p.e(("s_memtime" if self.o.get("cyc") else "s_memrealtime") + " s[82:83]\ns_waitcnt lgkmcnt(0)")
        p.e(f"v_writelane_b32 {VDBG}, s82, {n}")
        self.nst[self.role] = n + 1
    def label(self, s):
        self.nlab += 1; return f"L{s}_{self.nlab}"
    def flag_store(self, p, soff, pre=""):
        p.e(f"s_mov_b64 exec, 1\n{pre}buffer_store_dword {VTAG}, {VZ}, {SWS}, {soff} offen sc1\ns_mov_b64 exec, -1")
    def poll(self, p, voff, soff, tmp, wide=False, sleep=0):
        l = self.label("poll"); d = self.label("polld"); f = self.label("pollf")
        p.e("s_mov_b32 s78, 0")
        if sleep: p.e(f"s_branch {f}")
        p.e(f"{l}:")
        if sleep: p.e(f"s_sleep {sleep}\n{f}:")
        if wide:
            p.e(f"buffer_load_dwordx4 {v(tmp,4)}, {voff}, {SWS}, {soff} offen sc1")
            p.e("s_add_u32 s78, s78, 1\ns_waitcnt vmcnt(0)")
            for i in range(4): p.e(f"v_xor_b32 {v(tmp+i)}, {TAG}, {v(tmp+i)}")
            p.e(f"v_or3_b32 {v(tmp)}, {v(tmp)}, {v(tmp+1)}, {v(tmp+2)}\nv_or_b32 {v(tmp)}, {v(tmp)}, {v(tmp+3)}")
            p.e(f"v_cmp_ne_u32 vcc, 0, {v(tmp)}")
        else:
            p.e(f"buffer_load_dword {v(tmp)}, {voff}, {SWS}, {soff} offen sc1")
            p.e("s_add_u32 s78, s78, 1\ns_waitcnt vmcnt(0)")
            p.e(f"v_cmp_ne_u32 vcc, {TAG}, {v(tmp)}")
        p.e(f"s_cmp_gt_u32 s78, 0x8000\ns_cbranch_scc1 {d}\ns_cbranch_vccnz {l}")
        p.e(f"{d}:")
    def sig(self, p, word, tmp):
        p.e(f"v_mov_b32 v{tmp}, 1\ns_mov_b64 exec, 1\nds_add_u32 {VSY}, v{tmp} offset:{4*word}\ns_mov_b64 exec, -1", "sig")
    def spin(self, p, word, n, tmp, sleep=0):
        l = self.label("spin"); d = self.label("spind"); f = self.label("spinf")
        p.e("s_mov_b32 s78, 0")
        if sleep: p.e(f"s_branch {f}")
        p.e(f"{l}:")
        if sleep: p.e(f"s_sleep {sleep}\n{f}:")
        p.e(f"ds_read_b32 v{tmp}, {VSY} offset:{4*word}\ns_add_u32 s78, s78, 1\ns_waitcnt lgkmcnt(0)\nv_readfirstlane_b32 s79, v{tmp}")
        p.e(f"s_cmp_gt_u32 s78, 0x40000\ns_cbranch_scc1 {d}\ns_cmp_lt_u32 s79, {n}\ns_cbranch_scc1 {l}")
        p.e(f"{d}:")
    def mktag(self, p):
        p.e(f"s_mul_i32 {TAG}, {TAG}, 0x9E3779B1\ns_add_u32 {TAG}, {TAG}, 0x7F4A7C15\nv_mov_b32 {VTAG}, {TAG}")
    def finish(self, p):
        e = p.e
        if self.debug:
            e("s_waitcnt vmcnt(0)")
            self.stamp(p)
            e(f"s_lshl_b32 s50, {WG}, 3\ns_add_u32 s50, s50, {WV}\ns_lshl_b32 s50, s50, 7\ns_add_u32 s50, s50, {TM}")
            e(f"s_mov_b32 exec_hi, 0\nbuffer_store_dword {VDBG}, {L4}, {SWS}, s50 offen")
        e("s_endpgm")
    def srd(self, p, d, lo, size): p.e(f"s_mov_b32 s{d}, s{lo}\ns_mov_b32 s{d+1}, s{lo+1}\ns_mov_b32 s{d+2}, {size}\ns_mov_b32 s{d+3}, 0x20000")
    def unpack(self, p, src, dst, n):
        for i in range(n):
            p.e(f"v_lshlrev_b32 v{dst+2*i}, 16, v{src+i}\nv_and_b32 v{dst+2*i+1}, 0xffff0000, v{src+i}")
    def rbf(self, p, r):
        p.e(f"v_cvt_pk_bf16_f32 v{r}, v{r}, v{r}\nv_lshlrev_b32 v{r}, 16, v{r}")

    def prologue(self, p):
        e = p.e
        e(f"s_cmp_ge_u32 {WG}, 256\ns_cbranch_scc1 L_end")
        e("s_load_dwordx16 s[16:31], s[0:1], 0\ns_load_dwordx16 s[32:47], s[0:1], 64\ns_load_dwordx2 s[48:49], s[0:1], 128")
        e(f"v_and_b32 {LANE}, 63, v0\nv_lshrrev_b32 v12, 6, v0\nv_readfirstlane_b32 {WV}, v12")
        e(f"v_lshlrev_b32 {L16}, 4, {LANE}\nv_lshlrev_b32 {L4}, 2, {LANE}\nv_mov_b32 {VZ}, 0\nv_mov_b32 {VDBG}, 0\nv_mov_b32 {VSY}, {SYNC}")
        e(f"s_and_b32 {XCD}, {WG}, 7\ns_lshr_b32 {IDX}, {WG}, 3\ns_lshr_b32 {SUB}, {XCD}, 1\ns_and_b32 s14, {XCD}, 1")
        e(f"s_min_u32 s15, {IDX}, 29\ns_mul_i32 {FT}, s15, 52\ns_lshr_b32 {FT}, {FT}, 8")
        e(f"s_mul_i32 s51, {FT}, 5\ns_sub_u32 {DT}, s15, s51")
        if self.o["perm"]: P1_ = make_perm(16, 5, 2, self.o["duty1"])
        else: P1_ = [[(((2 * j * 205) >> 7) + i) % 16 for i in range(16)] for j in range(5)]
        for j, o_ in enumerate(P1_):
            lo, hi = pack_perm(o_)
            if j == 0: e(f"s_mov_b32 s74, {lo:#x}\ns_mov_b32 s75, {hi:#x}")
            else: e(f"s_cmp_eq_u32 {DT}, {j}\ns_cselect_b32 s74, {lo:#x}, s74\ns_cselect_b32 s75, {hi:#x}, s75")
        e("s_mul_i32 s51, s14, 0x11111111\ns_xor_b32 s74, s74, s51\ns_xor_b32 s75, s75, s51")
        e(f"s_mul_i32 {C0}, {FT}, 3\ns_min_u32 {C0}, {C0}, 14\ns_cmp_lt_u32 {FT}, 4\ns_cselect_b32 {NCH}, 3, 2\ns_cmp_ge_u32 {IDX}, 30\ns_cselect_b32 {NCH}, 0, {NCH}")
        e(f"s_mul_i32 s51, s14, 5\ns_add_u32 {DT}, {DT}, s51\ns_mul_i32 s51, {SUB}, 6\ns_add_u32 {FT}, {FT}, s51")
        e(f"s_and_b32 {DT2}, {IDX}, 3\ns_lshr_b32 {ST2}, {IDX}, 2")
        e(f"s_lshl2_add_u32 {DT2}, s14, {DT2}\ns_lshl3_add_u32 {ST2}, {SUB}, {ST2}")
        e(f"s_cmp_ge_u32 {WV}, 4\ns_cbranch_scc1 L_aux")

    def kk(self, p, g, ks, dst, stride, base):
        p.e(f"s_bfe_u32 {dst}, s{(74 if g == 1 else 80) + ks // 8}, {(4 << 16) | (4 * (ks % 8)):#x}")
        p.e(f"s_mul_i32 {dst}, {dst}, {stride}")
        if base: p.e(f"s_add_u32 {dst}, {dst}, {base}")
    def slot(self, g, ks): return ((ks + (3 if g == 2 else 0)) % RS) * 4096
    def throttle(self, p):
        l = self.label("thr")
        p.e(f"s_cmp_lg_u32 s85, 0\ns_cbranch_scc1 {l}")
        p.e(f"@ds_read_b32 v20, {VSY} offset:{4*Y_PUB}\n@s_waitcnt vmcnt({self.o['thr']}) lgkmcnt(0)\nv_readfirstlane_b32 s85, v20\ns_nop 0\ns_lshr_b32 s85, s85, 1")
        p.e(f"{l}:")
    def dma(self, g, ks, thr=False):
        p = Prog()
        rs, vo, srd, base = (3072, 4, SW1, "s84") if g == 1 else (4096, 12, SW2, "s92")
        self.kk(p, g, ks, "s72", 32 * rs, base)
        for q in range(4):
            if thr and q % 2 == 0: self.throttle(p)
            p.e(f"s_add_u32 m0, {RINGB}, {self.slot(g, ks) + q * 1024}")
            p.e(f"buffer_load_dwordx4 v{vo + (q & 1)}, {srd}, s72 offen {self.o['wflag']} lds", f"w{g}_{ks}")
            if q < 3: p.e(f"s_add_u32 s72, s72, {8*rs}")
        return p
    NB = {1: 6, 2: 4}
    def tr(self, g, ks):
        p = Prog()
        r = 16 * (ks % self.NB[g]); o = self.slot(g, ks)
        p.wvm(f"w{g}_{ks}")
        for ss in range(4):
            p.e(f"ds_read_b64_tr_b16 {a(r+4*ss,2)}, v{14+ss} offset:{o}", f"t{g}_{ks}")
            p.e(f"ds_read_b64_tr_b16 {a(r+4*ss+2,2)}, v{14+ss} offset:{o+512}", f"t{g}_{ks}")
        return p
    def main_start(self, p):
        e = p.e
        e("s_setprio 2")
        e(f"s_mul_i32 {RINGB}, {WV}, {RINGW}\ns_add_u32 {RINGB}, {RINGB}, {RING0}\ns_mov_b32 s85, 0")
        e(f"v_lshrrev_b32 v20, 3, {LANE}\nv_and_b32 v21, 7, {LANE}\nv_and_b32 v22, 2, v20\nv_xor_b32 v21, v21, v22\nv_lshlrev_b32 v21, 4, v21")
        e("v_mul_u32_u24 v4, 3072, v20\nv_add_u32 v4, v4, v21\nv_xor_b32 v5, 64, v4\nv_lshl_add_u32 v12, v20, 12, v21\nv_xor_b32 v13, 64, v12")
        e(f"s_mul_i32 s84, {WV}, {512*3072}\ns_lshl_b32 s51, {FT}, 7\ns_add_u32 s84, s84, s51")
        e(f"s_mul_i32 s92, {WV}, {384*4096}\ns_lshl_b32 s51, {ST2}, 7\ns_add_u32 s92, s92, s51")
        e("s_waitcnt lgkmcnt(0)")
        self.srd(p, 56, 36, 6291456); self.srd(p, 52, 16, 2621440); self.srd(p, 60, 40, 6291456); self.srd(p, 64, 44, 2621440); self.srd(p, 68, 48, WSEND)
        e("s_barrier")
        self.stamp(p)
    def main_setup2(self, p):
        e = p.e
        e(f"v_bfe_u32 v20, {LANE}, 2, 2\nv_and_b32 v21, 3, {LANE}\nv_lshrrev_b32 v22, 4, {LANE}\nv_and_b32 v23, 15, {LANE}")
        e("v_lshlrev_b32 v24, 10, v22\nv_lshl_add_u32 v24, v20, 7, v24\nv_lshl_add_u32 v24, v21, 3, v24")
        e(f"v_lshrrev_b32 v20, 1, v20\nv_and_b32 v21, 1, v22\nv_lshl_or_b32 v20, v21, 1, v20\nv_xor_b32 v20, {WV}, v20\nv_lshlrev_b32 v20, 5, v20")
        e(f"v_add3_u32 v14, v24, v20, {RINGB}\nv_xor_b32 v15, 32, v14\nv_xor_b32 v16, 64, v14\nv_xor_b32 v17, 0x60, v14")
        e(f"s_lshl_b32 s51, {FT}, 7\ns_lshl_b32 s15, {WV}, 5\ns_add_u32 s51, s51, s15\nv_lshl_add_u32 v24, v22, 3, s51")
        e("global_load_dwordx2 v[126:127], v24, s[38:39]", "b1")
        e(f"v_mul_u32_u24 v19, 10240, v22\nv_lshl_add_u32 v19, v23, 4, v19\ns_lshl_b32 s51, {SUB}, 8\nv_add_u32 v120, s51, v19")
        e("v_xor_b32 v121, 0x100, v120\nv_xor_b32 v122, 0x200, v120\nv_xor_b32 v123, 0x300, v120")
        e(f"v_lshrrev_b32 v24, 1, v22\nv_mul_u32_u24 v24, 10240, v24\nv_lshl_add_u32 v24, v23, 4, v24\nv_xor_b32 v25, {SUB}, v21\nv_lshl_add_u32 v6, v25, 8, v24\nv_xor_b32 v7, 0x200, v6")
        e(f"v_subrev_u32 v124, {C0}, v23\nv_mul_u32_u24 v124, {REGSZ}, v124\nv_lshl_add_u32 v124, v22, 4, v124")
        e(f"s_lshl_b32 s51, {WV}, 10\ns_add_u32 s51, s51, {REG0 + UO + 512}\nv_add_u32 v124, s51, v124")
        e(f"s_bfm_b32 s100, {NCH}, {C0}\ns_lshl_b32 s51, s100, 16\ns_or_b32 s100, s100, s51\ns_mov_b32 s101, s100")
        e("v_mul_u32_u24 v18, 1280, v23\nv_lshl_add_u32 v18, v22, 3, v18\nv_lshlrev_b32 v115, 12, v23\nv_lshl_add_u32 v115, v21, 4, v115")
        e(f"s_lshl_b32 s94, {ST2}, 6\ns_lshl_b32 s51, {WV}, 4\ns_add_u32 s94, s94, s51\ns_lshl_b32 s95, s94, 1\nv_lshl_add_u32 v8, v23, 1, s95")
        e(f"s_mul_i32 s94, s94, 1280\ns_mul_i32 s51, {DT2}, 160\ns_add_u32 s94, s94, s51")
        e("v_lshlrev_b32 v24, 3, v22\nv_sub_u32 v24, v23, v24\nv_and_b32 v25, 1, v24\nv_lshlrev_b32 v25, 4, v25\nv_mov_b32 v26, 0x3f80\nv_lshlrev_b32 v25, v25, v26\nv_ashrrev_i32 v24, 1, v24")
        for q in range(4): e(f"v_cmp_eq_u32 vcc, {q}, v24\nv_cndmask_b32 v{116+q}, 0, v25, vcc")
        for q in range(4): e(f"v_cmp_eq_i32 vcc, {q-8}, v24\nv_cndmask_b32 v{104+q}, 0, v25, vcc")
        e("v_lshl_add_u32 v108, v22, 3, v18")
        e("global_load_ushort v114, v8, s[42:43]", "b1")
        if self.o["perm"]: P2_ = make_perm(12, 4, 2, self.o["duty2"])
        else: P2_ = [[(3 * j + i) % 12 for i in range(12)] for j in range(4)]
        e(f"s_and_b32 s15, {IDX}, 3")
        for j, o_ in enumerate(P2_):
            lo, hi = pack_perm(o_)
            if j == 0: e(f"s_mov_b32 s80, {lo:#x}\ns_mov_b32 s81, {hi:#x}")
            else: e(f"s_cmp_eq_u32 s15, {j}\ns_cselect_b32 s80, {lo:#x}, s80\ns_cselect_b32 s81, {hi:#x}, s81")
        e(f"s_and_b32 s51, {XCD}, 1\ns_mul_i32 s51, s51, 0x11111111\ns_xor_b32 s80, s80, s51\ns_xor_b32 s81, s81, s51")
        e(f"s_mul_i32 s86, {WV}, {64*10240}\ns_lshl_b32 s51, {DT}, 10\ns_add_u32 s86, s86, s51\ns_add_u32 s86, s86, {HB}")
    def acc1(self, t, ds): return [v(72 + 4 * ds, 4), v(88 + 4 * ds, 4), a(96 + 4 * ds, 4), a(112 + 4 * ds, 4)][t]
    def acc2(self, di, ss): return v(84 + 4 * di, 4) if ss == 0 else a(68 + 4 * (di * 3 + ss - 1), 4)

    def gemm_loop(self, p, g, nks, nf, ns, nd, nt, ld, mfma, extra):
        NB = self.NB[g]; n = nks * nf
        for i in range(ns): p.ext(ld(i))
        nl = ns
        for ks in range(nks):
            side = Prog()
            if nd < nks and nd - RS < nt:
                if nd >= RS: side.wlg(f"t{g}_{nd-RS}")
                side.ext(self.dma(g, nd)); nd += 1
            if nt < nks and nt < nd and nt - NB < ks:
                side.ext(self.tr(g, nt)); nt += 1
            pre, post = extra(ks)
            gs = groups_of(pre) + groups_of(side)
            p.wlg(f"t{g}_{ks}")
            gi = 0; tot = 3 * nf
            for di in range(nf):
                p.wvm(f"act{ks}_{di}")
                for ss in range(4):
                    p.e(mfma(ks, di, ss))
                    if ss == 0:
                        if nf * ks + di >= 1 and nl < n: p.ext(ld(nl)); nl += 1
                    else:
                        sl = di * 3 + ss
                        while gi < len(gs) and gi < (sl * len(gs) + tot - 1) // tot:
                            p.items.extend(gs[gi]); gi += 1
            assert gi == len(gs)
            p.ext(post)
        assert nl == n and nd == nks and nt == nks

    def gemm1(self, p):
        e = p.e; o = self.o
        HR, ns = 24, o['ns1']
        nd = 0
        def more():
            nonlocal nd
            if nd >= RS: p.wlg(f"t1_{nd-RS}")
            p.ext(self.dma(1, nd, thr=nd >= o['free1'])); nd += 1
            if nd == o['free1']: self.main_setup2(p)
            if nd == o["PS1"]: self.sig(p, Y_P1, 20)
            if o.get("fine"): self.stamp(p)
        while nd < o["lead1"]: more()
        p.wvm("b1")
        for ds in range(4): self.unpack(p, 126, 72 + 4 * ds, 2)
        for j in range(o["P1"]):
            p.ext(self.tr(1, j))
            if j == 2 and not o.get('fine'): self.stamp(p)
            if nd < o["D1"]: more()
        while nd < o["D1"]:
            p.wvm(f"w1_{nd-o['lead1']}"); more()
        self.stamp(p)
        self.spin(p, Y_F1, 1, 20, sleep=1)
        e(f"ds_read_b32 {VTAG}, {VSY} offset:{4*Y_TAG}", "tag")
        self.stamp(p)
        def ld(i):
            ks, ds = divmod(i, 4); q = Prog()
            if ds == 0: self.kk(q, 1, ks, "s76", 40960, "s86")
            q.e(f"buffer_load_dwordx4 {v(HR + 4 * (i % ns), 4)}, v{120+ds}, {SWS}, s76 offen sc1", f"act{ks}_{ds}")
            return q
        def mfma(ks, ds, t):
            c = self.acc1(t, ds); src = "0" if (ks == 0 and t > 0) else c
            return f"v_mfma_f32_16x16x32_bf16 {c}, {a(16*(ks%6)+4*t,4)}, {v(HR + 4 * ((4*ks+ds) % ns), 4)}, {src}"
        def extra(ks):
            pre = Prog(); post = Prog()
            q = Prog(); self.kk(q, 1, ks, "s14", 64, None); q.e("v_add_u32 v125, s14, v124")
            q.e(f"s_mov_b64 exec, s[100:101]\nds_write_b128 v125, {v(HR + 4 * ((4 * ks) % ns), 4)}\ns_mov_b64 exec, -1", "uc")
            self._uc = q
            if ks % 4 == 3: self.sig(pre, Y_U + ks // 4, 20)
            if ks in (0, 5, 10): self.stamp(post)
            return pre, post
        def mfma_uc(ks, ds, t):
            s = mfma(ks, ds, t)
            if ds == 0 and t == 0: s = s + "\n" + "\n".join(x for x, _ in self._uc.items)
            return s
        self.gemm_loop(p, 1, 16, 4, ns, nd, o["P1"], ld, mfma_uc, extra)
        self.stamp(p)
    def gemm1_epi(self, p):
        e = p.e; RD = 24
        for ks in range(self.o["eb"]): p.ext(self.dma(2, ks))
        e(f"v_add_u32 v20, {RINGB}, {L16}")
        for t in range(1, 4):
            for ds in range(4): e(f"ds_write_b128 v20, {self.acc1(t, ds)} offset:{(t-1)*4096+ds*1024}", "r1w")
        self.sig(p, Y_PART, 21)
        for t in range(1, 4):
            e(f"s_xor_b32 s51, {WV}, {t}\ns_mul_i32 s51, s51, {RINGW}\ns_add_u32 s51, s51, {RING0 + (t-1)*4096}\nv_add_u32 v{20+t}, s51, {L16}")
        e(f"s_lshl_b32 s50, {FT}, 3\ns_lshl_b32 s51, {WV}, 1\ns_add_u32 s50, s50, s51\ns_mul_i32 s50, s50, 10240")
        e(f"s_lshl_b32 s51, {DT}, 10\ns_add_u32 s50, s50, s51\ns_add_u32 s86, s50, {GB}")
        e(f"s_mul_i32 s89, {DT}, 24\ns_add_u32 s89, s89, {FT}\ns_lshl_b32 s89, s89, 7\ns_add_u32 s89, s89, {F2}")
        c1 = -2 * 0.7978845608028654 * 1.4426950408889634; c3 = c1 * 0.044715
        e(f"s_mov_b32 s90, {fbits(c3)}\nv_mov_b32 v126, {fbits(c1)}")
        self.spin(p, Y_PART, 4, 20)
        for q in range(4):
            for t in range(3): e(f"ds_read_b128 {v(RD+16*t+4*q,4)}, v{21+t} offset:{q*1024}", f"r1r{q}")
        for pr in range(2):
            p.wlg(f"r1r{2*pr+1}")
            q = [(72 + 8 * pr + i, RD + 8 * pr + i, 88 + 8 * pr + i) for i in range(8)]
            for x, r, t in q: e(f"v_add_f32 v{x}, v{x}, v{r}\nv_add_f32 v{r+16}, v{r+16}, v{r+32}")
            for x, r, t in q: e(f"v_add_f32 v{x}, v{x}, v{r+16}")
            for x, r, t in q: e(f"v_mul_f32 v{t}, v{x}, v{x}")
            for x, r, t in q: e(f"v_fma_f32 v{t}, v{t}, s90, v126")
            for x, r, t in q: e(f"v_mul_f32 v{t}, v{t}, v{x}")
            for x, r, t in q: e(f"v_exp_f32 v{t}, v{t}")
            for x, r, t in q: e(f"v_add_f32 v{t}, 1.0, v{t}")
            for x, r, t in q: e(f"v_rcp_f32 v{t}, v{t}")
            for x, r, t in q: e(f"v_mul_f32 v{t}, v{t}, v{x}")
            o = 56 + 8 * pr
            for i in range(4): e(f"v_cvt_pk_bf16_f32 v{o+i}, v{q[2*i][2]}, v{q[2*i+1][2]}")
            e(f"v_permlane16_swap_b32 v{o}, v{o+2}\nv_permlane16_swap_b32 v{o+1}, v{o+3}")
            e(f"buffer_store_dwordx4 {v(o,4)}, v{6+pr}, {SWS}, s86 offen sc1", "gs")
        self.sig(p, Y_EPI, 20)
        self.stamp(p)
        for ks in range(min(self.o["eb"], self.o["P2"])): p.ext(self.tr(2, ks))
        e("s_waitcnt vmcnt(0)")
        l = self.label("nolast")
        e(f"v_mov_b32 v20, 1\ns_mov_b64 exec, 1\nds_add_rtn_u32 v20, {VSY}, v20 offset:{4*Y_G}\ns_mov_b64 exec, -1\ns_waitcnt lgkmcnt(0)\nv_readfirstlane_b32 s79, v20")
        e(f"s_cmp_lg_u32 s79, 3\ns_cbranch_scc1 {l}")
        self.flag_store(p, "s89", "@")
        e(f"{l}:")
        self.stamp(p)
    def gemm2(self, p, spare):
        e = p.e; o = self.o
        GR, ns = 24, o['ns2']
        e(f"s_mul_i32 s86, {WV}, {48*10240}\ns_mul_i32 s51, {DT2}, 1280\ns_add_u32 s86, s86, s51\ns_add_u32 s86, s86, {GB}")
        e(f"s_mul_i32 s88, {DT2}, {80*4096}\ns_add_u32 s88, s88, s95\ns_add_u32 s88, s88, {YT}")
        nd = o["eb"]; nt = min(o["eb"], o["P2"])
        e("v_lshlrev_b32 v114, 16, v114")
        for i in range(20): e(f"v_mov_b32 v{84+i}, v114")
        self.spin(p, Y_G, 4, 20)
        def more():
            nonlocal nd
            if nd >= RS: p.wlg(f"t2_{nd-RS}")
            p.ext(self.dma(2, nd)); nd += 1
            if nd == o["PS2"]: self.sig(p, Y_P2, 20)
        while nd < min(o["D2"], nt + o["lead2"]): more()
        while nt < o["P2"]:
            p.ext(self.tr(2, nt)); nt += 1
            if nd < o["D2"]: more()
        while nd < o["D2"]:
            p.wvm(f"w2_{nd-o['lead2']}"); more()
        self.stamp(p)
        self.spin(p, Y_F2, 1, 20, sleep=1)
        self.stamp(p)
        def ld(i):
            ks, di = divmod(i, 5); q = Prog()
            if di == 0: self.kk(q, 2, ks, "s76", 40960, "s86")
            q.e(f"buffer_load_dwordx4 {v(GR + 4 * (i % ns), 4)}, v19, {SWS}, s76 offen offset:{256*di} sc1", f"act{ks}_{di}")
            return q
        def mfma(ks, di, ss):
            c = self.acc2(di, ss); src = "0" if (ks == 0 and ss > 0) else c
            return f"v_mfma_f32_16x16x32_bf16 {c}, {v(GR + 4 * ((5*ks+di) % ns), 4)}, {a(16*(ks%4)+4*ss,4)}, {src}"
        yk = o["ychk"]; assert yk >= 9
        xr = lambda j: [v(120, 4), v(124, 4), v(110, 4)][j]
        def extra(ks):
            pre = Prog(); post = Prog()
            if ks == o["ytrig"]: self.sig(post, Y_P3, 20)
            if ks == o["xk"]:
                for j in range(3): post.e(f"buffer_load_dwordx4 {xr(j)}, v108, {SX}, s94 offen offset:{64*j}", f"x{j}")
            if ks == yk:
                self.spin(post, Y_F3, 1, 20, sleep=2)
                for di in range(5):
                    post.e(f"buffer_load_dwordx4 {a(4*di,4)}, v115, {SWS}, s88 offen sc1", f"y{di}")
                    post.e("s_add_u32 s88, s88, 65536")
            if ks in (0, 3, 7): self.stamp(post)
            return pre, post
        self.gemm_loop(p, 2, 12, 5, ns, nd, nt, ld, mfma, extra)
        self.stamp(p)
        e(f"v_add_u32 v20, {RINGB}, {L16}")
        for t in range(1, 4):
            for di in range(5): e(f"ds_write_b128 v20, {self.acc2(di,t)} offset:{(t-1)*5120+di*1024}", "r2w")
        for t in range(1, 4):
            e(f"s_xor_b32 s51, {WV}, {t}\ns_mul_i32 s51, s51, {RINGW}\ns_add_u32 s51, s51, {RING0 + (t-1)*5120}\nv_add_u32 v{20+t}, s51, {L16}")
        for di in range(5):
            p.wvm(f"x{di//2}")
            e(f"v_mfma_f32_16x16x32_bf16 {self.acc2(di,0)}, {v(104 if di & 1 else 116, 4)}, {xr(di//2)}, {self.acc2(di,0)}")
        for di in range(5):
            p.wvm(f"y{di}")
            e(f"v_mfma_f32_16x16x32_bf16 {self.acc2(di,0)}, {a(4*di,4)}, v[116:119], {self.acc2(di,0)}")
        e("s_waitcnt lgkmcnt(0)\ns_barrier")
        for di in range(5):
            for t in range(3): e(f"ds_read_b128 {v(GR+12*di+4*t,4)}, v{21+t} offset:{di*1024}", f"r2r{di}")
        for di in range(5):
            c = 84 + 4 * di; r = GR + 12 * di
            p.wlg(f"r2r{di}")
            for hq in range(2): e(f"v_pk_add_f32 {v(r+2*hq,2)}, {v(r+2*hq,2)}, {v(r+4+2*hq,2)}\nv_pk_add_f32 {v(c+2*hq,2)}, {v(c+2*hq,2)}, {v(r+8+2*hq,2)}")
            for hq in range(2): e(f"v_pk_add_f32 {v(c+2*hq,2)}, {v(c+2*hq,2)}, {v(r+2*hq,2)}")
            for hq in range(2): e(f"v_cvt_pk_bf16_f32 v{104+2*di+hq}, v{c+2*hq}, v{c+2*hq+1}")
            e(f"buffer_store_dwordx2 {v(104+2*di,2)}, v18, {SOUT}, s94 offen offset:{32*di} {o['oflag']}", "os")
        self.stamp(p)

    def main(self):
        self.role = "main"
        p = Prog(); e = p.e
        self.main_start(p)
        e(f"s_cmp_lt_u32 {IDX}, 30\ns_cbranch_scc1 L_g1")
        q = Prog()
        self.main_setup2(q)
        self.spin(q, Y_PUB, 2, 20, sleep=4)
        for ks in range(self.o["eb"]): q.ext(self.dma(2, ks))
        for ks in range(min(self.o["eb"], self.o["P2"])): q.ext(self.tr(2, ks))
        self.sig(q, Y_G, 20)
        q.e("s_waitcnt vmcnt(0) lgkmcnt(0)\ns_branch L_g2")
        for line in finalize(q).split("\n"):
            if line.strip(): e(line.strip() if line.strip().endswith(":") else "@" + line.strip())
        e("L_g1:")
        self.gemm1(p)
        self.gemm1_epi(p)
        e("L_g2:")
        self.gemm2(p, False)
        e(f"s_or_b32 s51, {WG}, {WV}\ns_cmp_lg_u32 s51, 0\ns_cbranch_scc1 L_noep")
        e(f"s_mov_b64 exec, 1\nbuffer_store_dword {VTAG}, {VZ}, {SWS}, 0 offen\ns_mov_b64 exec, -1")
        e("L_noep:")
        self.finish(p)
        return p

    def red32(self, p, regs, tmp):
        for m in ("quad_perm:[1,0,3,2]", "quad_perm:[2,3,0,1]", "row_half_mirror", "row_mirror"):
            for r in regs: p.e(f"v_add_f32_dpp v{r}, v{r}, v{r} {m} row_mask:0xf bank_mask:0xf")
        for i, r in enumerate(regs): p.e(f"v_mov_b32 v{tmp+i}, v{r}")
        for i, r in enumerate(regs): p.e(f"v_permlane16_swap_b32 v{r}, v{tmp+i}")
        for i, r in enumerate(regs): p.e(f"v_add_f32 v{r}, v{r}, v{tmp+i}")
    RAW = [4, 5, 6, 7, 8, 12, 13, 14, 15, 16, 17, 18]
    def aux_start(self, p):
        e = p.e; RAW = self.RAW; xf = self.o["xflag"]
        e("s_setprio 3")
        e(f"s_sub_u32 s14, {WV}, 4")
        e(f"v_lshrrev_b32 v104, 5, {LANE}\nv_mul_u32_u24 v105, 1280, v104\nv_and_b32 v106, 31, {LANE}")
        e("v_lshl_add_u32 v107, v106, 4, v105\nv_lshl_add_u32 v108, v106, 3, v105")
        e(f"s_lshl_b32 s50, {WG}, 3\ns_lshl1_add_u32 s50, s14, s50\ns_mul_i32 s50, s50, 1280")
        e(f"v_add_u32 v109, {SYNC}, {L4}\ns_mov_b32 exec_hi, 0\nds_write_b32 v109, {VZ}\ns_mov_b64 exec, -1")
        e(f"s_lshl_b32 {CH}, {DT}, 6\ns_lshl4_add_u32 {CH}, {SUB}, {CH}\ns_add_u32 {CH}, {CH}, {C0}\ns_add_u32 {CH}, {CH}, s14\ns_min_u32 {CH}, {CH}, 639")
        e(f"s_mul_i32 {REGB}, s14, {REGSZ}\ns_add_u32 {REGB}, {REGB}, {REG0}")
        e(f"s_mul_i32 s51, {CH}, 384\nv_add_u32 v110, s51, {L4}\nv_lshlrev_b32 v111, 1, {LANE}\nv_add_u32 v111, s51, v111")
        e(f"s_lshr_b32 s79, {CH}, 1\ns_lshl_b32 s79, s79, 2")
        e("s_waitcnt lgkmcnt(0)")
        self.srd(p, 52, 16, 2621440)
        e(f"buffer_load_dwordx4 v[20:23], v107, {SX}, s50 offen {xf}", "x")
        e(f"buffer_load_dwordx4 v[24:27], v107, {SX}, s50 offen offset:512 {xf}", "x")
        e(f"buffer_load_dwordx2 v[28:29], v108, {SX}, s50 offen offset:1024 {xf}", "x")
        e(f"s_load_dword {TAG}, s[48:49], 0\ns_load_dword s80, s[30:31], s79\ns_load_dword s81, s[32:33], s79")
        e("s_barrier")
        if self.o["ipf"]:
            lp = self.label("noipf")
            e(f"s_cmp_lg_u32 {WV}, 7\ns_cbranch_scc1 {lp}")
            e(f"s_getpc_b64 s[90:91]\nL_pc:\ns_sub_u32 s90, s90, L_pc-{NAME}_kernel\ns_subb_u32 s91, s91, 0")
            e(f"s_mul_i32 s51, {IDX}, 52\ns_lshr_b32 s51, s51, 8\ns_mul_i32 s51, s51, 5\ns_sub_u32 s51, {IDX}, s51\ns_lshl_b32 s51, s51, 13")
            e(f"v_lshlrev_b32 v112, 7, {LANE}\nv_add_u32 v112, s51, v112\nv_min_u32 v112, L_last-{NAME}_kernel, v112")
            e("v_mov_b32 v113, s91\nv_add_co_u32 v112, vcc, s90, v112\nv_addc_co_u32 v113, vcc, 0, v113, vcc")
            e("@global_load_dword v114, v[112:113], off")
            e(f"@s_waitcnt vmcnt(1)\n@s_branch L_xok\n{lp}:")
        l = self.label("nopar")
        e(f"s_cmp_ge_u32 s14, {NCH}\ns_cbranch_scc1 {l}")
        for i in range(6):
            e(f"@global_load_dword v{RAW[2*i]}, v110, s[{18+2*i}:{19+2*i}] {self.o['pflag']}")
            e(f"@global_load_ushort v{RAW[2*i+1]}, v111, s[{18+2*i}:{19+2*i}] offset:256 {self.o['pflag']}")
        e(f"@s_waitcnt vmcnt(12)\n@s_branch {l}x\n{l}:\n@s_waitcnt vmcnt(0)\n{l}x:\nL_xok:")
        self.srd(p, 60, 40, 6291456); self.srd(p, 68, 48, WSEND)
        e(f"s_lshr_b32 s51, s14, 1\ns_mul_i32 s51, s51, {REGSZ}\ns_and_b32 s15, s14, 1\ns_mul_i32 s15, s15, {2*PT}\ns_add_u32 s51, s51, s15\ns_add_u32 s51, s51, {LNT}")
        e(f"v_mul_u32_u24 v102, {PT}, v104\nv_add_u32 v102, s51, v102\nv_lshl_add_u32 v101, v106, 3, v102\nv_lshl_add_u32 v100, v106, 4, v102")
    def ln(self, p):
        e = p.e
        RAW, F, D, T, H = 20, 30, 50, 70, 90
        inv = fbits(1.0 / 640)
        self.unpack(p, RAW, F, 10)
        def psum(src, dst):
            e(f"v_pk_add_f32 {v(dst,2)}, {v(src,2)}, {v(src+2,2)}\nv_pk_add_f32 {v(dst+2,2)}, {v(src+4,2)}, {v(src+6,2)}")
            for i in range(4, 10): e(f"v_pk_add_f32 {v(dst+2*(i&1),2)}, {v(dst+2*(i&1),2)}, {v(src+2*i,2)}")
            e(f"v_pk_add_f32 {v(dst,2)}, {v(dst,2)}, {v(dst+2,2)}\nv_add_f32 v{dst}, v{dst}, v{dst+1}")
        def psq(src, dst):
            e(f"v_pk_mul_f32 {v(dst,2)}, {v(src,2)}, {v(src,2)}\nv_pk_mul_f32 {v(dst+2,2)}, {v(src+2,2)}, {v(src+2,2)}")
            for i in range(2, 10): e(f"v_pk_fma_f32 {v(dst+2*(i&1),2)}, {v(src+2*i,2)}, {v(src+2*i,2)}, {v(dst+2*(i&1),2)}")
            e(f"v_pk_add_f32 {v(dst,2)}, {v(dst,2)}, {v(dst+2,2)}\nv_add_f32 v{dst}, v{dst}, v{dst+1}")
        def rstd(var, out):
            e(f"v_max_f32 v{var}, 0, v{var}")
            self.rbf(p, var); e(f"v_add_f32 v{var}, {fbits(1e-5)}, v{var}"); self.rbf(p, var)
            e(f"v_sqrt_f32 v{var}, v{var}"); self.rbf(p, var); e(f"v_rcp_f32 v{out}, v{var}")
        psum(F, T); self.red32(p, [T], T + 2)
        e(f"v_mul_f32 v{T}, {inv}, v{T}\nv_mov_b32 v{T+4}, v{T}"); self.rbf(p, T + 4)
        for i in range(10): e(f"v_pk_add_f32 {v(D+2*i,2)}, {v(F+2*i,2)}, {v(T+4,2)} op_sel_hi:[1,0] neg_lo:[0,1] neg_hi:[0,1]")
        e(f"v_sub_f32 v{T+5}, v{T}, v{T+4}")
        psq(D, T); self.red32(p, [T], T + 2)
        e(f"v_mul_f32 v{T}, {inv}, v{T}\nv_fma_f32 v{T}, -v{T+5}, v{T+5}, v{T}")
        rstd(T, T + 6)
        for i in range(10): e(f"v_pk_mul_f32 {v(D+2*i,2)}, {v(D+2*i,2)}, {v(T+6,2)} op_sel_hi:[1,0]")
        for i in range(10): e(f"v_cvt_pk_bf16_f32 v{RAW+i}, v{D+2*i}, v{D+2*i+1}")
        self.unpack(p, RAW, F, 10)
        psum(F, T); psq(F, T + 4); self.red32(p, [T, T + 4], T + 2)
        e(f"v_mul_f32 v{T}, {inv}, v{T}\nv_mul_f32 v{T+4}, {inv}, v{T+4}\nv_fma_f32 v{T+4}, -v{T}, v{T}, v{T+4}")
        self.rbf(p, T)
        rstd(T + 4, T + 6)
        e(f"v_mul_f32 v{T+2}, v{T}, v{T+6}\nv_lshrrev_b32 v{T+4}, 16, v{T+4}\nv_or_b32 v{T+4}, v{T+4}, v{T}")
        for i in range(10): e(f"v_pk_fma_f32 {v(D+2*i,2)}, {v(F+2*i,2)}, {v(T+6,2)}, {v(T+2,2)} op_sel_hi:[1,0,0] neg_lo:[0,0,1] neg_hi:[0,0,1]")
        e(f"ds_write_b32 v102, v{T+4} offset:1280", "lnw")
        for i in range(10): e(f"v_cvt_pk_bf16_f32 v{H+i}, v{D+2*i}, v{D+2*i+1}")
        e(f"ds_write_b128 v100, {v(H,4)}\nds_write_b128 v100, {v(H+4,4)} offset:512\nds_write_b64 v101, {v(H+8,2)} offset:1024", "lnw")
        e("s_waitcnt lgkmcnt(0)")
        self.sig(p, Y_LN, T)
        self.mktag(p)

    def serv(self):
        self.role = "serv"
        p = Prog(); e = p.e; o = self.o
        self.stamp(p)
        e(f"v_bfe_u32 v12, {LANE}, 2, 2\nv_mul_u32_u24 v12, {PT}, v12\nv_lshrrev_b32 v13, 4, {LANE}\nv_lshl_add_u32 v12, v13, 5, v12")
        e(f"v_and_b32 v13, 3, {LANE}\nv_lshl_add_u32 v12, v13, 3, v12\nv_add_u32 v12, {LNT}, v12")
        e(f"s_mul_i32 s84, {WG}, 10240\ns_add_u32 s84, s84, {HB}\ns_add_u32 s85, s84, 4096\ns_add_u32 s86, s84, 8192")
        e(f"s_lshl_b32 s87, {WG}, 4\ns_add_u32 s87, s87, {STAT}\nv_lshlrev_b32 v13, 12, {LANE}")
        e(f"s_lshl_b32 s89, {WG}, 2\ns_add_u32 s89, s89, {F1}")
        e(f"ds_write_b32 {VSY}, {VTAG} offset:{4*Y_TAG}")
        self.spin(p, Y_LN, 4, 20)
        self.stamp(p)
        for b in range(11):
            e(f"ds_read_b64_tr_b16 {v(24+4*b,2)}, v12 offset:{128*b}\nds_read_b64_tr_b16 {v(26+4*b,2)}, v12 offset:{128*b+REGSZ}", f"lr{b}")
            if b >= 3:
                c = b - 3; p.wlg(f"lr{c}")
                e(f"buffer_store_dwordx4 {v(24+4*c,4)}, {L16}, {SWS}, s{84 + c//4} offen offset:{(c%4)*1024} sc1")
        for c in range(8, 10):
            p.wlg(f"lr{c}")
            e(f"buffer_store_dwordx4 {v(24+4*c,4)}, {L16}, {SWS}, s{84 + c//4} offen offset:{(c%4)*1024} sc1")
        p.wlg("lr10")
        e(f"s_mov_b64 exec, 3\nbuffer_store_dwordx4 v[64:67], v13, {SWS}, s87 offen sc1\ns_mov_b64 exec, -1")
        self.sig(p, Y_PUB, 20)
        self.stamp(p)
        e(f"s_mul_i32 s50, {DT2}, 80\ns_lshr_b32 s50, s50, 6\ns_mul_i32 s92, s50, {24*128}\ns_add_u32 s92, s92, {F2}")
        e(f"v_min_u32 v15, 47, {LANE}\nv_lshlrev_b32 v15, 7, v15\nv_min_u32 v16, 19, {LANE}\nv_lshlrev_b32 v16, 4, v16")
        e(f"s_mul_i32 s93, {DT2}, 320\ns_add_u32 s93, s93, {F3}")
        e("s_waitcnt vmcnt(0)")
        self.flag_store(p, "s89")
        self.sig(p, Y_PUB, 20)
        self.stamp(p)
        e(f"s_cmp_lt_u32 {IDX}, 30\ns_cbranch_scc1 L_s1")
        e(f"v_lshrrev_b32 v17, 3, {LANE}\nv_lshlrev_b32 v17, 12, v17\nv_and_b32 v18, 7, {LANE}\nv_lshl_add_u32 v17, v18, 7, v17")
        e(f"s_lshl_b32 s88, {SUB}, 10\ns_and_b32 s51, {IDX}, 1\ns_lshl_b32 s51, s51, 15\ns_add_u32 s88, s88, s51\ns_and_b32 s51, {XCD}, 1\ns_lshl_b32 s51, s51, 16\ns_add_u32 s88, s88, s51")
        for i in range(o["nsp"]):
            e(f"buffer_load_dword v{24+i}, v17, {SW2}, s88 offen\ns_add_u32 s88, s88, 131072")
        e("s_waitcnt vmcnt(0)\ns_branch L_s2\nL_s1:")
        self.spin(p, Y_P1, 1, 20, sleep=2)
        self.stamp(p)
        e(f"s_mov_b32 s50, {F1}")
        self.poll(p, L16, "s50", 20, wide=True, sleep=o["psleep"])
        self.sig(p, Y_F1, 20)
        self.stamp(p)
        if self.debug: e(f"v_writelane_b32 {VDBG}, s78, 31")
        e("L_s2:")
        self.spin(p, Y_P2, 1, 20, sleep=4)
        self.stamp(p)
        self.poll(p, "v15", "s92", 20, sleep=o["psleep2"])
        self.sig(p, Y_F2, 20)
        self.stamp(p)
        if self.debug: e(f"v_writelane_b32 {VDBG}, s78, 30")
        self.spin(p, Y_P3, 1, 20, sleep=4)
        self.poll(p, "v16", "s93", 20, wide=True, sleep=o["psleep2"])
        self.sig(p, Y_F3, 20)
        if self.debug: e(f"v_writelane_b32 {VDBG}, s78, 29")
        self.finish(p)
        return p

    def kgen(self, p):
        e = p.e; RAW = self.RAW
        L2E = 1.4426950408889634
        l2e_hi = struct.unpack("<f", struct.pack("<f", L2E))[0]; l2e_lo = L2E - l2e_hi
        VDT, VD1, VD2, VDS, WA, RA, RB = 54, 55, 56, 57, 58, 59, 60
        e(f"s_and_b32 s51, {CH}, 1\ns_lshl_b32 s51, s51, 4\ns_lshr_b32 s80, s80, s51\ns_lshl_b32 s80, s80, 16\ns_lshr_b32 s81, s81, s51\ns_lshl_b32 s81, s81, 16")
        e(f"v_mov_b32 v62, s80\nv_mov_b32 v63, {fbits(l2e_hi)}\nv_mul_f32 v64, v62, v63\nv_fma_f32 v65, v62, v63, -v64\nv_fmac_f32 v65, {fbits(l2e_lo)}, v62")
        e(f"v_exp_f32 v64, v64\nv_mul_f32 v65, {fbits(0.6931471805599453)}, v65\nv_fma_f32 v{VDT}, v64, v65, v64")
        self.rbf(p, VDT)
        e(f"v_mul_f32 v{VD1}, {fbits(L2E)}, v{VDT}\nv_mul_f32 v{VD2}, 0.15915494, v{VDT}")
        e(f"v_cmp_eq_u32 vcc, 0, {LANE}\nv_mov_b32 v62, s81\nv_cndmask_b32 v{VDS}, 0, v62, vcc")
        e(f"s_mov_b32 m0, {REGB}")
        e(f"v_and_b32 v62, 31, {LANE}\nv_lshrrev_b32 v63, 5, {LANE}\nv_lshlrev_b32 v63, 4, v63\nv_add_u32 v63, {REGB}, v63")
        e(f"v_mul_u32_u24 v64, {KP}, v62\nv_add_u32 v{RB}, v64, v63")
        e(f"v_min_u32 v62, 20, v62\nv_mul_u32_u24 v64, {KP}, v62\nv_add_u32 v{RA}, v64, v63")
        e("v_mov_b32 v28, 0x3f80")
        e("s_waitcnt vmcnt(0)")
        self.stamp(p)
        PK = 116; pk = [0]; P = 62
        FA, FB = 16, 48
        def mf(rd):
            l = []
            for s in range(8):
                q = Prog()
                c = "0" if (rd == 0 and s == 0) else a(0, 16)
                q.e(f"v_mfma_f32_32x32x16_bf16 {a(0,16)}, {a(FA+4*s,4)}, {a(FB+4*s,4)}, {c}")
                l.append(q)
            return l
        for rd in range(3):
            usepk = rd < self.o["pk"]
            q = Prog(); e = q.e
            def cmul(sets):
                if usepk:
                    for d, x, y in sets: e(f"v_pk_mul_f32 {v(d,2)}, {v(x,2)}, {v(y,2)} op_sel_hi:[0,1]")
                    for d, x, y in sets: e(f"v_pk_fma_f32 {v(d,2)}, {v(x,2)}, {v(y,2)}, {v(d,2)} op_sel:[1,1,0] op_sel_hi:[1,0,1] neg_lo:[1,0,0]")
                else:
                    for d, x, y in sets: e(f"v_mul_f32 v{d}, v{x}, v{y}\nv_mul_f32 v{d+1}, v{x}, v{y+1}")
                    for d, x, y in sets: e(f"v_fma_f32 v{d}, -v{x+1}, v{y+1}, v{d}\nv_fmac_f32 v{d+1}, v{x+1}, v{y}")
            def puts(l, neg):
                rs = []
                for row, z in l:
                    r = PK + pk[0] % 8; pk[0] += 1; rs.append(r)
                    e(f"v_cvt_pk_bf16_f32 v{r}, v{z}, {'-' if neg else ''}v{z+1}")
                for (row, z), r in zip(l, rs): e(f"ds_write_addtid_b32 v{r} offset:{row*KP}", "kw")
            for i in range(6):
                if rd == 0: e(f"v_lshlrev_b32 v{P+i}, 16, v{RAW[2*i]}")
                elif rd == 1: e(f"v_and_b32 v{P+i}, 0xffff0000, v{RAW[2*i]}")
                else: e(f"v_lshlrev_b32 v{P+i}, 16, v{RAW[2*i+1]}")
            AR, AI = 68, 69
            e(f"v_mul_f32 v{AR}, v{P}, v{VD1}\nv_mul_f32 v{AI}, v{P+1}, v{VD2}")
            e(f"v_mul_f32 v{P+2}, v{P+2}, v{VDT}\nv_mul_f32 v{P+3}, v{P+3}, v{VDT}")
            E1, E8, E256 = 70, 72, 74
            TM_, TA = 76, 79
            for i, t in enumerate((1.0, 8.0, 256.0)):
                if i == 0: e(f"v_mov_b32 v{TM_}, v{AR}\nv_fract_f32 v{TA}, v{AI}")
                else: e(f"v_mul_f32 v{TM_+i}, {fbits(t)}, v{AR}\nv_mul_f32 v{TA+i}, {fbits(t)}, v{AI}\nv_fract_f32 v{TA+i}, v{TA+i}")
            X = 82
            cmul([(X, P + 4, P + 2)])
            for i in range(3):
                e(f"v_exp_f32 v{TM_+i}, v{TM_+i}\nv_cos_f32 v{E1+2*i}, v{TA+i}\nv_sin_f32 v{E1+2*i+1}, v{TA+i}")
            for i in range(3): e(f"v_mul_f32 v{E1+2*i}, v{E1+2*i}, v{TM_+i}\nv_mul_f32 v{E1+2*i+1}, v{E1+2*i+1}, v{TM_+i}")
            E2, E4, E16, E512 = 98, 100, 102, 104
            EA, EB, E32, Y, Z = 106, 20, 114, 30, 38
            cmul([(E2, E1, E1), (E16, E8, E8), (E512, E256, E256), (X + 2, X, E1)])
            cmul([(E4, E2, E2), (EA + 6, E16, E8), (E32, E16, E16), (X + 4, X, E2), (X + 6, X + 2, E2)])
            p.ext(q)
            if rd > 0: p.wlg("kr")
            q = Prog(); e = q.e
            e(f"ds_write_addtid_b32 v28", "kw")
            puts([(1, E8), (2, E16), (3, EA + 6), (4, E32)], False)
            cmul([(EB, E8, E32), (EB + 2, E16, E32), (EB + 4, EA + 6, E32), (EB + 6, E32, E32)])
            cur, nxt = EB, EA
            extra = [[(X + 8 + 2 * i, X + 2 * i, E4) for i in range(4)], [(Y + 2 * i, X + 4 * i, E256) for i in range(4)],
                     [(Z, X, E512), (Z + 2, X + 8, E512), (Z + 4, Y, E512), (Z + 6, Y + 4, E512)],
                     [(Z + 8, Z, E512), (Z + 10, Z + 4, E512)], [(Z + 12, Z + 8, E512), (Z + 14, Z + 10, E512)], [(E1, Z + 12, E512)]]
            for st in range(6):
                j0 = 9 + 4 * st
                n = min(4, 32 - j0)
                cmul([(nxt + 2 * i, cur + 2 * i, E32) for i in range(n)])
                puts([(j0 - 4 + i, cur + 2 * i) for i in range(4)], False)
                cmul(extra[st])
                cur, nxt = nxt, cur
            puts([(29 + i, cur + 2 * i) for i in range(3)], False)
            if rd > 0: p.ext(interleave(q, mf(rd - 1)))
            else: p.ext(q)
            for s_ in range(8): p.e(f"ds_read_b128 {a(FB+4*s_,4)}, v{RB} offset:{s_*32}", "kr")
            e = p.e
            puts([(i, X + 2 * i) for i in range(4)], True); puts([(4 + i, X + 8 + 2 * i) for i in range(4)], True)
            puts([(8 + i, Y + 2 * i) for i in range(4)], True); puts([(12 + i, Z + 2 * i) for i in range(4)], True)
            puts([(16 + i, Z + 8 + 2 * i) for i in range(4)] + [(20, E1)], True)
            for s_ in range(8): p.e(f"ds_read_b128 {a(FA+4*s_,4)}, v{RA} offset:{s_*32}", "kr")
        e = p.e
        e(f"v_and_b32 v62, 31, {LANE}\nv_lshrrev_b32 v63, 5, {LANE}\ns_add_u32 s51, {REGB}, {KCO}")
        e(f"v_lshlrev_b32 v64, 4, v62\nv_lshl_add_u32 v64, v63, 3, v64\nv_add_u32 v64, s51, v64")
        e(f"v_cmp_eq_u32 vcc, 0, v63\nv_lshlrev_b32 v65, 3, v62\nv_add_u32 v65, 512, v65\nv_lshlrev_b32 v66, 2, v62\nv_add_u32 v66, 768, v66")
        e(f"v_cndmask_b32 v65, v66, v65, vcc\nv_add_u32 v65, s51, v65\nv_mov_b32 v66, 128\nv_cndmask_b32 v66, v66, 4, vcc\nv_add_u32 v66, v65, v66")
        e(f"v_lshlrev_b32 v67, 1, v62\nv_lshl_add_u32 v67, v63, 8, v67\nv_add_u32 v67, s51, v67")
        self.spin(p, Y_PUB, 1, 68)
        for q in mf(2): p.ext(q)
        e(f"v_mov_b32 v76, 0\nv_mov_b32 v77, 0\nv_mov_b32 v78, 0\nv_mov_b32 v79, 0\nv_add_u32 v15, {REGB}, {L16}")
        for i in range(4): e(f"ds_write_b128 v15, v[76:79] offset:{R0O + 1024*i}", "kc")
        e("s_mov_b64 exec, 3")
        e(f"ds_write_b128 v15, v[76:79] offset:{KCO - 32}", "kc")
        e("s_mov_b32 exec_lo, -1")
        e(f"ds_write_b128 v15, v[76:79] offset:{UO}", "kc")
        e("s_mov_b64 exec, -1")
        blocks = [(-2, 34, 8), (32, 32, 4)]
        info = []
        for bi, (v0, nl, stride) in enumerate(blocks):
            cis = lambda y: y if y < 0 else ci(y)
            base = cis(8 * v0)
            offs = {}
            for t in range(-1, 8):
                o = [cis(8 * (v0 + l) + 7 - t) - (base + stride * l) for l in range(nl)]
                offs[t] = o[0]
                assert all(x == o[0] for x in o)
            AD = 100 + 2 * bi
            e(f"s_add_u32 s51, {REGB}, {KCO + 2*base}\nv_mul_u32_u24 v{AD}, {2*stride}, {LANE}\nv_add_u32 v{AD}, s51, v{AD}")
            e(f"s_add_u32 s51, {REGB}, {(75 - v0) * 16}\nv_sub_u32 v{AD+1}, s51, {L16}")
            info.append(offs)
        e(f"v_cmp_gt_u32 vcc, 16, {LANE}\nv_mov_b32 v104, 563\nv_mov_b32 v105, 512\nv_cndmask_b32 v104, v104, v105, vcc\nv_add_u32 v104, v104, {LANE}")
        e(f"v_mov_b32 v106, 1011\nv_cndmask_b32 v105, v106, v105, vcc\nv_add_u32 v105, v105, {LANE}\nv_cvt_f32_u32 v105, v105\nv_cvt_pk_bf16_f32 v105, v105, v105\nv_and_b32 v105, 0xffff, v105")
        e(f"s_sub_u32 s51, {REGB}, {2*0x4280 - KCO}\nv_lshl_add_u32 v105, v105, 1, s51")
        e(f"s_add_u32 s51, {REGB}, {2*607}\nv_lshlrev_b32 v104, 1, v104\nv_sub_u32 v104, s51, v104")
        e(f"v_lshlrev_b32 v106, 1, {LANE}\ns_add_u32 s51, {REGB}, 4096\nv_sub_u32 v107, s51, v106\nv_add_u32 v106, {REGB}, v106")
        for i in range(12): e(f"v_accvgpr_read_b32 v{82+i}, a{i}")
        e(f"v_add_f32 v82, v82, v{VDS}")
        for i in range(6): e(f"v_cvt_pk_bf16_f32 v{70+i}, v{82+2*i}, v{83+2*i}")
        e(f"ds_write_b64 v64, v[70:71]\nds_write_b32 v65, v72\nds_write_b32 v66, v73\nds_write_b16 v67, v74 offset:1024", "kc")
        e("s_mov_b32 exec_hi, 0")
        e(f"ds_write_b16_d16_hi v67, v74 offset:{1024+64}\nds_write_b16 v67, v75 offset:{1024+128}\nds_write_b16_d16_hi v67, v75 offset:{1024+192}", "kc")
        e("s_mov_b64 exec, -1")
        vrs = []
        for bi, (v0, nl, stride) in enumerate(blocks):
            RR = 20 + 9 * bi; AD = 100 + 2 * bi; offs = info[bi]
            e(f"s_mov_b32 exec_hi, {(1 << (nl - 32)) - 1}")
            seen = {}; vr = {}
            for t in range(-1, 8):
                o = offs[t]
                if o not in seen:
                    seen[o] = RR + len(seen)
                    e(f"ds_read_u16 v{seen[o]}, v{AD} offset:{2*o}", f"kx{bi}")
                vr[t] = seen[o]
            vrs.append(vr)
        e("ds_read_u16 v40, v105", "kq")
        e("s_mov_b64 exec, -1")
        for i in range(2):
            e(f"ds_read_u16 v{41+i}, v106 offset:{KCO + 2*(388 + 64*i)}\nds_read_u16 v{43+i}, v106 offset:{KCO + 2*(514 + 64*i)}", "kq")
        for bi, (v0, nl, stride) in enumerate(blocks):
            AD = 100 + 2 * bi; O = 70 + 8 * bi; vr = vrs[bi]
            p.wlg(f"kx{bi}")
            for i in range(4): e(f"v_lshl_or_b32 v{O+i}, v{vr[2*i+1]}, 16, v{vr[2*i]}")
            for i in range(4): e(f"v_lshl_or_b32 v{O+4+i}, v{vr[2*i]}, 16, v{vr[2*i-1]}")
            e(f"s_mov_b32 exec_hi, {(1 << (nl - 32)) - 1}")
            e(f"ds_write_b128 v{AD+1}, {v(O,4)} offset:{R0O}\nds_write_b128 v{AD+1}, {v(O+4,4)} offset:{R1O}", "kt")
            e("s_mov_b64 exec, -1")
        p.wlg("kq")
        e(f"ds_write_b16 v107, v41 offset:{Q2O - 4096 + 2*188}\nds_write_b16 v107, v43 offset:{Q3O - 4096 + 2*126}", "kt")
        e(f"s_mov_b32 exec_hi, {(1 << 31) - 1:#x}\nds_write_b16 v107, v44 offset:{Q3O - 4096 + 2*(126-64)}", "kt")
        e(f"s_mov_b32 exec_hi, {(1 << 29) - 1:#x}\nds_write_b16 v107, v42 offset:{Q2O - 4096 + 2*(188-64)}", "kt")
        e(f"s_mov_b32 exec_hi, 0\ns_mov_b32 exec_lo, 0x01ff3fff\nds_write_b16 v104, v40 offset:{R0O}\nds_write_b16 v104, v40 offset:{R1O + 2}\ns_mov_b64 exec, -1", "kt")

    def conv_setup(self, p):
        e = p.e
        e(f"v_lshrrev_b32 v32, 4, {LANE}\nv_and_b32 v31, 15, {LANE}\nv_bfe_u32 v33, {LANE}, 1, 3\nv_lshlrev_b32 v34, 2, v32\nv_sub_u32 v34, v34, v33")
        e(f"v_and_b32 v33, 1, {LANE}\nv_xor_b32 v33, 1, v33\nv_mul_u32_u24 v33, {(R1O - R0O)//4 + 1}, v33\nv_add_u32 v34, v34, v33")
        e(f"s_add_u32 s51, {REGB}, {R0O + 4*7}\nv_lshl_add_u32 v24, v34, 2, s51\nv_add_u32 v25, 512, v24")
        e(f"v_lshlrev_b32 v33, 4, v32\nv_lshlrev_b32 v34, 3, v31\nv_sub_u32 v26, v33, v34\ns_add_u32 s51, {REGB}, {Q2O + 120}\nv_add_u32 v26, s51, v26")
        e(f"v_lshlrev_b32 v34, 2, v31\nv_sub_u32 v27, v33, v34\ns_add_u32 s51, {REGB}, {Q3O + 60}\nv_add_u32 v27, s51, v27")
        for m in list(range(17)) + [18]:
            off = (18 - m) * 16; ad = 24; r = 4 * min(m, 17)
            if off >= 128: off -= 128; ad = 25
            e(f"ds_read2_b32 {a(r,2)}, v{ad} offset0:{off} offset1:{off+1}\nds_read2_b32 {a(r+2,2)}, v{ad} offset0:{off+2} offset1:{off+3}", "pf")
        for j in range(6): e(f"ds_read_b64 {a(72+4*j,2)}, v26 offset:{64*j}\nds_read_b64 {a(74+4*j,2)}, v26 offset:{64*j+8}", "pf")
        for j in range(4): e(f"ds_read2_b32 {a(96+4*j,2)}, v27 offset0:{16*j} offset1:{16*j+1}\nds_read2_b32 {a(98+4*j,2)}, v27 offset0:{16*j+2} offset1:{16*j+3}", "pf")
        e("v_mov_b32 v76, 0\nv_mov_b32 v77, 0\nv_mov_b32 v78, 0\nv_mov_b32 v79, 0\ns_mov_b64 exec, 1")
        for o in (Z5O, Z3O, Z9O, Z7O, Z5O + 3088, Z3O + 3088): e(f"ds_write_b128 v15, v[76:79] offset:{o}", "pf")
        e("s_mov_b64 exec, -1")
        e(f"v_lshl_add_u32 v34, v31, 1, v32\ns_add_u32 s51, {REGB}, {UO + 16*2}\nv_lshl_add_u32 v16, v34, 4, s51")
        e(f"v_bfe_u32 v33, {LANE}, 2, 2\nv_and_b32 v34, 3, {LANE}\nv_and_b32 v35, 1, v33")
        e(f"v_mul_u32_u24 v12, {Z3O - Z5O}, v35\nv_lshl_add_u32 v12, v32, 6, v12\nv_add_u32 v36, v33, v34\nv_lshl_add_u32 v12, v36, 3, v12\nv_add_u32 v12, {REGB}, v12")
        e(f"v_mul_u32_u24 v13, {Z7O - Z9O}, v35\nv_lshl_add_u32 v13, v32, 7, v13\nv_lshl_add_u32 v13, v33, 4, v13\nv_lshl_add_u32 v13, v34, 3, v13\nv_add_u32 v13, {REGB}, v13")
        e(f"v_add_u32 v14, {UO + 512 - 24}, v15")
        e(f"v_and_b32 v34, 1, v32\nv_lshlrev_b32 v34, 9, v34\nv_lshl_add_u32 v34, v31, 5, v34\nv_lshrrev_b32 v32, 1, v32\nv_lshl_add_u32 v17, v32, 4, v34")
        e(f"s_lshl_b32 s86, {CH}, 12\ns_add_u32 s86, s86, {YT}\ns_lshl_b32 s89, {CH}, 2\ns_add_u32 s89, s89, {F3}")
    def inverse(self, p):
        e = p.e
        S2, M2, SF, MF = 24, 40, 56, 88
        e(f"v_lshrrev_b32 v20, 4, {LANE}\nv_lshlrev_b32 v20, 10, v20\nv_and_b32 v21, 3, {LANE}\nv_lshl_add_u32 v20, v21, 4, v20\nv_and_b32 v21, 12, {LANE}")
        e(f"s_add_u32 s51, {REGB}, {UO+512}")
        for q in range(4):
            e(f"v_add_u32 v22, {16*(q&1)}, v21\nv_bfe_u32 v22, s{74 + q//2}, v22, 4\nv_lshl_add_u32 v{4+q}, v22, 6, v20\nv_add_u32 v{120+q}, s51, v{4+q}")
        e(f"s_mov_b32 s84, {STAT}\ns_mov_b32 s85, {STAT+4096}")
        self.spin(p, Y_F1, 1, 22, sleep=2)
        for q in range(4):
            e(f"buffer_load_dwordx4 {v(S2+4*q,4)}, v{4+q}, {SWS}, s84 offen sc1", "u")
            e(f"buffer_load_dwordx4 {v(M2+4*q,4)}, v{4+q}, {SWS}, s85 offen sc1", "u")
        p.wvm("u")
        self.unpack(p, S2, SF, 16); self.unpack(p, M2, MF, 16)
        self.stamp(p)
        for q in range(4):
            self.spin(p, Y_U + q, 4, 22, sleep=(2 if q < 3 else 1))
            if q == 3: self.stamp(p)
            e(f"ds_read_b128 v[24:27], v{120+q}", f"ur{q}")
            p.wlg(f"ur{q}")
            self.unpack(p, 24, 40, 4)
            for i in range(8): e(f"v_fma_f32 v{40+i}, v{40+i}, v{SF+8*q+i}, v{MF+8*q+i}")
            for i in range(4): e(f"v_cvt_pk_bf16_f32 v{48+i}, v{40+2*i}, v{41+2*i}")
            e(f"ds_write_b128 v{120+q}, v[48:51]", "uw")
    def zcode(self):
        p = Prog(); e = p.e
        RAWZ, P, W = 96, 103, 56
        def rd(it):
            e(f"ds_read_b64 {v(RAWZ,2)}, v14 offset:{1024*it}\nds_read_b128 {v(RAWZ+2,4)}, v14 offset:{1024*it+8}\nds_read_b64 {v(RAWZ+6,2)}, v14 offset:{1024*it+24}", f"zr{it}")
        rd(0); k = 0
        for it in range(3):
            p.wlg(f"zr{it}")
            self.unpack(p, RAWZ, P + 1, 8)
            if it < 2: rd(it + 1)
            for j in range(2, 17 if it < 2 else 15): e(f"v_add_f32 v{P+j}, v{P+j}, v{P+j-1}")
            for h, zo in ((2, Z5O), (1, Z3O), (4, Z9O), (3, Z7O))[:(4 if it < 2 else 2)]:
                for t in range(8):
                    if t + 4 - h == 0: e(f"v_mov_b32 v{W}, v{P+9}")
                    else: e(f"v_sub_f32 v{W+t}, v{P+t+5+h}, v{P+t+4-h}")
                o = 120 + 4 * (k & 1); k += 1
                for i in range(4): e(f"v_cvt_pk_bf16_f32 v{o+i}, v{W+2*i}, v{W+2*i+1}")
                e(f"ds_write_b128 v15, {v(o,4)} offset:{zo + 16 + 1024*it}", "zw")
        return p
    def conv(self, p):
        e = p.e
        YO, ACC, RG, NS = 17, 64, 24, 8
        jobs = []
        for ph in range(8):
            for d in range(8):
                l = [(d + mu, 4 * (8 * mu + ph), False) for mu in range(2) if d + mu <= 7]
                if ph == 0 and d <= 5: l.append((d + 2, 64, False))
                if ph == 0 and d <= 3: l.append((d + 4, 68, False))
                jobs.append((lambda r, d=d, ph=ph: [f"ds_read_b128 {v(r,4)}, v16 offset:{512*d + (7-ph)*64}"], l))
        nF = len(jobs)
        for st in range(4):
            jobs.append((lambda r, st=st: [f"ds_read_b64_tr_b16 {v(r,2)}, v13 offset:{Z9O + 512*st}", f"ds_read_b64_tr_b16 {v(r+2,2)}, v13 offset:{Z9O + 512*st + 64}"],
                         [(I, 96 + 4 * (st - I + 7), True) for I in range(4, 8) if st <= I - 4]))
        for st in range(12):
            jobs.append((lambda r, st=st: [f"ds_read_b64_tr_b16 {v(r,2)}, v12 offset:{Z5O + 256*st}", f"ds_read_b64_tr_b16 {v(r+2,2)}, v12 offset:{Z5O + 256*st + 32}"],
                         [(I, 72 + 4 * (st - 2 * I + 8), True) for I in range(2, 8) if 2 * I - 8 <= st <= 2 * I - 3]))
        assert sum(len(j[1]) for j in jobs) == 170
        first = set()
        def load(q, n):
            for t in jobs[n][0](RG + 4 * (n % NS)): q.e(t, f"cj{n}")
        def run(q, n):
            q.wlg(f"cj{n}")
            r = v(RG + 4 * (n % NS), 4)
            for i, (I, kf, dA) in enumerate(jobs[n][1]):
                acc = v(ACC + 4 * I, 4); src = acc if I in first else "0"; first.add(I)
                q.e(f"v_mfma_f32_16x16x32_bf16 {acc}, {r if dA else a(kf,4)}, {a(kf,4) if dA else r}, {src}")
                if i == 0 and n >= 1 and n - 1 + NS < len(jobs): load(q, n - 1 + NS)
        for n in range(NS): load(p, n)
        if self.o["cwait"]: self.spin(p, Y_EPI, self.o["cwait"], 22, sleep=1)
        e(f"s_setprio {self.o['cprio']}")
        self.stamp(p)
        cut = nF - NS
        q = Prog()
        for n in range(cut): run(q, n)
        z = self.zcode()
        sides = []
        for it in z.items:
            b = Prog(); b.items = [it]; sides.append(b)
        p.ext(interleave(q, sides))
        for n in range(cut, len(jobs)): run(p, n)
        for k in range(4):
            o = 100 + 4 * k
            for i in range(4): e(f"v_cvt_pk_bf16_f32 v{o+i}, v{ACC+8*k+2*i}, v{ACC+8*k+2*i+1}")
            e(f"v_permlane16_swap_b32 v{o}, v{o+2}\nv_permlane16_swap_b32 v{o+1}, v{o+3}")
            e(f"buffer_store_dwordx4 {v(o,4)}, v{YO}, {SWS}, s86 offen offset:{1024*k} sc1", "ys")
        self.stamp(p)
        e("s_waitcnt vmcnt(0)")
        self.flag_store(p, "s89")
    def convw(self):
        self.role = "conv"
        p = Prog(); e = p.e
        e(f"s_cmp_ge_u32 s14, {NCH}\ns_cbranch_scc1 L_end\ns_setprio {self.o['kprio']}")
        self.stamp(p)
        if not self.o.get("skip_kgen"): self.kgen(p)
        else: self.stamp(p)
        self.stamp(p)
        self.conv_setup(p)
        self.inverse(p)
        self.conv(p)
        self.finish(p)
        return p

    def build(self):
        p = Prog(); self.prologue(p)
        p.ext(self.main())
        body = finalize(p)
        q = Prog(); q.e("L_aux:"); self.aux_start(q); self.ln(q)
        q.e(f"s_cmp_eq_u32 {WV}, 7\ns_cbranch_scc1 L_serv"); q.ext(self.convw())
        body += finalize(q)
        q = Prog(); q.e("L_serv:"); q.ext(self.serv()); q.e("L_end:\nL_last:\ns_endpgm")
        body += finalize(q)
        body = body.replace("@", "")
        ref = open("cdna_kernels/" + NAME + ".s.ref").read()
        head = [l for l in ref.split("\n") if l.startswith(";") and "@launch" not in l]
        k = NAME + "_kernel"
        s = "\n".join(head) + f"\n; @launch grid=(256,1,1) block=(512,1,1) lds={LDS_BYTES}\n"
        s += f'.amdgcn_target "amdgcn-amd-amdhsa--gfx950"\n.text\n.globl {k}\n.p2align 8\n.type {k},@function\n{k}:\n'
        s += body
        s += f""".section .rodata,"a"
.p2align 6
.amdhsa_kernel {k}
  .amdhsa_next_free_vgpr 256
  .amdhsa_next_free_sgpr 102
  .amdhsa_accum_offset 128
  .amdhsa_group_segment_fixed_size 0
  .amdhsa_kernarg_size 136
  .amdhsa_user_sgpr_count 2
  .amdhsa_user_sgpr_kernarg_segment_ptr 1
  .amdhsa_system_sgpr_workgroup_id_x 1
.end_amdhsa_kernel
"""
        return s

if __name__ == "__main__":
    out = sys.argv[1]
    kw = eval("dict(" + (sys.argv[2] if len(sys.argv) > 2 else "") + ")")
    open(out, "w").write(G(**kw).build())
```

```python
import sys, struct
from asmlib import Prog, interleave, finalize

NAME = "parallel_sum__ssm_conv_s4__mixer_token_mlp__prompt"
F1, F3, STAT, TM, F2 = 0x1000, 0x3000, 0x4000, 0x8000, 0x50000
HB, GB, YT, WSEND = 0x80000, 0x300000, 0x4E0000, 0x760000
RINGW, RS = 28672, 7
PT = 1344
REG0, REGSZ = 0, 14976
SYNC = 3 * REGSZ
RING0 = 45056
KCO, R0O, R1O, Q2O, Q3O = 32, 1408, 1408 + 1344, 4096, 4608
Z5O, Z3O, Z9O, Z7O, UO = 0, 3104, 6208, 8288, 10368
LNT = REG0 + 8704
KP = 272
LDS_BYTES = 163840
assert SYNC + 128 <= RING0 and RING0 + 4 * RINGW <= LDS_BYTES
Y_EPI = 3
Y_LN, Y_F1, Y_PART, Y_PUB, Y_P1, Y_G, Y_P2, Y_F2, Y_P3, Y_F3, Y_TAG, Y_U = 0, 1, 2, 4, 5, 6, 7, 8, 9, 10, 11, 12

def fbits(x): return "0x%08x" % struct.unpack("<I", struct.pack("<f", x))[0]
def bf16r(l):
    u = struct.unpack("<I", struct.pack("<f", float(l)))[0]
    u = ((u + 0x7FFF + ((u >> 16) & 1)) >> 16) << 16
    return int(struct.unpack("<f", struct.pack("<I", u))[0])
def ci(l):
    v = bf16r(l)
    if v <= 256: return v
    if v <= 512: return 256 + (v - 256) // 2
    if v <= 1024: return 384 + (v - 512) // 4
    return 512 + (v - 1024) // 8

WG, WV, XCD, IDX, DT, FT, DT2, ST2, TAG, ROT1, ROT2, CH = "s2", "s3", "s4", "s5", "s6", "s7", "s8", "s9", "s10", "s11", "s12", "s13"
SUB, C0, NCH = "s97", "s98", "s99"
SX, SW1, SW2, SOUT, SWS = "s[52:55]", "s[56:59]", "s[60:63]", "s[64:67]", "s[68:71]"
RINGB, REGB = "s73", "s77"
VSY, LANE, L16, L4, VTAG, VZ, VDBG = "v0", "v1", "v2", "v3", "v9", "v10", "v11"

def v(i, n=1): return f"v{i}" if n == 1 else f"v[{i}:{i+n-1}]"
def a(i, n=1): return f"a{i}" if n == 1 else f"a[{i}:{i+n-1}]"

def groups_of(prog):
    groups = []
    for it in prog.items:
        prev = groups[-1][-1][0] if groups else None
        if isinstance(prev, str) and (prev.startswith(("s_add_u32 m0", "s_cmp", "s_sub_u32 s51", "s_mov_b64 exec, s", "s_mov_b64 exec, 1", "ds_write_b128 v125", "ds_add"))):
            groups[-1].append(it)
        else: groups.append([it])
    return groups

def make_perm(n, nw, first, duty0):
    own = list(range(0, n, 2)); oth = list(range(1, n, 2))
    order = [[] for _ in range(nw)]; touched = {}
    pool = own[:]
    for pos in range(first):
        for j in range(nw):
            pass
    deal = [[] for _ in range(nw)]
    k = 0
    for pos in range(first):
        for j in range(nw):
            if pool: st = pool.pop(0)
            else: st = oth.pop(0)
            deal[j].append(st); touched[st] = pos
    rest = pool + oth
    duty = {}
    for i, st in enumerate(rest): duty[(duty0 + i, i % nw)] = st
    for j in range(nw): order[j] = list(deal[j])
    for pos in range(first, n):
        for j in range(nw):
            if (pos, j) in duty: touched[duty[(pos, j)]] = pos
        for j in range(nw):
            if (pos, j) in duty: order[j].append(duty[(pos, j)]); continue
            mine = {st for (pp, jj), st in duty.items() if jj == j and pp > pos}
            cand = [st for st in range(n) if st not in order[j] and st not in mine]
            cand.sort(key=lambda st: (touched.get(st, 99), (st - 2 * j) % n))
            order[j].append(cand[0])
    for o in order: assert sorted(o) == list(range(n)), o
    return order
def pack_perm(o):
    x = sum(st << (4 * i) for i, st in enumerate(o)); return x & 0xffffffff, x >> 32

class G:
    def __init__(self, debug=False, **kw):
        self.debug = debug
        self.o = dict(P1=6, D1=13, PS1=11, lead1=4, xk=8, P2=4, D2=11, PS2=9, lead2=4, wflag="", xflag="", nsp=30, thr=2,
                      ytrig=5, ychk=10, pk=1, psleep=4, psleep2=8, kprio=0, cprio=3, ipf=2, ns1=12, ns2=15, perm=1, duty1=3, duty2=3, oflag='', eb=2, pfirst=1, free1=2, pre1=0, cns=22, nthr=6, pflag='nt', cwait=4)
        self.o.update(kw)
        self.nst = {}; self.nlab = 0; self.role = None
    def stamp(self, p):
        if not self.debug: return
        n = self.nst.get(self.role, 0)
        p.e(("s_memtime" if self.o.get("cyc") else "s_memrealtime") + " s[82:83]\ns_waitcnt lgkmcnt(0)")
        p.e(f"v_writelane_b32 {VDBG}, s82, {n}")
        self.nst[self.role] = n + 1
    def label(self, s):
        self.nlab += 1; return f"L{s}_{self.nlab}"
    def flag_store(self, p, soff, pre=""):
        p.e(f"s_mov_b64 exec, 1\n{pre}buffer_store_dword {VTAG}, {VZ}, {SWS}, {soff} offen sc1\ns_mov_b64 exec, -1")
    def poll(self, p, voff, soff, tmp, wide=False, sleep=0):
        l = self.label("poll"); d = self.label("polld"); f = self.label("pollf")
        p.e("s_mov_b32 s78, 0")
        if sleep: p.e(f"s_branch {f}")
        p.e(f"{l}:")
        if sleep: p.e(f"s_sleep {sleep}\n{f}:")
        if wide:
            p.e(f"buffer_load_dwordx4 {v(tmp,4)}, {voff}, {SWS}, {soff} offen sc1")
            p.e("s_add_u32 s78, s78, 1\ns_waitcnt vmcnt(0)")
            for i in range(4): p.e(f"v_xor_b32 {v(tmp+i)}, {TAG}, {v(tmp+i)}")
            p.e(f"v_or3_b32 {v(tmp)}, {v(tmp)}, {v(tmp+1)}, {v(tmp+2)}\nv_or_b32 {v(tmp)}, {v(tmp)}, {v(tmp+3)}")
            p.e(f"v_cmp_ne_u32 vcc, 0, {v(tmp)}")
        else:
            p.e(f"buffer_load_dword {v(tmp)}, {voff}, {SWS}, {soff} offen sc1")
            p.e("s_add_u32 s78, s78, 1\ns_waitcnt vmcnt(0)")
            p.e(f"v_cmp_ne_u32 vcc, {TAG}, {v(tmp)}")
        p.e(f"s_cmp_gt_u32 s78, 0x8000\ns_cbranch_scc1 {d}\ns_cbranch_vccnz {l}")
        p.e(f"{d}:")
    def sig(self, p, word, tmp):
        p.e(f"v_mov_b32 v{tmp}, 1\ns_mov_b64 exec, 1\nds_add_u32 {VSY}, v{tmp} offset:{4*word}\ns_mov_b64 exec, -1", "sig")
    def spin(self, p, word, n, tmp, sleep=0):
        l = self.label("spin"); d = self.label("spind"); f = self.label("spinf")
        p.e("s_mov_b32 s78, 0")
        if sleep: p.e(f"s_branch {f}")
        p.e(f"{l}:")
        if sleep: p.e(f"s_sleep {sleep}\n{f}:")
        p.e(f"ds_read_b32 v{tmp}, {VSY} offset:{4*word}\ns_add_u32 s78, s78, 1\ns_waitcnt lgkmcnt(0)\nv_readfirstlane_b32 s79, v{tmp}")
        p.e(f"s_cmp_gt_u32 s78, 0x40000\ns_cbranch_scc1 {d}\ns_cmp_lt_u32 s79, {n}\ns_cbranch_scc1 {l}")
        p.e(f"{d}:")
    def mktag(self, p):
        p.e(f"s_mul_i32 {TAG}, {TAG}, 0x9E3779B1\ns_add_u32 {TAG}, {TAG}, 0x7F4A7C15\nv_mov_b32 {VTAG}, {TAG}")
    def finish(self, p):
        e = p.e
        if self.debug:
            e("s_waitcnt vmcnt(0)")
            self.stamp(p)
            e(f"s_lshl_b32 s50, {WG}, 3\ns_add_u32 s50, s50, {WV}\ns_lshl_b32 s50, s50, 7\ns_add_u32 s50, s50, {TM}")
            e(f"s_mov_b32 exec_hi, 0\nbuffer_store_dword {VDBG}, {L4}, {SWS}, s50 offen")
        e("s_endpgm")
    def srd(self, p, d, lo, size): p.e(f"s_mov_b32 s{d}, s{lo}\ns_mov_b32 s{d+1}, s{lo+1}\ns_mov_b32 s{d+2}, {size}\ns_mov_b32 s{d+3}, 0x20000")
    def unpack(self, p, src, dst, n):
        for i in range(n):
            p.e(f"v_lshlrev_b32 v{dst+2*i}, 16, v{src+i}\nv_and_b32 v{dst+2*i+1}, 0xffff0000, v{src+i}")
    def rbf(self, p, r):
        p.e(f"v_cvt_pk_bf16_f32 v{r}, v{r}, v{r}\nv_lshlrev_b32 v{r}, 16, v{r}")

    def prologue(self, p):
        e = p.e
        e(f"s_cmp_ge_u32 {WG}, 256\ns_cbranch_scc1 L_end")
        e("s_load_dwordx16 s[16:31], s[0:1], 0\ns_load_dwordx16 s[32:47], s[0:1], 64\ns_load_dwordx2 s[48:49], s[0:1], 128")
        e(f"v_and_b32 {LANE}, 63, v0\nv_lshrrev_b32 v12, 6, v0\nv_readfirstlane_b32 {WV}, v12")
        if self.o["ipf"]:
            n = self.o["ipf"]
            e(f"s_cmp_lg_u32 {WV}, 7\ns_cbranch_scc1 L_noipf")
            e(f"s_getpc_b64 s[90:91]\nL_pc:\ns_bfe_u32 s51, {WG}, {(n << 16) | 3:#x}\ns_lshl_b32 s51, s51, 13")
            e(f"v_lshl_add_u32 v112, {LANE}, 7, s51\nv_min_u32 v112, L_last-L_pc, v112")
            e("v_mov_b32 v113, s91\nv_add_co_u32 v112, vcc, s90, v112\nv_addc_co_u32 v113, vcc, 0, v113, vcc")
            e("@global_load_dword v114, v[112:113], off\nL_noipf:")
        e(f"v_lshlrev_b32 {L16}, 4, {LANE}\nv_lshlrev_b32 {L4}, 2, {LANE}\nv_mov_b32 {VZ}, 0\nv_mov_b32 {VDBG}, 0\nv_mov_b32 {VSY}, {SYNC}")
        e(f"s_and_b32 {XCD}, {WG}, 7\ns_lshr_b32 {IDX}, {WG}, 3\ns_lshr_b32 {SUB}, {XCD}, 1\ns_and_b32 s14, {XCD}, 1")
        e(f"s_min_u32 s15, {IDX}, 29\ns_mul_i32 {FT}, s15, 52\ns_lshr_b32 {FT}, {FT}, 8")
        e(f"s_mul_i32 s51, {FT}, 5\ns_sub_u32 {DT}, s15, s51")
        if self.o["perm"]: P1_ = make_perm(16, 5, 2, self.o["duty1"])
        else: P1_ = [[(((2 * j * 205) >> 7) + i) % 16 for i in range(16)] for j in range(5)]
        for j, o_ in enumerate(P1_):
            lo, hi = pack_perm(o_)
            if j == 0: e(f"s_mov_b32 s74, {lo:#x}\ns_mov_b32 s75, {hi:#x}")
            else: e(f"s_cmp_eq_u32 {DT}, {j}\ns_cselect_b32 s74, {lo:#x}, s74\ns_cselect_b32 s75, {hi:#x}, s75")
        e("s_mul_i32 s51, s14, 0x11111111\ns_xor_b32 s74, s74, s51\ns_xor_b32 s75, s75, s51")
        e(f"s_mul_i32 {C0}, {FT}, 3\ns_min_u32 {C0}, {C0}, 14\ns_cmp_lt_u32 {FT}, 4\ns_cselect_b32 {NCH}, 3, 2\ns_cmp_ge_u32 {IDX}, 30\ns_cselect_b32 {NCH}, 0, {NCH}")
        e(f"s_mul_i32 s51, s14, 5\ns_add_u32 {DT}, {DT}, s51\ns_mul_i32 s51, {SUB}, 6\ns_add_u32 {FT}, {FT}, s51")
        e(f"s_and_b32 {DT2}, {IDX}, 3\ns_lshr_b32 {ST2}, {IDX}, 2")
        e(f"s_lshl2_add_u32 {DT2}, s14, {DT2}\ns_lshl3_add_u32 {ST2}, {SUB}, {ST2}")
        e(f"s_cmp_ge_u32 {WV}, 4\ns_cbranch_scc1 L_aux")

    def kk(self, p, g, ks, dst, stride, base):
        p.e(f"s_bfe_u32 {dst}, s{(74 if g == 1 else 80) + ks // 8}, {(4 << 16) | (4 * (ks % 8)):#x}")
        p.e(f"s_mul_i32 {dst}, {dst}, {stride}")
        if base: p.e(f"s_add_u32 {dst}, {dst}, {base}")
    def slot(self, g, ks): return ((ks + (3 if g == 2 else 0)) % RS) * 4096
    def throttle(self, p):
        l = self.label("thr")
        p.e(f"s_cmp_lg_u32 s85, 0\ns_cbranch_scc1 {l}")
        p.e(f"@ds_read_b32 v20, {VSY} offset:{4*Y_PUB}\n@s_waitcnt vmcnt({self.o['thr']}) lgkmcnt(0)\nv_readfirstlane_b32 s85, v20\ns_nop 0\ns_lshr_b32 s85, s85, 1")
        p.e(f"{l}:")
    def dma(self, g, ks, thr=False):
        p = Prog()
        rs, vo, srd, base = (3072, 4, SW1, "s84") if g == 1 else (4096, 12, SW2, "s92")
        self.kk(p, g, ks, "s72", 32 * rs, base)
        for q in range(4):
            if thr and q % 2 == 0: self.throttle(p)
            p.e(f"s_add_u32 m0, {RINGB}, {self.slot(g, ks) + q * 1024}")
            p.e(f"buffer_load_dwordx4 v{vo + (q & 1)}, {srd}, s72 offen {self.o['wflag']} lds", f"w{g}_{ks}")
            if q < 3: p.e(f"s_add_u32 s72, s72, {8*rs}")
        return p
    NB = {1: 6, 2: 4}
    def tr(self, g, ks):
        p = Prog()
        r = 16 * (ks % self.NB[g]); o = self.slot(g, ks)
        p.wvm(f"w{g}_{ks}")
        for ss in range(4):
            p.e(f"ds_read_b64_tr_b16 {a(r+4*ss,2)}, v{14+ss} offset:{o}", f"t{g}_{ks}")
            p.e(f"ds_read_b64_tr_b16 {a(r+4*ss+2,2)}, v{14+ss} offset:{o+512}", f"t{g}_{ks}")
        return p
    def main_start(self, p):
        e = p.e
        e("s_setprio 2")
        e(f"s_mul_i32 {RINGB}, {WV}, {RINGW}\ns_add_u32 {RINGB}, {RINGB}, {RING0}\ns_mov_b32 s85, 0")
        e(f"v_lshrrev_b32 v20, 3, {LANE}\nv_and_b32 v21, 7, {LANE}\nv_and_b32 v22, 2, v20\nv_xor_b32 v21, v21, v22\nv_lshlrev_b32 v21, 4, v21")
        e("v_mul_u32_u24 v4, 3072, v20\nv_add_u32 v4, v4, v21\nv_xor_b32 v5, 64, v4\nv_lshl_add_u32 v12, v20, 12, v21\nv_xor_b32 v13, 64, v12")
        e(f"s_mul_i32 s84, {WV}, {512*3072}\ns_lshl_b32 s51, {FT}, 7\ns_add_u32 s84, s84, s51")
        e(f"s_mul_i32 s92, {WV}, {384*4096}\ns_lshl_b32 s51, {ST2}, 7\ns_add_u32 s92, s92, s51")
        e(f"v_lshrrev_b32 v104, 5, {LANE}\nv_mul_u32_u24 v105, 1280, v104\nv_and_b32 v106, 31, {LANE}")
        e("v_lshl_add_u32 v107, v106, 4, v105\nv_lshl_add_u32 v108, v106, 3, v105")
        e(f"s_lshl_b32 s50, {WG}, 3\ns_lshl1_add_u32 s50, {WV}, s50\ns_mul_i32 s50, s50, 1280")
        e("s_waitcnt lgkmcnt(0)")
        self.srd(p, 52, 16, 2621440)
        xf = self.o["xflag"]
        e(f"buffer_load_dwordx4 v[20:23], v107, {SX}, s50 offen {xf}", "x")
        e(f"buffer_load_dwordx4 v[24:27], v107, {SX}, s50 offen offset:512 {xf}", "x")
        e(f"buffer_load_dwordx2 v[28:29], v108, {SX}, s50 offen offset:1024 {xf}", "x")
        e("s_barrier")
        self.srd(p, 56, 36, 6291456); self.srd(p, 60, 40, 6291456); self.srd(p, 64, 44, 2621440); self.srd(p, 68, 48, WSEND)
        self.stamp(p)
    def main_setup2(self, p):
        e = p.e
        e(f"v_bfe_u32 v20, {LANE}, 2, 2\nv_and_b32 v21, 3, {LANE}\nv_lshrrev_b32 v22, 4, {LANE}\nv_and_b32 v23, 15, {LANE}")
        e("v_lshlrev_b32 v24, 10, v22\nv_lshl_add_u32 v24, v20, 7, v24\nv_lshl_add_u32 v24, v21, 3, v24")
        e(f"v_lshrrev_b32 v20, 1, v20\nv_and_b32 v21, 1, v22\nv_lshl_or_b32 v20, v21, 1, v20\nv_xor_b32 v20, {WV}, v20\nv_lshlrev_b32 v20, 5, v20")
        e(f"v_add3_u32 v14, v24, v20, {RINGB}\nv_xor_b32 v15, 32, v14\nv_xor_b32 v16, 64, v14\nv_xor_b32 v17, 0x60, v14")
        e(f"s_lshl_b32 s51, {FT}, 7\ns_lshl_b32 s15, {WV}, 5\ns_add_u32 s51, s51, s15\nv_lshl_add_u32 v24, v22, 3, s51")
        e("global_load_dwordx2 v[126:127], v24, s[38:39]", "b1")
        e(f"v_mul_u32_u24 v19, 10240, v22\nv_lshl_add_u32 v19, v23, 4, v19\ns_lshl_b32 s51, {SUB}, 8\nv_add_u32 v120, s51, v19")
        e("v_xor_b32 v121, 0x100, v120\nv_xor_b32 v122, 0x200, v120\nv_xor_b32 v123, 0x300, v120")
        e(f"v_lshrrev_b32 v24, 1, v22\nv_mul_u32_u24 v24, 10240, v24\nv_lshl_add_u32 v24, v23, 4, v24\nv_xor_b32 v25, {SUB}, v21\nv_lshl_add_u32 v6, v25, 8, v24\nv_xor_b32 v7, 0x200, v6")
        e(f"v_subrev_u32 v124, {C0}, v23\nv_mul_u32_u24 v124, {REGSZ}, v124\nv_lshl_add_u32 v124, v22, 4, v124")
        e(f"s_lshl_b32 s51, {WV}, 10\ns_add_u32 s51, s51, {REG0 + UO + 512}\nv_add_u32 v124, s51, v124")
        e(f"s_bfm_b32 s100, {NCH}, {C0}\ns_lshl_b32 s51, s100, 16\ns_or_b32 s100, s100, s51\ns_mov_b32 s101, s100")
        e("v_mul_u32_u24 v18, 1280, v23\nv_lshl_add_u32 v18, v22, 3, v18\nv_lshlrev_b32 v115, 12, v23\nv_lshl_add_u32 v115, v21, 4, v115")
        e(f"s_lshl_b32 s94, {ST2}, 6\ns_lshl_b32 s51, {WV}, 4\ns_add_u32 s94, s94, s51\ns_lshl_b32 s95, s94, 1\nv_lshl_add_u32 v8, v23, 1, s95")
        e(f"s_mul_i32 s94, s94, 1280\ns_mul_i32 s51, {DT2}, 160\ns_add_u32 s94, s94, s51")
        e("v_lshlrev_b32 v24, 3, v22\nv_sub_u32 v24, v23, v24\nv_and_b32 v25, 1, v24\nv_lshlrev_b32 v25, 4, v25\nv_mov_b32 v26, 0x3f80\nv_lshlrev_b32 v25, v25, v26\nv_ashrrev_i32 v24, 1, v24")
        for q in range(4): e(f"v_cmp_eq_u32 vcc, {q}, v24\nv_cndmask_b32 v{116+q}, 0, v25, vcc")
        for q in range(4): e(f"v_cmp_eq_i32 vcc, {q-8}, v24\nv_cndmask_b32 v{104+q}, 0, v25, vcc")
        e("v_lshl_add_u32 v108, v22, 3, v18")
        e("global_load_ushort v114, v8, s[42:43]", "b1")
        if self.o["perm"]: P2_ = make_perm(12, 4, 2, self.o["duty2"])
        else: P2_ = [[(3 * j + i) % 12 for i in range(12)] for j in range(4)]
        e(f"s_and_b32 s15, {IDX}, 3")
        for j, o_ in enumerate(P2_):
            lo, hi = pack_perm(o_)
            if j == 0: e(f"s_mov_b32 s80, {lo:#x}\ns_mov_b32 s81, {hi:#x}")
            else: e(f"s_cmp_eq_u32 s15, {j}\ns_cselect_b32 s80, {lo:#x}, s80\ns_cselect_b32 s81, {hi:#x}, s81")
        e(f"s_and_b32 s51, {XCD}, 1\ns_mul_i32 s51, s51, 0x11111111\ns_xor_b32 s80, s80, s51\ns_xor_b32 s81, s81, s51")
        e(f"s_mul_i32 s86, {WV}, {64*10240}\ns_lshl_b32 s51, {DT}, 10\ns_add_u32 s86, s86, s51\ns_add_u32 s86, s86, {HB}")
    def acc1(self, t, ds): return [v(72 + 4 * ds, 4), v(88 + 4 * ds, 4), a(96 + 4 * ds, 4), a(112 + 4 * ds, 4)][t]
    def acc2(self, di, ss): return v(84 + 4 * di, 4) if ss == 0 else a(68 + 4 * (di * 3 + ss - 1), 4)

    def gemm_loop(self, p, g, nks, nf, ns, nd, nt, ld, mfma, extra):
        NB = self.NB[g]; n = nks * nf
        for i in range(ns): p.ext(ld(i))
        nl = ns
        for ks in range(nks):
            side = Prog()
            if nd < nks and nd - RS < nt:
                if nd >= RS: side.wlg(f"t{g}_{nd-RS}")
                side.ext(self.dma(g, nd)); nd += 1
            if nt < nks and nt < nd and nt - NB < ks:
                side.ext(self.tr(g, nt)); nt += 1
            pre, post = extra(ks)
            gs = groups_of(pre) + groups_of(side)
            p.wlg(f"t{g}_{ks}")
            gi = 0; tot = 3 * nf
            for di in range(nf):
                p.wvm(f"act{ks}_{di}")
                for ss in range(4):
                    p.e(mfma(ks, di, ss))
                    if ss == 0:
                        if nf * ks + di >= 1 and nl < n: p.ext(ld(nl)); nl += 1
                    else:
                        sl = di * 3 + ss
                        while gi < len(gs) and gi < (sl * len(gs) + tot - 1) // tot:
                            p.items.extend(gs[gi]); gi += 1
            assert gi == len(gs)
            p.ext(post)
        assert nl == n and nd == nks and nt == nks

    def gemm1(self, p):
        e = p.e; o = self.o
        HR, ns = 24, o['ns1']
        nd = o['free1']
        def more():
            nonlocal nd
            if nd >= RS: p.wlg(f"t1_{nd-RS}")
            p.ext(self.dma(1, nd, thr=nd < o['nthr'])); nd += 1
            if nd == o["PS1"]: self.sig(p, Y_P1, 20)
            if o.get("fine"): self.stamp(p)
        while nd < o["lead1"]: more()
        p.wvm("b1")
        for ds in range(4): self.unpack(p, 126, 72 + 4 * ds, 2)
        for j in range(o["P1"]):
            p.ext(self.tr(1, j))
            if j == 2 and not o.get('fine'): self.stamp(p)
            if nd < o["D1"]: more()
        while nd < o["D1"]:
            p.wvm(f"w1_{nd-o['lead1']}"); more()
        self.stamp(p)
        self.spin(p, Y_F1, 1, 20, sleep=1)
        e(f"ds_read_b32 {VTAG}, {VSY} offset:{4*Y_TAG}", "tag")
        self.stamp(p)
        def ld(i):
            ks, ds = divmod(i, 4); q = Prog()
            if ds == 0: self.kk(q, 1, ks, "s76", 40960, "s86")
            q.e(f"buffer_load_dwordx4 {v(HR + 4 * (i % ns), 4)}, v{120+ds}, {SWS}, s76 offen sc1", f"act{ks}_{ds}")
            return q
        def mfma(ks, ds, t):
            c = self.acc1(t, ds); src = "0" if (ks == 0 and t > 0) else c
            return f"v_mfma_f32_16x16x32_bf16 {c}, {a(16*(ks%6)+4*t,4)}, {v(HR + 4 * ((4*ks+ds) % ns), 4)}, {src}"
        def extra(ks):
            pre = Prog(); post = Prog()
            q = Prog(); self.kk(q, 1, ks, "s14", 64, None); q.e("v_add_u32 v125, s14, v124")
            q.e(f"s_mov_b64 exec, s[100:101]\nds_write_b128 v125, {v(HR + 4 * ((4 * ks) % ns), 4)}\ns_mov_b64 exec, -1", "uc")
            self._uc = q
            if ks % 4 == 3: self.sig(pre, Y_U + ks // 4, 20)
            if ks in (0, 5, 10): self.stamp(post)
            return pre, post
        def mfma_uc(ks, ds, t):
            s = mfma(ks, ds, t)
            if ds == 0 and t == 0: s = s + "\n" + "\n".join(x for x, _ in self._uc.items)
            return s
        self.gemm_loop(p, 1, 16, 4, ns, nd, o["P1"], ld, mfma_uc, extra)
        self.stamp(p)
    def gemm1_epi(self, p):
        e = p.e; RD = 24
        for ks in range(self.o["eb"]): p.ext(self.dma(2, ks))
        e(f"v_add_u32 v20, {RINGB}, {L16}")
        for t in range(1, 4):
            for ds in range(4): e(f"ds_write_b128 v20, {self.acc1(t, ds)} offset:{(t-1)*4096+ds*1024}", "r1w")
        self.sig(p, Y_PART, 21)
        for t in range(1, 4):
            e(f"s_xor_b32 s51, {WV}, {t}\ns_mul_i32 s51, s51, {RINGW}\ns_add_u32 s51, s51, {RING0 + (t-1)*4096}\nv_add_u32 v{20+t}, s51, {L16}")
        e(f"s_lshl_b32 s50, {FT}, 3\ns_lshl_b32 s51, {WV}, 1\ns_add_u32 s50, s50, s51\ns_mul_i32 s50, s50, 10240")
        e(f"s_lshl_b32 s51, {DT}, 10\ns_add_u32 s50, s50, s51\ns_add_u32 s86, s50, {GB}")
        e(f"s_mul_i32 s89, {DT}, 24\ns_add_u32 s89, s89, {FT}\ns_lshl_b32 s89, s89, 7\ns_add_u32 s89, s89, {F2}")
        c1 = -2 * 0.7978845608028654 * 1.4426950408889634; c3 = c1 * 0.044715
        e(f"s_mov_b32 s90, {fbits(c3)}\nv_mov_b32 v126, {fbits(c1)}")
        self.spin(p, Y_PART, 4, 20)
        for q in range(4):
            for t in range(3): e(f"ds_read_b128 {v(RD+16*t+4*q,4)}, v{21+t} offset:{q*1024}", f"r1r{q}")
        for pr in range(2):
            p.wlg(f"r1r{2*pr+1}")
            q = [(72 + 8 * pr + i, RD + 8 * pr + i, 88 + 8 * pr + i) for i in range(8)]
            for x, r, t in q: e(f"v_add_f32 v{x}, v{x}, v{r}\nv_add_f32 v{r+16}, v{r+16}, v{r+32}")
            for x, r, t in q: e(f"v_add_f32 v{x}, v{x}, v{r+16}")
            for x, r, t in q: e(f"v_mul_f32 v{t}, v{x}, v{x}")
            for x, r, t in q: e(f"v_fma_f32 v{t}, v{t}, s90, v126")
            for x, r, t in q: e(f"v_mul_f32 v{t}, v{t}, v{x}")
            for x, r, t in q: e(f"v_exp_f32 v{t}, v{t}")
            for x, r, t in q: e(f"v_add_f32 v{t}, 1.0, v{t}")
            for x, r, t in q: e(f"v_rcp_f32 v{t}, v{t}")
            for x, r, t in q: e(f"v_mul_f32 v{t}, v{t}, v{x}")
            o = 56 + 8 * pr
            for i in range(4): e(f"v_cvt_pk_bf16_f32 v{o+i}, v{q[2*i][2]}, v{q[2*i+1][2]}")
            e(f"v_permlane16_swap_b32 v{o}, v{o+2}\nv_permlane16_swap_b32 v{o+1}, v{o+3}")
            e(f"buffer_store_dwordx4 {v(o,4)}, v{6+pr}, {SWS}, s86 offen sc1", "gs")
        self.sig(p, Y_EPI, 20)
        self.stamp(p)
        for ks in range(min(self.o["eb"], self.o["P2"])): p.ext(self.tr(2, ks))
        e("s_waitcnt vmcnt(0)")
        l = self.label("nolast")
        e(f"v_mov_b32 v20, 1\ns_mov_b64 exec, 1\nds_add_rtn_u32 v20, {VSY}, v20 offset:{4*Y_G}\ns_mov_b64 exec, -1\ns_waitcnt lgkmcnt(0)\nv_readfirstlane_b32 s79, v20")
        e(f"s_cmp_lg_u32 s79, 3\ns_cbranch_scc1 {l}")
        self.flag_store(p, "s89", "@")
        e(f"{l}:")
        self.stamp(p)
    def gemm2(self, p, spare):
        e = p.e; o = self.o
        GR, ns = 24, o['ns2']
        e(f"s_mul_i32 s86, {WV}, {48*10240}\ns_mul_i32 s51, {DT2}, 1280\ns_add_u32 s86, s86, s51\ns_add_u32 s86, s86, {GB}")
        e(f"s_mul_i32 s88, {DT2}, {80*4096}\ns_add_u32 s88, s88, s95\ns_add_u32 s88, s88, {YT}")
        nd = o["eb"]; nt = min(o["eb"], o["P2"])
        e("v_lshlrev_b32 v114, 16, v114")
        for i in range(20): e(f"v_mov_b32 v{84+i}, v114")
        self.spin(p, Y_G, 4, 20)
        def more():
            nonlocal nd
            if nd >= RS: p.wlg(f"t2_{nd-RS}")
            p.ext(self.dma(2, nd)); nd += 1
            if nd == o["PS2"]: self.sig(p, Y_P2, 20)
        while nd < min(o["D2"], nt + o["lead2"]): more()
        while nt < o["P2"]:
            p.ext(self.tr(2, nt)); nt += 1
            if nd < o["D2"]: more()
        while nd < o["D2"]:
            p.wvm(f"w2_{nd-o['lead2']}"); more()
        self.stamp(p)
        self.spin(p, Y_F2, 1, 20, sleep=1)
        self.stamp(p)
        def ld(i):
            ks, di = divmod(i, 5); q = Prog()
            if di == 0: self.kk(q, 2, ks, "s76", 40960, "s86")
            q.e(f"buffer_load_dwordx4 {v(GR + 4 * (i % ns), 4)}, v19, {SWS}, s76 offen offset:{256*di} sc1", f"act{ks}_{di}")
            return q
        def mfma(ks, di, ss):
            c = self.acc2(di, ss); src = "0" if (ks == 0 and ss > 0) else c
            return f"v_mfma_f32_16x16x32_bf16 {c}, {v(GR + 4 * ((5*ks+di) % ns), 4)}, {a(16*(ks%4)+4*ss,4)}, {src}"
        yk = o["ychk"]; assert yk >= 9
        xr = lambda j: [v(120, 4), v(124, 4), v(110, 4)][j]
        def extra(ks):
            pre = Prog(); post = Prog()
            if ks == o["ytrig"]: self.sig(post, Y_P3, 20)
            if ks == o["xk"]:
                for j in range(3): post.e(f"buffer_load_dwordx4 {xr(j)}, v108, {SX}, s94 offen offset:{64*j}", f"x{j}")
            if ks == yk:
                self.spin(post, Y_F3, 1, 20, sleep=2)
                for di in range(5):
                    post.e(f"buffer_load_dwordx4 {a(4*di,4)}, v115, {SWS}, s88 offen sc1", f"y{di}")
                    post.e("s_add_u32 s88, s88, 65536")
            if ks in (0, 3, 7): self.stamp(post)
            return pre, post
        self.gemm_loop(p, 2, 12, 5, ns, nd, nt, ld, mfma, extra)
        self.stamp(p)
        e(f"v_add_u32 v20, {RINGB}, {L16}")
        for t in range(1, 4):
            for di in range(5): e(f"ds_write_b128 v20, {self.acc2(di,t)} offset:{(t-1)*5120+di*1024}", "r2w")
        for t in range(1, 4):
            e(f"s_xor_b32 s51, {WV}, {t}\ns_mul_i32 s51, s51, {RINGW}\ns_add_u32 s51, s51, {RING0 + (t-1)*5120}\nv_add_u32 v{20+t}, s51, {L16}")
        for di in range(5):
            p.wvm(f"x{di//2}")
            e(f"v_mfma_f32_16x16x32_bf16 {self.acc2(di,0)}, {v(104 if di & 1 else 116, 4)}, {xr(di//2)}, {self.acc2(di,0)}")
        for di in range(5):
            p.wvm(f"y{di}")
            e(f"v_mfma_f32_16x16x32_bf16 {self.acc2(di,0)}, {a(4*di,4)}, v[116:119], {self.acc2(di,0)}")
        e("s_waitcnt lgkmcnt(0)\ns_barrier")
        for di in range(5):
            for t in range(3): e(f"ds_read_b128 {v(GR+12*di+4*t,4)}, v{21+t} offset:{di*1024}", f"r2r{di}")
        for di in range(5):
            c = 84 + 4 * di; r = GR + 12 * di
            p.wlg(f"r2r{di}")
            for hq in range(2): e(f"v_pk_add_f32 {v(r+2*hq,2)}, {v(r+2*hq,2)}, {v(r+4+2*hq,2)}\nv_pk_add_f32 {v(c+2*hq,2)}, {v(c+2*hq,2)}, {v(r+8+2*hq,2)}")
            for hq in range(2): e(f"v_pk_add_f32 {v(c+2*hq,2)}, {v(c+2*hq,2)}, {v(r+2*hq,2)}")
            for hq in range(2): e(f"v_cvt_pk_bf16_f32 v{104+2*di+hq}, v{c+2*hq}, v{c+2*hq+1}")
            e(f"buffer_store_dwordx2 {v(104+2*di,2)}, v18, {SOUT}, s94 offen offset:{32*di} {o['oflag']}", "os")
        self.stamp(p)

    def main(self):
        self.role = "main"
        p = Prog(); e = p.e
        self.main_start(p)
        for ks in range(self.o["pre1"]): p.ext(self.dma(1, ks))
        self.ln(p)
        for ks in range(self.o["pre1"], self.o["free1"]): p.ext(self.dma(1, ks))
        self.stamp(p)
        self.main_setup2(p)
        e(f"s_cmp_lt_u32 {IDX}, 30\ns_cbranch_scc1 L_g1")
        q = Prog()
        q.e("s_waitcnt vmcnt(0)")
        self.spin(q, Y_PUB, 2, 20, sleep=4)
        for ks in range(self.o["eb"]): q.ext(self.dma(2, ks))
        for ks in range(min(self.o["eb"], self.o["P2"])): q.ext(self.tr(2, ks))
        self.sig(q, Y_G, 20)
        q.e("s_waitcnt vmcnt(0) lgkmcnt(0)\ns_branch L_g2")
        for line in finalize(q).split("\n"):
            if line.strip(): e(line.strip() if line.strip().endswith(":") else "@" + line.strip())
        e("L_g1:")
        self.gemm1(p)
        self.gemm1_epi(p)
        e("L_g2:")
        self.gemm2(p, False)
        e(f"s_or_b32 s51, {WG}, {WV}\ns_cmp_lg_u32 s51, 0\ns_cbranch_scc1 L_noep")
        e(f"s_mov_b64 exec, 1\nbuffer_store_dword {VTAG}, {VZ}, {SWS}, 0 offen\ns_mov_b64 exec, -1")
        e("L_noep:")
        self.finish(p)
        return p

    def red32(self, p, regs, tmp):
        for m in ("quad_perm:[1,0,3,2]", "quad_perm:[2,3,0,1]", "row_half_mirror", "row_mirror"):
            for r in regs: p.e(f"v_add_f32_dpp v{r}, v{r}, v{r} {m} row_mask:0xf bank_mask:0xf")
        for i, r in enumerate(regs): p.e(f"v_mov_b32 v{tmp+i}, v{r}")
        for i, r in enumerate(regs): p.e(f"v_permlane16_swap_b32 v{r}, v{tmp+i}")
        for i, r in enumerate(regs): p.e(f"v_add_f32 v{r}, v{r}, v{tmp+i}")
    RAW = [4, 5, 6, 7, 8, 12, 13, 14, 15, 16, 17, 18]
    def conv_start(self, p):
        e = p.e; RAW = self.RAW
        e(f"s_sub_u32 s14, {WV}, 4\ns_cmp_ge_u32 s14, {NCH}\ns_cbranch_scc1 L_end\ns_setprio {self.o['kprio']}")
        e(f"s_lshl_b32 {CH}, {DT}, 6\ns_lshl4_add_u32 {CH}, {SUB}, {CH}\ns_add_u32 {CH}, {CH}, {C0}\ns_add_u32 {CH}, {CH}, s14")
        e(f"s_mul_i32 {REGB}, s14, {REGSZ}\ns_add_u32 {REGB}, {REGB}, {REG0}")
        e(f"s_mul_i32 s51, {CH}, 384\nv_add_u32 v110, s51, {L4}\nv_lshlrev_b32 v111, 1, {LANE}\nv_add_u32 v111, s51, v111")
        e(f"s_lshr_b32 s79, {CH}, 1\ns_lshl_b32 s79, s79, 2")
        e("s_waitcnt lgkmcnt(0)")
        e(f"s_load_dword s80, s[30:31], s79\ns_load_dword s81, s[32:33], s79")
        if not self.o["pfirst"]: e("s_barrier")
        for i in range(6):
            e(f"global_load_dword v{RAW[2*i]}, v110, s[{18+2*i}:{19+2*i}] {self.o['pflag']}")
            e(f"global_load_ushort v{RAW[2*i+1]}, v111, s[{18+2*i}:{19+2*i}] offset:256 {self.o['pflag']}")
        if self.o["pfirst"]: e("s_barrier")
        self.srd(p, 68, 48, WSEND)
        e("s_waitcnt lgkmcnt(0)")
    def serv_start(self, p):
        e = p.e
        e("s_setprio 3")
        e(f"v_add_u32 v109, {SYNC}, {L4}\ns_mov_b32 exec_hi, 0\nds_write_b32 v109, {VZ}\ns_mov_b64 exec, -1")
        e("s_waitcnt lgkmcnt(0)")
        e(f"s_load_dword {TAG}, s[48:49], 0")
        e("s_barrier")
        self.srd(p, 60, 40, 6291456); self.srd(p, 68, 48, WSEND)
    def ln(self, p):
        e = p.e
        RAW, F, D, T, H = 20, 30, 50, 70, 90
        inv = fbits(1.0 / 640)
        e(f"s_lshr_b32 s51, {WV}, 1\ns_mul_i32 s51, s51, {REGSZ}\ns_and_b32 s15, {WV}, 1\ns_mul_i32 s15, s15, {2*PT}\ns_add_u32 s51, s51, s15\ns_add_u32 s51, s51, {LNT}")
        e(f"v_mul_u32_u24 v102, {PT}, v104\nv_add_u32 v102, s51, v102\nv_lshl_add_u32 v101, v106, 3, v102\nv_lshl_add_u32 v100, v106, 4, v102")
        p.wvm("x")
        self.stamp(p)
        self.unpack(p, RAW, F, 10)
        def psum(src, dst):
            e(f"v_pk_add_f32 {v(dst,2)}, {v(src,2)}, {v(src+2,2)}\nv_pk_add_f32 {v(dst+2,2)}, {v(src+4,2)}, {v(src+6,2)}")
            for i in range(4, 10): e(f"v_pk_add_f32 {v(dst+2*(i&1),2)}, {v(dst+2*(i&1),2)}, {v(src+2*i,2)}")
            e(f"v_pk_add_f32 {v(dst,2)}, {v(dst,2)}, {v(dst+2,2)}\nv_add_f32 v{dst}, v{dst}, v{dst+1}")
        def psq(src, dst):
            e(f"v_pk_mul_f32 {v(dst,2)}, {v(src,2)}, {v(src,2)}\nv_pk_mul_f32 {v(dst+2,2)}, {v(src+2,2)}, {v(src+2,2)}")
            for i in range(2, 10): e(f"v_pk_fma_f32 {v(dst+2*(i&1),2)}, {v(src+2*i,2)}, {v(src+2*i,2)}, {v(dst+2*(i&1),2)}")
            e(f"v_pk_add_f32 {v(dst,2)}, {v(dst,2)}, {v(dst+2,2)}\nv_add_f32 v{dst}, v{dst}, v{dst+1}")
        def rstd(var, out):
            e(f"v_max_f32 v{var}, 0, v{var}")
            self.rbf(p, var); e(f"v_add_f32 v{var}, {fbits(1e-5)}, v{var}"); self.rbf(p, var)
            e(f"v_sqrt_f32 v{var}, v{var}"); self.rbf(p, var); e(f"v_rcp_f32 v{out}, v{var}")
        psum(F, T); self.red32(p, [T], T + 2)
        e(f"v_mul_f32 v{T}, {inv}, v{T}\nv_mov_b32 v{T+4}, v{T}"); self.rbf(p, T + 4)
        for i in range(10): e(f"v_pk_add_f32 {v(D+2*i,2)}, {v(F+2*i,2)}, {v(T+4,2)} op_sel_hi:[1,0] neg_lo:[0,1] neg_hi:[0,1]")
        e(f"v_sub_f32 v{T+5}, v{T}, v{T+4}")
        psq(D, T); self.red32(p, [T], T + 2)
        e(f"v_mul_f32 v{T}, {inv}, v{T}\nv_fma_f32 v{T}, -v{T+5}, v{T+5}, v{T}")
        rstd(T, T + 6)
        for i in range(10): e(f"v_pk_mul_f32 {v(D+2*i,2)}, {v(D+2*i,2)}, {v(T+6,2)} op_sel_hi:[1,0]")
        for i in range(10): e(f"v_cvt_pk_bf16_f32 v{RAW+i}, v{D+2*i}, v{D+2*i+1}")
        self.unpack(p, RAW, F, 10)
        psum(F, T); psq(F, T + 4); self.red32(p, [T, T + 4], T + 2)
        e(f"v_mul_f32 v{T}, {inv}, v{T}\nv_mul_f32 v{T+4}, {inv}, v{T+4}\nv_fma_f32 v{T+4}, -v{T}, v{T}, v{T+4}")
        self.rbf(p, T)
        rstd(T + 4, T + 6)
        e(f"v_mul_f32 v{T+2}, v{T}, v{T+6}\nv_lshrrev_b32 v{T+4}, 16, v{T+4}\nv_or_b32 v{T+4}, v{T+4}, v{T}")
        for i in range(10): e(f"v_pk_fma_f32 {v(D+2*i,2)}, {v(F+2*i,2)}, {v(T+6,2)}, {v(T+2,2)} op_sel_hi:[1,0,0] neg_lo:[0,0,1] neg_hi:[0,0,1]")
        e(f"ds_write_b32 v102, v{T+4} offset:1280", "lnw")
        for i in range(10): e(f"v_cvt_pk_bf16_f32 v{H+i}, v{D+2*i}, v{D+2*i+1}")
        e(f"ds_write_b128 v100, {v(H,4)}\nds_write_b128 v100, {v(H+4,4)} offset:512\nds_write_b64 v101, {v(H+8,2)} offset:1024", "lnw")
        self.sig(p, Y_LN, T)

    def serv(self):
        self.role = "serv"
        p = Prog(); e = p.e; o = self.o
        self.serv_start(p)
        self.stamp(p)
        e(f"v_bfe_u32 v12, {LANE}, 2, 2\nv_mul_u32_u24 v12, {PT}, v12\nv_lshrrev_b32 v13, 4, {LANE}\nv_lshl_add_u32 v12, v13, 5, v12")
        e(f"v_and_b32 v13, 3, {LANE}\nv_lshl_add_u32 v12, v13, 3, v12\nv_add_u32 v12, {LNT}, v12")
        e(f"s_mul_i32 s84, {WG}, 10240\ns_add_u32 s84, s84, {HB}\ns_add_u32 s85, s84, 4096\ns_add_u32 s86, s84, 8192")
        e(f"s_lshl_b32 s87, {WG}, 4\ns_add_u32 s87, s87, {STAT}\nv_lshlrev_b32 v13, 12, {LANE}")
        e(f"s_lshl_b32 s89, {WG}, 2\ns_add_u32 s89, s89, {F1}")
        e("s_waitcnt lgkmcnt(0)")
        self.mktag(p)
        e(f"ds_write_b32 {VSY}, {VTAG} offset:{4*Y_TAG}")
        self.spin(p, Y_LN, 4, 20, sleep=1)
        self.stamp(p)
        for b in range(11):
            e(f"ds_read_b64_tr_b16 {v(24+4*b,2)}, v12 offset:{128*b}\nds_read_b64_tr_b16 {v(26+4*b,2)}, v12 offset:{128*b+REGSZ}", f"lr{b}")
            if b >= 3:
                c = b - 3; p.wlg(f"lr{c}")
                e(f"buffer_store_dwordx4 {v(24+4*c,4)}, {L16}, {SWS}, s{84 + c//4} offen offset:{(c%4)*1024} sc1")
        for c in range(8, 10):
            p.wlg(f"lr{c}")
            e(f"buffer_store_dwordx4 {v(24+4*c,4)}, {L16}, {SWS}, s{84 + c//4} offen offset:{(c%4)*1024} sc1")
        p.wlg("lr10")
        e(f"s_mov_b64 exec, 3\nbuffer_store_dwordx4 v[64:67], v13, {SWS}, s87 offen sc1\ns_mov_b64 exec, -1")
        self.sig(p, Y_PUB, 20)
        self.stamp(p)
        e(f"s_mul_i32 s50, {DT2}, 80\ns_lshr_b32 s50, s50, 6\ns_mul_i32 s92, s50, {24*128}\ns_add_u32 s92, s92, {F2}")
        e(f"v_min_u32 v15, 47, {LANE}\nv_lshlrev_b32 v15, 7, v15\nv_min_u32 v16, 19, {LANE}\nv_lshlrev_b32 v16, 4, v16")
        e(f"s_mul_i32 s93, {DT2}, 320\ns_add_u32 s93, s93, {F3}")
        e("s_waitcnt vmcnt(0)")
        self.flag_store(p, "s89")
        self.sig(p, Y_PUB, 20)
        self.stamp(p)
        e(f"s_cmp_lt_u32 {IDX}, 30\ns_cbranch_scc1 L_s1")
        e(f"v_lshrrev_b32 v17, 3, {LANE}\nv_lshlrev_b32 v17, 12, v17\nv_and_b32 v18, 7, {LANE}\nv_lshl_add_u32 v17, v18, 7, v17")
        e(f"s_lshl_b32 s88, {SUB}, 10\ns_and_b32 s51, {IDX}, 1\ns_lshl_b32 s51, s51, 15\ns_add_u32 s88, s88, s51\ns_and_b32 s51, {XCD}, 1\ns_lshl_b32 s51, s51, 16\ns_add_u32 s88, s88, s51")
        for i in range(o["nsp"]):
            e(f"buffer_load_dword v{24+i}, v17, {SW2}, s88 offen\ns_add_u32 s88, s88, 131072")
        e("s_waitcnt vmcnt(0)\ns_branch L_s2\nL_s1:")
        self.spin(p, Y_P1, 1, 20, sleep=2)
        self.stamp(p)
        e(f"s_mov_b32 s50, {F1}")
        self.poll(p, L16, "s50", 20, wide=True, sleep=o["psleep"])
        self.sig(p, Y_F1, 20)
        self.stamp(p)
        if self.debug: e(f"v_writelane_b32 {VDBG}, s78, 31")
        e("L_s2:")
        self.spin(p, Y_P2, 1, 20, sleep=4)
        self.stamp(p)
        self.poll(p, "v15", "s92", 20, sleep=o["psleep2"])
        self.sig(p, Y_F2, 20)
        self.stamp(p)
        if self.debug: e(f"v_writelane_b32 {VDBG}, s78, 30")
        self.spin(p, Y_P3, 1, 20, sleep=4)
        self.poll(p, "v16", "s93", 20, wide=True, sleep=o["psleep2"])
        self.sig(p, Y_F3, 20)
        if self.debug: e(f"v_writelane_b32 {VDBG}, s78, 29")
        self.finish(p)
        return p

    def kgen(self, p):
        e = p.e; RAW = self.RAW
        L2E = 1.4426950408889634
        l2e_hi = struct.unpack("<f", struct.pack("<f", L2E))[0]; l2e_lo = L2E - l2e_hi
        VDT, VD1, VD2, VDS, WA, RA, RB = 54, 55, 56, 57, 58, 59, 60
        e(f"s_and_b32 s51, {CH}, 1\ns_lshl_b32 s51, s51, 4\ns_lshr_b32 s80, s80, s51\ns_lshl_b32 s80, s80, 16\ns_lshr_b32 s81, s81, s51\ns_lshl_b32 s81, s81, 16")
        e(f"v_mov_b32 v62, s80\nv_mov_b32 v63, {fbits(l2e_hi)}\nv_mul_f32 v64, v62, v63\nv_fma_f32 v65, v62, v63, -v64\nv_fmac_f32 v65, {fbits(l2e_lo)}, v62")
        e(f"v_exp_f32 v64, v64\nv_mul_f32 v65, {fbits(0.6931471805599453)}, v65\nv_fma_f32 v{VDT}, v64, v65, v64")
        self.rbf(p, VDT)
        e(f"v_mul_f32 v{VD1}, {fbits(L2E)}, v{VDT}\nv_mul_f32 v{VD2}, 0.15915494, v{VDT}")
        e(f"v_cmp_eq_u32 vcc, 0, {LANE}\nv_mov_b32 v62, s81\nv_cndmask_b32 v{VDS}, 0, v62, vcc")
        e(f"s_mov_b32 m0, {REGB}")
        e(f"v_and_b32 v62, 31, {LANE}\nv_lshrrev_b32 v63, 5, {LANE}\nv_lshlrev_b32 v63, 4, v63\nv_add_u32 v63, {REGB}, v63")
        e(f"v_mul_u32_u24 v64, {KP}, v62\nv_add_u32 v{RB}, v64, v63")
        e(f"v_min_u32 v62, 20, v62\nv_mul_u32_u24 v64, {KP}, v62\nv_add_u32 v{RA}, v64, v63")
        e("v_mov_b32 v28, 0x3f80")
        e("s_waitcnt vmcnt(0)")
        self.stamp(p)
        PK = 116; pk = [0]; P = 62
        FA, FB = 16, 48
        def mf(rd):
            l = []
            for s in range(8):
                q = Prog()
                c = a(0, 16)
                q.e(f"v_mfma_f32_32x32x16_bf16 {a(0,16)}, {a(FA+4*s,4)}, {a(FB+4*s,4)}, {c}")
                l.append(q)
            return l
        p.e("s_mov_b32 s76, 0\nL_kg:")
        for rd in (1,):
            usepk = self.o["pk"]
            q = Prog(); e = q.e
            def cmul(sets):
                if usepk:
                    for d, x, y in sets: e(f"v_pk_mul_f32 {v(d,2)}, {v(x,2)}, {v(y,2)} op_sel_hi:[0,1]")
                    for d, x, y in sets: e(f"v_pk_fma_f32 {v(d,2)}, {v(x,2)}, {v(y,2)}, {v(d,2)} op_sel:[1,1,0] op_sel_hi:[1,0,1] neg_lo:[1,0,0]")
                else:
                    for d, x, y in sets: e(f"v_mul_f32 v{d}, v{x}, v{y}\nv_mul_f32 v{d+1}, v{x}, v{y+1}")
                    for d, x, y in sets: e(f"v_fma_f32 v{d}, -v{x+1}, v{y+1}, v{d}\nv_fmac_f32 v{d+1}, v{x+1}, v{y}")
            def puts(l, neg):
                rs = []
                for row, z in l:
                    r = PK + pk[0] % 8; pk[0] += 1; rs.append(r)
                    e(f"v_cvt_pk_bf16_f32 v{r}, v{z}, {'-' if neg else ''}v{z+1}")
                for (row, z), r in zip(l, rs): e(f"ds_write_addtid_b32 v{r} offset:{row*KP}", "kw")
            for i in range(6):
                e(f"v_lshlrev_b32 v{P+i}, 16, v{RAW[2*i]}\nv_alignbit_b32 v{RAW[2*i]}, v{RAW[2*i+1]}, v{RAW[2*i]}, 16")
            AR, AI = 68, 69
            e(f"v_mul_f32 v{AR}, v{P}, v{VD1}\nv_mul_f32 v{AI}, v{P+1}, v{VD2}")
            e(f"v_mul_f32 v{P+2}, v{P+2}, v{VDT}\nv_mul_f32 v{P+3}, v{P+3}, v{VDT}")
            E1, E8, E256 = 70, 72, 74
            TM_, TA = 76, 79
            for i, t in enumerate((1.0, 8.0, 256.0)):
                if i == 0: e(f"v_mov_b32 v{TM_}, v{AR}\nv_fract_f32 v{TA}, v{AI}")
                else: e(f"v_mul_f32 v{TM_+i}, {fbits(t)}, v{AR}\nv_mul_f32 v{TA+i}, {fbits(t)}, v{AI}\nv_fract_f32 v{TA+i}, v{TA+i}")
            X = 82
            cmul([(X, P + 4, P + 2)])
            for i in range(3):
                e(f"v_exp_f32 v{TM_+i}, v{TM_+i}\nv_cos_f32 v{E1+2*i}, v{TA+i}\nv_sin_f32 v{E1+2*i+1}, v{TA+i}")
            for i in range(3): e(f"v_mul_f32 v{E1+2*i}, v{E1+2*i}, v{TM_+i}\nv_mul_f32 v{E1+2*i+1}, v{E1+2*i+1}, v{TM_+i}")
            E2, E4, E16, E512 = 98, 100, 102, 104
            EA, EB, E32, Y, Z = 106, 20, 114, 30, 38
            cmul([(E2, E1, E1), (E16, E8, E8), (E512, E256, E256), (X + 2, X, E1)])
            cmul([(E4, E2, E2), (EA + 6, E16, E8), (E32, E16, E16), (X + 4, X, E2), (X + 6, X + 2, E2)])
            p.ext(q)
            p.e("s_waitcnt lgkmcnt(0)")
            q = Prog(); e = q.e
            e(f"ds_write_addtid_b32 v28", "kw")
            puts([(1, E8), (2, E16), (3, EA + 6), (4, E32)], False)
            cmul([(EB, E8, E32), (EB + 2, E16, E32), (EB + 4, EA + 6, E32), (EB + 6, E32, E32)])
            cur, nxt = EB, EA
            extra = [[(X + 8 + 2 * i, X + 2 * i, E4) for i in range(4)], [(Y + 2 * i, X + 4 * i, E256) for i in range(4)],
                     [(Z, X, E512), (Z + 2, X + 8, E512), (Z + 4, Y, E512), (Z + 6, Y + 4, E512)],
                     [(Z + 8, Z, E512), (Z + 10, Z + 4, E512)], [(Z + 12, Z + 8, E512), (Z + 14, Z + 10, E512)], [(E1, Z + 12, E512)]]
            for st in range(6):
                j0 = 9 + 4 * st
                n = min(4, 32 - j0)
                cmul([(nxt + 2 * i, cur + 2 * i, E32) for i in range(n)])
                puts([(j0 - 4 + i, cur + 2 * i) for i in range(4)], False)
                cmul(extra[st])
                cur, nxt = nxt, cur
            puts([(29 + i, cur + 2 * i) for i in range(3)], False)
            if rd > 0: p.ext(interleave(q, mf(rd - 1)))
            else: p.ext(q)
            for s_ in range(8): p.e(f"ds_read_b128 {a(FB+4*s_,4)}, v{RB} offset:{s_*32}", "kr")
            e = p.e
            puts([(i, X + 2 * i) for i in range(4)], True); puts([(4 + i, X + 8 + 2 * i) for i in range(4)], True)
            puts([(8 + i, Y + 2 * i) for i in range(4)], True); puts([(12 + i, Z + 2 * i) for i in range(4)], True)
            puts([(16 + i, Z + 8 + 2 * i) for i in range(4)] + [(20, E1)], True)
            for s_ in range(8): p.e(f"ds_read_b128 {a(FA+4*s_,4)}, v{RA} offset:{s_*32}", "kr")
            p.e("s_cmp_lg_u32 s76, 0\ns_cbranch_scc1 L_kg1")
            for i in range(16): p.e(f"v_accvgpr_write_b32 a{i}, 0")
            p.e("L_kg1:")
            if self.debug: p.e(f"s_memrealtime s[82:83]\ns_waitcnt lgkmcnt(0)\ns_add_u32 s50, s76, 20\nv_mov_b32 v61, s82\nv_cmp_eq_u32 vcc, s50, {LANE}\nv_cndmask_b32 {VDBG}, {VDBG}, v61, vcc")
            p.e("s_add_u32 s76, s76, 1\ns_cmp_lt_u32 s76, 3\ns_cbranch_scc1 L_kg")
        e = p.e
        e(f"v_and_b32 v62, 31, {LANE}\nv_lshrrev_b32 v63, 5, {LANE}\ns_add_u32 s51, {REGB}, {KCO}")
        e(f"v_lshlrev_b32 v64, 4, v62\nv_lshl_add_u32 v64, v63, 3, v64\nv_add_u32 v64, s51, v64")
        e(f"v_cmp_eq_u32 vcc, 0, v63\nv_lshlrev_b32 v65, 3, v62\nv_add_u32 v65, 512, v65\nv_lshlrev_b32 v66, 2, v62\nv_add_u32 v66, 768, v66")
        e(f"v_cndmask_b32 v65, v66, v65, vcc\nv_add_u32 v65, s51, v65\nv_mov_b32 v66, 128\nv_cndmask_b32 v66, v66, 4, vcc\nv_add_u32 v66, v65, v66")
        e(f"v_lshlrev_b32 v67, 1, v62\nv_lshl_add_u32 v67, v63, 8, v67\nv_add_u32 v67, s51, v67")
        self.spin(p, Y_PUB, 1, 68)
        for q in mf(2): p.ext(q)
        e(f"v_mov_b32 v76, 0\nv_mov_b32 v77, 0\nv_mov_b32 v78, 0\nv_mov_b32 v79, 0\nv_add_u32 v15, {REGB}, {L16}")
        for i in range(4): e(f"ds_write_b128 v15, v[76:79] offset:{R0O + 1024*i}", "kc")
        e("s_mov_b64 exec, 3")
        e(f"ds_write_b128 v15, v[76:79] offset:{KCO - 32}", "kc")
        e("s_mov_b32 exec_lo, -1")
        e(f"ds_write_b128 v15, v[76:79] offset:{UO}", "kc")
        e("s_mov_b64 exec, -1")
        blocks = [(-2, 34, 8), (32, 32, 4)]
        info = []
        for bi, (v0, nl, stride) in enumerate(blocks):
            cis = lambda y: y if y < 0 else ci(y)
            base = cis(8 * v0)
            offs = {}
            for t in range(-1, 8):
                o = [cis(8 * (v0 + l) + 7 - t) - (base + stride * l) for l in range(nl)]
                offs[t] = o[0]
                assert all(x == o[0] for x in o)
            AD = 100 + 2 * bi
            e(f"s_add_u32 s51, {REGB}, {KCO + 2*base}\nv_mul_u32_u24 v{AD}, {2*stride}, {LANE}\nv_add_u32 v{AD}, s51, v{AD}")
            e(f"s_add_u32 s51, {REGB}, {(75 - v0) * 16}\nv_sub_u32 v{AD+1}, s51, {L16}")
            info.append(offs)
        e(f"v_cmp_gt_u32 vcc, 16, {LANE}\nv_mov_b32 v104, 563\nv_mov_b32 v105, 512\nv_cndmask_b32 v104, v104, v105, vcc\nv_add_u32 v104, v104, {LANE}")
        e(f"v_mov_b32 v106, 1011\nv_cndmask_b32 v105, v106, v105, vcc\nv_add_u32 v105, v105, {LANE}\nv_cvt_f32_u32 v105, v105\nv_cvt_pk_bf16_f32 v105, v105, v105\nv_and_b32 v105, 0xffff, v105")
        e(f"s_sub_u32 s51, {REGB}, {2*0x4280 - KCO}\nv_lshl_add_u32 v105, v105, 1, s51")
        e(f"s_add_u32 s51, {REGB}, {2*607}\nv_lshlrev_b32 v104, 1, v104\nv_sub_u32 v104, s51, v104")
        e(f"v_lshlrev_b32 v106, 1, {LANE}\ns_add_u32 s51, {REGB}, 4096\nv_sub_u32 v107, s51, v106\nv_add_u32 v106, {REGB}, v106")
        for i in range(12): e(f"v_accvgpr_read_b32 v{82+i}, a{i}")
        e(f"v_add_f32 v82, v82, v{VDS}")
        for i in range(6): e(f"v_cvt_pk_bf16_f32 v{70+i}, v{82+2*i}, v{83+2*i}")
        e(f"ds_write_b64 v64, v[70:71]\nds_write_b32 v65, v72\nds_write_b32 v66, v73\nds_write_b16 v67, v74 offset:1024", "kc")
        e("s_mov_b32 exec_hi, 0")
        e(f"ds_write_b16_d16_hi v67, v74 offset:{1024+64}\nds_write_b16 v67, v75 offset:{1024+128}\nds_write_b16_d16_hi v67, v75 offset:{1024+192}", "kc")
        e("s_mov_b64 exec, -1")
        vrs = []
        for bi, (v0, nl, stride) in enumerate(blocks):
            RR = 20 + 9 * bi; AD = 100 + 2 * bi; offs = info[bi]
            e(f"s_mov_b32 exec_hi, {(1 << (nl - 32)) - 1}")
            seen = {}; vr = {}
            for t in range(-1, 8):
                o = offs[t]
                if o not in seen:
                    seen[o] = RR + len(seen)
                    e(f"ds_read_u16 v{seen[o]}, v{AD} offset:{2*o}", f"kx{bi}")
                vr[t] = seen[o]
            vrs.append(vr)
        e("ds_read_u16 v40, v105", "kq")
        e("s_mov_b64 exec, -1")
        for i in range(2):
            e(f"ds_read_u16 v{41+i}, v106 offset:{KCO + 2*(388 + 64*i)}\nds_read_u16 v{43+i}, v106 offset:{KCO + 2*(514 + 64*i)}", "kq")
        for bi, (v0, nl, stride) in enumerate(blocks):
            AD = 100 + 2 * bi; O = 70 + 8 * bi; vr = vrs[bi]
            p.wlg(f"kx{bi}")
            for i in range(4): e(f"v_lshl_or_b32 v{O+i}, v{vr[2*i+1]}, 16, v{vr[2*i]}")
            for i in range(4): e(f"v_lshl_or_b32 v{O+4+i}, v{vr[2*i]}, 16, v{vr[2*i-1]}")
            e(f"s_mov_b32 exec_hi, {(1 << (nl - 32)) - 1}")
            e(f"ds_write_b128 v{AD+1}, {v(O,4)} offset:{R0O}\nds_write_b128 v{AD+1}, {v(O+4,4)} offset:{R1O}", "kt")
            e("s_mov_b64 exec, -1")
        p.wlg("kq")
        e(f"ds_write_b16 v107, v41 offset:{Q2O - 4096 + 2*188}\nds_write_b16 v107, v43 offset:{Q3O - 4096 + 2*126}", "kt")
        e(f"s_mov_b32 exec_hi, {(1 << 31) - 1:#x}\nds_write_b16 v107, v44 offset:{Q3O - 4096 + 2*(126-64)}", "kt")
        e(f"s_mov_b32 exec_hi, {(1 << 29) - 1:#x}\nds_write_b16 v107, v42 offset:{Q2O - 4096 + 2*(188-64)}", "kt")
        e(f"s_mov_b32 exec_hi, 0\ns_mov_b32 exec_lo, 0x01ff3fff\nds_write_b16 v104, v40 offset:{R0O}\nds_write_b16 v104, v40 offset:{R1O + 2}\ns_mov_b64 exec, -1", "kt")

    def conv_setup(self, p):
        e = p.e
        e(f"v_lshrrev_b32 v32, 4, {LANE}\nv_and_b32 v31, 15, {LANE}\nv_bfe_u32 v33, {LANE}, 1, 3\nv_lshlrev_b32 v34, 2, v32\nv_sub_u32 v34, v34, v33")
        e(f"v_and_b32 v33, 1, {LANE}\nv_xor_b32 v33, 1, v33\nv_mul_u32_u24 v33, {(R1O - R0O)//4 + 1}, v33\nv_add_u32 v34, v34, v33")
        e(f"s_add_u32 s51, {REGB}, {R0O + 4*7}\nv_lshl_add_u32 v24, v34, 2, s51\nv_add_u32 v25, 512, v24")
        e(f"v_lshlrev_b32 v33, 4, v32\nv_lshlrev_b32 v34, 3, v31\nv_sub_u32 v26, v33, v34\ns_add_u32 s51, {REGB}, {Q2O + 120}\nv_add_u32 v26, s51, v26")
        e(f"v_lshlrev_b32 v34, 2, v31\nv_sub_u32 v27, v33, v34\ns_add_u32 s51, {REGB}, {Q3O + 60}\nv_add_u32 v27, s51, v27")
        for m in list(range(17)) + [18]:
            off = (18 - m) * 16; ad = 24; r = 4 * min(m, 17)
            if off >= 128: off -= 128; ad = 25
            e(f"ds_read2_b32 {a(r,2)}, v{ad} offset0:{off} offset1:{off+1}\nds_read2_b32 {a(r+2,2)}, v{ad} offset0:{off+2} offset1:{off+3}", "pf")
        for j in range(6): e(f"ds_read_b64 {a(72+4*j,2)}, v26 offset:{64*j}\nds_read_b64 {a(74+4*j,2)}, v26 offset:{64*j+8}", "pf")
        for j in range(4): e(f"ds_read2_b32 {a(96+4*j,2)}, v27 offset0:{16*j} offset1:{16*j+1}\nds_read2_b32 {a(98+4*j,2)}, v27 offset0:{16*j+2} offset1:{16*j+3}", "pf")
        e("v_mov_b32 v76, 0\nv_mov_b32 v77, 0\nv_mov_b32 v78, 0\nv_mov_b32 v79, 0\ns_mov_b64 exec, 1")
        for o in (Z5O, Z3O, Z9O, Z7O, Z5O + 3088, Z3O + 3088): e(f"ds_write_b128 v15, v[76:79] offset:{o}", "pf")
        e("s_mov_b64 exec, -1")
        e(f"v_lshl_add_u32 v34, v31, 1, v32\ns_add_u32 s51, {REGB}, {UO + 16*2}\nv_lshl_add_u32 v16, v34, 4, s51")
        e(f"v_bfe_u32 v33, {LANE}, 2, 2\nv_and_b32 v34, 3, {LANE}\nv_and_b32 v35, 1, v33")
        e(f"v_mul_u32_u24 v12, {Z3O - Z5O}, v35\nv_lshl_add_u32 v12, v32, 6, v12\nv_add_u32 v36, v33, v34\nv_lshl_add_u32 v12, v36, 3, v12\nv_add_u32 v12, {REGB}, v12")
        e(f"v_mul_u32_u24 v13, {Z7O - Z9O}, v35\nv_lshl_add_u32 v13, v32, 7, v13\nv_lshl_add_u32 v13, v33, 4, v13\nv_lshl_add_u32 v13, v34, 3, v13\nv_add_u32 v13, {REGB}, v13")
        e(f"v_add_u32 v14, {UO + 512 - 24}, v15")
        e(f"v_and_b32 v34, 1, v32\nv_lshlrev_b32 v34, 9, v34\nv_lshl_add_u32 v34, v31, 5, v34\nv_lshrrev_b32 v32, 1, v32\nv_lshl_add_u32 v17, v32, 4, v34")
        e(f"s_lshl_b32 s86, {CH}, 12\ns_add_u32 s86, s86, {YT}\ns_lshl_b32 s89, {CH}, 2\ns_add_u32 s89, s89, {F3}")
    def inverse(self, p):
        e = p.e
        S2, M2, SF, MF = 24, 40, 56, 88
        e(f"v_lshrrev_b32 v20, 4, {LANE}\nv_lshlrev_b32 v20, 10, v20\nv_and_b32 v21, 3, {LANE}\nv_lshl_add_u32 v20, v21, 4, v20\nv_and_b32 v21, 12, {LANE}")
        e(f"s_add_u32 s51, {REGB}, {UO+512}")
        for q in range(4):
            e(f"v_add_u32 v22, {16*(q&1)}, v21\nv_bfe_u32 v22, s{74 + q//2}, v22, 4\nv_lshl_add_u32 v{4+q}, v22, 6, v20\nv_add_u32 v{120+q}, s51, v{4+q}")
        e(f"s_mov_b32 s84, {STAT}\ns_mov_b32 s85, {STAT+4096}")
        self.spin(p, Y_F1, 1, 22, sleep=2)
        e(f"ds_read_b32 {VTAG}, {VSY} offset:{4*Y_TAG}", "tag")
        for q in range(4):
            e(f"buffer_load_dwordx4 {v(S2+4*q,4)}, v{4+q}, {SWS}, s84 offen sc1", "u")
            e(f"buffer_load_dwordx4 {v(M2+4*q,4)}, v{4+q}, {SWS}, s85 offen sc1", "u")
        p.wvm("u")
        self.unpack(p, S2, SF, 16); self.unpack(p, M2, MF, 16)
        self.stamp(p)
        for q in range(4):
            self.spin(p, Y_U + q, 4, 22, sleep=(2 if q < 3 else 1))
            if q == 3: self.stamp(p)
            e(f"ds_read_b128 v[24:27], v{120+q}", f"ur{q}")
            p.wlg(f"ur{q}")
            self.unpack(p, 24, 40, 4)
            for i in range(8): e(f"v_fma_f32 v{40+i}, v{40+i}, v{SF+8*q+i}, v{MF+8*q+i}")
            for i in range(4): e(f"v_cvt_pk_bf16_f32 v{48+i}, v{40+2*i}, v{41+2*i}")
            e(f"ds_write_b128 v{120+q}, v[48:51]", "uw")
    def zcode(self):
        p = Prog(); e = p.e
        RAWZ, P, W = 96, 103, 56
        def rd(it):
            e(f"ds_read_b64 {v(RAWZ,2)}, v14 offset:{1024*it}\nds_read_b128 {v(RAWZ+2,4)}, v14 offset:{1024*it+8}\nds_read_b64 {v(RAWZ+6,2)}, v14 offset:{1024*it+24}", f"zr{it}")
        rd(0); k = 0
        for it in range(3):
            p.wlg(f"zr{it}")
            self.unpack(p, RAWZ, P + 1, 8)
            if it < 2: rd(it + 1)
            for j in range(2, 17 if it < 2 else 15): e(f"v_add_f32 v{P+j}, v{P+j}, v{P+j-1}")
            for h, zo in ((2, Z5O), (1, Z3O), (4, Z9O), (3, Z7O))[:(4 if it < 2 else 2)]:
                for t in range(8):
                    if t + 4 - h == 0: e(f"v_mov_b32 v{W}, v{P+9}")
                    else: e(f"v_sub_f32 v{W+t}, v{P+t+5+h}, v{P+t+4-h}")
                o = 120 + 4 * (k & 1); k += 1
                for i in range(4): e(f"v_cvt_pk_bf16_f32 v{o+i}, v{W+2*i}, v{W+2*i+1}")
                e(f"ds_write_b128 v15, {v(o,4)} offset:{zo + 16 + 1024*it}", "zw")
        return p
    def conv(self, p):
        e = p.e
        YO, ACC = 17, 64
        slots = [("v", 24 + 4 * i) for i in range(10)] + [("v", 96 + 4 * i) for i in range(8)] + [("a", 112 + 4 * i) for i in range(4)]
        slots = slots[:self.o["cns"]]; NS = len(slots)
        def R(n, off=0, w=4):
            k, r = slots[n % NS]; return (v if k == "v" else a)(r + off, w)
        jobs = []
        for ph in range(8):
            for d in range(8):
                l = [(d + mu, 4 * (8 * mu + ph), False) for mu in range(2) if d + mu <= 7]
                if ph == 0 and d <= 5: l.append((d + 2, 64, False))
                if ph == 0 and d <= 3: l.append((d + 4, 68, False))
                jobs.append((lambda n, d=d, ph=ph: [f"ds_read_b128 {R(n)}, v16 offset:{512*d + (7-ph)*64}"], l))
        nF = len(jobs)
        for st in range(4):
            jobs.append((lambda n, st=st: [f"ds_read_b64_tr_b16 {R(n,0,2)}, v13 offset:{Z9O + 512*st}", f"ds_read_b64_tr_b16 {R(n,2,2)}, v13 offset:{Z9O + 512*st + 64}"],
                         [(I, 96 + 4 * (st - I + 7), True) for I in range(4, 8) if st <= I - 4]))
        for st in range(12):
            jobs.append((lambda n, st=st: [f"ds_read_b64_tr_b16 {R(n,0,2)}, v12 offset:{Z5O + 256*st}", f"ds_read_b64_tr_b16 {R(n,2,2)}, v12 offset:{Z5O + 256*st + 32}"],
                         [(I, 72 + 4 * (st - 2 * I + 8), True) for I in range(2, 8) if 2 * I - 8 <= st <= 2 * I - 3]))
        assert sum(len(j[1]) for j in jobs) == 170
        first = set()
        def load(q, n):
            for t in jobs[n][0](n): q.e(t, f"cj{n}")
        def run(q, n):
            q.wlg(f"cj{n}")
            r = R(n)
            for i, (I, kf, dA) in enumerate(jobs[n][1]):
                acc = v(ACC + 4 * I, 4); src = acc if I in first else "0"; first.add(I)
                q.e(f"v_mfma_f32_16x16x32_bf16 {acc}, {r if dA else a(kf,4)}, {a(kf,4) if dA else r}, {src}")
                if i == 0 and n >= 1 and n - 1 + NS < len(jobs): load(q, n - 1 + NS)
        jobs = jobs[nF:] + jobs[:nF]
        p.ext(self.zcode())
        for n in range(NS): load(p, n)
        if self.o["cwait"]: self.spin(p, Y_EPI, self.o["cwait"], 22, sleep=1)
        e(f"s_setprio {self.o['cprio']}")
        self.stamp(p)
        for n in range(len(jobs)): run(p, n)
        for k in range(4):
            o = 24 + 4 * k
            for i in range(4): e(f"v_cvt_pk_bf16_f32 v{o+i}, v{ACC+8*k+2*i}, v{ACC+8*k+2*i+1}")
            e(f"v_permlane16_swap_b32 v{o}, v{o+2}\nv_permlane16_swap_b32 v{o+1}, v{o+3}")
            e(f"buffer_store_dwordx4 {v(o,4)}, v{YO}, {SWS}, s86 offen offset:{1024*k} sc1", "ys")
        self.stamp(p)
        e("s_waitcnt vmcnt(0)")
        self.flag_store(p, "s89")
    def convw(self):
        self.role = "conv"
        p = Prog(); e = p.e
        self.conv_start(p)
        self.stamp(p)
        if not self.o.get("skip_kgen"): self.kgen(p)
        else: self.stamp(p)
        self.stamp(p)
        self.conv_setup(p)
        e("s_setprio 0")
        self.inverse(p)
        self.conv(p)
        self.finish(p)
        return p

    def build(self):
        p = Prog(); self.prologue(p)
        p.ext(self.main())
        body = finalize(p)
        q = Prog(); q.e("L_aux:")
        q.e(f"s_cmp_eq_u32 {WV}, 7\ns_cbranch_scc1 L_serv"); q.ext(self.convw())
        body += finalize(q)
        q = Prog(); q.e("L_serv:"); q.ext(self.serv()); q.e("L_end:\nL_last:\ns_endpgm")
        body += finalize(q)
        body = body.replace("@", "")
        ref = open("cdna_kernels/" + NAME + ".s.ref").read()
        head = [l for l in ref.split("\n") if l.startswith(";") and "@launch" not in l]
        k = NAME + "_kernel"
        s = "\n".join(head) + f"\n; @launch grid=(256,1,1) block=(512,1,1) lds={LDS_BYTES}\n"
        s += f'.amdgcn_target "amdgcn-amd-amdhsa--gfx950"\n.text\n.globl {k}\n.p2align 8\n.type {k},@function\n{k}:\n'
        s += body
        s += f""".section .rodata,"a"
.p2align 6
.amdhsa_kernel {k}
  .amdhsa_next_free_vgpr 256
  .amdhsa_next_free_sgpr 102
  .amdhsa_accum_offset 128
  .amdhsa_group_segment_fixed_size 0
  .amdhsa_kernarg_size 136
  .amdhsa_user_sgpr_count 2
  .amdhsa_user_sgpr_kernarg_segment_ptr 1
  .amdhsa_system_sgpr_workgroup_id_x 1
.end_amdhsa_kernel
"""
        return s

if __name__ == "__main__":
    out = sys.argv[1]
    kw = eval("dict(" + (sys.argv[2] if len(sys.argv) > 2 else "") + ")")
    open(out, "w").write(G(**kw).build())
```

```python
import sys, struct
from asmlib import Prog, interleave, finalize

NAME = "parallel_sum__ssm_conv_s4__mixer_token_mlp__prompt"
F1, F3, STAT, TM, F2 = 0x1000, 0x3000, 0x4000, 0x8000, 0x50000
HB, GB, YT, WSEND = 0x80000, 0x300000, 0x4E0000, 0x760000
RINGW, RS = 28672, 7
PT = 1344
REG0, REGSZ = 0, 14976
SYNC = 3 * REGSZ
RING0 = 45056
KCO, R0O, R1O, Q2O, Q3O = 32, 1408, 1408 + 1344, 4096, 4608
Z5O, Z3O, Z9O, Z7O, UO = 0, 3104, 6208, 8288, 10368
LNT = REG0 + 8704
KP = 272
LDS_BYTES = 163840
assert SYNC + 128 <= RING0 and RING0 + 4 * RINGW <= LDS_BYTES
Y_EPI = 3
Y_LN, Y_F1, Y_PART, Y_PUB, Y_P1, Y_G, Y_P2, Y_F2, Y_P3, Y_F3, Y_TAG, Y_U = 0, 1, 2, 4, 5, 6, 7, 8, 9, 10, 11, 12

def fbits(x): return "0x%08x" % struct.unpack("<I", struct.pack("<f", x))[0]
def bf16r(l):
    u = struct.unpack("<I", struct.pack("<f", float(l)))[0]
    u = ((u + 0x7FFF + ((u >> 16) & 1)) >> 16) << 16
    return int(struct.unpack("<f", struct.pack("<I", u))[0])
def ci(l):
    v = bf16r(l)
    if v <= 256: return v
    if v <= 512: return 256 + (v - 256) // 2
    if v <= 1024: return 384 + (v - 512) // 4
    return 512 + (v - 1024) // 8

WG, WV, XCD, IDX, DT, FT, DT2, ST2, TAG, ROT1, ROT2, CH = "s2", "s3", "s4", "s5", "s6", "s7", "s8", "s9", "s10", "s11", "s12", "s13"
SUB, C0, NCH = "s97", "s98", "s99"
SX, SW1, SW2, SOUT, SWS = "s[52:55]", "s[56:59]", "s[60:63]", "s[64:67]", "s[68:71]"
RINGB, REGB = "s73", "s77"
VSY, LANE, L16, L4, VTAG, VZ, VDBG = "v0", "v1", "v2", "v3", "v9", "v10", "v11"

def v(i, n=1): return f"v{i}" if n == 1 else f"v[{i}:{i+n-1}]"
def a(i, n=1): return f"a{i}" if n == 1 else f"a[{i}:{i+n-1}]"

def groups_of(prog):
    groups = []
    for it in prog.items:
        prev = groups[-1][-1][0] if groups else None
        if isinstance(prev, str) and (prev.startswith(("s_add_u32 m0", "s_cmp", "s_sub_u32 s51", "s_mov_b64 exec, s", "s_mov_b64 exec, 1", "ds_write_b128 v125", "ds_add"))):
            groups[-1].append(it)
        else: groups.append([it])
    return groups

def make_perm(n, nw, first, duty0):
    own = list(range(0, n, 2)); oth = list(range(1, n, 2))
    order = [[] for _ in range(nw)]; touched = {}
    pool = own[:]
    for pos in range(first):
        for j in range(nw):
            pass
    deal = [[] for _ in range(nw)]
    k = 0
    for pos in range(first):
        for j in range(nw):
            if pool: st = pool.pop(0)
            else: st = oth.pop(0)
            deal[j].append(st); touched[st] = pos
    rest = pool + oth
    duty = {}
    for i, st in enumerate(rest): duty[(duty0 + i, i % nw)] = st
    for j in range(nw): order[j] = list(deal[j])
    for pos in range(first, n):
        for j in range(nw):
            if (pos, j) in duty: touched[duty[(pos, j)]] = pos
        for j in range(nw):
            if (pos, j) in duty: order[j].append(duty[(pos, j)]); continue
            mine = {st for (pp, jj), st in duty.items() if jj == j and pp > pos}
            cand = [st for st in range(n) if st not in order[j] and st not in mine]
            cand.sort(key=lambda st: (touched.get(st, 99), (st - 2 * j) % n))
            order[j].append(cand[0])
    for o in order: assert sorted(o) == list(range(n)), o
    return order
def pack_perm(o):
    x = sum(st << (4 * i) for i, st in enumerate(o)); return x & 0xffffffff, x >> 32

class G:
    def __init__(self, debug=False, **kw):
        self.debug = debug
        self.o = dict(P1=6, D1=13, PS1=11, lead1=4, xk=8, P2=4, D2=11, PS2=9, lead2=4, wflag="", xflag="", nsp=30, thr=2,
                      ytrig=5, ychk=10, pk=1, psleep=4, psleep2=8, kprio=0, mprio=2, ebpos=1, cprio=3, ipf=2, ns1=12, ns2=15, perm=1, duty1=3, duty2=3, oflag='', eb=2, pfirst=1, free1=2, pre1=0, cns=22, nthr=6, pflag='nt', cwait=4)
        self.o.update(kw)
        self.nst = {}; self.nlab = 0; self.role = None
    def stamp(self, p):
        if not self.debug: return
        n = self.nst.get(self.role, 0)
        if n == 0: p.e(f"v_writelane_b32 {VDBG}, s100, 28")
        p.e(("s_memtime" if self.o.get("cyc") else "s_memrealtime") + " s[82:83]\ns_waitcnt lgkmcnt(0)")
        p.e(f"v_writelane_b32 {VDBG}, s82, {n}")
        self.nst[self.role] = n + 1
    def pre(self, p):
        if self.debug and self.o.get("prest"): p.e(f"s_memrealtime s[82:83]\ns_waitcnt lgkmcnt(0)\nv_writelane_b32 {VDBG}, s82, 27")
    def label(self, s):
        self.nlab += 1; return f"L{s}_{self.nlab}"
    def flag_store(self, p, soff, pre=""):
        p.e(f"s_mov_b64 exec, 1\n{pre}buffer_store_dword {VTAG}, {VZ}, {SWS}, {soff} offen sc1\ns_mov_b64 exec, -1")
    def poll(self, p, voff, soff, tmp, wide=False, sleep=0):
        l = self.label("poll"); d = self.label("polld"); f = self.label("pollf")
        p.e("s_mov_b32 s78, 0")
        if sleep: p.e(f"s_branch {f}")
        p.e(f"{l}:")
        if sleep: p.e(f"s_sleep {sleep}\n{f}:")
        if wide:
            p.e(f"buffer_load_dwordx4 {v(tmp,4)}, {voff}, {SWS}, {soff} offen sc1")
            p.e("s_add_u32 s78, s78, 1\ns_waitcnt vmcnt(0)")
            for i in range(4): p.e(f"v_xor_b32 {v(tmp+i)}, {TAG}, {v(tmp+i)}")
            p.e(f"v_or3_b32 {v(tmp)}, {v(tmp)}, {v(tmp+1)}, {v(tmp+2)}\nv_or_b32 {v(tmp)}, {v(tmp)}, {v(tmp+3)}")
            p.e(f"v_cmp_ne_u32 vcc, 0, {v(tmp)}")
        else:
            p.e(f"buffer_load_dword {v(tmp)}, {voff}, {SWS}, {soff} offen sc1")
            p.e("s_add_u32 s78, s78, 1\ns_waitcnt vmcnt(0)")
            p.e(f"v_cmp_ne_u32 vcc, {TAG}, {v(tmp)}")
        p.e(f"s_cmp_gt_u32 s78, 0x8000\ns_cbranch_scc1 {d}\ns_cbranch_vccnz {l}")
        p.e(f"{d}:")
    def sig(self, p, word, tmp):
        p.e(f"v_mov_b32 v{tmp}, 1\ns_mov_b64 exec, 1\nds_add_u32 {VSY}, v{tmp} offset:{4*word}\ns_mov_b64 exec, -1", "sig")
    def spin(self, p, word, n, tmp, sleep=0):
        l = self.label("spin"); d = self.label("spind"); f = self.label("spinf")
        p.e("s_mov_b32 s78, 0")
        if sleep: p.e(f"s_branch {f}")
        p.e(f"{l}:")
        if sleep: p.e(f"s_sleep {sleep}\n{f}:")
        p.e(f"ds_read_b32 v{tmp}, {VSY} offset:{4*word}\ns_add_u32 s78, s78, 1\ns_waitcnt lgkmcnt(0)\nv_readfirstlane_b32 s79, v{tmp}")
        p.e(f"s_cmp_gt_u32 s78, 0x40000\ns_cbranch_scc1 {d}\ns_cmp_lt_u32 s79, {n}\ns_cbranch_scc1 {l}")
        p.e(f"{d}:")
    def mktag(self, p):
        p.e(f"s_mul_i32 {TAG}, {TAG}, 0x9E3779B1\ns_add_u32 {TAG}, {TAG}, 0x7F4A7C15\nv_mov_b32 {VTAG}, {TAG}")
    def finish(self, p):
        e = p.e
        if self.debug:
            e("s_waitcnt vmcnt(0)")
            self.stamp(p)
            e(f"s_lshl_b32 s50, {WG}, 3\ns_add_u32 s50, s50, {WV}\ns_lshl_b32 s50, s50, 7\ns_add_u32 s50, s50, {TM}")
            e(f"s_mov_b32 exec_hi, 0\nbuffer_store_dword {VDBG}, {L4}, {SWS}, s50 offen")
        e("s_endpgm")
    def srd(self, p, d, lo, size): p.e(f"s_mov_b32 s{d}, s{lo}\ns_mov_b32 s{d+1}, s{lo+1}\ns_mov_b32 s{d+2}, {size}\ns_mov_b32 s{d+3}, 0x20000")
    def unpack(self, p, src, dst, n):
        for i in range(n):
            p.e(f"v_lshlrev_b32 v{dst+2*i}, 16, v{src+i}\nv_and_b32 v{dst+2*i+1}, 0xffff0000, v{src+i}")
    def rbf(self, p, r):
        p.e(f"v_cvt_pk_bf16_f32 v{r}, v{r}, v{r}\nv_lshlrev_b32 v{r}, 16, v{r}")

    def prologue(self, p):
        e = p.e
        if self.debug: e("s_memrealtime s[100:101]")
        e(f"s_cmp_ge_u32 {WG}, 256\ns_cbranch_scc1 L_end")
        e("s_load_dwordx16 s[16:31], s[0:1], 0\ns_load_dwordx16 s[32:47], s[0:1], 64\ns_load_dwordx2 s[48:49], s[0:1], 128")
        e(f"v_and_b32 {LANE}, 63, v0\nv_lshrrev_b32 v12, 6, v0\nv_readfirstlane_b32 {WV}, v12")
        if self.o["ipf"]:
            n = self.o["ipf"]
            e(f"s_cmp_lg_u32 {WV}, 7\ns_cbranch_scc1 L_noipf")
            e(f"s_getpc_b64 s[90:91]\nL_pc:\ns_bfe_u32 s51, {WG}, {(n << 16) | 3:#x}\ns_lshl_b32 s51, s51, 13")
            e(f"v_lshl_add_u32 v112, {LANE}, 7, s51\nv_min_u32 v112, L_last-L_pc, v112")
            e("v_mov_b32 v113, s91\nv_add_co_u32 v112, vcc, s90, v112\nv_addc_co_u32 v113, vcc, 0, v113, vcc")
            e("@global_load_dword v114, v[112:113], off\nL_noipf:")
        e(f"v_lshlrev_b32 {L16}, 4, {LANE}\nv_lshlrev_b32 {L4}, 2, {LANE}\nv_mov_b32 {VZ}, 0\nv_mov_b32 {VDBG}, 0\nv_mov_b32 {VSY}, {SYNC}")
        e(f"s_and_b32 {XCD}, {WG}, 7\ns_lshr_b32 {IDX}, {WG}, 3\ns_lshr_b32 {SUB}, {XCD}, 1\ns_and_b32 s14, {XCD}, 1")
        e(f"s_min_u32 s15, {IDX}, 29\ns_mul_i32 {FT}, s15, 52\ns_lshr_b32 {FT}, {FT}, 8")
        e(f"s_mul_i32 s51, {FT}, 5\ns_sub_u32 {DT}, s15, s51")
        if self.o["perm"]: P1_ = make_perm(16, 5, 2, self.o["duty1"])
        else: P1_ = [[(((2 * j * 205) >> 7) + i) % 16 for i in range(16)] for j in range(5)]
        for j, o_ in enumerate(P1_):
            lo, hi = pack_perm(o_)
            if j == 0: e(f"s_mov_b32 s74, {lo:#x}\ns_mov_b32 s75, {hi:#x}")
            else: e(f"s_cmp_eq_u32 {DT}, {j}\ns_cselect_b32 s74, {lo:#x}, s74\ns_cselect_b32 s75, {hi:#x}, s75")
        e("s_mul_i32 s51, s14, 0x11111111\ns_xor_b32 s74, s74, s51\ns_xor_b32 s75, s75, s51")
        e(f"s_mul_i32 {C0}, {FT}, 3\ns_min_u32 {C0}, {C0}, 14\ns_cmp_lt_u32 {FT}, 4\ns_cselect_b32 {NCH}, 3, 2\ns_cmp_ge_u32 {IDX}, 30\ns_cselect_b32 {NCH}, 0, {NCH}")
        e(f"s_mul_i32 s51, s14, 5\ns_add_u32 {DT}, {DT}, s51\ns_mul_i32 s51, {SUB}, 6\ns_add_u32 {FT}, {FT}, s51")
        e(f"s_and_b32 {DT2}, {IDX}, 3\ns_lshr_b32 {ST2}, {IDX}, 2")
        e(f"s_lshl2_add_u32 {DT2}, s14, {DT2}\ns_lshl3_add_u32 {ST2}, {SUB}, {ST2}")
        e(f"s_cmp_ge_u32 {WV}, 4\ns_cbranch_scc1 L_aux")

    def kk(self, p, g, ks, dst, stride, base):
        p.e(f"s_bfe_u32 {dst}, s{(74 if g == 1 else 80) + ks // 8}, {(4 << 16) | (4 * (ks % 8)):#x}")
        p.e(f"s_mul_i32 {dst}, {dst}, {stride}")
        if base: p.e(f"s_add_u32 {dst}, {dst}, {base}")
    def slot(self, g, ks): return ((ks + (3 if g == 2 else 0)) % RS) * 4096
    def throttle(self, p):
        l = self.label("thr")
        p.e(f"s_cmp_lg_u32 s85, 0\ns_cbranch_scc1 {l}")
        p.e(f"@ds_read_b32 v20, {VSY} offset:{4*Y_PUB}\n@s_waitcnt vmcnt({self.o['thr']}) lgkmcnt(0)\nv_readfirstlane_b32 s85, v20\ns_nop 0\ns_lshr_b32 s85, s85, 1")
        p.e(f"{l}:")
    def dma(self, g, ks, thr=False):
        p = Prog()
        rs, vo, srd, base = (3072, 4, SW1, "s84") if g == 1 else (4096, 12, SW2, "s92")
        self.kk(p, g, ks, "s72", 32 * rs, base)
        for q in range(4):
            if thr and q % 2 == 0: self.throttle(p)
            p.e(f"s_add_u32 m0, {RINGB}, {self.slot(g, ks) + q * 1024}")
            p.e(f"buffer_load_dwordx4 v{vo + (q & 1)}, {srd}, s72 offen {self.o['wflag']} lds", f"w{g}_{ks}")
            if q < 3: p.e(f"s_add_u32 s72, s72, {8*rs}")
        return p
    NB = {1: 6, 2: 4}
    def tr(self, g, ks):
        p = Prog()
        r = 16 * (ks % self.NB[g]); o = self.slot(g, ks)
        p.wvm(f"w{g}_{ks}")
        for ss in range(4):
            p.e(f"ds_read_b64_tr_b16 {a(r+4*ss,2)}, v{14+ss} offset:{o}", f"t{g}_{ks}")
            p.e(f"ds_read_b64_tr_b16 {a(r+4*ss+2,2)}, v{14+ss} offset:{o+512}", f"t{g}_{ks}")
        return p
    def main_start(self, p):
        e = p.e
        e("s_setprio 3")
        e(f"s_mul_i32 {RINGB}, {WV}, {RINGW}\ns_add_u32 {RINGB}, {RINGB}, {RING0}\ns_mov_b32 s85, 0")
        e(f"v_lshrrev_b32 v20, 3, {LANE}\nv_and_b32 v21, 7, {LANE}\nv_and_b32 v22, 2, v20\nv_xor_b32 v21, v21, v22\nv_lshlrev_b32 v21, 4, v21")
        e("v_mul_u32_u24 v4, 3072, v20\nv_add_u32 v4, v4, v21\nv_xor_b32 v5, 64, v4\nv_lshl_add_u32 v12, v20, 12, v21\nv_xor_b32 v13, 64, v12")
        e(f"s_mul_i32 s84, {WV}, {512*3072}\ns_lshl_b32 s51, {FT}, 7\ns_add_u32 s84, s84, s51")
        e(f"s_mul_i32 s92, {WV}, {384*4096}\ns_lshl_b32 s51, {ST2}, 7\ns_add_u32 s92, s92, s51")
        e(f"v_lshrrev_b32 v104, 5, {LANE}\nv_mul_u32_u24 v105, 1280, v104\nv_and_b32 v106, 31, {LANE}")
        e("v_lshl_add_u32 v107, v106, 4, v105\nv_lshl_add_u32 v108, v106, 3, v105")
        e(f"s_lshl_b32 s50, {WG}, 3\ns_lshl1_add_u32 s50, {WV}, s50\ns_mul_i32 s50, s50, 1280")
        e("s_waitcnt lgkmcnt(0)")
        self.srd(p, 52, 16, 2621440)
        xf = self.o["xflag"]
        e(f"buffer_load_dwordx4 v[20:23], v107, {SX}, s50 offen {xf}", "x")
        e(f"buffer_load_dwordx4 v[24:27], v107, {SX}, s50 offen offset:512 {xf}", "x")
        e(f"buffer_load_dwordx2 v[28:29], v108, {SX}, s50 offen offset:1024 {xf}", "x")
        self.pre(p)
        e("s_barrier")
        self.srd(p, 56, 36, 6291456); self.srd(p, 60, 40, 6291456); self.srd(p, 64, 44, 2621440); self.srd(p, 68, 48, WSEND)
        self.stamp(p)
    def main_setup2(self, p):
        e = p.e
        e(f"v_bfe_u32 v20, {LANE}, 2, 2\nv_and_b32 v21, 3, {LANE}\nv_lshrrev_b32 v22, 4, {LANE}\nv_and_b32 v23, 15, {LANE}")
        e("v_lshlrev_b32 v24, 10, v22\nv_lshl_add_u32 v24, v20, 7, v24\nv_lshl_add_u32 v24, v21, 3, v24")
        e(f"v_lshrrev_b32 v20, 1, v20\nv_and_b32 v21, 1, v22\nv_lshl_or_b32 v20, v21, 1, v20\nv_xor_b32 v20, {WV}, v20\nv_lshlrev_b32 v20, 5, v20")
        e(f"v_add3_u32 v14, v24, v20, {RINGB}\nv_xor_b32 v15, 32, v14\nv_xor_b32 v16, 64, v14\nv_xor_b32 v17, 0x60, v14")
        e(f"s_lshl_b32 s51, {FT}, 7\ns_lshl_b32 s15, {WV}, 5\ns_add_u32 s51, s51, s15\nv_lshl_add_u32 v24, v22, 3, s51")
        e("global_load_dwordx2 v[126:127], v24, s[38:39]", "b1")
        e(f"v_mul_u32_u24 v19, 10240, v22\nv_lshl_add_u32 v19, v23, 4, v19\ns_lshl_b32 s51, {SUB}, 8\nv_add_u32 v120, s51, v19")
        e("v_xor_b32 v121, 0x100, v120\nv_xor_b32 v122, 0x200, v120\nv_xor_b32 v123, 0x300, v120")
        e(f"v_lshrrev_b32 v24, 1, v22\nv_mul_u32_u24 v24, 10240, v24\nv_lshl_add_u32 v24, v23, 4, v24\nv_xor_b32 v25, {SUB}, v21\nv_lshl_add_u32 v6, v25, 8, v24\nv_xor_b32 v7, 0x200, v6")
        e(f"v_subrev_u32 v124, {C0}, v23\nv_mul_u32_u24 v124, {REGSZ}, v124\nv_lshl_add_u32 v124, v22, 4, v124")
        e(f"s_lshl_b32 s51, {WV}, 10\ns_add_u32 s51, s51, {REG0 + UO + 512}\nv_add_u32 v124, s51, v124")
        e(f"s_bfm_b32 s100, {NCH}, {C0}\ns_lshl_b32 s51, s100, 16\ns_or_b32 s100, s100, s51\ns_mov_b32 s101, s100")
        e("v_mul_u32_u24 v18, 1280, v23\nv_lshl_add_u32 v18, v22, 3, v18\nv_lshlrev_b32 v115, 12, v23\nv_lshl_add_u32 v115, v21, 4, v115")
        e(f"s_lshl_b32 s94, {ST2}, 6\ns_lshl_b32 s51, {WV}, 4\ns_add_u32 s94, s94, s51\ns_lshl_b32 s95, s94, 1\nv_lshl_add_u32 v8, v23, 1, s95")
        e(f"s_mul_i32 s94, s94, 1280\ns_mul_i32 s51, {DT2}, 160\ns_add_u32 s94, s94, s51")
        e("v_lshlrev_b32 v24, 3, v22\nv_sub_u32 v24, v23, v24\nv_and_b32 v25, 1, v24\nv_lshlrev_b32 v25, 4, v25\nv_mov_b32 v26, 0x3f80\nv_lshlrev_b32 v25, v25, v26\nv_ashrrev_i32 v24, 1, v24")
        for q in range(4): e(f"v_cmp_eq_u32 vcc, {q}, v24\nv_cndmask_b32 v{116+q}, 0, v25, vcc")
        for q in range(4): e(f"v_cmp_eq_i32 vcc, {q-8}, v24\nv_cndmask_b32 v{104+q}, 0, v25, vcc")
        e("v_lshl_add_u32 v108, v22, 3, v18")
        e("global_load_ushort v114, v8, s[42:43]", "b1")
        if self.o["perm"]: P2_ = make_perm(12, 4, 2, self.o["duty2"])
        else: P2_ = [[(3 * j + i) % 12 for i in range(12)] for j in range(4)]
        e(f"s_and_b32 s15, {IDX}, 3")
        for j, o_ in enumerate(P2_):
            lo, hi = pack_perm(o_)
            if j == 0: e(f"s_mov_b32 s80, {lo:#x}\ns_mov_b32 s81, {hi:#x}")
            else: e(f"s_cmp_eq_u32 s15, {j}\ns_cselect_b32 s80, {lo:#x}, s80\ns_cselect_b32 s81, {hi:#x}, s81")
        e(f"s_and_b32 s51, {XCD}, 1\ns_mul_i32 s51, s51, 0x11111111\ns_xor_b32 s80, s80, s51\ns_xor_b32 s81, s81, s51")
        e(f"s_mul_i32 s86, {WV}, {64*10240}\ns_lshl_b32 s51, {DT}, 10\ns_add_u32 s86, s86, s51\ns_add_u32 s86, s86, {HB}")
    def acc1(self, t, ds): return [v(72 + 4 * ds, 4), v(88 + 4 * ds, 4), a(96 + 4 * ds, 4), a(112 + 4 * ds, 4)][t]
    def acc2(self, di, ss): return v(84 + 4 * di, 4) if ss == 0 else a(68 + 4 * (di * 3 + ss - 1), 4)

    def gemm_loop(self, p, g, nks, nf, ns, nd, nt, ld, mfma, extra):
        NB = self.NB[g]; n = nks * nf
        for i in range(ns): p.ext(ld(i))
        nl = ns
        for ks in range(nks):
            side = Prog()
            if nd < nks and nd - RS < nt:
                if nd >= RS: side.wlg(f"t{g}_{nd-RS}")
                side.ext(self.dma(g, nd)); nd += 1
            if nt < nks and nt < nd and nt - NB < ks:
                side.ext(self.tr(g, nt)); nt += 1
            pre, post = extra(ks)
            gs = groups_of(pre) + groups_of(side)
            p.wlg(f"t{g}_{ks}")
            gi = 0; tot = 3 * nf
            for di in range(nf):
                p.wvm(f"act{ks}_{di}")
                for ss in range(4):
                    p.e(mfma(ks, di, ss))
                    if ss == 0:
                        if nf * ks + di >= 1 and nl < n: p.ext(ld(nl)); nl += 1
                    else:
                        sl = di * 3 + ss
                        while gi < len(gs) and gi < (sl * len(gs) + tot - 1) // tot:
                            p.items.extend(gs[gi]); gi += 1
            assert gi == len(gs)
            p.ext(post)
        assert nl == n and nd == nks and nt == nks

    def gemm1(self, p):
        e = p.e; o = self.o
        HR, ns = 24, o['ns1']
        nd = o['free1']
        def more():
            nonlocal nd
            if nd >= RS: p.wlg(f"t1_{nd-RS}")
            p.ext(self.dma(1, nd, thr=nd < o['nthr'])); nd += 1
            if nd == o["PS1"]: self.sig(p, Y_P1, 20)
            if o.get("fine"): self.stamp(p)
        while nd < o["lead1"]: more()
        p.wvm("b1")
        for ds in range(4): self.unpack(p, 126, 72 + 4 * ds, 2)
        for j in range(o["P1"]):
            p.ext(self.tr(1, j))
            if j == 2 and not o.get('fine'): self.stamp(p)
            if nd < o["D1"]: more()
        while nd < o["D1"]:
            p.wvm(f"w1_{nd-o['lead1']}"); more()
        self.stamp(p)
        self.spin(p, Y_F1, 1, 20, sleep=1)
        e(f"ds_read_b32 {VTAG}, {VSY} offset:{4*Y_TAG}\ns_setprio 2", "tag")
        self.stamp(p)
        def ld(i):
            ks, ds = divmod(i, 4); q = Prog()
            if ds == 0: self.kk(q, 1, ks, "s76", 40960, "s86")
            q.e(f"buffer_load_dwordx4 {v(HR + 4 * (i % ns), 4)}, v{120+ds}, {SWS}, s76 offen sc1", f"act{ks}_{ds}")
            return q
        def mfma(ks, ds, t):
            c = self.acc1(t, ds); src = "0" if (ks == 0 and t > 0) else c
            return f"v_mfma_f32_16x16x32_bf16 {c}, {a(16*(ks%6)+4*t,4)}, {v(HR + 4 * ((4*ks+ds) % ns), 4)}, {src}"
        def extra(ks):
            pre = Prog(); post = Prog()
            q = Prog(); self.kk(q, 1, ks, "s14", 64, None); q.e("v_add_u32 v125, s14, v124")
            q.e(f"s_mov_b64 exec, s[100:101]\nds_write_b128 v125, {v(HR + 4 * ((4 * ks) % ns), 4)}\ns_mov_b64 exec, -1", "uc")
            self._uc = q
            if ks % 4 == 3: self.sig(pre, Y_U + ks // 4, 20)
            if ks in (0, 5, 10): self.stamp(post)
            return pre, post
        def mfma_uc(ks, ds, t):
            s = mfma(ks, ds, t)
            if ds == 0 and t == 0: s = s + "\n" + "\n".join(x for x, _ in self._uc.items)
            return s
        self.gemm_loop(p, 1, 16, 4, ns, nd, o["P1"], ld, mfma_uc, extra)
        self.stamp(p)
    def gemm1_epi(self, p):
        e = p.e; RD = 24
        if self.o["ebpos"] == 0:
            for ks in range(self.o["eb"]): p.ext(self.dma(2, ks))
        e(f"v_add_u32 v20, {RINGB}, {L16}")
        for t in range(1, 4):
            for ds in range(4): e(f"ds_write_b128 v20, {self.acc1(t, ds)} offset:{(t-1)*4096+ds*1024}", "r1w")
        self.sig(p, Y_PART, 21)
        if self.o["ebpos"] == 1:
            for ks in range(self.o["eb"]): p.ext(self.dma(2, ks))
        for t in range(1, 4):
            e(f"s_xor_b32 s51, {WV}, {t}\ns_mul_i32 s51, s51, {RINGW}\ns_add_u32 s51, s51, {RING0 + (t-1)*4096}\nv_add_u32 v{20+t}, s51, {L16}")
        e(f"s_lshl_b32 s50, {FT}, 3\ns_lshl_b32 s51, {WV}, 1\ns_add_u32 s50, s50, s51\ns_mul_i32 s50, s50, 10240")
        e(f"s_lshl_b32 s51, {DT}, 10\ns_add_u32 s50, s50, s51\ns_add_u32 s86, s50, {GB}")
        e(f"s_mul_i32 s89, {DT}, 24\ns_add_u32 s89, s89, {FT}\ns_lshl_b32 s89, s89, 7\ns_add_u32 s89, s89, {F2}")
        c1 = -2 * 0.7978845608028654 * 1.4426950408889634; c3 = c1 * 0.044715
        e(f"s_mov_b32 s90, {fbits(c3)}\nv_mov_b32 v126, {fbits(c1)}")
        self.spin(p, Y_PART, 4, 20)
        for q in range(4):
            for t in range(3): e(f"ds_read_b128 {v(RD+16*t+4*q,4)}, v{21+t} offset:{q*1024}", f"r1r{q}")
        if self.o["ebpos"] == 2:
            for ks in range(self.o["eb"]): p.ext(self.dma(2, ks))
        for pr in range(2):
            p.wlg(f"r1r{2*pr+1}")
            q = [(72 + 8 * pr + i, RD + 8 * pr + i, 88 + 8 * pr + i) for i in range(8)]
            for x, r, t in q: e(f"v_add_f32 v{x}, v{x}, v{r}\nv_add_f32 v{r+16}, v{r+16}, v{r+32}")
            for x, r, t in q: e(f"v_add_f32 v{x}, v{x}, v{r+16}")
            for x, r, t in q: e(f"v_mul_f32 v{t}, v{x}, v{x}")
            for x, r, t in q: e(f"v_fma_f32 v{t}, v{t}, s90, v126")
            for x, r, t in q: e(f"v_mul_f32 v{t}, v{t}, v{x}")
            for x, r, t in q: e(f"v_exp_f32 v{t}, v{t}")
            for x, r, t in q: e(f"v_add_f32 v{t}, 1.0, v{t}")
            for x, r, t in q: e(f"v_rcp_f32 v{t}, v{t}")
            for x, r, t in q: e(f"v_mul_f32 v{t}, v{t}, v{x}")
            o = 56 + 8 * pr
            for i in range(4): e(f"v_cvt_pk_bf16_f32 v{o+i}, v{q[2*i][2]}, v{q[2*i+1][2]}")
            e(f"v_permlane16_swap_b32 v{o}, v{o+2}\nv_permlane16_swap_b32 v{o+1}, v{o+3}")
            e(f"buffer_store_dwordx4 {v(o,4)}, v{6+pr}, {SWS}, s86 offen sc1", "gs")
        self.sig(p, Y_EPI, 20)
        self.stamp(p)
        for ks in range(min(self.o["eb"], self.o["P2"])): p.ext(self.tr(2, ks))
        e("s_waitcnt vmcnt(0)")
        l = self.label("nolast")
        e(f"v_mov_b32 v20, 1\ns_mov_b64 exec, 1\nds_add_rtn_u32 v20, {VSY}, v20 offset:{4*Y_G}\ns_mov_b64 exec, -1\ns_waitcnt lgkmcnt(0)\nv_readfirstlane_b32 s79, v20")
        e(f"s_cmp_lg_u32 s79, 3\ns_cbranch_scc1 {l}")
        self.flag_store(p, "s89", "@")
        e(f"{l}:")
        self.stamp(p)
    def gemm2(self, p, spare):
        e = p.e; o = self.o
        GR, ns = 24, o['ns2']
        e(f"s_mul_i32 s86, {WV}, {48*10240}\ns_mul_i32 s51, {DT2}, 1280\ns_add_u32 s86, s86, s51\ns_add_u32 s86, s86, {GB}")
        e(f"s_mul_i32 s88, {DT2}, {80*4096}\ns_add_u32 s88, s88, s95\ns_add_u32 s88, s88, {YT}")
        nd = o["eb"]; nt = min(o["eb"], o["P2"])
        e("v_lshlrev_b32 v114, 16, v114")
        for i in range(20): e(f"v_mov_b32 v{84+i}, v114")
        self.spin(p, Y_G, 4, 20)
        def more():
            nonlocal nd
            if nd >= RS: p.wlg(f"t2_{nd-RS}")
            p.ext(self.dma(2, nd)); nd += 1
            if nd == o["PS2"]: self.sig(p, Y_P2, 20)
        while nd < min(o["D2"], nt + o["lead2"]): more()
        while nt < o["P2"]:
            p.ext(self.tr(2, nt)); nt += 1
            if nd < o["D2"]: more()
        while nd < o["D2"]:
            p.wvm(f"w2_{nd-o['lead2']}"); more()
        self.stamp(p)
        self.spin(p, Y_F2, 1, 20, sleep=1)
        self.stamp(p)
        def ld(i):
            ks, di = divmod(i, 5); q = Prog()
            if di == 0: self.kk(q, 2, ks, "s76", 40960, "s86")
            q.e(f"buffer_load_dwordx4 {v(GR + 4 * (i % ns), 4)}, v19, {SWS}, s76 offen offset:{256*di} sc1", f"act{ks}_{di}")
            return q
        def mfma(ks, di, ss):
            c = self.acc2(di, ss); src = "0" if (ks == 0 and ss > 0) else c
            return f"v_mfma_f32_16x16x32_bf16 {c}, {v(GR + 4 * ((5*ks+di) % ns), 4)}, {a(16*(ks%4)+4*ss,4)}, {src}"
        yk = o["ychk"]; assert yk >= 9
        xr = lambda j: [v(120, 4), v(124, 4), v(110, 4)][j]
        def extra(ks):
            pre = Prog(); post = Prog()
            if ks == o["ytrig"]: self.sig(post, Y_P3, 20)
            if ks == o["xk"]:
                for j in range(3): post.e(f"buffer_load_dwordx4 {xr(j)}, v108, {SX}, s94 offen offset:{64*j}", f"x{j}")
            if ks == yk:
                self.spin(post, Y_F3, 1, 20, sleep=2)
                for di in range(5):
                    post.e(f"buffer_load_dwordx4 {a(4*di,4)}, v115, {SWS}, s88 offen sc1", f"y{di}")
                    post.e("s_add_u32 s88, s88, 65536")
            if ks in (0, 3, 7): self.stamp(post)
            return pre, post
        self.gemm_loop(p, 2, 12, 5, ns, nd, nt, ld, mfma, extra)
        self.stamp(p)
        e(f"v_add_u32 v20, {RINGB}, {L16}")
        for t in range(1, 4):
            for di in range(5): e(f"ds_write_b128 v20, {self.acc2(di,t)} offset:{(t-1)*5120+di*1024}", "r2w")
        for t in range(1, 4):
            e(f"s_xor_b32 s51, {WV}, {t}\ns_mul_i32 s51, s51, {RINGW}\ns_add_u32 s51, s51, {RING0 + (t-1)*5120}\nv_add_u32 v{20+t}, s51, {L16}")
        for di in range(5):
            p.wvm(f"x{di//2}")
            e(f"v_mfma_f32_16x16x32_bf16 {self.acc2(di,0)}, {v(104 if di & 1 else 116, 4)}, {xr(di//2)}, {self.acc2(di,0)}")
        for di in range(5):
            p.wvm(f"y{di}")
            e(f"v_mfma_f32_16x16x32_bf16 {self.acc2(di,0)}, {a(4*di,4)}, v[116:119], {self.acc2(di,0)}")
        e("s_waitcnt lgkmcnt(0)\ns_barrier")
        for di in range(5):
            for t in range(3): e(f"ds_read_b128 {v(GR+12*di+4*t,4)}, v{21+t} offset:{di*1024}", f"r2r{di}")
        for di in range(5):
            c = 84 + 4 * di; r = GR + 12 * di
            p.wlg(f"r2r{di}")
            for hq in range(2): e(f"v_pk_add_f32 {v(r+2*hq,2)}, {v(r+2*hq,2)}, {v(r+4+2*hq,2)}\nv_pk_add_f32 {v(c+2*hq,2)}, {v(c+2*hq,2)}, {v(r+8+2*hq,2)}")
            for hq in range(2): e(f"v_pk_add_f32 {v(c+2*hq,2)}, {v(c+2*hq,2)}, {v(r+2*hq,2)}")
            for hq in range(2): e(f"v_cvt_pk_bf16_f32 v{104+2*di+hq}, v{c+2*hq}, v{c+2*hq+1}")
            e(f"buffer_store_dwordx2 {v(104+2*di,2)}, v18, {SOUT}, s94 offen offset:{32*di} {o['oflag']}", "os")
        self.stamp(p)

    def main(self):
        self.role = "main"
        p = Prog(); e = p.e
        self.main_start(p)
        for ks in range(self.o["pre1"]): p.ext(self.dma(1, ks))
        self.ln(p)
        e(f"s_setprio {self.o['mprio']}")
        for ks in range(self.o["pre1"], self.o["free1"]): p.ext(self.dma(1, ks))
        self.stamp(p)
        self.main_setup2(p)
        e(f"s_cmp_lt_u32 {IDX}, 30\ns_cbranch_scc1 L_g1")
        q = Prog()
        q.e("s_waitcnt vmcnt(0)")
        self.spin(q, Y_PUB, 2, 20, sleep=4)
        for ks in range(self.o["eb"]): q.ext(self.dma(2, ks))
        for ks in range(min(self.o["eb"], self.o["P2"])): q.ext(self.tr(2, ks))
        self.sig(q, Y_G, 20)
        q.e("s_waitcnt vmcnt(0) lgkmcnt(0)\ns_branch L_g2")
        for line in finalize(q).split("\n"):
            if line.strip(): e(line.strip() if line.strip().endswith(":") else "@" + line.strip())
        e("L_g1:")
        self.gemm1(p)
        self.gemm1_epi(p)
        e("L_g2:")
        self.gemm2(p, False)
        e(f"s_or_b32 s51, {WG}, {WV}\ns_cmp_lg_u32 s51, 0\ns_cbranch_scc1 L_noep")
        e(f"s_mov_b64 exec, 1\nbuffer_store_dword {VTAG}, {VZ}, {SWS}, 0 offen\ns_mov_b64 exec, -1")
        e("L_noep:")
        self.finish(p)
        return p

    def red32(self, p, regs, tmp):
        for m in ("quad_perm:[1,0,3,2]", "quad_perm:[2,3,0,1]", "row_half_mirror", "row_mirror"):
            for r in regs: p.e(f"v_add_f32_dpp v{r}, v{r}, v{r} {m} row_mask:0xf bank_mask:0xf")
        for i, r in enumerate(regs): p.e(f"v_mov_b32 v{tmp+i}, v{r}")
        for i, r in enumerate(regs): p.e(f"v_permlane16_swap_b32 v{r}, v{tmp+i}")
        for i, r in enumerate(regs): p.e(f"v_add_f32 v{r}, v{r}, v{tmp+i}")
    RAW = [4, 5, 6, 7, 8, 12, 13, 14, 15, 16, 17, 18]
    def conv_start(self, p):
        e = p.e; RAW = self.RAW
        e(f"s_sub_u32 s14, {WV}, 4\ns_cmp_ge_u32 s14, {NCH}\ns_cbranch_scc1 L_end\ns_setprio {self.o['kprio']}")
        e(f"s_lshl_b32 {CH}, {DT}, 6\ns_lshl4_add_u32 {CH}, {SUB}, {CH}\ns_add_u32 {CH}, {CH}, {C0}\ns_add_u32 {CH}, {CH}, s14")
        e(f"s_mul_i32 {REGB}, s14, {REGSZ}\ns_add_u32 {REGB}, {REGB}, {REG0}")
        e(f"s_mul_i32 s51, {CH}, 384\nv_add_u32 v110, s51, {L4}\nv_lshlrev_b32 v111, 1, {LANE}\nv_add_u32 v111, s51, v111")
        e(f"s_lshr_b32 s79, {CH}, 1\ns_lshl_b32 s79, s79, 2")
        e("s_waitcnt lgkmcnt(0)")
        e(f"s_load_dword s80, s[30:31], s79\ns_load_dword s81, s[32:33], s79")
        if not self.o["pfirst"]: e("s_barrier")
        for i in range(6):
            e(f"global_load_dword v{RAW[2*i]}, v110, s[{18+2*i}:{19+2*i}] {self.o['pflag']}")
            e(f"global_load_ushort v{RAW[2*i+1]}, v111, s[{18+2*i}:{19+2*i}] offset:256 {self.o['pflag']}")
        self.pre(p)
        if self.o["pfirst"]: e("s_barrier")
        self.srd(p, 68, 48, WSEND)
        e("s_waitcnt lgkmcnt(0)")
    def serv_start(self, p):
        e = p.e
        e("s_setprio 3")
        e(f"v_add_u32 v109, {SYNC}, {L4}\ns_mov_b32 exec_hi, 0\nds_write_b32 v109, {VZ}\ns_mov_b64 exec, -1")
        e("s_waitcnt lgkmcnt(0)")
        self.pre(p)
        e(f"s_load_dword {TAG}, s[48:49], 0")
        e("s_barrier")
        self.srd(p, 60, 40, 6291456); self.srd(p, 68, 48, WSEND)
    def ln(self, p):
        e = p.e
        RAW, F, D, T, H = 20, 30, 50, 70, 90
        inv = fbits(1.0 / 640)
        e(f"s_lshr_b32 s51, {WV}, 1\ns_mul_i32 s51, s51, {REGSZ}\ns_and_b32 s15, {WV}, 1\ns_mul_i32 s15, s15, {2*PT}\ns_add_u32 s51, s51, s15\ns_add_u32 s51, s51, {LNT}")
        e(f"v_mul_u32_u24 v102, {PT}, v104\nv_add_u32 v102, s51, v102\nv_lshl_add_u32 v101, v106, 3, v102\nv_lshl_add_u32 v100, v106, 4, v102")
        p.wvm("x")
        self.stamp(p)
        self.unpack(p, RAW, F, 10)
        def psum(src, dst):
            e(f"v_pk_add_f32 {v(dst,2)}, {v(src,2)}, {v(src+2,2)}\nv_pk_add_f32 {v(dst+2,2)}, {v(src+4,2)}, {v(src+6,2)}")
            for i in range(4, 10): e(f"v_pk_add_f32 {v(dst+2*(i&1),2)}, {v(dst+2*(i&1),2)}, {v(src+2*i,2)}")
            e(f"v_pk_add_f32 {v(dst,2)}, {v(dst,2)}, {v(dst+2,2)}\nv_add_f32 v{dst}, v{dst}, v{dst+1}")
        def psq(src, dst):
            e(f"v_pk_mul_f32 {v(dst,2)}, {v(src,2)}, {v(src,2)}\nv_pk_mul_f32 {v(dst+2,2)}, {v(src+2,2)}, {v(src+2,2)}")
            for i in range(2, 10): e(f"v_pk_fma_f32 {v(dst+2*(i&1),2)}, {v(src+2*i,2)}, {v(src+2*i,2)}, {v(dst+2*(i&1),2)}")
            e(f"v_pk_add_f32 {v(dst,2)}, {v(dst,2)}, {v(dst+2,2)}\nv_add_f32 v{dst}, v{dst}, v{dst+1}")
        def rstd(var, out):
            e(f"v_max_f32 v{var}, 0, v{var}")
            self.rbf(p, var); e(f"v_add_f32 v{var}, {fbits(1e-5)}, v{var}"); self.rbf(p, var)
            e(f"v_sqrt_f32 v{var}, v{var}"); self.rbf(p, var); e(f"v_rcp_f32 v{out}, v{var}")
        psum(F, T); self.red32(p, [T], T + 2)
        e(f"v_mul_f32 v{T}, {inv}, v{T}\nv_mov_b32 v{T+4}, v{T}"); self.rbf(p, T + 4)
        for i in range(10): e(f"v_pk_add_f32 {v(D+2*i,2)}, {v(F+2*i,2)}, {v(T+4,2)} op_sel_hi:[1,0] neg_lo:[0,1] neg_hi:[0,1]")
        e(f"v_sub_f32 v{T+5}, v{T}, v{T+4}")
        psq(D, T); self.red32(p, [T], T + 2)
        e(f"v_mul_f32 v{T}, {inv}, v{T}\nv_fma_f32 v{T}, -v{T+5}, v{T+5}, v{T}")
        rstd(T, T + 6)
        for i in range(10): e(f"v_pk_mul_f32 {v(D+2*i,2)}, {v(D+2*i,2)}, {v(T+6,2)} op_sel_hi:[1,0]")
        for i in range(10): e(f"v_cvt_pk_bf16_f32 v{RAW+i}, v{D+2*i}, v{D+2*i+1}")
        self.unpack(p, RAW, F, 10)
        psum(F, T); psq(F, T + 4); self.red32(p, [T, T + 4], T + 2)
        e(f"v_mul_f32 v{T}, {inv}, v{T}\nv_mul_f32 v{T+4}, {inv}, v{T+4}\nv_fma_f32 v{T+4}, -v{T}, v{T}, v{T+4}")
        self.rbf(p, T)
        rstd(T + 4, T + 6)
        e(f"v_mul_f32 v{T+2}, v{T}, v{T+6}\nv_lshrrev_b32 v{T+4}, 16, v{T+4}\nv_or_b32 v{T+4}, v{T+4}, v{T}")
        for i in range(10): e(f"v_pk_fma_f32 {v(D+2*i,2)}, {v(F+2*i,2)}, {v(T+6,2)}, {v(T+2,2)} op_sel_hi:[1,0,0] neg_lo:[0,0,1] neg_hi:[0,0,1]")
        e(f"ds_write_b32 v102, v{T+4} offset:1280", "lnw")
        for i in range(10): e(f"v_cvt_pk_bf16_f32 v{H+i}, v{D+2*i}, v{D+2*i+1}")
        e(f"ds_write_b128 v100, {v(H,4)}\nds_write_b128 v100, {v(H+4,4)} offset:512\nds_write_b64 v101, {v(H+8,2)} offset:1024", "lnw")
        self.sig(p, Y_LN, T)

    def serv(self):
        self.role = "serv"
        p = Prog(); e = p.e; o = self.o
        self.serv_start(p)
        self.stamp(p)
        e(f"v_bfe_u32 v12, {LANE}, 2, 2\nv_mul_u32_u24 v12, {PT}, v12\nv_lshrrev_b32 v13, 4, {LANE}\nv_lshl_add_u32 v12, v13, 5, v12")
        e(f"v_and_b32 v13, 3, {LANE}\nv_lshl_add_u32 v12, v13, 3, v12\nv_add_u32 v12, {LNT}, v12")
        e(f"s_mul_i32 s84, {WG}, 10240\ns_add_u32 s84, s84, {HB}\ns_add_u32 s85, s84, 4096\ns_add_u32 s86, s84, 8192")
        e(f"s_lshl_b32 s87, {WG}, 4\ns_add_u32 s87, s87, {STAT}\nv_lshlrev_b32 v13, 12, {LANE}")
        e(f"s_lshl_b32 s89, {WG}, 2\ns_add_u32 s89, s89, {F1}")
        e("s_waitcnt lgkmcnt(0)")
        self.mktag(p)
        e(f"ds_write_b32 {VSY}, {VTAG} offset:{4*Y_TAG}")
        self.spin(p, Y_LN, 4, 20, sleep=1)
        if self.o.get("dly_p"): e(f"s_sleep {self.o['dly_p']}")
        self.stamp(p)
        for b in range(11):
            e(f"ds_read_b64_tr_b16 {v(24+4*b,2)}, v12 offset:{128*b}\nds_read_b64_tr_b16 {v(26+4*b,2)}, v12 offset:{128*b+REGSZ}", f"lr{b}")
            if b >= 3:
                c = b - 3; p.wlg(f"lr{c}")
                e(f"buffer_store_dwordx4 {v(24+4*c,4)}, {L16}, {SWS}, s{84 + c//4} offen offset:{(c%4)*1024} sc1")
        for c in range(8, 10):
            p.wlg(f"lr{c}")
            e(f"buffer_store_dwordx4 {v(24+4*c,4)}, {L16}, {SWS}, s{84 + c//4} offen offset:{(c%4)*1024} sc1")
        p.wlg("lr10")
        e(f"s_mov_b64 exec, 3\nbuffer_store_dwordx4 v[64:67], v13, {SWS}, s87 offen sc1\ns_mov_b64 exec, -1")
        self.sig(p, Y_PUB, 20)
        self.stamp(p)
        e(f"s_mul_i32 s50, {DT2}, 80\ns_lshr_b32 s50, s50, 6\ns_mul_i32 s92, s50, {24*128}\ns_add_u32 s92, s92, {F2}")
        e(f"v_min_u32 v15, 47, {LANE}\nv_lshlrev_b32 v15, 7, v15\nv_min_u32 v16, 19, {LANE}\nv_lshlrev_b32 v16, 4, v16")
        e(f"s_mul_i32 s93, {DT2}, 320\ns_add_u32 s93, s93, {F3}")
        e("s_waitcnt vmcnt(0)")
        if self.o.get("dly_f"):
            self.sig(p, Y_PUB, 20); e(f"s_sleep {self.o['dly_f']}")
        self.flag_store(p, "s89")
        self.sig(p, Y_PUB, 20)
        self.stamp(p)
        e(f"s_cmp_lt_u32 {IDX}, 30\ns_cbranch_scc1 L_s1")
        e(f"v_lshrrev_b32 v17, 3, {LANE}\nv_lshlrev_b32 v17, 12, v17\nv_and_b32 v18, 7, {LANE}\nv_lshl_add_u32 v17, v18, 7, v17")
        e(f"s_lshl_b32 s88, {SUB}, 10\ns_and_b32 s51, {IDX}, 1\ns_lshl_b32 s51, s51, 15\ns_add_u32 s88, s88, s51\ns_and_b32 s51, {XCD}, 1\ns_lshl_b32 s51, s51, 16\ns_add_u32 s88, s88, s51")
        for i in range(o["nsp"]):
            e(f"buffer_load_dword v{24+i}, v17, {SW2}, s88 offen\ns_add_u32 s88, s88, 131072")
        e("s_waitcnt vmcnt(0)\ns_branch L_s2\nL_s1:")
        self.spin(p, Y_P1, 1, 20, sleep=2)
        self.stamp(p)
        e(f"s_mov_b32 s50, {F1}")
        self.poll(p, L16, "s50", 20, wide=True, sleep=o["psleep"])
        self.sig(p, Y_F1, 20)
        self.stamp(p)
        if self.debug: e(f"v_writelane_b32 {VDBG}, s78, 31")
        e("L_s2:")
        self.spin(p, Y_P2, 1, 20, sleep=4)
        self.stamp(p)
        self.poll(p, "v15", "s92", 20, sleep=o["psleep2"])
        self.sig(p, Y_F2, 20)
        self.stamp(p)
        if self.debug: e(f"v_writelane_b32 {VDBG}, s78, 30")
        self.spin(p, Y_P3, 1, 20, sleep=4)
        self.poll(p, "v16", "s93", 20, wide=True, sleep=o["psleep2"])
        self.sig(p, Y_F3, 20)
        if self.debug: e(f"v_writelane_b32 {VDBG}, s78, 29")
        self.finish(p)
        return p

    def kgen(self, p):
        e = p.e; RAW = self.RAW
        L2E = 1.4426950408889634
        l2e_hi = struct.unpack("<f", struct.pack("<f", L2E))[0]; l2e_lo = L2E - l2e_hi
        VDT, VD1, VD2, VDS, WA, RA, RB = 54, 55, 56, 57, 58, 59, 60
        e(f"s_and_b32 s51, {CH}, 1\ns_lshl_b32 s51, s51, 4\ns_lshr_b32 s80, s80, s51\ns_lshl_b32 s80, s80, 16\ns_lshr_b32 s81, s81, s51\ns_lshl_b32 s81, s81, 16")
        e(f"v_mov_b32 v62, s80\nv_mov_b32 v63, {fbits(l2e_hi)}\nv_mul_f32 v64, v62, v63\nv_fma_f32 v65, v62, v63, -v64\nv_fmac_f32 v65, {fbits(l2e_lo)}, v62")
        e(f"v_exp_f32 v64, v64\nv_mul_f32 v65, {fbits(0.6931471805599453)}, v65\nv_fma_f32 v{VDT}, v64, v65, v64")
        self.rbf(p, VDT)
        e(f"v_mul_f32 v{VD1}, {fbits(L2E)}, v{VDT}\nv_mul_f32 v{VD2}, 0.15915494, v{VDT}")
        e(f"v_cmp_eq_u32 vcc, 0, {LANE}\nv_mov_b32 v62, s81\nv_cndmask_b32 v{VDS}, 0, v62, vcc")
        e(f"s_mov_b32 m0, {REGB}")
        e(f"v_and_b32 v62, 31, {LANE}\nv_lshrrev_b32 v63, 5, {LANE}\nv_lshlrev_b32 v63, 4, v63\nv_add_u32 v63, {REGB}, v63")
        e(f"v_mul_u32_u24 v64, {KP}, v62\nv_add_u32 v{RB}, v64, v63")
        e(f"v_min_u32 v62, 20, v62\nv_mul_u32_u24 v64, {KP}, v62\nv_add_u32 v{RA}, v64, v63")
        e("v_mov_b32 v28, 0x3f80")
        e("s_waitcnt vmcnt(0)")
        self.stamp(p)
        PK = 116; pk = [0]; P = 62
        FA, FB = 16, 48
        def mf(rd):
            l = []
            for s in range(8):
                q = Prog()
                c = a(0, 16)
                q.e(f"v_mfma_f32_32x32x16_bf16 {a(0,16)}, {a(FA+4*s,4)}, {a(FB+4*s,4)}, {c}")
                l.append(q)
            return l
        p.e("s_mov_b32 s76, 0\nL_kg:")
        for rd in (1,):
            usepk = self.o["pk"]
            q = Prog(); e = q.e
            def cmul(sets):
                if usepk:
                    for d, x, y in sets: e(f"v_pk_mul_f32 {v(d,2)}, {v(x,2)}, {v(y,2)} op_sel_hi:[0,1]")
                    for d, x, y in sets: e(f"v_pk_fma_f32 {v(d,2)}, {v(x,2)}, {v(y,2)}, {v(d,2)} op_sel:[1,1,0] op_sel_hi:[1,0,1] neg_lo:[1,0,0]")
                else:
                    for d, x, y in sets: e(f"v_mul_f32 v{d}, v{x}, v{y}\nv_mul_f32 v{d+1}, v{x}, v{y+1}")
                    for d, x, y in sets: e(f"v_fma_f32 v{d}, -v{x+1}, v{y+1}, v{d}\nv_fmac_f32 v{d+1}, v{x+1}, v{y}")
            def puts(l, neg):
                rs = []
                for row, z in l:
                    r = PK + pk[0] % 8; pk[0] += 1; rs.append(r)
                    e(f"v_cvt_pk_bf16_f32 v{r}, v{z}, {'-' if neg else ''}v{z+1}")
                for (row, z), r in zip(l, rs): e(f"ds_write_addtid_b32 v{r} offset:{row*KP}", "kw")
            for i in range(6):
                e(f"v_lshlrev_b32 v{P+i}, 16, v{RAW[2*i]}\nv_alignbit_b32 v{RAW[2*i]}, v{RAW[2*i+1]}, v{RAW[2*i]}, 16")
            AR, AI = 68, 69
            e(f"v_mul_f32 v{AR}, v{P}, v{VD1}\nv_mul_f32 v{AI}, v{P+1}, v{VD2}")
            e(f"v_mul_f32 v{P+2}, v{P+2}, v{VDT}\nv_mul_f32 v{P+3}, v{P+3}, v{VDT}")
            E1, E8, E256 = 70, 72, 74
            TM_, TA = 76, 79
            for i, t in enumerate((1.0, 8.0, 256.0)):
                if i == 0: e(f"v_mov_b32 v{TM_}, v{AR}\nv_fract_f32 v{TA}, v{AI}")
                else: e(f"v_mul_f32 v{TM_+i}, {fbits(t)}, v{AR}\nv_mul_f32 v{TA+i}, {fbits(t)}, v{AI}\nv_fract_f32 v{TA+i}, v{TA+i}")
            X = 82
            cmul([(X, P + 4, P + 2)])
            for i in range(3):
                e(f"v_exp_f32 v{TM_+i}, v{TM_+i}\nv_cos_f32 v{E1+2*i}, v{TA+i}\nv_sin_f32 v{E1+2*i+1}, v{TA+i}")
            for i in range(3): e(f"v_mul_f32 v{E1+2*i}, v{E1+2*i}, v{TM_+i}\nv_mul_f32 v{E1+2*i+1}, v{E1+2*i+1}, v{TM_+i}")
            E2, E4, E16, E512 = 98, 100, 102, 104
            EA, EB, E32, Y, Z = 106, 20, 114, 30, 38
            cmul([(E2, E1, E1), (E16, E8, E8), (E512, E256, E256), (X + 2, X, E1)])
            cmul([(E4, E2, E2), (EA + 6, E16, E8), (E32, E16, E16), (X + 4, X, E2), (X + 6, X + 2, E2)])
            p.ext(q)
            p.e("s_waitcnt lgkmcnt(0)")
            q = Prog(); e = q.e
            e(f"ds_write_addtid_b32 v28", "kw")
            puts([(1, E8), (2, E16), (3, EA + 6), (4, E32)], False)
            cmul([(EB, E8, E32), (EB + 2, E16, E32), (EB + 4, EA + 6, E32), (EB + 6, E32, E32)])
            cur, nxt = EB, EA
            extra = [[(X + 8 + 2 * i, X + 2 * i, E4) for i in range(4)], [(Y + 2 * i, X + 4 * i, E256) for i in range(4)],
                     [(Z, X, E512), (Z + 2, X + 8, E512), (Z + 4, Y, E512), (Z + 6, Y + 4, E512)],
                     [(Z + 8, Z, E512), (Z + 10, Z + 4, E512)], [(Z + 12, Z + 8, E512), (Z + 14, Z + 10, E512)], [(E1, Z + 12, E512)]]
            for st in range(6):
                j0 = 9 + 4 * st
                n = min(4, 32 - j0)
                cmul([(nxt + 2 * i, cur + 2 * i, E32) for i in range(n)])
                puts([(j0 - 4 + i, cur + 2 * i) for i in range(4)], False)
                cmul(extra[st])
                cur, nxt = nxt, cur
            puts([(29 + i, cur + 2 * i) for i in range(3)], False)
            if rd > 0: p.ext(interleave(q, mf(rd - 1)))
            else: p.ext(q)
            for s_ in range(8): p.e(f"ds_read_b128 {a(FB+4*s_,4)}, v{RB} offset:{s_*32}", "kr")
            e = p.e
            puts([(i, X + 2 * i) for i in range(4)], True); puts([(4 + i, X + 8 + 2 * i) for i in range(4)], True)
            puts([(8 + i, Y + 2 * i) for i in range(4)], True); puts([(12 + i, Z + 2 * i) for i in range(4)], True)
            puts([(16 + i, Z + 8 + 2 * i) for i in range(4)] + [(20, E1)], True)
            for s_ in range(8): p.e(f"ds_read_b128 {a(FA+4*s_,4)}, v{RA} offset:{s_*32}", "kr")
            p.e("s_cmp_lg_u32 s76, 0\ns_cbranch_scc1 L_kg1")
            for i in range(16): p.e(f"v_accvgpr_write_b32 a{i}, 0")
            p.e("L_kg1:")
            if self.debug: p.e(f"s_memrealtime s[82:83]\ns_waitcnt lgkmcnt(0)\ns_add_u32 s50, s76, 20\nv_mov_b32 v61, s82\nv_cmp_eq_u32 vcc, s50, {LANE}\nv_cndmask_b32 {VDBG}, {VDBG}, v61, vcc")
            p.e("s_add_u32 s76, s76, 1\ns_cmp_lt_u32 s76, 3\ns_cbranch_scc1 L_kg")
        e = p.e
        e(f"v_and_b32 v62, 31, {LANE}\nv_lshrrev_b32 v63, 5, {LANE}\ns_add_u32 s51, {REGB}, {KCO}")
        e(f"v_lshlrev_b32 v64, 4, v62\nv_lshl_add_u32 v64, v63, 3, v64\nv_add_u32 v64, s51, v64")
        e(f"v_cmp_eq_u32 vcc, 0, v63\nv_lshlrev_b32 v65, 3, v62\nv_add_u32 v65, 512, v65\nv_lshlrev_b32 v66, 2, v62\nv_add_u32 v66, 768, v66")
        e(f"v_cndmask_b32 v65, v66, v65, vcc\nv_add_u32 v65, s51, v65\nv_mov_b32 v66, 128\nv_cndmask_b32 v66, v66, 4, vcc\nv_add_u32 v66, v65, v66")
        e(f"v_lshlrev_b32 v67, 1, v62\nv_lshl_add_u32 v67, v63, 8, v67\nv_add_u32 v67, s51, v67")
        self.spin(p, Y_PUB, 1, 68)
        for q in mf(2): p.ext(q)
        e(f"v_mov_b32 v76, 0\nv_mov_b32 v77, 0\nv_mov_b32 v78, 0\nv_mov_b32 v79, 0\nv_add_u32 v15, {REGB}, {L16}")
        for i in range(4): e(f"ds_write_b128 v15, v[76:79] offset:{R0O + 1024*i}", "kc")
        e("s_mov_b64 exec, 3")
        e(f"ds_write_b128 v15, v[76:79] offset:{KCO - 32}", "kc")
        e("s_mov_b32 exec_lo, -1")
        e(f"ds_write_b128 v15, v[76:79] offset:{UO}", "kc")
        e("s_mov_b64 exec, -1")
        blocks = [(-2, 34, 8), (32, 32, 4)]
        info = []
        for bi, (v0, nl, stride) in enumerate(blocks):
            cis = lambda y: y if y < 0 else ci(y)
            base = cis(8 * v0)
            offs = {}
            for t in range(-1, 8):
                o = [cis(8 * (v0 + l) + 7 - t) - (base + stride * l) for l in range(nl)]
                offs[t] = o[0]
                assert all(x == o[0] for x in o)
            AD = 100 + 2 * bi
            e(f"s_add_u32 s51, {REGB}, {KCO + 2*base}\nv_mul_u32_u24 v{AD}, {2*stride}, {LANE}\nv_add_u32 v{AD}, s51, v{AD}")
            e(f"s_add_u32 s51, {REGB}, {(75 - v0) * 16}\nv_sub_u32 v{AD+1}, s51, {L16}")
            info.append(offs)
        e(f"v_cmp_gt_u32 vcc, 16, {LANE}\nv_mov_b32 v104, 563\nv_mov_b32 v105, 512\nv_cndmask_b32 v104, v104, v105, vcc\nv_add_u32 v104, v104, {LANE}")
        e(f"v_mov_b32 v106, 1011\nv_cndmask_b32 v105, v106, v105, vcc\nv_add_u32 v105, v105, {LANE}\nv_cvt_f32_u32 v105, v105\nv_cvt_pk_bf16_f32 v105, v105, v105\nv_and_b32 v105, 0xffff, v105")
        e(f"s_sub_u32 s51, {REGB}, {2*0x4280 - KCO}\nv_lshl_add_u32 v105, v105, 1, s51")
        e(f"s_add_u32 s51, {REGB}, {2*607}\nv_lshlrev_b32 v104, 1, v104\nv_sub_u32 v104, s51, v104")
        e(f"v_lshlrev_b32 v106, 1, {LANE}\ns_add_u32 s51, {REGB}, 4096\nv_sub_u32 v107, s51, v106\nv_add_u32 v106, {REGB}, v106")
        for i in range(12): e(f"v_accvgpr_read_b32 v{82+i}, a{i}")
        e(f"v_add_f32 v82, v82, v{VDS}")
        for i in range(6): e(f"v_cvt_pk_bf16_f32 v{70+i}, v{82+2*i}, v{83+2*i}")
        e(f"ds_write_b64 v64, v[70:71]\nds_write_b32 v65, v72\nds_write_b32 v66, v73\nds_write_b16 v67, v74 offset:1024", "kc")
        e("s_mov_b32 exec_hi, 0")
        e(f"ds_write_b16_d16_hi v67, v74 offset:{1024+64}\nds_write_b16 v67, v75 offset:{1024+128}\nds_write_b16_d16_hi v67, v75 offset:{1024+192}", "kc")
        e("s_mov_b64 exec, -1")
        vrs = []
        for bi, (v0, nl, stride) in enumerate(blocks):
            RR = 20 + 9 * bi; AD = 100 + 2 * bi; offs = info[bi]
            e(f"s_mov_b32 exec_hi, {(1 << (nl - 32)) - 1}")
            seen = {}; vr = {}
            for t in range(-1, 8):
                o = offs[t]
                if o not in seen:
                    seen[o] = RR + len(seen)
                    e(f"ds_read_u16 v{seen[o]}, v{AD} offset:{2*o}", f"kx{bi}")
                vr[t] = seen[o]
            vrs.append(vr)
        e("ds_read_u16 v40, v105", "kq")
        e("s_mov_b64 exec, -1")
        for i in range(2):
            e(f"ds_read_u16 v{41+i}, v106 offset:{KCO + 2*(388 + 64*i)}\nds_read_u16 v{43+i}, v106 offset:{KCO + 2*(514 + 64*i)}", "kq")
        for bi, (v0, nl, stride) in enumerate(blocks):
            AD = 100 + 2 * bi; O = 70 + 8 * bi; vr = vrs[bi]
            p.wlg(f"kx{bi}")
            for i in range(4): e(f"v_lshl_or_b32 v{O+i}, v{vr[2*i+1]}, 16, v{vr[2*i]}")
            for i in range(4): e(f"v_lshl_or_b32 v{O+4+i}, v{vr[2*i]}, 16, v{vr[2*i-1]}")
            e(f"s_mov_b32 exec_hi, {(1 << (nl - 32)) - 1}")
            e(f"ds_write_b128 v{AD+1}, {v(O,4)} offset:{R0O}\nds_write_b128 v{AD+1}, {v(O+4,4)} offset:{R1O}", "kt")
            e("s_mov_b64 exec, -1")
        p.wlg("kq")
        e(f"ds_write_b16 v107, v41 offset:{Q2O - 4096 + 2*188}\nds_write_b16 v107, v43 offset:{Q3O - 4096 + 2*126}", "kt")
        e(f"s_mov_b32 exec_hi, {(1 << 31) - 1:#x}\nds_write_b16 v107, v44 offset:{Q3O - 4096 + 2*(126-64)}", "kt")
        e(f"s_mov_b32 exec_hi, {(1 << 29) - 1:#x}\nds_write_b16 v107, v42 offset:{Q2O - 4096 + 2*(188-64)}", "kt")
        e(f"s_mov_b32 exec_hi, 0\ns_mov_b32 exec_lo, 0x01ff3fff\nds_write_b16 v104, v40 offset:{R0O}\nds_write_b16 v104, v40 offset:{R1O + 2}\ns_mov_b64 exec, -1", "kt")

    def conv_setup(self, p):
        e = p.e
        e(f"v_lshrrev_b32 v32, 4, {LANE}\nv_and_b32 v31, 15, {LANE}\nv_bfe_u32 v33, {LANE}, 1, 3\nv_lshlrev_b32 v34, 2, v32\nv_sub_u32 v34, v34, v33")
        e(f"v_and_b32 v33, 1, {LANE}\nv_xor_b32 v33, 1, v33\nv_mul_u32_u24 v33, {(R1O - R0O)//4 + 1}, v33\nv_add_u32 v34, v34, v33")
        e(f"s_add_u32 s51, {REGB}, {R0O + 4*7}\nv_lshl_add_u32 v24, v34, 2, s51\nv_add_u32 v25, 512, v24")
        e(f"v_lshlrev_b32 v33, 4, v32\nv_lshlrev_b32 v34, 3, v31\nv_sub_u32 v26, v33, v34\ns_add_u32 s51, {REGB}, {Q2O + 120}\nv_add_u32 v26, s51, v26")
        e(f"v_lshlrev_b32 v34, 2, v31\nv_sub_u32 v27, v33, v34\ns_add_u32 s51, {REGB}, {Q3O + 60}\nv_add_u32 v27, s51, v27")
        for m in list(range(17)) + [18]:
            off = (18 - m) * 16; ad = 24; r = 4 * min(m, 17)
            if off >= 128: off -= 128; ad = 25
            e(f"ds_read2_b32 {a(r,2)}, v{ad} offset0:{off} offset1:{off+1}\nds_read2_b32 {a(r+2,2)}, v{ad} offset0:{off+2} offset1:{off+3}", "pf")
        for j in range(6): e(f"ds_read_b64 {a(72+4*j,2)}, v26 offset:{64*j}\nds_read_b64 {a(74+4*j,2)}, v26 offset:{64*j+8}", "pf")
        for j in range(4): e(f"ds_read2_b32 {a(96+4*j,2)}, v27 offset0:{16*j} offset1:{16*j+1}\nds_read2_b32 {a(98+4*j,2)}, v27 offset0:{16*j+2} offset1:{16*j+3}", "pf")
        e("v_mov_b32 v76, 0\nv_mov_b32 v77, 0\nv_mov_b32 v78, 0\nv_mov_b32 v79, 0\ns_mov_b64 exec, 1")
        for o in (Z5O, Z3O, Z9O, Z7O, Z5O + 3088, Z3O + 3088): e(f"ds_write_b128 v15, v[76:79] offset:{o}", "pf")
        e("s_mov_b64 exec, -1")
        e(f"v_lshl_add_u32 v34, v31, 1, v32\ns_add_u32 s51, {REGB}, {UO + 16*2}\nv_lshl_add_u32 v16, v34, 4, s51")
        e(f"v_bfe_u32 v33, {LANE}, 2, 2\nv_and_b32 v34, 3, {LANE}\nv_and_b32 v35, 1, v33")
        e(f"v_mul_u32_u24 v12, {Z3O - Z5O}, v35\nv_lshl_add_u32 v12, v32, 6, v12\nv_add_u32 v36, v33, v34\nv_lshl_add_u32 v12, v36, 3, v12\nv_add_u32 v12, {REGB}, v12")
        e(f"v_mul_u32_u24 v13, {Z7O - Z9O}, v35\nv_lshl_add_u32 v13, v32, 7, v13\nv_lshl_add_u32 v13, v33, 4, v13\nv_lshl_add_u32 v13, v34, 3, v13\nv_add_u32 v13, {REGB}, v13")
        e(f"v_add_u32 v14, {UO + 512 - 24}, v15")
        e(f"v_and_b32 v34, 1, v32\nv_lshlrev_b32 v34, 9, v34\nv_lshl_add_u32 v34, v31, 5, v34\nv_lshrrev_b32 v32, 1, v32\nv_lshl_add_u32 v17, v32, 4, v34")
        e(f"s_lshl_b32 s86, {CH}, 12\ns_add_u32 s86, s86, {YT}\ns_lshl_b32 s89, {CH}, 2\ns_add_u32 s89, s89, {F3}")
    def inverse(self, p):
        e = p.e
        S2, M2, SF, MF = 24, 40, 56, 88
        e(f"v_lshrrev_b32 v20, 4, {LANE}\nv_lshlrev_b32 v20, 10, v20\nv_and_b32 v21, 3, {LANE}\nv_lshl_add_u32 v20, v21, 4, v20\nv_and_b32 v21, 12, {LANE}")
        e(f"s_add_u32 s51, {REGB}, {UO+512}")
        for q in range(4):
            e(f"v_add_u32 v22, {16*(q&1)}, v21\nv_bfe_u32 v22, s{74 + q//2}, v22, 4\nv_lshl_add_u32 v{4+q}, v22, 6, v20\nv_add_u32 v{120+q}, s51, v{4+q}")
        e(f"s_mov_b32 s84, {STAT}\ns_mov_b32 s85, {STAT+4096}")
        self.spin(p, Y_F1, 1, 22, sleep=2)
        e(f"ds_read_b32 {VTAG}, {VSY} offset:{4*Y_TAG}", "tag")
        for q in range(4):
            e(f"buffer_load_dwordx4 {v(S2+4*q,4)}, v{4+q}, {SWS}, s84 offen sc1", "u")
            e(f"buffer_load_dwordx4 {v(M2+4*q,4)}, v{4+q}, {SWS}, s85 offen sc1", "u")
        p.wvm("u")
        self.unpack(p, S2, SF, 16); self.unpack(p, M2, MF, 16)
        self.stamp(p)
        for q in range(4):
            self.spin(p, Y_U + q, 4, 22, sleep=(2 if q < 3 else 1))
            if q == 3: self.stamp(p)
            e(f"ds_read_b128 v[24:27], v{120+q}", f"ur{q}")
            p.wlg(f"ur{q}")
            self.unpack(p, 24, 40, 4)
            for i in range(8): e(f"v_fma_f32 v{40+i}, v{40+i}, v{SF+8*q+i}, v{MF+8*q+i}")
            for i in range(4): e(f"v_cvt_pk_bf16_f32 v{48+i}, v{40+2*i}, v{41+2*i}")
            e(f"ds_write_b128 v{120+q}, v[48:51]", "uw")
    def zcode(self):
        p = Prog(); e = p.e
        RAWZ, P, W = 96, 103, 56
        def rd(it):
            e(f"ds_read_b64 {v(RAWZ,2)}, v14 offset:{1024*it}\nds_read_b128 {v(RAWZ+2,4)}, v14 offset:{1024*it+8}\nds_read_b64 {v(RAWZ+6,2)}, v14 offset:{1024*it+24}", f"zr{it}")
        rd(0); k = 0
        for it in range(3):
            p.wlg(f"zr{it}")
            self.unpack(p, RAWZ, P + 1, 8)
            if it < 2: rd(it + 1)
            for j in range(2, 17 if it < 2 else 15): e(f"v_add_f32 v{P+j}, v{P+j}, v{P+j-1}")
            for h, zo in ((2, Z5O), (1, Z3O), (4, Z9O), (3, Z7O))[:(4 if it < 2 else 2)]:
                for t in range(8):
                    if t + 4 - h == 0: e(f"v_mov_b32 v{W}, v{P+9}")
                    else: e(f"v_sub_f32 v{W+t}, v{P+t+5+h}, v{P+t+4-h}")
                o = 120 + 4 * (k & 1); k += 1
                for i in range(4): e(f"v_cvt_pk_bf16_f32 v{o+i}, v{W+2*i}, v{W+2*i+1}")
                e(f"ds_write_b128 v15, {v(o,4)} offset:{zo + 16 + 1024*it}", "zw")
        return p
    def conv(self, p):
        e = p.e
        YO, ACC = 17, 64
        slots = [("v", 24 + 4 * i) for i in range(10)] + [("v", 96 + 4 * i) for i in range(8)] + [("a", 112 + 4 * i) for i in range(4)]
        slots = slots[:self.o["cns"]]; NS = len(slots)
        def R(n, off=0, w=4):
            k, r = slots[n % NS]; return (v if k == "v" else a)(r + off, w)
        jobs = []
        for ph in range(8):
            for d in range(8):
                l = [(d + mu, 4 * (8 * mu + ph), False) for mu in range(2) if d + mu <= 7]
                if ph == 0 and d <= 5: l.append((d + 2, 64, False))
                if ph == 0 and d <= 3: l.append((d + 4, 68, False))
                jobs.append((lambda n, d=d, ph=ph: [f"ds_read_b128 {R(n)}, v16 offset:{512*d + (7-ph)*64}"], l))
        nF = len(jobs)
        for st in range(4):
            jobs.append((lambda n, st=st: [f"ds_read_b64_tr_b16 {R(n,0,2)}, v13 offset:{Z9O + 512*st}", f"ds_read_b64_tr_b16 {R(n,2,2)}, v13 offset:{Z9O + 512*st + 64}"],
                         [(I, 96 + 4 * (st - I + 7), True) for I in range(4, 8) if st <= I - 4]))
        for st in range(12):
            jobs.append((lambda n, st=st: [f"ds_read_b64_tr_b16 {R(n,0,2)}, v12 offset:{Z5O + 256*st}", f"ds_read_b64_tr_b16 {R(n,2,2)}, v12 offset:{Z5O + 256*st + 32}"],
                         [(I, 72 + 4 * (st - 2 * I + 8), True) for I in range(2, 8) if 2 * I - 8 <= st <= 2 * I - 3]))
        assert sum(len(j[1]) for j in jobs) == 170
        first = set()
        def load(q, n):
            for t in jobs[n][0](n): q.e(t, f"cj{n}")
        def run(q, n):
            q.wlg(f"cj{n}")
            r = R(n)
            for i, (I, kf, dA) in enumerate(jobs[n][1]):
                acc = v(ACC + 4 * I, 4); src = acc if I in first else "0"; first.add(I)
                q.e(f"v_mfma_f32_16x16x32_bf16 {acc}, {r if dA else a(kf,4)}, {a(kf,4) if dA else r}, {src}")
                if i == 0 and n >= 1 and n - 1 + NS < len(jobs): load(q, n - 1 + NS)
        jobs = jobs[nF:] + jobs[:nF]
        if self.o.get("dly_c"): e(f"s_sleep {self.o['dly_c']}")
        p.ext(self.zcode())
        for n in range(NS): load(p, n)
        if self.o["cwait"]: self.spin(p, Y_EPI, self.o["cwait"], 22, sleep=1)
        e(f"s_setprio {self.o['cprio']}")
        self.stamp(p)
        for n in range(len(jobs)): run(p, n)
        for k in range(4):
            o = 24 + 4 * k
            for i in range(4): e(f"v_cvt_pk_bf16_f32 v{o+i}, v{ACC+8*k+2*i}, v{ACC+8*k+2*i+1}")
            e(f"v_permlane16_swap_b32 v{o}, v{o+2}\nv_permlane16_swap_b32 v{o+1}, v{o+3}")
            e(f"buffer_store_dwordx4 {v(o,4)}, v{YO}, {SWS}, s86 offen offset:{1024*k} sc1", "ys")
        self.stamp(p)
        e("s_waitcnt vmcnt(0)")
        self.flag_store(p, "s89")
    def convw(self):
        self.role = "conv"
        p = Prog(); e = p.e
        self.conv_start(p)
        self.stamp(p)
        if not self.o.get("skip_kgen"): self.kgen(p)
        else: self.stamp(p)
        self.stamp(p)
        if self.o.get("dly_k"): e(f"s_sleep {self.o['dly_k']}")
        self.conv_setup(p)
        e("s_setprio 0")
        self.inverse(p)
        self.conv(p)
        self.finish(p)
        return p

    def build(self):
        p = Prog(); self.prologue(p)
        p.ext(self.main())
        body = finalize(p)
        q = Prog(); q.e("L_aux:")
        q.e(f"s_cmp_eq_u32 {WV}, 7\ns_cbranch_scc1 L_serv"); q.ext(self.convw())
        body += finalize(q)
        q = Prog(); q.e("L_serv:"); q.ext(self.serv()); q.e("L_end:\nL_last:\ns_endpgm")
        body += finalize(q)
        body = body.replace("@", "")
        ref = open("cdna_kernels/" + NAME + ".s.ref").read()
        head = [l for l in ref.split("\n") if l.startswith(";") and "@launch" not in l]
        k = NAME + "_kernel"
        s = "\n".join(head) + f"\n; @launch grid=(256,1,1) block=(512,1,1) lds={LDS_BYTES}\n"
        s += f'.amdgcn_target "amdgcn-amd-amdhsa--gfx950"\n.text\n.globl {k}\n.p2align 8\n.type {k},@function\n{k}:\n'
        s += body
        s += f""".section .rodata,"a"
.p2align 6
.amdhsa_kernel {k}
  .amdhsa_next_free_vgpr 256
  .amdhsa_next_free_sgpr 102
  .amdhsa_accum_offset 128
  .amdhsa_group_segment_fixed_size 0
  .amdhsa_kernarg_size 136
  .amdhsa_user_sgpr_count 2
  .amdhsa_user_sgpr_kernarg_segment_ptr 1
  .amdhsa_system_sgpr_workgroup_id_x 1
.end_amdhsa_kernel
"""
        return s

if __name__ == "__main__":
    out = sys.argv[1]
    kw = eval("dict(" + (sys.argv[2] if len(sys.argv) > 2 else "") + ")")
    open(out, "w").write(G(**kw).build())
```

```python
import sys, struct
from asmlib import Prog, interleave, finalize

NAME = "parallel_sum__ssm_conv_s4__mixer_token_mlp__prompt"
STAT, TM, F2, F3, F1 = 0x4000, 0x8000, 0x50000, 0x58000, 0x60000
HB, GB, YT, WSEND = 0x80000, 0x300000, 0x4E0000, 0x760000
RINGW, RS = 28672, 7
PT = 1344
REG0, REGSZ = 0, 14976
SYNC = 3 * REGSZ
RING0 = 45056
KCO, R0O, R1O, Q2O, Q3O = 32, 1408, 1408 + 1344, 4096, 4608
Z5O, Z3O, Z9O, Z7O, UO = 0, 3104, 6208, 8288, 10368
LNT = REG0 + 8704
KP = 272
LDS_BYTES = 163840
assert SYNC + 128 <= RING0 and RING0 + 4 * RINGW <= LDS_BYTES
Y_EPI = 3
Y_Y = 16
Y_LN, Y_F1, Y_PART, Y_PUB, Y_P1, Y_G, Y_P2, Y_F2, Y_P3, Y_F3, Y_TAG, Y_U = 0, 1, 2, 4, 5, 6, 7, 8, 9, 10, 11, 12

def fbits(x): return "0x%08x" % struct.unpack("<I", struct.pack("<f", x))[0]
def bf16r(l):
    u = struct.unpack("<I", struct.pack("<f", float(l)))[0]
    u = ((u + 0x7FFF + ((u >> 16) & 1)) >> 16) << 16
    return int(struct.unpack("<f", struct.pack("<I", u))[0])
def ci(l):
    v = bf16r(l)
    if v <= 256: return v
    if v <= 512: return 256 + (v - 256) // 2
    if v <= 1024: return 384 + (v - 512) // 4
    return 512 + (v - 1024) // 8

WG, WV, XCD, IDX, DT, FT, DT2, ST2, TAG, ROT1, ROT2, CH = "s2", "s3", "s4", "s5", "s6", "s7", "s8", "s9", "s10", "s11", "s12", "s13"
SUB, C0, NCH = "s97", "s98", "s99"
SX, SW1, SW2, SOUT, SWS = "s[52:55]", "s[56:59]", "s[60:63]", "s[64:67]", "s[68:71]"
RINGB, REGB = "s73", "s77"
VSY, LANE, L16, L4, VTAG, VZ, VDBG = "v0", "v1", "v2", "v3", "v9", "v10", "v11"

def v(i, n=1): return f"v{i}" if n == 1 else f"v[{i}:{i+n-1}]"
def a(i, n=1): return f"a{i}" if n == 1 else f"a[{i}:{i+n-1}]"

def groups_of(prog):
    groups = []
    for it in prog.items:
        prev = groups[-1][-1][0] if groups else None
        if isinstance(prev, str) and (prev.startswith(("s_add_u32 m0", "s_cmp", "s_sub_u32 s51", "s_mov_b64 exec, s", "s_mov_b64 exec, 1", "ds_write_b128 v125", "ds_add"))):
            groups[-1].append(it)
        else: groups.append([it])
    return groups

def make_perm(n, nw, first, duty0):
    own = list(range(0, n, 2)); oth = list(range(1, n, 2))
    order = [[] for _ in range(nw)]; touched = {}
    pool = own[:]
    for pos in range(first):
        for j in range(nw):
            pass
    deal = [[] for _ in range(nw)]
    k = 0
    for pos in range(first):
        for j in range(nw):
            if pool: st = pool.pop(0)
            else: st = oth.pop(0)
            deal[j].append(st); touched[st] = pos
    rest = pool + oth
    duty = {}
    for i, st in enumerate(rest): duty[(duty0 + i, i % nw)] = st
    for j in range(nw): order[j] = list(deal[j])
    for pos in range(first, n):
        for j in range(nw):
            if (pos, j) in duty: touched[duty[(pos, j)]] = pos
        for j in range(nw):
            if (pos, j) in duty: order[j].append(duty[(pos, j)]); continue
            mine = {st for (pp, jj), st in duty.items() if jj == j and pp > pos}
            cand = [st for st in range(n) if st not in order[j] and st not in mine]
            cand.sort(key=lambda st: (touched.get(st, 99), (st - 2 * j) % n))
            order[j].append(cand[0])
    for o in order: assert sorted(o) == list(range(n)), o
    return order
def pack_perm(o):
    x = sum(st << (4 * i) for i, st in enumerate(o)); return x & 0xffffffff, x >> 32

class G:
    def __init__(self, debug=False, **kw):
        self.debug = debug
        self.o = dict(P1=6, D1=13, PS1=11, lead1=4, xk=8, P2=4, D2=11, PS2=9, lead2=4, wflag="", xflag="", nsp=30, thr=2,
                      ytrig=5, ychk=10, pk=1, psleep=4, psleep2=8, kprio=0, mprio=2, ebpos=0, cprio=3, ipf=2, ns1=12, ns2=15, perm=1, duty1=3, duty2=3, oflag='', eb=2, pfirst=1, free1=2, pre1=0, cns=22, nthr=6, pflag='nt', cwait=4)
        self.o.update(kw)
        self.nst = {}; self.nlab = 0; self.role = None
    def stamp(self, p):
        if not self.debug: return
        n = self.nst.get(self.role, 0)
        if n == 0: p.e(f"v_writelane_b32 {VDBG}, s100, 28")
        p.e(("s_memtime" if self.o.get("cyc") else "s_memrealtime") + " s[82:83]\ns_waitcnt lgkmcnt(0)")
        p.e(f"v_writelane_b32 {VDBG}, s82, {n}")
        self.nst[self.role] = n + 1
    def pre(self, p):
        if self.debug and self.o.get("prest"): p.e(f"s_memrealtime s[82:83]\ns_waitcnt lgkmcnt(0)\nv_writelane_b32 {VDBG}, s82, 27")
    def label(self, s):
        self.nlab += 1; return f"L{s}_{self.nlab}"
    def flag_store(self, p, soff, pre=""):
        p.e(f"s_mov_b64 exec, 1\n{pre}buffer_store_dword {VTAG}, {VZ}, {SWS}, {soff} offen sc1\ns_mov_b64 exec, -1")
    def poll(self, p, voff, soff, tmp, wide=False, sleep=0):
        l = self.label("poll"); d = self.label("polld"); f = self.label("pollf")
        p.e("s_mov_b32 s78, 0")
        if sleep: p.e(f"s_branch {f}")
        p.e(f"{l}:")
        if sleep: p.e(f"s_sleep {sleep}\n{f}:")
        if wide:
            p.e(f"buffer_load_dwordx4 {v(tmp,4)}, {voff}, {SWS}, {soff} offen sc1")
            p.e("s_add_u32 s78, s78, 1\ns_waitcnt vmcnt(0)")
            for i in range(4): p.e(f"v_xor_b32 {v(tmp+i)}, {TAG}, {v(tmp+i)}")
            p.e(f"v_or3_b32 {v(tmp)}, {v(tmp)}, {v(tmp+1)}, {v(tmp+2)}\nv_or_b32 {v(tmp)}, {v(tmp)}, {v(tmp+3)}")
            p.e(f"v_cmp_ne_u32 vcc, 0, {v(tmp)}")
        else:
            p.e(f"buffer_load_dword {v(tmp)}, {voff}, {SWS}, {soff} offen sc1")
            p.e("s_add_u32 s78, s78, 1\ns_waitcnt vmcnt(0)")
            p.e(f"v_cmp_ne_u32 vcc, {TAG}, {v(tmp)}")
        p.e(f"s_cmp_gt_u32 s78, 0x8000\ns_cbranch_scc1 {d}\ns_cbranch_vccz {d}\ns_mov_b64 exec, vcc\ns_branch {l}")
        p.e(f"{d}:\ns_mov_b64 exec, -1")
    def sig(self, p, word, tmp):
        p.e(f"v_mov_b32 v{tmp}, 1\ns_mov_b64 exec, 1\nds_add_u32 {VSY}, v{tmp} offset:{4*word}\ns_mov_b64 exec, -1", "sig")
    def spin(self, p, word, n, tmp, sleep=0):
        l = self.label("spin"); d = self.label("spind"); f = self.label("spinf")
        p.e("s_mov_b32 s78, 0")
        if sleep: p.e(f"s_branch {f}")
        p.e(f"{l}:")
        if sleep: p.e(f"s_sleep {sleep}\n{f}:")
        p.e(f"ds_read_b32 v{tmp}, {VSY} offset:{4*word}\ns_add_u32 s78, s78, 1\ns_waitcnt lgkmcnt(0)\nv_readfirstlane_b32 s79, v{tmp}")
        p.e(f"s_cmp_gt_u32 s78, 0x40000\ns_cbranch_scc1 {d}\ns_cmp_lt_u32 s79, {n}\ns_cbranch_scc1 {l}")
        p.e(f"{d}:")
    def mktag(self, p):
        p.e(f"s_mul_i32 {TAG}, {TAG}, 0x9E3779B1\ns_add_u32 {TAG}, {TAG}, 0x7F4A7C15\nv_mov_b32 {VTAG}, {TAG}")
    def finish(self, p):
        e = p.e
        if self.debug:
            e("s_waitcnt vmcnt(0)")
            self.stamp(p)
            e(f"s_lshl_b32 s50, {WG}, 3\ns_add_u32 s50, s50, {WV}\ns_lshl_b32 s50, s50, 7\ns_add_u32 s50, s50, {TM}")
            e(f"s_mov_b32 exec_hi, 0\nbuffer_store_dword {VDBG}, {L4}, {SWS}, s50 offen")
        e("s_endpgm")
    def srd(self, p, d, lo, size): p.e(f"s_mov_b32 s{d}, s{lo}\ns_mov_b32 s{d+1}, s{lo+1}\ns_mov_b32 s{d+2}, {size}\ns_mov_b32 s{d+3}, 0x20000")
    def unpack(self, p, src, dst, n):
        for i in range(n):
            p.e(f"v_lshlrev_b32 v{dst+2*i}, 16, v{src+i}\nv_and_b32 v{dst+2*i+1}, 0xffff0000, v{src+i}")
    def rbf(self, p, r):
        p.e(f"v_cvt_pk_bf16_f32 v{r}, v{r}, v{r}\nv_lshlrev_b32 v{r}, 16, v{r}")

    def prologue(self, p):
        e = p.e
        if self.debug: e("s_memrealtime s[100:101]")
        e(f"s_cmp_ge_u32 {WG}, 256\ns_cbranch_scc1 L_end")
        e("s_load_dwordx16 s[16:31], s[0:1], 0\ns_load_dwordx16 s[32:47], s[0:1], 64\ns_load_dwordx2 s[48:49], s[0:1], 128")
        e(f"v_and_b32 {LANE}, 63, v0\nv_lshrrev_b32 v12, 6, v0\nv_readfirstlane_b32 {WV}, v12")
        if self.o["ipf"]:
            n = self.o["ipf"]
            e(f"s_cmp_lg_u32 {WV}, 7\ns_cbranch_scc1 L_noipf")
            e(f"s_getpc_b64 s[90:91]\nL_pc:\ns_bfe_u32 s51, {WG}, {(n << 16) | 3:#x}\ns_lshl_b32 s51, s51, 13")
            e(f"v_lshl_add_u32 v112, {LANE}, 7, s51\nv_min_u32 v112, L_last-L_pc, v112")
            e("v_mov_b32 v113, s91\nv_add_co_u32 v112, vcc, s90, v112\nv_addc_co_u32 v113, vcc, 0, v113, vcc")
            e("@global_load_dword v114, v[112:113], off\nL_noipf:")
        e(f"v_lshlrev_b32 {L16}, 4, {LANE}\nv_lshlrev_b32 {L4}, 2, {LANE}\nv_mov_b32 {VZ}, 0\nv_mov_b32 {VDBG}, 0\nv_mov_b32 {VSY}, {SYNC}")
        e(f"s_and_b32 {XCD}, {WG}, 7\ns_lshr_b32 {IDX}, {WG}, 3\ns_lshr_b32 {SUB}, {XCD}, 1\ns_and_b32 s14, {XCD}, 1")
        e(f"s_min_u32 s15, {IDX}, 29\ns_mul_i32 {FT}, s15, 52\ns_lshr_b32 {FT}, {FT}, 8")
        e(f"s_mul_i32 s51, {FT}, 5\ns_sub_u32 {DT}, s15, s51")
        if self.o["perm"]: P1_ = make_perm(16, 5, 2, self.o["duty1"])
        else: P1_ = [[(((2 * j * 205) >> 7) + i) % 16 for i in range(16)] for j in range(5)]
        for j, o_ in enumerate(P1_):
            lo, hi = pack_perm(o_)
            if j == 0: e(f"s_mov_b32 s74, {lo:#x}\ns_mov_b32 s75, {hi:#x}")
            else: e(f"s_cmp_eq_u32 {DT}, {j}\ns_cselect_b32 s74, {lo:#x}, s74\ns_cselect_b32 s75, {hi:#x}, s75")
        e("s_mul_i32 s51, s14, 0x11111111\ns_xor_b32 s74, s74, s51\ns_xor_b32 s75, s75, s51")
        e(f"s_mul_i32 {C0}, {FT}, 3\ns_min_u32 {C0}, {C0}, 14\ns_cmp_lt_u32 {FT}, 4\ns_cselect_b32 {NCH}, 3, 2\ns_cmp_ge_u32 {IDX}, 30\ns_cselect_b32 {NCH}, 0, {NCH}")
        e(f"s_mul_i32 s51, s14, 5\ns_add_u32 {DT}, {DT}, s51\ns_mul_i32 s51, {SUB}, 6\ns_add_u32 {FT}, {FT}, s51")
        e(f"s_and_b32 {DT2}, {IDX}, 3\ns_lshr_b32 {ST2}, {IDX}, 2")
        e(f"s_lshl2_add_u32 {DT2}, s14, {DT2}\ns_lshl3_add_u32 {ST2}, {SUB}, {ST2}")
        e(f"s_cmp_ge_u32 {WV}, 4\ns_cbranch_scc1 L_aux")

    def kk(self, p, g, ks, dst, stride, base):
        p.e(f"s_bfe_u32 {dst}, s{(74 if g == 1 else 80) + ks // 8}, {(4 << 16) | (4 * (ks % 8)):#x}")
        p.e(f"s_mul_i32 {dst}, {dst}, {stride}")
        if base: p.e(f"s_add_u32 {dst}, {dst}, {base}")
    def slot(self, g, ks): return ((ks + (3 if g == 2 else 0)) % RS) * 4096
    def throttle(self, p):
        l = self.label("thr")
        p.e(f"s_cmp_lg_u32 s85, 0\ns_cbranch_scc1 {l}")
        p.e(f"@ds_read_b32 v20, {VSY} offset:{4*Y_PUB}\n@s_waitcnt vmcnt({self.o['thr']}) lgkmcnt(0)\nv_readfirstlane_b32 s85, v20\ns_nop 0\ns_lshr_b32 s85, s85, 1")
        p.e(f"{l}:")
    def dma(self, g, ks, thr=False):
        p = Prog()
        rs, vo, srd, base = (3072, 4, SW1, "s84") if g == 1 else (4096, 12, SW2, "s92")
        self.kk(p, g, ks, "s72", 32 * rs, base)
        for q in range(4):
            if thr and q % 2 == 0: self.throttle(p)
            p.e(f"s_add_u32 m0, {RINGB}, {self.slot(g, ks) + q * 1024}")
            p.e(f"buffer_load_dwordx4 v{vo + (q & 1)}, {srd}, s72 offen {self.o['wflag']} lds", f"w{g}_{ks}")
            if q < 3: p.e(f"s_add_u32 s72, s72, {8*rs}")
        return p
    NB = {1: 6, 2: 4}
    def tr(self, g, ks):
        p = Prog()
        r = 16 * (ks % self.NB[g]); o = self.slot(g, ks)
        p.wvm(f"w{g}_{ks}")
        for ss in range(4):
            p.e(f"ds_read_b64_tr_b16 {a(r+4*ss,2)}, v{14+ss} offset:{o}", f"t{g}_{ks}")
            p.e(f"ds_read_b64_tr_b16 {a(r+4*ss+2,2)}, v{14+ss} offset:{o+512}", f"t{g}_{ks}")
        return p
    def main_start(self, p):
        e = p.e
        e("s_setprio 3")
        e(f"s_mul_i32 {RINGB}, {WV}, {RINGW}\ns_add_u32 {RINGB}, {RINGB}, {RING0}\ns_mov_b32 s85, 0")
        e(f"v_lshrrev_b32 v20, 3, {LANE}\nv_and_b32 v21, 7, {LANE}\nv_and_b32 v22, 2, v20\nv_xor_b32 v21, v21, v22\nv_lshlrev_b32 v21, 4, v21")
        e("v_mul_u32_u24 v4, 3072, v20\nv_add_u32 v4, v4, v21\nv_xor_b32 v5, 64, v4\nv_lshl_add_u32 v12, v20, 12, v21\nv_xor_b32 v13, 64, v12")
        e(f"s_mul_i32 s84, {WV}, {512*3072}\ns_lshl_b32 s51, {FT}, 7\ns_add_u32 s84, s84, s51")
        e(f"s_mul_i32 s92, {WV}, {384*4096}\ns_lshl_b32 s51, {ST2}, 7\ns_add_u32 s92, s92, s51")
        e(f"v_lshrrev_b32 v104, 5, {LANE}\nv_mul_u32_u24 v105, 1280, v104\nv_and_b32 v106, 31, {LANE}")
        e("v_lshl_add_u32 v107, v106, 4, v105\nv_lshl_add_u32 v108, v106, 3, v105")
        e(f"s_lshl_b32 s50, {WG}, 3\ns_lshl1_add_u32 s50, {WV}, s50\ns_mul_i32 s50, s50, 1280")
        e("s_waitcnt lgkmcnt(0)")
        self.srd(p, 52, 16, 2621440)
        xf = self.o["xflag"]
        e(f"buffer_load_dwordx4 v[20:23], v107, {SX}, s50 offen {xf}", "x")
        e(f"buffer_load_dwordx4 v[24:27], v107, {SX}, s50 offen offset:512 {xf}", "x")
        e(f"buffer_load_dwordx2 v[28:29], v108, {SX}, s50 offen offset:1024 {xf}", "x")
        self.pre(p)
        e("s_barrier")
        self.srd(p, 56, 36, 6291456); self.srd(p, 60, 40, 6291456); self.srd(p, 64, 44, 2621440); self.srd(p, 68, 48, WSEND)
        self.stamp(p)
    def main_setup2(self, p):
        e = p.e
        e(f"v_bfe_u32 v20, {LANE}, 2, 2\nv_and_b32 v21, 3, {LANE}\nv_lshrrev_b32 v22, 4, {LANE}\nv_and_b32 v23, 15, {LANE}")
        e("v_lshlrev_b32 v24, 10, v22\nv_lshl_add_u32 v24, v20, 7, v24\nv_lshl_add_u32 v24, v21, 3, v24")
        e(f"v_lshrrev_b32 v20, 1, v20\nv_and_b32 v21, 1, v22\nv_lshl_or_b32 v20, v21, 1, v20\nv_xor_b32 v20, {WV}, v20\nv_lshlrev_b32 v20, 5, v20")
        e(f"v_add3_u32 v14, v24, v20, {RINGB}\nv_xor_b32 v15, 32, v14\nv_xor_b32 v16, 64, v14\nv_xor_b32 v17, 0x60, v14")
        e(f"s_lshl_b32 s51, {FT}, 7\ns_lshl_b32 s15, {WV}, 5\ns_add_u32 s51, s51, s15\nv_lshl_add_u32 v24, v22, 3, s51")
        e("global_load_dwordx2 v[126:127], v24, s[38:39]", "b1")
        e(f"v_mul_u32_u24 v19, 10240, v22\nv_lshl_add_u32 v19, v23, 4, v19\ns_lshl_b32 s51, {SUB}, 8\nv_add_u32 v120, s51, v19")
        e("v_xor_b32 v121, 0x100, v120\nv_xor_b32 v122, 0x200, v120\nv_xor_b32 v123, 0x300, v120")
        e(f"v_lshrrev_b32 v24, 1, v22\nv_mul_u32_u24 v24, 10240, v24\nv_lshl_add_u32 v24, v23, 4, v24\nv_xor_b32 v25, {SUB}, v21\nv_lshl_add_u32 v6, v25, 8, v24\nv_xor_b32 v7, 0x200, v6")
        e(f"v_subrev_u32 v124, {C0}, v23\nv_mul_u32_u24 v124, {REGSZ}, v124\nv_lshl_add_u32 v124, v22, 4, v124")
        e(f"s_lshl_b32 s51, {WV}, 10\ns_add_u32 s51, s51, {REG0 + UO + 512}\nv_add_u32 v124, s51, v124")
        e(f"s_bfm_b32 s100, {NCH}, {C0}\ns_lshl_b32 s51, s100, 16\ns_or_b32 s100, s100, s51\ns_mov_b32 s101, s100")
        e("v_mul_u32_u24 v18, 1280, v23\nv_lshl_add_u32 v18, v22, 3, v18\nv_lshlrev_b32 v115, 12, v23\nv_lshl_add_u32 v115, v21, 4, v115")
        e(f"s_lshl_b32 s94, {ST2}, 6\ns_lshl_b32 s51, {WV}, 4\ns_add_u32 s94, s94, s51\ns_lshl_b32 s95, s94, 1\nv_lshl_add_u32 v8, v23, 1, s95")
        e(f"s_mul_i32 s94, s94, 1280\ns_mul_i32 s51, {DT2}, 160\ns_add_u32 s94, s94, s51")
        e("v_lshlrev_b32 v24, 3, v22\nv_sub_u32 v24, v23, v24\nv_and_b32 v25, 1, v24\nv_lshlrev_b32 v25, 4, v25\nv_mov_b32 v26, 0x3f80\nv_lshlrev_b32 v25, v25, v26\nv_ashrrev_i32 v24, 1, v24")
        for q in range(4): e(f"v_cmp_eq_u32 vcc, {q}, v24\nv_cndmask_b32 v{116+q}, 0, v25, vcc")
        for q in range(4): e(f"v_cmp_eq_i32 vcc, {q-8}, v24\nv_cndmask_b32 v{104+q}, 0, v25, vcc")
        e("v_lshl_add_u32 v108, v22, 3, v18")
        e("global_load_ushort v114, v8, s[42:43]", "b1")
        if self.o["perm"]: P2_ = make_perm(12, 4, 2, self.o["duty2"])
        else: P2_ = [[(3 * j + i) % 12 for i in range(12)] for j in range(4)]
        e(f"s_and_b32 s15, {IDX}, 3")
        for j, o_ in enumerate(P2_):
            lo, hi = pack_perm(o_)
            if j == 0: e(f"s_mov_b32 s80, {lo:#x}\ns_mov_b32 s81, {hi:#x}")
            else: e(f"s_cmp_eq_u32 s15, {j}\ns_cselect_b32 s80, {lo:#x}, s80\ns_cselect_b32 s81, {hi:#x}, s81")
        e(f"s_and_b32 s51, {XCD}, 1\ns_mul_i32 s51, s51, 0x11111111\ns_xor_b32 s80, s80, s51\ns_xor_b32 s81, s81, s51")
        e(f"s_mul_i32 s86, {WV}, {64*10240}\ns_lshl_b32 s51, {DT}, 10\ns_add_u32 s86, s86, s51\ns_add_u32 s86, s86, {HB}")
    def acc1(self, t, ds): return [v(72 + 4 * ds, 4), v(88 + 4 * ds, 4), a(96 + 4 * ds, 4), a(112 + 4 * ds, 4)][t]
    def acc2(self, di, ss): return v(84 + 4 * di, 4) if ss == 0 else a(68 + 4 * (di * 3 + ss - 1), 4)

    def gemm_loop(self, p, g, nks, nf, ns, nd, nt, ld, mfma, extra):
        NB = self.NB[g]; n = nks * nf
        for i in range(ns): p.ext(ld(i))
        nl = ns
        for ks in range(nks):
            side = Prog()
            if nd < nks and nd - RS < nt:
                if nd >= RS: side.wlg(f"t{g}_{nd-RS}")
                side.ext(self.dma(g, nd)); nd += 1
            if nt < nks and nt < nd and nt - NB < ks:
                side.ext(self.tr(g, nt)); nt += 1
            pre, post = extra(ks)
            gs = groups_of(pre) + groups_of(side)
            p.wlg(f"t{g}_{ks}")
            gi = 0; tot = 3 * nf
            for di in range(nf):
                p.wvm(f"act{ks}_{di}")
                for ss in range(4):
                    p.e(mfma(ks, di, ss))
                    if ss == 0:
                        if nf * ks + di >= 1 and nl < n: p.ext(ld(nl)); nl += 1
                    else:
                        sl = di * 3 + ss
                        while gi < len(gs) and gi < (sl * len(gs) + tot - 1) // tot:
                            p.items.extend(gs[gi]); gi += 1
            assert gi == len(gs)
            p.ext(post)
        assert nl == n and nd == nks and nt == nks

    def gemm1(self, p):
        e = p.e; o = self.o
        HR, ns = 24, o['ns1']
        nd = o['free1']
        def more():
            nonlocal nd
            if nd >= RS: p.wlg(f"t1_{nd-RS}")
            p.ext(self.dma(1, nd, thr=nd < o['nthr'])); nd += 1
            if nd == o["PS1"]: self.sig(p, Y_P1, 20)
            if o.get("fine"): self.stamp(p)
        while nd < o["lead1"]: more()
        p.wvm("b1")
        for ds in range(4): self.unpack(p, 126, 72 + 4 * ds, 2)
        for j in range(o["P1"]):
            p.ext(self.tr(1, j))
            if j == 2 and not o.get('fine'): self.stamp(p)
            if nd < o["D1"]: more()
        while nd < o["D1"]:
            p.wvm(f"w1_{nd-o['lead1']}"); more()
        self.stamp(p)
        self.spin(p, Y_F1, 1, 20, sleep=1)
        e(f"ds_read_b32 {VTAG}, {VSY} offset:{4*Y_TAG}\ns_setprio 2", "tag")
        self.stamp(p)
        def ld(i):
            ks, ds = divmod(i, 4); q = Prog()
            if ds == 0: self.kk(q, 1, ks, "s76", 40960, "s86")
            q.e(f"buffer_load_dwordx4 {v(HR + 4 * (i % ns), 4)}, v{120+ds}, {SWS}, s76 offen sc1", f"act{ks}_{ds}")
            return q
        def mfma(ks, ds, t):
            c = self.acc1(t, ds); src = "0" if (ks == 0 and t > 0) else c
            return f"v_mfma_f32_16x16x32_bf16 {c}, {a(16*(ks%6)+4*t,4)}, {v(HR + 4 * ((4*ks+ds) % ns), 4)}, {src}"
        def extra(ks):
            pre = Prog(); post = Prog()
            q = Prog(); self.kk(q, 1, ks, "s14", 64, None); q.e("v_add_u32 v125, s14, v124")
            q.e(f"s_mov_b64 exec, s[100:101]\nds_write_b128 v125, {v(HR + 4 * ((4 * ks) % ns), 4)}\ns_mov_b64 exec, -1", "uc")
            self._uc = q
            if ks % 4 == 3: self.sig(pre, Y_U + ks // 4, 20)
            if ks in (0, 5, 10): self.stamp(post)
            return pre, post
        def mfma_uc(ks, ds, t):
            s = mfma(ks, ds, t)
            if ds == 0 and t == 0: s = s + "\n" + "\n".join(x for x, _ in self._uc.items)
            return s
        self.gemm_loop(p, 1, 16, 4, ns, nd, o["P1"], ld, mfma_uc, extra)
        self.stamp(p)
    def gemm1_epi(self, p):
        e = p.e; RD = 24
        if self.o["ebpos"] == 0:
            for ks in range(self.o["eb"]): p.ext(self.dma(2, ks))
        e(f"v_add_u32 v20, {RINGB}, {L16}")
        for t in range(1, 4):
            for ds in range(4): e(f"ds_write_b128 v20, {self.acc1(t, ds)} offset:{(t-1)*4096+ds*1024}", "r1w")
        self.sig(p, Y_PART, 21)
        if self.o["ebpos"] == 1:
            for ks in range(self.o["eb"]): p.ext(self.dma(2, ks))
        for t in range(1, 4):
            e(f"s_xor_b32 s51, {WV}, {t}\ns_mul_i32 s51, s51, {RINGW}\ns_add_u32 s51, s51, {RING0 + (t-1)*4096}\nv_add_u32 v{20+t}, s51, {L16}")
        e(f"s_lshl_b32 s50, {FT}, 3\ns_lshl_b32 s51, {WV}, 1\ns_add_u32 s50, s50, s51\ns_mul_i32 s50, s50, 10240")
        e(f"s_lshl_b32 s51, {DT}, 10\ns_add_u32 s50, s50, s51\ns_add_u32 s86, s50, {GB}")
        e(f"s_mul_i32 s89, {DT}, 24\ns_add_u32 s89, s89, {FT}\ns_lshl_b32 s89, s89, 7\ns_add_u32 s89, s89, {F2}")
        c1 = -2 * 0.7978845608028654 * 1.4426950408889634; c3 = c1 * 0.044715
        e(f"s_mov_b32 s90, {fbits(c3)}\nv_mov_b32 v126, {fbits(c1)}")
        self.spin(p, Y_PART, 4, 20)
        for q in range(4):
            for t in range(3): e(f"ds_read_b128 {v(RD+16*t+4*q,4)}, v{21+t} offset:{q*1024}", f"r1r{q}")
        if self.o["ebpos"] == 2:
            for ks in range(self.o["eb"]): p.ext(self.dma(2, ks))
        for pr in range(2):
            p.wlg(f"r1r{2*pr+1}")
            q = [(72 + 8 * pr + i, RD + 8 * pr + i, 88 + 8 * pr + i) for i in range(8)]
            for x, r, t in q: e(f"v_add_f32 v{x}, v{x}, v{r}\nv_add_f32 v{r+16}, v{r+16}, v{r+32}")
            for x, r, t in q: e(f"v_add_f32 v{x}, v{x}, v{r+16}")
            for x, r, t in q: e(f"v_mul_f32 v{t}, v{x}, v{x}")
            for x, r, t in q: e(f"v_fma_f32 v{t}, v{t}, s90, v126")
            for x, r, t in q: e(f"v_mul_f32 v{t}, v{t}, v{x}")
            for x, r, t in q: e(f"v_exp_f32 v{t}, v{t}")
            for x, r, t in q: e(f"v_add_f32 v{t}, 1.0, v{t}")
            for x, r, t in q: e(f"v_rcp_f32 v{t}, v{t}")
            for x, r, t in q: e(f"v_mul_f32 v{t}, v{t}, v{x}")
            o = 56 + 8 * pr
            for i in range(4): e(f"v_cvt_pk_bf16_f32 v{o+i}, v{q[2*i][2]}, v{q[2*i+1][2]}")
            e(f"v_permlane16_swap_b32 v{o}, v{o+2}\nv_permlane16_swap_b32 v{o+1}, v{o+3}")
            e(f"buffer_store_dwordx4 {v(o,4)}, v{6+pr}, {SWS}, s86 offen sc1", "gs")
        self.sig(p, Y_EPI, 20)
        self.stamp(p)
        for ks in range(min(self.o["eb"], self.o["P2"])): p.ext(self.tr(2, ks))
        e("s_waitcnt vmcnt(0)")
        l = self.label("nolast")
        e(f"v_mov_b32 v20, 1\ns_mov_b64 exec, 1\nds_add_rtn_u32 v20, {VSY}, v20 offset:{4*Y_G}\ns_mov_b64 exec, -1\ns_waitcnt lgkmcnt(0)\nv_readfirstlane_b32 s79, v20")
        e(f"s_cmp_lg_u32 s79, 3\ns_cbranch_scc1 {l}")
        self.flag_store(p, "s89", "@")
        e(f"{l}:")
        self.stamp(p)
    def gemm2(self, p, spare):
        e = p.e; o = self.o
        GR, ns = 24, o['ns2']
        e(f"s_mul_i32 s86, {WV}, {48*10240}\ns_mul_i32 s51, {DT2}, 1280\ns_add_u32 s86, s86, s51\ns_add_u32 s86, s86, {GB}")
        e(f"s_mul_i32 s88, {DT2}, {80*4096}\ns_add_u32 s88, s88, s95\ns_add_u32 s88, s88, {YT}")
        nd = o["eb"]; nt = min(o["eb"], o["P2"])
        e("v_lshlrev_b32 v114, 16, v114")
        for i in range(20): e(f"v_mov_b32 v{84+i}, v114")
        self.spin(p, Y_G, 4, 20)
        def more():
            nonlocal nd
            if nd >= RS: p.wlg(f"t2_{nd-RS}")
            p.ext(self.dma(2, nd)); nd += 1
            if nd == o["PS2"]: self.sig(p, Y_P2, 20)
        while nd < min(o["D2"], nt + o["lead2"]): more()
        while nt < o["P2"]:
            p.ext(self.tr(2, nt)); nt += 1
            if nd < o["D2"]: more()
        while nd < o["D2"]:
            p.wvm(f"w2_{nd-o['lead2']}"); more()
        self.stamp(p)
        self.spin(p, Y_F2, 1, 20, sleep=1)
        self.stamp(p)
        def ld(i):
            ks, di = divmod(i, 5); q = Prog()
            if di == 0: self.kk(q, 2, ks, "s76", 40960, "s86")
            q.e(f"buffer_load_dwordx4 {v(GR + 4 * (i % ns), 4)}, v19, {SWS}, s76 offen offset:{256*di} sc1", f"act{ks}_{di}")
            return q
        def mfma(ks, di, ss):
            c = self.acc2(di, ss); src = "0" if (ks == 0 and ss > 0) else c
            return f"v_mfma_f32_16x16x32_bf16 {c}, {v(GR + 4 * ((5*ks+di) % ns), 4)}, {a(16*(ks%4)+4*ss,4)}, {src}"
        yk = o["ychk"]; assert yk >= 9
        xr = lambda j: [v(120, 4), v(124, 4), v(110, 4)][j]
        def extra(ks):
            pre = Prog(); post = Prog()
            if ks == o["ytrig"]: self.sig(post, Y_P3, 20)
            if ks == o["xk"]:
                for j in range(3): post.e(f"buffer_load_dwordx4 {xr(j)}, v108, {SX}, s94 offen offset:{64*j}", f"x{j}")
            if ks == yk:
                self.spin(post, Y_F3, 1, 20, sleep=2)
                for di in range(5):
                    post.e(f"buffer_load_dwordx4 {a(4*di,4)}, v115, {SWS}, s88 offen sc1", f"y{di}")
                    post.e("s_add_u32 s88, s88, 65536")
            if ks in (0, 3, 7): self.stamp(post)
            return pre, post
        self.gemm_loop(p, 2, 12, 5, ns, nd, nt, ld, mfma, extra)
        self.stamp(p)
        e(f"v_add_u32 v20, {RINGB}, {L16}")
        for t in range(1, 4):
            for di in range(5): e(f"ds_write_b128 v20, {self.acc2(di,t)} offset:{(t-1)*5120+di*1024}", "r2w")
        for t in range(1, 4):
            e(f"s_xor_b32 s51, {WV}, {t}\ns_mul_i32 s51, s51, {RINGW}\ns_add_u32 s51, s51, {RING0 + (t-1)*5120}\nv_add_u32 v{20+t}, s51, {L16}")
        for di in range(5):
            p.wvm(f"x{di//2}")
            e(f"v_mfma_f32_16x16x32_bf16 {self.acc2(di,0)}, {v(104 if di & 1 else 116, 4)}, {xr(di//2)}, {self.acc2(di,0)}")
        for di in range(5):
            p.wvm(f"y{di}")
            e(f"v_mfma_f32_16x16x32_bf16 {self.acc2(di,0)}, {a(4*di,4)}, v[116:119], {self.acc2(di,0)}")
        e("s_waitcnt lgkmcnt(0)\ns_barrier")
        for di in range(5):
            for t in range(3): e(f"ds_read_b128 {v(GR+12*di+4*t,4)}, v{21+t} offset:{di*1024}", f"r2r{di}")
        for di in range(5):
            c = 84 + 4 * di; r = GR + 12 * di
            p.wlg(f"r2r{di}")
            for hq in range(2): e(f"v_pk_add_f32 {v(r+2*hq,2)}, {v(r+2*hq,2)}, {v(r+4+2*hq,2)}\nv_pk_add_f32 {v(c+2*hq,2)}, {v(c+2*hq,2)}, {v(r+8+2*hq,2)}")
            for hq in range(2): e(f"v_pk_add_f32 {v(c+2*hq,2)}, {v(c+2*hq,2)}, {v(r+2*hq,2)}")
            for hq in range(2): e(f"v_cvt_pk_bf16_f32 v{104+2*di+hq}, v{c+2*hq}, v{c+2*hq+1}")
            e(f"buffer_store_dwordx2 {v(104+2*di,2)}, v18, {SOUT}, s94 offen offset:{32*di} {o['oflag']}", "os")
        self.stamp(p)

    def main(self):
        self.role = "main"
        p = Prog(); e = p.e
        self.main_start(p)
        for ks in range(self.o["pre1"]): p.ext(self.dma(1, ks))
        self.ln(p)
        e(f"s_setprio {self.o['mprio']}")
        for ks in range(self.o["pre1"], self.o["free1"]): p.ext(self.dma(1, ks))
        self.stamp(p)
        self.main_setup2(p)
        e(f"s_cmp_lt_u32 {IDX}, 30\ns_cbranch_scc1 L_g1")
        q = Prog()
        q.e("s_waitcnt vmcnt(0)")
        self.spin(q, Y_PUB, 2, 20, sleep=4)
        for ks in range(self.o["eb"]): q.ext(self.dma(2, ks))
        for ks in range(min(self.o["eb"], self.o["P2"])): q.ext(self.tr(2, ks))
        self.sig(q, Y_G, 20)
        q.e("s_waitcnt vmcnt(0) lgkmcnt(0)\ns_branch L_g2")
        for line in finalize(q).split("\n"):
            if line.strip(): e(line.strip() if line.strip().endswith(":") else "@" + line.strip())
        e("L_g1:")
        self.gemm1(p)
        self.gemm1_epi(p)
        e("L_g2:")
        self.gemm2(p, False)
        e(f"s_or_b32 s51, {WG}, {WV}\ns_cmp_lg_u32 s51, 0\ns_cbranch_scc1 L_noep")
        e(f"s_mov_b64 exec, 1\nbuffer_store_dword {VTAG}, {VZ}, {SWS}, 0 offen\ns_mov_b64 exec, -1")
        e("L_noep:")
        self.finish(p)
        return p

    def red32(self, p, regs, tmp):
        for m in ("quad_perm:[1,0,3,2]", "quad_perm:[2,3,0,1]", "row_half_mirror", "row_mirror"):
            for r in regs: p.e(f"v_add_f32_dpp v{r}, v{r}, v{r} {m} row_mask:0xf bank_mask:0xf")
        for i, r in enumerate(regs): p.e(f"v_mov_b32 v{tmp+i}, v{r}")
        for i, r in enumerate(regs): p.e(f"v_permlane16_swap_b32 v{r}, v{tmp+i}")
        for i, r in enumerate(regs): p.e(f"v_add_f32 v{r}, v{r}, v{tmp+i}")
    RAW = [4, 5, 6, 7, 8, 12, 13, 14, 15, 16, 17, 18]
    def conv_start(self, p):
        e = p.e; RAW = self.RAW
        e(f"s_sub_u32 s14, {WV}, 4\ns_cmp_ge_u32 s14, {NCH}\ns_cbranch_scc1 L_end\ns_setprio {self.o['kprio']}")
        e(f"s_lshl_b32 {CH}, {DT}, 6\ns_lshl4_add_u32 {CH}, {SUB}, {CH}\ns_add_u32 {CH}, {CH}, {C0}\ns_add_u32 {CH}, {CH}, s14")
        e(f"s_mul_i32 {REGB}, s14, {REGSZ}\ns_add_u32 {REGB}, {REGB}, {REG0}")
        e(f"s_mul_i32 s51, {CH}, 384\nv_add_u32 v110, s51, {L4}\nv_lshlrev_b32 v111, 1, {LANE}\nv_add_u32 v111, s51, v111")
        e(f"s_lshr_b32 s79, {CH}, 1\ns_lshl_b32 s79, s79, 2")
        e("s_waitcnt lgkmcnt(0)")
        e(f"s_load_dword s80, s[30:31], s79\ns_load_dword s81, s[32:33], s79")
        if not self.o["pfirst"]: e("s_barrier")
        for i in range(6):
            e(f"global_load_dword v{RAW[2*i]}, v110, s[{18+2*i}:{19+2*i}] {self.o['pflag']}")
            e(f"global_load_ushort v{RAW[2*i+1]}, v111, s[{18+2*i}:{19+2*i}] offset:256 {self.o['pflag']}")
        self.pre(p)
        if self.o["pfirst"]: e("s_barrier")
        self.srd(p, 68, 48, WSEND)
        e("s_waitcnt lgkmcnt(0)")
    def serv_start(self, p):
        e = p.e
        e("s_setprio 3")
        e(f"v_add_u32 v109, {SYNC}, {L4}\ns_mov_b32 exec_hi, 0\nds_write_b32 v109, {VZ}\ns_mov_b64 exec, -1")
        e("s_waitcnt lgkmcnt(0)")
        self.pre(p)
        e(f"s_load_dword {TAG}, s[48:49], 0")
        e("s_barrier")
        self.srd(p, 60, 40, 6291456); self.srd(p, 68, 48, WSEND)
    def ln(self, p):
        e = p.e
        RAW, F, D, T, H = 20, 30, 50, 70, 90
        inv = fbits(1.0 / 640)
        e(f"s_lshr_b32 s51, {WV}, 1\ns_mul_i32 s51, s51, {REGSZ}\ns_and_b32 s15, {WV}, 1\ns_mul_i32 s15, s15, {2*PT}\ns_add_u32 s51, s51, s15\ns_add_u32 s51, s51, {LNT}")
        e(f"v_mul_u32_u24 v102, {PT}, v104\nv_add_u32 v102, s51, v102\nv_lshl_add_u32 v101, v106, 3, v102\nv_lshl_add_u32 v100, v106, 4, v102")
        p.wvm("x")
        self.stamp(p)
        self.unpack(p, RAW, F, 10)
        def psum(src, dst):
            e(f"v_pk_add_f32 {v(dst,2)}, {v(src,2)}, {v(src+2,2)}\nv_pk_add_f32 {v(dst+2,2)}, {v(src+4,2)}, {v(src+6,2)}")
            for i in range(4, 10): e(f"v_pk_add_f32 {v(dst+2*(i&1),2)}, {v(dst+2*(i&1),2)}, {v(src+2*i,2)}")
            e(f"v_pk_add_f32 {v(dst,2)}, {v(dst,2)}, {v(dst+2,2)}\nv_add_f32 v{dst}, v{dst}, v{dst+1}")
        def psq(src, dst):
            e(f"v_pk_mul_f32 {v(dst,2)}, {v(src,2)}, {v(src,2)}\nv_pk_mul_f32 {v(dst+2,2)}, {v(src+2,2)}, {v(src+2,2)}")
            for i in range(2, 10): e(f"v_pk_fma_f32 {v(dst+2*(i&1),2)}, {v(src+2*i,2)}, {v(src+2*i,2)}, {v(dst+2*(i&1),2)}")
            e(f"v_pk_add_f32 {v(dst,2)}, {v(dst,2)}, {v(dst+2,2)}\nv_add_f32 v{dst}, v{dst}, v{dst+1}")
        def rstd(var, out):
            e(f"v_max_f32 v{var}, 0, v{var}")
            self.rbf(p, var); e(f"v_add_f32 v{var}, {fbits(1e-5)}, v{var}"); self.rbf(p, var)
            e(f"v_sqrt_f32 v{var}, v{var}"); self.rbf(p, var); e(f"v_rcp_f32 v{out}, v{var}")
        psum(F, T); self.red32(p, [T], T + 2)
        e(f"v_mul_f32 v{T}, {inv}, v{T}\nv_mov_b32 v{T+4}, v{T}"); self.rbf(p, T + 4)
        for i in range(10): e(f"v_pk_add_f32 {v(D+2*i,2)}, {v(F+2*i,2)}, {v(T+4,2)} op_sel_hi:[1,0] neg_lo:[0,1] neg_hi:[0,1]")
        e(f"v_sub_f32 v{T+5}, v{T}, v{T+4}")
        psq(D, T); self.red32(p, [T], T + 2)
        e(f"v_mul_f32 v{T}, {inv}, v{T}\nv_fma_f32 v{T}, -v{T+5}, v{T+5}, v{T}")
        rstd(T, T + 6)
        for i in range(10): e(f"v_pk_mul_f32 {v(D+2*i,2)}, {v(D+2*i,2)}, {v(T+6,2)} op_sel_hi:[1,0]")
        for i in range(10): e(f"v_cvt_pk_bf16_f32 v{RAW+i}, v{D+2*i}, v{D+2*i+1}")
        self.unpack(p, RAW, F, 10)
        psum(F, T); psq(F, T + 4); self.red32(p, [T, T + 4], T + 2)
        e(f"v_mul_f32 v{T}, {inv}, v{T}\nv_mul_f32 v{T+4}, {inv}, v{T+4}\nv_fma_f32 v{T+4}, -v{T}, v{T}, v{T+4}")
        self.rbf(p, T)
        rstd(T + 4, T + 6)
        e(f"v_mul_f32 v{T+2}, v{T}, v{T+6}\nv_lshrrev_b32 v{T+4}, 16, v{T+4}\nv_or_b32 v{T+4}, v{T+4}, v{T}")
        for i in range(10): e(f"v_pk_fma_f32 {v(D+2*i,2)}, {v(F+2*i,2)}, {v(T+6,2)}, {v(T+2,2)} op_sel_hi:[1,0,0] neg_lo:[0,0,1] neg_hi:[0,0,1]")
        e(f"ds_write_b32 v102, v{T+4} offset:1280", "lnw")
        for i in range(10): e(f"v_cvt_pk_bf16_f32 v{H+i}, v{D+2*i}, v{D+2*i+1}")
        e(f"ds_write_b128 v100, {v(H,4)}\nds_write_b128 v100, {v(H+4,4)} offset:512\nds_write_b64 v101, {v(H+8,2)} offset:1024", "lnw")
        self.sig(p, Y_LN, T)

    def serv(self):
        self.role = "serv"
        p = Prog(); e = p.e; o = self.o
        self.serv_start(p)
        self.stamp(p)
        e(f"v_bfe_u32 v12, {LANE}, 2, 2\nv_mul_u32_u24 v12, {PT}, v12\nv_lshrrev_b32 v13, 4, {LANE}\nv_lshl_add_u32 v12, v13, 5, v12")
        e(f"v_and_b32 v13, 3, {LANE}\nv_lshl_add_u32 v12, v13, 3, v12\nv_add_u32 v12, {LNT}, v12")
        e(f"s_mul_i32 s84, {WG}, 10240\ns_add_u32 s84, s84, {HB}\ns_add_u32 s85, s84, 4096\ns_add_u32 s86, s84, 8192")
        e(f"s_lshl_b32 s87, {WG}, 4\ns_add_u32 s87, s87, {STAT}\nv_lshlrev_b32 v13, 12, {LANE}")
        e(f"s_lshr_b32 s89, {WG}, 2\ns_lshl_b32 s89, s89, 7\ns_and_b32 s51, {WG}, 3\ns_lshl2_add_u32 s89, s51, s89\ns_add_u32 s89, s89, {F1}\nv_lshlrev_b32 v14, 7, {LANE}")
        e("s_waitcnt lgkmcnt(0)")
        self.mktag(p)
        e(f"ds_write_b32 {VSY}, {VTAG} offset:{4*Y_TAG}")
        self.spin(p, Y_LN, 4, 20, sleep=1)
        if self.o.get("dly_p"): e(f"s_sleep {self.o['dly_p']}")
        self.stamp(p)
        for b in range(11):
            e(f"ds_read_b64_tr_b16 {v(24+4*b,2)}, v12 offset:{128*b}\nds_read_b64_tr_b16 {v(26+4*b,2)}, v12 offset:{128*b+REGSZ}", f"lr{b}")
            if b >= 3:
                c = b - 3; p.wlg(f"lr{c}")
                e(f"buffer_store_dwordx4 {v(24+4*c,4)}, {L16}, {SWS}, s{84 + c//4} offen offset:{(c%4)*1024} sc1")
        for c in range(8, 10):
            p.wlg(f"lr{c}")
            e(f"buffer_store_dwordx4 {v(24+4*c,4)}, {L16}, {SWS}, s{84 + c//4} offen offset:{(c%4)*1024} sc1")
        p.wlg("lr10")
        e(f"s_mov_b64 exec, 3\nbuffer_store_dwordx4 v[64:67], v13, {SWS}, s87 offen sc1\ns_mov_b64 exec, -1")
        self.sig(p, Y_PUB, 20)
        self.stamp(p)
        e(f"s_mul_i32 s50, {DT2}, 80\ns_lshr_b32 s50, s50, 6\ns_mul_i32 s92, s50, {24*128}\ns_add_u32 s92, s92, {F2}")
        e(f"v_min_u32 v15, 47, {LANE}\nv_lshlrev_b32 v15, 7, v15\nv_min_u32 v16, 29, {LANE}\nv_lshlrev_b32 v16, 7, v16")
        e(f"s_mul_i32 s93, {DT2}, {30*128}\ns_add_u32 s93, s93, {F3}")
        e("s_waitcnt vmcnt(0)")
        if self.o.get("dly_f"):
            self.sig(p, Y_PUB, 20); e(f"s_sleep {self.o['dly_f']}")
        self.flag_store(p, "s89")
        self.sig(p, Y_PUB, 20)
        self.stamp(p)
        e(f"s_cmp_lt_u32 {IDX}, 30\ns_cbranch_scc1 L_s1")
        e(f"v_lshrrev_b32 v17, 3, {LANE}\nv_lshlrev_b32 v17, 12, v17\nv_and_b32 v18, 7, {LANE}\nv_lshl_add_u32 v17, v18, 7, v17")
        e(f"s_lshl_b32 s88, {SUB}, 10\ns_and_b32 s51, {IDX}, 1\ns_lshl_b32 s51, s51, 15\ns_add_u32 s88, s88, s51\ns_and_b32 s51, {XCD}, 1\ns_lshl_b32 s51, s51, 16\ns_add_u32 s88, s88, s51")
        for i in range(o["nsp"]):
            e(f"buffer_load_dword v{24+i}, v17, {SW2}, s88 offen\ns_add_u32 s88, s88, 131072")
        e("s_waitcnt vmcnt(0)\ns_branch L_s2\nL_s1:")
        self.spin(p, Y_P1, 1, 20, sleep=2)
        self.stamp(p)
        e(f"s_mov_b32 s50, {F1}")
        self.poll(p, "v14", "s50", 20, wide=True, sleep=o["psleep"])
        self.sig(p, Y_F1, 20)
        self.stamp(p)
        if self.debug: e(f"v_writelane_b32 {VDBG}, s78, 31")
        e("L_s2:")
        self.spin(p, Y_P2, 1, 20, sleep=4)
        self.stamp(p)
        self.poll(p, "v15", "s92", 20, sleep=o["psleep2"])
        self.sig(p, Y_F2, 20)
        self.stamp(p)
        if self.debug: e(f"v_writelane_b32 {VDBG}, s78, 30")
        self.spin(p, Y_P3, 1, 20, sleep=4)
        self.poll(p, "v16", "s93", 20, sleep=o["psleep2"])
        self.sig(p, Y_F3, 20)
        if self.debug: e(f"v_writelane_b32 {VDBG}, s78, 29")
        self.finish(p)
        return p

    def kgen(self, p):
        e = p.e; RAW = self.RAW
        L2E = 1.4426950408889634
        l2e_hi = struct.unpack("<f", struct.pack("<f", L2E))[0]; l2e_lo = L2E - l2e_hi
        VDT, VD1, VD2, VDS, WA, RA, RB = 54, 55, 56, 57, 58, 59, 60
        e(f"s_and_b32 s51, {CH}, 1\ns_lshl_b32 s51, s51, 4\ns_lshr_b32 s80, s80, s51\ns_lshl_b32 s80, s80, 16\ns_lshr_b32 s81, s81, s51\ns_lshl_b32 s81, s81, 16")
        e(f"v_mov_b32 v62, s80\nv_mov_b32 v63, {fbits(l2e_hi)}\nv_mul_f32 v64, v62, v63\nv_fma_f32 v65, v62, v63, -v64\nv_fmac_f32 v65, {fbits(l2e_lo)}, v62")
        e(f"v_exp_f32 v64, v64\nv_mul_f32 v65, {fbits(0.6931471805599453)}, v65\nv_fma_f32 v{VDT}, v64, v65, v64")
        self.rbf(p, VDT)
        e(f"v_mul_f32 v{VD1}, {fbits(L2E)}, v{VDT}\nv_mul_f32 v{VD2}, 0.15915494, v{VDT}")
        e(f"v_cmp_eq_u32 vcc, 0, {LANE}\nv_mov_b32 v62, s81\nv_cndmask_b32 v{VDS}, 0, v62, vcc")
        e(f"s_mov_b32 m0, {REGB}")
        e(f"v_and_b32 v62, 31, {LANE}\nv_lshrrev_b32 v63, 5, {LANE}\nv_lshlrev_b32 v63, 4, v63\nv_add_u32 v63, {REGB}, v63")
        e(f"v_mul_u32_u24 v64, {KP}, v62\nv_add_u32 v{RB}, v64, v63")
        e(f"v_min_u32 v62, 20, v62\nv_mul_u32_u24 v64, {KP}, v62\nv_add_u32 v{RA}, v64, v63")
        e("v_mov_b32 v28, 0x3f80")
        e("s_waitcnt vmcnt(0)")
        self.stamp(p)
        PK = 116; pk = [0]; P = 62
        FA, FB = 16, 48
        def mf(rd):
            l = []
            for s in range(8):
                q = Prog()
                c = a(0, 16)
                q.e(f"v_mfma_f32_32x32x16_bf16 {a(0,16)}, {a(FA+4*s,4)}, {a(FB+4*s,4)}, {c}")
                l.append(q)
            return l
        p.e("s_mov_b32 s76, 0\nL_kg:")
        for rd in (1,):
            usepk = self.o["pk"]
            q = Prog(); e = q.e
            def cmul(sets):
                if usepk:
                    for d, x, y in sets: e(f"v_pk_mul_f32 {v(d,2)}, {v(x,2)}, {v(y,2)} op_sel_hi:[0,1]")
                    for d, x, y in sets: e(f"v_pk_fma_f32 {v(d,2)}, {v(x,2)}, {v(y,2)}, {v(d,2)} op_sel:[1,1,0] op_sel_hi:[1,0,1] neg_lo:[1,0,0]")
                else:
                    for d, x, y in sets: e(f"v_mul_f32 v{d}, v{x}, v{y}\nv_mul_f32 v{d+1}, v{x}, v{y+1}")
                    for d, x, y in sets: e(f"v_fma_f32 v{d}, -v{x+1}, v{y+1}, v{d}\nv_fmac_f32 v{d+1}, v{x+1}, v{y}")
            def puts(l, neg):
                rs = []
                for row, z in l:
                    r = PK + pk[0] % 8; pk[0] += 1; rs.append(r)
                    e(f"v_cvt_pk_bf16_f32 v{r}, v{z}, {'-' if neg else ''}v{z+1}")
                for (row, z), r in zip(l, rs): e(f"ds_write_addtid_b32 v{r} offset:{row*KP}", "kw")
            for i in range(6):
                e(f"v_lshlrev_b32 v{P+i}, 16, v{RAW[2*i]}\nv_alignbit_b32 v{RAW[2*i]}, v{RAW[2*i+1]}, v{RAW[2*i]}, 16")
            AR, AI = 68, 69
            e(f"v_mul_f32 v{AR}, v{P}, v{VD1}\nv_mul_f32 v{AI}, v{P+1}, v{VD2}")
            e(f"v_mul_f32 v{P+2}, v{P+2}, v{VDT}\nv_mul_f32 v{P+3}, v{P+3}, v{VDT}")
            E1, E8, E256 = 70, 72, 74
            TM_, TA = 76, 79
            for i, t in enumerate((1.0, 8.0, 256.0)):
                if i == 0: e(f"v_mov_b32 v{TM_}, v{AR}\nv_fract_f32 v{TA}, v{AI}")
                else: e(f"v_mul_f32 v{TM_+i}, {fbits(t)}, v{AR}\nv_mul_f32 v{TA+i}, {fbits(t)}, v{AI}\nv_fract_f32 v{TA+i}, v{TA+i}")
            X = 82
            cmul([(X, P + 4, P + 2)])
            for i in range(3):
                e(f"v_exp_f32 v{TM_+i}, v{TM_+i}\nv_cos_f32 v{E1+2*i}, v{TA+i}\nv_sin_f32 v{E1+2*i+1}, v{TA+i}")
            for i in range(3): e(f"v_mul_f32 v{E1+2*i}, v{E1+2*i}, v{TM_+i}\nv_mul_f32 v{E1+2*i+1}, v{E1+2*i+1}, v{TM_+i}")
            E2, E4, E16, E512 = 98, 100, 102, 104
            EA, EB, E32, Y, Z = 106, 20, 114, 30, 38
            cmul([(E2, E1, E1), (E16, E8, E8), (E512, E256, E256), (X + 2, X, E1)])
            cmul([(E4, E2, E2), (EA + 6, E16, E8), (E32, E16, E16), (X + 4, X, E2), (X + 6, X + 2, E2)])
            p.ext(q)
            p.e("s_waitcnt lgkmcnt(0)")
            q = Prog(); e = q.e
            e(f"ds_write_addtid_b32 v28", "kw")
            puts([(1, E8), (2, E16), (3, EA + 6), (4, E32)], False)
            cmul([(EB, E8, E32), (EB + 2, E16, E32), (EB + 4, EA + 6, E32), (EB + 6, E32, E32)])
            cur, nxt = EB, EA
            extra = [[(X + 8 + 2 * i, X + 2 * i, E4) for i in range(4)], [(Y + 2 * i, X + 4 * i, E256) for i in range(4)],
                     [(Z, X, E512), (Z + 2, X + 8, E512), (Z + 4, Y, E512), (Z + 6, Y + 4, E512)],
                     [(Z + 8, Z, E512), (Z + 10, Z + 4, E512)], [(Z + 12, Z + 8, E512), (Z + 14, Z + 10, E512)], [(E1, Z + 12, E512)]]
            for st in range(6):
                j0 = 9 + 4 * st
                n = min(4, 32 - j0)
                cmul([(nxt + 2 * i, cur + 2 * i, E32) for i in range(n)])
                puts([(j0 - 4 + i, cur + 2 * i) for i in range(4)], False)
                cmul(extra[st])
                cur, nxt = nxt, cur
            puts([(29 + i, cur + 2 * i) for i in range(3)], False)
            if rd > 0: p.ext(interleave(q, mf(rd - 1)))
            else: p.ext(q)
            for s_ in range(8): p.e(f"ds_read_b128 {a(FB+4*s_,4)}, v{RB} offset:{s_*32}", "kr")
            e = p.e
            puts([(i, X + 2 * i) for i in range(4)], True); puts([(4 + i, X + 8 + 2 * i) for i in range(4)], True)
            puts([(8 + i, Y + 2 * i) for i in range(4)], True); puts([(12 + i, Z + 2 * i) for i in range(4)], True)
            puts([(16 + i, Z + 8 + 2 * i) for i in range(4)] + [(20, E1)], True)
            for s_ in range(8): p.e(f"ds_read_b128 {a(FA+4*s_,4)}, v{RA} offset:{s_*32}", "kr")
            p.e("s_cmp_lg_u32 s76, 0\ns_cbranch_scc1 L_kg1")
            for i in range(16): p.e(f"v_accvgpr_write_b32 a{i}, 0")
            p.e("L_kg1:")
            if self.debug: p.e(f"s_memrealtime s[82:83]\ns_waitcnt lgkmcnt(0)\ns_add_u32 s50, s76, 20\nv_mov_b32 v61, s82\nv_cmp_eq_u32 vcc, s50, {LANE}\nv_cndmask_b32 {VDBG}, {VDBG}, v61, vcc")
            p.e("s_add_u32 s76, s76, 1\ns_cmp_lt_u32 s76, 3\ns_cbranch_scc1 L_kg")
        e = p.e
        e(f"v_and_b32 v62, 31, {LANE}\nv_lshrrev_b32 v63, 5, {LANE}\ns_add_u32 s51, {REGB}, {KCO}")
        e(f"v_lshlrev_b32 v64, 4, v62\nv_lshl_add_u32 v64, v63, 3, v64\nv_add_u32 v64, s51, v64")
        e(f"v_cmp_eq_u32 vcc, 0, v63\nv_lshlrev_b32 v65, 3, v62\nv_add_u32 v65, 512, v65\nv_lshlrev_b32 v66, 2, v62\nv_add_u32 v66, 768, v66")
        e(f"v_cndmask_b32 v65, v66, v65, vcc\nv_add_u32 v65, s51, v65\nv_mov_b32 v66, 128\nv_cndmask_b32 v66, v66, 4, vcc\nv_add_u32 v66, v65, v66")
        e(f"v_lshlrev_b32 v67, 1, v62\nv_lshl_add_u32 v67, v63, 8, v67\nv_add_u32 v67, s51, v67")
        self.spin(p, Y_PUB, 1, 68)
        for q in mf(2): p.ext(q)
        e(f"v_mov_b32 v76, 0\nv_mov_b32 v77, 0\nv_mov_b32 v78, 0\nv_mov_b32 v79, 0\nv_add_u32 v15, {REGB}, {L16}")
        for i in range(4): e(f"ds_write_b128 v15, v[76:79] offset:{R0O + 1024*i}", "kc")
        e("s_mov_b64 exec, 3")
        e(f"ds_write_b128 v15, v[76:79] offset:{KCO - 32}", "kc")
        e("s_mov_b32 exec_lo, -1")
        e(f"ds_write_b128 v15, v[76:79] offset:{UO}", "kc")
        e("s_mov_b64 exec, -1")
        blocks = [(-2, 34, 8), (32, 32, 4)]
        info = []
        for bi, (v0, nl, stride) in enumerate(blocks):
            cis = lambda y: y if y < 0 else ci(y)
            base = cis(8 * v0)
            offs = {}
            for t in range(-1, 8):
                o = [cis(8 * (v0 + l) + 7 - t) - (base + stride * l) for l in range(nl)]
                offs[t] = o[0]
                assert all(x == o[0] for x in o)
            AD = 100 + 2 * bi
            e(f"s_add_u32 s51, {REGB}, {KCO + 2*base}\nv_mul_u32_u24 v{AD}, {2*stride}, {LANE}\nv_add_u32 v{AD}, s51, v{AD}")
            e(f"s_add_u32 s51, {REGB}, {(75 - v0) * 16}\nv_sub_u32 v{AD+1}, s51, {L16}")
            info.append(offs)
        e(f"v_cmp_gt_u32 vcc, 16, {LANE}\nv_mov_b32 v104, 563\nv_mov_b32 v105, 512\nv_cndmask_b32 v104, v104, v105, vcc\nv_add_u32 v104, v104, {LANE}")
        e(f"v_mov_b32 v106, 1011\nv_cndmask_b32 v105, v106, v105, vcc\nv_add_u32 v105, v105, {LANE}\nv_cvt_f32_u32 v105, v105\nv_cvt_pk_bf16_f32 v105, v105, v105\nv_and_b32 v105, 0xffff, v105")
        e(f"s_sub_u32 s51, {REGB}, {2*0x4280 - KCO}\nv_lshl_add_u32 v105, v105, 1, s51")
        e(f"s_add_u32 s51, {REGB}, {2*607}\nv_lshlrev_b32 v104, 1, v104\nv_sub_u32 v104, s51, v104")
        e(f"v_lshlrev_b32 v106, 1, {LANE}\ns_add_u32 s51, {REGB}, 4096\nv_sub_u32 v107, s51, v106\nv_add_u32 v106, {REGB}, v106")
        for i in range(12): e(f"v_accvgpr_read_b32 v{82+i}, a{i}")
        e(f"v_add_f32 v82, v82, v{VDS}")
        for i in range(6): e(f"v_cvt_pk_bf16_f32 v{70+i}, v{82+2*i}, v{83+2*i}")
        e(f"ds_write_b64 v64, v[70:71]\nds_write_b32 v65, v72\nds_write_b32 v66, v73\nds_write_b16 v67, v74 offset:1024", "kc")
        e("s_mov_b32 exec_hi, 0")
        e(f"ds_write_b16_d16_hi v67, v74 offset:{1024+64}\nds_write_b16 v67, v75 offset:{1024+128}\nds_write_b16_d16_hi v67, v75 offset:{1024+192}", "kc")
        e("s_mov_b64 exec, -1")
        vrs = []
        for bi, (v0, nl, stride) in enumerate(blocks):
            RR = 20 + 9 * bi; AD = 100 + 2 * bi; offs = info[bi]
            e(f"s_mov_b32 exec_hi, {(1 << (nl - 32)) - 1}")
            seen = {}; vr = {}
            for t in range(-1, 8):
                o = offs[t]
                if o not in seen:
                    seen[o] = RR + len(seen)
                    e(f"ds_read_u16 v{seen[o]}, v{AD} offset:{2*o}", f"kx{bi}")
                vr[t] = seen[o]
            vrs.append(vr)
        e("ds_read_u16 v40, v105", "kq")
        e("s_mov_b64 exec, -1")
        for i in range(2):
            e(f"ds_read_u16 v{41+i}, v106 offset:{KCO + 2*(388 + 64*i)}\nds_read_u16 v{43+i}, v106 offset:{KCO + 2*(514 + 64*i)}", "kq")
        for bi, (v0, nl, stride) in enumerate(blocks):
            AD = 100 + 2 * bi; O = 70 + 8 * bi; vr = vrs[bi]
            p.wlg(f"kx{bi}")
            for i in range(4): e(f"v_lshl_or_b32 v{O+i}, v{vr[2*i+1]}, 16, v{vr[2*i]}")
            for i in range(4): e(f"v_lshl_or_b32 v{O+4+i}, v{vr[2*i]}, 16, v{vr[2*i-1]}")
            e(f"s_mov_b32 exec_hi, {(1 << (nl - 32)) - 1}")
            e(f"ds_write_b128 v{AD+1}, {v(O,4)} offset:{R0O}\nds_write_b128 v{AD+1}, {v(O+4,4)} offset:{R1O}", "kt")
            e("s_mov_b64 exec, -1")
        p.wlg("kq")
        e(f"ds_write_b16 v107, v41 offset:{Q2O - 4096 + 2*188}\nds_write_b16 v107, v43 offset:{Q3O - 4096 + 2*126}", "kt")
        e(f"s_mov_b32 exec_hi, {(1 << 31) - 1:#x}\nds_write_b16 v107, v44 offset:{Q3O - 4096 + 2*(126-64)}", "kt")
        e(f"s_mov_b32 exec_hi, {(1 << 29) - 1:#x}\nds_write_b16 v107, v42 offset:{Q2O - 4096 + 2*(188-64)}", "kt")
        e(f"s_mov_b32 exec_hi, 0\ns_mov_b32 exec_lo, 0x01ff3fff\nds_write_b16 v104, v40 offset:{R0O}\nds_write_b16 v104, v40 offset:{R1O + 2}\ns_mov_b64 exec, -1", "kt")

    def conv_setup(self, p):
        e = p.e
        e(f"v_lshrrev_b32 v32, 4, {LANE}\nv_and_b32 v31, 15, {LANE}\nv_bfe_u32 v33, {LANE}, 1, 3\nv_lshlrev_b32 v34, 2, v32\nv_sub_u32 v34, v34, v33")
        e(f"v_and_b32 v33, 1, {LANE}\nv_xor_b32 v33, 1, v33\nv_mul_u32_u24 v33, {(R1O - R0O)//4 + 1}, v33\nv_add_u32 v34, v34, v33")
        e(f"s_add_u32 s51, {REGB}, {R0O + 4*7}\nv_lshl_add_u32 v24, v34, 2, s51\nv_add_u32 v25, 512, v24")
        e(f"v_lshlrev_b32 v33, 4, v32\nv_lshlrev_b32 v34, 3, v31\nv_sub_u32 v26, v33, v34\ns_add_u32 s51, {REGB}, {Q2O + 120}\nv_add_u32 v26, s51, v26")
        e(f"v_lshlrev_b32 v34, 2, v31\nv_sub_u32 v27, v33, v34\ns_add_u32 s51, {REGB}, {Q3O + 60}\nv_add_u32 v27, s51, v27")
        for m in list(range(17)) + [18]:
            off = (18 - m) * 16; ad = 24; r = 4 * min(m, 17)
            if off >= 128: off -= 128; ad = 25
            e(f"ds_read2_b32 {a(r,2)}, v{ad} offset0:{off} offset1:{off+1}\nds_read2_b32 {a(r+2,2)}, v{ad} offset0:{off+2} offset1:{off+3}", "pf")
        for j in range(6): e(f"ds_read_b64 {a(72+4*j,2)}, v26 offset:{64*j}\nds_read_b64 {a(74+4*j,2)}, v26 offset:{64*j+8}", "pf")
        for j in range(4): e(f"ds_read2_b32 {a(96+4*j,2)}, v27 offset0:{16*j} offset1:{16*j+1}\nds_read2_b32 {a(98+4*j,2)}, v27 offset0:{16*j+2} offset1:{16*j+3}", "pf")
        e("v_mov_b32 v76, 0\nv_mov_b32 v77, 0\nv_mov_b32 v78, 0\nv_mov_b32 v79, 0\ns_mov_b64 exec, 1")
        for o in (Z5O, Z3O, Z9O, Z7O, Z5O + 3088, Z3O + 3088): e(f"ds_write_b128 v15, v[76:79] offset:{o}", "pf")
        e("s_mov_b64 exec, -1")
        e(f"v_lshl_add_u32 v34, v31, 1, v32\ns_add_u32 s51, {REGB}, {UO + 16*2}\nv_lshl_add_u32 v16, v34, 4, s51")
        e(f"v_bfe_u32 v33, {LANE}, 2, 2\nv_and_b32 v34, 3, {LANE}\nv_and_b32 v35, 1, v33")
        e(f"v_mul_u32_u24 v12, {Z3O - Z5O}, v35\nv_lshl_add_u32 v12, v32, 6, v12\nv_add_u32 v36, v33, v34\nv_lshl_add_u32 v12, v36, 3, v12\nv_add_u32 v12, {REGB}, v12")
        e(f"v_mul_u32_u24 v13, {Z7O - Z9O}, v35\nv_lshl_add_u32 v13, v32, 7, v13\nv_lshl_add_u32 v13, v33, 4, v13\nv_lshl_add_u32 v13, v34, 3, v13\nv_add_u32 v13, {REGB}, v13")
        e(f"v_add_u32 v14, {UO + 512 - 24}, v15")
        e(f"v_and_b32 v34, 1, v32\nv_lshlrev_b32 v34, 9, v34\nv_lshl_add_u32 v34, v31, 5, v34\nv_lshrrev_b32 v32, 1, v32\nv_lshl_add_u32 v17, v32, 4, v34")
        e(f"s_lshl_b32 s86, {CH}, 12\ns_add_u32 s86, s86, {YT}\ns_mul_i32 s89, {DT}, 24\ns_add_u32 s89, s89, {FT}\ns_lshl_b32 s89, s89, 7\ns_add_u32 s89, s89, {F3}\ns_sub_u32 s88, {NCH}, 1")
    def inverse(self, p):
        e = p.e
        S2, M2, SF, MF = 24, 40, 56, 88
        e(f"v_lshrrev_b32 v20, 4, {LANE}\nv_lshlrev_b32 v20, 10, v20\nv_and_b32 v21, 3, {LANE}\nv_lshl_add_u32 v20, v21, 4, v20\nv_and_b32 v21, 12, {LANE}")
        e(f"s_add_u32 s51, {REGB}, {UO+512}")
        for q in range(4):
            e(f"v_add_u32 v22, {16*(q&1)}, v21\nv_bfe_u32 v22, s{74 + q//2}, v22, 4\nv_lshl_add_u32 v{4+q}, v22, 6, v20\nv_add_u32 v{120+q}, s51, v{4+q}")
        e(f"s_mov_b32 s84, {STAT}\ns_mov_b32 s85, {STAT+4096}")
        self.spin(p, Y_F1, 1, 22, sleep=2)
        e(f"ds_read_b32 {VTAG}, {VSY} offset:{4*Y_TAG}", "tag")
        for q in range(4):
            e(f"buffer_load_dwordx4 {v(S2+4*q,4)}, v{4+q}, {SWS}, s84 offen sc1", "u")
            e(f"buffer_load_dwordx4 {v(M2+4*q,4)}, v{4+q}, {SWS}, s85 offen sc1", "u")
        p.wvm("u")
        self.unpack(p, S2, SF, 16); self.unpack(p, M2, MF, 16)
        self.stamp(p)
        for q in range(4):
            self.spin(p, Y_U + q, 4, 22, sleep=(2 if q < 3 else 1))
            if q == 3: self.stamp(p)
            e(f"ds_read_b128 v[24:27], v{120+q}", f"ur{q}")
            p.wlg(f"ur{q}")
            self.unpack(p, 24, 40, 4)
            for i in range(8): e(f"v_fma_f32 v{40+i}, v{40+i}, v{SF+8*q+i}, v{MF+8*q+i}")
            for i in range(4): e(f"v_cvt_pk_bf16_f32 v{48+i}, v{40+2*i}, v{41+2*i}")
            e(f"ds_write_b128 v{120+q}, v[48:51]", "uw")
    def zcode(self):
        p = Prog(); e = p.e
        RAWZ, P, W = 96, 103, 56
        def rd(it):
            e(f"ds_read_b64 {v(RAWZ,2)}, v14 offset:{1024*it}\nds_read_b128 {v(RAWZ+2,4)}, v14 offset:{1024*it+8}\nds_read_b64 {v(RAWZ+6,2)}, v14 offset:{1024*it+24}", f"zr{it}")
        rd(0); k = 0
        for it in range(3):
            p.wlg(f"zr{it}")
            self.unpack(p, RAWZ, P + 1, 8)
            if it < 2: rd(it + 1)
            for j in range(2, 17 if it < 2 else 15): e(f"v_add_f32 v{P+j}, v{P+j}, v{P+j-1}")
            for h, zo in ((2, Z5O), (1, Z3O), (4, Z9O), (3, Z7O))[:(4 if it < 2 else 2)]:
                for t in range(8):
                    if t + 4 - h == 0: e(f"v_mov_b32 v{W}, v{P+9}")
                    else: e(f"v_sub_f32 v{W+t}, v{P+t+5+h}, v{P+t+4-h}")
                o = 120 + 4 * (k & 1); k += 1
                for i in range(4): e(f"v_cvt_pk_bf16_f32 v{o+i}, v{W+2*i}, v{W+2*i+1}")
                e(f"ds_write_b128 v15, {v(o,4)} offset:{zo + 16 + 1024*it}", "zw")
        return p
    def conv(self, p):
        e = p.e
        YO, ACC = 17, 64
        slots = [("v", 24 + 4 * i) for i in range(10)] + [("v", 96 + 4 * i) for i in range(8)] + [("a", 112 + 4 * i) for i in range(4)]
        slots = slots[:self.o["cns"]]; NS = len(slots)
        def R(n, off=0, w=4):
            k, r = slots[n % NS]; return (v if k == "v" else a)(r + off, w)
        jobs = []
        for ph in range(8):
            for d in range(8):
                l = [(d + mu, 4 * (8 * mu + ph), False) for mu in range(2) if d + mu <= 7]
                if ph == 0 and d <= 5: l.append((d + 2, 64, False))
                if ph == 0 and d <= 3: l.append((d + 4, 68, False))
                jobs.append((lambda n, d=d, ph=ph: [f"ds_read_b128 {R(n)}, v16 offset:{512*d + (7-ph)*64}"], l))
        nF = len(jobs)
        for st in range(4):
            jobs.append((lambda n, st=st: [f"ds_read_b64_tr_b16 {R(n,0,2)}, v13 offset:{Z9O + 512*st}", f"ds_read_b64_tr_b16 {R(n,2,2)}, v13 offset:{Z9O + 512*st + 64}"],
                         [(I, 96 + 4 * (st - I + 7), True) for I in range(4, 8) if st <= I - 4]))
        for st in range(12):
            jobs.append((lambda n, st=st: [f"ds_read_b64_tr_b16 {R(n,0,2)}, v12 offset:{Z5O + 256*st}", f"ds_read_b64_tr_b16 {R(n,2,2)}, v12 offset:{Z5O + 256*st + 32}"],
                         [(I, 72 + 4 * (st - 2 * I + 8), True) for I in range(2, 8) if 2 * I - 8 <= st <= 2 * I - 3]))
        assert sum(len(j[1]) for j in jobs) == 170
        first = set()
        def load(q, n):
            for t in jobs[n][0](n): q.e(t, f"cj{n}")
        def run(q, n):
            q.wlg(f"cj{n}")
            r = R(n)
            for i, (I, kf, dA) in enumerate(jobs[n][1]):
                acc = v(ACC + 4 * I, 4); src = acc if I in first else "0"; first.add(I)
                q.e(f"v_mfma_f32_16x16x32_bf16 {acc}, {r if dA else a(kf,4)}, {a(kf,4) if dA else r}, {src}")
                if i == 0 and n >= 1 and n - 1 + NS < len(jobs): load(q, n - 1 + NS)
        jobs = jobs[nF:] + jobs[:nF]
        if self.o.get("dly_c"): e(f"s_sleep {self.o['dly_c']}")
        p.ext(self.zcode())
        for n in range(NS): load(p, n)
        if self.o["cwait"]: self.spin(p, Y_EPI, self.o["cwait"], 22, sleep=1)
        e(f"s_setprio {self.o['cprio']}")
        self.stamp(p)
        for n in range(len(jobs)): run(p, n)
        for k in range(4):
            o = 24 + 4 * k
            for i in range(4): e(f"v_cvt_pk_bf16_f32 v{o+i}, v{ACC+8*k+2*i}, v{ACC+8*k+2*i+1}")
            e(f"v_permlane16_swap_b32 v{o}, v{o+2}\nv_permlane16_swap_b32 v{o+1}, v{o+3}")
            e(f"buffer_store_dwordx4 {v(o,4)}, v{YO}, {SWS}, s86 offen offset:{1024*k} sc1", "ys")
        self.stamp(p)
        e("s_waitcnt vmcnt(0)")
        e(f"v_mov_b32 v20, 1\ns_mov_b64 exec, 1\nds_add_rtn_u32 v20, {VSY}, v20 offset:{4*Y_Y}\ns_mov_b64 exec, -1\ns_waitcnt lgkmcnt(0)\nv_readfirstlane_b32 s79, v20")
        e(f"s_cmp_lg_u32 s79, s88\ns_cbranch_scc1 L_ynl")
        self.flag_store(p, "s89")
        e("L_ynl:")
    def convw(self):
        self.role = "conv"
        p = Prog(); e = p.e
        self.conv_start(p)
        self.stamp(p)
        if not self.o.get("skip_kgen"): self.kgen(p)
        else: self.stamp(p)
        self.stamp(p)
        if self.o.get("dly_k"): e(f"s_sleep {self.o['dly_k']}")
        self.conv_setup(p)
        e("s_setprio 0")
        self.inverse(p)
        self.conv(p)
        self.finish(p)
        return p

    def build(self):
        p = Prog(); self.prologue(p)
        p.ext(self.main())
        body = finalize(p)
        q = Prog(); q.e("L_aux:")
        q.e(f"s_cmp_eq_u32 {WV}, 7\ns_cbranch_scc1 L_serv"); q.ext(self.convw())
        body += finalize(q)
        q = Prog(); q.e("L_serv:"); q.ext(self.serv()); q.e("L_end:\nL_last:\ns_endpgm")
        body += finalize(q)
        body = body.replace("@", "")
        ref = open("cdna_kernels/" + NAME + ".s.ref").read()
        head = [l for l in ref.split("\n") if l.startswith(";") and "@launch" not in l]
        k = NAME + "_kernel"
        s = "\n".join(head) + f"\n; @launch grid=(256,1,1) block=(512,1,1) lds={LDS_BYTES}\n"
        s += f'.amdgcn_target "amdgcn-amd-amdhsa--gfx950"\n.text\n.globl {k}\n.p2align 8\n.type {k},@function\n{k}:\n'
        s += body
        s += f""".section .rodata,"a"
.p2align 6
.amdhsa_kernel {k}
  .amdhsa_next_free_vgpr 256
  .amdhsa_next_free_sgpr 102
  .amdhsa_accum_offset 128
  .amdhsa_group_segment_fixed_size 0
  .amdhsa_kernarg_size 136
  .amdhsa_user_sgpr_count 2
  .amdhsa_user_sgpr_kernarg_segment_ptr 1
  .amdhsa_system_sgpr_workgroup_id_x 1
.end_amdhsa_kernel
"""
        return s

if __name__ == "__main__":
    out = sys.argv[1]
    kw = eval("dict(" + (sys.argv[2] if len(sys.argv) > 2 else "") + ")")
    open(out, "w").write(G(**kw).build())
```

```python
import sys, struct
from asmlib import Prog, interleave, finalize

NAME = "parallel_sum__ssm_conv_s4__mixer_token_mlp__prompt"
STAT, TM, F2, F3, F1 = 0x4000, 0x8000, 0x50000, 0x58000, 0x60000
HB, GB, YT, WSEND = 0x80000, 0x300000, 0x4E0000, 0x760000
RINGW, RS = 28672, 7
PT = 1344
REG0, REGSZ = 0, 14976
SYNC = 3 * REGSZ
RING0 = 45056
KCO, R0O, R1O, Q2O, Q3O = 32, 1408, 1408 + 1344, 4096, 4608
Z5O, Z3O, Z9O, Z7O, UO = 0, 3104, 6208, 8288, 10368
LNT = REG0 + 8704
KP = 272
LDS_BYTES = 163840
assert SYNC + 128 <= RING0 and RING0 + 4 * RINGW <= LDS_BYTES
Y_EPI = 3
Y_Y = 16
Y_LN, Y_F1, Y_PART, Y_PUB, Y_P1, Y_G, Y_P2, Y_F2, Y_P3, Y_F3, Y_TAG, Y_U = 0, 1, 2, 4, 5, 6, 7, 8, 9, 10, 11, 12

def fbits(x): return "0x%08x" % struct.unpack("<I", struct.pack("<f", x))[0]
def bf16r(l):
    u = struct.unpack("<I", struct.pack("<f", float(l)))[0]
    u = ((u + 0x7FFF + ((u >> 16) & 1)) >> 16) << 16
    return int(struct.unpack("<f", struct.pack("<I", u))[0])
def ci(l):
    v = bf16r(l)
    if v <= 256: return v
    if v <= 512: return 256 + (v - 256) // 2
    if v <= 1024: return 384 + (v - 512) // 4
    return 512 + (v - 1024) // 8

WG, WV, XCD, IDX, DT, FT, DT2, ST2, TAG, ROT1, ROT2, CH = "s2", "s3", "s4", "s5", "s6", "s7", "s8", "s9", "s10", "s11", "s12", "s13"
SUB, C0, NCH = "s97", "s98", "s99"
SX, SW1, SW2, SOUT, SWS = "s[52:55]", "s[56:59]", "s[60:63]", "s[64:67]", "s[68:71]"
RINGB, REGB = "s73", "s77"
VSY, LANE, L16, L4, VTAG, VZ, VDBG = "v0", "v1", "v2", "v3", "v9", "v10", "v11"

def v(i, n=1): return f"v{i}" if n == 1 else f"v[{i}:{i+n-1}]"
def a(i, n=1): return f"a{i}" if n == 1 else f"a[{i}:{i+n-1}]"

def groups_of(prog):
    groups = []
    for it in prog.items:
        prev = groups[-1][-1][0] if groups else None
        if isinstance(prev, str) and (prev.startswith(("s_add_u32 m0", "s_cmp", "s_sub_u32 s51", "s_mov_b64 exec, s", "s_mov_b64 exec, 1", "ds_write_b128 v125", "ds_add"))):
            groups[-1].append(it)
        else: groups.append([it])
    return groups

def make_perm(n, nw, first, duty0):
    own = list(range(0, n, 2)); oth = list(range(1, n, 2))
    order = [[] for _ in range(nw)]; touched = {}
    pool = own[:]
    for pos in range(first):
        for j in range(nw):
            pass
    deal = [[] for _ in range(nw)]
    k = 0
    for pos in range(first):
        for j in range(nw):
            if pool: st = pool.pop(0)
            else: st = oth.pop(0)
            deal[j].append(st); touched[st] = pos
    rest = pool + oth
    duty = {}
    for i, st in enumerate(rest): duty[(duty0 + i, i % nw)] = st
    for j in range(nw): order[j] = list(deal[j])
    for pos in range(first, n):
        for j in range(nw):
            if (pos, j) in duty: touched[duty[(pos, j)]] = pos
        for j in range(nw):
            if (pos, j) in duty: order[j].append(duty[(pos, j)]); continue
            mine = {st for (pp, jj), st in duty.items() if jj == j and pp > pos}
            cand = [st for st in range(n) if st not in order[j] and st not in mine]
            cand.sort(key=lambda st: (touched.get(st, 99), (st - 2 * j) % n))
            order[j].append(cand[0])
    for o in order: assert sorted(o) == list(range(n)), o
    return order
def pack_perm(o):
    x = sum(st << (4 * i) for i, st in enumerate(o)); return x & 0xffffffff, x >> 32

class G:
    def __init__(self, debug=False, **kw):
        self.debug = debug
        self.o = dict(P1=6, D1=13, PS1=11, lead1=4, xk=8, P2=4, D2=11, PS2=9, lead2=4, wflag="", xflag="", nsp=30, thr=2,
                      ytrig=5, ychk=10, pk=1, psleep=4, psleep2=8, kprio=0, mprio=2, ebpos=0, tch=0, cprio=3, ipf=2, ns1=12, ns2=15, perm=1, duty1=3, duty2=3, oflag='', eb=2, pfirst=1, free1=2, pre1=0, cns=22, nthr=6, pflag='nt', cwait=4)
        self.o.update(kw)
        self.nst = {}; self.nlab = 0; self.role = None
    def stamp(self, p):
        if not self.debug: return
        n = self.nst.get(self.role, 0)
        if n == 0: p.e(f"v_writelane_b32 {VDBG}, s100, 28")
        p.e(("s_memtime" if self.o.get("cyc") else "s_memrealtime") + " s[82:83]\ns_waitcnt lgkmcnt(0)")
        p.e(f"v_writelane_b32 {VDBG}, s82, {n}")
        self.nst[self.role] = n + 1
    def pre(self, p):
        if self.debug and self.o.get("prest"): p.e(f"s_memrealtime s[82:83]\ns_waitcnt lgkmcnt(0)\nv_writelane_b32 {VDBG}, s82, 27")
    def label(self, s):
        self.nlab += 1; return f"L{s}_{self.nlab}"
    def flag_store(self, p, soff, pre=""):
        p.e(f"s_mov_b64 exec, 1\n{pre}buffer_store_dword {VTAG}, {VZ}, {SWS}, {soff} offen sc1\ns_mov_b64 exec, -1")
    def poll(self, p, voff, soff, tmp, wide=False, sleep=0):
        l = self.label("poll"); d = self.label("polld"); f = self.label("pollf")
        p.e("s_mov_b32 s78, 0")
        if sleep: p.e(f"s_branch {f}")
        p.e(f"{l}:")
        if sleep: p.e(f"s_sleep {sleep}\n{f}:")
        if wide:
            p.e(f"buffer_load_dwordx4 {v(tmp,4)}, {voff}, {SWS}, {soff} offen sc1")
            p.e("s_add_u32 s78, s78, 1\ns_waitcnt vmcnt(0)")
            for i in range(4): p.e(f"v_xor_b32 {v(tmp+i)}, {TAG}, {v(tmp+i)}")
            p.e(f"v_or3_b32 {v(tmp)}, {v(tmp)}, {v(tmp+1)}, {v(tmp+2)}\nv_or_b32 {v(tmp)}, {v(tmp)}, {v(tmp+3)}")
            p.e(f"v_cmp_ne_u32 vcc, 0, {v(tmp)}")
        else:
            p.e(f"buffer_load_dword {v(tmp)}, {voff}, {SWS}, {soff} offen sc1")
            p.e("s_add_u32 s78, s78, 1\ns_waitcnt vmcnt(0)")
            p.e(f"v_cmp_ne_u32 vcc, {TAG}, {v(tmp)}")
        p.e(f"s_cmp_gt_u32 s78, 0x8000\ns_cbranch_scc1 {d}\ns_cbranch_vccz {d}\ns_mov_b64 exec, vcc\ns_branch {l}")
        p.e(f"{d}:\ns_mov_b64 exec, -1")
    def sig(self, p, word, tmp):
        p.e(f"v_mov_b32 v{tmp}, 1\ns_mov_b64 exec, 1\nds_add_u32 {VSY}, v{tmp} offset:{4*word}\ns_mov_b64 exec, -1", "sig")
    def spin(self, p, word, n, tmp, sleep=0):
        l = self.label("spin"); d = self.label("spind"); f = self.label("spinf")
        p.e("s_mov_b32 s78, 0")
        if sleep: p.e(f"s_branch {f}")
        p.e(f"{l}:")
        if sleep: p.e(f"s_sleep {sleep}\n{f}:")
        p.e(f"ds_read_b32 v{tmp}, {VSY} offset:{4*word}\ns_add_u32 s78, s78, 1\ns_waitcnt lgkmcnt(0)\nv_readfirstlane_b32 s79, v{tmp}")
        p.e(f"s_cmp_gt_u32 s78, 0x40000\ns_cbranch_scc1 {d}\ns_cmp_lt_u32 s79, {n}\ns_cbranch_scc1 {l}")
        p.e(f"{d}:")
    def mktag(self, p):
        p.e(f"s_mul_i32 {TAG}, {TAG}, 0x9E3779B1\ns_add_u32 {TAG}, {TAG}, 0x7F4A7C15\nv_mov_b32 {VTAG}, {TAG}")
    def finish(self, p):
        e = p.e
        if self.debug:
            e("s_waitcnt vmcnt(0)")
            self.stamp(p)
            e(f"s_lshl_b32 s50, {WG}, 3\ns_add_u32 s50, s50, {WV}\ns_lshl_b32 s50, s50, 7\ns_add_u32 s50, s50, {TM}")
            e(f"s_mov_b32 exec_hi, 0\nbuffer_store_dword {VDBG}, {L4}, {SWS}, s50 offen")
        e("s_endpgm")
    def srd(self, p, d, lo, size): p.e(f"s_mov_b32 s{d}, s{lo}\ns_mov_b32 s{d+1}, s{lo+1}\ns_mov_b32 s{d+2}, {size}\ns_mov_b32 s{d+3}, 0x20000")
    def unpack(self, p, src, dst, n):
        for i in range(n):
            p.e(f"v_lshlrev_b32 v{dst+2*i}, 16, v{src+i}\nv_and_b32 v{dst+2*i+1}, 0xffff0000, v{src+i}")
    def rbf(self, p, r):
        p.e(f"v_cvt_pk_bf16_f32 v{r}, v{r}, v{r}\nv_lshlrev_b32 v{r}, 16, v{r}")

    def prologue(self, p):
        e = p.e
        if self.debug: e("s_memrealtime s[100:101]")
        e(f"s_cmp_ge_u32 {WG}, 256\ns_cbranch_scc1 L_end")
        e("s_load_dwordx16 s[16:31], s[0:1], 0\ns_load_dwordx16 s[32:47], s[0:1], 64\ns_load_dwordx2 s[48:49], s[0:1], 128")
        e(f"v_and_b32 {LANE}, 63, v0\nv_lshrrev_b32 v12, 6, v0\nv_readfirstlane_b32 {WV}, v12")
        if self.o["ipf"]:
            n = self.o["ipf"]
            e(f"s_cmp_lg_u32 {WV}, 7\ns_cbranch_scc1 L_noipf")
            e(f"s_getpc_b64 s[90:91]\nL_pc:\ns_bfe_u32 s51, {WG}, {(n << 16) | 3:#x}\ns_lshl_b32 s51, s51, 13")
            e(f"v_lshl_add_u32 v112, {LANE}, 7, s51\nv_min_u32 v112, L_last-L_pc, v112")
            e("v_mov_b32 v113, s91\nv_add_co_u32 v112, vcc, s90, v112\nv_addc_co_u32 v113, vcc, 0, v113, vcc")
            e("@global_load_dword v114, v[112:113], off\nL_noipf:")
        e(f"v_lshlrev_b32 {L16}, 4, {LANE}\nv_lshlrev_b32 {L4}, 2, {LANE}\nv_mov_b32 {VZ}, 0\nv_mov_b32 {VDBG}, 0\nv_mov_b32 {VSY}, {SYNC}")
        e(f"s_and_b32 {XCD}, {WG}, 7\ns_lshr_b32 {IDX}, {WG}, 3\ns_lshr_b32 {SUB}, {XCD}, 1\ns_and_b32 s14, {XCD}, 1")
        e(f"s_min_u32 s15, {IDX}, 29\ns_mul_i32 {FT}, s15, 52\ns_lshr_b32 {FT}, {FT}, 8")
        e(f"s_mul_i32 s51, {FT}, 5\ns_sub_u32 {DT}, s15, s51")
        if self.o["perm"]: P1_ = make_perm(16, 5, 2, self.o["duty1"])
        else: P1_ = [[(((2 * j * 205) >> 7) + i) % 16 for i in range(16)] for j in range(5)]
        for j, o_ in enumerate(P1_):
            lo, hi = pack_perm(o_)
            if j == 0: e(f"s_mov_b32 s74, {lo:#x}\ns_mov_b32 s75, {hi:#x}")
            else: e(f"s_cmp_eq_u32 {DT}, {j}\ns_cselect_b32 s74, {lo:#x}, s74\ns_cselect_b32 s75, {hi:#x}, s75")
        e("s_mul_i32 s51, s14, 0x11111111\ns_xor_b32 s74, s74, s51\ns_xor_b32 s75, s75, s51")
        e(f"s_mul_i32 {C0}, {FT}, 3\ns_min_u32 {C0}, {C0}, 14\ns_cmp_lt_u32 {FT}, 4\ns_cselect_b32 {NCH}, 3, 2\ns_cmp_ge_u32 {IDX}, 30\ns_cselect_b32 {NCH}, 0, {NCH}")
        e(f"s_mul_i32 s51, s14, 5\ns_add_u32 {DT}, {DT}, s51\ns_mul_i32 s51, {SUB}, 6\ns_add_u32 {FT}, {FT}, s51")
        e(f"s_and_b32 {DT2}, {IDX}, 3\ns_lshr_b32 {ST2}, {IDX}, 2")
        e(f"s_lshl2_add_u32 {DT2}, s14, {DT2}\ns_lshl3_add_u32 {ST2}, {SUB}, {ST2}")
        e(f"s_cmp_ge_u32 {WV}, 4\ns_cbranch_scc1 L_aux")

    def kk(self, p, g, ks, dst, stride, base):
        p.e(f"s_bfe_u32 {dst}, s{(74 if g == 1 else 80) + ks // 8}, {(4 << 16) | (4 * (ks % 8)):#x}")
        p.e(f"s_mul_i32 {dst}, {dst}, {stride}")
        if base: p.e(f"s_add_u32 {dst}, {dst}, {base}")
    def slot(self, g, ks): return ((ks + (3 if g == 2 else 0)) % RS) * 4096
    def throttle(self, p):
        l = self.label("thr")
        p.e(f"s_cmp_lg_u32 s85, 0\ns_cbranch_scc1 {l}")
        p.e(f"@ds_read_b32 v20, {VSY} offset:{4*Y_PUB}\n@s_waitcnt vmcnt({self.o['thr']}) lgkmcnt(0)\nv_readfirstlane_b32 s85, v20\ns_nop 0\ns_lshr_b32 s85, s85, 1")
        p.e(f"{l}:")
    def dma(self, g, ks, thr=False):
        p = Prog()
        rs, vo, srd, base = (3072, 4, SW1, "s84") if g == 1 else (4096, 12, SW2, "s92")
        self.kk(p, g, ks, "s72", 32 * rs, base)
        for q in range(4):
            if thr and q % 2 == 0: self.throttle(p)
            p.e(f"s_add_u32 m0, {RINGB}, {self.slot(g, ks) + q * 1024}")
            p.e(f"buffer_load_dwordx4 v{vo + (q & 1)}, {srd}, s72 offen {self.o['wflag']} lds", f"w{g}_{ks}")
            if q < 3: p.e(f"s_add_u32 s72, s72, {8*rs}")
        return p
    NB = {1: 6, 2: 4}
    def tr(self, g, ks):
        p = Prog()
        r = 16 * (ks % self.NB[g]); o = self.slot(g, ks)
        p.wvm(f"w{g}_{ks}")
        for ss in range(4):
            p.e(f"ds_read_b64_tr_b16 {a(r+4*ss,2)}, v{14+ss} offset:{o}", f"t{g}_{ks}")
            p.e(f"ds_read_b64_tr_b16 {a(r+4*ss+2,2)}, v{14+ss} offset:{o+512}", f"t{g}_{ks}")
        return p
    def main_start(self, p):
        e = p.e
        e("s_setprio 3")
        e(f"s_mul_i32 {RINGB}, {WV}, {RINGW}\ns_add_u32 {RINGB}, {RINGB}, {RING0}\ns_mov_b32 s85, 0")
        e(f"v_lshrrev_b32 v20, 3, {LANE}\nv_and_b32 v21, 7, {LANE}\nv_and_b32 v22, 2, v20\nv_xor_b32 v21, v21, v22\nv_lshlrev_b32 v21, 4, v21")
        e("v_mul_u32_u24 v4, 3072, v20\nv_add_u32 v4, v4, v21\nv_xor_b32 v5, 64, v4\nv_lshl_add_u32 v12, v20, 12, v21\nv_xor_b32 v13, 64, v12")
        e(f"s_mul_i32 s84, {WV}, {512*3072}\ns_lshl_b32 s51, {FT}, 7\ns_add_u32 s84, s84, s51")
        e(f"s_mul_i32 s92, {WV}, {384*4096}\ns_lshl_b32 s51, {ST2}, 7\ns_add_u32 s92, s92, s51")
        e(f"v_lshrrev_b32 v104, 5, {LANE}\nv_mul_u32_u24 v105, 1280, v104\nv_and_b32 v106, 31, {LANE}")
        e("v_lshl_add_u32 v107, v106, 4, v105\nv_lshl_add_u32 v108, v106, 3, v105")
        e(f"s_lshl_b32 s50, {WG}, 3\ns_lshl1_add_u32 s50, {WV}, s50\ns_mul_i32 s50, s50, 1280")
        e("s_waitcnt lgkmcnt(0)")
        self.srd(p, 52, 16, 2621440)
        xf = self.o["xflag"]
        e(f"buffer_load_dwordx4 v[20:23], v107, {SX}, s50 offen {xf}", "x")
        e(f"buffer_load_dwordx4 v[24:27], v107, {SX}, s50 offen offset:512 {xf}", "x")
        e(f"buffer_load_dwordx2 v[28:29], v108, {SX}, s50 offen offset:1024 {xf}", "x")
        self.pre(p)
        e("s_barrier")
        self.srd(p, 56, 36, 6291456); self.srd(p, 60, 40, 6291456); self.srd(p, 64, 44, 2621440); self.srd(p, 68, 48, WSEND)
        self.stamp(p)
    def main_setup2(self, p):
        e = p.e
        e(f"v_bfe_u32 v20, {LANE}, 2, 2\nv_and_b32 v21, 3, {LANE}\nv_lshrrev_b32 v22, 4, {LANE}\nv_and_b32 v23, 15, {LANE}")
        e("v_lshlrev_b32 v24, 10, v22\nv_lshl_add_u32 v24, v20, 7, v24\nv_lshl_add_u32 v24, v21, 3, v24")
        e(f"v_lshrrev_b32 v20, 1, v20\nv_and_b32 v21, 1, v22\nv_lshl_or_b32 v20, v21, 1, v20\nv_xor_b32 v20, {WV}, v20\nv_lshlrev_b32 v20, 5, v20")
        e(f"v_add3_u32 v14, v24, v20, {RINGB}\nv_xor_b32 v15, 32, v14\nv_xor_b32 v16, 64, v14\nv_xor_b32 v17, 0x60, v14")
        e(f"s_lshl_b32 s51, {FT}, 7\ns_lshl_b32 s15, {WV}, 5\ns_add_u32 s51, s51, s15\nv_lshl_add_u32 v24, v22, 3, s51")
        e("global_load_dwordx2 v[126:127], v24, s[38:39]", "b1")
        e(f"v_mul_u32_u24 v19, 10240, v22\nv_lshl_add_u32 v19, v23, 4, v19\ns_lshl_b32 s51, {SUB}, 8\nv_add_u32 v120, s51, v19")
        e("v_xor_b32 v121, 0x100, v120\nv_xor_b32 v122, 0x200, v120\nv_xor_b32 v123, 0x300, v120")
        e(f"v_lshrrev_b32 v24, 1, v22\nv_mul_u32_u24 v24, 10240, v24\nv_lshl_add_u32 v24, v23, 4, v24\nv_xor_b32 v25, {SUB}, v21\nv_lshl_add_u32 v6, v25, 8, v24\nv_xor_b32 v7, 0x200, v6")
        e(f"v_subrev_u32 v124, {C0}, v23\nv_mul_u32_u24 v124, {REGSZ}, v124\nv_lshl_add_u32 v124, v22, 4, v124")
        e(f"s_lshl_b32 s51, {WV}, 10\ns_add_u32 s51, s51, {REG0 + UO + 512}\nv_add_u32 v124, s51, v124")
        e(f"s_bfm_b32 s100, {NCH}, {C0}\ns_lshl_b32 s51, s100, 16\ns_or_b32 s100, s100, s51\ns_mov_b32 s101, s100")
        e("v_mul_u32_u24 v18, 1280, v23\nv_lshl_add_u32 v18, v22, 3, v18\nv_lshlrev_b32 v115, 12, v23\nv_lshl_add_u32 v115, v21, 4, v115")
        e(f"s_lshl_b32 s94, {ST2}, 6\ns_lshl_b32 s51, {WV}, 4\ns_add_u32 s94, s94, s51\ns_lshl_b32 s95, s94, 1\nv_lshl_add_u32 v8, v23, 1, s95")
        e(f"s_mul_i32 s94, s94, 1280\ns_mul_i32 s51, {DT2}, 160\ns_add_u32 s94, s94, s51")
        e("v_lshlrev_b32 v24, 3, v22\nv_sub_u32 v24, v23, v24\nv_and_b32 v25, 1, v24\nv_lshlrev_b32 v25, 4, v25\nv_mov_b32 v26, 0x3f80\nv_lshlrev_b32 v25, v25, v26\nv_ashrrev_i32 v24, 1, v24")
        for q in range(4): e(f"v_cmp_eq_u32 vcc, {q}, v24\nv_cndmask_b32 v{116+q}, 0, v25, vcc")
        for q in range(4): e(f"v_cmp_eq_i32 vcc, {q-8}, v24\nv_cndmask_b32 v{104+q}, 0, v25, vcc")
        e("v_lshl_add_u32 v108, v22, 3, v18")
        e("global_load_ushort v114, v8, s[42:43]", "b1")
        if self.o["perm"]: P2_ = make_perm(12, 4, 2, self.o["duty2"])
        else: P2_ = [[(3 * j + i) % 12 for i in range(12)] for j in range(4)]
        e(f"s_and_b32 s15, {IDX}, 3")
        for j, o_ in enumerate(P2_):
            lo, hi = pack_perm(o_)
            if j == 0: e(f"s_mov_b32 s80, {lo:#x}\ns_mov_b32 s81, {hi:#x}")
            else: e(f"s_cmp_eq_u32 s15, {j}\ns_cselect_b32 s80, {lo:#x}, s80\ns_cselect_b32 s81, {hi:#x}, s81")
        e(f"s_and_b32 s51, {XCD}, 1\ns_mul_i32 s51, s51, 0x11111111\ns_xor_b32 s80, s80, s51\ns_xor_b32 s81, s81, s51")
        e(f"s_mul_i32 s86, {WV}, {64*10240}\ns_lshl_b32 s51, {DT}, 10\ns_add_u32 s86, s86, s51\ns_add_u32 s86, s86, {HB}")
    def acc1(self, t, ds): return [v(72 + 4 * ds, 4), v(88 + 4 * ds, 4), a(96 + 4 * ds, 4), a(112 + 4 * ds, 4)][t]
    def acc2(self, di, ss): return v(84 + 4 * di, 4) if ss == 0 else a(68 + 4 * (di * 3 + ss - 1), 4)

    def gemm_loop(self, p, g, nks, nf, ns, nd, nt, ld, mfma, extra):
        NB = self.NB[g]; n = nks * nf
        for i in range(ns): p.ext(ld(i))
        nl = ns
        for ks in range(nks):
            side = Prog()
            if nd < nks and nd - RS < nt:
                if nd >= RS: side.wlg(f"t{g}_{nd-RS}")
                side.ext(self.dma(g, nd)); nd += 1
            if nt < nks and nt < nd and nt - NB < ks:
                side.ext(self.tr(g, nt)); nt += 1
            pre, post = extra(ks)
            gs = groups_of(pre) + groups_of(side)
            p.wlg(f"t{g}_{ks}")
            gi = 0; tot = 3 * nf
            for di in range(nf):
                p.wvm(f"act{ks}_{di}")
                for ss in range(4):
                    p.e(mfma(ks, di, ss))
                    if ss == 0:
                        if nf * ks + di >= 1 and nl < n: p.ext(ld(nl)); nl += 1
                    else:
                        sl = di * 3 + ss
                        while gi < len(gs) and gi < (sl * len(gs) + tot - 1) // tot:
                            p.items.extend(gs[gi]); gi += 1
            assert gi == len(gs)
            p.ext(post)
        assert nl == n and nd == nks and nt == nks

    def gemm1(self, p):
        e = p.e; o = self.o
        HR, ns = 24, o['ns1']
        nd = o['free1']
        def more():
            nonlocal nd
            if nd >= RS: p.wlg(f"t1_{nd-RS}")
            p.ext(self.dma(1, nd, thr=nd < o['nthr'])); nd += 1
            if nd == o["PS1"]: self.sig(p, Y_P1, 20)
            if o.get("fine"): self.stamp(p)
        while nd < o["lead1"]: more()
        p.wvm("b1")
        for ds in range(4): self.unpack(p, 126, 72 + 4 * ds, 2)
        for j in range(o["P1"]):
            p.ext(self.tr(1, j))
            if j == 2 and not o.get('fine'): self.stamp(p)
            if nd < o["D1"]: more()
        while nd < o["D1"]:
            p.wvm(f"w1_{nd-o['lead1']}"); more()
        self.stamp(p)
        self.spin(p, Y_F1, 1, 20, sleep=1)
        e(f"ds_read_b32 {VTAG}, {VSY} offset:{4*Y_TAG}\ns_setprio 2", "tag")
        self.stamp(p)
        def ld(i):
            ks, ds = divmod(i, 4); q = Prog()
            if ds == 0: self.kk(q, 1, ks, "s76", 40960, "s86")
            q.e(f"buffer_load_dwordx4 {v(HR + 4 * (i % ns), 4)}, v{120+ds}, {SWS}, s76 offen sc1", f"act{ks}_{ds}")
            return q
        def mfma(ks, ds, t):
            c = self.acc1(t, ds); src = "0" if (ks == 0 and t > 0) else c
            return f"v_mfma_f32_16x16x32_bf16 {c}, {a(16*(ks%6)+4*t,4)}, {v(HR + 4 * ((4*ks+ds) % ns), 4)}, {src}"
        def extra(ks):
            pre = Prog(); post = Prog()
            q = Prog(); self.kk(q, 1, ks, "s14", 64, None); q.e("v_add_u32 v125, s14, v124")
            q.e(f"s_mov_b64 exec, s[100:101]\nds_write_b128 v125, {v(HR + 4 * ((4 * ks) % ns), 4)}\ns_mov_b64 exec, -1", "uc")
            self._uc = q
            if ks % 4 == 3: self.sig(pre, Y_U + ks // 4, 20)
            if ks in (0, 5, 10): self.stamp(post)
            return pre, post
        def mfma_uc(ks, ds, t):
            s = mfma(ks, ds, t)
            if ds == 0 and t == 0: s = s + "\n" + "\n".join(x for x, _ in self._uc.items)
            return s
        self.gemm_loop(p, 1, 16, 4, ns, nd, o["P1"], ld, mfma_uc, extra)
        self.stamp(p)
    def gemm1_epi(self, p):
        e = p.e; RD = 24
        if self.o["ebpos"] == 0:
            for ks in range(self.o["eb"]): p.ext(self.dma(2, ks))
        e(f"v_add_u32 v20, {RINGB}, {L16}")
        for t in range(1, 4):
            for ds in range(4): e(f"ds_write_b128 v20, {self.acc1(t, ds)} offset:{(t-1)*4096+ds*1024}", "r1w")
        self.sig(p, Y_PART, 21)
        if self.o["ebpos"] == 1:
            for ks in range(self.o["eb"]): p.ext(self.dma(2, ks))
        for t in range(1, 4):
            e(f"s_xor_b32 s51, {WV}, {t}\ns_mul_i32 s51, s51, {RINGW}\ns_add_u32 s51, s51, {RING0 + (t-1)*4096}\nv_add_u32 v{20+t}, s51, {L16}")
        e(f"s_lshl_b32 s50, {FT}, 3\ns_lshl_b32 s51, {WV}, 1\ns_add_u32 s50, s50, s51\ns_mul_i32 s50, s50, 10240")
        e(f"s_lshl_b32 s51, {DT}, 10\ns_add_u32 s50, s50, s51\ns_add_u32 s86, s50, {GB}")
        e(f"s_mul_i32 s89, {DT}, 24\ns_add_u32 s89, s89, {FT}\ns_lshl_b32 s89, s89, 7\ns_add_u32 s89, s89, {F2}")
        c1 = -2 * 0.7978845608028654 * 1.4426950408889634; c3 = c1 * 0.044715
        e(f"s_mov_b32 s90, {fbits(c3)}\nv_mov_b32 v126, {fbits(c1)}")
        self.spin(p, Y_PART, 4, 20)
        for q in range(4):
            for t in range(3): e(f"ds_read_b128 {v(RD+16*t+4*q,4)}, v{21+t} offset:{q*1024}", f"r1r{q}")
        if self.o["ebpos"] == 2:
            for ks in range(self.o["eb"]): p.ext(self.dma(2, ks))
        for pr in range(2):
            p.wlg(f"r1r{2*pr+1}")
            q = [(72 + 8 * pr + i, RD + 8 * pr + i, 88 + 8 * pr + i) for i in range(8)]
            for x, r, t in q: e(f"v_add_f32 v{x}, v{x}, v{r}\nv_add_f32 v{r+16}, v{r+16}, v{r+32}")
            for x, r, t in q: e(f"v_add_f32 v{x}, v{x}, v{r+16}")
            for x, r, t in q: e(f"v_mul_f32 v{t}, v{x}, v{x}")
            for x, r, t in q: e(f"v_fma_f32 v{t}, v{t}, s90, v126")
            for x, r, t in q: e(f"v_mul_f32 v{t}, v{t}, v{x}")
            for x, r, t in q: e(f"v_exp_f32 v{t}, v{t}")
            for x, r, t in q: e(f"v_add_f32 v{t}, 1.0, v{t}")
            for x, r, t in q: e(f"v_rcp_f32 v{t}, v{t}")
            for x, r, t in q: e(f"v_mul_f32 v{t}, v{t}, v{x}")
            o = 56 + 8 * pr
            for i in range(4): e(f"v_cvt_pk_bf16_f32 v{o+i}, v{q[2*i][2]}, v{q[2*i+1][2]}")
            e(f"v_permlane16_swap_b32 v{o}, v{o+2}\nv_permlane16_swap_b32 v{o+1}, v{o+3}")
            e(f"buffer_store_dwordx4 {v(o,4)}, v{6+pr}, {SWS}, s86 offen sc1", "gs")
        self.sig(p, Y_EPI, 20)
        self.stamp(p)
        for ks in range(min(self.o["eb"], self.o["P2"])): p.ext(self.tr(2, ks))
        e("s_waitcnt vmcnt(0)")
        l = self.label("nolast")
        e(f"v_mov_b32 v20, 1\ns_mov_b64 exec, 1\nds_add_rtn_u32 v20, {VSY}, v20 offset:{4*Y_G}\ns_mov_b64 exec, -1\ns_waitcnt lgkmcnt(0)\nv_readfirstlane_b32 s79, v20")
        e(f"s_cmp_lg_u32 s79, 3\ns_cbranch_scc1 {l}")
        self.flag_store(p, "s89", "@")
        e(f"{l}:")
        self.stamp(p)
    def gemm2(self, p, spare):
        e = p.e; o = self.o
        GR, ns = 24, o['ns2']
        e(f"s_mul_i32 s86, {WV}, {48*10240}\ns_mul_i32 s51, {DT2}, 1280\ns_add_u32 s86, s86, s51\ns_add_u32 s86, s86, {GB}")
        e(f"s_mul_i32 s88, {DT2}, {80*4096}\ns_add_u32 s88, s88, s95\ns_add_u32 s88, s88, {YT}")
        nd = o["eb"]; nt = min(o["eb"], o["P2"])
        e("v_lshlrev_b32 v114, 16, v114")
        for i in range(20): e(f"v_mov_b32 v{84+i}, v114")
        self.spin(p, Y_G, 4, 20)
        def more():
            nonlocal nd
            if nd >= RS: p.wlg(f"t2_{nd-RS}")
            p.ext(self.dma(2, nd)); nd += 1
            if nd == o["PS2"]: self.sig(p, Y_P2, 20)
        while nd < min(o["D2"], nt + o["lead2"]): more()
        while nt < o["P2"]:
            p.ext(self.tr(2, nt)); nt += 1
            if nd < o["D2"]: more()
        while nd < o["D2"]:
            p.wvm(f"w2_{nd-o['lead2']}"); more()
        self.stamp(p)
        self.spin(p, Y_F2, 1, 20, sleep=1)
        self.stamp(p)
        def ld(i):
            ks, di = divmod(i, 5); q = Prog()
            if di == 0: self.kk(q, 2, ks, "s76", 40960, "s86")
            q.e(f"buffer_load_dwordx4 {v(GR + 4 * (i % ns), 4)}, v19, {SWS}, s76 offen offset:{256*di} sc1", f"act{ks}_{di}")
            return q
        def mfma(ks, di, ss):
            c = self.acc2(di, ss); src = "0" if (ks == 0 and ss > 0) else c
            return f"v_mfma_f32_16x16x32_bf16 {c}, {v(GR + 4 * ((5*ks+di) % ns), 4)}, {a(16*(ks%4)+4*ss,4)}, {src}"
        yk = o["ychk"]; assert yk >= 9
        xr = lambda j: [v(120, 4), v(124, 4), v(110, 4)][j]
        def extra(ks):
            pre = Prog(); post = Prog()
            if ks == o["ytrig"]: self.sig(post, Y_P3, 20)
            if ks == o["xk"]:
                for j in range(3): post.e(f"buffer_load_dwordx4 {xr(j)}, v108, {SX}, s94 offen offset:{64*j}", f"x{j}")
            if ks == yk:
                self.spin(post, Y_F3, 1, 20, sleep=2)
                for di in range(5):
                    post.e(f"buffer_load_dwordx4 {a(4*di,4)}, v115, {SWS}, s88 offen sc1", f"y{di}")
                    post.e("s_add_u32 s88, s88, 65536")
            if ks in (0, 3, 7): self.stamp(post)
            return pre, post
        self.gemm_loop(p, 2, 12, 5, ns, nd, nt, ld, mfma, extra)
        self.stamp(p)
        e(f"v_add_u32 v20, {RINGB}, {L16}")
        for t in range(1, 4):
            for di in range(5): e(f"ds_write_b128 v20, {self.acc2(di,t)} offset:{(t-1)*5120+di*1024}", "r2w")
        for t in range(1, 4):
            e(f"s_xor_b32 s51, {WV}, {t}\ns_mul_i32 s51, s51, {RINGW}\ns_add_u32 s51, s51, {RING0 + (t-1)*5120}\nv_add_u32 v{20+t}, s51, {L16}")
        for di in range(5):
            p.wvm(f"x{di//2}")
            e(f"v_mfma_f32_16x16x32_bf16 {self.acc2(di,0)}, {v(104 if di & 1 else 116, 4)}, {xr(di//2)}, {self.acc2(di,0)}")
        for di in range(5):
            p.wvm(f"y{di}")
            e(f"v_mfma_f32_16x16x32_bf16 {self.acc2(di,0)}, {a(4*di,4)}, v[116:119], {self.acc2(di,0)}")
        e("s_waitcnt lgkmcnt(0)\ns_barrier")
        for di in range(5):
            for t in range(3): e(f"ds_read_b128 {v(GR+12*di+4*t,4)}, v{21+t} offset:{di*1024}", f"r2r{di}")
        for di in range(5):
            c = 84 + 4 * di; r = GR + 12 * di
            p.wlg(f"r2r{di}")
            for hq in range(2): e(f"v_pk_add_f32 {v(r+2*hq,2)}, {v(r+2*hq,2)}, {v(r+4+2*hq,2)}\nv_pk_add_f32 {v(c+2*hq,2)}, {v(c+2*hq,2)}, {v(r+8+2*hq,2)}")
            for hq in range(2): e(f"v_pk_add_f32 {v(c+2*hq,2)}, {v(c+2*hq,2)}, {v(r+2*hq,2)}")
            for hq in range(2): e(f"v_cvt_pk_bf16_f32 v{104+2*di+hq}, v{c+2*hq}, v{c+2*hq+1}")
            e(f"buffer_store_dwordx2 {v(104+2*di,2)}, v18, {SOUT}, s94 offen offset:{32*di} {o['oflag']}", "os")
        self.stamp(p)

    def main(self):
        self.role = "main"
        p = Prog(); e = p.e
        self.main_start(p)
        for ks in range(self.o["pre1"]): p.ext(self.dma(1, ks))
        self.ln(p)
        e(f"s_setprio {self.o['mprio']}")
        for ks in range(self.o["pre1"], self.o["free1"]): p.ext(self.dma(1, ks))
        self.stamp(p)
        self.main_setup2(p)
        e(f"s_cmp_lt_u32 {IDX}, 30\ns_cbranch_scc1 L_g1")
        q = Prog()
        q.e("s_waitcnt vmcnt(0)")
        self.spin(q, Y_PUB, 2, 20, sleep=4)
        for ks in range(self.o["eb"]): q.ext(self.dma(2, ks))
        for ks in range(min(self.o["eb"], self.o["P2"])): q.ext(self.tr(2, ks))
        self.sig(q, Y_G, 20)
        q.e("s_waitcnt vmcnt(0) lgkmcnt(0)\ns_branch L_g2")
        for line in finalize(q).split("\n"):
            if line.strip(): e(line.strip() if line.strip().endswith(":") else "@" + line.strip())
        e("L_g1:")
        self.gemm1(p)
        self.gemm1_epi(p)
        e("L_g2:")
        self.gemm2(p, False)
        e(f"s_or_b32 s51, {WG}, {WV}\ns_cmp_lg_u32 s51, 0\ns_cbranch_scc1 L_noep")
        e(f"s_mov_b64 exec, 1\nbuffer_store_dword {VTAG}, {VZ}, {SWS}, 0 offen\ns_mov_b64 exec, -1")
        e("L_noep:")
        self.finish(p)
        return p

    def red32(self, p, regs, tmp):
        for m in ("quad_perm:[1,0,3,2]", "quad_perm:[2,3,0,1]", "row_half_mirror", "row_mirror"):
            for r in regs: p.e(f"v_add_f32_dpp v{r}, v{r}, v{r} {m} row_mask:0xf bank_mask:0xf")
        for i, r in enumerate(regs): p.e(f"v_mov_b32 v{tmp+i}, v{r}")
        for i, r in enumerate(regs): p.e(f"v_permlane16_swap_b32 v{r}, v{tmp+i}")
        for i, r in enumerate(regs): p.e(f"v_add_f32 v{r}, v{r}, v{tmp+i}")
    RAW = [4, 5, 6, 7, 8, 12, 13, 14, 15, 16, 17, 18]
    def conv_start(self, p):
        e = p.e; RAW = self.RAW
        e(f"s_sub_u32 s14, {WV}, 4\ns_cmp_ge_u32 s14, {NCH}\ns_cbranch_scc1 L_end\ns_setprio {self.o['kprio']}")
        e(f"s_lshl_b32 {CH}, {DT}, 6\ns_lshl4_add_u32 {CH}, {SUB}, {CH}\ns_add_u32 {CH}, {CH}, {C0}\ns_add_u32 {CH}, {CH}, s14")
        e(f"s_mul_i32 {REGB}, s14, {REGSZ}\ns_add_u32 {REGB}, {REGB}, {REG0}")
        e(f"s_mul_i32 s51, {CH}, 384\nv_add_u32 v110, s51, {L4}\nv_lshlrev_b32 v111, 1, {LANE}\nv_add_u32 v111, s51, v111")
        e(f"s_lshr_b32 s79, {CH}, 1\ns_lshl_b32 s79, s79, 2")
        e("s_waitcnt lgkmcnt(0)")
        e(f"s_load_dword s80, s[30:31], s79\ns_load_dword s81, s[32:33], s79")
        if not self.o["pfirst"]: e("s_barrier")
        for i in range(6):
            e(f"global_load_dword v{RAW[2*i]}, v110, s[{18+2*i}:{19+2*i}] {self.o['pflag']}")
            e(f"global_load_ushort v{RAW[2*i+1]}, v111, s[{18+2*i}:{19+2*i}] offset:256 {self.o['pflag']}")
        self.pre(p)
        if self.o["pfirst"]: e("s_barrier")
        self.srd(p, 68, 48, WSEND)
        e("s_waitcnt lgkmcnt(0)")
    def serv_start(self, p):
        e = p.e
        e("s_setprio 3")
        e(f"v_add_u32 v109, {SYNC}, {L4}\ns_mov_b32 exec_hi, 0\nds_write_b32 v109, {VZ}\ns_mov_b64 exec, -1")
        e("s_waitcnt lgkmcnt(0)")
        self.pre(p)
        e(f"s_load_dword {TAG}, s[48:49], 0")
        e("s_barrier")
        self.srd(p, 60, 40, 6291456); self.srd(p, 68, 48, WSEND)
        if self.o["tch"]:
            self.srd(p, 56, 36, 6291456); self.srd(p, 64, 44, 2621440)
            e(f"v_lshlrev_b32 v100, {self.o['tch']}, {LANE}\nv_add_u32 v100, 0x3000, v100")
            for i, srd in enumerate((SWS, SW1, SW2, SOUT)): e(f"buffer_load_dword v{101+i}, v100, {srd}, 0 offen")
            e(f"global_load_dword v105, {VZ}, s[38:39]\nglobal_load_dword v106, {VZ}, s[42:43]")
    def ln(self, p):
        e = p.e
        RAW, F, D, T, H = 20, 30, 50, 70, 90
        inv = fbits(1.0 / 640)
        e(f"s_lshr_b32 s51, {WV}, 1\ns_mul_i32 s51, s51, {REGSZ}\ns_and_b32 s15, {WV}, 1\ns_mul_i32 s15, s15, {2*PT}\ns_add_u32 s51, s51, s15\ns_add_u32 s51, s51, {LNT}")
        e(f"v_mul_u32_u24 v102, {PT}, v104\nv_add_u32 v102, s51, v102\nv_lshl_add_u32 v101, v106, 3, v102\nv_lshl_add_u32 v100, v106, 4, v102")
        p.wvm("x")
        self.stamp(p)
        self.unpack(p, RAW, F, 10)
        def psum(src, dst):
            e(f"v_pk_add_f32 {v(dst,2)}, {v(src,2)}, {v(src+2,2)}\nv_pk_add_f32 {v(dst+2,2)}, {v(src+4,2)}, {v(src+6,2)}")
            for i in range(4, 10): e(f"v_pk_add_f32 {v(dst+2*(i&1),2)}, {v(dst+2*(i&1),2)}, {v(src+2*i,2)}")
            e(f"v_pk_add_f32 {v(dst,2)}, {v(dst,2)}, {v(dst+2,2)}\nv_add_f32 v{dst}, v{dst}, v{dst+1}")
        def psq(src, dst):
            e(f"v_pk_mul_f32 {v(dst,2)}, {v(src,2)}, {v(src,2)}\nv_pk_mul_f32 {v(dst+2,2)}, {v(src+2,2)}, {v(src+2,2)}")
            for i in range(2, 10): e(f"v_pk_fma_f32 {v(dst+2*(i&1),2)}, {v(src+2*i,2)}, {v(src+2*i,2)}, {v(dst+2*(i&1),2)}")
            e(f"v_pk_add_f32 {v(dst,2)}, {v(dst,2)}, {v(dst+2,2)}\nv_add_f32 v{dst}, v{dst}, v{dst+1}")
        def rstd(var, out):
            e(f"v_max_f32 v{var}, 0, v{var}")
            self.rbf(p, var); e(f"v_add_f32 v{var}, {fbits(1e-5)}, v{var}"); self.rbf(p, var)
            e(f"v_sqrt_f32 v{var}, v{var}"); self.rbf(p, var); e(f"v_rcp_f32 v{out}, v{var}")
        psum(F, T); self.red32(p, [T], T + 2)
        e(f"v_mul_f32 v{T}, {inv}, v{T}\nv_mov_b32 v{T+4}, v{T}"); self.rbf(p, T + 4)
        for i in range(10): e(f"v_pk_add_f32 {v(D+2*i,2)}, {v(F+2*i,2)}, {v(T+4,2)} op_sel_hi:[1,0] neg_lo:[0,1] neg_hi:[0,1]")
        e(f"v_sub_f32 v{T+5}, v{T}, v{T+4}")
        psq(D, T); self.red32(p, [T], T + 2)
        e(f"v_mul_f32 v{T}, {inv}, v{T}\nv_fma_f32 v{T}, -v{T+5}, v{T+5}, v{T}")
        rstd(T, T + 6)
        for i in range(10): e(f"v_pk_mul_f32 {v(D+2*i,2)}, {v(D+2*i,2)}, {v(T+6,2)} op_sel_hi:[1,0]")
        for i in range(10): e(f"v_cvt_pk_bf16_f32 v{RAW+i}, v{D+2*i}, v{D+2*i+1}")
        self.unpack(p, RAW, F, 10)
        psum(F, T); psq(F, T + 4); self.red32(p, [T, T + 4], T + 2)
        e(f"v_mul_f32 v{T}, {inv}, v{T}\nv_mul_f32 v{T+4}, {inv}, v{T+4}\nv_fma_f32 v{T+4}, -v{T}, v{T}, v{T+4}")
        self.rbf(p, T)
        rstd(T + 4, T + 6)
        e(f"v_mul_f32 v{T+2}, v{T}, v{T+6}\nv_lshrrev_b32 v{T+4}, 16, v{T+4}\nv_or_b32 v{T+4}, v{T+4}, v{T}")
        for i in range(10): e(f"v_pk_fma_f32 {v(D+2*i,2)}, {v(F+2*i,2)}, {v(T+6,2)}, {v(T+2,2)} op_sel_hi:[1,0,0] neg_lo:[0,0,1] neg_hi:[0,0,1]")
        e(f"ds_write_b32 v102, v{T+4} offset:1280", "lnw")
        for i in range(10): e(f"v_cvt_pk_bf16_f32 v{H+i}, v{D+2*i}, v{D+2*i+1}")
        e(f"ds_write_b128 v100, {v(H,4)}\nds_write_b128 v100, {v(H+4,4)} offset:512\nds_write_b64 v101, {v(H+8,2)} offset:1024", "lnw")
        self.sig(p, Y_LN, T)

    def serv(self):
        self.role = "serv"
        p = Prog(); e = p.e; o = self.o
        self.serv_start(p)
        self.stamp(p)
        e(f"v_bfe_u32 v12, {LANE}, 2, 2\nv_mul_u32_u24 v12, {PT}, v12\nv_lshrrev_b32 v13, 4, {LANE}\nv_lshl_add_u32 v12, v13, 5, v12")
        e(f"v_and_b32 v13, 3, {LANE}\nv_lshl_add_u32 v12, v13, 3, v12\nv_add_u32 v12, {LNT}, v12")
        e(f"s_mul_i32 s84, {WG}, 10240\ns_add_u32 s84, s84, {HB}\ns_add_u32 s85, s84, 4096\ns_add_u32 s86, s84, 8192")
        e(f"s_lshl_b32 s87, {WG}, 4\ns_add_u32 s87, s87, {STAT}\nv_lshlrev_b32 v13, 12, {LANE}")
        e(f"s_lshr_b32 s89, {WG}, 2\ns_lshl_b32 s89, s89, 7\ns_and_b32 s51, {WG}, 3\ns_lshl2_add_u32 s89, s51, s89\ns_add_u32 s89, s89, {F1}\nv_lshlrev_b32 v14, 7, {LANE}")
        e("s_waitcnt lgkmcnt(0)")
        self.mktag(p)
        e(f"ds_write_b32 {VSY}, {VTAG} offset:{4*Y_TAG}")
        self.spin(p, Y_LN, 4, 20, sleep=1)
        if self.o.get("dly_p"): e(f"s_sleep {self.o['dly_p']}")
        self.stamp(p)
        for b in range(11):
            e(f"ds_read_b64_tr_b16 {v(24+4*b,2)}, v12 offset:{128*b}\nds_read_b64_tr_b16 {v(26+4*b,2)}, v12 offset:{128*b+REGSZ}", f"lr{b}")
            if b >= 3:
                c = b - 3; p.wlg(f"lr{c}")
                e(f"buffer_store_dwordx4 {v(24+4*c,4)}, {L16}, {SWS}, s{84 + c//4} offen offset:{(c%4)*1024} sc1")
        for c in range(8, 10):
            p.wlg(f"lr{c}")
            e(f"buffer_store_dwordx4 {v(24+4*c,4)}, {L16}, {SWS}, s{84 + c//4} offen offset:{(c%4)*1024} sc1")
        p.wlg("lr10")
        e(f"s_mov_b64 exec, 3\nbuffer_store_dwordx4 v[64:67], v13, {SWS}, s87 offen sc1\ns_mov_b64 exec, -1")
        self.sig(p, Y_PUB, 20)
        self.stamp(p)
        e(f"s_mul_i32 s50, {DT2}, 80\ns_lshr_b32 s50, s50, 6\ns_mul_i32 s92, s50, {24*128}\ns_add_u32 s92, s92, {F2}")
        e(f"v_min_u32 v15, 47, {LANE}\nv_lshlrev_b32 v15, 7, v15\nv_min_u32 v16, 29, {LANE}\nv_lshlrev_b32 v16, 7, v16")
        e(f"s_mul_i32 s93, {DT2}, {30*128}\ns_add_u32 s93, s93, {F3}")
        e("s_waitcnt vmcnt(0)")
        if self.o.get("dly_f"):
            self.sig(p, Y_PUB, 20); e(f"s_sleep {self.o['dly_f']}")
        self.flag_store(p, "s89")
        self.sig(p, Y_PUB, 20)
        self.stamp(p)
        e(f"s_cmp_lt_u32 {IDX}, 30\ns_cbranch_scc1 L_s1")
        e(f"v_lshrrev_b32 v17, 3, {LANE}\nv_lshlrev_b32 v17, 12, v17\nv_and_b32 v18, 7, {LANE}\nv_lshl_add_u32 v17, v18, 7, v17")
        e(f"s_lshl_b32 s88, {SUB}, 10\ns_and_b32 s51, {IDX}, 1\ns_lshl_b32 s51, s51, 15\ns_add_u32 s88, s88, s51\ns_and_b32 s51, {XCD}, 1\ns_lshl_b32 s51, s51, 16\ns_add_u32 s88, s88, s51")
        for i in range(o["nsp"]):
            e(f"buffer_load_dword v{24+i}, v17, {SW2}, s88 offen\ns_add_u32 s88, s88, 131072")
        e("s_waitcnt vmcnt(0)\ns_branch L_s2\nL_s1:")
        self.spin(p, Y_P1, 1, 20, sleep=2)
        self.stamp(p)
        e(f"s_mov_b32 s50, {F1}")
        self.poll(p, "v14", "s50", 20, wide=True, sleep=o["psleep"])
        self.sig(p, Y_F1, 20)
        self.stamp(p)
        if self.debug: e(f"v_writelane_b32 {VDBG}, s78, 31")
        e("L_s2:")
        self.spin(p, Y_P2, 1, 20, sleep=4)
        self.stamp(p)
        self.poll(p, "v15", "s92", 20, sleep=o["psleep2"])
        self.sig(p, Y_F2, 20)
        self.stamp(p)
        if self.debug: e(f"v_writelane_b32 {VDBG}, s78, 30")
        self.spin(p, Y_P3, 1, 20, sleep=4)
        self.poll(p, "v16", "s93", 20, sleep=o["psleep2"])
        self.sig(p, Y_F3, 20)
        if self.debug: e(f"v_writelane_b32 {VDBG}, s78, 29")
        self.finish(p)
        return p

    def kgen(self, p):
        e = p.e; RAW = self.RAW
        L2E = 1.4426950408889634
        l2e_hi = struct.unpack("<f", struct.pack("<f", L2E))[0]; l2e_lo = L2E - l2e_hi
        VDT, VD1, VD2, VDS, WA, RA, RB = 54, 55, 56, 57, 58, 59, 60
        e(f"s_and_b32 s51, {CH}, 1\ns_lshl_b32 s51, s51, 4\ns_lshr_b32 s80, s80, s51\ns_lshl_b32 s80, s80, 16\ns_lshr_b32 s81, s81, s51\ns_lshl_b32 s81, s81, 16")
        e(f"v_mov_b32 v62, s80\nv_mov_b32 v63, {fbits(l2e_hi)}\nv_mul_f32 v64, v62, v63\nv_fma_f32 v65, v62, v63, -v64\nv_fmac_f32 v65, {fbits(l2e_lo)}, v62")
        e(f"v_exp_f32 v64, v64\nv_mul_f32 v65, {fbits(0.6931471805599453)}, v65\nv_fma_f32 v{VDT}, v64, v65, v64")
        self.rbf(p, VDT)
        e(f"v_mul_f32 v{VD1}, {fbits(L2E)}, v{VDT}\nv_mul_f32 v{VD2}, 0.15915494, v{VDT}")
        e(f"v_cmp_eq_u32 vcc, 0, {LANE}\nv_mov_b32 v62, s81\nv_cndmask_b32 v{VDS}, 0, v62, vcc")
        e(f"s_mov_b32 m0, {REGB}")
        e(f"v_and_b32 v62, 31, {LANE}\nv_lshrrev_b32 v63, 5, {LANE}\nv_lshlrev_b32 v63, 4, v63\nv_add_u32 v63, {REGB}, v63")
        e(f"v_mul_u32_u24 v64, {KP}, v62\nv_add_u32 v{RB}, v64, v63")
        e(f"v_min_u32 v62, 20, v62\nv_mul_u32_u24 v64, {KP}, v62\nv_add_u32 v{RA}, v64, v63")
        e("v_mov_b32 v28, 0x3f80")
        e("s_waitcnt vmcnt(0)")
        self.stamp(p)
        PK = 116; pk = [0]; P = 62
        FA, FB = 16, 48
        def mf(rd):
            l = []
            for s in range(8):
                q = Prog()
                c = a(0, 16)
                q.e(f"v_mfma_f32_32x32x16_bf16 {a(0,16)}, {a(FA+4*s,4)}, {a(FB+4*s,4)}, {c}")
                l.append(q)
            return l
        p.e("s_mov_b32 s76, 0\nL_kg:")
        for rd in (1,):
            usepk = self.o["pk"]
            q = Prog(); e = q.e
            def cmul(sets):
                if usepk:
                    for d, x, y in sets: e(f"v_pk_mul_f32 {v(d,2)}, {v(x,2)}, {v(y,2)} op_sel_hi:[0,1]")
                    for d, x, y in sets: e(f"v_pk_fma_f32 {v(d,2)}, {v(x,2)}, {v(y,2)}, {v(d,2)} op_sel:[1,1,0] op_sel_hi:[1,0,1] neg_lo:[1,0,0]")
                else:
                    for d, x, y in sets: e(f"v_mul_f32 v{d}, v{x}, v{y}\nv_mul_f32 v{d+1}, v{x}, v{y+1}")
                    for d, x, y in sets: e(f"v_fma_f32 v{d}, -v{x+1}, v{y+1}, v{d}\nv_fmac_f32 v{d+1}, v{x+1}, v{y}")
            def puts(l, neg):
                rs = []
                for row, z in l:
                    r = PK + pk[0] % 8; pk[0] += 1; rs.append(r)
                    e(f"v_cvt_pk_bf16_f32 v{r}, v{z}, {'-' if neg else ''}v{z+1}")
                for (row, z), r in zip(l, rs): e(f"ds_write_addtid_b32 v{r} offset:{row*KP}", "kw")
            for i in range(6):
                e(f"v_lshlrev_b32 v{P+i}, 16, v{RAW[2*i]}\nv_alignbit_b32 v{RAW[2*i]}, v{RAW[2*i+1]}, v{RAW[2*i]}, 16")
            AR, AI = 68, 69
            e(f"v_mul_f32 v{AR}, v{P}, v{VD1}\nv_mul_f32 v{AI}, v{P+1}, v{VD2}")
            e(f"v_mul_f32 v{P+2}, v{P+2}, v{VDT}\nv_mul_f32 v{P+3}, v{P+3}, v{VDT}")
            E1, E8, E256 = 70, 72, 74
            TM_, TA = 76, 79
            for i, t in enumerate((1.0, 8.0, 256.0)):
                if i == 0: e(f"v_mov_b32 v{TM_}, v{AR}\nv_fract_f32 v{TA}, v{AI}")
                else: e(f"v_mul_f32 v{TM_+i}, {fbits(t)}, v{AR}\nv_mul_f32 v{TA+i}, {fbits(t)}, v{AI}\nv_fract_f32 v{TA+i}, v{TA+i}")
            X = 82
            cmul([(X, P + 4, P + 2)])
            for i in range(3):
                e(f"v_exp_f32 v{TM_+i}, v{TM_+i}\nv_cos_f32 v{E1+2*i}, v{TA+i}\nv_sin_f32 v{E1+2*i+1}, v{TA+i}")
            for i in range(3): e(f"v_mul_f32 v{E1+2*i}, v{E1+2*i}, v{TM_+i}\nv_mul_f32 v{E1+2*i+1}, v{E1+2*i+1}, v{TM_+i}")
            E2, E4, E16, E512 = 98, 100, 102, 104
            EA, EB, E32, Y, Z = 106, 20, 114, 30, 38
            cmul([(E2, E1, E1), (E16, E8, E8), (E512, E256, E256), (X + 2, X, E1)])
            cmul([(E4, E2, E2), (EA + 6, E16, E8), (E32, E16, E16), (X + 4, X, E2), (X + 6, X + 2, E2)])
            p.ext(q)
            p.e("s_waitcnt lgkmcnt(0)")
            q = Prog(); e = q.e
            e(f"ds_write_addtid_b32 v28", "kw")
            puts([(1, E8), (2, E16), (3, EA + 6), (4, E32)], False)
            cmul([(EB, E8, E32), (EB + 2, E16, E32), (EB + 4, EA + 6, E32), (EB + 6, E32, E32)])
            cur, nxt = EB, EA
            extra = [[(X + 8 + 2 * i, X + 2 * i, E4) for i in range(4)], [(Y + 2 * i, X + 4 * i, E256) for i in range(4)],
                     [(Z, X, E512), (Z + 2, X + 8, E512), (Z + 4, Y, E512), (Z + 6, Y + 4, E512)],
                     [(Z + 8, Z, E512), (Z + 10, Z + 4, E512)], [(Z + 12, Z + 8, E512), (Z + 14, Z + 10, E512)], [(E1, Z + 12, E512)]]
            for st in range(6):
                j0 = 9 + 4 * st
                n = min(4, 32 - j0)
                cmul([(nxt + 2 * i, cur + 2 * i, E32) for i in range(n)])
                puts([(j0 - 4 + i, cur + 2 * i) for i in range(4)], False)
                cmul(extra[st])
                cur, nxt = nxt, cur
            puts([(29 + i, cur + 2 * i) for i in range(3)], False)
            if rd > 0: p.ext(interleave(q, mf(rd - 1)))
            else: p.ext(q)
            for s_ in range(8): p.e(f"ds_read_b128 {a(FB+4*s_,4)}, v{RB} offset:{s_*32}", "kr")
            e = p.e
            puts([(i, X + 2 * i) for i in range(4)], True); puts([(4 + i, X + 8 + 2 * i) for i in range(4)], True)
            puts([(8 + i, Y + 2 * i) for i in range(4)], True); puts([(12 + i, Z + 2 * i) for i in range(4)], True)
            puts([(16 + i, Z + 8 + 2 * i) for i in range(4)] + [(20, E1)], True)
            for s_ in range(8): p.e(f"ds_read_b128 {a(FA+4*s_,4)}, v{RA} offset:{s_*32}", "kr")
            p.e("s_cmp_lg_u32 s76, 0\ns_cbranch_scc1 L_kg1")
            for i in range(16): p.e(f"v_accvgpr_write_b32 a{i}, 0")
            p.e("L_kg1:")
            if self.debug: p.e(f"s_memrealtime s[82:83]\ns_waitcnt lgkmcnt(0)\ns_add_u32 s50, s76, 20\nv_mov_b32 v61, s82\nv_cmp_eq_u32 vcc, s50, {LANE}\nv_cndmask_b32 {VDBG}, {VDBG}, v61, vcc")
            p.e("s_add_u32 s76, s76, 1\ns_cmp_lt_u32 s76, 3\ns_cbranch_scc1 L_kg")
        e = p.e
        e(f"v_and_b32 v62, 31, {LANE}\nv_lshrrev_b32 v63, 5, {LANE}\ns_add_u32 s51, {REGB}, {KCO}")
        e(f"v_lshlrev_b32 v64, 4, v62\nv_lshl_add_u32 v64, v63, 3, v64\nv_add_u32 v64, s51, v64")
        e(f"v_cmp_eq_u32 vcc, 0, v63\nv_lshlrev_b32 v65, 3, v62\nv_add_u32 v65, 512, v65\nv_lshlrev_b32 v66, 2, v62\nv_add_u32 v66, 768, v66")
        e(f"v_cndmask_b32 v65, v66, v65, vcc\nv_add_u32 v65, s51, v65\nv_mov_b32 v66, 128\nv_cndmask_b32 v66, v66, 4, vcc\nv_add_u32 v66, v65, v66")
        e(f"v_lshlrev_b32 v67, 1, v62\nv_lshl_add_u32 v67, v63, 8, v67\nv_add_u32 v67, s51, v67")
        self.spin(p, Y_PUB, 1, 68)
        for q in mf(2): p.ext(q)
        e(f"v_mov_b32 v76, 0\nv_mov_b32 v77, 0\nv_mov_b32 v78, 0\nv_mov_b32 v79, 0\nv_add_u32 v15, {REGB}, {L16}")
        for i in range(4): e(f"ds_write_b128 v15, v[76:79] offset:{R0O + 1024*i}", "kc")
        e("s_mov_b64 exec, 3")
        e(f"ds_write_b128 v15, v[76:79] offset:{KCO - 32}", "kc")
        e("s_mov_b32 exec_lo, -1")
        e(f"ds_write_b128 v15, v[76:79] offset:{UO}", "kc")
        e("s_mov_b64 exec, -1")
        blocks = [(-2, 34, 8), (32, 32, 4)]
        info = []
        for bi, (v0, nl, stride) in enumerate(blocks):
            cis = lambda y: y if y < 0 else ci(y)
            base = cis(8 * v0)
            offs = {}
            for t in range(-1, 8):
                o = [cis(8 * (v0 + l) + 7 - t) - (base + stride * l) for l in range(nl)]
                offs[t] = o[0]
                assert all(x == o[0] for x in o)
            AD = 100 + 2 * bi
            e(f"s_add_u32 s51, {REGB}, {KCO + 2*base}\nv_mul_u32_u24 v{AD}, {2*stride}, {LANE}\nv_add_u32 v{AD}, s51, v{AD}")
            e(f"s_add_u32 s51, {REGB}, {(75 - v0) * 16}\nv_sub_u32 v{AD+1}, s51, {L16}")
            info.append(offs)
        e(f"v_cmp_gt_u32 vcc, 16, {LANE}\nv_mov_b32 v104, 563\nv_mov_b32 v105, 512\nv_cndmask_b32 v104, v104, v105, vcc\nv_add_u32 v104, v104, {LANE}")
        e(f"v_mov_b32 v106, 1011\nv_cndmask_b32 v105, v106, v105, vcc\nv_add_u32 v105, v105, {LANE}\nv_cvt_f32_u32 v105, v105\nv_cvt_pk_bf16_f32 v105, v105, v105\nv_and_b32 v105, 0xffff, v105")
        e(f"s_sub_u32 s51, {REGB}, {2*0x4280 - KCO}\nv_lshl_add_u32 v105, v105, 1, s51")
        e(f"s_add_u32 s51, {REGB}, {2*607}\nv_lshlrev_b32 v104, 1, v104\nv_sub_u32 v104, s51, v104")
        e(f"v_lshlrev_b32 v106, 1, {LANE}\ns_add_u32 s51, {REGB}, 4096\nv_sub_u32 v107, s51, v106\nv_add_u32 v106, {REGB}, v106")
        for i in range(12): e(f"v_accvgpr_read_b32 v{82+i}, a{i}")
        e(f"v_add_f32 v82, v82, v{VDS}")
        for i in range(6): e(f"v_cvt_pk_bf16_f32 v{70+i}, v{82+2*i}, v{83+2*i}")
        e(f"ds_write_b64 v64, v[70:71]\nds_write_b32 v65, v72\nds_write_b32 v66, v73\nds_write_b16 v67, v74 offset:1024", "kc")
        e("s_mov_b32 exec_hi, 0")
        e(f"ds_write_b16_d16_hi v67, v74 offset:{1024+64}\nds_write_b16 v67, v75 offset:{1024+128}\nds_write_b16_d16_hi v67, v75 offset:{1024+192}", "kc")
        e("s_mov_b64 exec, -1")
        vrs = []
        for bi, (v0, nl, stride) in enumerate(blocks):
            RR = 20 + 9 * bi; AD = 100 + 2 * bi; offs = info[bi]
            e(f"s_mov_b32 exec_hi, {(1 << (nl - 32)) - 1}")
            seen = {}; vr = {}
            for t in range(-1, 8):
                o = offs[t]
                if o not in seen:
                    seen[o] = RR + len(seen)
                    e(f"ds_read_u16 v{seen[o]}, v{AD} offset:{2*o}", f"kx{bi}")
                vr[t] = seen[o]
            vrs.append(vr)
        e("ds_read_u16 v40, v105", "kq")
        e("s_mov_b64 exec, -1")
        for i in range(2):
            e(f"ds_read_u16 v{41+i}, v106 offset:{KCO + 2*(388 + 64*i)}\nds_read_u16 v{43+i}, v106 offset:{KCO + 2*(514 + 64*i)}", "kq")
        for bi, (v0, nl, stride) in enumerate(blocks):
            AD = 100 + 2 * bi; O = 70 + 8 * bi; vr = vrs[bi]
            p.wlg(f"kx{bi}")
            for i in range(4): e(f"v_lshl_or_b32 v{O+i}, v{vr[2*i+1]}, 16, v{vr[2*i]}")
            for i in range(4): e(f"v_lshl_or_b32 v{O+4+i}, v{vr[2*i]}, 16, v{vr[2*i-1]}")
            e(f"s_mov_b32 exec_hi, {(1 << (nl - 32)) - 1}")
            e(f"ds_write_b128 v{AD+1}, {v(O,4)} offset:{R0O}\nds_write_b128 v{AD+1}, {v(O+4,4)} offset:{R1O}", "kt")
            e("s_mov_b64 exec, -1")
        p.wlg("kq")
        e(f"ds_write_b16 v107, v41 offset:{Q2O - 4096 + 2*188}\nds_write_b16 v107, v43 offset:{Q3O - 4096 + 2*126}", "kt")
        e(f"s_mov_b32 exec_hi, {(1 << 31) - 1:#x}\nds_write_b16 v107, v44 offset:{Q3O - 4096 + 2*(126-64)}", "kt")
        e(f"s_mov_b32 exec_hi, {(1 << 29) - 1:#x}\nds_write_b16 v107, v42 offset:{Q2O - 4096 + 2*(188-64)}", "kt")
        e(f"s_mov_b32 exec_hi, 0\ns_mov_b32 exec_lo, 0x01ff3fff\nds_write_b16 v104, v40 offset:{R0O}\nds_write_b16 v104, v40 offset:{R1O + 2}\ns_mov_b64 exec, -1", "kt")

    def conv_setup(self, p):
        e = p.e
        e(f"v_lshrrev_b32 v32, 4, {LANE}\nv_and_b32 v31, 15, {LANE}\nv_bfe_u32 v33, {LANE}, 1, 3\nv_lshlrev_b32 v34, 2, v32\nv_sub_u32 v34, v34, v33")
        e(f"v_and_b32 v33, 1, {LANE}\nv_xor_b32 v33, 1, v33\nv_mul_u32_u24 v33, {(R1O - R0O)//4 + 1}, v33\nv_add_u32 v34, v34, v33")
        e(f"s_add_u32 s51, {REGB}, {R0O + 4*7}\nv_lshl_add_u32 v24, v34, 2, s51\nv_add_u32 v25, 512, v24")
        e(f"v_lshlrev_b32 v33, 4, v32\nv_lshlrev_b32 v34, 3, v31\nv_sub_u32 v26, v33, v34\ns_add_u32 s51, {REGB}, {Q2O + 120}\nv_add_u32 v26, s51, v26")
        e(f"v_lshlrev_b32 v34, 2, v31\nv_sub_u32 v27, v33, v34\ns_add_u32 s51, {REGB}, {Q3O + 60}\nv_add_u32 v27, s51, v27")
        for m in list(range(17)) + [18]:
            off = (18 - m) * 16; ad = 24; r = 4 * min(m, 17)
            if off >= 128: off -= 128; ad = 25
            e(f"ds_read2_b32 {a(r,2)}, v{ad} offset0:{off} offset1:{off+1}\nds_read2_b32 {a(r+2,2)}, v{ad} offset0:{off+2} offset1:{off+3}", "pf")
        for j in range(6): e(f"ds_read_b64 {a(72+4*j,2)}, v26 offset:{64*j}\nds_read_b64 {a(74+4*j,2)}, v26 offset:{64*j+8}", "pf")
        for j in range(4): e(f"ds_read2_b32 {a(96+4*j,2)}, v27 offset0:{16*j} offset1:{16*j+1}\nds_read2_b32 {a(98+4*j,2)}, v27 offset0:{16*j+2} offset1:{16*j+3}", "pf")
        e("v_mov_b32 v76, 0\nv_mov_b32 v77, 0\nv_mov_b32 v78, 0\nv_mov_b32 v79, 0\ns_mov_b64 exec, 1")
        for o in (Z5O, Z3O, Z9O, Z7O, Z5O + 3088, Z3O + 3088): e(f"ds_write_b128 v15, v[76:79] offset:{o}", "pf")
        e("s_mov_b64 exec, -1")
        e(f"v_lshl_add_u32 v34, v31, 1, v32\ns_add_u32 s51, {REGB}, {UO + 16*2}\nv_lshl_add_u32 v16, v34, 4, s51")
        e(f"v_bfe_u32 v33, {LANE}, 2, 2\nv_and_b32 v34, 3, {LANE}\nv_and_b32 v35, 1, v33")
        e(f"v_mul_u32_u24 v12, {Z3O - Z5O}, v35\nv_lshl_add_u32 v12, v32, 6, v12\nv_add_u32 v36, v33, v34\nv_lshl_add_u32 v12, v36, 3, v12\nv_add_u32 v12, {REGB}, v12")
        e(f"v_mul_u32_u24 v13, {Z7O - Z9O}, v35\nv_lshl_add_u32 v13, v32, 7, v13\nv_lshl_add_u32 v13, v33, 4, v13\nv_lshl_add_u32 v13, v34, 3, v13\nv_add_u32 v13, {REGB}, v13")
        e(f"v_add_u32 v14, {UO + 512 - 24}, v15")
        e(f"v_and_b32 v34, 1, v32\nv_lshlrev_b32 v34, 9, v34\nv_lshl_add_u32 v34, v31, 5, v34\nv_lshrrev_b32 v32, 1, v32\nv_lshl_add_u32 v17, v32, 4, v34")
        e(f"s_lshl_b32 s86, {CH}, 12\ns_add_u32 s86, s86, {YT}\ns_mul_i32 s89, {DT}, 24\ns_add_u32 s89, s89, {FT}\ns_lshl_b32 s89, s89, 7\ns_add_u32 s89, s89, {F3}\ns_sub_u32 s88, {NCH}, 1")
    def inverse(self, p):
        e = p.e
        S2, M2, SF, MF = 24, 40, 56, 88
        e(f"v_lshrrev_b32 v20, 4, {LANE}\nv_lshlrev_b32 v20, 10, v20\nv_and_b32 v21, 3, {LANE}\nv_lshl_add_u32 v20, v21, 4, v20\nv_and_b32 v21, 12, {LANE}")
        e(f"s_add_u32 s51, {REGB}, {UO+512}")
        for q in range(4):
            e(f"v_add_u32 v22, {16*(q&1)}, v21\nv_bfe_u32 v22, s{74 + q//2}, v22, 4\nv_lshl_add_u32 v{4+q}, v22, 6, v20\nv_add_u32 v{120+q}, s51, v{4+q}")
        e(f"s_mov_b32 s84, {STAT}\ns_mov_b32 s85, {STAT+4096}")
        self.spin(p, Y_F1, 1, 22, sleep=2)
        e(f"ds_read_b32 {VTAG}, {VSY} offset:{4*Y_TAG}", "tag")
        for q in range(4):
            e(f"buffer_load_dwordx4 {v(S2+4*q,4)}, v{4+q}, {SWS}, s84 offen sc1", "u")
            e(f"buffer_load_dwordx4 {v(M2+4*q,4)}, v{4+q}, {SWS}, s85 offen sc1", "u")
        p.wvm("u")
        self.unpack(p, S2, SF, 16); self.unpack(p, M2, MF, 16)
        self.stamp(p)
        for q in range(4):
            self.spin(p, Y_U + q, 4, 22, sleep=(2 if q < 3 else 1))
            if q == 3: self.stamp(p)
            e(f"ds_read_b128 v[24:27], v{120+q}", f"ur{q}")
            p.wlg(f"ur{q}")
            self.unpack(p, 24, 40, 4)
            for i in range(8): e(f"v_fma_f32 v{40+i}, v{40+i}, v{SF+8*q+i}, v{MF+8*q+i}")
            for i in range(4): e(f"v_cvt_pk_bf16_f32 v{48+i}, v{40+2*i}, v{41+2*i}")
            e(f"ds_write_b128 v{120+q}, v[48:51]", "uw")
    def zcode(self):
        p = Prog(); e = p.e
        RAWZ, P, W = 96, 103, 56
        def rd(it):
            e(f"ds_read_b64 {v(RAWZ,2)}, v14 offset:{1024*it}\nds_read_b128 {v(RAWZ+2,4)}, v14 offset:{1024*it+8}\nds_read_b64 {v(RAWZ+6,2)}, v14 offset:{1024*it+24}", f"zr{it}")
        rd(0); k = 0
        for it in range(3):
            p.wlg(f"zr{it}")
            self.unpack(p, RAWZ, P + 1, 8)
            if it < 2: rd(it + 1)
            for j in range(2, 17 if it < 2 else 15): e(f"v_add_f32 v{P+j}, v{P+j}, v{P+j-1}")
            for h, zo in ((2, Z5O), (1, Z3O), (4, Z9O), (3, Z7O))[:(4 if it < 2 else 2)]:
                for t in range(8):
                    if t + 4 - h == 0: e(f"v_mov_b32 v{W}, v{P+9}")
                    else: e(f"v_sub_f32 v{W+t}, v{P+t+5+h}, v{P+t+4-h}")
                o = 120 + 4 * (k & 1); k += 1
                for i in range(4): e(f"v_cvt_pk_bf16_f32 v{o+i}, v{W+2*i}, v{W+2*i+1}")
                e(f"ds_write_b128 v15, {v(o,4)} offset:{zo + 16 + 1024*it}", "zw")
        return p
    def conv(self, p):
        e = p.e
        YO, ACC = 17, 64
        slots = [("v", 24 + 4 * i) for i in range(10)] + [("v", 96 + 4 * i) for i in range(8)] + [("a", 112 + 4 * i) for i in range(4)]
        slots = slots[:self.o["cns"]]; NS = len(slots)
        def R(n, off=0, w=4):
            k, r = slots[n % NS]; return (v if k == "v" else a)(r + off, w)
        jobs = []
        for ph in range(8):
            for d in range(8):
                l = [(d + mu, 4 * (8 * mu + ph), False) for mu in range(2) if d + mu <= 7]
                if ph == 0 and d <= 5: l.append((d + 2, 64, False))
                if ph == 0 and d <= 3: l.append((d + 4, 68, False))
                jobs.append((lambda n, d=d, ph=ph: [f"ds_read_b128 {R(n)}, v16 offset:{512*d + (7-ph)*64}"], l))
        nF = len(jobs)
        for st in range(4):
            jobs.append((lambda n, st=st: [f"ds_read_b64_tr_b16 {R(n,0,2)}, v13 offset:{Z9O + 512*st}", f"ds_read_b64_tr_b16 {R(n,2,2)}, v13 offset:{Z9O + 512*st + 64}"],
                         [(I, 96 + 4 * (st - I + 7), True) for I in range(4, 8) if st <= I - 4]))
        for st in range(12):
            jobs.append((lambda n, st=st: [f"ds_read_b64_tr_b16 {R(n,0,2)}, v12 offset:{Z5O + 256*st}", f"ds_read_b64_tr_b16 {R(n,2,2)}, v12 offset:{Z5O + 256*st + 32}"],
                         [(I, 72 + 4 * (st - 2 * I + 8), True) for I in range(2, 8) if 2 * I - 8 <= st <= 2 * I - 3]))
        assert sum(len(j[1]) for j in jobs) == 170
        first = set()
        def load(q, n):
            for t in jobs[n][0](n): q.e(t, f"cj{n}")
        def run(q, n):
            q.wlg(f"cj{n}")
            r = R(n)
            for i, (I, kf, dA) in enumerate(jobs[n][1]):
                acc = v(ACC + 4 * I, 4); src = acc if I in first else "0"; first.add(I)
                q.e(f"v_mfma_f32_16x16x32_bf16 {acc}, {r if dA else a(kf,4)}, {a(kf,4) if dA else r}, {src}")
                if i == 0 and n >= 1 and n - 1 + NS < len(jobs): load(q, n - 1 + NS)
        jobs = jobs[nF:] + jobs[:nF]
        if self.o.get("dly_c"): e(f"s_sleep {self.o['dly_c']}")
        p.ext(self.zcode())
        for n in range(NS): load(p, n)
        if self.o["cwait"]: self.spin(p, Y_EPI, self.o["cwait"], 22, sleep=1)
        e(f"s_setprio {self.o['cprio']}")
        self.stamp(p)
        for n in range(len(jobs)): run(p, n)
        for k in range(4):
            o = 24 + 4 * k
            for i in range(4): e(f"v_cvt_pk_bf16_f32 v{o+i}, v{ACC+8*k+2*i}, v{ACC+8*k+2*i+1}")
            e(f"v_permlane16_swap_b32 v{o}, v{o+2}\nv_permlane16_swap_b32 v{o+1}, v{o+3}")
            e(f"buffer_store_dwordx4 {v(o,4)}, v{YO}, {SWS}, s86 offen offset:{1024*k} sc1", "ys")
        self.stamp(p)
        e("s_waitcnt vmcnt(0)")
        e(f"v_mov_b32 v20, 1\ns_mov_b64 exec, 1\nds_add_rtn_u32 v20, {VSY}, v20 offset:{4*Y_Y}\ns_mov_b64 exec, -1\ns_waitcnt lgkmcnt(0)\nv_readfirstlane_b32 s79, v20")
        e(f"s_cmp_lg_u32 s79, s88\ns_cbranch_scc1 L_ynl")
        self.flag_store(p, "s89")
        e("L_ynl:")
    def convw(self):
        self.role = "conv"
        p = Prog(); e = p.e
        self.conv_start(p)
        self.stamp(p)
        if not self.o.get("skip_kgen"): self.kgen(p)
        else: self.stamp(p)
        self.stamp(p)
        if self.o.get("dly_k"): e(f"s_sleep {self.o['dly_k']}")
        self.conv_setup(p)
        e("s_setprio 0")
        self.inverse(p)
        self.conv(p)
        self.finish(p)
        return p

    def build(self):
        p = Prog(); self.prologue(p)
        p.ext(self.main())
        body = finalize(p)
        q = Prog(); q.e("L_aux:")
        q.e(f"s_cmp_eq_u32 {WV}, 7\ns_cbranch_scc1 L_serv"); q.ext(self.convw())
        body += finalize(q)
        q = Prog(); q.e("L_serv:"); q.ext(self.serv()); q.e("L_end:\nL_last:\ns_endpgm")
        body += finalize(q)
        body = body.replace("@", "")
        ref = open("cdna_kernels/" + NAME + ".s.ref").read()
        head = [l for l in ref.split("\n") if l.startswith(";") and "@launch" not in l]
        k = NAME + "_kernel"
        s = "\n".join(head) + f"\n; @launch grid=(256,1,1) block=(512,1,1) lds={LDS_BYTES}\n"
        s += f'.amdgcn_target "amdgcn-amd-amdhsa--gfx950"\n.text\n.globl {k}\n.p2align 8\n.type {k},@function\n{k}:\n'
        s += body
        s += f""".section .rodata,"a"
.p2align 6
.amdhsa_kernel {k}
  .amdhsa_next_free_vgpr 256
  .amdhsa_next_free_sgpr 102
  .amdhsa_accum_offset 128
  .amdhsa_group_segment_fixed_size 0
  .amdhsa_kernarg_size 136
  .amdhsa_user_sgpr_count 2
  .amdhsa_user_sgpr_kernarg_segment_ptr 1
  .amdhsa_system_sgpr_workgroup_id_x 1
.end_amdhsa_kernel
"""
        return s

if __name__ == "__main__":
    out = sys.argv[1]
    kw = eval("dict(" + (sys.argv[2] if len(sys.argv) > 2 else "") + ")")
    open(out, "w").write(G(**kw).build())
```

```python
import sys, struct
from asmlib import Prog, interleave, finalize

NAME = "parallel_sum__ssm_conv_s4__mixer_token_mlp__prompt"
STAT, TM, F2, F3, F1 = 0x4000, 0x8000, 0x50000, 0x58000, 0x60000
HB, GB, YT, WSEND = 0x80000, 0x300000, 0x4E0000, 0x760000
RINGW, RS = 28672, 7
PT = 1344
REG0, REGSZ = 0, 14976
SYNC = 3 * REGSZ
RING0 = 45056
KCO, R0O, R1O, Q2O, Q3O = 32, 1408, 1408 + 1344, 4096, 4608
Z5O, Z3O, Z9O, Z7O, UO = 0, 3104, 6208, 8288, 10368
LNT = REG0 + 8704
KP = 272
LDS_BYTES = 163840
assert SYNC + 128 <= RING0 and RING0 + 4 * RINGW <= LDS_BYTES
Y_EPI = 3
Y_Y = 16
Y_LN, Y_F1, Y_PART, Y_PUB, Y_P1, Y_G, Y_P2, Y_F2, Y_P3, Y_F3, Y_TAG, Y_U = 0, 1, 2, 4, 5, 6, 7, 8, 9, 10, 11, 12

def fbits(x): return "0x%08x" % struct.unpack("<I", struct.pack("<f", x))[0]
def bf16r(l):
    u = struct.unpack("<I", struct.pack("<f", float(l)))[0]
    u = ((u + 0x7FFF + ((u >> 16) & 1)) >> 16) << 16
    return int(struct.unpack("<f", struct.pack("<I", u))[0])
def ci(l):
    v = bf16r(l)
    if v <= 256: return v
    if v <= 512: return 256 + (v - 256) // 2
    if v <= 1024: return 384 + (v - 512) // 4
    return 512 + (v - 1024) // 8

WG, WV, XCD, IDX, DT, FT, DT2, ST2, TAG, ROT1, ROT2, CH = "s2", "s3", "s4", "s5", "s6", "s7", "s8", "s9", "s10", "s11", "s12", "s13"
SUB, C0, NCH = "s97", "s98", "s99"
SX, SW1, SW2, SOUT, SWS = "s[52:55]", "s[56:59]", "s[60:63]", "s[64:67]", "s[68:71]"
RINGB, REGB = "s73", "s77"
VSY, LANE, L16, L4, VTAG, VZ, VDBG = "v0", "v1", "v2", "v3", "v9", "v10", "v11"

def v(i, n=1): return f"v{i}" if n == 1 else f"v[{i}:{i+n-1}]"
def a(i, n=1): return f"a{i}" if n == 1 else f"a[{i}:{i+n-1}]"

def groups_of(prog):
    groups = []
    for it in prog.items:
        prev = groups[-1][-1][0] if groups else None
        if isinstance(prev, str) and (prev.startswith(("s_add_u32 m0", "s_cmp", "s_sub_u32 s51", "s_mov_b64 exec, s", "s_mov_b64 exec, 1", "ds_write_b128 v125", "ds_add"))):
            groups[-1].append(it)
        else: groups.append([it])
    return groups

def make_perm(n, nw, first, duty0):
    own = list(range(0, n, 2)); oth = list(range(1, n, 2))
    order = [[] for _ in range(nw)]; touched = {}
    pool = own[:]
    for pos in range(first):
        for j in range(nw):
            pass
    deal = [[] for _ in range(nw)]
    k = 0
    for pos in range(first):
        for j in range(nw):
            if pool: st = pool.pop(0)
            else: st = oth.pop(0)
            deal[j].append(st); touched[st] = pos
    rest = pool + oth
    duty = {}
    for i, st in enumerate(rest): duty[(duty0 + i, i % nw)] = st
    for j in range(nw): order[j] = list(deal[j])
    for pos in range(first, n):
        for j in range(nw):
            if (pos, j) in duty: touched[duty[(pos, j)]] = pos
        for j in range(nw):
            if (pos, j) in duty: order[j].append(duty[(pos, j)]); continue
            mine = {st for (pp, jj), st in duty.items() if jj == j and pp > pos}
            cand = [st for st in range(n) if st not in order[j] and st not in mine]
            cand.sort(key=lambda st: (touched.get(st, 99), (st - 2 * j) % n))
            order[j].append(cand[0])
    for o in order: assert sorted(o) == list(range(n)), o
    return order
def pack_perm(o):
    x = sum(st << (4 * i) for i, st in enumerate(o)); return x & 0xffffffff, x >> 32

class G:
    def __init__(self, debug=False, **kw):
        self.debug = debug
        self.o = dict(P1=6, D1=13, PS1=11, lead1=4, xk=8, P2=4, D2=11, PS2=9, lead2=4, wflag="", xflag="", nsp=30, thr=2,
                      ytrig=5, ychk=10, pk=1, psleep=4, psleep2=8, kprio=0, mprio=2, ebpos=0, tch=0, cprio=3, ipf=2, ns1=12, ns2=15, perm=1, duty1=3, duty2=3, oflag='', eb=2, pfirst=1, free1=2, pre1=0, cns=22, nthr=6, pflag='nt', cwait=4)
        self.o.update(kw)
        self.nst = {}; self.nlab = 0; self.role = None
    def stamp(self, p):
        if not self.debug: return
        n = self.nst.get(self.role, 0)
        if n == 0: p.e(f"v_writelane_b32 {VDBG}, s100, 28")
        p.e(("s_memtime" if self.o.get("cyc") else "s_memrealtime") + " s[82:83]\ns_waitcnt lgkmcnt(0)")
        p.e(f"v_writelane_b32 {VDBG}, s82, {n}")
        self.nst[self.role] = n + 1
    def pre(self, p):
        if self.debug and self.o.get("prest"): p.e(f"s_memrealtime s[82:83]\ns_waitcnt lgkmcnt(0)\nv_writelane_b32 {VDBG}, s82, 27")
    def label(self, s):
        self.nlab += 1; return f"L{s}_{self.nlab}"
    def flag_store(self, p, soff, pre=""):
        p.e(f"s_mov_b64 exec, 1\n{pre}buffer_store_dword {VTAG}, {VZ}, {SWS}, {soff} offen sc1\ns_mov_b64 exec, -1")
    def poll(self, p, voff, soff, tmp, wide=False, sleep=0):
        l = self.label("poll"); d = self.label("polld"); f = self.label("pollf")
        p.e("s_mov_b32 s78, 0")
        if sleep: p.e(f"s_branch {f}")
        p.e(f"{l}:")
        if sleep: p.e(f"s_sleep {sleep}\n{f}:")
        if wide:
            p.e(f"buffer_load_dwordx4 {v(tmp,4)}, {voff}, {SWS}, {soff} offen sc1")
            p.e("s_add_u32 s78, s78, 1\ns_waitcnt vmcnt(0)")
            for i in range(4): p.e(f"v_xor_b32 {v(tmp+i)}, {TAG}, {v(tmp+i)}")
            p.e(f"v_or3_b32 {v(tmp)}, {v(tmp)}, {v(tmp+1)}, {v(tmp+2)}\nv_or_b32 {v(tmp)}, {v(tmp)}, {v(tmp+3)}")
            p.e(f"v_cmp_ne_u32 vcc, 0, {v(tmp)}")
        else:
            p.e(f"buffer_load_dword {v(tmp)}, {voff}, {SWS}, {soff} offen sc1")
            p.e("s_add_u32 s78, s78, 1\ns_waitcnt vmcnt(0)")
            p.e(f"v_cmp_ne_u32 vcc, {TAG}, {v(tmp)}")
        p.e(f"s_cmp_gt_u32 s78, 0x8000\ns_cbranch_scc1 {d}\ns_cbranch_vccz {d}\ns_mov_b64 exec, vcc\ns_branch {l}")
        p.e(f"{d}:\ns_mov_b64 exec, -1")
    def sig(self, p, word, tmp):
        p.e(f"v_mov_b32 v{tmp}, 1\ns_mov_b64 exec, 1\nds_add_u32 {VSY}, v{tmp} offset:{4*word}\ns_mov_b64 exec, -1", "sig")
    def spin(self, p, word, n, tmp, sleep=0):
        l = self.label("spin"); d = self.label("spind"); f = self.label("spinf")
        p.e("s_mov_b32 s78, 0")
        if sleep: p.e(f"s_branch {f}")
        p.e(f"{l}:")
        if sleep: p.e(f"s_sleep {sleep}\n{f}:")
        p.e(f"ds_read_b32 v{tmp}, {VSY} offset:{4*word}\ns_add_u32 s78, s78, 1\ns_waitcnt lgkmcnt(0)\nv_readfirstlane_b32 s79, v{tmp}")
        p.e(f"s_cmp_gt_u32 s78, 0x40000\ns_cbranch_scc1 {d}\ns_cmp_lt_u32 s79, {n}\ns_cbranch_scc1 {l}")
        p.e(f"{d}:")
    def mktag(self, p):
        p.e(f"s_mul_i32 {TAG}, {TAG}, 0x9E3779B1\ns_add_u32 {TAG}, {TAG}, 0x7F4A7C15\nv_mov_b32 {VTAG}, {TAG}")
    def finish(self, p):
        e = p.e
        if self.debug:
            e("s_waitcnt vmcnt(0)")
            self.stamp(p)
            e(f"s_lshl_b32 s50, {WG}, 3\ns_add_u32 s50, s50, {WV}\ns_lshl_b32 s50, s50, 7\ns_add_u32 s50, s50, {TM}")
            e(f"s_mov_b32 exec_hi, 0\nbuffer_store_dword {VDBG}, {L4}, {SWS}, s50 offen")
        e("s_endpgm")
    def srd(self, p, d, lo, size): p.e(f"s_mov_b32 s{d}, s{lo}\ns_mov_b32 s{d+1}, s{lo+1}\ns_mov_b32 s{d+2}, {size}\ns_mov_b32 s{d+3}, 0x20000")
    def unpack(self, p, src, dst, n):
        for i in range(n):
            p.e(f"v_lshlrev_b32 v{dst+2*i}, 16, v{src+i}\nv_and_b32 v{dst+2*i+1}, 0xffff0000, v{src+i}")
    def rbf(self, p, r):
        p.e(f"v_cvt_pk_bf16_f32 v{r}, v{r}, v{r}\nv_lshlrev_b32 v{r}, 16, v{r}")

    def prologue(self, p):
        e = p.e
        if self.debug or self.o.get("hold"): e("s_memrealtime s[100:101]")
        e(f"s_cmp_ge_u32 {WG}, 256\ns_cbranch_scc1 L_end")
        e("s_load_dwordx16 s[16:31], s[0:1], 0\ns_load_dwordx16 s[32:47], s[0:1], 64\ns_load_dwordx2 s[48:49], s[0:1], 128")
        e(f"v_and_b32 {LANE}, 63, v0\nv_lshrrev_b32 v12, 6, v0\nv_readfirstlane_b32 {WV}, v12")
        if self.o["ipf"]:
            n = self.o["ipf"]
            e(f"s_cmp_lg_u32 {WV}, 7\ns_cbranch_scc1 L_noipf")
            e(f"s_getpc_b64 s[90:91]\nL_pc:\ns_bfe_u32 s51, {WG}, {(n << 16) | 3:#x}\ns_lshl_b32 s51, s51, 13")
            e(f"v_lshl_add_u32 v112, {LANE}, 7, s51\nv_min_u32 v112, L_last-L_pc, v112")
            e("v_mov_b32 v113, s91\nv_add_co_u32 v112, vcc, s90, v112\nv_addc_co_u32 v113, vcc, 0, v113, vcc")
            e("@global_load_dword v114, v[112:113], off\nL_noipf:")
        e(f"v_lshlrev_b32 {L16}, 4, {LANE}\nv_lshlrev_b32 {L4}, 2, {LANE}\nv_mov_b32 {VZ}, 0\nv_mov_b32 {VDBG}, 0\nv_mov_b32 {VSY}, {SYNC}")
        e(f"s_and_b32 {XCD}, {WG}, 7\ns_lshr_b32 {IDX}, {WG}, 3\ns_lshr_b32 {SUB}, {XCD}, 1\ns_and_b32 s14, {XCD}, 1")
        e(f"s_min_u32 s15, {IDX}, 29\ns_mul_i32 {FT}, s15, 52\ns_lshr_b32 {FT}, {FT}, 8")
        e(f"s_mul_i32 s51, {FT}, 5\ns_sub_u32 {DT}, s15, s51")
        if self.o["perm"]: P1_ = make_perm(16, 5, 2, self.o["duty1"])
        else: P1_ = [[(((2 * j * 205) >> 7) + i) % 16 for i in range(16)] for j in range(5)]
        for j, o_ in enumerate(P1_):
            lo, hi = pack_perm(o_)
            if j == 0: e(f"s_mov_b32 s74, {lo:#x}\ns_mov_b32 s75, {hi:#x}")
            else: e(f"s_cmp_eq_u32 {DT}, {j}\ns_cselect_b32 s74, {lo:#x}, s74\ns_cselect_b32 s75, {hi:#x}, s75")
        e("s_mul_i32 s51, s14, 0x11111111\ns_xor_b32 s74, s74, s51\ns_xor_b32 s75, s75, s51")
        e(f"s_mul_i32 {C0}, {FT}, 3\ns_min_u32 {C0}, {C0}, 14\ns_cmp_lt_u32 {FT}, 4\ns_cselect_b32 {NCH}, 3, 2\ns_cmp_ge_u32 {IDX}, 30\ns_cselect_b32 {NCH}, 0, {NCH}")
        e(f"s_mul_i32 s51, s14, 5\ns_add_u32 {DT}, {DT}, s51\ns_mul_i32 s51, {SUB}, 6\ns_add_u32 {FT}, {FT}, s51")
        e(f"s_and_b32 {DT2}, {IDX}, 3\ns_lshr_b32 {ST2}, {IDX}, 2")
        e(f"s_lshl2_add_u32 {DT2}, s14, {DT2}\ns_lshl3_add_u32 {ST2}, {SUB}, {ST2}")
        e(f"s_cmp_ge_u32 {WV}, 4\ns_cbranch_scc1 L_aux")

    def kk(self, p, g, ks, dst, stride, base):
        p.e(f"s_bfe_u32 {dst}, s{(74 if g == 1 else 80) + ks // 8}, {(4 << 16) | (4 * (ks % 8)):#x}")
        p.e(f"s_mul_i32 {dst}, {dst}, {stride}")
        if base: p.e(f"s_add_u32 {dst}, {dst}, {base}")
    def slot(self, g, ks): return ((ks + (3 if g == 2 else 0)) % RS) * 4096
    def throttle(self, p):
        l = self.label("thr")
        p.e(f"s_cmp_lg_u32 s85, 0\ns_cbranch_scc1 {l}")
        p.e(f"@ds_read_b32 v20, {VSY} offset:{4*Y_PUB}\n@s_waitcnt vmcnt({self.o['thr']}) lgkmcnt(0)\nv_readfirstlane_b32 s85, v20\ns_nop 0\ns_lshr_b32 s85, s85, 1")
        p.e(f"{l}:")
    def dma(self, g, ks, thr=False):
        p = Prog()
        rs, vo, srd, base = (3072, 4, SW1, "s84") if g == 1 else (4096, 12, SW2, "s92")
        self.kk(p, g, ks, "s72", 32 * rs, base)
        for q in range(4):
            if thr and q % 2 == 0: self.throttle(p)
            p.e(f"s_add_u32 m0, {RINGB}, {self.slot(g, ks) + q * 1024}")
            p.e(f"buffer_load_dwordx4 v{vo + (q & 1)}, {srd}, s72 offen {self.o['wflag']} lds", f"w{g}_{ks}")
            if q < 3: p.e(f"s_add_u32 s72, s72, {8*rs}")
        return p
    NB = {1: 6, 2: 4}
    def tr(self, g, ks):
        p = Prog()
        r = 16 * (ks % self.NB[g]); o = self.slot(g, ks)
        p.wvm(f"w{g}_{ks}")
        for ss in range(4):
            p.e(f"ds_read_b64_tr_b16 {a(r+4*ss,2)}, v{14+ss} offset:{o}", f"t{g}_{ks}")
            p.e(f"ds_read_b64_tr_b16 {a(r+4*ss+2,2)}, v{14+ss} offset:{o+512}", f"t{g}_{ks}")
        return p
    def main_start(self, p):
        e = p.e
        e("s_setprio 3")
        e(f"s_mul_i32 {RINGB}, {WV}, {RINGW}\ns_add_u32 {RINGB}, {RINGB}, {RING0}\ns_mov_b32 s85, 0")
        e(f"v_lshrrev_b32 v20, 3, {LANE}\nv_and_b32 v21, 7, {LANE}\nv_and_b32 v22, 2, v20\nv_xor_b32 v21, v21, v22\nv_lshlrev_b32 v21, 4, v21")
        e("v_mul_u32_u24 v4, 3072, v20\nv_add_u32 v4, v4, v21\nv_xor_b32 v5, 64, v4\nv_lshl_add_u32 v12, v20, 12, v21\nv_xor_b32 v13, 64, v12")
        e(f"s_mul_i32 s84, {WV}, {512*3072}\ns_lshl_b32 s51, {FT}, 7\ns_add_u32 s84, s84, s51")
        e(f"s_mul_i32 s92, {WV}, {384*4096}\ns_lshl_b32 s51, {ST2}, 7\ns_add_u32 s92, s92, s51")
        e(f"v_lshrrev_b32 v104, 5, {LANE}\nv_mul_u32_u24 v105, 1280, v104\nv_and_b32 v106, 31, {LANE}")
        e("v_lshl_add_u32 v107, v106, 4, v105\nv_lshl_add_u32 v108, v106, 3, v105")
        e(f"s_lshl_b32 s50, {WG}, 3\ns_lshl1_add_u32 s50, {WV}, s50\ns_mul_i32 s50, s50, 1280")
        e("s_waitcnt lgkmcnt(0)")
        if self.o.get("hold"): e("s_mov_b32 s96, s100")
        self.srd(p, 52, 16, 2621440)
        xf = self.o["xflag"]
        e(f"buffer_load_dwordx4 v[20:23], v107, {SX}, s50 offen {xf}", "x")
        e(f"buffer_load_dwordx4 v[24:27], v107, {SX}, s50 offen offset:512 {xf}", "x")
        e(f"buffer_load_dwordx2 v[28:29], v108, {SX}, s50 offen offset:1024 {xf}", "x")
        self.pre(p)
        e("s_barrier")
        self.srd(p, 56, 36, 6291456); self.srd(p, 60, 40, 6291456); self.srd(p, 64, 44, 2621440); self.srd(p, 68, 48, WSEND)
        self.stamp(p)
    def main_setup2(self, p):
        e = p.e
        e(f"v_bfe_u32 v20, {LANE}, 2, 2\nv_and_b32 v21, 3, {LANE}\nv_lshrrev_b32 v22, 4, {LANE}\nv_and_b32 v23, 15, {LANE}")
        e("v_lshlrev_b32 v24, 10, v22\nv_lshl_add_u32 v24, v20, 7, v24\nv_lshl_add_u32 v24, v21, 3, v24")
        e(f"v_lshrrev_b32 v20, 1, v20\nv_and_b32 v21, 1, v22\nv_lshl_or_b32 v20, v21, 1, v20\nv_xor_b32 v20, {WV}, v20\nv_lshlrev_b32 v20, 5, v20")
        e(f"v_add3_u32 v14, v24, v20, {RINGB}\nv_xor_b32 v15, 32, v14\nv_xor_b32 v16, 64, v14\nv_xor_b32 v17, 0x60, v14")
        e(f"s_lshl_b32 s51, {FT}, 7\ns_lshl_b32 s15, {WV}, 5\ns_add_u32 s51, s51, s15\nv_lshl_add_u32 v24, v22, 3, s51")
        e("global_load_dwordx2 v[126:127], v24, s[38:39]", "b1")
        e(f"v_mul_u32_u24 v19, 10240, v22\nv_lshl_add_u32 v19, v23, 4, v19\ns_lshl_b32 s51, {SUB}, 8\nv_add_u32 v120, s51, v19")
        e("v_xor_b32 v121, 0x100, v120\nv_xor_b32 v122, 0x200, v120\nv_xor_b32 v123, 0x300, v120")
        e(f"v_lshrrev_b32 v24, 1, v22\nv_mul_u32_u24 v24, 10240, v24\nv_lshl_add_u32 v24, v23, 4, v24\nv_xor_b32 v25, {SUB}, v21\nv_lshl_add_u32 v6, v25, 8, v24\nv_xor_b32 v7, 0x200, v6")
        e(f"v_subrev_u32 v124, {C0}, v23\nv_mul_u32_u24 v124, {REGSZ}, v124\nv_lshl_add_u32 v124, v22, 4, v124")
        e(f"s_lshl_b32 s51, {WV}, 10\ns_add_u32 s51, s51, {REG0 + UO + 512}\nv_add_u32 v124, s51, v124")
        e(f"s_bfm_b32 s100, {NCH}, {C0}\ns_lshl_b32 s51, s100, 16\ns_or_b32 s100, s100, s51\ns_mov_b32 s101, s100")
        e("v_mul_u32_u24 v18, 1280, v23\nv_lshl_add_u32 v18, v22, 3, v18\nv_lshlrev_b32 v115, 12, v23\nv_lshl_add_u32 v115, v21, 4, v115")
        e(f"s_lshl_b32 s94, {ST2}, 6\ns_lshl_b32 s51, {WV}, 4\ns_add_u32 s94, s94, s51\ns_lshl_b32 s95, s94, 1\nv_lshl_add_u32 v8, v23, 1, s95")
        e(f"s_mul_i32 s94, s94, 1280\ns_mul_i32 s51, {DT2}, 160\ns_add_u32 s94, s94, s51")
        e("v_lshlrev_b32 v24, 3, v22\nv_sub_u32 v24, v23, v24\nv_and_b32 v25, 1, v24\nv_lshlrev_b32 v25, 4, v25\nv_mov_b32 v26, 0x3f80\nv_lshlrev_b32 v25, v25, v26\nv_ashrrev_i32 v24, 1, v24")
        for q in range(4): e(f"v_cmp_eq_u32 vcc, {q}, v24\nv_cndmask_b32 v{116+q}, 0, v25, vcc")
        for q in range(4): e(f"v_cmp_eq_i32 vcc, {q-8}, v24\nv_cndmask_b32 v{104+q}, 0, v25, vcc")
        e("v_lshl_add_u32 v108, v22, 3, v18")
        e("global_load_ushort v114, v8, s[42:43]", "b1")
        if self.o["perm"]: P2_ = make_perm(12, 4, 2, self.o["duty2"])
        else: P2_ = [[(3 * j + i) % 12 for i in range(12)] for j in range(4)]
        e(f"s_and_b32 s15, {IDX}, 3")
        for j, o_ in enumerate(P2_):
            lo, hi = pack_perm(o_)
            if j == 0: e(f"s_mov_b32 s80, {lo:#x}\ns_mov_b32 s81, {hi:#x}")
            else: e(f"s_cmp_eq_u32 s15, {j}\ns_cselect_b32 s80, {lo:#x}, s80\ns_cselect_b32 s81, {hi:#x}, s81")
        e(f"s_and_b32 s51, {XCD}, 1\ns_mul_i32 s51, s51, 0x11111111\ns_xor_b32 s80, s80, s51\ns_xor_b32 s81, s81, s51")
        e(f"s_mul_i32 s86, {WV}, {64*10240}\ns_lshl_b32 s51, {DT}, 10\ns_add_u32 s86, s86, s51\ns_add_u32 s86, s86, {HB}")
    def acc1(self, t, ds): return [v(72 + 4 * ds, 4), v(88 + 4 * ds, 4), a(96 + 4 * ds, 4), a(112 + 4 * ds, 4)][t]
    def acc2(self, di, ss): return v(84 + 4 * di, 4) if ss == 0 else a(68 + 4 * (di * 3 + ss - 1), 4)

    def gemm_loop(self, p, g, nks, nf, ns, nd, nt, ld, mfma, extra):
        NB = self.NB[g]; n = nks * nf
        for i in range(ns): p.ext(ld(i))
        nl = ns
        for ks in range(nks):
            side = Prog()
            if nd < nks and nd - RS < nt:
                if nd >= RS: side.wlg(f"t{g}_{nd-RS}")
                side.ext(self.dma(g, nd)); nd += 1
            if nt < nks and nt < nd and nt - NB < ks:
                side.ext(self.tr(g, nt)); nt += 1
            pre, post = extra(ks)
            gs = groups_of(pre) + groups_of(side)
            p.wlg(f"t{g}_{ks}")
            gi = 0; tot = 3 * nf
            for di in range(nf):
                p.wvm(f"act{ks}_{di}")
                for ss in range(4):
                    p.e(mfma(ks, di, ss))
                    if ss == 0:
                        if nf * ks + di >= 1 and nl < n: p.ext(ld(nl)); nl += 1
                    else:
                        sl = di * 3 + ss
                        while gi < len(gs) and gi < (sl * len(gs) + tot - 1) // tot:
                            p.items.extend(gs[gi]); gi += 1
            assert gi == len(gs)
            p.ext(post)
        assert nl == n and nd == nks and nt == nks

    def gemm1(self, p):
        e = p.e; o = self.o
        HR, ns = 24, o['ns1']
        nd = o['free1']
        def more():
            nonlocal nd
            if nd >= RS: p.wlg(f"t1_{nd-RS}")
            p.ext(self.dma(1, nd, thr=nd < o['nthr'])); nd += 1
            if nd == o["PS1"]: self.sig(p, Y_P1, 20)
            if o.get("fine"): self.stamp(p)
        while nd < o["lead1"]: more()
        p.wvm("b1")
        for ds in range(4): self.unpack(p, 126, 72 + 4 * ds, 2)
        for j in range(o["P1"]):
            p.ext(self.tr(1, j))
            if j == 2 and not o.get('fine'): self.stamp(p)
            if nd < o["D1"]: more()
        while nd < o["D1"]:
            p.wvm(f"w1_{nd-o['lead1']}"); more()
        self.stamp(p)
        self.spin(p, Y_F1, 1, 20, sleep=1)
        e(f"ds_read_b32 {VTAG}, {VSY} offset:{4*Y_TAG}\ns_setprio 2", "tag")
        self.stamp(p)
        def ld(i):
            ks, ds = divmod(i, 4); q = Prog()
            if ds == 0: self.kk(q, 1, ks, "s76", 40960, "s86")
            q.e(f"buffer_load_dwordx4 {v(HR + 4 * (i % ns), 4)}, v{120+ds}, {SWS}, s76 offen sc1", f"act{ks}_{ds}")
            return q
        def mfma(ks, ds, t):
            c = self.acc1(t, ds); src = "0" if (ks == 0 and t > 0) else c
            return f"v_mfma_f32_16x16x32_bf16 {c}, {a(16*(ks%6)+4*t,4)}, {v(HR + 4 * ((4*ks+ds) % ns), 4)}, {src}"
        def extra(ks):
            pre = Prog(); post = Prog()
            q = Prog(); self.kk(q, 1, ks, "s14", 64, None); q.e("v_add_u32 v125, s14, v124")
            q.e(f"s_mov_b64 exec, s[100:101]\nds_write_b128 v125, {v(HR + 4 * ((4 * ks) % ns), 4)}\ns_mov_b64 exec, -1", "uc")
            self._uc = q
            if ks % 4 == 3: self.sig(pre, Y_U + ks // 4, 20)
            if ks in (0, 5, 10): self.stamp(post)
            return pre, post
        def mfma_uc(ks, ds, t):
            s = mfma(ks, ds, t)
            if ds == 0 and t == 0: s = s + "\n" + "\n".join(x for x, _ in self._uc.items)
            return s
        self.gemm_loop(p, 1, 16, 4, ns, nd, o["P1"], ld, mfma_uc, extra)
        self.stamp(p)
    def gemm1_epi(self, p):
        e = p.e; RD = 24
        if self.o["ebpos"] == 0:
            for ks in range(self.o["eb"]): p.ext(self.dma(2, ks))
        e(f"v_add_u32 v20, {RINGB}, {L16}")
        for t in range(1, 4):
            for ds in range(4): e(f"ds_write_b128 v20, {self.acc1(t, ds)} offset:{(t-1)*4096+ds*1024}", "r1w")
        self.sig(p, Y_PART, 21)
        if self.o["ebpos"] == 1:
            for ks in range(self.o["eb"]): p.ext(self.dma(2, ks))
        for t in range(1, 4):
            e(f"s_xor_b32 s51, {WV}, {t}\ns_mul_i32 s51, s51, {RINGW}\ns_add_u32 s51, s51, {RING0 + (t-1)*4096}\nv_add_u32 v{20+t}, s51, {L16}")
        e(f"s_lshl_b32 s50, {FT}, 3\ns_lshl_b32 s51, {WV}, 1\ns_add_u32 s50, s50, s51\ns_mul_i32 s50, s50, 10240")
        e(f"s_lshl_b32 s51, {DT}, 10\ns_add_u32 s50, s50, s51\ns_add_u32 s86, s50, {GB}")
        e(f"s_mul_i32 s89, {DT}, 24\ns_add_u32 s89, s89, {FT}\ns_lshl_b32 s89, s89, 7\ns_add_u32 s89, s89, {F2}")
        c1 = -2 * 0.7978845608028654 * 1.4426950408889634; c3 = c1 * 0.044715
        e(f"s_mov_b32 s90, {fbits(c3)}\nv_mov_b32 v126, {fbits(c1)}")
        self.spin(p, Y_PART, 4, 20)
        for q in range(4):
            for t in range(3): e(f"ds_read_b128 {v(RD+16*t+4*q,4)}, v{21+t} offset:{q*1024}", f"r1r{q}")
        if self.o["ebpos"] == 2:
            for ks in range(self.o["eb"]): p.ext(self.dma(2, ks))
        for pr in range(2):
            p.wlg(f"r1r{2*pr+1}")
            q = [(72 + 8 * pr + i, RD + 8 * pr + i, 88 + 8 * pr + i) for i in range(8)]
            for x, r, t in q: e(f"v_add_f32 v{x}, v{x}, v{r}\nv_add_f32 v{r+16}, v{r+16}, v{r+32}")
            for x, r, t in q: e(f"v_add_f32 v{x}, v{x}, v{r+16}")
            for x, r, t in q: e(f"v_mul_f32 v{t}, v{x}, v{x}")
            for x, r, t in q: e(f"v_fma_f32 v{t}, v{t}, s90, v126")
            for x, r, t in q: e(f"v_mul_f32 v{t}, v{t}, v{x}")
            for x, r, t in q: e(f"v_exp_f32 v{t}, v{t}")
            for x, r, t in q: e(f"v_add_f32 v{t}, 1.0, v{t}")
            for x, r, t in q: e(f"v_rcp_f32 v{t}, v{t}")
            for x, r, t in q: e(f"v_mul_f32 v{t}, v{t}, v{x}")
            o = 56 + 8 * pr
            for i in range(4): e(f"v_cvt_pk_bf16_f32 v{o+i}, v{q[2*i][2]}, v{q[2*i+1][2]}")
            e(f"v_permlane16_swap_b32 v{o}, v{o+2}\nv_permlane16_swap_b32 v{o+1}, v{o+3}")
            e(f"buffer_store_dwordx4 {v(o,4)}, v{6+pr}, {SWS}, s86 offen sc1", "gs")
        self.sig(p, Y_EPI, 20)
        self.stamp(p)
        for ks in range(min(self.o["eb"], self.o["P2"])): p.ext(self.tr(2, ks))
        e("s_waitcnt vmcnt(0)")
        l = self.label("nolast")
        e(f"v_mov_b32 v20, 1\ns_mov_b64 exec, 1\nds_add_rtn_u32 v20, {VSY}, v20 offset:{4*Y_G}\ns_mov_b64 exec, -1\ns_waitcnt lgkmcnt(0)\nv_readfirstlane_b32 s79, v20")
        e(f"s_cmp_lg_u32 s79, 3\ns_cbranch_scc1 {l}")
        self.flag_store(p, "s89", "@")
        e(f"{l}:")
        self.stamp(p)
    def gemm2(self, p, spare):
        e = p.e; o = self.o
        GR, ns = 24, o['ns2']
        e(f"s_mul_i32 s86, {WV}, {48*10240}\ns_mul_i32 s51, {DT2}, 1280\ns_add_u32 s86, s86, s51\ns_add_u32 s86, s86, {GB}")
        e(f"s_mul_i32 s88, {DT2}, {80*4096}\ns_add_u32 s88, s88, s95\ns_add_u32 s88, s88, {YT}")
        nd = o["eb"]; nt = min(o["eb"], o["P2"])
        e("v_lshlrev_b32 v114, 16, v114")
        for i in range(20): e(f"v_mov_b32 v{84+i}, v114")
        self.spin(p, Y_G, 4, 20)
        def more():
            nonlocal nd
            if nd >= RS: p.wlg(f"t2_{nd-RS}")
            p.ext(self.dma(2, nd)); nd += 1
            if nd == o["PS2"]: self.sig(p, Y_P2, 20)
        while nd < min(o["D2"], nt + o["lead2"]): more()
        while nt < o["P2"]:
            p.ext(self.tr(2, nt)); nt += 1
            if nd < o["D2"]: more()
        while nd < o["D2"]:
            p.wvm(f"w2_{nd-o['lead2']}"); more()
        self.stamp(p)
        self.spin(p, Y_F2, 1, 20, sleep=1)
        self.stamp(p)
        def ld(i):
            ks, di = divmod(i, 5); q = Prog()
            if di == 0: self.kk(q, 2, ks, "s76", 40960, "s86")
            q.e(f"buffer_load_dwordx4 {v(GR + 4 * (i % ns), 4)}, v19, {SWS}, s76 offen offset:{256*di} sc1", f"act{ks}_{di}")
            return q
        def mfma(ks, di, ss):
            c = self.acc2(di, ss); src = "0" if (ks == 0 and ss > 0) else c
            return f"v_mfma_f32_16x16x32_bf16 {c}, {v(GR + 4 * ((5*ks+di) % ns), 4)}, {a(16*(ks%4)+4*ss,4)}, {src}"
        yk = o["ychk"]; assert yk >= 9
        xr = lambda j: [v(120, 4), v(124, 4), v(110, 4)][j]
        def extra(ks):
            pre = Prog(); post = Prog()
            if ks == o["ytrig"]: self.sig(post, Y_P3, 20)
            if ks == o["xk"]:
                for j in range(3): post.e(f"buffer_load_dwordx4 {xr(j)}, v108, {SX}, s94 offen offset:{64*j}", f"x{j}")
            if ks == yk:
                self.spin(post, Y_F3, 1, 20, sleep=2)
                for di in range(5):
                    post.e(f"buffer_load_dwordx4 {a(4*di,4)}, v115, {SWS}, s88 offen sc1", f"y{di}")
                    post.e("s_add_u32 s88, s88, 65536")
            if ks in (0, 3, 7): self.stamp(post)
            return pre, post
        self.gemm_loop(p, 2, 12, 5, ns, nd, nt, ld, mfma, extra)
        self.stamp(p)
        e(f"v_add_u32 v20, {RINGB}, {L16}")
        for t in range(1, 4):
            for di in range(5): e(f"ds_write_b128 v20, {self.acc2(di,t)} offset:{(t-1)*5120+di*1024}", "r2w")
        for t in range(1, 4):
            e(f"s_xor_b32 s51, {WV}, {t}\ns_mul_i32 s51, s51, {RINGW}\ns_add_u32 s51, s51, {RING0 + (t-1)*5120}\nv_add_u32 v{20+t}, s51, {L16}")
        for di in range(5):
            p.wvm(f"x{di//2}")
            e(f"v_mfma_f32_16x16x32_bf16 {self.acc2(di,0)}, {v(104 if di & 1 else 116, 4)}, {xr(di//2)}, {self.acc2(di,0)}")
        for di in range(5):
            p.wvm(f"y{di}")
            e(f"v_mfma_f32_16x16x32_bf16 {self.acc2(di,0)}, {a(4*di,4)}, v[116:119], {self.acc2(di,0)}")
        e("s_waitcnt lgkmcnt(0)\ns_barrier")
        for di in range(5):
            for t in range(3): e(f"ds_read_b128 {v(GR+12*di+4*t,4)}, v{21+t} offset:{di*1024}", f"r2r{di}")
        for di in range(5):
            c = 84 + 4 * di; r = GR + 12 * di
            p.wlg(f"r2r{di}")
            for hq in range(2): e(f"v_pk_add_f32 {v(r+2*hq,2)}, {v(r+2*hq,2)}, {v(r+4+2*hq,2)}\nv_pk_add_f32 {v(c+2*hq,2)}, {v(c+2*hq,2)}, {v(r+8+2*hq,2)}")
            for hq in range(2): e(f"v_pk_add_f32 {v(c+2*hq,2)}, {v(c+2*hq,2)}, {v(r+2*hq,2)}")
            for hq in range(2): e(f"v_cvt_pk_bf16_f32 v{104+2*di+hq}, v{c+2*hq}, v{c+2*hq+1}")
            e(f"buffer_store_dwordx2 {v(104+2*di,2)}, v18, {SOUT}, s94 offen offset:{32*di} {o['oflag']}", "os")
        self.stamp(p)

    def main(self):
        self.role = "main"
        p = Prog(); e = p.e
        self.main_start(p)
        for ks in range(self.o["pre1"]): p.ext(self.dma(1, ks))
        self.ln(p)
        e(f"s_setprio {self.o['mprio']}")
        for ks in range(self.o["pre1"], self.o["free1"]): p.ext(self.dma(1, ks))
        self.stamp(p)
        self.main_setup2(p)
        e(f"s_cmp_lt_u32 {IDX}, 30\ns_cbranch_scc1 L_g1")
        q = Prog()
        q.e("s_waitcnt vmcnt(0)")
        self.spin(q, Y_PUB, 2, 20, sleep=4)
        for ks in range(self.o["eb"]): q.ext(self.dma(2, ks))
        for ks in range(min(self.o["eb"], self.o["P2"])): q.ext(self.tr(2, ks))
        self.sig(q, Y_G, 20)
        q.e("s_waitcnt vmcnt(0) lgkmcnt(0)\ns_branch L_g2")
        for line in finalize(q).split("\n"):
            if line.strip(): e(line.strip() if line.strip().endswith(":") else "@" + line.strip())
        e("L_g1:")
        self.gemm1(p)
        self.gemm1_epi(p)
        e("L_g2:")
        self.gemm2(p, False)
        e(f"s_or_b32 s51, {WG}, {WV}\ns_cmp_lg_u32 s51, 0\ns_cbranch_scc1 L_noep")
        e(f"s_mov_b64 exec, 1\nbuffer_store_dword {VTAG}, {VZ}, {SWS}, 0 offen\ns_mov_b64 exec, -1")
        e("L_noep:")
        if self.o.get("hold"):
            e(f"L_hold:\ns_memrealtime s[82:83]\ns_waitcnt lgkmcnt(0)\ns_sub_u32 s82, s82, s96\ns_cmp_lt_u32 s82, {self.o['hold']}\ns_cbranch_scc1 L_hold")
        self.finish(p)
        return p

    def red32(self, p, regs, tmp):
        for m in ("quad_perm:[1,0,3,2]", "quad_perm:[2,3,0,1]", "row_half_mirror", "row_mirror"):
            for r in regs: p.e(f"v_add_f32_dpp v{r}, v{r}, v{r} {m} row_mask:0xf bank_mask:0xf")
        for i, r in enumerate(regs): p.e(f"v_mov_b32 v{tmp+i}, v{r}")
        for i, r in enumerate(regs): p.e(f"v_permlane16_swap_b32 v{r}, v{tmp+i}")
        for i, r in enumerate(regs): p.e(f"v_add_f32 v{r}, v{r}, v{tmp+i}")
    RAW = [4, 5, 6, 7, 8, 12, 13, 14, 15, 16, 17, 18]
    def conv_start(self, p):
        e = p.e; RAW = self.RAW
        e(f"s_sub_u32 s14, {WV}, 4\ns_cmp_ge_u32 s14, {NCH}\ns_cbranch_scc1 L_end\ns_setprio {self.o['kprio']}")
        e(f"s_lshl_b32 {CH}, {DT}, 6\ns_lshl4_add_u32 {CH}, {SUB}, {CH}\ns_add_u32 {CH}, {CH}, {C0}\ns_add_u32 {CH}, {CH}, s14")
        e(f"s_mul_i32 {REGB}, s14, {REGSZ}\ns_add_u32 {REGB}, {REGB}, {REG0}")
        e(f"s_mul_i32 s51, {CH}, 384\nv_add_u32 v110, s51, {L4}\nv_lshlrev_b32 v111, 1, {LANE}\nv_add_u32 v111, s51, v111")
        e(f"s_lshr_b32 s79, {CH}, 1\ns_lshl_b32 s79, s79, 2")
        e("s_waitcnt lgkmcnt(0)")
        e(f"s_load_dword s80, s[30:31], s79\ns_load_dword s81, s[32:33], s79")
        if not self.o["pfirst"]: e("s_barrier")
        for i in range(6):
            e(f"global_load_dword v{RAW[2*i]}, v110, s[{18+2*i}:{19+2*i}] {self.o['pflag']}")
            e(f"global_load_ushort v{RAW[2*i+1]}, v111, s[{18+2*i}:{19+2*i}] offset:256 {self.o['pflag']}")
        self.pre(p)
        if self.o["pfirst"]: e("s_barrier")
        self.srd(p, 68, 48, WSEND)
        e("s_waitcnt lgkmcnt(0)")
    def serv_start(self, p):
        e = p.e
        e("s_setprio 3")
        e(f"v_add_u32 v109, {SYNC}, {L4}\ns_mov_b32 exec_hi, 0\nds_write_b32 v109, {VZ}\ns_mov_b64 exec, -1")
        e("s_waitcnt lgkmcnt(0)")
        self.pre(p)
        e(f"s_load_dword {TAG}, s[48:49], 0")
        e("s_barrier")
        self.srd(p, 60, 40, 6291456); self.srd(p, 68, 48, WSEND)
        if self.o["tch"]:
            self.srd(p, 56, 36, 6291456); self.srd(p, 64, 44, 2621440)
            e(f"v_lshlrev_b32 v100, {self.o['tch']}, {LANE}\nv_add_u32 v100, 0x3000, v100")
            for i, srd in enumerate((SWS, SW1, SW2, SOUT)): e(f"buffer_load_dword v{101+i}, v100, {srd}, 0 offen")
            e(f"global_load_dword v105, {VZ}, s[38:39]\nglobal_load_dword v106, {VZ}, s[42:43]")
    def ln(self, p):
        e = p.e
        RAW, F, D, T, H = 20, 30, 50, 70, 90
        inv = fbits(1.0 / 640)
        e(f"s_lshr_b32 s51, {WV}, 1\ns_mul_i32 s51, s51, {REGSZ}\ns_and_b32 s15, {WV}, 1\ns_mul_i32 s15, s15, {2*PT}\ns_add_u32 s51, s51, s15\ns_add_u32 s51, s51, {LNT}")
        e(f"v_mul_u32_u24 v102, {PT}, v104\nv_add_u32 v102, s51, v102\nv_lshl_add_u32 v101, v106, 3, v102\nv_lshl_add_u32 v100, v106, 4, v102")
        p.wvm("x")
        self.stamp(p)
        self.unpack(p, RAW, F, 10)
        def psum(src, dst):
            e(f"v_pk_add_f32 {v(dst,2)}, {v(src,2)}, {v(src+2,2)}\nv_pk_add_f32 {v(dst+2,2)}, {v(src+4,2)}, {v(src+6,2)}")
            for i in range(4, 10): e(f"v_pk_add_f32 {v(dst+2*(i&1),2)}, {v(dst+2*(i&1),2)}, {v(src+2*i,2)}")
            e(f"v_pk_add_f32 {v(dst,2)}, {v(dst,2)}, {v(dst+2,2)}\nv_add_f32 v{dst}, v{dst}, v{dst+1}")
        def psq(src, dst):
            e(f"v_pk_mul_f32 {v(dst,2)}, {v(src,2)}, {v(src,2)}\nv_pk_mul_f32 {v(dst+2,2)}, {v(src+2,2)}, {v(src+2,2)}")
            for i in range(2, 10): e(f"v_pk_fma_f32 {v(dst+2*(i&1),2)}, {v(src+2*i,2)}, {v(src+2*i,2)}, {v(dst+2*(i&1),2)}")
            e(f"v_pk_add_f32 {v(dst,2)}, {v(dst,2)}, {v(dst+2,2)}\nv_add_f32 v{dst}, v{dst}, v{dst+1}")
        def rstd(var, out):
            e(f"v_max_f32 v{var}, 0, v{var}")
            self.rbf(p, var); e(f"v_add_f32 v{var}, {fbits(1e-5)}, v{var}"); self.rbf(p, var)
            e(f"v_sqrt_f32 v{var}, v{var}"); self.rbf(p, var); e(f"v_rcp_f32 v{out}, v{var}")
        psum(F, T); self.red32(p, [T], T + 2)
        e(f"v_mul_f32 v{T}, {inv}, v{T}\nv_mov_b32 v{T+4}, v{T}"); self.rbf(p, T + 4)
        for i in range(10): e(f"v_pk_add_f32 {v(D+2*i,2)}, {v(F+2*i,2)}, {v(T+4,2)} op_sel_hi:[1,0] neg_lo:[0,1] neg_hi:[0,1]")
        e(f"v_sub_f32 v{T+5}, v{T}, v{T+4}")
        psq(D, T); self.red32(p, [T], T + 2)
        e(f"v_mul_f32 v{T}, {inv}, v{T}\nv_fma_f32 v{T}, -v{T+5}, v{T+5}, v{T}")
        rstd(T, T + 6)
        for i in range(10): e(f"v_pk_mul_f32 {v(D+2*i,2)}, {v(D+2*i,2)}, {v(T+6,2)} op_sel_hi:[1,0]")
        for i in range(10): e(f"v_cvt_pk_bf16_f32 v{RAW+i}, v{D+2*i}, v{D+2*i+1}")
        self.unpack(p, RAW, F, 10)
        psum(F, T); psq(F, T + 4); self.red32(p, [T, T + 4], T + 2)
        e(f"v_mul_f32 v{T}, {inv}, v{T}\nv_mul_f32 v{T+4}, {inv}, v{T+4}\nv_fma_f32 v{T+4}, -v{T}, v{T}, v{T+4}")
        self.rbf(p, T)
        rstd(T + 4, T + 6)
        e(f"v_mul_f32 v{T+2}, v{T}, v{T+6}\nv_lshrrev_b32 v{T+4}, 16, v{T+4}\nv_or_b32 v{T+4}, v{T+4}, v{T}")
        for i in range(10): e(f"v_pk_fma_f32 {v(D+2*i,2)}, {v(F+2*i,2)}, {v(T+6,2)}, {v(T+2,2)} op_sel_hi:[1,0,0] neg_lo:[0,0,1] neg_hi:[0,0,1]")
        e(f"ds_write_b32 v102, v{T+4} offset:1280", "lnw")
        for i in range(10): e(f"v_cvt_pk_bf16_f32 v{H+i}, v{D+2*i}, v{D+2*i+1}")
        e(f"ds_write_b128 v100, {v(H,4)}\nds_write_b128 v100, {v(H+4,4)} offset:512\nds_write_b64 v101, {v(H+8,2)} offset:1024", "lnw")
        self.sig(p, Y_LN, T)

    def serv(self):
        self.role = "serv"
        p = Prog(); e = p.e; o = self.o
        self.serv_start(p)
        self.stamp(p)
        e(f"v_bfe_u32 v12, {LANE}, 2, 2\nv_mul_u32_u24 v12, {PT}, v12\nv_lshrrev_b32 v13, 4, {LANE}\nv_lshl_add_u32 v12, v13, 5, v12")
        e(f"v_and_b32 v13, 3, {LANE}\nv_lshl_add_u32 v12, v13, 3, v12\nv_add_u32 v12, {LNT}, v12")
        e(f"s_mul_i32 s84, {WG}, 10240\ns_add_u32 s84, s84, {HB}\ns_add_u32 s85, s84, 4096\ns_add_u32 s86, s84, 8192")
        e(f"s_lshl_b32 s87, {WG}, 4\ns_add_u32 s87, s87, {STAT}\nv_lshlrev_b32 v13, 12, {LANE}")
        e(f"s_lshr_b32 s89, {WG}, 2\ns_lshl_b32 s89, s89, 7\ns_and_b32 s51, {WG}, 3\ns_lshl2_add_u32 s89, s51, s89\ns_add_u32 s89, s89, {F1}\nv_lshlrev_b32 v14, 7, {LANE}")
        e("s_waitcnt lgkmcnt(0)")
        self.mktag(p)
        e(f"ds_write_b32 {VSY}, {VTAG} offset:{4*Y_TAG}")
        self.spin(p, Y_LN, 4, 20, sleep=1)
        if self.o.get("dly_p"): e(f"s_sleep {self.o['dly_p']}")
        self.stamp(p)
        for b in range(11):
            e(f"ds_read_b64_tr_b16 {v(24+4*b,2)}, v12 offset:{128*b}\nds_read_b64_tr_b16 {v(26+4*b,2)}, v12 offset:{128*b+REGSZ}", f"lr{b}")
            if b >= 3:
                c = b - 3; p.wlg(f"lr{c}")
                e(f"buffer_store_dwordx4 {v(24+4*c,4)}, {L16}, {SWS}, s{84 + c//4} offen offset:{(c%4)*1024} sc1")
        for c in range(8, 10):
            p.wlg(f"lr{c}")
            e(f"buffer_store_dwordx4 {v(24+4*c,4)}, {L16}, {SWS}, s{84 + c//4} offen offset:{(c%4)*1024} sc1")
        p.wlg("lr10")
        e(f"s_mov_b64 exec, 3\nbuffer_store_dwordx4 v[64:67], v13, {SWS}, s87 offen sc1\ns_mov_b64 exec, -1")
        self.sig(p, Y_PUB, 20)
        self.stamp(p)
        e(f"s_mul_i32 s50, {DT2}, 80\ns_lshr_b32 s50, s50, 6\ns_mul_i32 s92, s50, {24*128}\ns_add_u32 s92, s92, {F2}")
        e(f"v_min_u32 v15, 47, {LANE}\nv_lshlrev_b32 v15, 7, v15\nv_min_u32 v16, 29, {LANE}\nv_lshlrev_b32 v16, 7, v16")
        e(f"s_mul_i32 s93, {DT2}, {30*128}\ns_add_u32 s93, s93, {F3}")
        e("s_waitcnt vmcnt(0)")
        if self.o.get("dly_f"):
            self.sig(p, Y_PUB, 20); e(f"s_sleep {self.o['dly_f']}")
        self.flag_store(p, "s89")
        self.sig(p, Y_PUB, 20)
        self.stamp(p)
        e(f"s_cmp_lt_u32 {IDX}, 30\ns_cbranch_scc1 L_s1")
        e(f"v_lshrrev_b32 v17, 3, {LANE}\nv_lshlrev_b32 v17, 12, v17\nv_and_b32 v18, 7, {LANE}\nv_lshl_add_u32 v17, v18, 7, v17")
        e(f"s_lshl_b32 s88, {SUB}, 10\ns_and_b32 s51, {IDX}, 1\ns_lshl_b32 s51, s51, 15\ns_add_u32 s88, s88, s51\ns_and_b32 s51, {XCD}, 1\ns_lshl_b32 s51, s51, 16\ns_add_u32 s88, s88, s51")
        for i in range(o["nsp"]):
            e(f"buffer_load_dword v{24+i}, v17, {SW2}, s88 offen\ns_add_u32 s88, s88, 131072")
        e("s_waitcnt vmcnt(0)\ns_branch L_s2\nL_s1:")
        self.spin(p, Y_P1, 1, 20, sleep=2)
        self.stamp(p)
        e(f"s_mov_b32 s50, {F1}")
        self.poll(p, "v14", "s50", 20, wide=True, sleep=o["psleep"])
        self.sig(p, Y_F1, 20)
        self.stamp(p)
        if self.debug: e(f"v_writelane_b32 {VDBG}, s78, 31")
        e("L_s2:")
        self.spin(p, Y_P2, 1, 20, sleep=4)
        self.stamp(p)
        self.poll(p, "v15", "s92", 20, sleep=o["psleep2"])
        self.sig(p, Y_F2, 20)
        self.stamp(p)
        if self.debug: e(f"v_writelane_b32 {VDBG}, s78, 30")
        self.spin(p, Y_P3, 1, 20, sleep=4)
        self.poll(p, "v16", "s93", 20, sleep=o["psleep2"])
        self.sig(p, Y_F3, 20)
        if self.debug: e(f"v_writelane_b32 {VDBG}, s78, 29")
        self.finish(p)
        return p

    def kgen(self, p):
        e = p.e; RAW = self.RAW
        L2E = 1.4426950408889634
        l2e_hi = struct.unpack("<f", struct.pack("<f", L2E))[0]; l2e_lo = L2E - l2e_hi
        VDT, VD1, VD2, VDS, WA, RA, RB = 54, 55, 56, 57, 58, 59, 60
        e(f"s_and_b32 s51, {CH}, 1\ns_lshl_b32 s51, s51, 4\ns_lshr_b32 s80, s80, s51\ns_lshl_b32 s80, s80, 16\ns_lshr_b32 s81, s81, s51\ns_lshl_b32 s81, s81, 16")
        e(f"v_mov_b32 v62, s80\nv_mov_b32 v63, {fbits(l2e_hi)}\nv_mul_f32 v64, v62, v63\nv_fma_f32 v65, v62, v63, -v64\nv_fmac_f32 v65, {fbits(l2e_lo)}, v62")
        e(f"v_exp_f32 v64, v64\nv_mul_f32 v65, {fbits(0.6931471805599453)}, v65\nv_fma_f32 v{VDT}, v64, v65, v64")
        self.rbf(p, VDT)
        e(f"v_mul_f32 v{VD1}, {fbits(L2E)}, v{VDT}\nv_mul_f32 v{VD2}, 0.15915494, v{VDT}")
        e(f"v_cmp_eq_u32 vcc, 0, {LANE}\nv_mov_b32 v62, s81\nv_cndmask_b32 v{VDS}, 0, v62, vcc")
        e(f"s_mov_b32 m0, {REGB}")
        e(f"v_and_b32 v62, 31, {LANE}\nv_lshrrev_b32 v63, 5, {LANE}\nv_lshlrev_b32 v63, 4, v63\nv_add_u32 v63, {REGB}, v63")
        e(f"v_mul_u32_u24 v64, {KP}, v62\nv_add_u32 v{RB}, v64, v63")
        e(f"v_min_u32 v62, 20, v62\nv_mul_u32_u24 v64, {KP}, v62\nv_add_u32 v{RA}, v64, v63")
        e("v_mov_b32 v28, 0x3f80")
        e("s_waitcnt vmcnt(0)")
        self.stamp(p)
        PK = 116; pk = [0]; P = 62
        FA, FB = 16, 48
        def mf(rd):
            l = []
            for s in range(8):
                q = Prog()
                c = a(0, 16)
                q.e(f"v_mfma_f32_32x32x16_bf16 {a(0,16)}, {a(FA+4*s,4)}, {a(FB+4*s,4)}, {c}")
                l.append(q)
            return l
        p.e("s_mov_b32 s76, 0\nL_kg:")
        for rd in (1,):
            usepk = self.o["pk"]
            q = Prog(); e = q.e
            def cmul(sets):
                if usepk:
                    for d, x, y in sets: e(f"v_pk_mul_f32 {v(d,2)}, {v(x,2)}, {v(y,2)} op_sel_hi:[0,1]")
                    for d, x, y in sets: e(f"v_pk_fma_f32 {v(d,2)}, {v(x,2)}, {v(y,2)}, {v(d,2)} op_sel:[1,1,0] op_sel_hi:[1,0,1] neg_lo:[1,0,0]")
                else:
                    for d, x, y in sets: e(f"v_mul_f32 v{d}, v{x}, v{y}\nv_mul_f32 v{d+1}, v{x}, v{y+1}")
                    for d, x, y in sets: e(f"v_fma_f32 v{d}, -v{x+1}, v{y+1}, v{d}\nv_fmac_f32 v{d+1}, v{x+1}, v{y}")
            def puts(l, neg):
                rs = []
                for row, z in l:
                    r = PK + pk[0] % 8; pk[0] += 1; rs.append(r)
                    e(f"v_cvt_pk_bf16_f32 v{r}, v{z}, {'-' if neg else ''}v{z+1}")
                for (row, z), r in zip(l, rs): e(f"ds_write_addtid_b32 v{r} offset:{row*KP}", "kw")
            for i in range(6):
                e(f"v_lshlrev_b32 v{P+i}, 16, v{RAW[2*i]}\nv_alignbit_b32 v{RAW[2*i]}, v{RAW[2*i+1]}, v{RAW[2*i]}, 16")
            AR, AI = 68, 69
            e(f"v_mul_f32 v{AR}, v{P}, v{VD1}\nv_mul_f32 v{AI}, v{P+1}, v{VD2}")
            e(f"v_mul_f32 v{P+2}, v{P+2}, v{VDT}\nv_mul_f32 v{P+3}, v{P+3}, v{VDT}")
            E1, E8, E256 = 70, 72, 74
            TM_, TA = 76, 79
            for i, t in enumerate((1.0, 8.0, 256.0)):
                if i == 0: e(f"v_mov_b32 v{TM_}, v{AR}\nv_fract_f32 v{TA}, v{AI}")
                else: e(f"v_mul_f32 v{TM_+i}, {fbits(t)}, v{AR}\nv_mul_f32 v{TA+i}, {fbits(t)}, v{AI}\nv_fract_f32 v{TA+i}, v{TA+i}")
            X = 82
            cmul([(X, P + 4, P + 2)])
            for i in range(3):
                e(f"v_exp_f32 v{TM_+i}, v{TM_+i}\nv_cos_f32 v{E1+2*i}, v{TA+i}\nv_sin_f32 v{E1+2*i+1}, v{TA+i}")
            for i in range(3): e(f"v_mul_f32 v{E1+2*i}, v{E1+2*i}, v{TM_+i}\nv_mul_f32 v{E1+2*i+1}, v{E1+2*i+1}, v{TM_+i}")
            E2, E4, E16, E512 = 98, 100, 102, 104
            EA, EB, E32, Y, Z = 106, 20, 114, 30, 38
            cmul([(E2, E1, E1), (E16, E8, E8), (E512, E256, E256), (X + 2, X, E1)])
            cmul([(E4, E2, E2), (EA + 6, E16, E8), (E32, E16, E16), (X + 4, X, E2), (X + 6, X + 2, E2)])
            p.ext(q)
            p.e("s_waitcnt lgkmcnt(0)")
            q = Prog(); e = q.e
            e(f"ds_write_addtid_b32 v28", "kw")
            puts([(1, E8), (2, E16), (3, EA + 6), (4, E32)], False)
            cmul([(EB, E8, E32), (EB + 2, E16, E32), (EB + 4, EA + 6, E32), (EB + 6, E32, E32)])
            cur, nxt = EB, EA
            extra = [[(X + 8 + 2 * i, X + 2 * i, E4) for i in range(4)], [(Y + 2 * i, X + 4 * i, E256) for i in range(4)],
                     [(Z, X, E512), (Z + 2, X + 8, E512), (Z + 4, Y, E512), (Z + 6, Y + 4, E512)],
                     [(Z + 8, Z, E512), (Z + 10, Z + 4, E512)], [(Z + 12, Z + 8, E512), (Z + 14, Z + 10, E512)], [(E1, Z + 12, E512)]]
            for st in range(6):
                j0 = 9 + 4 * st
                n = min(4, 32 - j0)
                cmul([(nxt + 2 * i, cur + 2 * i, E32) for i in range(n)])
                puts([(j0 - 4 + i, cur + 2 * i) for i in range(4)], False)
                cmul(extra[st])
                cur, nxt = nxt, cur
            puts([(29 + i, cur + 2 * i) for i in range(3)], False)
            if rd > 0: p.ext(interleave(q, mf(rd - 1)))
            else: p.ext(q)
            for s_ in range(8): p.e(f"ds_read_b128 {a(FB+4*s_,4)}, v{RB} offset:{s_*32}", "kr")
            e = p.e
            puts([(i, X + 2 * i) for i in range(4)], True); puts([(4 + i, X + 8 + 2 * i) for i in range(4)], True)
            puts([(8 + i, Y + 2 * i) for i in range(4)], True); puts([(12 + i, Z + 2 * i) for i in range(4)], True)
            puts([(16 + i, Z + 8 + 2 * i) for i in range(4)] + [(20, E1)], True)
            for s_ in range(8): p.e(f"ds_read_b128 {a(FA+4*s_,4)}, v{RA} offset:{s_*32}", "kr")
            p.e("s_cmp_lg_u32 s76, 0\ns_cbranch_scc1 L_kg1")
            for i in range(16): p.e(f"v_accvgpr_write_b32 a{i}, 0")
            p.e("L_kg1:")
            if self.debug: p.e(f"s_memrealtime s[82:83]\ns_waitcnt lgkmcnt(0)\ns_add_u32 s50, s76, 20\nv_mov_b32 v61, s82\nv_cmp_eq_u32 vcc, s50, {LANE}\nv_cndmask_b32 {VDBG}, {VDBG}, v61, vcc")
            p.e("s_add_u32 s76, s76, 1\ns_cmp_lt_u32 s76, 3\ns_cbranch_scc1 L_kg")
        e = p.e
        e(f"v_and_b32 v62, 31, {LANE}\nv_lshrrev_b32 v63, 5, {LANE}\ns_add_u32 s51, {REGB}, {KCO}")
        e(f"v_lshlrev_b32 v64, 4, v62\nv_lshl_add_u32 v64, v63, 3, v64\nv_add_u32 v64, s51, v64")
        e(f"v_cmp_eq_u32 vcc, 0, v63\nv_lshlrev_b32 v65, 3, v62\nv_add_u32 v65, 512, v65\nv_lshlrev_b32 v66, 2, v62\nv_add_u32 v66, 768, v66")
        e(f"v_cndmask_b32 v65, v66, v65, vcc\nv_add_u32 v65, s51, v65\nv_mov_b32 v66, 128\nv_cndmask_b32 v66, v66, 4, vcc\nv_add_u32 v66, v65, v66")
        e(f"v_lshlrev_b32 v67, 1, v62\nv_lshl_add_u32 v67, v63, 8, v67\nv_add_u32 v67, s51, v67")
        self.spin(p, Y_PUB, 1, 68)
        for q in mf(2): p.ext(q)
        e(f"v_mov_b32 v76, 0\nv_mov_b32 v77, 0\nv_mov_b32 v78, 0\nv_mov_b32 v79, 0\nv_add_u32 v15, {REGB}, {L16}")
        for i in range(4): e(f"ds_write_b128 v15, v[76:79] offset:{R0O + 1024*i}", "kc")
        e("s_mov_b64 exec, 3")
        e(f"ds_write_b128 v15, v[76:79] offset:{KCO - 32}", "kc")
        e("s_mov_b32 exec_lo, -1")
        e(f"ds_write_b128 v15, v[76:79] offset:{UO}", "kc")
        e("s_mov_b64 exec, -1")
        blocks = [(-2, 34, 8), (32, 32, 4)]
        info = []
        for bi, (v0, nl, stride) in enumerate(blocks):
            cis = lambda y: y if y < 0 else ci(y)
            base = cis(8 * v0)
            offs = {}
            for t in range(-1, 8):
                o = [cis(8 * (v0 + l) + 7 - t) - (base + stride * l) for l in range(nl)]
                offs[t] = o[0]
                assert all(x == o[0] for x in o)
            AD = 100 + 2 * bi
            e(f"s_add_u32 s51, {REGB}, {KCO + 2*base}\nv_mul_u32_u24 v{AD}, {2*stride}, {LANE}\nv_add_u32 v{AD}, s51, v{AD}")
            e(f"s_add_u32 s51, {REGB}, {(75 - v0) * 16}\nv_sub_u32 v{AD+1}, s51, {L16}")
            info.append(offs)
        e(f"v_cmp_gt_u32 vcc, 16, {LANE}\nv_mov_b32 v104, 563\nv_mov_b32 v105, 512\nv_cndmask_b32 v104, v104, v105, vcc\nv_add_u32 v104, v104, {LANE}")
        e(f"v_mov_b32 v106, 1011\nv_cndmask_b32 v105, v106, v105, vcc\nv_add_u32 v105, v105, {LANE}\nv_cvt_f32_u32 v105, v105\nv_cvt_pk_bf16_f32 v105, v105, v105\nv_and_b32 v105, 0xffff, v105")
        e(f"s_sub_u32 s51, {REGB}, {2*0x4280 - KCO}\nv_lshl_add_u32 v105, v105, 1, s51")
        e(f"s_add_u32 s51, {REGB}, {2*607}\nv_lshlrev_b32 v104, 1, v104\nv_sub_u32 v104, s51, v104")
        e(f"v_lshlrev_b32 v106, 1, {LANE}\ns_add_u32 s51, {REGB}, 4096\nv_sub_u32 v107, s51, v106\nv_add_u32 v106, {REGB}, v106")
        for i in range(12): e(f"v_accvgpr_read_b32 v{82+i}, a{i}")
        e(f"v_add_f32 v82, v82, v{VDS}")
        for i in range(6): e(f"v_cvt_pk_bf16_f32 v{70+i}, v{82+2*i}, v{83+2*i}")
        e(f"ds_write_b64 v64, v[70:71]\nds_write_b32 v65, v72\nds_write_b32 v66, v73\nds_write_b16 v67, v74 offset:1024", "kc")
        e("s_mov_b32 exec_hi, 0")
        e(f"ds_write_b16_d16_hi v67, v74 offset:{1024+64}\nds_write_b16 v67, v75 offset:{1024+128}\nds_write_b16_d16_hi v67, v75 offset:{1024+192}", "kc")
        e("s_mov_b64 exec, -1")
        vrs = []
        for bi, (v0, nl, stride) in enumerate(blocks):
            RR = 20 + 9 * bi; AD = 100 + 2 * bi; offs = info[bi]
            e(f"s_mov_b32 exec_hi, {(1 << (nl - 32)) - 1}")
            seen = {}; vr = {}
            for t in range(-1, 8):
                o = offs[t]
                if o not in seen:
                    seen[o] = RR + len(seen)
                    e(f"ds_read_u16 v{seen[o]}, v{AD} offset:{2*o}", f"kx{bi}")
                vr[t] = seen[o]
            vrs.append(vr)
        e("ds_read_u16 v40, v105", "kq")
        e("s_mov_b64 exec, -1")
        for i in range(2):
            e(f"ds_read_u16 v{41+i}, v106 offset:{KCO + 2*(388 + 64*i)}\nds_read_u16 v{43+i}, v106 offset:{KCO + 2*(514 + 64*i)}", "kq")
        for bi, (v0, nl, stride) in enumerate(blocks):
            AD = 100 + 2 * bi; O = 70 + 8 * bi; vr = vrs[bi]
            p.wlg(f"kx{bi}")
            for i in range(4): e(f"v_lshl_or_b32 v{O+i}, v{vr[2*i+1]}, 16, v{vr[2*i]}")
            for i in range(4): e(f"v_lshl_or_b32 v{O+4+i}, v{vr[2*i]}, 16, v{vr[2*i-1]}")
            e(f"s_mov_b32 exec_hi, {(1 << (nl - 32)) - 1}")
            e(f"ds_write_b128 v{AD+1}, {v(O,4)} offset:{R0O}\nds_write_b128 v{AD+1}, {v(O+4,4)} offset:{R1O}", "kt")
            e("s_mov_b64 exec, -1")
        p.wlg("kq")
        e(f"ds_write_b16 v107, v41 offset:{Q2O - 4096 + 2*188}\nds_write_b16 v107, v43 offset:{Q3O - 4096 + 2*126}", "kt")
        e(f"s_mov_b32 exec_hi, {(1 << 31) - 1:#x}\nds_write_b16 v107, v44 offset:{Q3O - 4096 + 2*(126-64)}", "kt")
        e(f"s_mov_b32 exec_hi, {(1 << 29) - 1:#x}\nds_write_b16 v107, v42 offset:{Q2O - 4096 + 2*(188-64)}", "kt")
        e(f"s_mov_b32 exec_hi, 0\ns_mov_b32 exec_lo, 0x01ff3fff\nds_write_b16 v104, v40 offset:{R0O}\nds_write_b16 v104, v40 offset:{R1O + 2}\ns_mov_b64 exec, -1", "kt")

    def conv_setup(self, p):
        e = p.e
        e(f"v_lshrrev_b32 v32, 4, {LANE}\nv_and_b32 v31, 15, {LANE}\nv_bfe_u32 v33, {LANE}, 1, 3\nv_lshlrev_b32 v34, 2, v32\nv_sub_u32 v34, v34, v33")
        e(f"v_and_b32 v33, 1, {LANE}\nv_xor_b32 v33, 1, v33\nv_mul_u32_u24 v33, {(R1O - R0O)//4 + 1}, v33\nv_add_u32 v34, v34, v33")
        e(f"s_add_u32 s51, {REGB}, {R0O + 4*7}\nv_lshl_add_u32 v24, v34, 2, s51\nv_add_u32 v25, 512, v24")
        e(f"v_lshlrev_b32 v33, 4, v32\nv_lshlrev_b32 v34, 3, v31\nv_sub_u32 v26, v33, v34\ns_add_u32 s51, {REGB}, {Q2O + 120}\nv_add_u32 v26, s51, v26")
        e(f"v_lshlrev_b32 v34, 2, v31\nv_sub_u32 v27, v33, v34\ns_add_u32 s51, {REGB}, {Q3O + 60}\nv_add_u32 v27, s51, v27")
        for m in list(range(17)) + [18]:
            off = (18 - m) * 16; ad = 24; r = 4 * min(m, 17)
            if off >= 128: off -= 128; ad = 25
            e(f"ds_read2_b32 {a(r,2)}, v{ad} offset0:{off} offset1:{off+1}\nds_read2_b32 {a(r+2,2)}, v{ad} offset0:{off+2} offset1:{off+3}", "pf")
        for j in range(6): e(f"ds_read_b64 {a(72+4*j,2)}, v26 offset:{64*j}\nds_read_b64 {a(74+4*j,2)}, v26 offset:{64*j+8}", "pf")
        for j in range(4): e(f"ds_read2_b32 {a(96+4*j,2)}, v27 offset0:{16*j} offset1:{16*j+1}\nds_read2_b32 {a(98+4*j,2)}, v27 offset0:{16*j+2} offset1:{16*j+3}", "pf")
        e("v_mov_b32 v76, 0\nv_mov_b32 v77, 0\nv_mov_b32 v78, 0\nv_mov_b32 v79, 0\ns_mov_b64 exec, 1")
        for o in (Z5O, Z3O, Z9O, Z7O, Z5O + 3088, Z3O + 3088): e(f"ds_write_b128 v15, v[76:79] offset:{o}", "pf")
        e("s_mov_b64 exec, -1")
        e(f"v_lshl_add_u32 v34, v31, 1, v32\ns_add_u32 s51, {REGB}, {UO + 16*2}\nv_lshl_add_u32 v16, v34, 4, s51")
        e(f"v_bfe_u32 v33, {LANE}, 2, 2\nv_and_b32 v34, 3, {LANE}\nv_and_b32 v35, 1, v33")
        e(f"v_mul_u32_u24 v12, {Z3O - Z5O}, v35\nv_lshl_add_u32 v12, v32, 6, v12\nv_add_u32 v36, v33, v34\nv_lshl_add_u32 v12, v36, 3, v12\nv_add_u32 v12, {REGB}, v12")
        e(f"v_mul_u32_u24 v13, {Z7O - Z9O}, v35\nv_lshl_add_u32 v13, v32, 7, v13\nv_lshl_add_u32 v13, v33, 4, v13\nv_lshl_add_u32 v13, v34, 3, v13\nv_add_u32 v13, {REGB}, v13")
        e(f"v_add_u32 v14, {UO + 512 - 24}, v15")
        e(f"v_and_b32 v34, 1, v32\nv_lshlrev_b32 v34, 9, v34\nv_lshl_add_u32 v34, v31, 5, v34\nv_lshrrev_b32 v32, 1, v32\nv_lshl_add_u32 v17, v32, 4, v34")
        e(f"s_lshl_b32 s86, {CH}, 12\ns_add_u32 s86, s86, {YT}\ns_mul_i32 s89, {DT}, 24\ns_add_u32 s89, s89, {FT}\ns_lshl_b32 s89, s89, 7\ns_add_u32 s89, s89, {F3}\ns_sub_u32 s88, {NCH}, 1")
    def inverse(self, p):
        e = p.e
        S2, M2, SF, MF = 24, 40, 56, 88
        e(f"v_lshrrev_b32 v20, 4, {LANE}\nv_lshlrev_b32 v20, 10, v20\nv_and_b32 v21, 3, {LANE}\nv_lshl_add_u32 v20, v21, 4, v20\nv_and_b32 v21, 12, {LANE}")
        e(f"s_add_u32 s51, {REGB}, {UO+512}")
        for q in range(4):
            e(f"v_add_u32 v22, {16*(q&1)}, v21\nv_bfe_u32 v22, s{74 + q//2}, v22, 4\nv_lshl_add_u32 v{4+q}, v22, 6, v20\nv_add_u32 v{120+q}, s51, v{4+q}")
        e(f"s_mov_b32 s84, {STAT}\ns_mov_b32 s85, {STAT+4096}")
        self.spin(p, Y_F1, 1, 22, sleep=2)
        e(f"ds_read_b32 {VTAG}, {VSY} offset:{4*Y_TAG}", "tag")
        for q in range(4):
            e(f"buffer_load_dwordx4 {v(S2+4*q,4)}, v{4+q}, {SWS}, s84 offen sc1", "u")
            e(f"buffer_load_dwordx4 {v(M2+4*q,4)}, v{4+q}, {SWS}, s85 offen sc1", "u")
        p.wvm("u")
        self.unpack(p, S2, SF, 16); self.unpack(p, M2, MF, 16)
        self.stamp(p)
        for q in range(4):
            self.spin(p, Y_U + q, 4, 22, sleep=(2 if q < 3 else 1))
            if q == 3: self.stamp(p)
            e(f"ds_read_b128 v[24:27], v{120+q}", f"ur{q}")
            p.wlg(f"ur{q}")
            self.unpack(p, 24, 40, 4)
            for i in range(8): e(f"v_fma_f32 v{40+i}, v{40+i}, v{SF+8*q+i}, v{MF+8*q+i}")
            for i in range(4): e(f"v_cvt_pk_bf16_f32 v{48+i}, v{40+2*i}, v{41+2*i}")
            e(f"ds_write_b128 v{120+q}, v[48:51]", "uw")
    def zcode(self):
        p = Prog(); e = p.e
        RAWZ, P, W = 96, 103, 56
        def rd(it):
            e(f"ds_read_b64 {v(RAWZ,2)}, v14 offset:{1024*it}\nds_read_b128 {v(RAWZ+2,4)}, v14 offset:{1024*it+8}\nds_read_b64 {v(RAWZ+6,2)}, v14 offset:{1024*it+24}", f"zr{it}")
        rd(0); k = 0
        for it in range(3):
            p.wlg(f"zr{it}")
            self.unpack(p, RAWZ, P + 1, 8)
            if it < 2: rd(it + 1)
            for j in range(2, 17 if it < 2 else 15): e(f"v_add_f32 v{P+j}, v{P+j}, v{P+j-1}")
            for h, zo in ((2, Z5O), (1, Z3O), (4, Z9O), (3, Z7O))[:(4 if it < 2 else 2)]:
                for t in range(8):
                    if t + 4 - h == 0: e(f"v_mov_b32 v{W}, v{P+9}")
                    else: e(f"v_sub_f32 v{W+t}, v{P+t+5+h}, v{P+t+4-h}")
                o = 120 + 4 * (k & 1); k += 1
                for i in range(4): e(f"v_cvt_pk_bf16_f32 v{o+i}, v{W+2*i}, v{W+2*i+1}")
                e(f"ds_write_b128 v15, {v(o,4)} offset:{zo + 16 + 1024*it}", "zw")
        return p
    def conv(self, p):
        e = p.e
        YO, ACC = 17, 64
        slots = [("v", 24 + 4 * i) for i in range(10)] + [("v", 96 + 4 * i) for i in range(8)] + [("a", 112 + 4 * i) for i in range(4)]
        slots = slots[:self.o["cns"]]; NS = len(slots)
        def R(n, off=0, w=4):
            k, r = slots[n % NS]; return (v if k == "v" else a)(r + off, w)
        jobs = []
        for ph in range(8):
            for d in range(8):
                l = [(d + mu, 4 * (8 * mu + ph), False) for mu in range(2) if d + mu <= 7]
                if ph == 0 and d <= 5: l.append((d + 2, 64, False))
                if ph == 0 and d <= 3: l.append((d + 4, 68, False))
                jobs.append((lambda n, d=d, ph=ph: [f"ds_read_b128 {R(n)}, v16 offset:{512*d + (7-ph)*64}"], l))
        nF = len(jobs)
        for st in range(4):
            jobs.append((lambda n, st=st: [f"ds_read_b64_tr_b16 {R(n,0,2)}, v13 offset:{Z9O + 512*st}", f"ds_read_b64_tr_b16 {R(n,2,2)}, v13 offset:{Z9O + 512*st + 64}"],
                         [(I, 96 + 4 * (st - I + 7), True) for I in range(4, 8) if st <= I - 4]))
        for st in range(12):
            jobs.append((lambda n, st=st: [f"ds_read_b64_tr_b16 {R(n,0,2)}, v12 offset:{Z5O + 256*st}", f"ds_read_b64_tr_b16 {R(n,2,2)}, v12 offset:{Z5O + 256*st + 32}"],
                         [(I, 72 + 4 * (st - 2 * I + 8), True) for I in range(2, 8) if 2 * I - 8 <= st <= 2 * I - 3]))
        assert sum(len(j[1]) for j in jobs) == 170
        first = set()
        def load(q, n):
            for t in jobs[n][0](n): q.e(t, f"cj{n}")
        def run(q, n):
            q.wlg(f"cj{n}")
            r = R(n)
            for i, (I, kf, dA) in enumerate(jobs[n][1]):
                acc = v(ACC + 4 * I, 4); src = acc if I in first else "0"; first.add(I)
                q.e(f"v_mfma_f32_16x16x32_bf16 {acc}, {r if dA else a(kf,4)}, {a(kf,4) if dA else r}, {src}")
                if i == 0 and n >= 1 and n - 1 + NS < len(jobs): load(q, n - 1 + NS)
        jobs = jobs[nF:] + jobs[:nF]
        if self.o.get("dly_c"): e(f"s_sleep {self.o['dly_c']}")
        p.ext(self.zcode())
        for n in range(NS): load(p, n)
        if self.o["cwait"]: self.spin(p, Y_EPI, self.o["cwait"], 22, sleep=1)
        e(f"s_setprio {self.o['cprio']}")
        self.stamp(p)
        for n in range(len(jobs)): run(p, n)
        for k in range(4):
            o = 24 + 4 * k
            for i in range(4): e(f"v_cvt_pk_bf16_f32 v{o+i}, v{ACC+8*k+2*i}, v{ACC+8*k+2*i+1}")
            e(f"v_permlane16_swap_b32 v{o}, v{o+2}\nv_permlane16_swap_b32 v{o+1}, v{o+3}")
            e(f"buffer_store_dwordx4 {v(o,4)}, v{YO}, {SWS}, s86 offen offset:{1024*k} sc1", "ys")
        self.stamp(p)
        e("s_waitcnt vmcnt(0)")
        e(f"v_mov_b32 v20, 1\ns_mov_b64 exec, 1\nds_add_rtn_u32 v20, {VSY}, v20 offset:{4*Y_Y}\ns_mov_b64 exec, -1\ns_waitcnt lgkmcnt(0)\nv_readfirstlane_b32 s79, v20")
        e(f"s_cmp_lg_u32 s79, s88\ns_cbranch_scc1 L_ynl")
        self.flag_store(p, "s89")
        e("L_ynl:")
    def convw(self):
        self.role = "conv"
        p = Prog(); e = p.e
        self.conv_start(p)
        self.stamp(p)
        if not self.o.get("skip_kgen"): self.kgen(p)
        else: self.stamp(p)
        self.stamp(p)
        if self.o.get("dly_k"): e(f"s_sleep {self.o['dly_k']}")
        self.conv_setup(p)
        e("s_setprio 0")
        self.inverse(p)
        self.conv(p)
        self.finish(p)
        return p

    def build(self):
        p = Prog(); self.prologue(p)
        p.ext(self.main())
        body = finalize(p)
        q = Prog(); q.e("L_aux:")
        q.e(f"s_cmp_eq_u32 {WV}, 7\ns_cbranch_scc1 L_serv"); q.ext(self.convw())
        body += finalize(q)
        q = Prog(); q.e("L_serv:"); q.ext(self.serv()); q.e("L_end:\nL_last:\ns_endpgm")
        body += finalize(q)
        body = body.replace("@", "")
        ref = open("cdna_kernels/" + NAME + ".s.ref").read()
        head = [l for l in ref.split("\n") if l.startswith(";") and "@launch" not in l]
        k = NAME + "_kernel"
        s = "\n".join(head) + f"\n; @launch grid=(256,1,1) block=(512,1,1) lds={LDS_BYTES}\n"
        s += f'.amdgcn_target "amdgcn-amd-amdhsa--gfx950"\n.text\n.globl {k}\n.p2align 8\n.type {k},@function\n{k}:\n'
        s += body
        s += f""".section .rodata,"a"
.p2align 6
.amdhsa_kernel {k}
  .amdhsa_next_free_vgpr 256
  .amdhsa_next_free_sgpr 102
  .amdhsa_accum_offset 128
  .amdhsa_group_segment_fixed_size 0
  .amdhsa_kernarg_size 136
  .amdhsa_user_sgpr_count 2
  .amdhsa_user_sgpr_kernarg_segment_ptr 1
  .amdhsa_system_sgpr_workgroup_id_x 1
.end_amdhsa_kernel
"""
        return s

if __name__ == "__main__":
    out = sys.argv[1]
    kw = eval("dict(" + (sys.argv[2] if len(sys.argv) > 2 else "") + ")")
    open(out, "w").write(G(**kw).build())
```

```python
import sys, struct
from asmlib import Prog, interleave, finalize

NAME = "parallel_sum__ssm_conv_s4__mixer_token_mlp__prompt"
STAT, TM, F2, F3, F1 = 0x4000, 0x8000, 0x50000, 0x58000, 0x60000
HB, GB, YT, WSEND = 0x80000, 0x300000, 0x4E0000, 0x760000
RINGW, RS = 28672, 7
PT = 1344
REG0, REGSZ = 0, 14976
SYNC = 3 * REGSZ
RING0 = 45056
KCO, R0O, R1O, Q2O, Q3O = 32, 1408, 1408 + 1344, 4096, 4608
Z5O, Z3O, Z9O, Z7O, UO = 0, 3104, 6208, 8288, 10368
LNT = REG0 + 8704
KP = 272
LDS_BYTES = 163840
assert SYNC + 128 <= RING0 and RING0 + 4 * RINGW <= LDS_BYTES
Y_EPI = 3
Y_Y = 16
Y_LN, Y_F1, Y_PART, Y_PUB, Y_P1, Y_G, Y_P2, Y_F2, Y_P3, Y_F3, Y_TAG, Y_U = 0, 1, 2, 4, 5, 6, 7, 8, 9, 10, 11, 12

def fbits(x): return "0x%08x" % struct.unpack("<I", struct.pack("<f", x))[0]
def bf16r(l):
    u = struct.unpack("<I", struct.pack("<f", float(l)))[0]
    u = ((u + 0x7FFF + ((u >> 16) & 1)) >> 16) << 16
    return int(struct.unpack("<f", struct.pack("<I", u))[0])
def ci(l):
    v = bf16r(l)
    if v <= 256: return v
    if v <= 512: return 256 + (v - 256) // 2
    if v <= 1024: return 384 + (v - 512) // 4
    return 512 + (v - 1024) // 8

WG, WV, XCD, IDX, DT, FT, DT2, ST2, TAG, ROT1, ROT2, CH = "s2", "s3", "s4", "s5", "s6", "s7", "s8", "s9", "s10", "s11", "s12", "s13"
SUB, C0, NCH = "s97", "s98", "s99"
SX, SW1, SW2, SOUT, SWS = "s[52:55]", "s[56:59]", "s[60:63]", "s[64:67]", "s[68:71]"
RINGB, REGB = "s73", "s77"
VSY, LANE, L16, L4, VTAG, VZ, VDBG = "v0", "v1", "v2", "v3", "v9", "v10", "v11"

def v(i, n=1): return f"v{i}" if n == 1 else f"v[{i}:{i+n-1}]"
def a(i, n=1): return f"a{i}" if n == 1 else f"a[{i}:{i+n-1}]"

def groups_of(prog):
    groups = []
    for it in prog.items:
        prev = groups[-1][-1][0] if groups else None
        if isinstance(prev, str) and (prev.startswith(("s_add_u32 m0", "s_cmp", "s_sub_u32 s51", "s_mov_b64 exec, s", "s_mov_b64 exec, 1", "ds_write_b128 v125", "ds_add"))):
            groups[-1].append(it)
        else: groups.append([it])
    return groups

def make_perm(n, nw, first, duty0):
    own = list(range(0, n, 2)); oth = list(range(1, n, 2))
    order = [[] for _ in range(nw)]; touched = {}
    pool = own[:]
    for pos in range(first):
        for j in range(nw):
            pass
    deal = [[] for _ in range(nw)]
    k = 0
    for pos in range(first):
        for j in range(nw):
            if pool: st = pool.pop(0)
            else: st = oth.pop(0)
            deal[j].append(st); touched[st] = pos
    rest = pool + oth
    duty = {}
    for i, st in enumerate(rest): duty[(duty0 + i, i % nw)] = st
    for j in range(nw): order[j] = list(deal[j])
    for pos in range(first, n):
        for j in range(nw):
            if (pos, j) in duty: touched[duty[(pos, j)]] = pos
        for j in range(nw):
            if (pos, j) in duty: order[j].append(duty[(pos, j)]); continue
            mine = {st for (pp, jj), st in duty.items() if jj == j and pp > pos}
            cand = [st for st in range(n) if st not in order[j] and st not in mine]
            cand.sort(key=lambda st: (touched.get(st, 99), (st - 2 * j) % n))
            order[j].append(cand[0])
    for o in order: assert sorted(o) == list(range(n)), o
    return order
def pack_perm(o):
    x = sum(st << (4 * i) for i, st in enumerate(o)); return x & 0xffffffff, x >> 32

class G:
    def __init__(self, debug=False, **kw):
        self.debug = debug
        self.o = dict(P1=6, D1=13, PS1=11, lead1=4, xk=8, P2=4, D2=11, PS2=9, lead2=4, wflag="", xflag="", nsp=30, thr=2,
                      ytrig=5, ychk=10, pk=1, psleep=4, psleep2=8, kprio=0, mprio=2, ebpos=0, tch=0, cprio=3, ipf=2, ns1=12, ns2=15, perm=1, duty1=3, duty2=3, oflag='', eb=2, pfirst=1, free1=2, pre1=0, cns=22, nthr=6, pflag='nt', cwait=4)
        self.o.update(kw)
        self.nst = {}; self.nlab = 0; self.role = None
    def stamp(self, p):
        if not self.debug: return
        n = self.nst.get(self.role, 0)
        if n == 0: p.e(f"v_writelane_b32 {VDBG}, s100, 28")
        p.e(("s_memtime" if self.o.get("cyc") else "s_memrealtime") + " s[82:83]\ns_waitcnt lgkmcnt(0)")
        p.e(f"v_writelane_b32 {VDBG}, s82, {n}")
        self.nst[self.role] = n + 1
    def pre(self, p):
        if self.debug and self.o.get("prest"): p.e(f"s_memrealtime s[82:83]\ns_waitcnt lgkmcnt(0)\nv_writelane_b32 {VDBG}, s82, 27")
    def label(self, s):
        self.nlab += 1; return f"L{s}_{self.nlab}"
    def flag_store(self, p, soff, pre=""):
        p.e(f"s_mov_b64 exec, 1\n{pre}buffer_store_dword {VTAG}, {VZ}, {SWS}, {soff} offen sc1\ns_mov_b64 exec, -1")
    def poll(self, p, voff, soff, tmp, wide=False, sleep=0):
        l = self.label("poll"); d = self.label("polld"); f = self.label("pollf")
        p.e("s_mov_b32 s78, 0")
        if sleep: p.e(f"s_branch {f}")
        p.e(f"{l}:")
        if sleep: p.e(f"s_sleep {sleep}\n{f}:")
        if wide:
            p.e(f"buffer_load_dwordx4 {v(tmp,4)}, {voff}, {SWS}, {soff} offen sc1")
            p.e("s_add_u32 s78, s78, 1\ns_waitcnt vmcnt(0)")
            for i in range(4): p.e(f"v_xor_b32 {v(tmp+i)}, {TAG}, {v(tmp+i)}")
            p.e(f"v_or3_b32 {v(tmp)}, {v(tmp)}, {v(tmp+1)}, {v(tmp+2)}\nv_or_b32 {v(tmp)}, {v(tmp)}, {v(tmp+3)}")
            p.e(f"v_cmp_ne_u32 vcc, 0, {v(tmp)}")
        else:
            p.e(f"buffer_load_dword {v(tmp)}, {voff}, {SWS}, {soff} offen sc1")
            p.e("s_add_u32 s78, s78, 1\ns_waitcnt vmcnt(0)")
            p.e(f"v_cmp_ne_u32 vcc, {TAG}, {v(tmp)}")
        p.e(f"s_cmp_gt_u32 s78, 0x8000\ns_cbranch_scc1 {d}\ns_cbranch_vccz {d}\ns_mov_b64 exec, vcc\ns_branch {l}")
        p.e(f"{d}:\ns_mov_b64 exec, -1")
    def sig(self, p, word, tmp):
        p.e(f"v_mov_b32 v{tmp}, 1\ns_mov_b64 exec, 1\nds_add_u32 {VSY}, v{tmp} offset:{4*word}\ns_mov_b64 exec, -1", "sig")
    def spin(self, p, word, n, tmp, sleep=0):
        l = self.label("spin"); d = self.label("spind"); f = self.label("spinf")
        p.e("s_mov_b32 s78, 0")
        if sleep: p.e(f"s_branch {f}")
        p.e(f"{l}:")
        if sleep: p.e(f"s_sleep {sleep}\n{f}:")
        p.e(f"ds_read_b32 v{tmp}, {VSY} offset:{4*word}\ns_add_u32 s78, s78, 1\ns_waitcnt lgkmcnt(0)\nv_readfirstlane_b32 s79, v{tmp}")
        p.e(f"s_cmp_gt_u32 s78, 0x40000\ns_cbranch_scc1 {d}\ns_cmp_lt_u32 s79, {n}\ns_cbranch_scc1 {l}")
        p.e(f"{d}:")
    def mktag(self, p):
        p.e(f"s_mul_i32 {TAG}, {TAG}, 0x9E3779B1\ns_add_u32 {TAG}, {TAG}, 0x7F4A7C15\nv_mov_b32 {VTAG}, {TAG}")
    def finish(self, p):
        e = p.e
        if self.debug:
            e("s_waitcnt vmcnt(0)")
            self.stamp(p)
            e(f"s_lshl_b32 s50, {WG}, 3\ns_add_u32 s50, s50, {WV}\ns_lshl_b32 s50, s50, 7\ns_add_u32 s50, s50, {TM}")
            e(f"s_mov_b32 exec_hi, 0\nbuffer_store_dword {VDBG}, {L4}, {SWS}, s50 offen")
        e("s_endpgm")
    def srd(self, p, d, lo, size): p.e(f"s_mov_b32 s{d}, s{lo}\ns_mov_b32 s{d+1}, s{lo+1}\ns_mov_b32 s{d+2}, {size}\ns_mov_b32 s{d+3}, 0x20000")
    def unpack(self, p, src, dst, n):
        for i in range(n):
            p.e(f"v_lshlrev_b32 v{dst+2*i}, 16, v{src+i}\nv_and_b32 v{dst+2*i+1}, 0xffff0000, v{src+i}")
    def rbf(self, p, r):
        p.e(f"v_cvt_pk_bf16_f32 v{r}, v{r}, v{r}\nv_lshlrev_b32 v{r}, 16, v{r}")

    def prologue(self, p):
        e = p.e
        if self.debug or self.o.get("hold"): e("s_memrealtime s[100:101]")
        e(f"s_cmp_ge_u32 {WG}, 256\ns_cbranch_scc1 L_end")
        e("s_load_dwordx16 s[16:31], s[0:1], 0\ns_load_dwordx16 s[32:47], s[0:1], 64\ns_load_dwordx2 s[48:49], s[0:1], 128")
        e(f"v_and_b32 {LANE}, 63, v0\nv_lshrrev_b32 v12, 6, v0\nv_readfirstlane_b32 {WV}, v12")
        if self.o["ipf"]:
            n = self.o["ipf"]
            e(f"s_cmp_lg_u32 {WV}, 7\ns_cbranch_scc1 L_noipf")
            e(f"s_getpc_b64 s[90:91]\nL_pc:\ns_bfe_u32 s51, {WG}, {(n << 16) | 3:#x}\ns_lshl_b32 s51, s51, 13")
            e(f"v_lshl_add_u32 v112, {LANE}, 7, s51\nv_min_u32 v112, L_last-L_pc, v112")
            e("v_mov_b32 v113, s91\nv_add_co_u32 v112, vcc, s90, v112\nv_addc_co_u32 v113, vcc, 0, v113, vcc")
            e("@global_load_dword v114, v[112:113], off\nL_noipf:")
        e(f"v_lshlrev_b32 {L16}, 4, {LANE}\nv_lshlrev_b32 {L4}, 2, {LANE}\nv_mov_b32 {VZ}, 0\nv_mov_b32 {VDBG}, 0\nv_mov_b32 {VSY}, {SYNC}")
        e(f"s_and_b32 {XCD}, {WG}, 7\ns_lshr_b32 {IDX}, {WG}, 3\ns_lshr_b32 {SUB}, {XCD}, 1\ns_and_b32 s14, {XCD}, 1")
        e(f"s_min_u32 s15, {IDX}, 29\ns_mul_i32 {FT}, s15, 52\ns_lshr_b32 {FT}, {FT}, 8")
        e(f"s_mul_i32 s51, {FT}, 5\ns_sub_u32 {DT}, s15, s51")
        if self.o["perm"]: P1_ = make_perm(16, 5, 2, self.o["duty1"])
        else: P1_ = [[(((2 * j * 205) >> 7) + i) % 16 for i in range(16)] for j in range(5)]
        for j, o_ in enumerate(P1_):
            lo, hi = pack_perm(o_)
            if j == 0: e(f"s_mov_b32 s74, {lo:#x}\ns_mov_b32 s75, {hi:#x}")
            else: e(f"s_cmp_eq_u32 {DT}, {j}\ns_cselect_b32 s74, {lo:#x}, s74\ns_cselect_b32 s75, {hi:#x}, s75")
        e("s_mul_i32 s51, s14, 0x11111111\ns_xor_b32 s74, s74, s51\ns_xor_b32 s75, s75, s51")
        e(f"s_mul_i32 {C0}, {FT}, 3\ns_min_u32 {C0}, {C0}, 14\ns_cmp_lt_u32 {FT}, 4\ns_cselect_b32 {NCH}, 3, 2\ns_cmp_ge_u32 {IDX}, 30\ns_cselect_b32 {NCH}, 0, {NCH}")
        e(f"s_mul_i32 s51, s14, 5\ns_add_u32 {DT}, {DT}, s51\ns_mul_i32 s51, {SUB}, 6\ns_add_u32 {FT}, {FT}, s51")
        e(f"s_and_b32 {DT2}, {IDX}, 3\ns_lshr_b32 {ST2}, {IDX}, 2")
        e(f"s_lshl2_add_u32 {DT2}, s14, {DT2}\ns_lshl3_add_u32 {ST2}, {SUB}, {ST2}")
        e(f"s_cmp_ge_u32 {WV}, 4\ns_cbranch_scc1 L_aux")

    def kk(self, p, g, ks, dst, stride, base):
        p.e(f"s_bfe_u32 {dst}, s{(74 if g == 1 else 80) + ks // 8}, {(4 << 16) | (4 * (ks % 8)):#x}")
        p.e(f"s_mul_i32 {dst}, {dst}, {stride}")
        if base: p.e(f"s_add_u32 {dst}, {dst}, {base}")
    def slot(self, g, ks): return ((ks + (3 if g == 2 else 0)) % RS) * 4096
    def throttle(self, p):
        l = self.label("thr")
        p.e(f"s_cmp_lg_u32 s85, 0\ns_cbranch_scc1 {l}")
        p.e(f"@ds_read_b32 v20, {VSY} offset:{4*Y_PUB}\n@s_waitcnt vmcnt({self.o['thr']}) lgkmcnt(0)\nv_readfirstlane_b32 s85, v20\ns_nop 0\ns_lshr_b32 s85, s85, 1")
        p.e(f"{l}:")
    def dma(self, g, ks, thr=False):
        p = Prog()
        rs, vo, srd, base = (3072, 4, SW1, "s84") if g == 1 else (4096, 12, SW2, "s92")
        self.kk(p, g, ks, "s72", 32 * rs, base)
        for q in range(4):
            if thr and q % 2 == 0: self.throttle(p)
            p.e(f"s_add_u32 m0, {RINGB}, {self.slot(g, ks) + q * 1024}")
            p.e(f"buffer_load_dwordx4 v{vo + (q & 1)}, {srd}, s72 offen {self.o['wflag']} lds", f"w{g}_{ks}")
            if q < 3: p.e(f"s_add_u32 s72, s72, {8*rs}")
        return p
    NB = {1: 6, 2: 4}
    def tr(self, g, ks):
        p = Prog()
        r = 16 * (ks % self.NB[g]); o = self.slot(g, ks)
        p.wvm(f"w{g}_{ks}")
        for ss in range(4):
            p.e(f"ds_read_b64_tr_b16 {a(r+4*ss,2)}, v{14+ss} offset:{o}", f"t{g}_{ks}")
            p.e(f"ds_read_b64_tr_b16 {a(r+4*ss+2,2)}, v{14+ss} offset:{o+512}", f"t{g}_{ks}")
        return p
    def main_start(self, p):
        e = p.e
        e("s_setprio 3")
        e(f"s_mul_i32 {RINGB}, {WV}, {RINGW}\ns_add_u32 {RINGB}, {RINGB}, {RING0}\ns_mov_b32 s85, 0")
        e(f"v_lshrrev_b32 v20, 3, {LANE}\nv_and_b32 v21, 7, {LANE}\nv_and_b32 v22, 2, v20\nv_xor_b32 v21, v21, v22\nv_lshlrev_b32 v21, 4, v21")
        e("v_mul_u32_u24 v4, 3072, v20\nv_add_u32 v4, v4, v21\nv_xor_b32 v5, 64, v4\nv_lshl_add_u32 v12, v20, 12, v21\nv_xor_b32 v13, 64, v12")
        e(f"s_mul_i32 s84, {WV}, {512*3072}\ns_lshl_b32 s51, {FT}, 7\ns_add_u32 s84, s84, s51")
        e(f"s_mul_i32 s92, {WV}, {384*4096}\ns_lshl_b32 s51, {ST2}, 7\ns_add_u32 s92, s92, s51")
        e(f"v_lshrrev_b32 v104, 5, {LANE}\nv_mul_u32_u24 v105, 1280, v104\nv_and_b32 v106, 31, {LANE}")
        e("v_lshl_add_u32 v107, v106, 4, v105\nv_lshl_add_u32 v108, v106, 3, v105")
        e(f"s_lshl_b32 s50, {WG}, 3\ns_lshl1_add_u32 s50, {WV}, s50\ns_mul_i32 s50, s50, 1280")
        e("s_waitcnt lgkmcnt(0)")
        if self.o.get("hold"): e("s_mov_b32 s96, s100")
        if self.o.get("gmin"):
            e(f"s_not_b32 s51, s100\nv_mov_b32 v30, s51\ns_mov_b64 exec, 1\n@global_atomic_umax {VZ}, v30, s[46:47]\ns_mov_b64 exec, -1")
        self.srd(p, 52, 16, 2621440)
        xf = self.o["xflag"]
        e(f"buffer_load_dwordx4 v[20:23], v107, {SX}, s50 offen {xf}", "x")
        e(f"buffer_load_dwordx4 v[24:27], v107, {SX}, s50 offen offset:512 {xf}", "x")
        e(f"buffer_load_dwordx2 v[28:29], v108, {SX}, s50 offen offset:1024 {xf}", "x")
        self.pre(p)
        e("s_barrier")
        self.srd(p, 56, 36, 6291456); self.srd(p, 60, 40, 6291456); self.srd(p, 64, 44, 2621440); self.srd(p, 68, 48, WSEND)
        self.stamp(p)
    def main_setup2(self, p):
        e = p.e
        e(f"v_bfe_u32 v20, {LANE}, 2, 2\nv_and_b32 v21, 3, {LANE}\nv_lshrrev_b32 v22, 4, {LANE}\nv_and_b32 v23, 15, {LANE}")
        e("v_lshlrev_b32 v24, 10, v22\nv_lshl_add_u32 v24, v20, 7, v24\nv_lshl_add_u32 v24, v21, 3, v24")
        e(f"v_lshrrev_b32 v20, 1, v20\nv_and_b32 v21, 1, v22\nv_lshl_or_b32 v20, v21, 1, v20\nv_xor_b32 v20, {WV}, v20\nv_lshlrev_b32 v20, 5, v20")
        e(f"v_add3_u32 v14, v24, v20, {RINGB}\nv_xor_b32 v15, 32, v14\nv_xor_b32 v16, 64, v14\nv_xor_b32 v17, 0x60, v14")
        e(f"s_lshl_b32 s51, {FT}, 7\ns_lshl_b32 s15, {WV}, 5\ns_add_u32 s51, s51, s15\nv_lshl_add_u32 v24, v22, 3, s51")
        e("global_load_dwordx2 v[126:127], v24, s[38:39]", "b1")
        e(f"v_mul_u32_u24 v19, 10240, v22\nv_lshl_add_u32 v19, v23, 4, v19\ns_lshl_b32 s51, {SUB}, 8\nv_add_u32 v120, s51, v19")
        e("v_xor_b32 v121, 0x100, v120\nv_xor_b32 v122, 0x200, v120\nv_xor_b32 v123, 0x300, v120")
        e(f"v_lshrrev_b32 v24, 1, v22\nv_mul_u32_u24 v24, 10240, v24\nv_lshl_add_u32 v24, v23, 4, v24\nv_xor_b32 v25, {SUB}, v21\nv_lshl_add_u32 v6, v25, 8, v24\nv_xor_b32 v7, 0x200, v6")
        e(f"v_subrev_u32 v124, {C0}, v23\nv_mul_u32_u24 v124, {REGSZ}, v124\nv_lshl_add_u32 v124, v22, 4, v124")
        e(f"s_lshl_b32 s51, {WV}, 10\ns_add_u32 s51, s51, {REG0 + UO + 512}\nv_add_u32 v124, s51, v124")
        e(f"s_bfm_b32 s100, {NCH}, {C0}\ns_lshl_b32 s51, s100, 16\ns_or_b32 s100, s100, s51\ns_mov_b32 s101, s100")
        e("v_mul_u32_u24 v18, 1280, v23\nv_lshl_add_u32 v18, v22, 3, v18\nv_lshlrev_b32 v115, 12, v23\nv_lshl_add_u32 v115, v21, 4, v115")
        e(f"s_lshl_b32 s94, {ST2}, 6\ns_lshl_b32 s51, {WV}, 4\ns_add_u32 s94, s94, s51\ns_lshl_b32 s95, s94, 1\nv_lshl_add_u32 v8, v23, 1, s95")
        e(f"s_mul_i32 s94, s94, 1280\ns_mul_i32 s51, {DT2}, 160\ns_add_u32 s94, s94, s51")
        e("v_lshlrev_b32 v24, 3, v22\nv_sub_u32 v24, v23, v24\nv_and_b32 v25, 1, v24\nv_lshlrev_b32 v25, 4, v25\nv_mov_b32 v26, 0x3f80\nv_lshlrev_b32 v25, v25, v26\nv_ashrrev_i32 v24, 1, v24")
        for q in range(4): e(f"v_cmp_eq_u32 vcc, {q}, v24\nv_cndmask_b32 v{116+q}, 0, v25, vcc")
        for q in range(4): e(f"v_cmp_eq_i32 vcc, {q-8}, v24\nv_cndmask_b32 v{104+q}, 0, v25, vcc")
        e("v_lshl_add_u32 v108, v22, 3, v18")
        e("global_load_ushort v114, v8, s[42:43]", "b1")
        if self.o["perm"]: P2_ = make_perm(12, 4, 2, self.o["duty2"])
        else: P2_ = [[(3 * j + i) % 12 for i in range(12)] for j in range(4)]
        e(f"s_and_b32 s15, {IDX}, 3")
        for j, o_ in enumerate(P2_):
            lo, hi = pack_perm(o_)
            if j == 0: e(f"s_mov_b32 s80, {lo:#x}\ns_mov_b32 s81, {hi:#x}")
            else: e(f"s_cmp_eq_u32 s15, {j}\ns_cselect_b32 s80, {lo:#x}, s80\ns_cselect_b32 s81, {hi:#x}, s81")
        e(f"s_and_b32 s51, {XCD}, 1\ns_mul_i32 s51, s51, 0x11111111\ns_xor_b32 s80, s80, s51\ns_xor_b32 s81, s81, s51")
        e(f"s_mul_i32 s86, {WV}, {64*10240}\ns_lshl_b32 s51, {DT}, 10\ns_add_u32 s86, s86, s51\ns_add_u32 s86, s86, {HB}")
    def acc1(self, t, ds): return [v(72 + 4 * ds, 4), v(88 + 4 * ds, 4), a(96 + 4 * ds, 4), a(112 + 4 * ds, 4)][t]
    def acc2(self, di, ss): return v(84 + 4 * di, 4) if ss == 0 else a(68 + 4 * (di * 3 + ss - 1), 4)

    def gemm_loop(self, p, g, nks, nf, ns, nd, nt, ld, mfma, extra):
        NB = self.NB[g]; n = nks * nf
        for i in range(ns): p.ext(ld(i))
        nl = ns
        for ks in range(nks):
            side = Prog()
            if nd < nks and nd - RS < nt:
                if nd >= RS: side.wlg(f"t{g}_{nd-RS}")
                side.ext(self.dma(g, nd)); nd += 1
            if nt < nks and nt < nd and nt - NB < ks:
                side.ext(self.tr(g, nt)); nt += 1
            pre, post = extra(ks)
            gs = groups_of(pre) + groups_of(side)
            p.wlg(f"t{g}_{ks}")
            gi = 0; tot = 3 * nf
            for di in range(nf):
                p.wvm(f"act{ks}_{di}")
                for ss in range(4):
                    p.e(mfma(ks, di, ss))
                    if ss == 0:
                        if nf * ks + di >= 1 and nl < n: p.ext(ld(nl)); nl += 1
                    else:
                        sl = di * 3 + ss
                        while gi < len(gs) and gi < (sl * len(gs) + tot - 1) // tot:
                            p.items.extend(gs[gi]); gi += 1
            assert gi == len(gs)
            p.ext(post)
        assert nl == n and nd == nks and nt == nks

    def gemm1(self, p):
        e = p.e; o = self.o
        HR, ns = 24, o['ns1']
        nd = o['free1']
        def more():
            nonlocal nd
            if nd >= RS: p.wlg(f"t1_{nd-RS}")
            p.ext(self.dma(1, nd, thr=nd < o['nthr'])); nd += 1
            if nd == o["PS1"]: self.sig(p, Y_P1, 20)
            if o.get("fine"): self.stamp(p)
        while nd < o["lead1"]: more()
        p.wvm("b1")
        for ds in range(4): self.unpack(p, 126, 72 + 4 * ds, 2)
        for j in range(o["P1"]):
            p.ext(self.tr(1, j))
            if j == 2 and not o.get('fine'): self.stamp(p)
            if nd < o["D1"]: more()
        while nd < o["D1"]:
            p.wvm(f"w1_{nd-o['lead1']}"); more()
        self.stamp(p)
        self.spin(p, Y_F1, 1, 20, sleep=1)
        e(f"ds_read_b32 {VTAG}, {VSY} offset:{4*Y_TAG}\ns_setprio 2", "tag")
        self.stamp(p)
        def ld(i):
            ks, ds = divmod(i, 4); q = Prog()
            if ds == 0: self.kk(q, 1, ks, "s76", 40960, "s86")
            q.e(f"buffer_load_dwordx4 {v(HR + 4 * (i % ns), 4)}, v{120+ds}, {SWS}, s76 offen sc1", f"act{ks}_{ds}")
            return q
        def mfma(ks, ds, t):
            c = self.acc1(t, ds); src = "0" if (ks == 0 and t > 0) else c
            return f"v_mfma_f32_16x16x32_bf16 {c}, {a(16*(ks%6)+4*t,4)}, {v(HR + 4 * ((4*ks+ds) % ns), 4)}, {src}"
        def extra(ks):
            pre = Prog(); post = Prog()
            q = Prog(); self.kk(q, 1, ks, "s14", 64, None); q.e("v_add_u32 v125, s14, v124")
            q.e(f"s_mov_b64 exec, s[100:101]\nds_write_b128 v125, {v(HR + 4 * ((4 * ks) % ns), 4)}\ns_mov_b64 exec, -1", "uc")
            self._uc = q
            if ks % 4 == 3: self.sig(pre, Y_U + ks // 4, 20)
            if ks in (0, 5, 10): self.stamp(post)
            return pre, post
        def mfma_uc(ks, ds, t):
            s = mfma(ks, ds, t)
            if ds == 0 and t == 0: s = s + "\n" + "\n".join(x for x, _ in self._uc.items)
            return s
        self.gemm_loop(p, 1, 16, 4, ns, nd, o["P1"], ld, mfma_uc, extra)
        self.stamp(p)
    def gemm1_epi(self, p):
        e = p.e; RD = 24
        if self.o["ebpos"] == 0:
            for ks in range(self.o["eb"]): p.ext(self.dma(2, ks))
        e(f"v_add_u32 v20, {RINGB}, {L16}")
        for t in range(1, 4):
            for ds in range(4): e(f"ds_write_b128 v20, {self.acc1(t, ds)} offset:{(t-1)*4096+ds*1024}", "r1w")
        self.sig(p, Y_PART, 21)
        if self.o["ebpos"] == 1:
            for ks in range(self.o["eb"]): p.ext(self.dma(2, ks))
        for t in range(1, 4):
            e(f"s_xor_b32 s51, {WV}, {t}\ns_mul_i32 s51, s51, {RINGW}\ns_add_u32 s51, s51, {RING0 + (t-1)*4096}\nv_add_u32 v{20+t}, s51, {L16}")
        e(f"s_lshl_b32 s50, {FT}, 3\ns_lshl_b32 s51, {WV}, 1\ns_add_u32 s50, s50, s51\ns_mul_i32 s50, s50, 10240")
        e(f"s_lshl_b32 s51, {DT}, 10\ns_add_u32 s50, s50, s51\ns_add_u32 s86, s50, {GB}")
        e(f"s_mul_i32 s89, {DT}, 24\ns_add_u32 s89, s89, {FT}\ns_lshl_b32 s89, s89, 7\ns_add_u32 s89, s89, {F2}")
        c1 = -2 * 0.7978845608028654 * 1.4426950408889634; c3 = c1 * 0.044715
        e(f"s_mov_b32 s90, {fbits(c3)}\nv_mov_b32 v126, {fbits(c1)}")
        self.spin(p, Y_PART, 4, 20)
        for q in range(4):
            for t in range(3): e(f"ds_read_b128 {v(RD+16*t+4*q,4)}, v{21+t} offset:{q*1024}", f"r1r{q}")
        if self.o["ebpos"] == 2:
            for ks in range(self.o["eb"]): p.ext(self.dma(2, ks))
        for pr in range(2):
            p.wlg(f"r1r{2*pr+1}")
            q = [(72 + 8 * pr + i, RD + 8 * pr + i, 88 + 8 * pr + i) for i in range(8)]
            for x, r, t in q: e(f"v_add_f32 v{x}, v{x}, v{r}\nv_add_f32 v{r+16}, v{r+16}, v{r+32}")
            for x, r, t in q: e(f"v_add_f32 v{x}, v{x}, v{r+16}")
            for x, r, t in q: e(f"v_mul_f32 v{t}, v{x}, v{x}")
            for x, r, t in q: e(f"v_fma_f32 v{t}, v{t}, s90, v126")
            for x, r, t in q: e(f"v_mul_f32 v{t}, v{t}, v{x}")
            for x, r, t in q: e(f"v_exp_f32 v{t}, v{t}")
            for x, r, t in q: e(f"v_add_f32 v{t}, 1.0, v{t}")
            for x, r, t in q: e(f"v_rcp_f32 v{t}, v{t}")
            for x, r, t in q: e(f"v_mul_f32 v{t}, v{t}, v{x}")
            o = 56 + 8 * pr
            for i in range(4): e(f"v_cvt_pk_bf16_f32 v{o+i}, v{q[2*i][2]}, v{q[2*i+1][2]}")
            e(f"v_permlane16_swap_b32 v{o}, v{o+2}\nv_permlane16_swap_b32 v{o+1}, v{o+3}")
            e(f"buffer_store_dwordx4 {v(o,4)}, v{6+pr}, {SWS}, s86 offen sc1", "gs")
        self.sig(p, Y_EPI, 20)
        self.stamp(p)
        for ks in range(min(self.o["eb"], self.o["P2"])): p.ext(self.tr(2, ks))
        e("s_waitcnt vmcnt(0)")
        l = self.label("nolast")
        e(f"v_mov_b32 v20, 1\ns_mov_b64 exec, 1\nds_add_rtn_u32 v20, {VSY}, v20 offset:{4*Y_G}\ns_mov_b64 exec, -1\ns_waitcnt lgkmcnt(0)\nv_readfirstlane_b32 s79, v20")
        e(f"s_cmp_lg_u32 s79, 3\ns_cbranch_scc1 {l}")
        self.flag_store(p, "s89", "@")
        e(f"{l}:")
        self.stamp(p)
    def gemm2(self, p, spare):
        e = p.e; o = self.o
        GR, ns = 24, o['ns2']
        e(f"s_mul_i32 s86, {WV}, {48*10240}\ns_mul_i32 s51, {DT2}, 1280\ns_add_u32 s86, s86, s51\ns_add_u32 s86, s86, {GB}")
        e(f"s_mul_i32 s88, {DT2}, {80*4096}\ns_add_u32 s88, s88, s95\ns_add_u32 s88, s88, {YT}")
        nd = o["eb"]; nt = min(o["eb"], o["P2"])
        e("v_lshlrev_b32 v114, 16, v114")
        for i in range(20): e(f"v_mov_b32 v{84+i}, v114")
        self.spin(p, Y_G, 4, 20)
        def more():
            nonlocal nd
            if nd >= RS: p.wlg(f"t2_{nd-RS}")
            p.ext(self.dma(2, nd)); nd += 1
            if nd == o["PS2"]: self.sig(p, Y_P2, 20)
        while nd < min(o["D2"], nt + o["lead2"]): more()
        while nt < o["P2"]:
            p.ext(self.tr(2, nt)); nt += 1
            if nd < o["D2"]: more()
        while nd < o["D2"]:
            p.wvm(f"w2_{nd-o['lead2']}"); more()
        self.stamp(p)
        self.spin(p, Y_F2, 1, 20, sleep=1)
        self.stamp(p)
        def ld(i):
            ks, di = divmod(i, 5); q = Prog()
            if di == 0: self.kk(q, 2, ks, "s76", 40960, "s86")
            q.e(f"buffer_load_dwordx4 {v(GR + 4 * (i % ns), 4)}, v19, {SWS}, s76 offen offset:{256*di} sc1", f"act{ks}_{di}")
            return q
        def mfma(ks, di, ss):
            c = self.acc2(di, ss); src = "0" if (ks == 0 and ss > 0) else c
            return f"v_mfma_f32_16x16x32_bf16 {c}, {v(GR + 4 * ((5*ks+di) % ns), 4)}, {a(16*(ks%4)+4*ss,4)}, {src}"
        yk = o["ychk"]; assert yk >= 9
        xr = lambda j: [v(120, 4), v(124, 4), v(110, 4)][j]
        def extra(ks):
            pre = Prog(); post = Prog()
            if ks == o["ytrig"]: self.sig(post, Y_P3, 20)
            if ks == o["xk"]:
                for j in range(3): post.e(f"buffer_load_dwordx4 {xr(j)}, v108, {SX}, s94 offen offset:{64*j}", f"x{j}")
            if ks == yk:
                self.spin(post, Y_F3, 1, 20, sleep=2)
                for di in range(5):
                    post.e(f"buffer_load_dwordx4 {a(4*di,4)}, v115, {SWS}, s88 offen sc1", f"y{di}")
                    post.e("s_add_u32 s88, s88, 65536")
            if ks in (0, 3, 7): self.stamp(post)
            return pre, post
        self.gemm_loop(p, 2, 12, 5, ns, nd, nt, ld, mfma, extra)
        self.stamp(p)
        e(f"v_add_u32 v20, {RINGB}, {L16}")
        for t in range(1, 4):
            for di in range(5): e(f"ds_write_b128 v20, {self.acc2(di,t)} offset:{(t-1)*5120+di*1024}", "r2w")
        for t in range(1, 4):
            e(f"s_xor_b32 s51, {WV}, {t}\ns_mul_i32 s51, s51, {RINGW}\ns_add_u32 s51, s51, {RING0 + (t-1)*5120}\nv_add_u32 v{20+t}, s51, {L16}")
        for di in range(5):
            p.wvm(f"x{di//2}")
            e(f"v_mfma_f32_16x16x32_bf16 {self.acc2(di,0)}, {v(104 if di & 1 else 116, 4)}, {xr(di//2)}, {self.acc2(di,0)}")
        for di in range(5):
            p.wvm(f"y{di}")
            e(f"v_mfma_f32_16x16x32_bf16 {self.acc2(di,0)}, {a(4*di,4)}, v[116:119], {self.acc2(di,0)}")
        e("s_waitcnt lgkmcnt(0)\ns_barrier")
        for di in range(5):
            for t in range(3): e(f"ds_read_b128 {v(GR+12*di+4*t,4)}, v{21+t} offset:{di*1024}", f"r2r{di}")
        for di in range(5):
            c = 84 + 4 * di; r = GR + 12 * di
            p.wlg(f"r2r{di}")
            for hq in range(2): e(f"v_pk_add_f32 {v(r+2*hq,2)}, {v(r+2*hq,2)}, {v(r+4+2*hq,2)}\nv_pk_add_f32 {v(c+2*hq,2)}, {v(c+2*hq,2)}, {v(r+8+2*hq,2)}")
            for hq in range(2): e(f"v_pk_add_f32 {v(c+2*hq,2)}, {v(c+2*hq,2)}, {v(r+2*hq,2)}")
            for hq in range(2): e(f"v_cvt_pk_bf16_f32 v{104+2*di+hq}, v{c+2*hq}, v{c+2*hq+1}")
            e(f"buffer_store_dwordx2 {v(104+2*di,2)}, v18, {SOUT}, s94 offen offset:{32*di} {o['oflag']}", "os")
        self.stamp(p)

    def main(self):
        self.role = "main"
        p = Prog(); e = p.e
        self.main_start(p)
        for ks in range(self.o["pre1"]): p.ext(self.dma(1, ks))
        self.ln(p)
        e(f"s_setprio {self.o['mprio']}")
        for ks in range(self.o["pre1"], self.o["free1"]): p.ext(self.dma(1, ks))
        self.stamp(p)
        self.main_setup2(p)
        e(f"s_cmp_lt_u32 {IDX}, 30\ns_cbranch_scc1 L_g1")
        q = Prog()
        q.e("s_waitcnt vmcnt(0)")
        self.spin(q, Y_PUB, 2, 20, sleep=4)
        for ks in range(self.o["eb"]): q.ext(self.dma(2, ks))
        for ks in range(min(self.o["eb"], self.o["P2"])): q.ext(self.tr(2, ks))
        self.sig(q, Y_G, 20)
        q.e("s_waitcnt vmcnt(0) lgkmcnt(0)\ns_branch L_g2")
        for line in finalize(q).split("\n"):
            if line.strip(): e(line.strip() if line.strip().endswith(":") else "@" + line.strip())
        e("L_g1:")
        self.gemm1(p)
        self.gemm1_epi(p)
        e("L_g2:")
        self.gemm2(p, False)
        e(f"s_or_b32 s51, {WG}, {WV}\ns_cmp_lg_u32 s51, 0\ns_cbranch_scc1 L_noep")
        e(f"s_mov_b64 exec, 1\nbuffer_store_dword {VTAG}, {VZ}, {SWS}, 0 offen\ns_mov_b64 exec, -1")
        e("L_noep:")
        if self.o.get("gmin"):
            e(f"global_load_dword v30, {VZ}, s[46:47] sc1\ns_waitcnt vmcnt(0)\nv_readfirstlane_b32 s96, v30\ns_nop 1\ns_not_b32 s96, s96")
        if self.o.get("hold"):
            e(f"L_hold:\ns_memrealtime s[82:83]\ns_waitcnt lgkmcnt(0)\ns_sub_u32 s82, s82, s96\ns_cmp_lt_u32 s82, {self.o['hold']}\ns_cbranch_scc1 L_hold")
        self.finish(p)
        return p

    def red32(self, p, regs, tmp):
        for m in ("quad_perm:[1,0,3,2]", "quad_perm:[2,3,0,1]", "row_half_mirror", "row_mirror"):
            for r in regs: p.e(f"v_add_f32_dpp v{r}, v{r}, v{r} {m} row_mask:0xf bank_mask:0xf")
        for i, r in enumerate(regs): p.e(f"v_mov_b32 v{tmp+i}, v{r}")
        for i, r in enumerate(regs): p.e(f"v_permlane16_swap_b32 v{r}, v{tmp+i}")
        for i, r in enumerate(regs): p.e(f"v_add_f32 v{r}, v{r}, v{tmp+i}")
    RAW = [4, 5, 6, 7, 8, 12, 13, 14, 15, 16, 17, 18]
    def conv_start(self, p):
        e = p.e; RAW = self.RAW
        e(f"s_sub_u32 s14, {WV}, 4\ns_cmp_ge_u32 s14, {NCH}\ns_cbranch_scc1 L_end\ns_setprio {self.o['kprio']}")
        e(f"s_lshl_b32 {CH}, {DT}, 6\ns_lshl4_add_u32 {CH}, {SUB}, {CH}\ns_add_u32 {CH}, {CH}, {C0}\ns_add_u32 {CH}, {CH}, s14")
        e(f"s_mul_i32 {REGB}, s14, {REGSZ}\ns_add_u32 {REGB}, {REGB}, {REG0}")
        e(f"s_mul_i32 s51, {CH}, 384\nv_add_u32 v110, s51, {L4}\nv_lshlrev_b32 v111, 1, {LANE}\nv_add_u32 v111, s51, v111")
        e(f"s_lshr_b32 s79, {CH}, 1\ns_lshl_b32 s79, s79, 2")
        e("s_waitcnt lgkmcnt(0)")
        e(f"s_load_dword s80, s[30:31], s79\ns_load_dword s81, s[32:33], s79")
        if not self.o["pfirst"]: e("s_barrier")
        for i in range(6):
            e(f"global_load_dword v{RAW[2*i]}, v110, s[{18+2*i}:{19+2*i}] {self.o['pflag']}")
            e(f"global_load_ushort v{RAW[2*i+1]}, v111, s[{18+2*i}:{19+2*i}] offset:256 {self.o['pflag']}")
        self.pre(p)
        if self.o["pfirst"]: e("s_barrier")
        self.srd(p, 68, 48, WSEND)
        e("s_waitcnt lgkmcnt(0)")
    def serv_start(self, p):
        e = p.e
        e("s_setprio 3")
        e(f"v_add_u32 v109, {SYNC}, {L4}\ns_mov_b32 exec_hi, 0\nds_write_b32 v109, {VZ}\ns_mov_b64 exec, -1")
        e("s_waitcnt lgkmcnt(0)")
        self.pre(p)
        e(f"s_load_dword {TAG}, s[48:49], 0")
        e("s_barrier")
        self.srd(p, 60, 40, 6291456); self.srd(p, 68, 48, WSEND)
        if self.o["tch"]:
            self.srd(p, 56, 36, 6291456); self.srd(p, 64, 44, 2621440)
            e(f"v_lshlrev_b32 v100, {self.o['tch']}, {LANE}\nv_add_u32 v100, 0x3000, v100")
            for i, srd in enumerate((SWS, SW1, SW2, SOUT)): e(f"buffer_load_dword v{101+i}, v100, {srd}, 0 offen")
            e(f"global_load_dword v105, {VZ}, s[38:39]\nglobal_load_dword v106, {VZ}, s[42:43]")
    def ln(self, p):
        e = p.e
        RAW, F, D, T, H = 20, 30, 50, 70, 90
        inv = fbits(1.0 / 640)
        e(f"s_lshr_b32 s51, {WV}, 1\ns_mul_i32 s51, s51, {REGSZ}\ns_and_b32 s15, {WV}, 1\ns_mul_i32 s15, s15, {2*PT}\ns_add_u32 s51, s51, s15\ns_add_u32 s51, s51, {LNT}")
        e(f"v_mul_u32_u24 v102, {PT}, v104\nv_add_u32 v102, s51, v102\nv_lshl_add_u32 v101, v106, 3, v102\nv_lshl_add_u32 v100, v106, 4, v102")
        p.wvm("x")
        self.stamp(p)
        self.unpack(p, RAW, F, 10)
        def psum(src, dst):
            e(f"v_pk_add_f32 {v(dst,2)}, {v(src,2)}, {v(src+2,2)}\nv_pk_add_f32 {v(dst+2,2)}, {v(src+4,2)}, {v(src+6,2)}")
            for i in range(4, 10): e(f"v_pk_add_f32 {v(dst+2*(i&1),2)}, {v(dst+2*(i&1),2)}, {v(src+2*i,2)}")
            e(f"v_pk_add_f32 {v(dst,2)}, {v(dst,2)}, {v(dst+2,2)}\nv_add_f32 v{dst}, v{dst}, v{dst+1}")
        def psq(src, dst):
            e(f"v_pk_mul_f32 {v(dst,2)}, {v(src,2)}, {v(src,2)}\nv_pk_mul_f32 {v(dst+2,2)}, {v(src+2,2)}, {v(src+2,2)}")
            for i in range(2, 10): e(f"v_pk_fma_f32 {v(dst+2*(i&1),2)}, {v(src+2*i,2)}, {v(src+2*i,2)}, {v(dst+2*(i&1),2)}")
            e(f"v_pk_add_f32 {v(dst,2)}, {v(dst,2)}, {v(dst+2,2)}\nv_add_f32 v{dst}, v{dst}, v{dst+1}")
        def rstd(var, out):
            e(f"v_max_f32 v{var}, 0, v{var}")
            self.rbf(p, var); e(f"v_add_f32 v{var}, {fbits(1e-5)}, v{var}"); self.rbf(p, var)
            e(f"v_sqrt_f32 v{var}, v{var}"); self.rbf(p, var); e(f"v_rcp_f32 v{out}, v{var}")
        psum(F, T); self.red32(p, [T], T + 2)
        e(f"v_mul_f32 v{T}, {inv}, v{T}\nv_mov_b32 v{T+4}, v{T}"); self.rbf(p, T + 4)
        for i in range(10): e(f"v_pk_add_f32 {v(D+2*i,2)}, {v(F+2*i,2)}, {v(T+4,2)} op_sel_hi:[1,0] neg_lo:[0,1] neg_hi:[0,1]")
        e(f"v_sub_f32 v{T+5}, v{T}, v{T+4}")
        psq(D, T); self.red32(p, [T], T + 2)
        e(f"v_mul_f32 v{T}, {inv}, v{T}\nv_fma_f32 v{T}, -v{T+5}, v{T+5}, v{T}")
        rstd(T, T + 6)
        for i in range(10): e(f"v_pk_mul_f32 {v(D+2*i,2)}, {v(D+2*i,2)}, {v(T+6,2)} op_sel_hi:[1,0]")
        for i in range(10): e(f"v_cvt_pk_bf16_f32 v{RAW+i}, v{D+2*i}, v{D+2*i+1}")
        self.unpack(p, RAW, F, 10)
        psum(F, T); psq(F, T + 4); self.red32(p, [T, T + 4], T + 2)
        e(f"v_mul_f32 v{T}, {inv}, v{T}\nv_mul_f32 v{T+4}, {inv}, v{T+4}\nv_fma_f32 v{T+4}, -v{T}, v{T}, v{T+4}")
        self.rbf(p, T)
        rstd(T + 4, T + 6)
        e(f"v_mul_f32 v{T+2}, v{T}, v{T+6}\nv_lshrrev_b32 v{T+4}, 16, v{T+4}\nv_or_b32 v{T+4}, v{T+4}, v{T}")
        for i in range(10): e(f"v_pk_fma_f32 {v(D+2*i,2)}, {v(F+2*i,2)}, {v(T+6,2)}, {v(T+2,2)} op_sel_hi:[1,0,0] neg_lo:[0,0,1] neg_hi:[0,0,1]")
        e(f"ds_write_b32 v102, v{T+4} offset:1280", "lnw")
        for i in range(10): e(f"v_cvt_pk_bf16_f32 v{H+i}, v{D+2*i}, v{D+2*i+1}")
        e(f"ds_write_b128 v100, {v(H,4)}\nds_write_b128 v100, {v(H+4,4)} offset:512\nds_write_b64 v101, {v(H+8,2)} offset:1024", "lnw")
        self.sig(p, Y_LN, T)

    def serv(self):
        self.role = "serv"
        p = Prog(); e = p.e; o = self.o
        self.serv_start(p)
        self.stamp(p)
        e(f"v_bfe_u32 v12, {LANE}, 2, 2\nv_mul_u32_u24 v12, {PT}, v12\nv_lshrrev_b32 v13, 4, {LANE}\nv_lshl_add_u32 v12, v13, 5, v12")
        e(f"v_and_b32 v13, 3, {LANE}\nv_lshl_add_u32 v12, v13, 3, v12\nv_add_u32 v12, {LNT}, v12")
        e(f"s_mul_i32 s84, {WG}, 10240\ns_add_u32 s84, s84, {HB}\ns_add_u32 s85, s84, 4096\ns_add_u32 s86, s84, 8192")
        e(f"s_lshl_b32 s87, {WG}, 4\ns_add_u32 s87, s87, {STAT}\nv_lshlrev_b32 v13, 12, {LANE}")
        e(f"s_lshr_b32 s89, {WG}, 2\ns_lshl_b32 s89, s89, 7\ns_and_b32 s51, {WG}, 3\ns_lshl2_add_u32 s89, s51, s89\ns_add_u32 s89, s89, {F1}\nv_lshlrev_b32 v14, 7, {LANE}")
        e("s_waitcnt lgkmcnt(0)")
        self.mktag(p)
        e(f"ds_write_b32 {VSY}, {VTAG} offset:{4*Y_TAG}")
        self.spin(p, Y_LN, 4, 20, sleep=1)
        if self.o.get("dly_p"): e(f"s_sleep {self.o['dly_p']}")
        self.stamp(p)
        for b in range(11):
            e(f"ds_read_b64_tr_b16 {v(24+4*b,2)}, v12 offset:{128*b}\nds_read_b64_tr_b16 {v(26+4*b,2)}, v12 offset:{128*b+REGSZ}", f"lr{b}")
            if b >= 3:
                c = b - 3; p.wlg(f"lr{c}")
                e(f"buffer_store_dwordx4 {v(24+4*c,4)}, {L16}, {SWS}, s{84 + c//4} offen offset:{(c%4)*1024} sc1")
        for c in range(8, 10):
            p.wlg(f"lr{c}")
            e(f"buffer_store_dwordx4 {v(24+4*c,4)}, {L16}, {SWS}, s{84 + c//4} offen offset:{(c%4)*1024} sc1")
        p.wlg("lr10")
        e(f"s_mov_b64 exec, 3\nbuffer_store_dwordx4 v[64:67], v13, {SWS}, s87 offen sc1\ns_mov_b64 exec, -1")
        self.sig(p, Y_PUB, 20)
        self.stamp(p)
        e(f"s_mul_i32 s50, {DT2}, 80\ns_lshr_b32 s50, s50, 6\ns_mul_i32 s92, s50, {24*128}\ns_add_u32 s92, s92, {F2}")
        e(f"v_min_u32 v15, 47, {LANE}\nv_lshlrev_b32 v15, 7, v15\nv_min_u32 v16, 29, {LANE}\nv_lshlrev_b32 v16, 7, v16")
        e(f"s_mul_i32 s93, {DT2}, {30*128}\ns_add_u32 s93, s93, {F3}")
        e("s_waitcnt vmcnt(0)")
        if self.o.get("dly_f"):
            self.sig(p, Y_PUB, 20); e(f"s_sleep {self.o['dly_f']}")
        self.flag_store(p, "s89")
        self.sig(p, Y_PUB, 20)
        self.stamp(p)
        e(f"s_cmp_lt_u32 {IDX}, 30\ns_cbranch_scc1 L_s1")
        e(f"v_lshrrev_b32 v17, 3, {LANE}\nv_lshlrev_b32 v17, 12, v17\nv_and_b32 v18, 7, {LANE}\nv_lshl_add_u32 v17, v18, 7, v17")
        e(f"s_lshl_b32 s88, {SUB}, 10\ns_and_b32 s51, {IDX}, 1\ns_lshl_b32 s51, s51, 15\ns_add_u32 s88, s88, s51\ns_and_b32 s51, {XCD}, 1\ns_lshl_b32 s51, s51, 16\ns_add_u32 s88, s88, s51")
        for i in range(o["nsp"]):
            e(f"buffer_load_dword v{24+i}, v17, {SW2}, s88 offen\ns_add_u32 s88, s88, 131072")
        e("s_waitcnt vmcnt(0)\ns_branch L_s2\nL_s1:")
        self.spin(p, Y_P1, 1, 20, sleep=2)
        self.stamp(p)
        e(f"s_mov_b32 s50, {F1}")
        self.poll(p, "v14", "s50", 20, wide=True, sleep=o["psleep"])
        self.sig(p, Y_F1, 20)
        self.stamp(p)
        if self.debug: e(f"v_writelane_b32 {VDBG}, s78, 31")
        e("L_s2:")
        self.spin(p, Y_P2, 1, 20, sleep=4)
        self.stamp(p)
        self.poll(p, "v15", "s92", 20, sleep=o["psleep2"])
        self.sig(p, Y_F2, 20)
        self.stamp(p)
        if self.debug: e(f"v_writelane_b32 {VDBG}, s78, 30")
        self.spin(p, Y_P3, 1, 20, sleep=4)
        self.poll(p, "v16", "s93", 20, sleep=o["psleep2"])
        self.sig(p, Y_F3, 20)
        if self.debug: e(f"v_writelane_b32 {VDBG}, s78, 29")
        self.finish(p)
        return p

    def kgen(self, p):
        e = p.e; RAW = self.RAW
        L2E = 1.4426950408889634
        l2e_hi = struct.unpack("<f", struct.pack("<f", L2E))[0]; l2e_lo = L2E - l2e_hi
        VDT, VD1, VD2, VDS, WA, RA, RB = 54, 55, 56, 57, 58, 59, 60
        e(f"s_and_b32 s51, {CH}, 1\ns_lshl_b32 s51, s51, 4\ns_lshr_b32 s80, s80, s51\ns_lshl_b32 s80, s80, 16\ns_lshr_b32 s81, s81, s51\ns_lshl_b32 s81, s81, 16")
        e(f"v_mov_b32 v62, s80\nv_mov_b32 v63, {fbits(l2e_hi)}\nv_mul_f32 v64, v62, v63\nv_fma_f32 v65, v62, v63, -v64\nv_fmac_f32 v65, {fbits(l2e_lo)}, v62")
        e(f"v_exp_f32 v64, v64\nv_mul_f32 v65, {fbits(0.6931471805599453)}, v65\nv_fma_f32 v{VDT}, v64, v65, v64")
        self.rbf(p, VDT)
        e(f"v_mul_f32 v{VD1}, {fbits(L2E)}, v{VDT}\nv_mul_f32 v{VD2}, 0.15915494, v{VDT}")
        e(f"v_cmp_eq_u32 vcc, 0, {LANE}\nv_mov_b32 v62, s81\nv_cndmask_b32 v{VDS}, 0, v62, vcc")
        e(f"s_mov_b32 m0, {REGB}")
        e(f"v_and_b32 v62, 31, {LANE}\nv_lshrrev_b32 v63, 5, {LANE}\nv_lshlrev_b32 v63, 4, v63\nv_add_u32 v63, {REGB}, v63")
        e(f"v_mul_u32_u24 v64, {KP}, v62\nv_add_u32 v{RB}, v64, v63")
        e(f"v_min_u32 v62, 20, v62\nv_mul_u32_u24 v64, {KP}, v62\nv_add_u32 v{RA}, v64, v63")
        e("v_mov_b32 v28, 0x3f80")
        e("s_waitcnt vmcnt(0)")
        self.stamp(p)
        PK = 116; pk = [0]; P = 62
        FA, FB = 16, 48
        def mf(rd):
            l = []
            for s in range(8):
                q = Prog()
                c = a(0, 16)
                q.e(f"v_mfma_f32_32x32x16_bf16 {a(0,16)}, {a(FA+4*s,4)}, {a(FB+4*s,4)}, {c}")
                l.append(q)
            return l
        p.e("s_mov_b32 s76, 0\nL_kg:")
        for rd in (1,):
            usepk = self.o["pk"]
            q = Prog(); e = q.e
            def cmul(sets):
                if usepk:
                    for d, x, y in sets: e(f"v_pk_mul_f32 {v(d,2)}, {v(x,2)}, {v(y,2)} op_sel_hi:[0,1]")
                    for d, x, y in sets: e(f"v_pk_fma_f32 {v(d,2)}, {v(x,2)}, {v(y,2)}, {v(d,2)} op_sel:[1,1,0] op_sel_hi:[1,0,1] neg_lo:[1,0,0]")
                else:
                    for d, x, y in sets: e(f"v_mul_f32 v{d}, v{x}, v{y}\nv_mul_f32 v{d+1}, v{x}, v{y+1}")
                    for d, x, y in sets: e(f"v_fma_f32 v{d}, -v{x+1}, v{y+1}, v{d}\nv_fmac_f32 v{d+1}, v{x+1}, v{y}")
            def puts(l, neg):
                rs = []
                for row, z in l:
                    r = PK + pk[0] % 8; pk[0] += 1; rs.append(r)
                    e(f"v_cvt_pk_bf16_f32 v{r}, v{z}, {'-' if neg else ''}v{z+1}")
                for (row, z), r in zip(l, rs): e(f"ds_write_addtid_b32 v{r} offset:{row*KP}", "kw")
            for i in range(6):
                e(f"v_lshlrev_b32 v{P+i}, 16, v{RAW[2*i]}\nv_alignbit_b32 v{RAW[2*i]}, v{RAW[2*i+1]}, v{RAW[2*i]}, 16")
            AR, AI = 68, 69
            e(f"v_mul_f32 v{AR}, v{P}, v{VD1}\nv_mul_f32 v{AI}, v{P+1}, v{VD2}")
            e(f"v_mul_f32 v{P+2}, v{P+2}, v{VDT}\nv_mul_f32 v{P+3}, v{P+3}, v{VDT}")
            E1, E8, E256 = 70, 72, 74
            TM_, TA = 76, 79
            for i, t in enumerate((1.0, 8.0, 256.0)):
                if i == 0: e(f"v_mov_b32 v{TM_}, v{AR}\nv_fract_f32 v{TA}, v{AI}")
                else: e(f"v_mul_f32 v{TM_+i}, {fbits(t)}, v{AR}\nv_mul_f32 v{TA+i}, {fbits(t)}, v{AI}\nv_fract_f32 v{TA+i}, v{TA+i}")
            X = 82
            cmul([(X, P + 4, P + 2)])
            for i in range(3):
                e(f"v_exp_f32 v{TM_+i}, v{TM_+i}\nv_cos_f32 v{E1+2*i}, v{TA+i}\nv_sin_f32 v{E1+2*i+1}, v{TA+i}")
            for i in range(3): e(f"v_mul_f32 v{E1+2*i}, v{E1+2*i}, v{TM_+i}\nv_mul_f32 v{E1+2*i+1}, v{E1+2*i+1}, v{TM_+i}")
            E2, E4, E16, E512 = 98, 100, 102, 104
            EA, EB, E32, Y, Z = 106, 20, 114, 30, 38
            cmul([(E2, E1, E1), (E16, E8, E8), (E512, E256, E256), (X + 2, X, E1)])
            cmul([(E4, E2, E2), (EA + 6, E16, E8), (E32, E16, E16), (X + 4, X, E2), (X + 6, X + 2, E2)])
            p.ext(q)
            p.e("s_waitcnt lgkmcnt(0)")
            q = Prog(); e = q.e
            e(f"ds_write_addtid_b32 v28", "kw")
            puts([(1, E8), (2, E16), (3, EA + 6), (4, E32)], False)
            cmul([(EB, E8, E32), (EB + 2, E16, E32), (EB + 4, EA + 6, E32), (EB + 6, E32, E32)])
            cur, nxt = EB, EA
            extra = [[(X + 8 + 2 * i, X + 2 * i, E4) for i in range(4)], [(Y + 2 * i, X + 4 * i, E256) for i in range(4)],
                     [(Z, X, E512), (Z + 2, X + 8, E512), (Z + 4, Y, E512), (Z + 6, Y + 4, E512)],
                     [(Z + 8, Z, E512), (Z + 10, Z + 4, E512)], [(Z + 12, Z + 8, E512), (Z + 14, Z + 10, E512)], [(E1, Z + 12, E512)]]
            for st in range(6):
                j0 = 9 + 4 * st
                n = min(4, 32 - j0)
                cmul([(nxt + 2 * i, cur + 2 * i, E32) for i in range(n)])
                puts([(j0 - 4 + i, cur + 2 * i) for i in range(4)], False)
                cmul(extra[st])
                cur, nxt = nxt, cur
            puts([(29 + i, cur + 2 * i) for i in range(3)], False)
            if rd > 0: p.ext(interleave(q, mf(rd - 1)))
            else: p.ext(q)
            for s_ in range(8): p.e(f"ds_read_b128 {a(FB+4*s_,4)}, v{RB} offset:{s_*32}", "kr")
            e = p.e
            puts([(i, X + 2 * i) for i in range(4)], True); puts([(4 + i, X + 8 + 2 * i) for i in range(4)], True)
            puts([(8 + i, Y + 2 * i) for i in range(4)], True); puts([(12 + i, Z + 2 * i) for i in range(4)], True)
            puts([(16 + i, Z + 8 + 2 * i) for i in range(4)] + [(20, E1)], True)
            for s_ in range(8): p.e(f"ds_read_b128 {a(FA+4*s_,4)}, v{RA} offset:{s_*32}", "kr")
            p.e("s_cmp_lg_u32 s76, 0\ns_cbranch_scc1 L_kg1")
            for i in range(16): p.e(f"v_accvgpr_write_b32 a{i}, 0")
            p.e("L_kg1:")
            if self.debug: p.e(f"s_memrealtime s[82:83]\ns_waitcnt lgkmcnt(0)\ns_add_u32 s50, s76, 20\nv_mov_b32 v61, s82\nv_cmp_eq_u32 vcc, s50, {LANE}\nv_cndmask_b32 {VDBG}, {VDBG}, v61, vcc")
            p.e("s_add_u32 s76, s76, 1\ns_cmp_lt_u32 s76, 3\ns_cbranch_scc1 L_kg")
        e = p.e
        e(f"v_and_b32 v62, 31, {LANE}\nv_lshrrev_b32 v63, 5, {LANE}\ns_add_u32 s51, {REGB}, {KCO}")
        e(f"v_lshlrev_b32 v64, 4, v62\nv_lshl_add_u32 v64, v63, 3, v64\nv_add_u32 v64, s51, v64")
        e(f"v_cmp_eq_u32 vcc, 0, v63\nv_lshlrev_b32 v65, 3, v62\nv_add_u32 v65, 512, v65\nv_lshlrev_b32 v66, 2, v62\nv_add_u32 v66, 768, v66")
        e(f"v_cndmask_b32 v65, v66, v65, vcc\nv_add_u32 v65, s51, v65\nv_mov_b32 v66, 128\nv_cndmask_b32 v66, v66, 4, vcc\nv_add_u32 v66, v65, v66")
        e(f"v_lshlrev_b32 v67, 1, v62\nv_lshl_add_u32 v67, v63, 8, v67\nv_add_u32 v67, s51, v67")
        self.spin(p, Y_PUB, 1, 68)
        for q in mf(2): p.ext(q)
        e(f"v_mov_b32 v76, 0\nv_mov_b32 v77, 0\nv_mov_b32 v78, 0\nv_mov_b32 v79, 0\nv_add_u32 v15, {REGB}, {L16}")
        for i in range(4): e(f"ds_write_b128 v15, v[76:79] offset:{R0O + 1024*i}", "kc")
        e("s_mov_b64 exec, 3")
        e(f"ds_write_b128 v15, v[76:79] offset:{KCO - 32}", "kc")
        e("s_mov_b32 exec_lo, -1")
        e(f"ds_write_b128 v15, v[76:79] offset:{UO}", "kc")
        e("s_mov_b64 exec, -1")
        blocks = [(-2, 34, 8), (32, 32, 4)]
        info = []
        for bi, (v0, nl, stride) in enumerate(blocks):
            cis = lambda y: y if y < 0 else ci(y)
            base = cis(8 * v0)
            offs = {}
            for t in range(-1, 8):
                o = [cis(8 * (v0 + l) + 7 - t) - (base + stride * l) for l in range(nl)]
                offs[t] = o[0]
                assert all(x == o[0] for x in o)
            AD = 100 + 2 * bi
            e(f"s_add_u32 s51, {REGB}, {KCO + 2*base}\nv_mul_u32_u24 v{AD}, {2*stride}, {LANE}\nv_add_u32 v{AD}, s51, v{AD}")
            e(f"s_add_u32 s51, {REGB}, {(75 - v0) * 16}\nv_sub_u32 v{AD+1}, s51, {L16}")
            info.append(offs)
        e(f"v_cmp_gt_u32 vcc, 16, {LANE}\nv_mov_b32 v104, 563\nv_mov_b32 v105, 512\nv_cndmask_b32 v104, v104, v105, vcc\nv_add_u32 v104, v104, {LANE}")
        e(f"v_mov_b32 v106, 1011\nv_cndmask_b32 v105, v106, v105, vcc\nv_add_u32 v105, v105, {LANE}\nv_cvt_f32_u32 v105, v105\nv_cvt_pk_bf16_f32 v105, v105, v105\nv_and_b32 v105, 0xffff, v105")
        e(f"s_sub_u32 s51, {REGB}, {2*0x4280 - KCO}\nv_lshl_add_u32 v105, v105, 1, s51")
        e(f"s_add_u32 s51, {REGB}, {2*607}\nv_lshlrev_b32 v104, 1, v104\nv_sub_u32 v104, s51, v104")
        e(f"v_lshlrev_b32 v106, 1, {LANE}\ns_add_u32 s51, {REGB}, 4096\nv_sub_u32 v107, s51, v106\nv_add_u32 v106, {REGB}, v106")
        for i in range(12): e(f"v_accvgpr_read_b32 v{82+i}, a{i}")
        e(f"v_add_f32 v82, v82, v{VDS}")
        for i in range(6): e(f"v_cvt_pk_bf16_f32 v{70+i}, v{82+2*i}, v{83+2*i}")
        e(f"ds_write_b64 v64, v[70:71]\nds_write_b32 v65, v72\nds_write_b32 v66, v73\nds_write_b16 v67, v74 offset:1024", "kc")
        e("s_mov_b32 exec_hi, 0")
        e(f"ds_write_b16_d16_hi v67, v74 offset:{1024+64}\nds_write_b16 v67, v75 offset:{1024+128}\nds_write_b16_d16_hi v67, v75 offset:{1024+192}", "kc")
        e("s_mov_b64 exec, -1")
        vrs = []
        for bi, (v0, nl, stride) in enumerate(blocks):
            RR = 20 + 9 * bi; AD = 100 + 2 * bi; offs = info[bi]
            e(f"s_mov_b32 exec_hi, {(1 << (nl - 32)) - 1}")
            seen = {}; vr = {}
            for t in range(-1, 8):
                o = offs[t]
                if o not in seen:
                    seen[o] = RR + len(seen)
                    e(f"ds_read_u16 v{seen[o]}, v{AD} offset:{2*o}", f"kx{bi}")
                vr[t] = seen[o]
            vrs.append(vr)
        e("ds_read_u16 v40, v105", "kq")
        e("s_mov_b64 exec, -1")
        for i in range(2):
            e(f"ds_read_u16 v{41+i}, v106 offset:{KCO + 2*(388 + 64*i)}\nds_read_u16 v{43+i}, v106 offset:{KCO + 2*(514 + 64*i)}", "kq")
        for bi, (v0, nl, stride) in enumerate(blocks):
            AD = 100 + 2 * bi; O = 70 + 8 * bi; vr = vrs[bi]
            p.wlg(f"kx{bi}")
            for i in range(4): e(f"v_lshl_or_b32 v{O+i}, v{vr[2*i+1]}, 16, v{vr[2*i]}")
            for i in range(4): e(f"v_lshl_or_b32 v{O+4+i}, v{vr[2*i]}, 16, v{vr[2*i-1]}")
            e(f"s_mov_b32 exec_hi, {(1 << (nl - 32)) - 1}")
            e(f"ds_write_b128 v{AD+1}, {v(O,4)} offset:{R0O}\nds_write_b128 v{AD+1}, {v(O+4,4)} offset:{R1O}", "kt")
            e("s_mov_b64 exec, -1")
        p.wlg("kq")
        e(f"ds_write_b16 v107, v41 offset:{Q2O - 4096 + 2*188}\nds_write_b16 v107, v43 offset:{Q3O - 4096 + 2*126}", "kt")
        e(f"s_mov_b32 exec_hi, {(1 << 31) - 1:#x}\nds_write_b16 v107, v44 offset:{Q3O - 4096 + 2*(126-64)}", "kt")
        e(f"s_mov_b32 exec_hi, {(1 << 29) - 1:#x}\nds_write_b16 v107, v42 offset:{Q2O - 4096 + 2*(188-64)}", "kt")
        e(f"s_mov_b32 exec_hi, 0\ns_mov_b32 exec_lo, 0x01ff3fff\nds_write_b16 v104, v40 offset:{R0O}\nds_write_b16 v104, v40 offset:{R1O + 2}\ns_mov_b64 exec, -1", "kt")

    def conv_setup(self, p):
        e = p.e
        e(f"v_lshrrev_b32 v32, 4, {LANE}\nv_and_b32 v31, 15, {LANE}\nv_bfe_u32 v33, {LANE}, 1, 3\nv_lshlrev_b32 v34, 2, v32\nv_sub_u32 v34, v34, v33")
        e(f"v_and_b32 v33, 1, {LANE}\nv_xor_b32 v33, 1, v33\nv_mul_u32_u24 v33, {(R1O - R0O)//4 + 1}, v33\nv_add_u32 v34, v34, v33")
        e(f"s_add_u32 s51, {REGB}, {R0O + 4*7}\nv_lshl_add_u32 v24, v34, 2, s51\nv_add_u32 v25, 512, v24")
        e(f"v_lshlrev_b32 v33, 4, v32\nv_lshlrev_b32 v34, 3, v31\nv_sub_u32 v26, v33, v34\ns_add_u32 s51, {REGB}, {Q2O + 120}\nv_add_u32 v26, s51, v26")
        e(f"v_lshlrev_b32 v34, 2, v31\nv_sub_u32 v27, v33, v34\ns_add_u32 s51, {REGB}, {Q3O + 60}\nv_add_u32 v27, s51, v27")
        for m in list(range(17)) + [18]:
            off = (18 - m) * 16; ad = 24; r = 4 * min(m, 17)
            if off >= 128: off -= 128; ad = 25
            e(f"ds_read2_b32 {a(r,2)}, v{ad} offset0:{off} offset1:{off+1}\nds_read2_b32 {a(r+2,2)}, v{ad} offset0:{off+2} offset1:{off+3}", "pf")
        for j in range(6): e(f"ds_read_b64 {a(72+4*j,2)}, v26 offset:{64*j}\nds_read_b64 {a(74+4*j,2)}, v26 offset:{64*j+8}", "pf")
        for j in range(4): e(f"ds_read2_b32 {a(96+4*j,2)}, v27 offset0:{16*j} offset1:{16*j+1}\nds_read2_b32 {a(98+4*j,2)}, v27 offset0:{16*j+2} offset1:{16*j+3}", "pf")
        e("v_mov_b32 v76, 0\nv_mov_b32 v77, 0\nv_mov_b32 v78, 0\nv_mov_b32 v79, 0\ns_mov_b64 exec, 1")
        for o in (Z5O, Z3O, Z9O, Z7O, Z5O + 3088, Z3O + 3088): e(f"ds_write_b128 v15, v[76:79] offset:{o}", "pf")
        e("s_mov_b64 exec, -1")
        e(f"v_lshl_add_u32 v34, v31, 1, v32\ns_add_u32 s51, {REGB}, {UO + 16*2}\nv_lshl_add_u32 v16, v34, 4, s51")
        e(f"v_bfe_u32 v33, {LANE}, 2, 2\nv_and_b32 v34, 3, {LANE}\nv_and_b32 v35, 1, v33")
        e(f"v_mul_u32_u24 v12, {Z3O - Z5O}, v35\nv_lshl_add_u32 v12, v32, 6, v12\nv_add_u32 v36, v33, v34\nv_lshl_add_u32 v12, v36, 3, v12\nv_add_u32 v12, {REGB}, v12")
        e(f"v_mul_u32_u24 v13, {Z7O - Z9O}, v35\nv_lshl_add_u32 v13, v32, 7, v13\nv_lshl_add_u32 v13, v33, 4, v13\nv_lshl_add_u32 v13, v34, 3, v13\nv_add_u32 v13, {REGB}, v13")
        e(f"v_add_u32 v14, {UO + 512 - 24}, v15")
        e(f"v_and_b32 v34, 1, v32\nv_lshlrev_b32 v34, 9, v34\nv_lshl_add_u32 v34, v31, 5, v34\nv_lshrrev_b32 v32, 1, v32\nv_lshl_add_u32 v17, v32, 4, v34")
        e(f"s_lshl_b32 s86, {CH}, 12\ns_add_u32 s86, s86, {YT}\ns_mul_i32 s89, {DT}, 24\ns_add_u32 s89, s89, {FT}\ns_lshl_b32 s89, s89, 7\ns_add_u32 s89, s89, {F3}\ns_sub_u32 s88, {NCH}, 1")
    def inverse(self, p):
        e = p.e
        S2, M2, SF, MF = 24, 40, 56, 88
        e(f"v_lshrrev_b32 v20, 4, {LANE}\nv_lshlrev_b32 v20, 10, v20\nv_and_b32 v21, 3, {LANE}\nv_lshl_add_u32 v20, v21, 4, v20\nv_and_b32 v21, 12, {LANE}")
        e(f"s_add_u32 s51, {REGB}, {UO+512}")
        for q in range(4):
            e(f"v_add_u32 v22, {16*(q&1)}, v21\nv_bfe_u32 v22, s{74 + q//2}, v22, 4\nv_lshl_add_u32 v{4+q}, v22, 6, v20\nv_add_u32 v{120+q}, s51, v{4+q}")
        e(f"s_mov_b32 s84, {STAT}\ns_mov_b32 s85, {STAT+4096}")
        self.spin(p, Y_F1, 1, 22, sleep=2)
        e(f"ds_read_b32 {VTAG}, {VSY} offset:{4*Y_TAG}", "tag")
        for q in range(4):
            e(f"buffer_load_dwordx4 {v(S2+4*q,4)}, v{4+q}, {SWS}, s84 offen sc1", "u")
            e(f"buffer_load_dwordx4 {v(M2+4*q,4)}, v{4+q}, {SWS}, s85 offen sc1", "u")
        p.wvm("u")
        self.unpack(p, S2, SF, 16); self.unpack(p, M2, MF, 16)
        self.stamp(p)
        for q in range(4):
            self.spin(p, Y_U + q, 4, 22, sleep=(2 if q < 3 else 1))
            if q == 3: self.stamp(p)
            e(f"ds_read_b128 v[24:27], v{120+q}", f"ur{q}")
            p.wlg(f"ur{q}")
            self.unpack(p, 24, 40, 4)
            for i in range(8): e(f"v_fma_f32 v{40+i}, v{40+i}, v{SF+8*q+i}, v{MF+8*q+i}")
            for i in range(4): e(f"v_cvt_pk_bf16_f32 v{48+i}, v{40+2*i}, v{41+2*i}")
            e(f"ds_write_b128 v{120+q}, v[48:51]", "uw")
    def zcode(self):
        p = Prog(); e = p.e
        RAWZ, P, W = 96, 103, 56
        def rd(it):
            e(f"ds_read_b64 {v(RAWZ,2)}, v14 offset:{1024*it}\nds_read_b128 {v(RAWZ+2,4)}, v14 offset:{1024*it+8}\nds_read_b64 {v(RAWZ+6,2)}, v14 offset:{1024*it+24}", f"zr{it}")
        rd(0); k = 0
        for it in range(3):
            p.wlg(f"zr{it}")
            self.unpack(p, RAWZ, P + 1, 8)
            if it < 2: rd(it + 1)
            for j in range(2, 17 if it < 2 else 15): e(f"v_add_f32 v{P+j}, v{P+j}, v{P+j-1}")
            for h, zo in ((2, Z5O), (1, Z3O), (4, Z9O), (3, Z7O))[:(4 if it < 2 else 2)]:
                for t in range(8):
                    if t + 4 - h == 0: e(f"v_mov_b32 v{W}, v{P+9}")
                    else: e(f"v_sub_f32 v{W+t}, v{P+t+5+h}, v{P+t+4-h}")
                o = 120 + 4 * (k & 1); k += 1
                for i in range(4): e(f"v_cvt_pk_bf16_f32 v{o+i}, v{W+2*i}, v{W+2*i+1}")
                e(f"ds_write_b128 v15, {v(o,4)} offset:{zo + 16 + 1024*it}", "zw")
        return p
    def conv(self, p):
        e = p.e
        YO, ACC = 17, 64
        slots = [("v", 24 + 4 * i) for i in range(10)] + [("v", 96 + 4 * i) for i in range(8)] + [("a", 112 + 4 * i) for i in range(4)]
        slots = slots[:self.o["cns"]]; NS = len(slots)
        def R(n, off=0, w=4):
            k, r = slots[n % NS]; return (v if k == "v" else a)(r + off, w)
        jobs = []
        for ph in range(8):
            for d in range(8):
                l = [(d + mu, 4 * (8 * mu + ph), False) for mu in range(2) if d + mu <= 7]
                if ph == 0 and d <= 5: l.append((d + 2, 64, False))
                if ph == 0 and d <= 3: l.append((d + 4, 68, False))
                jobs.append((lambda n, d=d, ph=ph: [f"ds_read_b128 {R(n)}, v16 offset:{512*d + (7-ph)*64}"], l))
        nF = len(jobs)
        for st in range(4):
            jobs.append((lambda n, st=st: [f"ds_read_b64_tr_b16 {R(n,0,2)}, v13 offset:{Z9O + 512*st}", f"ds_read_b64_tr_b16 {R(n,2,2)}, v13 offset:{Z9O + 512*st + 64}"],
                         [(I, 96 + 4 * (st - I + 7), True) for I in range(4, 8) if st <= I - 4]))
        for st in range(12):
            jobs.append((lambda n, st=st: [f"ds_read_b64_tr_b16 {R(n,0,2)}, v12 offset:{Z5O + 256*st}", f"ds_read_b64_tr_b16 {R(n,2,2)}, v12 offset:{Z5O + 256*st + 32}"],
                         [(I, 72 + 4 * (st - 2 * I + 8), True) for I in range(2, 8) if 2 * I - 8 <= st <= 2 * I - 3]))
        assert sum(len(j[1]) for j in jobs) == 170
        first = set()
        def load(q, n):
            for t in jobs[n][0](n): q.e(t, f"cj{n}")
        def run(q, n):
            q.wlg(f"cj{n}")
            r = R(n)
            for i, (I, kf, dA) in enumerate(jobs[n][1]):
                acc = v(ACC + 4 * I, 4); src = acc if I in first else "0"; first.add(I)
                q.e(f"v_mfma_f32_16x16x32_bf16 {acc}, {r if dA else a(kf,4)}, {a(kf,4) if dA else r}, {src}")
                if i == 0 and n >= 1 and n - 1 + NS < len(jobs): load(q, n - 1 + NS)
        jobs = jobs[nF:] + jobs[:nF]
        if self.o.get("dly_c"): e(f"s_sleep {self.o['dly_c']}")
        p.ext(self.zcode())
        for n in range(NS): load(p, n)
        if self.o["cwait"]: self.spin(p, Y_EPI, self.o["cwait"], 22, sleep=1)
        e(f"s_setprio {self.o['cprio']}")
        self.stamp(p)
        for n in range(len(jobs)): run(p, n)
        for k in range(4):
            o = 24 + 4 * k
            for i in range(4): e(f"v_cvt_pk_bf16_f32 v{o+i}, v{ACC+8*k+2*i}, v{ACC+8*k+2*i+1}")
            e(f"v_permlane16_swap_b32 v{o}, v{o+2}\nv_permlane16_swap_b32 v{o+1}, v{o+3}")
            e(f"buffer_store_dwordx4 {v(o,4)}, v{YO}, {SWS}, s86 offen offset:{1024*k} sc1", "ys")
        self.stamp(p)
        e("s_waitcnt vmcnt(0)")
        e(f"v_mov_b32 v20, 1\ns_mov_b64 exec, 1\nds_add_rtn_u32 v20, {VSY}, v20 offset:{4*Y_Y}\ns_mov_b64 exec, -1\ns_waitcnt lgkmcnt(0)\nv_readfirstlane_b32 s79, v20")
        e(f"s_cmp_lg_u32 s79, s88\ns_cbranch_scc1 L_ynl")
        self.flag_store(p, "s89")
        e("L_ynl:")
    def convw(self):
        self.role = "conv"
        p = Prog(); e = p.e
        self.conv_start(p)
        self.stamp(p)
        if not self.o.get("skip_kgen"): self.kgen(p)
        else: self.stamp(p)
        self.stamp(p)
        if self.o.get("dly_k"): e(f"s_sleep {self.o['dly_k']}")
        self.conv_setup(p)
        e("s_setprio 0")
        self.inverse(p)
        self.conv(p)
        self.finish(p)
        return p

    def build(self):
        p = Prog(); self.prologue(p)
        p.ext(self.main())
        body = finalize(p)
        q = Prog(); q.e("L_aux:")
        q.e(f"s_cmp_eq_u32 {WV}, 7\ns_cbranch_scc1 L_serv"); q.ext(self.convw())
        body += finalize(q)
        q = Prog(); q.e("L_serv:"); q.ext(self.serv()); q.e("L_end:\nL_last:\ns_endpgm")
        body += finalize(q)
        body = body.replace("@", "")
        ref = open("cdna_kernels/" + NAME + ".s.ref").read()
        head = [l for l in ref.split("\n") if l.startswith(";") and "@launch" not in l]
        k = NAME + "_kernel"
        s = "\n".join(head) + f"\n; @launch grid=(256,1,1) block=(512,1,1) lds={LDS_BYTES}\n"
        s += f'.amdgcn_target "amdgcn-amd-amdhsa--gfx950"\n.text\n.globl {k}\n.p2align 8\n.type {k},@function\n{k}:\n'
        s += body
        s += f""".section .rodata,"a"
.p2align 6
.amdhsa_kernel {k}
  .amdhsa_next_free_vgpr 256
  .amdhsa_next_free_sgpr 102
  .amdhsa_accum_offset 128
  .amdhsa_group_segment_fixed_size 0
  .amdhsa_kernarg_size 136
  .amdhsa_user_sgpr_count 2
  .amdhsa_user_sgpr_kernarg_segment_ptr 1
  .amdhsa_system_sgpr_workgroup_id_x 1
.end_amdhsa_kernel
"""
        return s

if __name__ == "__main__":
    out = sys.argv[1]
    kw = eval("dict(" + (sys.argv[2] if len(sys.argv) > 2 else "") + ")")
    open(out, "w").write(G(**kw).build())
```

```python
import sys, struct
from asmlib import Prog, interleave, finalize

NAME = "parallel_sum__ssm_conv_s4__mixer_token_mlp__prompt"
STAT, TM, F2, F3, F1 = 0x4000, 0x8000, 0x50000, 0x58000, 0x60000
HB, GB, YT, WSEND = 0x80000, 0x300000, 0x4E0000, 0x760000
RINGW, RS = 28672, 7
PT = 1344
REG0, REGSZ = 0, 14976
SYNC = 3 * REGSZ
RING0 = 45056
KCO, R0O, R1O, Q2O, Q3O = 32, 1408, 1408 + 1344, 4096, 4672
Z5O, Z3O, Z9O, Z7O, UO = 0, 3104, 6208, 8288, 10368
LNT = REG0 + 8704
KP = 272
LDS_BYTES = 163840
assert SYNC + 128 <= RING0 and RING0 + 4 * RINGW <= LDS_BYTES
Y_EPI = 3
Y_Y = 16
Y_LN, Y_F1, Y_PART, Y_PUB, Y_P1, Y_G, Y_P2, Y_F2, Y_P3, Y_F3, Y_TAG, Y_U = 0, 1, 2, 4, 5, 6, 7, 8, 9, 10, 11, 12

def fbits(x): return "0x%08x" % struct.unpack("<I", struct.pack("<f", x))[0]
def bf16r(l):
    u = struct.unpack("<I", struct.pack("<f", float(l)))[0]
    u = ((u + 0x7FFF + ((u >> 16) & 1)) >> 16) << 16
    return int(struct.unpack("<f", struct.pack("<I", u))[0])
def ci(l):
    v = bf16r(l)
    if v <= 256: return v
    if v <= 512: return 256 + (v - 256) // 2
    if v <= 1024: return 384 + (v - 512) // 4
    return 512 + (v - 1024) // 8

WG, WV, XCD, IDX, DT, FT, DT2, ST2, TAG, ROT1, ROT2, CH = "s2", "s3", "s4", "s5", "s6", "s7", "s8", "s9", "s10", "s11", "s12", "s13"
SUB, C0, NCH = "s97", "s98", "s99"
SX, SW1, SW2, SOUT, SWS = "s[52:55]", "s[56:59]", "s[60:63]", "s[64:67]", "s[68:71]"
RINGB, REGB = "s73", "s77"
VSY, LANE, L16, L4, VTAG, VZ, VDBG = "v0", "v1", "v2", "v3", "v9", "v10", "v11"

def v(i, n=1): return f"v{i}" if n == 1 else f"v[{i}:{i+n-1}]"
def a(i, n=1): return f"a{i}" if n == 1 else f"a[{i}:{i+n-1}]"

def groups_of(prog):
    groups = []
    for it in prog.items:
        prev = groups[-1][-1][0] if groups else None
        if isinstance(prev, str) and (prev.startswith(("s_add_u32 m0", "s_cmp", "s_sub_u32 s51", "s_mov_b64 exec, s", "s_mov_b64 exec, 1", "ds_write_b128 v125", "ds_add"))):
            groups[-1].append(it)
        else: groups.append([it])
    return groups

def make_perm(n, nw, first, duty0, per=1):
    own = list(range(0, n, 2)); oth = list(range(1, n, 2))
    order = [[] for _ in range(nw)]; touched = {}
    pool = own[:]
    for pos in range(first):
        for j in range(nw):
            pass
    deal = [[] for _ in range(nw)]
    k = 0
    for pos in range(first):
        for j in range(nw):
            if pool: st = pool.pop(0)
            else: st = oth.pop(0)
            deal[j].append(st); touched[st] = pos
    rest = pool + oth
    duty = {}
    for i, st in enumerate(rest): duty[(duty0 + i // per, i % nw)] = st
    for j in range(nw): order[j] = list(deal[j])
    for pos in range(first, n):
        for j in range(nw):
            if (pos, j) in duty: touched[duty[(pos, j)]] = pos
        for j in range(nw):
            if (pos, j) in duty: order[j].append(duty[(pos, j)]); continue
            mine = {st for (pp, jj), st in duty.items() if jj == j and pp > pos}
            cand = [st for st in range(n) if st not in order[j] and st not in mine]
            cand.sort(key=lambda st: (touched.get(st, 99), (st - 2 * j) % n))
            order[j].append(cand[0])
    for o in order: assert sorted(o) == list(range(n)), o
    return order
def pack_perm(o):
    x = sum(st << (4 * i) for i, st in enumerate(o)); return x & 0xffffffff, x >> 32

class G:
    def __init__(self, debug=False, **kw):
        self.debug = debug
        self.o = dict(P1=6, D1=13, PS1=11, lead1=4, xk=10, sp3=0, first1=2, dpp=1, P2=4, D2=11, PS2=9, lead2=4, wflag="", xflag="", nsp=30, thr=2,
                      ytrig=5, ychk=10, pk=1, psleep=4, psleep2=8, kprio=0, mprio=2, ebpos=0, tch=0, cprio=3, ipf=2, ns1=12, ns2=15, perm=1, duty1=3, duty2=3, oflag='', eb=2, pfirst=1, free1=2, pre1=0, cns=15, sg1=0, sg2=0, epk=1, cprio0=3, cswitch=0, slow=1, ebk=99, nthr=6, pflag='nt', cwait=4)
        self.o.update(kw)
        self.nst = {}; self.nlab = 0; self.role = None
    def stamp(self, p):
        if not self.debug: return
        n = self.nst.get(self.role, 0)
        if n == 0: p.e(f"v_writelane_b32 {VDBG}, s100, 28")
        p.e(("s_memtime" if self.o.get("cyc") else "s_memrealtime") + " s[82:83]\ns_waitcnt lgkmcnt(0)")
        p.e(f"v_writelane_b32 {VDBG}, s82, {n}")
        self.nst[self.role] = n + 1
    def pre(self, p):
        if self.debug and self.o.get("prest"): p.e(f"s_memrealtime s[82:83]\ns_waitcnt lgkmcnt(0)\nv_writelane_b32 {VDBG}, s82, 27")
    def label(self, s):
        self.nlab += 1; return f"L{s}_{self.nlab}"
    def flag_store(self, p, soff, pre=""):
        p.e(f"s_mov_b64 exec, 1\n{pre}buffer_store_dword {VTAG}, {VZ}, {SWS}, {soff} offen sc1\ns_mov_b64 exec, -1")
    def poll(self, p, voff, soff, tmp, wide=False, sleep=0):
        l = self.label("poll"); d = self.label("polld"); f = self.label("pollf")
        p.e("s_mov_b32 s78, 0")
        if sleep: p.e(f"s_branch {f}")
        p.e(f"{l}:")
        if sleep: p.e(f"s_sleep {sleep}\n{f}:")
        if wide:
            p.e(f"buffer_load_dwordx4 {v(tmp,4)}, {voff}, {SWS}, {soff} offen sc1")
            p.e("s_add_u32 s78, s78, 1\ns_waitcnt vmcnt(0)")
            for i in range(4): p.e(f"v_xor_b32 {v(tmp+i)}, {TAG}, {v(tmp+i)}")
            p.e(f"v_or3_b32 {v(tmp)}, {v(tmp)}, {v(tmp+1)}, {v(tmp+2)}\nv_or_b32 {v(tmp)}, {v(tmp)}, {v(tmp+3)}")
            p.e(f"v_cmp_ne_u32 vcc, 0, {v(tmp)}")
        else:
            p.e(f"buffer_load_dword {v(tmp)}, {voff}, {SWS}, {soff} offen sc1")
            p.e("s_add_u32 s78, s78, 1\ns_waitcnt vmcnt(0)")
            p.e(f"v_cmp_ne_u32 vcc, {TAG}, {v(tmp)}")
        p.e(f"s_cmp_gt_u32 s78, 0x8000\ns_cbranch_scc1 {d}\ns_cbranch_vccz {d}\ns_mov_b64 exec, vcc\ns_branch {l}")
        p.e(f"{d}:\ns_mov_b64 exec, -1")
    def sig(self, p, word, tmp):
        p.e(f"v_mov_b32 v{tmp}, 1\ns_mov_b64 exec, 1\nds_add_u32 {VSY}, v{tmp} offset:{4*word}\ns_mov_b64 exec, -1", "sig")
    def spin(self, p, word, n, tmp, sleep=0):
        l = self.label("spin"); d = self.label("spind"); f = self.label("spinf")
        p.e("s_mov_b32 s78, 0")
        if sleep: p.e(f"s_branch {f}")
        p.e(f"{l}:")
        if sleep: p.e(f"s_sleep {sleep}\n{f}:")
        p.e(f"ds_read_b32 v{tmp}, {VSY} offset:{4*word}\ns_add_u32 s78, s78, 1\ns_waitcnt lgkmcnt(0)\nv_readfirstlane_b32 s79, v{tmp}")
        p.e(f"s_cmp_gt_u32 s78, 0x40000\ns_cbranch_scc1 {d}\ns_cmp_lt_u32 s79, {n}\ns_cbranch_scc1 {l}")
        p.e(f"{d}:")
    def mktag(self, p):
        p.e(f"s_mul_i32 {TAG}, {TAG}, 0x9E3779B1\ns_add_u32 {TAG}, {TAG}, 0x7F4A7C15\nv_mov_b32 {VTAG}, {TAG}")
    def finish(self, p):
        e = p.e
        if self.debug:
            e("s_waitcnt vmcnt(0)")
            self.stamp(p)
            e(f"s_lshl_b32 s50, {WG}, 3\ns_add_u32 s50, s50, {WV}\ns_lshl_b32 s50, s50, 7\ns_add_u32 s50, s50, {TM}")
            e(f"s_mov_b32 exec_hi, 0\nbuffer_store_dword {VDBG}, {L4}, {SWS}, s50 offen")
        e("s_endpgm")
    def srd(self, p, d, lo, size): p.e(f"s_mov_b32 s{d}, s{lo}\ns_mov_b32 s{d+1}, s{lo+1}\ns_mov_b32 s{d+2}, {size}\ns_mov_b32 s{d+3}, 0x20000")
    def unpack(self, p, src, dst, n):
        for i in range(n):
            p.e(f"v_lshlrev_b32 v{dst+2*i}, 16, v{src+i}\nv_and_b32 v{dst+2*i+1}, 0xffff0000, v{src+i}")
    def rbf(self, p, r):
        p.e(f"v_cvt_pk_bf16_f32 v{r}, v{r}, v{r}\nv_lshlrev_b32 v{r}, 16, v{r}")

    def prologue(self, p):
        e = p.e
        if self.debug or self.o.get("hold"): e("s_memrealtime s[100:101]")
        e(f"s_cmp_ge_u32 {WG}, 256\ns_cbranch_scc1 L_end")
        e("s_load_dwordx16 s[16:31], s[0:1], 0\ns_load_dwordx16 s[32:47], s[0:1], 64\ns_load_dwordx2 s[48:49], s[0:1], 128")
        e(f"v_and_b32 {LANE}, 63, v0\nv_lshrrev_b32 v12, 6, v0\nv_readfirstlane_b32 {WV}, v12")
        if self.o["ipf"]:
            n = self.o["ipf"]
            e(f"s_cmp_lg_u32 {WV}, 7\ns_cbranch_scc1 L_noipf")
            e(f"s_getpc_b64 s[90:91]\nL_pc:\ns_bfe_u32 s51, {WG}, {(n << 16) | 3:#x}\ns_lshl_b32 s51, s51, 13")
            e(f"v_lshl_add_u32 v112, {LANE}, 7, s51\nv_min_u32 v112, L_last-L_pc, v112")
            e("v_mov_b32 v113, s91\nv_add_co_u32 v112, vcc, s90, v112\nv_addc_co_u32 v113, vcc, 0, v113, vcc")
            e("@global_load_dword v114, v[112:113], off\nL_noipf:")
        e(f"v_lshlrev_b32 {L16}, 4, {LANE}\nv_lshlrev_b32 {L4}, 2, {LANE}\nv_mov_b32 {VZ}, 0\nv_mov_b32 {VDBG}, 0\nv_mov_b32 {VSY}, {SYNC}")
        e(f"s_and_b32 {XCD}, {WG}, 7\ns_lshr_b32 {IDX}, {WG}, 3\ns_lshr_b32 {SUB}, {XCD}, 1\ns_and_b32 s14, {XCD}, 1")
        e(f"s_min_u32 s15, {IDX}, 29\ns_mul_i32 {FT}, s15, 52\ns_lshr_b32 {FT}, {FT}, 8")
        e(f"s_mul_i32 s51, {FT}, 5\ns_sub_u32 {DT}, s15, s51")
        if self.o["perm"]: P1_ = make_perm(16, 5, self.o["first1"], self.o["duty1"], self.o["dpp"])
        else: P1_ = [[(((2 * j * 205) >> 7) + i) % 16 for i in range(16)] for j in range(5)]
        for j, o_ in enumerate(P1_):
            lo, hi = pack_perm(o_)
            if j == 0: e(f"s_mov_b32 s74, {lo:#x}\ns_mov_b32 s75, {hi:#x}")
            else: e(f"s_cmp_eq_u32 {DT}, {j}\ns_cselect_b32 s74, {lo:#x}, s74\ns_cselect_b32 s75, {hi:#x}, s75")
        e(f"s_and_b32 s51, {FT}, {self.o['sg1']}\ns_xor_b32 s51, s51, s14\ns_mul_i32 s51, s51, 0x11111111\ns_xor_b32 s74, s74, s51\ns_xor_b32 s75, s75, s51")
        e(f"s_mul_i32 {C0}, {FT}, 3\ns_min_u32 {C0}, {C0}, 14\ns_cmp_lt_u32 {FT}, 4\ns_cselect_b32 {NCH}, 3, 2\ns_cmp_ge_u32 {IDX}, 30\ns_cselect_b32 {NCH}, 0, {NCH}")
        e(f"s_mul_i32 s51, s14, 5\ns_add_u32 {DT}, {DT}, s51\ns_mul_i32 s51, {SUB}, 6\ns_add_u32 {FT}, {FT}, s51")
        e(f"s_and_b32 {DT2}, {IDX}, 3\ns_lshr_b32 {ST2}, {IDX}, 2")
        e(f"s_lshl2_add_u32 {DT2}, s14, {DT2}\ns_lshl3_add_u32 {ST2}, {SUB}, {ST2}")
        e(f"s_cmp_ge_u32 {WV}, 4\ns_cbranch_scc1 L_aux")

    def kk(self, p, g, ks, dst, stride, base):
        p.e(f"s_bfe_u32 {dst}, s{(74 if g == 1 else 80) + ks // 8}, {(4 << 16) | (4 * (ks % 8)):#x}")
        p.e(f"s_mul_i32 {dst}, {dst}, {stride}")
        if base: p.e(f"s_add_u32 {dst}, {dst}, {base}")
    def slot(self, g, ks): return ((ks + (3 if g == 2 else 0)) % RS) * 4096
    def throttle(self, p):
        l = self.label("thr")
        p.e(f"s_cmp_lg_u32 s85, 0\ns_cbranch_scc1 {l}")
        p.e(f"@ds_read_b32 v20, {VSY} offset:{4*Y_PUB}\n@s_waitcnt vmcnt({self.o['thr']}) lgkmcnt(0)\nv_readfirstlane_b32 s85, v20\ns_nop 0\ns_lshr_b32 s85, s85, 1")
        p.e(f"{l}:")
    def dma(self, g, ks, thr=False):
        p = Prog()
        rs, vo, srd, base = (3072, 4, SW1, "s84") if g == 1 else (4096, 12, SW2, "s92")
        self.kk(p, g, ks, "s72", 32 * rs, base)
        for q in range(4):
            if thr and q % 2 == 0: self.throttle(p)
            p.e(f"s_add_u32 m0, {RINGB}, {self.slot(g, ks) + q * 1024}")
            p.e(f"buffer_load_dwordx4 v{vo + (q & 1)}, {srd}, s72 offen {self.o['wflag']} lds", f"w{g}_{ks}")
            if q < 3: p.e(f"s_add_u32 s72, s72, {8*rs}")
        return p
    NB = {1: 6, 2: 4}
    def tr(self, g, ks):
        p = Prog()
        r = 16 * (ks % self.NB[g]); o = self.slot(g, ks)
        p.wvm(f"w{g}_{ks}")
        for ss in range(4):
            p.e(f"ds_read_b64_tr_b16 {a(r+4*ss,2)}, v{14+ss} offset:{o}", f"t{g}_{ks}")
            p.e(f"ds_read_b64_tr_b16 {a(r+4*ss+2,2)}, v{14+ss} offset:{o+512}", f"t{g}_{ks}")
        return p
    def main_start(self, p):
        e = p.e
        e("s_setprio 3")
        e(f"s_mul_i32 {RINGB}, {WV}, {RINGW}\ns_add_u32 {RINGB}, {RINGB}, {RING0}\ns_mov_b32 s85, 0")
        e(f"v_lshrrev_b32 v20, 3, {LANE}\nv_and_b32 v21, 7, {LANE}\nv_and_b32 v22, 2, v20\nv_xor_b32 v21, v21, v22\nv_lshlrev_b32 v21, 4, v21")
        e("v_mul_u32_u24 v4, 3072, v20\nv_add_u32 v4, v4, v21\nv_xor_b32 v5, 64, v4\nv_lshl_add_u32 v12, v20, 12, v21\nv_xor_b32 v13, 64, v12")
        e(f"s_mul_i32 s84, {WV}, {512*3072}\ns_lshl_b32 s51, {FT}, 7\ns_add_u32 s84, s84, s51")
        e(f"s_mul_i32 s92, {WV}, {384*4096}\ns_lshl_b32 s51, {ST2}, 7\ns_add_u32 s92, s92, s51")
        e(f"v_lshrrev_b32 v104, 5, {LANE}\nv_mul_u32_u24 v105, 1280, v104\nv_and_b32 v106, 31, {LANE}")
        e("v_lshl_add_u32 v107, v106, 4, v105\nv_lshl_add_u32 v108, v106, 3, v105")
        e(f"s_lshl_b32 s50, {WG}, 3\ns_lshl1_add_u32 s50, {WV}, s50\ns_mul_i32 s50, s50, 1280")
        e("s_waitcnt lgkmcnt(0)")
        if self.o.get("hold"): e("s_mov_b32 s96, s100")
        if self.o.get("gmin"):
            e(f"s_not_b32 s51, s100\nv_mov_b32 v30, s51\ns_mov_b64 exec, 1\n@global_atomic_umax {VZ}, v30, s[46:47]\ns_mov_b64 exec, -1")
        self.srd(p, 52, 16, 2621440)
        xf = self.o["xflag"]
        e(f"buffer_load_dwordx4 v[20:23], v107, {SX}, s50 offen {xf}", "x")
        e(f"buffer_load_dwordx4 v[24:27], v107, {SX}, s50 offen offset:512 {xf}", "x")
        e(f"buffer_load_dwordx2 v[28:29], v108, {SX}, s50 offen offset:1024 {xf}", "x")
        self.pre(p)
        e("s_barrier")
        self.srd(p, 56, 36, 6291456); self.srd(p, 60, 40, 6291456); self.srd(p, 64, 44, 2621440); self.srd(p, 68, 48, WSEND)
        self.stamp(p)
    def main_setup2(self, p):
        e = p.e
        e(f"v_bfe_u32 v20, {LANE}, 2, 2\nv_and_b32 v21, 3, {LANE}\nv_lshrrev_b32 v22, 4, {LANE}\nv_and_b32 v23, 15, {LANE}")
        e("v_lshlrev_b32 v24, 10, v22\nv_lshl_add_u32 v24, v20, 7, v24\nv_lshl_add_u32 v24, v21, 3, v24")
        e(f"v_lshrrev_b32 v20, 1, v20\nv_and_b32 v21, 1, v22\nv_lshl_or_b32 v20, v21, 1, v20\nv_xor_b32 v20, {WV}, v20\nv_lshlrev_b32 v20, 5, v20")
        e(f"v_add3_u32 v14, v24, v20, {RINGB}\nv_xor_b32 v15, 32, v14\nv_xor_b32 v16, 64, v14\nv_xor_b32 v17, 0x60, v14")
        e(f"s_lshl_b32 s51, {FT}, 7\ns_lshl_b32 s15, {WV}, 5\ns_add_u32 s51, s51, s15\nv_lshl_add_u32 v24, v22, 3, s51")
        e("global_load_dwordx2 v[126:127], v24, s[38:39]", "b1")
        e(f"v_mul_u32_u24 v19, 10240, v22\nv_lshl_add_u32 v19, v23, 4, v19\ns_lshl_b32 s51, {SUB}, 8\nv_add_u32 v120, s51, v19")
        e("v_xor_b32 v121, 0x100, v120\nv_xor_b32 v122, 0x200, v120\nv_xor_b32 v123, 0x300, v120")
        e(f"v_lshrrev_b32 v24, 1, v22\nv_mul_u32_u24 v24, 10240, v24\nv_lshl_add_u32 v24, v23, 4, v24\nv_xor_b32 v25, {SUB}, v21\nv_lshl_add_u32 v6, v25, 8, v24\nv_xor_b32 v7, 0x200, v6")
        e(f"v_subrev_u32 v124, {C0}, v23\nv_mul_u32_u24 v124, {REGSZ}, v124\nv_lshl_add_u32 v124, v22, 4, v124")
        e(f"s_lshl_b32 s51, {WV}, 10\ns_add_u32 s51, s51, {REG0 + UO + 512}\nv_add_u32 v124, s51, v124")
        e(f"s_bfm_b32 s100, {NCH}, {C0}\ns_lshl_b32 s51, s100, 16\ns_or_b32 s100, s100, s51\ns_mov_b32 s101, s100")
        e("v_mul_u32_u24 v18, 1280, v23\nv_lshl_add_u32 v18, v22, 3, v18\nv_lshlrev_b32 v115, 12, v23\nv_lshl_add_u32 v115, v21, 4, v115")
        e(f"s_lshl_b32 s94, {ST2}, 6\ns_lshl_b32 s51, {WV}, 4\ns_add_u32 s94, s94, s51\ns_lshl_b32 s95, s94, 1\nv_lshl_add_u32 v8, v23, 1, s95")
        e(f"s_mul_i32 s94, s94, 1280\ns_mul_i32 s51, {DT2}, 160\ns_add_u32 s94, s94, s51")
        e("v_lshlrev_b32 v24, 3, v22\nv_sub_u32 v24, v23, v24\nv_and_b32 v25, 1, v24\nv_lshlrev_b32 v25, 4, v25\nv_mov_b32 v26, 0x3f80\nv_lshlrev_b32 v25, v25, v26\nv_ashrrev_i32 v24, 1, v24")
        for q in range(4): e(f"v_cmp_eq_u32 vcc, {q}, v24\nv_cndmask_b32 v{116+q}, 0, v25, vcc")
        for q in range(4): e(f"v_cmp_eq_i32 vcc, {q-8}, v24\nv_cndmask_b32 v{104+q}, 0, v25, vcc")
        e("v_lshl_add_u32 v108, v22, 3, v18")
        e("global_load_ushort v114, v8, s[42:43]", "b1")
        if self.o["perm"]: P2_ = make_perm(12, 4, 2, self.o["duty2"])
        else: P2_ = [[(3 * j + i) % 12 for i in range(12)] for j in range(4)]
        e(f"s_and_b32 s15, {IDX}, 3")
        for j, o_ in enumerate(P2_):
            lo, hi = pack_perm(o_)
            if j == 0: e(f"s_mov_b32 s80, {lo:#x}\ns_mov_b32 s81, {hi:#x}")
            else: e(f"s_cmp_eq_u32 s15, {j}\ns_cselect_b32 s80, {lo:#x}, s80\ns_cselect_b32 s81, {hi:#x}, s81")
        e(f"s_and_b32 s15, {ST2}, {self.o['sg2']}\ns_and_b32 s51, {XCD}, 1\ns_xor_b32 s51, s51, s15\ns_mul_i32 s51, s51, 0x11111111\ns_xor_b32 s80, s80, s51\ns_xor_b32 s81, s81, s51")
        e(f"s_mul_i32 s86, {WV}, {64*10240}\ns_lshl_b32 s51, {DT}, 10\ns_add_u32 s86, s86, s51\ns_add_u32 s86, s86, {HB}")
    def xr(self, j): return [v(120, 4), a(64, 4), v(110, 4)][j]
    def xload(self, p):
        for j in range(3): p.e(f"buffer_load_dwordx4 {self.xr(j)}, v108, {SX}, s94 offen offset:{64*j}", f"x{j}")
    def xmm(self, p):
        for di in range(5):
            p.wvm(f"x{di//2}")
            p.e(f"v_mfma_f32_16x16x32_bf16 {self.acc2(di,0)}, {v(104 if di & 1 else 116, 4)}, {self.xr(di//2)}, {self.acc2(di,0)}")
    def acc1(self, t, ds): return [v(72 + 4 * ds, 4), v(88 + 4 * ds, 4), a(96 + 4 * ds, 4), a(112 + 4 * ds, 4)][t]
    def acc2(self, di, ss): return v(84 + 4 * di, 4) if ss == 0 else a(68 + 4 * (di * 3 + ss - 1), 4)

    def gemm_loop(self, p, g, nks, nf, ns, nd, nt, ld, mfma, extra):
        NB = self.NB[g]; n = nks * nf
        for i in range(ns): p.ext(ld(i))
        nl = ns
        G_ = 4 * nf
        for ks in range(nks):
            side = Prog()
            if nd < nks and nd - RS < nt:
                if nd >= RS: side.wlg(f"t{g}_{nd-RS}")
                side.ext(self.dma(g, nd)); nd += 1
            if nt < nks and nt < nd and nt - NB < ks:
                side.ext(self.tr(g, nt)); nt += 1
            early, pre, post = extra(ks)
            gaps = [[] for _ in range(G_)]
            cost = [0] * G_
            def c_of(grp):
                c = 0
                for it, _ in grp:
                    if isinstance(it, tuple): c += 1
                    elif it.startswith(("buffer_", "global_")): c += 3
                    else: c += 1
                return c
            for di in range(1, nf): cost[4 * di - 1] += 1
            cost[G_ - 1] += 2
            for di in range(nf):
                if nf * ks + di >= 1 and nl < n:
                    its = ld(nl).items; nl += 1
                    gi = 4 * di
                    gaps[gi].append(("z", its[-1:])); cost[gi] += 3
                    for k, it in enumerate(its[:-1]):
                        gj = gi - (len(its) - 1 - k)
                        assert gj >= 0
                        gaps[gj].append(("y", [it])); cost[gj] += 1
            pos = 0
            for grp in groups_of(early):
                gi = min(3, 1 + pos); pos += 1
                gaps[gi].append(("a", grp)); cost[gi] += c_of(grp)
            rest = groups_of(pre) + groups_of(side)
            start = 4 if early.items else 1
            tot = sum(c_of(x) for x in rest) + sum(cost[start:])
            gi = start
            for grp in rest:
                lvl = max(2.0, tot / (G_ - start))
                while gi < G_ - 1 and cost[gi] + c_of(grp) > lvl + 0.5 and cost[gi] > 0: gi += 1
                gaps[gi].append(("m", grp)); cost[gi] += c_of(grp)
            p.wlg(f"t{g}_{ks}")
            for di in range(nf):
                p.wvm(f"act{ks}_{di}")
                for ss in range(4):
                    p.e(mfma(ks, di, ss))
                    for key, grp in sorted(gaps[4 * di + ss], key=lambda x: x[0]): p.items.extend(grp)
            p.ext(post)
        assert nl == n and nd == nks and nt == nks

    def gemm1(self, p):
        e = p.e; o = self.o
        HR, ns = 24, o['ns1']
        nd = o['free1']
        def more():
            nonlocal nd
            if nd >= RS: p.wlg(f"t1_{nd-RS}")
            p.ext(self.dma(1, nd, thr=nd < o['nthr'])); nd += 1
            if nd == o["PS1"]: self.sig(p, Y_P1, 20)
            if o.get("fine"): self.stamp(p)
        while nd < o["lead1"]: more()
        p.wvm("b1")
        for ds in range(4): self.unpack(p, 126, 72 + 4 * ds, 2)
        for j in range(o["P1"]):
            p.ext(self.tr(1, j))
            if j == 2 and not o.get('fine'): self.stamp(p)
            if nd < o["D1"]: more()
        while nd < o["D1"]:
            p.wvm(f"w1_{nd-o['lead1']}"); more()
        self.stamp(p)
        self.spin(p, Y_F1, 1, 20, sleep=1)
        e(f"ds_read_b32 {VTAG}, {VSY} offset:{4*Y_TAG}\ns_setprio 2", "tag")
        self.stamp(p)
        def ld(i):
            ks, ds = divmod(i, 4); q = Prog()
            if ds == 0: self.kk(q, 1, ks, "s76", 40960, "s86")
            q.e(f"buffer_load_dwordx4 {v(HR + 4 * (i % ns), 4)}, v{120+ds}, {SWS}, s76 offen sc1", f"act{ks}_{ds}")
            return q
        def mfma(ks, ds, t):
            c = self.acc1(t, ds); src = "0" if (ks == 0 and t > 0) else c
            return f"v_mfma_f32_16x16x32_bf16 {c}, {a(16*(ks%6)+4*t,4)}, {v(HR + 4 * ((4*ks+ds) % ns), 4)}, {src}"
        def extra(ks):
            pre = Prog(); post = Prog(); q = Prog()
            q.e(f"s_bfe_u32 s14, s{74 + ks // 8}, {(4 << 16) | (4 * (ks % 8)):#x}\nv_lshl_add_u32 v125, s14, 6, v124")
            q.e(f"s_mov_b64 exec, s[100:101]\nds_write_b128 v125, {v(HR + 4 * ((4 * ks) % ns), 4)}\ns_mov_b64 exec, -1", "uc")
            if ks % 4 == 3: self.sig(pre, Y_U + ks // 4, 20)
            if ks in (0, 5, 10): self.stamp(post)
            return q, pre, post
        self.gemm_loop(p, 1, 16, 4, ns, nd, o["P1"], ld, mfma, extra)
        self.stamp(p)
    def gemm1_epi(self, p):
        e = p.e; RD = 24
        if self.o["xk"] < 0: self.xload(p)
        if self.o["ebpos"] == 0:
            for ks in range(self.o["eb"]): p.ext(self.dma(2, ks))
        e(f"v_add_u32 v20, {RINGB}, {L16}")
        for t in range(1, 4):
            for ds in range(4): e(f"ds_write_b128 v20, {self.acc1(t, ds)} offset:{(t-1)*4096+ds*1024}", "r1w")
        self.sig(p, Y_PART, 21)
        if self.o["ebpos"] == 1:
            for ks in range(self.o["eb"]): p.ext(self.dma(2, ks))
        for t in range(1, 4):
            e(f"s_xor_b32 s51, {WV}, {t}\ns_mul_i32 s51, s51, {RINGW}\ns_add_u32 s51, s51, {RING0 + (t-1)*4096}\nv_add_u32 v{20+t}, s51, {L16}")
        e(f"s_lshl_b32 s50, {FT}, 3\ns_lshl_b32 s51, {WV}, 1\ns_add_u32 s50, s50, s51\ns_mul_i32 s50, s50, 10240")
        e(f"s_lshl_b32 s51, {DT}, 10\ns_add_u32 s50, s50, s51\ns_add_u32 s86, s50, {GB}")
        e(f"s_mul_i32 s89, {DT}, 24\ns_add_u32 s89, s89, {FT}\ns_lshl_b32 s89, s89, 7\ns_add_u32 s89, s89, {F2}")
        c1 = -2 * 0.7978845608028654 * 1.4426950408889634; c3 = c1 * 0.044715
        e(f"s_mov_b32 s90, {fbits(c3)}\nv_mov_b32 v126, {fbits(c1)}")
        self.spin(p, Y_PART, 4, 20)
        for q in range(4):
            for t in range(3): e(f"ds_read_b128 {v(RD+16*t+4*q,4)}, v{21+t} offset:{q*1024}", f"r1r{q}")
        if self.o["ebpos"] == 2:
            for ks in range(self.o["eb"]): p.ext(self.dma(2, ks))
        for pr in range(2):
            p.wlg(f"r1r{2*pr+1}")
            q = [(72 + 8 * pr + i, RD + 8 * pr + i, 88 + 8 * pr + i) for i in range(8)]
            if self.o["epk"]:
                q2 = q[::2]
                for x, r, t in q2: e(f"v_pk_add_f32 {v(x,2)}, {v(x,2)}, {v(r,2)}\nv_pk_add_f32 {v(r+16,2)}, {v(r+16,2)}, {v(r+32,2)}")
                for x, r, t in q2: e(f"v_pk_add_f32 {v(x,2)}, {v(x,2)}, {v(r+16,2)}")
                for x, r, t in q2: e(f"v_pk_mul_f32 {v(t,2)}, {v(x,2)}, {v(x,2)}")
                for x, r, t in q2: e(f"v_pk_fma_f32 {v(t,2)}, {v(t,2)}, s[90:91], v[126:127] op_sel_hi:[1,0,0]")
                for x, r, t in q2: e(f"v_pk_mul_f32 {v(t,2)}, {v(t,2)}, {v(x,2)}")
                for x, r, t in q: e(f"v_exp_f32 v{t}, v{t}")
                for x, r, t in q2: e(f"v_pk_add_f32 {v(t,2)}, {v(t,2)}, 1.0 op_sel_hi:[1,0]")
                for x, r, t in q: e(f"v_rcp_f32 v{t}, v{t}")
                for x, r, t in q2: e(f"v_pk_mul_f32 {v(t,2)}, {v(t,2)}, {v(x,2)}")
            else:
                for x, r, t in q: e(f"v_add_f32 v{x}, v{x}, v{r}\nv_add_f32 v{r+16}, v{r+16}, v{r+32}")
                for x, r, t in q: e(f"v_add_f32 v{x}, v{x}, v{r+16}")
                for x, r, t in q: e(f"v_mul_f32 v{t}, v{x}, v{x}")
                for x, r, t in q: e(f"v_fma_f32 v{t}, v{t}, s90, v126")
                for x, r, t in q: e(f"v_mul_f32 v{t}, v{t}, v{x}")
                for x, r, t in q: e(f"v_exp_f32 v{t}, v{t}")
                for x, r, t in q: e(f"v_add_f32 v{t}, 1.0, v{t}")
                for x, r, t in q: e(f"v_rcp_f32 v{t}, v{t}")
                for x, r, t in q: e(f"v_mul_f32 v{t}, v{t}, v{x}")
            o = 56 + 8 * pr
            for i in range(4): e(f"v_cvt_pk_bf16_f32 v{o+i}, v{q[2*i][2]}, v{q[2*i+1][2]}")
            e(f"v_permlane16_swap_b32 v{o}, v{o+2}\nv_permlane16_swap_b32 v{o+1}, v{o+3}")
            e(f"buffer_store_dwordx4 {v(o,4)}, v{6+pr}, {SWS}, s86 offen sc1", "gs")
        self.sig(p, Y_EPI, 20)
        self.stamp(p)
        for ks in range(min(self.o["eb"], self.o["P2"])): p.ext(self.tr(2, ks))
        e("s_waitcnt vmcnt(0)")
        l = self.label("nolast")
        e(f"v_mov_b32 v20, 1\ns_mov_b64 exec, 1\nds_add_rtn_u32 v20, {VSY}, v20 offset:{4*Y_G}\ns_mov_b64 exec, -1\ns_waitcnt lgkmcnt(0)\nv_readfirstlane_b32 s79, v20")
        e(f"s_cmp_lg_u32 s79, 3\ns_cbranch_scc1 {l}")
        self.flag_store(p, "s89", "@")
        e(f"{l}:")
        self.stamp(p)
    def gemm2(self, p, spare):
        e = p.e; o = self.o
        GR, ns = 24, o['ns2']
        e(f"s_mul_i32 s86, {WV}, {48*10240}\ns_mul_i32 s51, {DT2}, 1280\ns_add_u32 s86, s86, s51\ns_add_u32 s86, s86, {GB}")
        e(f"s_mul_i32 s88, {DT2}, {80*4096}\ns_add_u32 s88, s88, s95\ns_add_u32 s88, s88, {YT}")
        nd = o["eb"]; nt = min(o["eb"], o["P2"])
        e("v_lshlrev_b32 v114, 16, v114")
        for i in range(20): e(f"v_mov_b32 v{84+i}, v114")
        if o["xk"] < 0: self.xmm(p)
        self.spin(p, Y_G, 4, 20)
        def more():
            nonlocal nd
            if nd >= RS: p.wlg(f"t2_{nd-RS}")
            p.ext(self.dma(2, nd)); nd += 1
            if nd == o["PS2"]: self.sig(p, Y_P2, 20)
        while nd < min(o["D2"], nt + o["lead2"]): more()
        while nt < o["P2"]:
            p.ext(self.tr(2, nt)); nt += 1
            if nd < o["D2"]: more()
        while nd < o["D2"]:
            p.wvm(f"w2_{nd-o['lead2']}"); more()
        self.stamp(p)
        self.spin(p, Y_F2, 1, 20, sleep=1)
        self.stamp(p)
        def ld(i):
            ks, di = divmod(i, 5); q = Prog()
            if di == 0: self.kk(q, 2, ks, "s76", 40960, "s86")
            q.e(f"buffer_load_dwordx4 {v(GR + 4 * (i % ns), 4)}, v19, {SWS}, s76 offen offset:{256*di} sc1", f"act{ks}_{di}")
            return q
        def mfma(ks, di, ss):
            c = self.acc2(di, ss); src = "0" if (ks == 0 and ss > 0) else c
            return f"v_mfma_f32_16x16x32_bf16 {c}, {v(GR + 4 * ((5*ks+di) % ns), 4)}, {a(16*(ks%4)+4*ss,4)}, {src}"
        yk = o["ychk"]; assert yk >= 9
        def extra(ks):
            pre = Prog(); post = Prog()
            if ks == o["ytrig"]: self.sig(post, Y_P3, 20)
            if ks == o["xk"]: self.xload(post)
            if ks == yk:
                self.spin(post, Y_F3, 1, 20, sleep=2)
                for di in range(5):
                    post.e(f"buffer_load_dwordx4 {a(4*di,4)}, v115, {SWS}, s88 offen sc1", f"y{di}")
                    post.e("s_add_u32 s88, s88, 65536")
            if ks in (0, 3, 7): self.stamp(post)
            return Prog(), pre, post
        self.gemm_loop(p, 2, 12, 5, ns, nd, nt, ld, mfma, extra)
        self.stamp(p)
        e(f"v_add_u32 v20, {RINGB}, {L16}")
        for t in range(1, 4):
            for di in range(5): e(f"ds_write_b128 v20, {self.acc2(di,t)} offset:{(t-1)*5120+di*1024}", "r2w")
        for t in range(1, 4):
            e(f"s_xor_b32 s51, {WV}, {t}\ns_mul_i32 s51, s51, {RINGW}\ns_add_u32 s51, s51, {RING0 + (t-1)*5120}\nv_add_u32 v{20+t}, s51, {L16}")
        if o["xk"] >= 0: self.xmm(p)
        for di in range(5):
            p.wvm(f"y{di}")
            e(f"v_mfma_f32_16x16x32_bf16 {self.acc2(di,0)}, {a(4*di,4)}, v[116:119], {self.acc2(di,0)}")
        e("s_waitcnt lgkmcnt(0)\ns_barrier")
        for di in range(5):
            for t in range(3): e(f"ds_read_b128 {v(GR+12*di+4*t,4)}, v{21+t} offset:{di*1024}", f"r2r{di}")
        for di in range(5):
            c = 84 + 4 * di; r = GR + 12 * di
            p.wlg(f"r2r{di}")
            for hq in range(2): e(f"v_pk_add_f32 {v(r+2*hq,2)}, {v(r+2*hq,2)}, {v(r+4+2*hq,2)}\nv_pk_add_f32 {v(c+2*hq,2)}, {v(c+2*hq,2)}, {v(r+8+2*hq,2)}")
            for hq in range(2): e(f"v_pk_add_f32 {v(c+2*hq,2)}, {v(c+2*hq,2)}, {v(r+2*hq,2)}")
            for hq in range(2): e(f"v_cvt_pk_bf16_f32 v{104+2*di+hq}, v{c+2*hq}, v{c+2*hq+1}")
            e(f"buffer_store_dwordx2 {v(104+2*di,2)}, v18, {SOUT}, s94 offen offset:{32*di} {o['oflag']}", "os")
        self.stamp(p)

    def main(self):
        self.role = "main"
        p = Prog(); e = p.e
        self.main_start(p)
        for ks in range(self.o["pre1"]): p.ext(self.dma(1, ks))
        self.ln(p)
        e(f"s_setprio {self.o['mprio']}")
        for ks in range(self.o["pre1"], self.o["free1"]): p.ext(self.dma(1, ks))
        self.stamp(p)
        self.main_setup2(p)
        e(f"s_cmp_lt_u32 {IDX}, 30\ns_cbranch_scc1 L_g1")
        q = Prog()
        q.e("s_waitcnt vmcnt(0)")
        self.spin(q, Y_PUB, 2, 20, sleep=4)
        if self.o["xk"] < 0: self.xload(q)
        for ks in range(self.o["eb"]): q.ext(self.dma(2, ks))
        for ks in range(min(self.o["eb"], self.o["P2"])): q.ext(self.tr(2, ks))
        self.sig(q, Y_G, 20)
        q.e("s_waitcnt vmcnt(0) lgkmcnt(0)\ns_branch L_g2")
        for line in finalize(q).split("\n"):
            if line.strip(): e(line.strip() if line.strip().endswith(":") else "@" + line.strip())
        e("L_g1:")
        self.gemm1(p)
        self.gemm1_epi(p)
        e("L_g2:")
        self.gemm2(p, False)
        e(f"s_or_b32 s51, {WG}, {WV}\ns_cmp_lg_u32 s51, 0\ns_cbranch_scc1 L_noep")
        e(f"s_mov_b64 exec, 1\nbuffer_store_dword {VTAG}, {VZ}, {SWS}, 0 offen\ns_mov_b64 exec, -1")
        e("L_noep:")
        if self.o.get("gmin"):
            e(f"global_load_dword v30, {VZ}, s[46:47] sc1\ns_waitcnt vmcnt(0)\nv_readfirstlane_b32 s96, v30\ns_nop 1\ns_not_b32 s96, s96")
        if self.o.get("hold"):
            e(f"L_hold:\ns_memrealtime s[82:83]\ns_waitcnt lgkmcnt(0)\ns_sub_u32 s82, s82, s96\ns_cmp_lt_u32 s82, {self.o['hold']}\ns_cbranch_scc1 L_hold")
        self.finish(p)
        return p

    def red32(self, p, regs, tmp):
        for m in ("quad_perm:[1,0,3,2]", "quad_perm:[2,3,0,1]", "row_half_mirror", "row_mirror"):
            for r in regs: p.e(f"v_add_f32_dpp v{r}, v{r}, v{r} {m} row_mask:0xf bank_mask:0xf")
        for i, r in enumerate(regs): p.e(f"v_mov_b32 v{tmp+i}, v{r}")
        for i, r in enumerate(regs): p.e(f"v_permlane16_swap_b32 v{r}, v{tmp+i}")
        for i, r in enumerate(regs): p.e(f"v_add_f32 v{r}, v{r}, v{tmp+i}")
    RAW = [4, 5, 6, 7, 8, 12, 13, 14, 15, 16, 17, 18]
    def conv_start(self, p):
        e = p.e; RAW = self.RAW
        e(f"s_sub_u32 s14, {WV}, 4\ns_cmp_ge_u32 s14, {NCH}\ns_cbranch_scc1 L_end\ns_setprio {self.o['kprio']}")
        e(f"s_lshl_b32 {CH}, {DT}, 6\ns_lshl4_add_u32 {CH}, {SUB}, {CH}\ns_add_u32 {CH}, {CH}, {C0}\ns_add_u32 {CH}, {CH}, s14")
        e(f"s_mul_i32 {REGB}, s14, {REGSZ}\ns_add_u32 {REGB}, {REGB}, {REG0}")
        e(f"s_mul_i32 s51, {CH}, 384\nv_add_u32 v110, s51, {L4}\nv_lshlrev_b32 v111, 1, {LANE}\nv_add_u32 v111, s51, v111")
        e(f"s_lshr_b32 s79, {CH}, 1\ns_lshl_b32 s79, s79, 2")
        e("s_waitcnt lgkmcnt(0)")
        e(f"s_load_dword s80, s[30:31], s79\ns_load_dword s81, s[32:33], s79")
        if not self.o["pfirst"]: e("s_barrier")
        for i in range(6):
            e(f"global_load_dword v{RAW[2*i]}, v110, s[{18+2*i}:{19+2*i}] {self.o['pflag']}")
            e(f"global_load_ushort v{RAW[2*i+1]}, v111, s[{18+2*i}:{19+2*i}] offset:256 {self.o['pflag']}")
        self.pre(p)
        if self.o["pfirst"]: e("s_barrier")
        self.srd(p, 68, 48, WSEND)
        e("s_waitcnt lgkmcnt(0)")
    def serv_start(self, p):
        e = p.e
        e("s_setprio 3")
        e(f"v_add_u32 v109, {SYNC}, {L4}\ns_mov_b32 exec_hi, 0\nds_write_b32 v109, {VZ}\ns_mov_b64 exec, -1")
        e("s_waitcnt lgkmcnt(0)")
        self.pre(p)
        e(f"s_load_dword {TAG}, s[48:49], 0")
        e("s_barrier")
        self.srd(p, 60, 40, 6291456); self.srd(p, 68, 48, WSEND)
        if self.o["tch"]:
            self.srd(p, 56, 36, 6291456); self.srd(p, 64, 44, 2621440)
            e(f"v_lshlrev_b32 v100, {self.o['tch']}, {LANE}\nv_add_u32 v100, 0x3000, v100")
            for i, srd in enumerate((SWS, SW1, SW2, SOUT)): e(f"buffer_load_dword v{101+i}, v100, {srd}, 0 offen")
            e(f"global_load_dword v105, {VZ}, s[38:39]\nglobal_load_dword v106, {VZ}, s[42:43]")
    def ln(self, p):
        e = p.e
        RAW, F, D, T, H = 20, 30, 50, 70, 90
        inv = fbits(1.0 / 640)
        e(f"s_lshr_b32 s51, {WV}, 1\ns_mul_i32 s51, s51, {REGSZ}\ns_and_b32 s15, {WV}, 1\ns_mul_i32 s15, s15, {2*PT}\ns_add_u32 s51, s51, s15\ns_add_u32 s51, s51, {LNT}")
        e(f"v_mul_u32_u24 v102, {PT}, v104\nv_add_u32 v102, s51, v102\nv_lshl_add_u32 v101, v106, 3, v102\nv_lshl_add_u32 v100, v106, 4, v102")
        p.wvm("x")
        self.stamp(p)
        self.unpack(p, RAW, F, 10)
        def psum(src, dst):
            e(f"v_pk_add_f32 {v(dst,2)}, {v(src,2)}, {v(src+2,2)}\nv_pk_add_f32 {v(dst+2,2)}, {v(src+4,2)}, {v(src+6,2)}")
            for i in range(4, 10): e(f"v_pk_add_f32 {v(dst+2*(i&1),2)}, {v(dst+2*(i&1),2)}, {v(src+2*i,2)}")
            e(f"v_pk_add_f32 {v(dst,2)}, {v(dst,2)}, {v(dst+2,2)}\nv_add_f32 v{dst}, v{dst}, v{dst+1}")
        def psq(src, dst):
            e(f"v_pk_mul_f32 {v(dst,2)}, {v(src,2)}, {v(src,2)}\nv_pk_mul_f32 {v(dst+2,2)}, {v(src+2,2)}, {v(src+2,2)}")
            for i in range(2, 10): e(f"v_pk_fma_f32 {v(dst+2*(i&1),2)}, {v(src+2*i,2)}, {v(src+2*i,2)}, {v(dst+2*(i&1),2)}")
            e(f"v_pk_add_f32 {v(dst,2)}, {v(dst,2)}, {v(dst+2,2)}\nv_add_f32 v{dst}, v{dst}, v{dst+1}")
        def rstd(var, out):
            e(f"v_max_f32 v{var}, 0, v{var}")
            self.rbf(p, var); e(f"v_add_f32 v{var}, {fbits(1e-5)}, v{var}"); self.rbf(p, var)
            e(f"v_sqrt_f32 v{var}, v{var}"); self.rbf(p, var); e(f"v_rcp_f32 v{out}, v{var}")
        psum(F, T); self.red32(p, [T], T + 2)
        e(f"v_mul_f32 v{T}, {inv}, v{T}\nv_mov_b32 v{T+4}, v{T}"); self.rbf(p, T + 4)
        for i in range(10): e(f"v_pk_add_f32 {v(D+2*i,2)}, {v(F+2*i,2)}, {v(T+4,2)} op_sel_hi:[1,0] neg_lo:[0,1] neg_hi:[0,1]")
        e(f"v_sub_f32 v{T+5}, v{T}, v{T+4}")
        psq(D, T); self.red32(p, [T], T + 2)
        e(f"v_mul_f32 v{T}, {inv}, v{T}\nv_fma_f32 v{T}, -v{T+5}, v{T+5}, v{T}")
        rstd(T, T + 6)
        for i in range(10): e(f"v_pk_mul_f32 {v(D+2*i,2)}, {v(D+2*i,2)}, {v(T+6,2)} op_sel_hi:[1,0]")
        for i in range(10): e(f"v_cvt_pk_bf16_f32 v{RAW+i}, v{D+2*i}, v{D+2*i+1}")
        self.unpack(p, RAW, F, 10)
        psum(F, T); psq(F, T + 4); self.red32(p, [T, T + 4], T + 2)
        e(f"v_mul_f32 v{T}, {inv}, v{T}\nv_mul_f32 v{T+4}, {inv}, v{T+4}\nv_fma_f32 v{T+4}, -v{T}, v{T}, v{T+4}")
        self.rbf(p, T)
        rstd(T + 4, T + 6)
        e(f"v_mul_f32 v{T+2}, v{T}, v{T+6}\nv_lshrrev_b32 v{T+4}, 16, v{T+4}\nv_or_b32 v{T+4}, v{T+4}, v{T}")
        for i in range(10): e(f"v_pk_fma_f32 {v(D+2*i,2)}, {v(F+2*i,2)}, {v(T+6,2)}, {v(T+2,2)} op_sel_hi:[1,0,0] neg_lo:[0,0,1] neg_hi:[0,0,1]")
        e(f"ds_write_b32 v102, v{T+4} offset:1280", "lnw")
        for i in range(10): e(f"v_cvt_pk_bf16_f32 v{H+i}, v{D+2*i}, v{D+2*i+1}")
        e(f"ds_write_b128 v100, {v(H,4)}\nds_write_b128 v100, {v(H+4,4)} offset:512\nds_write_b64 v101, {v(H+8,2)} offset:1024", "lnw")
        self.sig(p, Y_LN, T)

    def serv(self):
        self.role = "serv"
        p = Prog(); e = p.e; o = self.o
        self.serv_start(p)
        self.stamp(p)
        e(f"v_bfe_u32 v12, {LANE}, 2, 2\nv_mul_u32_u24 v12, {PT}, v12\nv_lshrrev_b32 v13, 4, {LANE}\nv_lshl_add_u32 v12, v13, 5, v12")
        e(f"v_and_b32 v13, 3, {LANE}\nv_lshl_add_u32 v12, v13, 3, v12\nv_add_u32 v12, {LNT}, v12")
        e(f"s_mul_i32 s84, {WG}, 10240\ns_add_u32 s84, s84, {HB}\ns_add_u32 s85, s84, 4096\ns_add_u32 s86, s84, 8192")
        e(f"s_lshl_b32 s87, {WG}, 4\ns_add_u32 s87, s87, {STAT}\nv_lshlrev_b32 v13, 12, {LANE}")
        e(f"s_lshr_b32 s89, {WG}, 2\ns_lshl_b32 s89, s89, 7\ns_and_b32 s51, {WG}, 3\ns_lshl2_add_u32 s89, s51, s89\ns_add_u32 s89, s89, {F1}\nv_lshlrev_b32 v14, 7, {LANE}")
        e("s_waitcnt lgkmcnt(0)")
        self.mktag(p)
        e(f"ds_write_b32 {VSY}, {VTAG} offset:{4*Y_TAG}")
        self.spin(p, Y_LN, 4, 20, sleep=1)
        if self.o.get("dly_p"): e(f"s_sleep {self.o['dly_p']}")
        self.stamp(p)
        for b in range(11):
            e(f"ds_read_b64_tr_b16 {v(24+4*b,2)}, v12 offset:{128*b}\nds_read_b64_tr_b16 {v(26+4*b,2)}, v12 offset:{128*b+REGSZ}", f"lr{b}")
            if b >= 3:
                c = b - 3; p.wlg(f"lr{c}")
                e(f"buffer_store_dwordx4 {v(24+4*c,4)}, {L16}, {SWS}, s{84 + c//4} offen offset:{(c%4)*1024} sc1")
        for c in range(8, 10):
            p.wlg(f"lr{c}")
            e(f"buffer_store_dwordx4 {v(24+4*c,4)}, {L16}, {SWS}, s{84 + c//4} offen offset:{(c%4)*1024} sc1")
        p.wlg("lr10")
        e(f"s_mov_b64 exec, 3\nbuffer_store_dwordx4 v[64:67], v13, {SWS}, s87 offen sc1\ns_mov_b64 exec, -1")
        self.sig(p, Y_PUB, 20)
        self.stamp(p)
        e(f"s_mul_i32 s50, {DT2}, 80\ns_lshr_b32 s50, s50, 6\ns_mul_i32 s92, s50, {24*128}\ns_add_u32 s92, s92, {F2}")
        e(f"v_min_u32 v15, 47, {LANE}\nv_lshlrev_b32 v15, 7, v15\nv_min_u32 v16, 29, {LANE}\nv_lshlrev_b32 v16, 7, v16")
        e(f"s_mul_i32 s93, {DT2}, {30*128}\ns_add_u32 s93, s93, {F3}")
        e("s_waitcnt vmcnt(0)")
        if self.o.get("dly_f"):
            self.sig(p, Y_PUB, 20); e(f"s_sleep {self.o['dly_f']}")
        self.flag_store(p, "s89")
        self.sig(p, Y_PUB, 20)
        self.stamp(p)
        e(f"s_cmp_lt_u32 {IDX}, 30\ns_cbranch_scc1 L_s1")
        e(f"v_lshrrev_b32 v17, 3, {LANE}\nv_lshlrev_b32 v17, 12, v17\nv_and_b32 v18, 7, {LANE}\nv_lshl_add_u32 v17, v18, 7, v17")
        e(f"s_lshl_b32 s88, {SUB}, 10\ns_and_b32 s51, {IDX}, 1\ns_lshl_b32 s51, s51, 15\ns_add_u32 s88, s88, s51\ns_and_b32 s51, {XCD}, 1\ns_lshl_b32 s51, s51, 16\ns_add_u32 s88, s88, s51")
        if o["slow"]:
            e(f"v_lshlrev_b32 v18, 12, {LANE}\ns_lshl_b32 s87, {SUB}, 10\ns_add_u32 s87, s87, 384\ns_and_b32 s51, {IDX}, 1\ns_lshl_b32 s51, s51, 18\ns_add_u32 s87, s87, s51")
            for i in range(12): e(f"buffer_load_dword v{70+i}, v18, {SW2}, s87 offen\ns_add_u32 s87, s87, {128*4096}")
        for i in range(o["nsp"]):
            e(f"buffer_load_dword v{24+i}, v17, {SW2}, s88 offen\ns_add_u32 s88, s88, 131072")
        e("s_waitcnt vmcnt(0)\ns_branch L_s2\nL_s1:")
        self.spin(p, Y_P1, 1, 20, sleep=2)
        self.stamp(p)
        e(f"s_mov_b32 s50, {F1}")
        self.poll(p, "v14", "s50", 20, wide=True, sleep=o["psleep"])
        self.sig(p, Y_F1, 20)
        self.stamp(p)
        if self.debug: e(f"v_writelane_b32 {VDBG}, s78, 31")
        e("L_s2:")
        self.spin(p, Y_P2, 1, 20, sleep=4)
        self.stamp(p)
        self.poll(p, "v15", "s92", 20, sleep=o["psleep2"])
        self.sig(p, Y_F2, 20)
        self.stamp(p)
        if self.debug: e(f"v_writelane_b32 {VDBG}, s78, 30")
        self.spin(p, Y_P3, 1, 20, sleep=4)
        if o["sp3"]:
            e("s_add_u32 s94, s48, s93\ns_addc_u32 s95, s49, 0\ns_mov_b32 s78, 0\ns_branch L_sp3f\nL_sp3:")
            e(f"s_sleep {o['sp3']}\nL_sp3f:")
            for i in range(30): e(f"s_load_dword s{16+i}, s[94:95], {128*i} glc")
            e("s_add_u32 s78, s78, 1\ns_waitcnt lgkmcnt(0)")
            e(f"s_xor_b32 s79, s16, {TAG}")
            for i in range(1, 30): e(f"s_xor_b32 s51, s{16+i}, {TAG}\ns_or_b32 s79, s79, s51")
            e("s_cmp_gt_u32 s78, 0x8000\ns_cbranch_scc1 L_sp3d\ns_cmp_lg_u32 s79, 0\ns_cbranch_scc1 L_sp3\nL_sp3d:")
        else: self.poll(p, "v16", "s93", 20, sleep=o["psleep2"])
        self.sig(p, Y_F3, 20)
        if self.debug: e(f"v_writelane_b32 {VDBG}, s78, 29")
        self.finish(p)
        return p

    def kgen(self, p):
        e = p.e; RAW = self.RAW
        L2E = 1.4426950408889634
        l2e_hi = struct.unpack("<f", struct.pack("<f", L2E))[0]; l2e_lo = L2E - l2e_hi
        VDT, VD1, VD2, VDS, WA, RA, RB = 54, 55, 56, 57, 58, 59, 60
        e(f"s_and_b32 s51, {CH}, 1\ns_lshl_b32 s51, s51, 4\ns_lshr_b32 s80, s80, s51\ns_lshl_b32 s80, s80, 16\ns_lshr_b32 s81, s81, s51\ns_lshl_b32 s81, s81, 16")
        e(f"v_mov_b32 v62, s80\nv_mov_b32 v63, {fbits(l2e_hi)}\nv_mul_f32 v64, v62, v63\nv_fma_f32 v65, v62, v63, -v64\nv_fmac_f32 v65, {fbits(l2e_lo)}, v62")
        e(f"v_exp_f32 v64, v64\nv_mul_f32 v65, {fbits(0.6931471805599453)}, v65\nv_fma_f32 v{VDT}, v64, v65, v64")
        self.rbf(p, VDT)
        e(f"v_mul_f32 v{VD1}, {fbits(L2E)}, v{VDT}\nv_mul_f32 v{VD2}, 0.15915494, v{VDT}")
        e(f"v_cmp_eq_u32 vcc, 0, {LANE}\nv_mov_b32 v62, s81\nv_cndmask_b32 v{VDS}, 0, v62, vcc")
        e(f"s_mov_b32 m0, {REGB}")
        e(f"v_and_b32 v62, 31, {LANE}\nv_lshrrev_b32 v63, 5, {LANE}\nv_lshlrev_b32 v63, 4, v63\nv_add_u32 v63, {REGB}, v63")
        e(f"v_mul_u32_u24 v64, {KP}, v62\nv_add_u32 v{RB}, v64, v63")
        e(f"v_min_u32 v62, 20, v62\nv_mul_u32_u24 v64, {KP}, v62\nv_add_u32 v{RA}, v64, v63")
        e("v_mov_b32 v28, 0x3f80")
        e("s_waitcnt vmcnt(0)")
        self.stamp(p)
        PK = 116; pk = [0]; P = 62
        FA, FB = 16, 48
        def mf(rd):
            l = []
            for s in range(8):
                q = Prog()
                c = a(0, 16)
                q.e(f"v_mfma_f32_32x32x16_bf16 {a(0,16)}, {a(FA+4*s,4)}, {a(FB+4*s,4)}, {c}")
                l.append(q)
            return l
        p.e("s_mov_b32 s76, 0\nL_kg:")
        for rd in (1,):
            usepk = self.o["pk"]
            q = Prog(); e = q.e
            def cmul(sets):
                if usepk:
                    for d, x, y in sets: e(f"v_pk_mul_f32 {v(d,2)}, {v(x,2)}, {v(y,2)} op_sel_hi:[0,1]")
                    for d, x, y in sets: e(f"v_pk_fma_f32 {v(d,2)}, {v(x,2)}, {v(y,2)}, {v(d,2)} op_sel:[1,1,0] op_sel_hi:[1,0,1] neg_lo:[1,0,0]")
                else:
                    for d, x, y in sets: e(f"v_mul_f32 v{d}, v{x}, v{y}\nv_mul_f32 v{d+1}, v{x}, v{y+1}")
                    for d, x, y in sets: e(f"v_fma_f32 v{d}, -v{x+1}, v{y+1}, v{d}\nv_fmac_f32 v{d+1}, v{x+1}, v{y}")
            def puts(l, neg):
                rs = []
                for row, z in l:
                    r = PK + pk[0] % 8; pk[0] += 1; rs.append(r)
                    e(f"v_cvt_pk_bf16_f32 v{r}, v{z}, {'-' if neg else ''}v{z+1}")
                for (row, z), r in zip(l, rs): e(f"ds_write_addtid_b32 v{r} offset:{row*KP}", "kw")
            for i in range(6):
                e(f"v_lshlrev_b32 v{P+i}, 16, v{RAW[2*i]}\nv_alignbit_b32 v{RAW[2*i]}, v{RAW[2*i+1]}, v{RAW[2*i]}, 16")
            AR, AI = 68, 69
            e(f"v_mul_f32 v{AR}, v{P}, v{VD1}\nv_mul_f32 v{AI}, v{P+1}, v{VD2}")
            e(f"v_mul_f32 v{P+2}, v{P+2}, v{VDT}\nv_mul_f32 v{P+3}, v{P+3}, v{VDT}")
            E1, E8, E256 = 70, 72, 74
            TM_, TA = 76, 79
            for i, t in enumerate((1.0, 8.0, 256.0)):
                if i == 0: e(f"v_mov_b32 v{TM_}, v{AR}\nv_fract_f32 v{TA}, v{AI}")
                else: e(f"v_mul_f32 v{TM_+i}, {fbits(t)}, v{AR}\nv_mul_f32 v{TA+i}, {fbits(t)}, v{AI}\nv_fract_f32 v{TA+i}, v{TA+i}")
            X = 82
            cmul([(X, P + 4, P + 2)])
            for i in range(3):
                e(f"v_exp_f32 v{TM_+i}, v{TM_+i}\nv_cos_f32 v{E1+2*i}, v{TA+i}\nv_sin_f32 v{E1+2*i+1}, v{TA+i}")
            for i in range(3): e(f"v_mul_f32 v{E1+2*i}, v{E1+2*i}, v{TM_+i}\nv_mul_f32 v{E1+2*i+1}, v{E1+2*i+1}, v{TM_+i}")
            E2, E4, E16, E512 = 98, 100, 102, 104
            EA, EB, E32, Y, Z = 106, 20, 114, 30, 38
            cmul([(E2, E1, E1), (E16, E8, E8), (E512, E256, E256), (X + 2, X, E1)])
            cmul([(E4, E2, E2), (EA + 6, E16, E8), (E32, E16, E16), (X + 4, X, E2), (X + 6, X + 2, E2)])
            p.ext(q)
            p.e("s_waitcnt lgkmcnt(0)")
            q = Prog(); e = q.e
            e(f"ds_write_addtid_b32 v28", "kw")
            puts([(1, E8), (2, E16), (3, EA + 6), (4, E32)], False)
            cmul([(EB, E8, E32), (EB + 2, E16, E32), (EB + 4, EA + 6, E32), (EB + 6, E32, E32)])
            cur, nxt = EB, EA
            extra = [[(X + 8 + 2 * i, X + 2 * i, E4) for i in range(4)], [(Y + 2 * i, X + 4 * i, E256) for i in range(4)],
                     [(Z, X, E512), (Z + 2, X + 8, E512), (Z + 4, Y, E512), (Z + 6, Y + 4, E512)],
                     [(Z + 8, Z, E512), (Z + 10, Z + 4, E512)], [(Z + 12, Z + 8, E512), (Z + 14, Z + 10, E512)], [(E1, Z + 12, E512)]]
            for st in range(6):
                j0 = 9 + 4 * st
                n = min(4, 32 - j0)
                cmul([(nxt + 2 * i, cur + 2 * i, E32) for i in range(n)])
                puts([(j0 - 4 + i, cur + 2 * i) for i in range(4)], False)
                cmul(extra[st])
                cur, nxt = nxt, cur
            puts([(29 + i, cur + 2 * i) for i in range(3)], False)
            if rd > 0: p.ext(interleave(q, mf(rd - 1)))
            else: p.ext(q)
            for s_ in range(8): p.e(f"ds_read_b128 {a(FB+4*s_,4)}, v{RB} offset:{s_*32}", "kr")
            e = p.e
            puts([(i, X + 2 * i) for i in range(4)], True); puts([(4 + i, X + 8 + 2 * i) for i in range(4)], True)
            puts([(8 + i, Y + 2 * i) for i in range(4)], True); puts([(12 + i, Z + 2 * i) for i in range(4)], True)
            puts([(16 + i, Z + 8 + 2 * i) for i in range(4)] + [(20, E1)], True)
            for s_ in range(8): p.e(f"ds_read_b128 {a(FA+4*s_,4)}, v{RA} offset:{s_*32}", "kr")
            p.e("s_cmp_lg_u32 s76, 0\ns_cbranch_scc1 L_kg1")
            for i in range(16): p.e(f"v_accvgpr_write_b32 a{i}, 0")
            p.e("L_kg1:")
            if self.debug: p.e(f"s_memrealtime s[82:83]\ns_waitcnt lgkmcnt(0)\ns_add_u32 s50, s76, 20\nv_mov_b32 v61, s82\nv_cmp_eq_u32 vcc, s50, {LANE}\nv_cndmask_b32 {VDBG}, {VDBG}, v61, vcc")
            p.e("s_add_u32 s76, s76, 1\ns_cmp_lt_u32 s76, 3\ns_cbranch_scc1 L_kg")
        e = p.e
        e(f"v_and_b32 v62, 31, {LANE}\nv_lshrrev_b32 v63, 5, {LANE}\ns_add_u32 s51, {REGB}, {KCO}")
        e(f"v_lshlrev_b32 v64, 4, v62\nv_lshl_add_u32 v64, v63, 3, v64\nv_add_u32 v64, s51, v64")
        e(f"v_cmp_eq_u32 vcc, 0, v63\nv_lshlrev_b32 v65, 3, v62\nv_add_u32 v65, 512, v65\nv_lshlrev_b32 v66, 2, v62\nv_add_u32 v66, 768, v66")
        e(f"v_cndmask_b32 v65, v66, v65, vcc\nv_add_u32 v65, s51, v65\nv_mov_b32 v66, 128\nv_cndmask_b32 v66, v66, 4, vcc\nv_add_u32 v66, v65, v66")
        e(f"v_lshlrev_b32 v67, 1, v62\nv_lshl_add_u32 v67, v63, 8, v67\nv_add_u32 v67, s51, v67")
        self.spin(p, Y_PUB, 1, 68)
        for q in mf(2): p.ext(q)
        e(f"v_mov_b32 v76, 0\nv_mov_b32 v77, 0\nv_mov_b32 v78, 0\nv_mov_b32 v79, 0\nv_add_u32 v15, {REGB}, {L16}")
        for i in range(4): e(f"ds_write_b128 v15, v[76:79] offset:{R0O + 1024*i}", "kc")
        e("s_mov_b64 exec, 3")
        e(f"ds_write_b128 v15, v[76:79] offset:{KCO - 32}", "kc")
        e("s_mov_b32 exec_lo, -1")
        e(f"ds_write_b128 v15, v[76:79] offset:{UO}", "kc")
        e("s_mov_b64 exec, -1")
        blocks = [(-2, 34, 8), (32, 32, 4)]
        info = []
        for bi, (v0, nl, stride) in enumerate(blocks):
            cis = lambda y: y if y < 0 else ci(y)
            base = cis(8 * v0)
            offs = {}
            for t in range(-1, 8):
                o = [cis(8 * (v0 + l) + 7 - t) - (base + stride * l) for l in range(nl)]
                offs[t] = o[0]
                assert all(x == o[0] for x in o)
            AD = 100 + 2 * bi
            e(f"s_add_u32 s51, {REGB}, {KCO + 2*base}\nv_mul_u32_u24 v{AD}, {2*stride}, {LANE}\nv_add_u32 v{AD}, s51, v{AD}")
            e(f"s_add_u32 s51, {REGB}, {(75 - v0) * 16}\nv_sub_u32 v{AD+1}, s51, {L16}")
            info.append(offs)
        e(f"v_cmp_gt_u32 vcc, 16, {LANE}\nv_mov_b32 v104, 563\nv_mov_b32 v105, 512\nv_cndmask_b32 v104, v104, v105, vcc\nv_add_u32 v104, v104, {LANE}")
        e(f"v_mov_b32 v106, 1011\nv_cndmask_b32 v105, v106, v105, vcc\nv_add_u32 v105, v105, {LANE}\nv_cvt_f32_u32 v105, v105\nv_cvt_pk_bf16_f32 v105, v105, v105\nv_and_b32 v105, 0xffff, v105")
        e(f"s_sub_u32 s51, {REGB}, {2*0x4280 - KCO}\nv_lshl_add_u32 v105, v105, 1, s51")
        e(f"s_add_u32 s51, {REGB}, {2*607}\nv_lshlrev_b32 v104, 1, v104\nv_sub_u32 v104, s51, v104")
        e(f"v_add_u32 v107, 1, {LANE}\nv_and_b32 v107, 0x7e, v107\ns_add_u32 s51, {REGB}, 4096\nv_sub_u32 v107, s51, v107\nv_and_b32 v106, 1, {LANE}")
        e(f"v_mul_u32_u24 v108, 192, v106\nv_add_u32 v108, v107, v108\nv_mul_u32_u24 v106, 272, v106\nv_add_u32 v107, v107, v106\nv_lshl_add_u32 v106, {LANE}, 1, {REGB}")
        for i in range(12): e(f"v_accvgpr_read_b32 v{82+i}, a{i}")
        e(f"v_add_f32 v82, v82, v{VDS}")
        for i in range(6): e(f"v_cvt_pk_bf16_f32 v{70+i}, v{82+2*i}, v{83+2*i}")
        e(f"ds_write_b64 v64, v[70:71]\nds_write_b32 v65, v72\nds_write_b32 v66, v73\nds_write_b16 v67, v74 offset:1024", "kc")
        e("s_mov_b32 exec_hi, 0")
        e(f"ds_write_b16_d16_hi v67, v74 offset:{1024+64}\nds_write_b16 v67, v75 offset:{1024+128}\nds_write_b16_d16_hi v67, v75 offset:{1024+192}", "kc")
        e("s_mov_b64 exec, -1")
        vrs = []
        for bi, (v0, nl, stride) in enumerate(blocks):
            RR = 20 + 9 * bi; AD = 100 + 2 * bi; offs = info[bi]
            e(f"s_mov_b32 exec_hi, {(1 << (nl - 32)) - 1}")
            seen = {}; vr = {}
            for t in range(-1, 8):
                o = offs[t]
                if o not in seen:
                    seen[o] = RR + len(seen)
                    e(f"ds_read_u16 v{seen[o]}, v{AD} offset:{2*o}", f"kx{bi}")
                vr[t] = seen[o]
            vrs.append(vr)
        e("ds_read_u16 v40, v105", "kq")
        e("s_mov_b64 exec, -1")
        for i in range(2):
            e(f"ds_read_u16 v{41+i}, v106 offset:{KCO + 2*(388 + 64*i)}\nds_read_u16 v{43+i}, v106 offset:{KCO + 2*(514 + 64*i)}", "kq")
        for bi, (v0, nl, stride) in enumerate(blocks):
            AD = 100 + 2 * bi; O = 70 + 8 * bi; vr = vrs[bi]
            p.wlg(f"kx{bi}")
            for i in range(4): e(f"v_lshl_or_b32 v{O+i}, v{vr[2*i+1]}, 16, v{vr[2*i]}")
            for i in range(4): e(f"v_lshl_or_b32 v{O+4+i}, v{vr[2*i]}, 16, v{vr[2*i-1]}")
            e(f"s_mov_b32 exec_hi, {(1 << (nl - 32)) - 1}")
            e(f"ds_write_b128 v{AD+1}, {v(O,4)} offset:{R0O}\nds_write_b128 v{AD+1}, {v(O+4,4)} offset:{R1O}", "kt")
            e("s_mov_b64 exec, -1")
        p.wlg("kq")
        e(f"ds_write_b16 v107, v41 offset:{Q2O - 4096 + 2*94}\nds_write_b16 v108, v43 offset:{Q3O - 4096 + 2*63}\nds_write_b16 v108, v43 offset:{Q3O - 4096 + 384 + 2*64}", "kt")
        e(f"s_mov_b32 exec_hi, {(1 << 31) - 1:#x}\nds_write_b16 v108, v44 offset:{Q3O - 4096 + 2*31}\nds_write_b16 v108, v44 offset:{Q3O - 4096 + 384 + 2*32}", "kt")
        e(f"s_mov_b32 exec_hi, {(1 << 29) - 1:#x}\nds_write_b16 v107, v42 offset:{Q2O - 4096 + 2*62}", "kt")
        e(f"s_mov_b32 exec_hi, 0\ns_mov_b32 exec_lo, 0x01ff3fff\nds_write_b16 v104, v40 offset:{R0O}\nds_write_b16 v104, v40 offset:{R1O + 2}\ns_mov_b64 exec, -1", "kt")

    def conv_setup(self, p):
        e = p.e
        e(f"v_lshrrev_b32 v32, 4, {LANE}\nv_and_b32 v31, 15, {LANE}\nv_bfe_u32 v33, {LANE}, 1, 3\nv_lshlrev_b32 v34, 2, v32\nv_sub_u32 v34, v34, v33")
        e(f"v_and_b32 v33, 1, {LANE}\nv_xor_b32 v33, 1, v33\nv_mul_u32_u24 v33, {(R1O - R0O)//4 + 1}, v33\nv_add_u32 v34, v34, v33")
        e(f"s_add_u32 s51, {REGB}, {R0O + 4*7}\nv_lshl_add_u32 v24, v34, 2, s51\nv_add_u32 v25, 512, v24")
        e(f"v_lshlrev_b32 v33, 3, v32\nv_lshlrev_b32 v34, 2, v31\nv_sub_u32 v26, v33, v34\ns_add_u32 s51, {REGB}, {Q2O + 60}\nv_add_u32 v26, s51, v26")
        e(f"v_lshlrev_b32 v34, 1, v31\nv_sub_u32 v27, v33, v34\nv_and_b32 v34, 1, v31\nv_mul_u32_u24 v34, 386, v34\nv_sub_u32 v27, v27, v34\ns_add_u32 s51, {REGB}, {Q3O + 384 + 32}\nv_add_u32 v27, s51, v27")
        for m in list(range(17)) + [18]:
            off = (18 - m) * 16; ad = 24; r = 4 * min(m, 17)
            if off >= 128: off -= 128; ad = 25
            e(f"ds_read2_b32 {a(r,2)}, v{ad} offset0:{off} offset1:{off+1}\nds_read2_b32 {a(r+2,2)}, v{ad} offset0:{off+2} offset1:{off+3}", "pf")
        for j in range(6): e(f"ds_read2_b32 {a(72+4*j,2)}, v26 offset0:{8*j} offset1:{8*j+1}\nds_read2_b32 {a(74+4*j,2)}, v26 offset0:{68+8*j} offset1:{68+8*j+1}", "pf")
        for j in range(4): e(f"ds_read2_b32 {a(96+4*j,2)}, v27 offset0:{8*j} offset1:{8*j+1}\nds_read2_b32 {a(98+4*j,2)}, v27 offset0:{48+8*j} offset1:{48+8*j+1}", "pf")
        e(f"v_lshl_add_u32 v34, v31, 1, v32\ns_add_u32 s51, {REGB}, {UO + 16*2}\nv_lshl_add_u32 v16, v34, 4, s51")
        e(f"v_add_u32 v34, v31, v32\ns_add_u32 s51, {REGB}, {UO + 512 - 48}\nv_lshl_add_u32 v12, v34, 4, s51")
        e(f"v_and_b32 v34, 1, v32\nv_lshlrev_b32 v34, 9, v34\nv_lshl_add_u32 v34, v31, 5, v34\nv_lshrrev_b32 v32, 1, v32\nv_lshl_add_u32 v17, v32, 4, v34")
        e(f"s_lshl_b32 s86, {CH}, 12\ns_add_u32 s86, s86, {YT}\ns_mul_i32 s89, {DT}, 24\ns_add_u32 s89, s89, {FT}\ns_lshl_b32 s89, s89, 7\ns_add_u32 s89, s89, {F3}\ns_sub_u32 s88, {NCH}, 1")
    def inverse(self, p):
        e = p.e
        S2, M2, SF, MF = 24, 40, 56, 88
        e(f"v_lshrrev_b32 v20, 4, {LANE}\nv_lshlrev_b32 v20, 10, v20\nv_and_b32 v21, 3, {LANE}\nv_lshl_add_u32 v20, v21, 4, v20\nv_and_b32 v21, 12, {LANE}")
        e(f"s_add_u32 s51, {REGB}, {UO+512}")
        for q in range(4):
            e(f"v_add_u32 v22, {16*(q&1)}, v21\nv_bfe_u32 v22, s{74 + q//2}, v22, 4\nv_lshl_add_u32 v{4+q}, v22, 6, v20\nv_add_u32 v{120+q}, s51, v{4+q}")
        e(f"s_mov_b32 s84, {STAT}\ns_mov_b32 s85, {STAT+4096}")
        self.spin(p, Y_F1, 1, 22, sleep=2)
        e(f"ds_read_b32 {VTAG}, {VSY} offset:{4*Y_TAG}", "tag")
        for q in range(4):
            e(f"buffer_load_dwordx4 {v(S2+4*q,4)}, v{4+q}, {SWS}, s84 offen sc1", "u")
            e(f"buffer_load_dwordx4 {v(M2+4*q,4)}, v{4+q}, {SWS}, s85 offen sc1", "u")
        e("v_mov_b32 v23, 0x3f80")
        e(f"v_and_b32 v124, 15, {LANE}\nv_lshrrev_b32 v125, 4, {LANE}\nv_lshlrev_b32 v125, 3, v125\ns_mov_b32 s50, 0x8001\ns_mov_b32 s51, 0x10001")
        for bi, (c_, h_) in enumerate(((8, 2), (12, 1), (8, 4), (8, 3))):
            e(f"v_mov_b32 v126, {((1 << (2*h_+1)) - 1) << (c_ - h_):#x}\nv_lshlrev_b32 v126, v124, v126\nv_lshrrev_b32 v126, v125, v126")
            for q in range(4):
                e(f"v_bfe_u32 v127, v126, {2*q}, 2\nv_mul_u32_u24 v127, s50, v127\nv_and_b32 v127, s51, v127\nv_mul_u32_u24 v127, v23, v127\nv_accvgpr_write_b32 a{112+4*bi+q}, v127")
        p.wvm("u")
        self.unpack(p, S2, SF, 16); self.unpack(p, M2, MF, 16)
        self.stamp(p)
        for q in range(4):
            self.spin(p, Y_U + q, 4, 22, sleep=(2 if q < 3 else 1))
            if q == 3: self.stamp(p)
            e(f"ds_read_b128 v[24:27], v{120+q}", f"ur{q}")
            p.wlg(f"ur{q}")
            self.unpack(p, 24, 40, 4)
            for i in range(8): e(f"v_fma_f32 v{40+i}, v{40+i}, v{SF+8*q+i}, v{MF+8*q+i}")
            for i in range(4): e(f"v_cvt_pk_bf16_f32 v{48+i}, v{40+2*i}, v{41+2*i}")
            e(f"ds_write_b128 v{120+q}, v[48:51]", "uw")
    def conv(self, p):
        e = p.e
        YO, ACC, DT_, PKD = 17, 64, 116, 124
        slots = [24 + 4 * i for i in range(10)] + [96 + 4 * i for i in range(5)]
        slots = slots[:self.o["cns"]]; NS = len(slots)
        R = lambda n: v(slots[n % NS], 4)
        F = []
        for ph in range(8):
            for d in range(8):
                l = [(d + mu, 4 * (8 * mu + ph)) for mu in range(2) if d + mu <= 7]
                if ph == 0 and d <= 5: l.append((d + 2, 64))
                if ph == 0 and d <= 3: l.append((d + 4, 68))
                F.append((f"v16 offset:{512*d + (7-ph)*64}", l))
        S = []
        for st in range(4):
            S.append(([f"v16 offset:{16*(27 + 32*st)}", f"v16 offset:{16*(28 + 32*st)}"], 120, [(I, 96 + 4 * (st - I + 7)) for I in range(4, 8) if st <= I - 4]))
        for st in range(12):
            S.append(([f"v12 offset:{256*st}"], 112, [(I, 72 + 4 * (st - 2 * I + 8)) for I in range(2, 8) if 2 * I - 8 <= st <= 2 * I - 3]))
        loads = []; steps = []
        def ld(addr): loads.append(addr); return len(loads) - 1
        for i, (ad, box, l) in enumerate(S):
            ids = [ld(x) for x in ad]
            steps.append(("box", ids, box))
            for k in range(3): steps.append(("F", [ld(F[4*i+k][0])], F[4*i+k][1]))
            steps.append(("cvt", [], None))
            steps.append(("F", [ld(F[4*i+3][0])], F[4*i+3][1]))
            steps.append(("S", [], l))
        first = set(); nl = [0]
        def issue(upto):
            while nl[0] < min(upto, len(loads)):
                e(f"ds_read_b128 {R(nl[0])}, {loads[nl[0]]}", f"cj{nl[0]}"); nl[0] += 1
        def mm(I, A, B):
            acc = v(ACC + 4 * I, 4); src = acc if I in first else "0"; first.add(I)
            e(f"v_mfma_f32_16x16x32_bf16 {acc}, {A}, {B}, {src}")
        if self.o.get("dly_c"): e(f"s_sleep {self.o['dly_c']}")
        issue(NS)
        if self.o["cwait"]: self.spin(p, Y_EPI, self.o["cwait"], 22, sleep=1)
        e(f"s_setprio {self.o['cprio0']}")
        self.stamp(p)
        for si, (kind, ids, arg) in enumerate(steps):
            if si == self.o["cswitch"]: e(f"s_setprio {self.o['cprio']}")
            if ids: p.wlg(f"cj{ids[-1]}")
            if kind == "box":
                e(f"v_mfma_f32_16x16x32_bf16 {v(DT_,4)}, {R(ids[0])}, {a(arg,4)}, 0")
                issue(ids[0] + NS)
                e(f"v_mfma_f32_16x16x32_bf16 {v(DT_+4,4)}, {R(ids[-1])}, {a(arg+4,4)}, 0")
            elif kind == "F":
                for i, (I, kf) in enumerate(arg):
                    mm(I, a(kf, 4), R(ids[0]))
                    if i == 0: issue(ids[0] + NS)
            elif kind == "cvt":
                for i in range(4): e(f"v_cvt_pk_bf16_f32 v{PKD+i}, v{DT_+2*i}, v{DT_+2*i+1}")
            else:
                for I, kf in arg: mm(I, v(PKD, 4), a(kf, 4))
        for k in range(4):
            o = 24 + 4 * k
            for i in range(4): e(f"v_cvt_pk_bf16_f32 v{o+i}, v{ACC+8*k+2*i}, v{ACC+8*k+2*i+1}")
            e(f"v_permlane16_swap_b32 v{o}, v{o+2}\nv_permlane16_swap_b32 v{o+1}, v{o+3}")
            e(f"buffer_store_dwordx4 {v(o,4)}, v{YO}, {SWS}, s86 offen offset:{1024*k} sc1", "ys")
        self.stamp(p)
        e("s_waitcnt vmcnt(0)")
        e(f"v_mov_b32 v20, 1\ns_mov_b64 exec, 1\nds_add_rtn_u32 v20, {VSY}, v20 offset:{4*Y_Y}\ns_mov_b64 exec, -1\ns_waitcnt lgkmcnt(0)\nv_readfirstlane_b32 s79, v20")
        e(f"s_cmp_lg_u32 s79, s88\ns_cbranch_scc1 L_ynl")
        self.flag_store(p, "s89")
        e("L_ynl:")
    def convw(self):
        self.role = "conv"
        p = Prog(); e = p.e
        self.conv_start(p)
        self.stamp(p)
        if not self.o.get("skip_kgen"): self.kgen(p)
        else: self.stamp(p)
        self.stamp(p)
        if self.o.get("dly_k"): e(f"s_sleep {self.o['dly_k']}")
        self.conv_setup(p)
        e("s_setprio 0")
        self.inverse(p)
        self.conv(p)
        self.finish(p)
        return p

    def build(self):
        p = Prog(); self.prologue(p)
        p.ext(self.main())
        body = finalize(p)
        q = Prog(); q.e("L_aux:")
        q.e(f"s_cmp_eq_u32 {WV}, 7\ns_cbranch_scc1 L_serv"); q.ext(self.convw())
        body += finalize(q)
        q = Prog(); q.e("L_serv:"); q.ext(self.serv()); q.e("L_end:\nL_last:\ns_endpgm")
        body += finalize(q)
        body = body.replace("@", "")
        ref = open("cdna_kernels/" + NAME + ".s.ref").read()
        head = [l for l in ref.split("\n") if l.startswith(";") and "@launch" not in l]
        k = NAME + "_kernel"
        s = "\n".join(head) + f"\n; @launch grid=(256,1,1) block=(512,1,1) lds={LDS_BYTES}\n"
        s += f'.amdgcn_target "amdgcn-amd-amdhsa--gfx950"\n.text\n.globl {k}\n.p2align 8\n.type {k},@function\n{k}:\n'
        s += body
        s += f""".section .rodata,"a"
.p2align 6
.amdhsa_kernel {k}
  .amdhsa_next_free_vgpr 256
  .amdhsa_next_free_sgpr 102
  .amdhsa_accum_offset 128
  .amdhsa_group_segment_fixed_size 0
  .amdhsa_kernarg_size 136
  .amdhsa_user_sgpr_count 2
  .amdhsa_user_sgpr_kernarg_segment_ptr 1
  .amdhsa_system_sgpr_workgroup_id_x 1
.end_amdhsa_kernel
"""
        return s

if __name__ == "__main__":
    out = sys.argv[1]
    kw = eval("dict(" + (sys.argv[2] if len(sys.argv) > 2 else "") + ")")
    open(out, "w").write(G(**kw).build())
```

```python
import sys, struct
from asmlib import Prog, interleave, finalize

NAME = "parallel_sum__ssm_conv_s4__mixer_token_mlp__prompt"
STAT, TM, F2, F3, F1 = 0x4000, 0x8000, 0x50000, 0x58000, 0x60000
HB, GB, YT, WSEND = 0x80000, 0x300000, 0x4E0000, 0x760000
RINGW, RS = 28672, 7
PT = 1344
REG0, REGSZ = 0, 14976
SYNC = 3 * REGSZ
RING0 = 45056
KCO, R0O, R1O, Q2O, Q3O = 32, 1408, 1408 + 1344, 4096, 4672
Z5O, Z3O, Z9O, Z7O, UO = 0, 3104, 6208, 8288, 10368
LNT = REG0 + 8704
KP = 272
LDS_BYTES = 163840
assert SYNC + 128 <= RING0 and RING0 + 4 * RINGW <= LDS_BYTES
Y_EPI = 3
Y_Y = 16
Y_UR = 17
Y_LN, Y_F1, Y_PART, Y_PUB, Y_P1, Y_G, Y_P2, Y_F2, Y_P3, Y_F3, Y_TAG, Y_U = 0, 1, 2, 4, 5, 6, 7, 8, 9, 10, 11, 12

def fbits(x): return "0x%08x" % struct.unpack("<I", struct.pack("<f", x))[0]
def bf16r(l):
    u = struct.unpack("<I", struct.pack("<f", float(l)))[0]
    u = ((u + 0x7FFF + ((u >> 16) & 1)) >> 16) << 16
    return int(struct.unpack("<f", struct.pack("<I", u))[0])
def ci(l):
    v = bf16r(l)
    if v <= 256: return v
    if v <= 512: return 256 + (v - 256) // 2
    if v <= 1024: return 384 + (v - 512) // 4
    return 512 + (v - 1024) // 8

WG, WV, XCD, IDX, DT, FT, DT2, ST2, TAG, ROT1, ROT2, CH = "s2", "s3", "s4", "s5", "s6", "s7", "s8", "s9", "s10", "s11", "s12", "s13"
SUB, C0, NCH = "s97", "s98", "s99"
SX, SW1, SW2, SOUT, SWS = "s[52:55]", "s[56:59]", "s[60:63]", "s[64:67]", "s[68:71]"
RINGB, REGB = "s73", "s77"
VSY, LANE, L16, L4, VTAG, VZ, VDBG = "v0", "v1", "v2", "v3", "v9", "v10", "v11"

def v(i, n=1): return f"v{i}" if n == 1 else f"v[{i}:{i+n-1}]"
def a(i, n=1): return f"a{i}" if n == 1 else f"a[{i}:{i+n-1}]"

def groups_of(prog):
    groups = []
    for it in prog.items:
        prev = groups[-1][-1][0] if groups else None
        if isinstance(prev, str) and (prev.startswith(("s_add_u32 m0", "s_cmp", "s_sub_u32 s51", "s_mov_b64 exec, s", "s_mov_b64 exec, 1", "ds_write_b128 v125", "ds_add"))):
            groups[-1].append(it)
        else: groups.append([it])
    return groups

def make_perm(n, nw, first, duty0, per=1):
    own = list(range(0, n, 2)); oth = list(range(1, n, 2))
    order = [[] for _ in range(nw)]; touched = {}
    pool = own[:]
    for pos in range(first):
        for j in range(nw):
            pass
    deal = [[] for _ in range(nw)]
    k = 0
    for pos in range(first):
        for j in range(nw):
            if pool: st = pool.pop(0)
            else: st = oth.pop(0)
            deal[j].append(st); touched[st] = pos
    rest = pool + oth
    duty = {}
    for i, st in enumerate(rest): duty[(duty0 + i // per, i % nw)] = st
    for j in range(nw): order[j] = list(deal[j])
    for pos in range(first, n):
        for j in range(nw):
            if (pos, j) in duty: touched[duty[(pos, j)]] = pos
        for j in range(nw):
            if (pos, j) in duty: order[j].append(duty[(pos, j)]); continue
            mine = {st for (pp, jj), st in duty.items() if jj == j and pp > pos}
            cand = [st for st in range(n) if st not in order[j] and st not in mine]
            cand.sort(key=lambda st: (touched.get(st, 99), (st - 2 * j) % n))
            order[j].append(cand[0])
    for o in order: assert sorted(o) == list(range(n)), o
    return order
def pack_perm(o):
    x = sum(st << (4 * i) for i, st in enumerate(o)); return x & 0xffffffff, x >> 32

class G:
    def __init__(self, debug=False, **kw):
        self.debug = debug
        self.o = dict(P1=6, D1=13, PS1=11, lead1=4, xk=-1, epifirst=1, sp3=0, first1=1, dpp=2, P2=4, D2=11, PS2=9, lead2=4, wflag="", xflag="", nsp=30, thr=2,
                      ytrig=5, ychk=10, pk=1, psleep=4, psleep2=8, kprio=0, mprio=2, ebpos=0, tch=0, cprio=3, ipf=2, ns1=12, ns2=15, perm=1, duty1=1, duty2=3, oflag='', eb=2, pfirst=1, free1=1, pre1=0, cns=15, sg1=0, sg2=0, epk=1, cprio0=0, cswitch=40, iprio=0, ow4=1, slow=1, ebk=99, nthr=6, pflag='nt', cwait=4)
        self.o.update(kw)
        self.nst = {}; self.nlab = 0; self.role = None
    def stamp(self, p):
        if not self.debug: return
        n = self.nst.get(self.role, 0)
        if n == 0: p.e(f"v_writelane_b32 {VDBG}, s100, 28")
        p.e(("s_memtime" if self.o.get("cyc") else "s_memrealtime") + " s[82:83]\ns_waitcnt lgkmcnt(0)")
        p.e(f"v_writelane_b32 {VDBG}, s82, {n}")
        self.nst[self.role] = n + 1
    def pre(self, p):
        if self.debug and self.o.get("prest"): p.e(f"s_memrealtime s[82:83]\ns_waitcnt lgkmcnt(0)\nv_writelane_b32 {VDBG}, s82, 27")
    def label(self, s):
        self.nlab += 1; return f"L{s}_{self.nlab}"
    def flag_store(self, p, soff, pre=""):
        p.e(f"s_mov_b64 exec, 1\n{pre}buffer_store_dword {VTAG}, {VZ}, {SWS}, {soff} offen sc1\ns_mov_b64 exec, -1")
    def poll(self, p, voff, soff, tmp, wide=False, sleep=0):
        l = self.label("poll"); d = self.label("polld"); f = self.label("pollf")
        p.e("s_mov_b32 s78, 0")
        if sleep: p.e(f"s_branch {f}")
        p.e(f"{l}:")
        if sleep: p.e(f"s_sleep {sleep}\n{f}:")
        if wide:
            p.e(f"buffer_load_dwordx4 {v(tmp,4)}, {voff}, {SWS}, {soff} offen sc1")
            p.e("s_add_u32 s78, s78, 1\ns_waitcnt vmcnt(0)")
            for i in range(4): p.e(f"v_xor_b32 {v(tmp+i)}, {TAG}, {v(tmp+i)}")
            p.e(f"v_or3_b32 {v(tmp)}, {v(tmp)}, {v(tmp+1)}, {v(tmp+2)}\nv_or_b32 {v(tmp)}, {v(tmp)}, {v(tmp+3)}")
            p.e(f"v_cmp_ne_u32 vcc, 0, {v(tmp)}")
        else:
            p.e(f"buffer_load_dword {v(tmp)}, {voff}, {SWS}, {soff} offen sc1")
            p.e("s_add_u32 s78, s78, 1\ns_waitcnt vmcnt(0)")
            p.e(f"v_cmp_ne_u32 vcc, {TAG}, {v(tmp)}")
        p.e(f"s_cmp_gt_u32 s78, 0x8000\ns_cbranch_scc1 {d}\ns_cbranch_vccz {d}\ns_mov_b64 exec, vcc\ns_branch {l}")
        p.e(f"{d}:\ns_mov_b64 exec, -1")
    def sig(self, p, word, tmp):
        p.e(f"v_mov_b32 v{tmp}, 1\ns_mov_b64 exec, 1\nds_add_u32 {VSY}, v{tmp} offset:{4*word}\ns_mov_b64 exec, -1", "sig")
    def spin(self, p, word, n, tmp, sleep=0):
        l = self.label("spin"); d = self.label("spind"); f = self.label("spinf")
        p.e("s_mov_b32 s78, 0")
        if sleep: p.e(f"s_branch {f}")
        p.e(f"{l}:")
        if sleep: p.e(f"s_sleep {sleep}\n{f}:")
        p.e(f"ds_read_b32 v{tmp}, {VSY} offset:{4*word}\ns_add_u32 s78, s78, 1\ns_waitcnt lgkmcnt(0)\nv_readfirstlane_b32 s79, v{tmp}")
        p.e(f"s_cmp_gt_u32 s78, 0x40000\ns_cbranch_scc1 {d}\ns_cmp_lt_u32 s79, {n}\ns_cbranch_scc1 {l}")
        p.e(f"{d}:")
    def mktag(self, p):
        p.e(f"s_mul_i32 {TAG}, {TAG}, 0x9E3779B1\ns_add_u32 {TAG}, {TAG}, 0x7F4A7C15\nv_mov_b32 {VTAG}, {TAG}")
    def finish(self, p):
        e = p.e
        if self.debug:
            e("s_waitcnt vmcnt(0)")
            self.stamp(p)
            e(f"s_lshl_b32 s50, {WG}, 3\ns_add_u32 s50, s50, {WV}\ns_lshl_b32 s50, s50, 7\ns_add_u32 s50, s50, {TM}")
            e(f"s_mov_b32 exec_hi, 0\nbuffer_store_dword {VDBG}, {L4}, {SWS}, s50 offen")
        e("s_endpgm")
    def srd(self, p, d, lo, size): p.e(f"s_mov_b32 s{d}, s{lo}\ns_mov_b32 s{d+1}, s{lo+1}\ns_mov_b32 s{d+2}, {size}\ns_mov_b32 s{d+3}, 0x20000")
    def unpack(self, p, src, dst, n):
        for i in range(n):
            p.e(f"v_lshlrev_b32 v{dst+2*i}, 16, v{src+i}\nv_and_b32 v{dst+2*i+1}, 0xffff0000, v{src+i}")
    def rbf(self, p, r):
        p.e(f"v_cvt_pk_bf16_f32 v{r}, v{r}, v{r}\nv_lshlrev_b32 v{r}, 16, v{r}")

    def prologue(self, p):
        e = p.e
        if self.debug or self.o.get("hold"): e("s_memrealtime s[100:101]")
        e(f"s_cmp_ge_u32 {WG}, 256\ns_cbranch_scc1 L_end")
        e("s_load_dwordx16 s[16:31], s[0:1], 0\ns_load_dwordx16 s[32:47], s[0:1], 64\ns_load_dwordx2 s[48:49], s[0:1], 128")
        e(f"v_and_b32 {LANE}, 63, v0\nv_lshrrev_b32 v12, 6, v0\nv_readfirstlane_b32 {WV}, v12")
        if self.o["ipf"]:
            n = self.o["ipf"]
            e(f"s_cmp_lg_u32 {WV}, 7\ns_cbranch_scc1 L_noipf")
            e(f"s_getpc_b64 s[90:91]\nL_pc:\ns_bfe_u32 s51, {WG}, {(n << 16) | 3:#x}\ns_lshl_b32 s51, s51, 13")
            e(f"v_lshl_add_u32 v112, {LANE}, 7, s51\nv_min_u32 v112, L_last-L_pc, v112")
            e("v_mov_b32 v113, s91\nv_add_co_u32 v112, vcc, s90, v112\nv_addc_co_u32 v113, vcc, 0, v113, vcc")
            e("@global_load_dword v114, v[112:113], off\nL_noipf:")
        e(f"v_lshlrev_b32 {L16}, 4, {LANE}\nv_lshlrev_b32 {L4}, 2, {LANE}\nv_mov_b32 {VZ}, 0\nv_mov_b32 {VDBG}, 0\nv_mov_b32 {VSY}, {SYNC}")
        e(f"s_and_b32 {XCD}, {WG}, 7\ns_lshr_b32 {IDX}, {WG}, 3\ns_lshr_b32 {SUB}, {XCD}, 1\ns_and_b32 s14, {XCD}, 1")
        e(f"s_min_u32 s15, {IDX}, 29\ns_mul_i32 {FT}, s15, 52\ns_lshr_b32 {FT}, {FT}, 8")
        e(f"s_mul_i32 s51, {FT}, 5\ns_sub_u32 {DT}, s15, s51")
        if self.o["perm"]: P1_ = make_perm(16, 5, self.o["first1"], self.o["duty1"], self.o["dpp"])
        else: P1_ = [[(((2 * j * 205) >> 7) + i) % 16 for i in range(16)] for j in range(5)]
        for j, o_ in enumerate(P1_):
            lo, hi = pack_perm(o_)
            if j == 0: e(f"s_mov_b32 s74, {lo:#x}\ns_mov_b32 s75, {hi:#x}")
            else: e(f"s_cmp_eq_u32 {DT}, {j}\ns_cselect_b32 s74, {lo:#x}, s74\ns_cselect_b32 s75, {hi:#x}, s75")
        e(f"s_and_b32 s51, {FT}, {self.o['sg1']}\ns_xor_b32 s51, s51, s14\ns_mul_i32 s51, s51, 0x11111111\ns_xor_b32 s74, s74, s51\ns_xor_b32 s75, s75, s51")
        e(f"s_mul_i32 {C0}, {FT}, 3\ns_min_u32 {C0}, {C0}, 14\ns_cmp_lt_u32 {FT}, 4\ns_cselect_b32 {NCH}, 3, 2\ns_cmp_ge_u32 {IDX}, 30\ns_cselect_b32 {NCH}, 0, {NCH}")
        e(f"s_mul_i32 s51, s14, 5\ns_add_u32 {DT}, {DT}, s51\ns_mul_i32 s51, {SUB}, 6\ns_add_u32 {FT}, {FT}, s51")
        e(f"s_and_b32 {DT2}, {IDX}, 3\ns_lshr_b32 {ST2}, {IDX}, 2")
        e(f"s_lshl2_add_u32 {DT2}, s14, {DT2}\ns_lshl3_add_u32 {ST2}, {SUB}, {ST2}")
        e(f"s_cmp_ge_u32 {WV}, 4\ns_cbranch_scc1 L_aux")

    def kk(self, p, g, ks, dst, stride, base):
        p.e(f"s_bfe_u32 {dst}, s{(74 if g == 1 else 80) + ks // 8}, {(4 << 16) | (4 * (ks % 8)):#x}")
        p.e(f"s_mul_i32 {dst}, {dst}, {stride}")
        if base: p.e(f"s_add_u32 {dst}, {dst}, {base}")
    def slot(self, g, ks): return ((ks + (3 if g == 2 else 0)) % RS) * 4096
    def throttle(self, p):
        l = self.label("thr")
        p.e(f"s_cmp_lg_u32 s85, 0\ns_cbranch_scc1 {l}")
        p.e(f"@ds_read_b32 v20, {VSY} offset:{4*Y_PUB}\n@s_waitcnt vmcnt({self.o['thr']}) lgkmcnt(0)\nv_readfirstlane_b32 s85, v20\ns_nop 0\ns_lshr_b32 s85, s85, 1")
        p.e(f"{l}:")
    def dma(self, g, ks, thr=False):
        p = Prog()
        rs, vo, srd, base = (3072, 4, SW1, "s84") if g == 1 else (4096, 12, SW2, "s92")
        self.kk(p, g, ks, "s72", 32 * rs, base)
        for q in range(4):
            if thr and q % 2 == 0: self.throttle(p)
            p.e(f"s_add_u32 m0, {RINGB}, {self.slot(g, ks) + q * 1024}")
            p.e(f"buffer_load_dwordx4 v{vo + (q & 1)}, {srd}, s72 offen {self.o['wflag']} lds", f"w{g}_{ks}")
            if q < 3: p.e(f"s_add_u32 s72, s72, {8*rs}")
        return p
    NB = {1: 6, 2: 4}
    def tr(self, g, ks):
        p = Prog()
        r = 16 * (ks % self.NB[g]); o = self.slot(g, ks)
        p.wvm(f"w{g}_{ks}")
        for ss in range(4):
            p.e(f"ds_read_b64_tr_b16 {a(r+4*ss,2)}, v{14+ss} offset:{o}", f"t{g}_{ks}")
            p.e(f"ds_read_b64_tr_b16 {a(r+4*ss+2,2)}, v{14+ss} offset:{o+512}", f"t{g}_{ks}")
        return p
    def main_start(self, p):
        e = p.e
        e("s_setprio 3")
        e(f"s_mul_i32 {RINGB}, {WV}, {RINGW}\ns_add_u32 {RINGB}, {RINGB}, {RING0}\ns_mov_b32 s85, 0")
        e(f"v_lshrrev_b32 v20, 3, {LANE}\nv_and_b32 v21, 7, {LANE}\nv_and_b32 v22, 2, v20\nv_xor_b32 v21, v21, v22\nv_lshlrev_b32 v21, 4, v21")
        e("v_mul_u32_u24 v4, 3072, v20\nv_add_u32 v4, v4, v21\nv_xor_b32 v5, 64, v4\nv_lshl_add_u32 v12, v20, 12, v21\nv_xor_b32 v13, 64, v12")
        e(f"s_mul_i32 s84, {WV}, {512*3072}\ns_lshl_b32 s51, {FT}, 7\ns_add_u32 s84, s84, s51")
        e(f"s_mul_i32 s92, {WV}, {384*4096}\ns_lshl_b32 s51, {ST2}, 7\ns_add_u32 s92, s92, s51")
        e(f"v_lshrrev_b32 v120, 5, {LANE}\nv_mul_u32_u24 v121, 1280, v120\nv_and_b32 v122, 31, {LANE}")
        e("v_lshl_add_u32 v123, v122, 4, v121\nv_lshl_add_u32 v124, v122, 3, v121")
        e(f"s_lshl_b32 s50, {WG}, 3\ns_lshl1_add_u32 s50, {WV}, s50\ns_mul_i32 s50, s50, 1280")
        e("s_waitcnt lgkmcnt(0)")
        if self.o.get("hold"): e("s_mov_b32 s96, s100")
        if self.o.get("gmin"):
            e(f"s_not_b32 s51, s100\nv_mov_b32 v30, s51\ns_mov_b64 exec, 1\n@global_atomic_umax {VZ}, v30, s[46:47]\ns_mov_b64 exec, -1")
        self.srd(p, 52, 16, 2621440)
        xf = self.o["xflag"]
        e(f"buffer_load_dwordx4 v[20:23], v123, {SX}, s50 offen {xf}", "x")
        e(f"buffer_load_dwordx4 v[24:27], v123, {SX}, s50 offen offset:512 {xf}", "x")
        e(f"buffer_load_dwordx2 v[28:29], v124, {SX}, s50 offen offset:1024 {xf}", "x")
        if self.o["xk"] == -2: self.xload(p)
        self.pre(p)
        e("s_barrier")
        if self.o["xk"] == -1: self.xload(p)
        self.srd(p, 56, 36, 6291456); self.srd(p, 60, 40, 6291456); self.srd(p, 64, 44, 2621440); self.srd(p, 68, 48, WSEND)
        self.stamp(p)
    def main_setup2(self, p):
        e = p.e
        e(f"v_bfe_u32 v20, {LANE}, 2, 2\nv_and_b32 v21, 3, {LANE}\nv_lshrrev_b32 v22, 4, {LANE}\nv_and_b32 v23, 15, {LANE}")
        e("v_lshlrev_b32 v24, 10, v22\nv_lshl_add_u32 v24, v20, 7, v24\nv_lshl_add_u32 v24, v21, 3, v24")
        e(f"v_lshrrev_b32 v20, 1, v20\nv_and_b32 v21, 1, v22\nv_lshl_or_b32 v20, v21, 1, v20\nv_xor_b32 v20, {WV}, v20\nv_lshlrev_b32 v20, 5, v20")
        e(f"v_add3_u32 v14, v24, v20, {RINGB}\nv_xor_b32 v15, 32, v14\nv_xor_b32 v16, 64, v14\nv_xor_b32 v17, 0x60, v14")
        e(f"s_lshl_b32 s51, {FT}, 7\ns_lshl_b32 s15, {WV}, 5\ns_add_u32 s51, s51, s15\nv_lshl_add_u32 v24, v22, 3, s51")
        e("global_load_dwordx2 v[126:127], v24, s[38:39]", "b1")
        e(f"v_mul_u32_u24 v19, 10240, v22\nv_lshl_add_u32 v19, v23, 4, v19\ns_lshl_b32 s51, {SUB}, 8\nv_add_u32 v120, s51, v19")
        e("v_xor_b32 v121, 0x100, v120\nv_xor_b32 v122, 0x200, v120\nv_xor_b32 v123, 0x300, v120")
        e(f"v_lshrrev_b32 v24, 1, v22\nv_mul_u32_u24 v24, 10240, v24\nv_lshl_add_u32 v24, v23, 4, v24\nv_xor_b32 v25, {SUB}, v21\nv_lshl_add_u32 v6, v25, 8, v24\nv_xor_b32 v7, 0x200, v6")
        e(f"v_subrev_u32 v124, {C0}, v23\nv_mul_u32_u24 v124, {REGSZ}, v124\nv_lshl_add_u32 v124, v22, 4, v124")
        e(f"s_lshl_b32 s51, {WV}, 10\ns_add_u32 s51, s51, {REG0 + UO + 512}\nv_add_u32 v124, s51, v124")
        e(f"s_bfm_b32 s100, {NCH}, {C0}\ns_lshl_b32 s51, s100, 16\ns_or_b32 s100, s100, s51\ns_mov_b32 s101, s100")
        e("v_mul_u32_u24 v18, 1280, v23\nv_lshl_add_u32 v18, v22, 3, v18\nv_lshlrev_b32 v115, 12, v23\nv_lshl_add_u32 v115, v22, 4, v115")
        e("v_lshl_add_u32 v8, v23, 1, s95")
        e("global_load_ushort v114, v8, s[42:43]", "b1")
        if self.o["perm"]: P2_ = make_perm(12, 4, 2, self.o["duty2"])
        else: P2_ = [[(3 * j + i) % 12 for i in range(12)] for j in range(4)]
        e(f"s_and_b32 s15, {IDX}, 3")
        for j, o_ in enumerate(P2_):
            lo, hi = pack_perm(o_)
            if j == 0: e(f"s_mov_b32 s80, {lo:#x}\ns_mov_b32 s81, {hi:#x}")
            else: e(f"s_cmp_eq_u32 s15, {j}\ns_cselect_b32 s80, {lo:#x}, s80\ns_cselect_b32 s81, {hi:#x}, s81")
        e(f"s_and_b32 s15, {ST2}, {self.o['sg2']}\ns_and_b32 s51, {XCD}, 1\ns_xor_b32 s51, s51, s15\ns_mul_i32 s51, s51, 0x11111111\ns_xor_b32 s80, s80, s51\ns_xor_b32 s81, s81, s51")
        e(f"s_mul_i32 s86, {WV}, {64*10240}\ns_lshl_b32 s51, {DT}, 10\ns_add_u32 s86, s86, s51\ns_add_u32 s86, s86, {HB}")
    def xr(self, j): return [v(104, 4), v(110, 4), v(116, 4)][j]
    def xload(self, p):
        e = p.e
        e(f"s_lshl_b32 s94, {ST2}, 6\ns_lshl_b32 s51, {WV}, 4\ns_add_u32 s94, s94, s51\ns_lshl_b32 s95, s94, 1")
        e(f"s_mul_i32 s94, s94, 1280\ns_mul_i32 s51, {DT2}, 160\ns_add_u32 s94, s94, s51")
        e(f"v_and_b32 v109, 15, {LANE}\nv_mul_u32_u24 v109, 1280, v109\nv_and_b32 v108, 48, {LANE}\nv_add_u32 v108, v108, v109")
        for j in range(3): e(f"buffer_load_dwordx4 {self.xr(j)}, v108, {SX}, s94 offen offset:{64*j}", f"x{j}")
    def xmm(self, p):
        e = p.e; ln_ = self.label("nsw")
        e("v_lshlrev_b32 v114, 16, v114")
        for i in range(20): e(f"v_mov_b32 v{84+i}, v114")
        e(f"v_lshrrev_b32 v22, 4, {LANE}\nv_and_b32 v23, 15, {LANE}")
        e("v_lshlrev_b32 v24, 3, v22\nv_sub_u32 v24, v23, v24\nv_and_b32 v25, 1, v24\nv_lshlrev_b32 v25, 4, v25\nv_mov_b32 v26, 0x3f80\nv_lshlrev_b32 v25, v25, v26\nv_ashrrev_i32 v24, 1, v24")
        for q in range(4): e(f"v_cmp_eq_u32 vcc, {q}, v24\nv_cndmask_b32 v{120+q}, 0, v25, vcc")
        for q in range(4): e(f"v_cmp_eq_i32 vcc, {q-8}, v24\nv_cndmask_b32 v{124+q}, 0, v25, vcc")
        for di in range(5):
            e(f"v_mfma_f32_16x16x32_bf16 {self.acc2(di,0)}, {v(124 if di & 1 else 120, 4)}, {self.xr(di//2)}, {self.acc2(di,0)}")
        e(f"s_and_b32 s51, {WV}, 1\ns_cmp_eq_u32 s51, 0\ns_cbranch_scc1 {ln_}")
        for q in range(4): e(f"v_swap_b32 v{120+q}, v{124+q}")
        e(f"{ln_}:")
    def acc1(self, t, ds): return [v(72 + 4 * ds, 4), v(88 + 4 * ds, 4), a(96 + 4 * ds, 4), a(112 + 4 * ds, 4)][t]
    def acc2(self, di, ss): return v(84 + 4 * di, 4) if ss == 0 else a(68 + 4 * (di * 3 + ss - 1), 4)

    def gemm_loop(self, p, g, nks, nf, ns, nd, nt, ld, mfma, extra):
        NB = self.NB[g]; n = nks * nf
        for i in range(ns): p.ext(ld(i))
        nl = ns
        G_ = 4 * nf
        for ks in range(nks):
            side = Prog()
            if nd < nks and nd - RS < nt:
                if nd >= RS: side.wlg(f"t{g}_{nd-RS}")
                side.ext(self.dma(g, nd)); nd += 1
            if nt < nks and nt < nd and nt - NB < ks:
                side.ext(self.tr(g, nt)); nt += 1
            early, pre, post = extra(ks)
            gaps = [[] for _ in range(G_)]
            cost = [0] * G_
            def c_of(grp):
                c = 0
                for it, _ in grp:
                    if isinstance(it, tuple): c += 1
                    elif it.startswith(("buffer_", "global_")): c += 3
                    else: c += 1
                return c
            for di in range(1, nf): cost[4 * di - 1] += 1
            cost[G_ - 1] += 2
            for di in range(nf):
                if nf * ks + di >= 1 and nl < n:
                    its = ld(nl).items; nl += 1
                    gi = 4 * di
                    gaps[gi].append(("z", its[-1:])); cost[gi] += 3
                    for k, it in enumerate(its[:-1]):
                        gj = gi - (len(its) - 1 - k)
                        assert gj >= 0
                        gaps[gj].append(("y", [it])); cost[gj] += 1
            pos = 0
            for grp in groups_of(early):
                gi = min(3, 1 + pos); pos += 1
                gaps[gi].append(("a", grp)); cost[gi] += c_of(grp)
            rest = groups_of(pre) + groups_of(side)
            start = 4 if early.items else 1
            tot = sum(c_of(x) for x in rest) + sum(cost[start:])
            gi = start
            for grp in rest:
                lvl = max(2.0, tot / (G_ - start))
                while gi < G_ - 1 and cost[gi] + c_of(grp) > lvl + 0.5 and cost[gi] > 0: gi += 1
                gaps[gi].append(("m", grp)); cost[gi] += c_of(grp)
            p.wlg(f"t{g}_{ks}")
            for di in range(nf):
                p.wvm(f"act{ks}_{di}")
                for ss in range(4):
                    p.e(mfma(ks, di, ss))
                    for key, grp in sorted(gaps[4 * di + ss], key=lambda x: x[0]): p.items.extend(grp)
            p.ext(post)
        assert nl == n and nd == nks and nt == nks

    def gemm1(self, p):
        e = p.e; o = self.o
        HR, ns = 24, o['ns1']
        nd = o['free1']
        def more():
            nonlocal nd
            if nd >= RS: p.wlg(f"t1_{nd-RS}")
            p.ext(self.dma(1, nd, thr=nd < o['nthr'])); nd += 1
            if nd == o["PS1"]: self.sig(p, Y_P1, 20)
            if o.get("fine") and nd <= 9: self.stamp(p)
        while nd < o["lead1"]: more()
        p.wvm("b1")
        for ds in range(4): self.unpack(p, 126, 72 + 4 * ds, 2)
        for j in range(o["P1"]):
            p.ext(self.tr(1, j))
            if j == 2 and not o.get('fine'): self.stamp(p)
            if nd < o["D1"]: more()
        while nd < o["D1"]:
            p.wvm(f"w1_{nd-o['lead1']}"); more()
        self.stamp(p)
        self.spin(p, Y_F1, 1, 20, sleep=1)
        e(f"ds_read_b32 {VTAG}, {VSY} offset:{4*Y_TAG}\ns_setprio 2", "tag")
        self.stamp(p)
        def ld(i):
            ks, ds = divmod(i, 4); q = Prog()
            if ds == 0: self.kk(q, 1, ks, "s76", 40960, "s86")
            q.e(f"buffer_load_dwordx4 {v(HR + 4 * (i % ns), 4)}, v{120+ds}, {SWS}, s76 offen sc1", f"act{ks}_{ds}")
            return q
        def mfma(ks, ds, t):
            c = self.acc1(t, ds); src = "0" if (ks == 0 and t > 0) else c
            return f"v_mfma_f32_16x16x32_bf16 {c}, {a(16*(ks%6)+4*t,4)}, {v(HR + 4 * ((4*ks+ds) % ns), 4)}, {src}"
        def extra(ks):
            pre = Prog(); post = Prog(); q = Prog()
            q.e(f"s_bfe_u32 s14, s{74 + ks // 8}, {(4 << 16) | (4 * (ks % 8)):#x}\nv_lshl_add_u32 v125, s14, 6, v124")
            q.e(f"s_mov_b64 exec, s[100:101]\nds_write_b128 v125, {v(HR + 4 * ((4 * ks) % ns), 4)}\ns_mov_b64 exec, -1", "uc")
            if ks % 4 == 3: self.sig(pre, Y_U + ks // 4, 20)
            if ks in (0, 5, 10): self.stamp(post)
            return q, pre, post
        self.gemm_loop(p, 1, 16, 4, ns, nd, o["P1"], ld, mfma, extra)
        self.stamp(p)
    def gemm1_epi(self, p):
        e = p.e; RD = 24
        if self.o["ebpos"] == 0:
            for ks in range(self.o["eb"]): p.ext(self.dma(2, ks))
        e(f"v_add_u32 v20, {RINGB}, {L16}")
        for t in range(1, 4):
            for ds in range(4): e(f"ds_write_b128 v20, {self.acc1(t, ds)} offset:{(t-1)*4096+ds*1024}", "r1w")
        self.sig(p, Y_PART, 21)
        if self.o["ebpos"] == 1:
            for ks in range(self.o["eb"]): p.ext(self.dma(2, ks))
        for t in range(1, 4):
            e(f"s_xor_b32 s51, {WV}, {t}\ns_mul_i32 s51, s51, {RINGW}\ns_add_u32 s51, s51, {RING0 + (t-1)*4096}\nv_add_u32 v{20+t}, s51, {L16}")
        e(f"s_lshl_b32 s50, {FT}, 3\ns_lshl_b32 s51, {WV}, 1\ns_add_u32 s50, s50, s51\ns_mul_i32 s50, s50, 10240")
        e(f"s_lshl_b32 s51, {DT}, 10\ns_add_u32 s50, s50, s51\ns_add_u32 s86, s50, {GB}")
        e(f"s_mul_i32 s89, {DT}, 24\ns_add_u32 s89, s89, {FT}\ns_lshl_b32 s89, s89, 7\ns_add_u32 s89, s89, {F2}")
        c1 = -2 * 0.7978845608028654 * 1.4426950408889634; c3 = c1 * 0.044715
        e(f"s_mov_b32 s90, {fbits(c3)}\nv_mov_b32 v126, {fbits(c1)}")
        if self.o.get("fine2"): self.stamp(p)
        self.spin(p, Y_PART, 4, 20)
        if self.o.get("fine2"): self.stamp(p)
        for q in range(4):
            for t in range(3): e(f"ds_read_b128 {v(RD+16*t+4*q,4)}, v{21+t} offset:{q*1024}", f"r1r{q}")
        if self.o["ebpos"] == 2:
            for ks in range(self.o["eb"]): p.ext(self.dma(2, ks))
        for pr in range(2):
            p.wlg(f"r1r{2*pr+1}")
            q = [(72 + 8 * pr + i, RD + 8 * pr + i, 88 + 8 * pr + i) for i in range(8)]
            if self.o["epk"]:
                q2 = q[::2]
                for x, r, t in q2: e(f"v_pk_add_f32 {v(x,2)}, {v(x,2)}, {v(r,2)}\nv_pk_add_f32 {v(r+16,2)}, {v(r+16,2)}, {v(r+32,2)}")
                for x, r, t in q2: e(f"v_pk_add_f32 {v(x,2)}, {v(x,2)}, {v(r+16,2)}")
                for x, r, t in q2: e(f"v_pk_mul_f32 {v(t,2)}, {v(x,2)}, {v(x,2)}")
                for x, r, t in q2: e(f"v_pk_fma_f32 {v(t,2)}, {v(t,2)}, s[90:91], v[126:127] op_sel_hi:[1,0,0]")
                for x, r, t in q2: e(f"v_pk_mul_f32 {v(t,2)}, {v(t,2)}, {v(x,2)}")
                for x, r, t in q: e(f"v_exp_f32 v{t}, v{t}")
                for x, r, t in q2: e(f"v_pk_add_f32 {v(t,2)}, {v(t,2)}, 1.0 op_sel_hi:[1,0]")
                for x, r, t in q: e(f"v_rcp_f32 v{t}, v{t}")
                for x, r, t in q2: e(f"v_pk_mul_f32 {v(t,2)}, {v(t,2)}, {v(x,2)}")
            else:
                for x, r, t in q: e(f"v_add_f32 v{x}, v{x}, v{r}\nv_add_f32 v{r+16}, v{r+16}, v{r+32}")
                for x, r, t in q: e(f"v_add_f32 v{x}, v{x}, v{r+16}")
                for x, r, t in q: e(f"v_mul_f32 v{t}, v{x}, v{x}")
                for x, r, t in q: e(f"v_fma_f32 v{t}, v{t}, s90, v126")
                for x, r, t in q: e(f"v_mul_f32 v{t}, v{t}, v{x}")
                for x, r, t in q: e(f"v_exp_f32 v{t}, v{t}")
                for x, r, t in q: e(f"v_add_f32 v{t}, 1.0, v{t}")
                for x, r, t in q: e(f"v_rcp_f32 v{t}, v{t}")
                for x, r, t in q: e(f"v_mul_f32 v{t}, v{t}, v{x}")
            o = 56 + 8 * pr
            for i in range(4): e(f"v_cvt_pk_bf16_f32 v{o+i}, v{q[2*i][2]}, v{q[2*i+1][2]}")
            e(f"v_permlane16_swap_b32 v{o}, v{o+2}\nv_permlane16_swap_b32 v{o+1}, v{o+3}")
            e(f"buffer_store_dwordx4 {v(o,4)}, v{6+pr}, {SWS}, s86 offen sc1", "gs")
        if self.o["epifirst"]: self.sig(p, Y_EPI, 20)
        self.stamp(p)
        self.xmm(p)
        if not self.o["epifirst"]: self.sig(p, Y_EPI, 20)
        for ks in range(min(self.o["eb"], self.o["P2"])): p.ext(self.tr(2, ks))
        e("s_waitcnt vmcnt(0)")
        l = self.label("nolast")
        e(f"v_mov_b32 v20, 1\ns_mov_b64 exec, 1\nds_add_rtn_u32 v20, {VSY}, v20 offset:{4*Y_G}\ns_mov_b64 exec, -1\ns_waitcnt lgkmcnt(0)\nv_readfirstlane_b32 s79, v20")
        e(f"s_cmp_lg_u32 s79, 3\ns_cbranch_scc1 {l}")
        self.flag_store(p, "s89", "@")
        e(f"{l}:")
        self.stamp(p)
    def gemm2(self, p, spare):
        e = p.e; o = self.o
        GR, ns = 24, o['ns2']
        e(f"s_mul_i32 s86, {WV}, {48*10240}\ns_mul_i32 s51, {DT2}, 1280\ns_add_u32 s86, s86, s51\ns_add_u32 s86, s86, {GB}")
        e(f"s_mul_i32 s88, {DT2}, {80*4096}\ns_and_b32 s51, s95, 0xffffffc0\ns_add_u32 s88, s88, s51\ns_add_u32 s88, s88, {YT}")
        e(f"v_and_b32 v116, 15, {LANE}\nv_mul_u32_u24 v116, 1280, v116\nv_and_b32 v117, 16, {LANE}\nv_lshl_add_u32 v116, v117, 1, v116\nv_lshrrev_b32 v117, 5, {LANE}\nv_lshl_add_u32 v116, v117, 4, v116")
        e(f"s_and_b32 s51, {WV}, 1\ns_lshl_b32 s51, s51, 26\nv_add_u32 v109, s51, v115\nv_xor_b32 v115, 0x4000000, v109")
        nd = o["eb"]; nt = min(o["eb"], o["P2"])
        self.spin(p, Y_G, 4, 20)
        def more():
            nonlocal nd
            if nd >= RS: p.wlg(f"t2_{nd-RS}")
            p.ext(self.dma(2, nd)); nd += 1
            if nd == o["PS2"]: self.sig(p, Y_P2, 20)
        while nd < min(o["D2"], nt + o["lead2"]): more()
        while nt < o["P2"]:
            p.ext(self.tr(2, nt)); nt += 1
            if nd < o["D2"]: more()
        while nd < o["D2"]:
            p.wvm(f"w2_{nd-o['lead2']}"); more()
        self.stamp(p)
        self.spin(p, Y_F2, 1, 20, sleep=1)
        self.stamp(p)
        def ld(i):
            ks, di = divmod(i, 5); q = Prog()
            if di == 0: self.kk(q, 2, ks, "s76", 40960, "s86")
            q.e(f"buffer_load_dwordx4 {v(GR + 4 * (i % ns), 4)}, v19, {SWS}, s76 offen offset:{256*di} sc1", f"act{ks}_{di}")
            return q
        def mfma(ks, di, ss):
            c = self.acc2(di, ss); src = "0" if (ks == 0 and ss > 0) else c
            return f"v_mfma_f32_16x16x32_bf16 {c}, {v(GR + 4 * ((5*ks+di) % ns), 4)}, {a(16*(ks%4)+4*ss,4)}, {src}"
        yk = o["ychk"]; assert yk >= 9
        def extra(ks):
            pre = Prog(); post = Prog()
            if ks == o["ytrig"]: self.sig(post, Y_P3, 20)
            if ks == yk:
                self.spin(post, Y_F3, 1, 20, sleep=2)
                for di in range(5):
                    post.e(f"buffer_load_dwordx4 {a(4*di,4)}, v{115 if di & 1 else 109}, {SWS}, s88 offen sc1", f"y{di}")
                    post.e("s_add_u32 s88, s88, 65536")
            if ks in (0, 3, 7): self.stamp(post)
            return Prog(), pre, post
        self.gemm_loop(p, 2, 12, 5, ns, nd, nt, ld, mfma, extra)
        self.stamp(p)
        e(f"v_add_u32 v20, {RINGB}, {L16}")
        for t in (3, 2):
            for di in range(5): e(f"ds_write_b128 v20, {self.acc2(di,t)} offset:{(t-1)*5120+di*1024}", "r2w")
        for t in range(1, 4):
            e(f"s_xor_b32 s51, {WV}, {t}\ns_mul_i32 s51, s51, {RINGW}\ns_add_u32 s51, s51, {RING0 + (t-1)*5120}\nv_add_u32 v{20+t}, s51, {L16}")
        if o.get("fine2"): self.stamp(p)
        for di in range(5):
            p.wvm(f"y{di}")
            e(f"v_mfma_f32_16x16x32_bf16 {self.acc2(di,1)}, {a(4*di,4)}, v[124:127], {self.acc2(di,1)}")
        for di in range(5):
            e(f"v_mfma_f32_16x16x32_bf16 {self.acc2(di,0)}, {a(4*di,4)}, v[120:123], {self.acc2(di,0)}")
        for di in range(5): e(f"ds_write_b128 v20, {self.acc2(di,1)} offset:{di*1024}", "r2w")
        if o.get("fine2"): self.stamp(p)
        e("s_waitcnt lgkmcnt(0)\ns_barrier")
        if o.get("fine2"): self.stamp(p)
        for di in range(5):
            for t in range(3): e(f"ds_read_b128 {v(GR+12*di+4*t,4)}, v{21+t} offset:{di*1024}", f"r2r{di}")
        for di in range(5):
            c = 84 + 4 * di; r = GR + 12 * di
            p.wlg(f"r2r{di}")
            for hq in range(2): e(f"v_pk_add_f32 {v(r+2*hq,2)}, {v(r+2*hq,2)}, {v(r+4+2*hq,2)}\nv_pk_add_f32 {v(c+2*hq,2)}, {v(c+2*hq,2)}, {v(r+8+2*hq,2)}")
            for hq in range(2): e(f"v_pk_add_f32 {v(c+2*hq,2)}, {v(c+2*hq,2)}, {v(r+2*hq,2)}")
            for hq in range(2): e(f"v_cvt_pk_bf16_f32 v{104+2*di+hq}, v{c+2*hq}, v{c+2*hq+1}")
            if o["ow4"] and di < 4:
                if di & 1:
                    b = 104 + 2 * (di - 1)
                    e(f"v_permlane16_swap_b32 v{b}, v{b+2}\nv_permlane16_swap_b32 v{b+1}, v{b+3}")
                    e(f"buffer_store_dwordx4 {v(b,4)}, v116, {SOUT}, s94 offen offset:{32*(di-1)} {o['oflag']}", "os")
            else: e(f"buffer_store_dwordx2 {v(104+2*di,2)}, v18, {SOUT}, s94 offen offset:{32*di} {o['oflag']}", "os")
        self.stamp(p)

    def main(self):
        self.role = "main"
        p = Prog(); e = p.e
        self.main_start(p)
        for ks in range(self.o["pre1"]): p.ext(self.dma(1, ks))
        self.ln(p)
        e(f"s_setprio {self.o['mprio']}")
        if self.o["xk"] == 0: self.xload(p)
        for ks in range(self.o["pre1"], self.o["free1"]): p.ext(self.dma(1, ks))
        if self.o["xk"] == 1: self.xload(p)
        self.stamp(p)
        self.main_setup2(p)
        e(f"s_cmp_lt_u32 {IDX}, 30\ns_cbranch_scc1 L_g1")
        q = Prog()
        q.e("s_waitcnt vmcnt(0)")
        self.xmm(q)
        self.spin(q, Y_PUB, 2, 20, sleep=4)
        for ks in range(self.o["eb"]): q.ext(self.dma(2, ks))
        for ks in range(min(self.o["eb"], self.o["P2"])): q.ext(self.tr(2, ks))
        self.sig(q, Y_G, 20)
        q.e("s_waitcnt vmcnt(0) lgkmcnt(0)\ns_branch L_g2")
        for line in finalize(q).split("\n"):
            if line.strip(): e(line.strip() if line.strip().endswith(":") else "@" + line.strip())
        e("L_g1:")
        self.gemm1(p)
        self.gemm1_epi(p)
        e("L_g2:")
        self.gemm2(p, False)
        e(f"s_or_b32 s51, {WG}, {WV}\ns_cmp_lg_u32 s51, 0\ns_cbranch_scc1 L_noep")
        e(f"s_mov_b64 exec, 1\nbuffer_store_dword {VTAG}, {VZ}, {SWS}, 0 offen\ns_mov_b64 exec, -1")
        e("L_noep:")
        if self.o.get("gmin"):
            e(f"global_load_dword v30, {VZ}, s[46:47] sc1\ns_waitcnt vmcnt(0)\nv_readfirstlane_b32 s96, v30\ns_nop 1\ns_not_b32 s96, s96")
        if self.o.get("hold"):
            e(f"L_hold:\ns_memrealtime s[82:83]\ns_waitcnt lgkmcnt(0)\ns_sub_u32 s82, s82, s96\ns_cmp_lt_u32 s82, {self.o['hold']}\ns_cbranch_scc1 L_hold")
        self.finish(p)
        return p

    def red32(self, p, regs, tmp):
        for m in ("quad_perm:[1,0,3,2]", "quad_perm:[2,3,0,1]", "row_half_mirror", "row_mirror"):
            for r in regs: p.e(f"v_add_f32_dpp v{r}, v{r}, v{r} {m} row_mask:0xf bank_mask:0xf")
        for i, r in enumerate(regs): p.e(f"v_mov_b32 v{tmp+i}, v{r}")
        for i, r in enumerate(regs): p.e(f"v_permlane16_swap_b32 v{r}, v{tmp+i}")
        for i, r in enumerate(regs): p.e(f"v_add_f32 v{r}, v{r}, v{tmp+i}")
    RAW = [4, 5, 6, 7, 8, 12, 13, 14, 15, 16, 17, 18]
    def conv_start(self, p):
        e = p.e; RAW = self.RAW
        e(f"s_sub_u32 s14, {WV}, 4\ns_cmp_ge_u32 s14, {NCH}\ns_cbranch_scc1 L_end\ns_setprio {self.o['kprio']}")
        e(f"s_lshl_b32 {CH}, {DT}, 6\ns_lshl4_add_u32 {CH}, {SUB}, {CH}\ns_add_u32 {CH}, {CH}, {C0}\ns_add_u32 {CH}, {CH}, s14")
        e(f"s_mul_i32 {REGB}, s14, {REGSZ}\ns_add_u32 {REGB}, {REGB}, {REG0}")
        e(f"s_mul_i32 s51, {CH}, 384\nv_add_u32 v110, s51, {L4}\nv_lshlrev_b32 v111, 1, {LANE}\nv_add_u32 v111, s51, v111")
        e(f"s_lshr_b32 s79, {CH}, 1\ns_lshl_b32 s79, s79, 2")
        e("s_waitcnt lgkmcnt(0)")
        e(f"s_load_dword s80, s[30:31], s79\ns_load_dword s81, s[32:33], s79")
        if not self.o["pfirst"]: e("s_barrier")
        for i in range(6):
            e(f"global_load_dword v{RAW[2*i]}, v110, s[{18+2*i}:{19+2*i}] {self.o['pflag']}")
            e(f"global_load_ushort v{RAW[2*i+1]}, v111, s[{18+2*i}:{19+2*i}] offset:256 {self.o['pflag']}")
        self.pre(p)
        if self.o["pfirst"]: e("s_barrier")
        self.srd(p, 68, 48, WSEND)
        e("s_waitcnt lgkmcnt(0)")
    def serv_start(self, p):
        e = p.e
        e("s_setprio 3")
        e(f"v_add_u32 v109, {SYNC}, {L4}\ns_mov_b32 exec_hi, 0\nds_write_b32 v109, {VZ}\ns_mov_b64 exec, -1")
        e("s_waitcnt lgkmcnt(0)")
        self.pre(p)
        e(f"s_load_dword {TAG}, s[48:49], 0")
        e("s_barrier")
        self.srd(p, 60, 40, 6291456); self.srd(p, 68, 48, WSEND)
        if self.o["tch"]:
            self.srd(p, 56, 36, 6291456); self.srd(p, 64, 44, 2621440)
            e(f"v_lshlrev_b32 v100, {self.o['tch']}, {LANE}\nv_add_u32 v100, 0x3000, v100")
            for i, srd in enumerate((SWS, SW1, SW2, SOUT)): e(f"buffer_load_dword v{101+i}, v100, {srd}, 0 offen")
            e(f"global_load_dword v105, {VZ}, s[38:39]\nglobal_load_dword v106, {VZ}, s[42:43]")
    def ln(self, p):
        e = p.e
        RAW, F, D, T, H = 20, 30, 50, 70, 90
        inv = fbits(1.0 / 640)
        e(f"s_lshr_b32 s51, {WV}, 1\ns_mul_i32 s51, s51, {REGSZ}\ns_and_b32 s15, {WV}, 1\ns_mul_i32 s15, s15, {2*PT}\ns_add_u32 s51, s51, s15\ns_add_u32 s51, s51, {LNT}")
        e(f"v_mul_u32_u24 v102, {PT}, v120\nv_add_u32 v102, s51, v102\nv_lshl_add_u32 v101, v122, 3, v102\nv_lshl_add_u32 v100, v122, 4, v102")
        p.wvm("x")
        self.stamp(p)
        self.unpack(p, RAW, F, 10)
        def psum(src, dst):
            e(f"v_pk_add_f32 {v(dst,2)}, {v(src,2)}, {v(src+2,2)}\nv_pk_add_f32 {v(dst+2,2)}, {v(src+4,2)}, {v(src+6,2)}")
            for i in range(4, 10): e(f"v_pk_add_f32 {v(dst+2*(i&1),2)}, {v(dst+2*(i&1),2)}, {v(src+2*i,2)}")
            e(f"v_pk_add_f32 {v(dst,2)}, {v(dst,2)}, {v(dst+2,2)}\nv_add_f32 v{dst}, v{dst}, v{dst+1}")
        def psq(src, dst):
            e(f"v_pk_mul_f32 {v(dst,2)}, {v(src,2)}, {v(src,2)}\nv_pk_mul_f32 {v(dst+2,2)}, {v(src+2,2)}, {v(src+2,2)}")
            for i in range(2, 10): e(f"v_pk_fma_f32 {v(dst+2*(i&1),2)}, {v(src+2*i,2)}, {v(src+2*i,2)}, {v(dst+2*(i&1),2)}")
            e(f"v_pk_add_f32 {v(dst,2)}, {v(dst,2)}, {v(dst+2,2)}\nv_add_f32 v{dst}, v{dst}, v{dst+1}")
        def rstd(var, out):
            e(f"v_max_f32 v{var}, 0, v{var}")
            self.rbf(p, var); e(f"v_add_f32 v{var}, {fbits(1e-5)}, v{var}"); self.rbf(p, var)
            e(f"v_sqrt_f32 v{var}, v{var}"); self.rbf(p, var); e(f"v_rcp_f32 v{out}, v{var}")
        psum(F, T); self.red32(p, [T], T + 2)
        e(f"v_mul_f32 v{T}, {inv}, v{T}\nv_mov_b32 v{T+4}, v{T}"); self.rbf(p, T + 4)
        for i in range(10): e(f"v_pk_add_f32 {v(D+2*i,2)}, {v(F+2*i,2)}, {v(T+4,2)} op_sel_hi:[1,0] neg_lo:[0,1] neg_hi:[0,1]")
        e(f"v_sub_f32 v{T+5}, v{T}, v{T+4}")
        psq(D, T); self.red32(p, [T], T + 2)
        e(f"v_mul_f32 v{T}, {inv}, v{T}\nv_fma_f32 v{T}, -v{T+5}, v{T+5}, v{T}")
        rstd(T, T + 6)
        for i in range(10): e(f"v_pk_mul_f32 {v(D+2*i,2)}, {v(D+2*i,2)}, {v(T+6,2)} op_sel_hi:[1,0]")
        for i in range(10): e(f"v_cvt_pk_bf16_f32 v{RAW+i}, v{D+2*i}, v{D+2*i+1}")
        self.unpack(p, RAW, F, 10)
        psum(F, T); psq(F, T + 4); self.red32(p, [T, T + 4], T + 2)
        e(f"v_mul_f32 v{T}, {inv}, v{T}\nv_mul_f32 v{T+4}, {inv}, v{T+4}\nv_fma_f32 v{T+4}, -v{T}, v{T}, v{T+4}")
        self.rbf(p, T)
        rstd(T + 4, T + 6)
        e(f"v_mul_f32 v{T+2}, v{T}, v{T+6}\nv_lshrrev_b32 v{T+4}, 16, v{T+4}\nv_or_b32 v{T+4}, v{T+4}, v{T}")
        for i in range(10): e(f"v_pk_fma_f32 {v(D+2*i,2)}, {v(F+2*i,2)}, {v(T+6,2)}, {v(T+2,2)} op_sel_hi:[1,0,0] neg_lo:[0,0,1] neg_hi:[0,0,1]")
        e(f"ds_write_b32 v102, v{T+4} offset:1280", "lnw")
        for i in range(10): e(f"v_cvt_pk_bf16_f32 v{H+i}, v{D+2*i}, v{D+2*i+1}")
        e(f"ds_write_b128 v100, {v(H,4)}\nds_write_b128 v100, {v(H+4,4)} offset:512\nds_write_b64 v101, {v(H+8,2)} offset:1024", "lnw")
        self.sig(p, Y_LN, T)

    def serv(self):
        self.role = "serv"
        p = Prog(); e = p.e; o = self.o
        self.serv_start(p)
        self.stamp(p)
        e(f"v_bfe_u32 v12, {LANE}, 2, 2\nv_mul_u32_u24 v12, {PT}, v12\nv_lshrrev_b32 v13, 4, {LANE}\nv_lshl_add_u32 v12, v13, 5, v12")
        e(f"v_and_b32 v13, 3, {LANE}\nv_lshl_add_u32 v12, v13, 3, v12\nv_add_u32 v12, {LNT}, v12")
        e(f"s_mul_i32 s84, {WG}, 10240\ns_add_u32 s84, s84, {HB}\ns_add_u32 s85, s84, 4096\ns_add_u32 s86, s84, 8192")
        e(f"s_lshl_b32 s87, {WG}, 4\ns_add_u32 s87, s87, {STAT}\nv_lshlrev_b32 v13, 12, {LANE}")
        e(f"s_lshr_b32 s89, {WG}, 2\ns_lshl_b32 s89, s89, 7\ns_and_b32 s51, {WG}, 3\ns_lshl2_add_u32 s89, s51, s89\ns_add_u32 s89, s89, {F1}\nv_lshlrev_b32 v14, 7, {LANE}")
        e("s_waitcnt lgkmcnt(0)")
        self.mktag(p)
        e(f"ds_write_b32 {VSY}, {VTAG} offset:{4*Y_TAG}")
        self.spin(p, Y_LN, 4, 20, sleep=1)
        if self.o.get("dly_p"): e(f"s_sleep {self.o['dly_p']}")
        self.stamp(p)
        for b in range(11):
            e(f"ds_read_b64_tr_b16 {v(24+4*b,2)}, v12 offset:{128*b}\nds_read_b64_tr_b16 {v(26+4*b,2)}, v12 offset:{128*b+REGSZ}", f"lr{b}")
            if b >= 3:
                c = b - 3; p.wlg(f"lr{c}")
                e(f"buffer_store_dwordx4 {v(24+4*c,4)}, {L16}, {SWS}, s{84 + c//4} offen offset:{(c%4)*1024} sc1")
        for c in range(8, 10):
            p.wlg(f"lr{c}")
            e(f"buffer_store_dwordx4 {v(24+4*c,4)}, {L16}, {SWS}, s{84 + c//4} offen offset:{(c%4)*1024} sc1")
        p.wlg("lr10")
        e(f"s_mov_b64 exec, 3\nbuffer_store_dwordx4 v[64:67], v13, {SWS}, s87 offen sc1\ns_mov_b64 exec, -1")
        self.sig(p, Y_PUB, 20)
        self.stamp(p)
        e(f"s_mul_i32 s50, {DT2}, 80\ns_lshr_b32 s50, s50, 6\ns_mul_i32 s92, s50, {24*128}\ns_add_u32 s92, s92, {F2}")
        e(f"v_min_u32 v15, 47, {LANE}\nv_lshlrev_b32 v15, 7, v15\nv_min_u32 v16, 29, {LANE}\nv_lshlrev_b32 v16, 7, v16")
        e(f"s_mul_i32 s93, {DT2}, {30*128}\ns_add_u32 s93, s93, {F3}")
        e("s_waitcnt vmcnt(0)")
        if self.o.get("dly_f"):
            self.sig(p, Y_PUB, 20); e(f"s_sleep {self.o['dly_f']}")
        self.flag_store(p, "s89")
        self.sig(p, Y_PUB, 20)
        self.stamp(p)
        e(f"s_cmp_lt_u32 {IDX}, 30\ns_cbranch_scc1 L_s1")
        e(f"v_lshrrev_b32 v17, 3, {LANE}\nv_lshlrev_b32 v17, 12, v17\nv_and_b32 v18, 7, {LANE}\nv_lshl_add_u32 v17, v18, 7, v17")
        e(f"s_lshl_b32 s88, {SUB}, 10\ns_and_b32 s51, {IDX}, 1\ns_lshl_b32 s51, s51, 15\ns_add_u32 s88, s88, s51\ns_and_b32 s51, {XCD}, 1\ns_lshl_b32 s51, s51, 16\ns_add_u32 s88, s88, s51")
        if o["slow"]:
            e(f"v_lshlrev_b32 v18, 12, {LANE}\ns_lshl_b32 s87, {SUB}, 10\ns_add_u32 s87, s87, 384\ns_and_b32 s51, {IDX}, 1\ns_lshl_b32 s51, s51, 18\ns_add_u32 s87, s87, s51")
            for i in range(12): e(f"buffer_load_dword v{70+i}, v18, {SW2}, s87 offen\ns_add_u32 s87, s87, {128*4096}")
        for i in range(o["nsp"]):
            e(f"buffer_load_dword v{24+i}, v17, {SW2}, s88 offen\ns_add_u32 s88, s88, 131072")
        e("s_waitcnt vmcnt(0)\ns_branch L_s2\nL_s1:")
        self.inverse_addr(p)
        self.spin(p, Y_P1, 1, 20, sleep=2)
        self.stamp(p)
        e(f"s_mov_b32 s50, {F1}")
        self.poll(p, "v14", "s50", 20, wide=True, sleep=o["psleep"])
        self.sig(p, Y_F1, 20)
        self.stamp(p)
        if self.debug: e(f"v_writelane_b32 {VDBG}, s78, 31")
        self.inverse(p)
        e("L_s2:")
        self.spin(p, Y_P2, 1, 20, sleep=4)
        self.stamp(p)
        self.poll(p, "v15", "s92", 20, sleep=o["psleep2"])
        self.sig(p, Y_F2, 20)
        self.stamp(p)
        if self.debug: e(f"v_writelane_b32 {VDBG}, s78, 30")
        self.spin(p, Y_P3, 1, 20, sleep=4)
        if o["sp3"]:
            e("s_add_u32 s94, s48, s93\ns_addc_u32 s95, s49, 0\ns_mov_b32 s78, 0\ns_branch L_sp3f\nL_sp3:")
            e(f"s_sleep {o['sp3']}\nL_sp3f:")
            for i in range(30): e(f"s_load_dword s{16+i}, s[94:95], {128*i} glc")
            e("s_add_u32 s78, s78, 1\ns_waitcnt lgkmcnt(0)")
            e(f"s_xor_b32 s79, s16, {TAG}")
            for i in range(1, 30): e(f"s_xor_b32 s51, s{16+i}, {TAG}\ns_or_b32 s79, s79, s51")
            e("s_cmp_gt_u32 s78, 0x8000\ns_cbranch_scc1 L_sp3d\ns_cmp_lg_u32 s79, 0\ns_cbranch_scc1 L_sp3\nL_sp3d:")
        else: self.poll(p, "v16", "s93", 20, sleep=o["psleep2"])
        self.sig(p, Y_F3, 20)
        if self.debug: e(f"v_writelane_b32 {VDBG}, s78, 29")
        self.finish(p)
        return p

    def kgen(self, p):
        e = p.e; RAW = self.RAW
        L2E = 1.4426950408889634
        l2e_hi = struct.unpack("<f", struct.pack("<f", L2E))[0]; l2e_lo = L2E - l2e_hi
        VDT, VD1, VD2, VDS, WA, RA, RB = 54, 55, 56, 57, 58, 59, 60
        e(f"s_and_b32 s51, {CH}, 1\ns_lshl_b32 s51, s51, 4\ns_lshr_b32 s80, s80, s51\ns_lshl_b32 s80, s80, 16\ns_lshr_b32 s81, s81, s51\ns_lshl_b32 s81, s81, 16")
        e(f"v_mov_b32 v62, s80\nv_mov_b32 v63, {fbits(l2e_hi)}\nv_mul_f32 v64, v62, v63\nv_fma_f32 v65, v62, v63, -v64\nv_fmac_f32 v65, {fbits(l2e_lo)}, v62")
        e(f"v_exp_f32 v64, v64\nv_mul_f32 v65, {fbits(0.6931471805599453)}, v65\nv_fma_f32 v{VDT}, v64, v65, v64")
        self.rbf(p, VDT)
        e(f"v_mul_f32 v{VD1}, {fbits(L2E)}, v{VDT}\nv_mul_f32 v{VD2}, 0.15915494, v{VDT}")
        e(f"v_cmp_eq_u32 vcc, 0, {LANE}\nv_mov_b32 v62, s81\nv_cndmask_b32 v{VDS}, 0, v62, vcc")
        e(f"s_mov_b32 m0, {REGB}")
        e(f"v_and_b32 v62, 31, {LANE}\nv_lshrrev_b32 v63, 5, {LANE}\nv_lshlrev_b32 v63, 4, v63\nv_add_u32 v63, {REGB}, v63")
        e(f"v_mul_u32_u24 v64, {KP}, v62\nv_add_u32 v{RB}, v64, v63")
        e(f"v_min_u32 v62, 20, v62\nv_mul_u32_u24 v64, {KP}, v62\nv_add_u32 v{RA}, v64, v63")
        e("v_mov_b32 v28, 0x3f80")
        e("s_waitcnt vmcnt(0)")
        self.stamp(p)
        PK = 116; pk = [0]; P = 62
        FA, FB = 16, 48
        def mf(rd):
            l = []
            for s in range(8):
                q = Prog()
                c = a(0, 16)
                q.e(f"v_mfma_f32_32x32x16_bf16 {a(0,16)}, {a(FA+4*s,4)}, {a(FB+4*s,4)}, {c}")
                l.append(q)
            return l
        p.e("s_mov_b32 s76, 0\nL_kg:")
        for rd in (1,):
            usepk = self.o["pk"]
            q = Prog(); e = q.e
            def cmul(sets):
                if usepk:
                    for d, x, y in sets: e(f"v_pk_mul_f32 {v(d,2)}, {v(x,2)}, {v(y,2)} op_sel_hi:[0,1]")
                    for d, x, y in sets: e(f"v_pk_fma_f32 {v(d,2)}, {v(x,2)}, {v(y,2)}, {v(d,2)} op_sel:[1,1,0] op_sel_hi:[1,0,1] neg_lo:[1,0,0]")
                else:
                    for d, x, y in sets: e(f"v_mul_f32 v{d}, v{x}, v{y}\nv_mul_f32 v{d+1}, v{x}, v{y+1}")
                    for d, x, y in sets: e(f"v_fma_f32 v{d}, -v{x+1}, v{y+1}, v{d}\nv_fmac_f32 v{d+1}, v{x+1}, v{y}")
            def puts(l, neg):
                rs = []
                for row, z in l:
                    r = PK + pk[0] % 8; pk[0] += 1; rs.append(r)
                    e(f"v_cvt_pk_bf16_f32 v{r}, v{z}, {'-' if neg else ''}v{z+1}")
                for (row, z), r in zip(l, rs): e(f"ds_write_addtid_b32 v{r} offset:{row*KP}", "kw")
            for i in range(6):
                e(f"v_lshlrev_b32 v{P+i}, 16, v{RAW[2*i]}\nv_alignbit_b32 v{RAW[2*i]}, v{RAW[2*i+1]}, v{RAW[2*i]}, 16")
            AR, AI = 68, 69
            e(f"v_mul_f32 v{AR}, v{P}, v{VD1}\nv_mul_f32 v{AI}, v{P+1}, v{VD2}")
            e(f"v_mul_f32 v{P+2}, v{P+2}, v{VDT}\nv_mul_f32 v{P+3}, v{P+3}, v{VDT}")
            E1, E8, E256 = 70, 72, 74
            TM_, TA = 76, 79
            for i, t in enumerate((1.0, 8.0, 256.0)):
                if i == 0: e(f"v_mov_b32 v{TM_}, v{AR}\nv_fract_f32 v{TA}, v{AI}")
                else: e(f"v_mul_f32 v{TM_+i}, {fbits(t)}, v{AR}\nv_mul_f32 v{TA+i}, {fbits(t)}, v{AI}\nv_fract_f32 v{TA+i}, v{TA+i}")
            X = 82
            cmul([(X, P + 4, P + 2)])
            for i in range(3):
                e(f"v_exp_f32 v{TM_+i}, v{TM_+i}\nv_cos_f32 v{E1+2*i}, v{TA+i}\nv_sin_f32 v{E1+2*i+1}, v{TA+i}")
            for i in range(3): e(f"v_mul_f32 v{E1+2*i}, v{E1+2*i}, v{TM_+i}\nv_mul_f32 v{E1+2*i+1}, v{E1+2*i+1}, v{TM_+i}")
            E2, E4, E16, E512 = 98, 100, 102, 104
            EA, EB, E32, Y, Z = 106, 20, 114, 30, 38
            cmul([(E2, E1, E1), (E16, E8, E8), (E512, E256, E256), (X + 2, X, E1)])
            cmul([(E4, E2, E2), (EA + 6, E16, E8), (E32, E16, E16), (X + 4, X, E2), (X + 6, X + 2, E2)])
            p.ext(q)
            p.e("s_waitcnt lgkmcnt(0)")
            q = Prog(); e = q.e
            e(f"ds_write_addtid_b32 v28", "kw")
            puts([(1, E8), (2, E16), (3, EA + 6), (4, E32)], False)
            cmul([(EB, E8, E32), (EB + 2, E16, E32), (EB + 4, EA + 6, E32), (EB + 6, E32, E32)])
            cur, nxt = EB, EA
            extra = [[(X + 8 + 2 * i, X + 2 * i, E4) for i in range(4)], [(Y + 2 * i, X + 4 * i, E256) for i in range(4)],
                     [(Z, X, E512), (Z + 2, X + 8, E512), (Z + 4, Y, E512), (Z + 6, Y + 4, E512)],
                     [(Z + 8, Z, E512), (Z + 10, Z + 4, E512)], [(Z + 12, Z + 8, E512), (Z + 14, Z + 10, E512)], [(E1, Z + 12, E512)]]
            for st in range(6):
                j0 = 9 + 4 * st
                n = min(4, 32 - j0)
                cmul([(nxt + 2 * i, cur + 2 * i, E32) for i in range(n)])
                puts([(j0 - 4 + i, cur + 2 * i) for i in range(4)], False)
                cmul(extra[st])
                cur, nxt = nxt, cur
            puts([(29 + i, cur + 2 * i) for i in range(3)], False)
            if rd > 0: p.ext(interleave(q, mf(rd - 1)))
            else: p.ext(q)
            for s_ in range(8): p.e(f"ds_read_b128 {a(FB+4*s_,4)}, v{RB} offset:{s_*32}", "kr")
            e = p.e
            puts([(i, X + 2 * i) for i in range(4)], True); puts([(4 + i, X + 8 + 2 * i) for i in range(4)], True)
            puts([(8 + i, Y + 2 * i) for i in range(4)], True); puts([(12 + i, Z + 2 * i) for i in range(4)], True)
            puts([(16 + i, Z + 8 + 2 * i) for i in range(4)] + [(20, E1)], True)
            for s_ in range(8): p.e(f"ds_read_b128 {a(FA+4*s_,4)}, v{RA} offset:{s_*32}", "kr")
            p.e("s_cmp_lg_u32 s76, 0\ns_cbranch_scc1 L_kg1")
            for i in range(16): p.e(f"v_accvgpr_write_b32 a{i}, 0")
            p.e("L_kg1:")
            if self.debug: p.e(f"s_memrealtime s[82:83]\ns_waitcnt lgkmcnt(0)\ns_add_u32 s50, s76, 20\nv_mov_b32 v61, s82\nv_cmp_eq_u32 vcc, s50, {LANE}\nv_cndmask_b32 {VDBG}, {VDBG}, v61, vcc")
            p.e("s_add_u32 s76, s76, 1\ns_cmp_lt_u32 s76, 3\ns_cbranch_scc1 L_kg")
        e = p.e
        e(f"v_and_b32 v62, 31, {LANE}\nv_lshrrev_b32 v63, 5, {LANE}\ns_add_u32 s51, {REGB}, {KCO}")
        e(f"v_lshlrev_b32 v64, 4, v62\nv_lshl_add_u32 v64, v63, 3, v64\nv_add_u32 v64, s51, v64")
        e(f"v_cmp_eq_u32 vcc, 0, v63\nv_lshlrev_b32 v65, 3, v62\nv_add_u32 v65, 512, v65\nv_lshlrev_b32 v66, 2, v62\nv_add_u32 v66, 768, v66")
        e(f"v_cndmask_b32 v65, v66, v65, vcc\nv_add_u32 v65, s51, v65\nv_mov_b32 v66, 128\nv_cndmask_b32 v66, v66, 4, vcc\nv_add_u32 v66, v65, v66")
        e(f"v_lshlrev_b32 v67, 1, v62\nv_lshl_add_u32 v67, v63, 8, v67\nv_add_u32 v67, s51, v67")
        self.spin(p, Y_PUB, 1, 68)
        for q in mf(2): p.ext(q)
        e(f"v_mov_b32 v76, 0\nv_mov_b32 v77, 0\nv_mov_b32 v78, 0\nv_mov_b32 v79, 0\nv_add_u32 v15, {REGB}, {L16}")
        for i in range(4): e(f"ds_write_b128 v15, v[76:79] offset:{R0O + 1024*i}", "kc")
        e("s_mov_b64 exec, 3")
        e(f"ds_write_b128 v15, v[76:79] offset:{KCO - 32}", "kc")
        e("s_mov_b32 exec_lo, -1")
        e(f"ds_write_b128 v15, v[76:79] offset:{UO}", "kc")
        e("s_mov_b64 exec, -1")
        blocks = [(-2, 34, 8), (32, 32, 4)]
        info = []
        for bi, (v0, nl, stride) in enumerate(blocks):
            cis = lambda y: y if y < 0 else ci(y)
            base = cis(8 * v0)
            offs = {}
            for t in range(-1, 8):
                o = [cis(8 * (v0 + l) + 7 - t) - (base + stride * l) for l in range(nl)]
                offs[t] = o[0]
                assert all(x == o[0] for x in o)
            AD = 100 + 2 * bi
            e(f"s_add_u32 s51, {REGB}, {KCO + 2*base}\nv_mul_u32_u24 v{AD}, {2*stride}, {LANE}\nv_add_u32 v{AD}, s51, v{AD}")
            e(f"s_add_u32 s51, {REGB}, {(75 - v0) * 16}\nv_sub_u32 v{AD+1}, s51, {L16}")
            info.append(offs)
        e(f"v_cmp_gt_u32 vcc, 16, {LANE}\nv_mov_b32 v104, 563\nv_mov_b32 v105, 512\nv_cndmask_b32 v104, v104, v105, vcc\nv_add_u32 v104, v104, {LANE}")
        e(f"v_mov_b32 v106, 1011\nv_cndmask_b32 v105, v106, v105, vcc\nv_add_u32 v105, v105, {LANE}\nv_cvt_f32_u32 v105, v105\nv_cvt_pk_bf16_f32 v105, v105, v105\nv_and_b32 v105, 0xffff, v105")
        e(f"s_sub_u32 s51, {REGB}, {2*0x4280 - KCO}\nv_lshl_add_u32 v105, v105, 1, s51")
        e(f"s_add_u32 s51, {REGB}, {2*607}\nv_lshlrev_b32 v104, 1, v104\nv_sub_u32 v104, s51, v104")
        e(f"v_add_u32 v107, 1, {LANE}\nv_and_b32 v107, 0x7e, v107\ns_add_u32 s51, {REGB}, 4096\nv_sub_u32 v107, s51, v107\nv_and_b32 v106, 1, {LANE}")
        e(f"v_mul_u32_u24 v108, 192, v106\nv_add_u32 v108, v107, v108\nv_mul_u32_u24 v106, 272, v106\nv_add_u32 v107, v107, v106\nv_lshl_add_u32 v106, {LANE}, 1, {REGB}")
        for i in range(12): e(f"v_accvgpr_read_b32 v{82+i}, a{i}")
        e(f"v_add_f32 v82, v82, v{VDS}")
        for i in range(6): e(f"v_cvt_pk_bf16_f32 v{70+i}, v{82+2*i}, v{83+2*i}")
        e(f"ds_write_b64 v64, v[70:71]\nds_write_b32 v65, v72\nds_write_b32 v66, v73\nds_write_b16 v67, v74 offset:1024", "kc")
        e("s_mov_b32 exec_hi, 0")
        e(f"ds_write_b16_d16_hi v67, v74 offset:{1024+64}\nds_write_b16 v67, v75 offset:{1024+128}\nds_write_b16_d16_hi v67, v75 offset:{1024+192}", "kc")
        e("s_mov_b64 exec, -1")
        vrs = []
        for bi, (v0, nl, stride) in enumerate(blocks):
            RR = 20 + 9 * bi; AD = 100 + 2 * bi; offs = info[bi]
            e(f"s_mov_b32 exec_hi, {(1 << (nl - 32)) - 1}")
            seen = {}; vr = {}
            for t in range(-1, 8):
                o = offs[t]
                if o not in seen:
                    seen[o] = RR + len(seen)
                    e(f"ds_read_u16 v{seen[o]}, v{AD} offset:{2*o}", f"kx{bi}")
                vr[t] = seen[o]
            vrs.append(vr)
        e("ds_read_u16 v40, v105", "kq")
        e("s_mov_b64 exec, -1")
        for i in range(2):
            e(f"ds_read_u16 v{41+i}, v106 offset:{KCO + 2*(388 + 64*i)}\nds_read_u16 v{43+i}, v106 offset:{KCO + 2*(514 + 64*i)}", "kq")
        for bi, (v0, nl, stride) in enumerate(blocks):
            AD = 100 + 2 * bi; O = 70 + 8 * bi; vr = vrs[bi]
            p.wlg(f"kx{bi}")
            for i in range(4): e(f"v_lshl_or_b32 v{O+i}, v{vr[2*i+1]}, 16, v{vr[2*i]}")
            for i in range(4): e(f"v_lshl_or_b32 v{O+4+i}, v{vr[2*i]}, 16, v{vr[2*i-1]}")
            e(f"s_mov_b32 exec_hi, {(1 << (nl - 32)) - 1}")
            e(f"ds_write_b128 v{AD+1}, {v(O,4)} offset:{R0O}\nds_write_b128 v{AD+1}, {v(O+4,4)} offset:{R1O}", "kt")
            e("s_mov_b64 exec, -1")
        p.wlg("kq")
        e(f"ds_write_b16 v107, v41 offset:{Q2O - 4096 + 2*94}\nds_write_b16 v108, v43 offset:{Q3O - 4096 + 2*63}\nds_write_b16 v108, v43 offset:{Q3O - 4096 + 384 + 2*64}", "kt")
        e(f"s_mov_b32 exec_hi, {(1 << 31) - 1:#x}\nds_write_b16 v108, v44 offset:{Q3O - 4096 + 2*31}\nds_write_b16 v108, v44 offset:{Q3O - 4096 + 384 + 2*32}", "kt")
        e(f"s_mov_b32 exec_hi, {(1 << 29) - 1:#x}\nds_write_b16 v107, v42 offset:{Q2O - 4096 + 2*62}", "kt")
        e(f"s_mov_b32 exec_hi, 0\ns_mov_b32 exec_lo, 0x01ff3fff\nds_write_b16 v104, v40 offset:{R0O}\nds_write_b16 v104, v40 offset:{R1O + 2}\ns_mov_b64 exec, -1", "kt")

    def conv_setup(self, p):
        e = p.e
        e(f"v_lshrrev_b32 v32, 4, {LANE}\nv_and_b32 v31, 15, {LANE}\nv_bfe_u32 v33, {LANE}, 1, 3\nv_lshlrev_b32 v34, 2, v32\nv_sub_u32 v34, v34, v33")
        e(f"v_and_b32 v33, 1, {LANE}\nv_xor_b32 v33, 1, v33\nv_mul_u32_u24 v33, {(R1O - R0O)//4 + 1}, v33\nv_add_u32 v34, v34, v33")
        e(f"s_add_u32 s51, {REGB}, {R0O + 4*7}\nv_lshl_add_u32 v24, v34, 2, s51\nv_add_u32 v25, 512, v24")
        e(f"v_lshlrev_b32 v33, 3, v32\nv_lshlrev_b32 v34, 2, v31\nv_sub_u32 v26, v33, v34\ns_add_u32 s51, {REGB}, {Q2O + 60}\nv_add_u32 v26, s51, v26")
        e(f"v_lshlrev_b32 v34, 1, v31\nv_sub_u32 v27, v33, v34\nv_and_b32 v34, 1, v31\nv_mul_u32_u24 v34, 386, v34\nv_sub_u32 v27, v27, v34\ns_add_u32 s51, {REGB}, {Q3O + 384 + 32}\nv_add_u32 v27, s51, v27")
        for m in list(range(17)) + [18]:
            off = (18 - m) * 16; ad = 24; r = 4 * min(m, 17)
            if off >= 128: off -= 128; ad = 25
            e(f"ds_read2_b32 {a(r,2)}, v{ad} offset0:{off} offset1:{off+1}\nds_read2_b32 {a(r+2,2)}, v{ad} offset0:{off+2} offset1:{off+3}", "pf")
        for j in range(6): e(f"ds_read2_b32 {a(72+4*j,2)}, v26 offset0:{8*j} offset1:{8*j+1}\nds_read2_b32 {a(74+4*j,2)}, v26 offset0:{68+8*j} offset1:{68+8*j+1}", "pf")
        for j in range(4): e(f"ds_read2_b32 {a(96+4*j,2)}, v27 offset0:{8*j} offset1:{8*j+1}\nds_read2_b32 {a(98+4*j,2)}, v27 offset0:{48+8*j} offset1:{48+8*j+1}", "pf")
        e(f"v_lshl_add_u32 v34, v31, 1, v32\ns_add_u32 s51, {REGB}, {UO + 16*2}\nv_lshl_add_u32 v16, v34, 4, s51")
        e(f"v_add_u32 v34, v31, v32\ns_add_u32 s51, {REGB}, {UO + 512 - 48}\nv_lshl_add_u32 v12, v34, 4, s51")
        e(f"v_and_b32 v34, 1, v32\nv_lshlrev_b32 v34, 9, v34\nv_lshl_add_u32 v34, v31, 5, v34\nv_lshrrev_b32 v32, 1, v32\nv_lshl_add_u32 v17, v32, 4, v34")
        e(f"s_lshl_b32 s86, {CH}, 12\ns_add_u32 s86, s86, {YT}\ns_mul_i32 s89, {DT}, 24\ns_add_u32 s89, s89, {FT}\ns_lshl_b32 s89, s89, 7\ns_add_u32 s89, s89, {F3}\ns_sub_u32 s88, {NCH}, 1")
    def boxes(self, p):
        e = p.e
        e("v_mov_b32 v23, 0x3f80")
        e(f"v_and_b32 v124, 15, {LANE}\nv_lshrrev_b32 v125, 4, {LANE}\nv_lshlrev_b32 v125, 3, v125\ns_mov_b32 s50, 0x8001\ns_mov_b32 s51, 0x10001")
        for bi, (c_, h_) in enumerate(((8, 2), (12, 1), (8, 4), (8, 3))):
            e(f"v_mov_b32 v126, {((1 << (2*h_+1)) - 1) << (c_ - h_):#x}\nv_lshlrev_b32 v126, v124, v126\nv_lshrrev_b32 v126, v125, v126")
            for q in range(4):
                e(f"v_bfe_u32 v127, v126, {2*q}, 2\nv_mul_u32_u24 v127, s50, v127\nv_and_b32 v127, s51, v127\nv_mul_u32_u24 v127, v23, v127\nv_accvgpr_write_b32 a{112+4*bi+q}, v127")
        self.stamp(p)
        self.spin(p, Y_UR, 1, 22, sleep=2)
        e(f"ds_read_b32 {VTAG}, {VSY} offset:{4*Y_TAG}", "tag")
        self.stamp(p)
    def inverse_addr(self, p):
        e = p.e
        e(f"v_lshrrev_b32 v20, 4, {LANE}\nv_lshlrev_b32 v20, 10, v20\nv_and_b32 v21, 3, {LANE}\nv_lshl_add_u32 v20, v21, 4, v20\nv_and_b32 v21, 12, {LANE}")
        for q in range(4):
            e(f"v_add_u32 v22, {16*(q&1)}, v21\nv_bfe_u32 v22, s{74 + q//2}, v22, 4\nv_lshl_add_u32 v{4+q}, v22, 6, v20")
        e(f"s_mov_b32 s84, {STAT}\ns_mov_b32 s85, {STAT+4096}")
    def inverse(self, p):
        e = p.e
        S2, M2, SF, MF = 24, 40, 56, 88
        for q in range(4):
            e(f"buffer_load_dwordx4 {v(S2+4*q,4)}, v{4+q}, {SWS}, s84 offen sc1", "u")
            e(f"buffer_load_dwordx4 {v(M2+4*q,4)}, v{4+q}, {SWS}, s85 offen sc1", "u")
        e(f"s_setprio {self.o['iprio']}")
        p.wvm("u")
        self.unpack(p, S2, SF, 16); self.unpack(p, M2, MF, 16)
        for q in range(4):
            self.spin(p, Y_U + q, 4, 22, sleep=(2 if q < 3 else 1))
            for c in range(3): e(f"ds_read_b128 {v(24+4*c,4)}, v{4+q} offset:{REG0 + c*REGSZ + UO + 512}", f"ur{q}{c}")
            for c in range(3):
                p.wlg(f"ur{q}{c}")
                self.unpack(p, 24 + 4 * c, 40, 4)
                for i in range(8): e(f"v_fma_f32 v{40+i}, v{40+i}, v{SF+8*q+i}, v{MF+8*q+i}")
                o = 48 + 4 * (c & 1)
                for i in range(4): e(f"v_cvt_pk_bf16_f32 v{o+i}, v{40+2*i}, v{41+2*i}")
                e(f"ds_write_b128 v{4+q}, {v(o,4)} offset:{REG0 + c*REGSZ + UO + 512}", "uw")
        self.sig(p, Y_UR, 20)
        e("s_setprio 3")
    def conv(self, p):
        e = p.e
        YO, ACC, DT_, PKD = 17, 64, 116, 124
        slots = [24 + 4 * i for i in range(10)] + [96 + 4 * i for i in range(5)]
        slots = slots[:self.o["cns"]]; NS = len(slots)
        R = lambda n: v(slots[n % NS], 4)
        F = []
        for ph in range(8):
            for d in range(8):
                l = [(d + mu, 4 * (8 * mu + ph)) for mu in range(2) if d + mu <= 7]
                if ph == 0 and d <= 5: l.append((d + 2, 64))
                if ph == 0 and d <= 3: l.append((d + 4, 68))
                F.append((f"v16 offset:{512*d + (7-ph)*64}", l))
        S = []
        for st in range(4):
            S.append(([f"v16 offset:{16*(27 + 32*st)}", f"v16 offset:{16*(28 + 32*st)}"], 120, [(I, 96 + 4 * (st - I + 7)) for I in range(4, 8) if st <= I - 4]))
        for st in range(12):
            S.append(([f"v12 offset:{256*st}"], 112, [(I, 72 + 4 * (st - 2 * I + 8)) for I in range(2, 8) if 2 * I - 8 <= st <= 2 * I - 3]))
        loads = []; steps = []
        def ld(addr): loads.append(addr); return len(loads) - 1
        for i, (ad, box, l) in enumerate(S):
            ids = [ld(x) for x in ad]
            steps.append(("box", ids, box))
            for k in range(3): steps.append(("F", [ld(F[4*i+k][0])], F[4*i+k][1]))
            steps.append(("cvt", [], None))
            steps.append(("F", [ld(F[4*i+3][0])], F[4*i+3][1]))
            steps.append(("S", [], l))
        first = set(); nl = [0]
        def issue(upto):
            while nl[0] < min(upto, len(loads)):
                e(f"ds_read_b128 {R(nl[0])}, {loads[nl[0]]}", f"cj{nl[0]}"); nl[0] += 1
        def mm(I, A, B):
            acc = v(ACC + 4 * I, 4); src = acc if I in first else "0"; first.add(I)
            e(f"v_mfma_f32_16x16x32_bf16 {acc}, {A}, {B}, {src}")
        if self.o.get("dly_c"): e(f"s_sleep {self.o['dly_c']}")
        issue(NS)
        if self.o["cwait"]: self.spin(p, Y_EPI, self.o["cwait"], 22, sleep=1)
        e(f"s_setprio {self.o['cprio0']}")
        self.stamp(p)
        for si, (kind, ids, arg) in enumerate(steps):
            if si == self.o["cswitch"]: e(f"s_setprio {self.o['cprio']}")
            if ids: p.wlg(f"cj{ids[-1]}")
            if kind == "box":
                e(f"v_mfma_f32_16x16x32_bf16 {v(DT_,4)}, {R(ids[0])}, {a(arg,4)}, 0")
                issue(ids[0] + NS)
                e(f"v_mfma_f32_16x16x32_bf16 {v(DT_+4,4)}, {R(ids[-1])}, {a(arg+4,4)}, 0")
            elif kind == "F":
                for i, (I, kf) in enumerate(arg):
                    mm(I, a(kf, 4), R(ids[0]))
                    if i == 0: issue(ids[0] + NS)
            elif kind == "cvt":
                for i in range(4): e(f"v_cvt_pk_bf16_f32 v{PKD+i}, v{DT_+2*i}, v{DT_+2*i+1}")
            else:
                for I, kf in arg: mm(I, v(PKD, 4), a(kf, 4))
        for k in range(4):
            o = 24 + 4 * k
            for i in range(4): e(f"v_cvt_pk_bf16_f32 v{o+i}, v{ACC+8*k+2*i}, v{ACC+8*k+2*i+1}")
            e(f"v_permlane16_swap_b32 v{o}, v{o+2}\nv_permlane16_swap_b32 v{o+1}, v{o+3}")
            e(f"buffer_store_dwordx4 {v(o,4)}, v{YO}, {SWS}, s86 offen offset:{1024*k} sc1", "ys")
        self.stamp(p)
        e("s_waitcnt vmcnt(0)")
        e(f"v_mov_b32 v20, 1\ns_mov_b64 exec, 1\nds_add_rtn_u32 v20, {VSY}, v20 offset:{4*Y_Y}\ns_mov_b64 exec, -1\ns_waitcnt lgkmcnt(0)\nv_readfirstlane_b32 s79, v20")
        e(f"s_cmp_lg_u32 s79, s88\ns_cbranch_scc1 L_ynl")
        self.flag_store(p, "s89")
        e("L_ynl:")
    def convw(self):
        self.role = "conv"
        p = Prog(); e = p.e
        self.conv_start(p)
        self.stamp(p)
        if not self.o.get("skip_kgen"): self.kgen(p)
        else: self.stamp(p)
        self.stamp(p)
        if self.o.get("dly_k"): e(f"s_sleep {self.o['dly_k']}")
        self.conv_setup(p)
        e("s_setprio 0")
        self.boxes(p)
        self.conv(p)
        self.finish(p)
        return p

    def build(self):
        p = Prog(); self.prologue(p)
        p.ext(self.main())
        body = finalize(p)
        q = Prog(); q.e("L_aux:")
        q.e(f"s_cmp_eq_u32 {WV}, 7\ns_cbranch_scc1 L_serv"); q.ext(self.convw())
        body += finalize(q)
        q = Prog(); q.e("L_serv:"); q.ext(self.serv()); q.e("L_end:\nL_last:\ns_endpgm")
        body += finalize(q)
        body = body.replace("@", "")
        ref = open("cdna_kernels/" + NAME + ".s.ref").read()
        head = [l for l in ref.split("\n") if l.startswith(";") and "@launch" not in l]
        k = NAME + "_kernel"
        s = "\n".join(head) + f"\n; @launch grid=(256,1,1) block=(512,1,1) lds={LDS_BYTES}\n"
        s += f'.amdgcn_target "amdgcn-amd-amdhsa--gfx950"\n.text\n.globl {k}\n.p2align 8\n.type {k},@function\n{k}:\n'
        s += body
        s += f""".section .rodata,"a"
.p2align 6
.amdhsa_kernel {k}
  .amdhsa_next_free_vgpr 256
  .amdhsa_next_free_sgpr 102
  .amdhsa_accum_offset 128
  .amdhsa_group_segment_fixed_size 0
  .amdhsa_kernarg_size 136
  .amdhsa_user_sgpr_count 2
  .amdhsa_user_sgpr_kernarg_segment_ptr 1
  .amdhsa_system_sgpr_workgroup_id_x 1
.end_amdhsa_kernel
"""
        return s

if __name__ == "__main__":
    out = sys.argv[1]
    kw = eval("dict(" + (sys.argv[2] if len(sys.argv) > 2 else "") + ")")
    open(out, "w").write(G(**kw).build())
```

```python
import sys, struct
from asmlib import Prog, interleave, finalize

NAME = "parallel_sum__ssm_conv_s4__mixer_token_mlp__prompt"
STAT, TM, F2, F3, F1 = 0x4000, 0x8000, 0x50000, 0x58000, 0x60000
HB, GB, YT, WSEND = 0x80000, 0x300000, 0x4E0000, 0x760000
RINGW, RS = 28672, 7
PT = 1344
REG0, REGSZ = 0, 14976
SYNC = 3 * REGSZ
RING0 = 45056
KCO, R0O, R1O, Q2O, Q3O = 32, 1408, 1408 + 1344, 4096, 4672
Z5O, Z3O, Z9O, Z7O, UO = 0, 3104, 6208, 8288, 10368
LNT = REG0 + 8704
KP = 272
LDS_BYTES = 163840
assert SYNC + 128 <= RING0 and RING0 + 4 * RINGW <= LDS_BYTES
Y_EPI = 3
Y_Y = 16
Y_UR = 17
Y_LN, Y_F1, Y_PART, Y_PUB, Y_P1, Y_G, Y_P2, Y_F2, Y_P3, Y_F3, Y_TAG, Y_U = 0, 1, 2, 4, 5, 6, 7, 8, 9, 10, 11, 12

def fbits(x): return "0x%08x" % struct.unpack("<I", struct.pack("<f", x))[0]
def bf16r(l):
    u = struct.unpack("<I", struct.pack("<f", float(l)))[0]
    u = ((u + 0x7FFF + ((u >> 16) & 1)) >> 16) << 16
    return int(struct.unpack("<f", struct.pack("<I", u))[0])
def ci(l):
    v = bf16r(l)
    if v <= 256: return v
    if v <= 512: return 256 + (v - 256) // 2
    if v <= 1024: return 384 + (v - 512) // 4
    return 512 + (v - 1024) // 8

WG, WV, XCD, IDX, DT, FT, DT2, ST2, TAG, ROT1, ROT2, CH = "s2", "s3", "s4", "s5", "s6", "s7", "s8", "s9", "s10", "s11", "s12", "s13"
SUB, C0, NCH = "s97", "s98", "s99"
SX, SW1, SW2, SOUT, SWS = "s[52:55]", "s[56:59]", "s[60:63]", "s[64:67]", "s[68:71]"
RINGB, REGB = "s73", "s77"
VSY, LANE, L16, L4, VTAG, VZ, VDBG = "v0", "v1", "v2", "v3", "v9", "v10", "v11"

def v(i, n=1): return f"v{i}" if n == 1 else f"v[{i}:{i+n-1}]"
def a(i, n=1): return f"a{i}" if n == 1 else f"a[{i}:{i+n-1}]"

def groups_of(prog):
    groups = []
    for it in prog.items:
        prev = groups[-1][-1][0] if groups else None
        if isinstance(prev, str) and (prev.startswith(("s_add_u32 m0", "s_cmp", "s_sub_u32 s51", "s_mov_b64 exec, s", "s_mov_b64 exec, 1", "ds_write_b128 v125", "ds_add"))):
            groups[-1].append(it)
        else: groups.append([it])
    return groups

def make_perm(n, nw, first, duty0, per=1):
    own = list(range(0, n, 2)); oth = list(range(1, n, 2))
    order = [[] for _ in range(nw)]; touched = {}
    pool = own[:]
    for pos in range(first):
        for j in range(nw):
            pass
    deal = [[] for _ in range(nw)]
    k = 0
    for pos in range(first):
        for j in range(nw):
            if pool: st = pool.pop(0)
            else: st = oth.pop(0)
            deal[j].append(st); touched[st] = pos
    rest = pool + oth
    duty = {}
    for i, st in enumerate(rest): duty[(duty0 + i // per, i % nw)] = st
    for j in range(nw): order[j] = list(deal[j])
    for pos in range(first, n):
        for j in range(nw):
            if (pos, j) in duty: touched[duty[(pos, j)]] = pos
        for j in range(nw):
            if (pos, j) in duty: order[j].append(duty[(pos, j)]); continue
            mine = {st for (pp, jj), st in duty.items() if jj == j and pp > pos}
            cand = [st for st in range(n) if st not in order[j] and st not in mine]
            cand.sort(key=lambda st: (touched.get(st, 99), (st - 2 * j) % n))
            order[j].append(cand[0])
    for o in order: assert sorted(o) == list(range(n)), o
    return order
def pack_perm(o):
    x = sum(st << (4 * i) for i, st in enumerate(o)); return x & 0xffffffff, x >> 32

class G:
    def __init__(self, debug=False, **kw):
        self.debug = debug
        self.o = dict(P1=6, D1=13, PS1=11, lead1=4, xk=-1, epifirst=1, sp3=0, first1=1, dpp=3, P2=4, D2=11, PS2=9, lead2=4, wflag="", xflag="", nsp=30, thr=4,
                      ytrig=5, ychk=10, pk=1, psleep=4, psleep2=8, kprio=0, mprio=2, ebpos=0, kpause=0, kword=Y_F1, tch=0, cprio=3, ipf=2, ns1=12, ns2=15, perm=1, duty1=1, duty2=3, oflag='', eb=2, pfirst=1, free1=1, pre1=1, cns=15, sg1=0, sg2=0, epk=1, cprio0=0, cswitch=40, iprio=0, ow4=1, slow=1, ebk=99, nthr=6, pflag='nt', cwait=4)
        self.o.update(kw)
        self.nst = {}; self.nlab = 0; self.role = None
    def stamp(self, p):
        if not self.debug: return
        n = self.nst.get(self.role, 0)
        if n == 0: p.e(f"v_writelane_b32 {VDBG}, s100, 28")
        p.e(("s_memtime" if self.o.get("cyc") else "s_memrealtime") + " s[82:83]\ns_waitcnt lgkmcnt(0)")
        p.e(f"v_writelane_b32 {VDBG}, s82, {n}")
        self.nst[self.role] = n + 1
    def pre(self, p):
        if self.debug and self.o.get("prest"): p.e(f"s_memrealtime s[82:83]\ns_waitcnt lgkmcnt(0)\nv_writelane_b32 {VDBG}, s82, 27")
    def label(self, s):
        self.nlab += 1; return f"L{s}_{self.nlab}"
    def flag_store(self, p, soff, pre=""):
        p.e(f"s_mov_b64 exec, 1\n{pre}buffer_store_dword {VTAG}, {VZ}, {SWS}, {soff} offen sc1\ns_mov_b64 exec, -1")
    def poll(self, p, voff, soff, tmp, wide=False, sleep=0):
        l = self.label("poll"); d = self.label("polld"); f = self.label("pollf")
        p.e("s_mov_b32 s78, 0")
        if sleep: p.e(f"s_branch {f}")
        p.e(f"{l}:")
        if sleep: p.e(f"s_sleep {sleep}\n{f}:")
        if wide:
            p.e(f"buffer_load_dwordx4 {v(tmp,4)}, {voff}, {SWS}, {soff} offen sc1")
            p.e("s_add_u32 s78, s78, 1\ns_waitcnt vmcnt(0)")
            for i in range(4): p.e(f"v_xor_b32 {v(tmp+i)}, {TAG}, {v(tmp+i)}")
            p.e(f"v_or3_b32 {v(tmp)}, {v(tmp)}, {v(tmp+1)}, {v(tmp+2)}\nv_or_b32 {v(tmp)}, {v(tmp)}, {v(tmp+3)}")
            p.e(f"v_cmp_ne_u32 vcc, 0, {v(tmp)}")
        else:
            p.e(f"buffer_load_dword {v(tmp)}, {voff}, {SWS}, {soff} offen sc1")
            p.e("s_add_u32 s78, s78, 1\ns_waitcnt vmcnt(0)")
            p.e(f"v_cmp_ne_u32 vcc, {TAG}, {v(tmp)}")
        p.e(f"s_cmp_gt_u32 s78, 0x8000\ns_cbranch_scc1 {d}\ns_cbranch_vccz {d}\ns_mov_b64 exec, vcc\ns_branch {l}")
        p.e(f"{d}:\ns_mov_b64 exec, -1")
    def sig(self, p, word, tmp):
        p.e(f"v_mov_b32 v{tmp}, 1\ns_mov_b64 exec, 1\nds_add_u32 {VSY}, v{tmp} offset:{4*word}\ns_mov_b64 exec, -1", "sig")
    def spin(self, p, word, n, tmp, sleep=0):
        l = self.label("spin"); d = self.label("spind"); f = self.label("spinf")
        p.e("s_mov_b32 s78, 0")
        if sleep: p.e(f"s_branch {f}")
        p.e(f"{l}:")
        if sleep: p.e(f"s_sleep {sleep}\n{f}:")
        p.e(f"ds_read_b32 v{tmp}, {VSY} offset:{4*word}\ns_add_u32 s78, s78, 1\ns_waitcnt lgkmcnt(0)\nv_readfirstlane_b32 s79, v{tmp}")
        p.e(f"s_cmp_gt_u32 s78, 0x40000\ns_cbranch_scc1 {d}\ns_cmp_lt_u32 s79, {n}\ns_cbranch_scc1 {l}")
        p.e(f"{d}:")
    def mktag(self, p):
        p.e(f"s_mul_i32 {TAG}, {TAG}, 0x9E3779B1\ns_add_u32 {TAG}, {TAG}, 0x7F4A7C15\nv_mov_b32 {VTAG}, {TAG}")
    def finish(self, p):
        e = p.e
        if self.debug:
            e("s_waitcnt vmcnt(0)")
            self.stamp(p)
            e(f"s_lshl_b32 s50, {WG}, 3\ns_add_u32 s50, s50, {WV}\ns_lshl_b32 s50, s50, 7\ns_add_u32 s50, s50, {TM}")
            e(f"s_mov_b32 exec_hi, 0\nbuffer_store_dword {VDBG}, {L4}, {SWS}, s50 offen")
        e("s_endpgm")
    def srd(self, p, d, lo, size): p.e(f"s_mov_b32 s{d}, s{lo}\ns_mov_b32 s{d+1}, s{lo+1}\ns_mov_b32 s{d+2}, {size}\ns_mov_b32 s{d+3}, 0x20000")
    def unpack(self, p, src, dst, n):
        for i in range(n):
            p.e(f"v_lshlrev_b32 v{dst+2*i}, 16, v{src+i}\nv_and_b32 v{dst+2*i+1}, 0xffff0000, v{src+i}")
    def rbf(self, p, r):
        p.e(f"v_cvt_pk_bf16_f32 v{r}, v{r}, v{r}\nv_lshlrev_b32 v{r}, 16, v{r}")

    def prologue(self, p):
        e = p.e; RAW = self.RAW; o = self.o
        if self.debug: e("s_memrealtime s[100:101]")
        e(f"s_cmp_ge_u32 {WG}, 256\ns_cbranch_scc1 L_end0")
        e("s_load_dwordx16 s[16:31], s[0:1], 0\ns_load_dwordx16 s[32:47], s[0:1], 64\ns_load_dwordx2 s[48:49], s[0:1], 128")
        e(f"v_and_b32 {LANE}, 63, v0\nv_lshrrev_b32 v12, 6, v0\nv_readfirstlane_b32 {WV}, v12")
        e(f"v_lshlrev_b32 {L4}, 2, {LANE}\nv_mov_b32 {VZ}, 0\nv_mov_b32 {VSY}, {SYNC}")
        e(f"s_cmp_lg_u32 {WV}, 7\ns_cbranch_scc1 L_p1")
        if o["ipf"]:
            e(f"s_getpc_b64 s[90:91]\nL_pc:\ns_bfe_u32 s51, {WG}, {(o['ipf'] << 16) | 3:#x}\ns_lshl_b32 s51, s51, 13")
            e(f"v_lshl_add_u32 v112, {LANE}, 7, s51\nv_min_u32 v112, L_last-L_pc, v112")
            e("v_mov_b32 v113, s91\nv_add_co_u32 v112, vcc, s90, v112\nv_addc_co_u32 v113, vcc, 0, v113, vcc")
            e("@global_load_dword v114, v[112:113], off")
        e(f"s_mov_b32 exec_hi, 0\nds_write_b32 {L4}, {VZ} offset:{SYNC}\ns_mov_b64 exec, -1")
        e(f"s_waitcnt lgkmcnt(0)\n@s_load_dword {TAG}, s[48:49], 0\ns_branch L_p3")
        e("L_end0:\ns_endpgm\nL_p1:")
        e(f"s_cmp_ge_u32 {WV}, 4\ns_cbranch_scc1 L_p2")
        e(f"v_lshrrev_b32 v120, 5, {LANE}\nv_mul_u32_u24 v121, 1280, v120\nv_and_b32 v122, 31, {LANE}")
        e("v_lshl_add_u32 v123, v122, 4, v121\nv_lshl_add_u32 v124, v122, 3, v121")
        e(f"s_lshl_b32 s50, {WG}, 3\ns_lshl1_add_u32 s50, {WV}, s50\ns_mul_i32 s50, s50, 1280")
        e("s_mov_b32 s54, 2621440\ns_mov_b32 s55, 0x20000\ns_waitcnt lgkmcnt(0)\ns_mov_b32 s52, s16\ns_mov_b32 s53, s17")
        xf = o["xflag"]
        e(f"buffer_load_dwordx4 v[20:23], v123, {SX}, s50 offen {xf}", "x")
        e(f"buffer_load_dwordx4 v[24:27], v123, {SX}, s50 offen offset:512 {xf}", "x")
        e(f"buffer_load_dwordx2 v[28:29], v124, {SX}, s50 offen offset:1024 {xf}", "x")
        e("s_branch L_p3")
        e("L_p2:")
        self.tiles(p)
        e(f"s_sub_u32 s14, {WV}, 4\ns_cmp_ge_u32 s14, {NCH}\ns_cbranch_scc1 L_end0")
        e(f"s_lshl_b32 {CH}, {DT}, 6\ns_lshl4_add_u32 {CH}, {SUB}, {CH}\ns_add_u32 {CH}, {CH}, {C0}\ns_add_u32 {CH}, {CH}, s14")
        e(f"s_mul_i32 s51, {CH}, 384\nv_add_u32 v110, s51, {L4}\nv_lshl_add_u32 v111, {LANE}, 1, s51")
        e(f"s_lshr_b32 s79, {CH}, 1\ns_lshl_b32 s79, s79, 2")
        e("s_waitcnt lgkmcnt(0)")
        for i in range(6):
            e(f"@global_load_dword v{RAW[2*i]}, v110, s[{18+2*i}:{19+2*i}] {o['pflag']}")
            e(f"@global_load_ushort v{RAW[2*i+1]}, v111, s[{18+2*i}:{19+2*i}] offset:256 {o['pflag']}")
        e(f"@s_load_dword s80, s[30:31], s79\n@s_load_dword s81, s[32:33], s79")
        e("L_p3:\ns_barrier")
        e(f"v_lshlrev_b32 {L16}, 4, {LANE}\nv_mov_b32 {VDBG}, 0")
        self.tiles(p)
        self.srd(p, 68, 48, WSEND)
        if o["perm"]: P1_ = make_perm(16, 5, o["first1"], o["duty1"], o["dpp"])
        else: P1_ = [[(((2 * j * 205) >> 7) + i) % 16 for i in range(16)] for j in range(5)]
        for j, o_ in enumerate(P1_):
            lo, hi = pack_perm(o_)
            if j == 0: e(f"s_mov_b32 s74, {lo:#x}\ns_mov_b32 s75, {hi:#x}")
            else: e(f"s_cmp_eq_u32 s11, {j}\ns_cselect_b32 s74, {lo:#x}, s74\ns_cselect_b32 s75, {hi:#x}, s75")
        e("s_mul_i32 s51, s12, 0x11111111\ns_xor_b32 s74, s74, s51\ns_xor_b32 s75, s75, s51")
        e(f"s_and_b32 {DT2}, {IDX}, 3\ns_lshr_b32 {ST2}, {IDX}, 2\ns_lshl2_add_u32 {DT2}, s12, {DT2}\ns_lshl3_add_u32 {ST2}, {SUB}, {ST2}")
        e(f"s_cmp_ge_u32 {WV}, 4\ns_cbranch_scc1 L_aux")
    def tiles(self, p):
        e = p.e
        e(f"s_and_b32 {XCD}, {WG}, 7\ns_lshr_b32 {IDX}, {WG}, 3\ns_lshr_b32 {SUB}, {XCD}, 1\ns_and_b32 s12, {XCD}, 1")
        e(f"s_min_u32 s15, {IDX}, 29\ns_mul_i32 {FT}, s15, 52\ns_lshr_b32 {FT}, {FT}, 8")
        e(f"s_mul_i32 s51, {FT}, 5\ns_sub_u32 s11, s15, s51")
        e(f"s_mul_i32 {C0}, {FT}, 3\ns_min_u32 {C0}, {C0}, 14\ns_cmp_lt_u32 {FT}, 4\ns_cselect_b32 {NCH}, 3, 2\ns_cmp_ge_u32 {IDX}, 30\ns_cselect_b32 {NCH}, 0, {NCH}")
        e(f"s_mul_i32 s51, s12, 5\ns_add_u32 {DT}, s11, s51\ns_mul_i32 s51, {SUB}, 6\ns_add_u32 {FT}, {FT}, s51")

    def kk(self, p, g, ks, dst, stride, base):
        p.e(f"s_bfe_u32 {dst}, s{(74 if g == 1 else 80) + ks // 8}, {(4 << 16) | (4 * (ks % 8)):#x}")
        p.e(f"s_mul_i32 {dst}, {dst}, {stride}")
        if base: p.e(f"s_add_u32 {dst}, {dst}, {base}")
    def slot(self, g, ks): return ((ks + (3 if g == 2 else 0)) % RS) * 4096
    def throttle(self, p):
        l = self.label("thr")
        p.e(f"s_cmp_lg_u32 s85, 0\ns_cbranch_scc1 {l}")
        p.e(f"@ds_read_b32 v20, {VSY} offset:{4*Y_PUB}\n@s_waitcnt vmcnt({self.o['thr']}) lgkmcnt(0)\nv_readfirstlane_b32 s85, v20\ns_nop 0\ns_lshr_b32 s85, s85, 1")
        p.e(f"{l}:")
    def dma(self, g, ks, thr=False):
        p = Prog()
        rs, vo, srd, base = (3072, 4, SW1, "s84") if g == 1 else (4096, 12, SW2, "s92")
        self.kk(p, g, ks, "s72", 32 * rs, base)
        for q in range(4):
            if thr and q % 2 == 0: self.throttle(p)
            p.e(f"s_add_u32 m0, {RINGB}, {self.slot(g, ks) + q * 1024}")
            p.e(f"buffer_load_dwordx4 v{vo + (q & 1)}, {srd}, s72 offen {self.o['wflag']} lds", f"w{g}_{ks}")
            if q < 3: p.e(f"s_add_u32 s72, s72, {8*rs}")
        return p
    NB = {1: 6, 2: 4}
    def tr(self, g, ks):
        p = Prog()
        r = 16 * (ks % self.NB[g]); o = self.slot(g, ks)
        p.wvm(f"w{g}_{ks}")
        for ss in range(4):
            p.e(f"ds_read_b64_tr_b16 {a(r+4*ss,2)}, v{14+ss} offset:{o}", f"t{g}_{ks}")
            p.e(f"ds_read_b64_tr_b16 {a(r+4*ss+2,2)}, v{14+ss} offset:{o+512}", f"t{g}_{ks}")
        return p
    def main_start(self, p):
        e = p.e
        e("s_setprio 3")
        e(f"s_mul_i32 {RINGB}, {WV}, {RINGW}\ns_add_u32 {RINGB}, {RINGB}, {RING0}\ns_mov_b32 s85, 0")
        e(f"v_lshrrev_b32 v30, 3, {LANE}\nv_and_b32 v31, 7, {LANE}\nv_and_b32 v32, 2, v30\nv_xor_b32 v31, v31, v32\nv_lshlrev_b32 v31, 4, v31")
        e("v_mul_u32_u24 v4, 3072, v30\nv_add_u32 v4, v4, v31\nv_xor_b32 v5, 64, v4\nv_lshl_add_u32 v12, v30, 12, v31\nv_xor_b32 v13, 64, v12")
        e(f"s_mul_i32 s84, {WV}, {512*3072}\ns_lshl_b32 s51, {FT}, 7\ns_add_u32 s84, s84, s51")
        e(f"s_mul_i32 s92, {WV}, {384*4096}\ns_lshl_b32 s51, {ST2}, 7\ns_add_u32 s92, s92, s51")
        self.srd(p, 56, 36, 6291456); self.srd(p, 60, 40, 6291456); self.srd(p, 64, 44, 2621440)
        self.stamp(p)
    def main_setup2(self, p):
        e = p.e
        e(f"v_bfe_u32 v20, {LANE}, 2, 2\nv_and_b32 v21, 3, {LANE}\nv_lshrrev_b32 v22, 4, {LANE}\nv_and_b32 v23, 15, {LANE}")
        e("v_lshlrev_b32 v24, 10, v22\nv_lshl_add_u32 v24, v20, 7, v24\nv_lshl_add_u32 v24, v21, 3, v24")
        e(f"v_lshrrev_b32 v20, 1, v20\nv_and_b32 v21, 1, v22\nv_lshl_or_b32 v20, v21, 1, v20\nv_xor_b32 v20, {WV}, v20\nv_lshlrev_b32 v20, 5, v20")
        e(f"v_add3_u32 v14, v24, v20, {RINGB}\nv_xor_b32 v15, 32, v14\nv_xor_b32 v16, 64, v14\nv_xor_b32 v17, 0x60, v14")
        e(f"s_lshl_b32 s51, {FT}, 7\ns_lshl_b32 s15, {WV}, 5\ns_add_u32 s51, s51, s15\nv_lshl_add_u32 v24, v22, 3, s51")
        e("global_load_dwordx2 v[126:127], v24, s[38:39]", "b1")
        e(f"v_mul_u32_u24 v19, 10240, v22\nv_lshl_add_u32 v19, v23, 4, v19\ns_lshl_b32 s51, {SUB}, 8\nv_add_u32 v120, s51, v19")
        e("v_xor_b32 v121, 0x100, v120\nv_xor_b32 v122, 0x200, v120\nv_xor_b32 v123, 0x300, v120")
        e(f"v_lshrrev_b32 v24, 1, v22\nv_mul_u32_u24 v24, 10240, v24\nv_lshl_add_u32 v24, v23, 4, v24\nv_xor_b32 v25, {SUB}, v21\nv_lshl_add_u32 v6, v25, 8, v24\nv_xor_b32 v7, 0x200, v6")
        e(f"v_subrev_u32 v124, {C0}, v23\nv_mul_u32_u24 v124, {REGSZ}, v124\nv_lshl_add_u32 v124, v22, 4, v124")
        e(f"s_lshl_b32 s51, {WV}, 10\ns_add_u32 s51, s51, {REG0 + UO + 512}\nv_add_u32 v124, s51, v124")
        e(f"s_bfm_b32 s100, {NCH}, {C0}\ns_lshl_b32 s51, s100, 16\ns_or_b32 s100, s100, s51\ns_mov_b32 s101, s100")
        e("v_mul_u32_u24 v18, 1280, v23\nv_lshl_add_u32 v18, v22, 3, v18\nv_lshlrev_b32 v115, 12, v23\nv_lshl_add_u32 v115, v22, 4, v115")
        e("v_lshl_add_u32 v8, v23, 1, s95")
        e("global_load_ushort v114, v8, s[42:43]", "b1")
        if self.o["perm"]: P2_ = make_perm(12, 4, 2, self.o["duty2"])
        else: P2_ = [[(3 * j + i) % 12 for i in range(12)] for j in range(4)]
        e(f"s_and_b32 s15, {IDX}, 3")
        for j, o_ in enumerate(P2_):
            lo, hi = pack_perm(o_)
            if j == 0: e(f"s_mov_b32 s80, {lo:#x}\ns_mov_b32 s81, {hi:#x}")
            else: e(f"s_cmp_eq_u32 s15, {j}\ns_cselect_b32 s80, {lo:#x}, s80\ns_cselect_b32 s81, {hi:#x}, s81")
        e(f"s_and_b32 s15, {ST2}, {self.o['sg2']}\ns_and_b32 s51, {XCD}, 1\ns_xor_b32 s51, s51, s15\ns_mul_i32 s51, s51, 0x11111111\ns_xor_b32 s80, s80, s51\ns_xor_b32 s81, s81, s51")
        e(f"s_mul_i32 s86, {WV}, {64*10240}\ns_lshl_b32 s51, {DT}, 10\ns_add_u32 s86, s86, s51\ns_add_u32 s86, s86, {HB}")
    def xr(self, j): return [v(104, 4), v(110, 4), v(116, 4)][j]
    def xload(self, p):
        e = p.e
        e(f"s_lshl_b32 s94, {ST2}, 6\ns_lshl_b32 s51, {WV}, 4\ns_add_u32 s94, s94, s51\ns_lshl_b32 s95, s94, 1")
        e(f"s_mul_i32 s94, s94, 1280\ns_mul_i32 s51, {DT2}, 160\ns_add_u32 s94, s94, s51")
        e(f"v_and_b32 v109, 15, {LANE}\nv_mul_u32_u24 v109, 1280, v109\nv_and_b32 v108, 48, {LANE}\nv_add_u32 v108, v108, v109")
        for j in range(3): e(f"buffer_load_dwordx4 {self.xr(j)}, v108, {SX}, s94 offen offset:{64*j}", f"x{j}")
    def xmm(self, p):
        e = p.e; ln_ = self.label("nsw")
        e("v_lshlrev_b32 v114, 16, v114")
        for i in range(20): e(f"v_mov_b32 v{84+i}, v114")
        e(f"v_lshrrev_b32 v22, 4, {LANE}\nv_and_b32 v23, 15, {LANE}")
        e("v_lshlrev_b32 v24, 3, v22\nv_sub_u32 v24, v23, v24\nv_and_b32 v25, 1, v24\nv_lshlrev_b32 v25, 4, v25\nv_mov_b32 v26, 0x3f80\nv_lshlrev_b32 v25, v25, v26\nv_ashrrev_i32 v24, 1, v24")
        for q in range(4): e(f"v_cmp_eq_u32 vcc, {q}, v24\nv_cndmask_b32 v{120+q}, 0, v25, vcc")
        for q in range(4): e(f"v_cmp_eq_i32 vcc, {q-8}, v24\nv_cndmask_b32 v{124+q}, 0, v25, vcc")
        for di in range(5):
            e(f"v_mfma_f32_16x16x32_bf16 {self.acc2(di,0)}, {v(124 if di & 1 else 120, 4)}, {self.xr(di//2)}, {self.acc2(di,0)}")
        e(f"s_and_b32 s51, {WV}, 1\ns_cmp_eq_u32 s51, 0\ns_cbranch_scc1 {ln_}")
        for q in range(4): e(f"v_swap_b32 v{120+q}, v{124+q}")
        e(f"{ln_}:")
    def acc1(self, t, ds): return [v(72 + 4 * ds, 4), v(88 + 4 * ds, 4), a(96 + 4 * ds, 4), a(112 + 4 * ds, 4)][t]
    def acc2(self, di, ss): return v(84 + 4 * di, 4) if ss == 0 else a(68 + 4 * (di * 3 + ss - 1), 4)

    def gemm_loop(self, p, g, nks, nf, ns, nd, nt, ld, mfma, extra):
        NB = self.NB[g]; n = nks * nf
        for i in range(ns): p.ext(ld(i))
        nl = ns
        G_ = 4 * nf
        for ks in range(nks):
            side = Prog()
            if nd < nks and nd - RS < nt:
                if nd >= RS: side.wlg(f"t{g}_{nd-RS}")
                side.ext(self.dma(g, nd)); nd += 1
            if nt < nks and nt < nd and nt - NB < ks:
                side.ext(self.tr(g, nt)); nt += 1
            early, pre, post = extra(ks)
            gaps = [[] for _ in range(G_)]
            cost = [0] * G_
            def c_of(grp):
                c = 0
                for it, _ in grp:
                    if isinstance(it, tuple): c += 1
                    elif it.startswith(("buffer_", "global_")): c += 3
                    else: c += 1
                return c
            for di in range(1, nf): cost[4 * di - 1] += 1
            cost[G_ - 1] += 2
            for di in range(nf):
                if nf * ks + di >= 1 and nl < n:
                    its = ld(nl).items; nl += 1
                    gi = 4 * di
                    gaps[gi].append(("z", its[-1:])); cost[gi] += 3
                    for k, it in enumerate(its[:-1]):
                        gj = gi - (len(its) - 1 - k)
                        assert gj >= 0
                        gaps[gj].append(("y", [it])); cost[gj] += 1
            pos = 0
            for grp in groups_of(early):
                gi = min(3, 1 + pos); pos += 1
                gaps[gi].append(("a", grp)); cost[gi] += c_of(grp)
            rest = groups_of(pre) + groups_of(side)
            start = 4 if early.items else 1
            tot = sum(c_of(x) for x in rest) + sum(cost[start:])
            gi = start
            for grp in rest:
                lvl = max(2.0, tot / (G_ - start))
                while gi < G_ - 1 and cost[gi] + c_of(grp) > lvl + 0.5 and cost[gi] > 0: gi += 1
                gaps[gi].append(("m", grp)); cost[gi] += c_of(grp)
            p.wlg(f"t{g}_{ks}")
            for di in range(nf):
                p.wvm(f"act{ks}_{di}")
                for ss in range(4):
                    p.e(mfma(ks, di, ss))
                    for key, grp in sorted(gaps[4 * di + ss], key=lambda x: x[0]): p.items.extend(grp)
            p.ext(post)
        assert nl == n and nd == nks and nt == nks

    def gemm1(self, p):
        e = p.e; o = self.o
        HR, ns = 24, o['ns1']
        nd = o['free1']
        def more():
            nonlocal nd
            if nd >= RS: p.wlg(f"t1_{nd-RS}")
            p.ext(self.dma(1, nd, thr=nd < o['nthr'])); nd += 1
            if nd == o["PS1"]: self.sig(p, Y_P1, 20)
            if o.get("fine") and nd <= 9: self.stamp(p)
        while nd < o["lead1"]: more()
        p.wvm("b1")
        for ds in range(4): self.unpack(p, 126, 72 + 4 * ds, 2)
        for j in range(o["P1"]):
            p.ext(self.tr(1, j))
            if j == 2 and not o.get('fine'): self.stamp(p)
            if nd < o["D1"]: more()
        while nd < o["D1"]:
            p.wvm(f"w1_{nd-o['lead1']}"); more()
        self.stamp(p)
        self.spin(p, Y_F1, 1, 20, sleep=1)
        e(f"ds_read_b32 {VTAG}, {VSY} offset:{4*Y_TAG}\ns_setprio 2", "tag")
        self.stamp(p)
        def ld(i):
            ks, ds = divmod(i, 4); q = Prog()
            if ds == 0: self.kk(q, 1, ks, "s76", 40960, "s86")
            q.e(f"buffer_load_dwordx4 {v(HR + 4 * (i % ns), 4)}, v{120+ds}, {SWS}, s76 offen sc1", f"act{ks}_{ds}")
            return q
        def mfma(ks, ds, t):
            c = self.acc1(t, ds); src = "0" if (ks == 0 and t > 0) else c
            return f"v_mfma_f32_16x16x32_bf16 {c}, {a(16*(ks%6)+4*t,4)}, {v(HR + 4 * ((4*ks+ds) % ns), 4)}, {src}"
        def extra(ks):
            pre = Prog(); post = Prog(); q = Prog()
            q.e(f"s_bfe_u32 s14, s{74 + ks // 8}, {(4 << 16) | (4 * (ks % 8)):#x}\nv_lshl_add_u32 v125, s14, 6, v124")
            q.e(f"s_mov_b64 exec, s[100:101]\nds_write_b128 v125, {v(HR + 4 * ((4 * ks) % ns), 4)}\ns_mov_b64 exec, -1", "uc")
            if ks % 4 == 3: self.sig(pre, Y_U + ks // 4, 20)
            if ks in (0, 5, 10): self.stamp(post)
            return q, pre, post
        self.gemm_loop(p, 1, 16, 4, ns, nd, o["P1"], ld, mfma, extra)
        self.stamp(p)
    def gemm1_epi(self, p):
        e = p.e; RD = 24
        if self.o["ebpos"] == 0:
            for ks in range(self.o["eb"]): p.ext(self.dma(2, ks))
        e(f"v_add_u32 v20, {RINGB}, {L16}")
        for t in range(1, 4):
            for ds in range(4): e(f"ds_write_b128 v20, {self.acc1(t, ds)} offset:{(t-1)*4096+ds*1024}", "r1w")
        self.sig(p, Y_PART, 21)
        if self.o["ebpos"] == 1:
            for ks in range(self.o["eb"]): p.ext(self.dma(2, ks))
        for t in range(1, 4):
            e(f"s_xor_b32 s51, {WV}, {t}\ns_mul_i32 s51, s51, {RINGW}\ns_add_u32 s51, s51, {RING0 + (t-1)*4096}\nv_add_u32 v{20+t}, s51, {L16}")
        e(f"s_lshl_b32 s50, {FT}, 3\ns_lshl_b32 s51, {WV}, 1\ns_add_u32 s50, s50, s51\ns_mul_i32 s50, s50, 10240")
        e(f"s_lshl_b32 s51, {DT}, 10\ns_add_u32 s50, s50, s51\ns_add_u32 s86, s50, {GB}")
        e(f"s_mul_i32 s89, {DT}, 24\ns_add_u32 s89, s89, {FT}\ns_lshl_b32 s89, s89, 7\ns_add_u32 s89, s89, {F2}")
        c1 = -2 * 0.7978845608028654 * 1.4426950408889634; c3 = c1 * 0.044715
        e(f"s_mov_b32 s90, {fbits(c3)}\nv_mov_b32 v126, {fbits(c1)}")
        if self.o.get("fine2"): self.stamp(p)
        self.spin(p, Y_PART, 4, 20)
        if self.o.get("fine2"): self.stamp(p)
        for q in range(4):
            for t in range(3): e(f"ds_read_b128 {v(RD+16*t+4*q,4)}, v{21+t} offset:{q*1024}", f"r1r{q}")
        if self.o["ebpos"] == 2:
            for ks in range(self.o["eb"]): p.ext(self.dma(2, ks))
        for pr in range(2):
            p.wlg(f"r1r{2*pr+1}")
            q = [(72 + 8 * pr + i, RD + 8 * pr + i, 88 + 8 * pr + i) for i in range(8)]
            if self.o["epk"]:
                q2 = q[::2]
                for x, r, t in q2: e(f"v_pk_add_f32 {v(x,2)}, {v(x,2)}, {v(r,2)}\nv_pk_add_f32 {v(r+16,2)}, {v(r+16,2)}, {v(r+32,2)}")
                for x, r, t in q2: e(f"v_pk_add_f32 {v(x,2)}, {v(x,2)}, {v(r+16,2)}")
                for x, r, t in q2: e(f"v_pk_mul_f32 {v(t,2)}, {v(x,2)}, {v(x,2)}")
                for x, r, t in q2: e(f"v_pk_fma_f32 {v(t,2)}, {v(t,2)}, s[90:91], v[126:127] op_sel_hi:[1,0,0]")
                for x, r, t in q2: e(f"v_pk_mul_f32 {v(t,2)}, {v(t,2)}, {v(x,2)}")
                for x, r, t in q: e(f"v_exp_f32 v{t}, v{t}")
                for x, r, t in q2: e(f"v_pk_add_f32 {v(t,2)}, {v(t,2)}, 1.0 op_sel_hi:[1,0]")
                for x, r, t in q: e(f"v_rcp_f32 v{t}, v{t}")
                for x, r, t in q2: e(f"v_pk_mul_f32 {v(t,2)}, {v(t,2)}, {v(x,2)}")
            else:
                for x, r, t in q: e(f"v_add_f32 v{x}, v{x}, v{r}\nv_add_f32 v{r+16}, v{r+16}, v{r+32}")
                for x, r, t in q: e(f"v_add_f32 v{x}, v{x}, v{r+16}")
                for x, r, t in q: e(f"v_mul_f32 v{t}, v{x}, v{x}")
                for x, r, t in q: e(f"v_fma_f32 v{t}, v{t}, s90, v126")
                for x, r, t in q: e(f"v_mul_f32 v{t}, v{t}, v{x}")
                for x, r, t in q: e(f"v_exp_f32 v{t}, v{t}")
                for x, r, t in q: e(f"v_add_f32 v{t}, 1.0, v{t}")
                for x, r, t in q: e(f"v_rcp_f32 v{t}, v{t}")
                for x, r, t in q: e(f"v_mul_f32 v{t}, v{t}, v{x}")
            o = 56 + 8 * pr
            for i in range(4): e(f"v_cvt_pk_bf16_f32 v{o+i}, v{q[2*i][2]}, v{q[2*i+1][2]}")
            e(f"v_permlane16_swap_b32 v{o}, v{o+2}\nv_permlane16_swap_b32 v{o+1}, v{o+3}")
            e(f"buffer_store_dwordx4 {v(o,4)}, v{6+pr}, {SWS}, s86 offen sc1", "gs")
        if self.o["epifirst"]: self.sig(p, Y_EPI, 20)
        self.stamp(p)
        self.xmm(p)
        if not self.o["epifirst"]: self.sig(p, Y_EPI, 20)
        for ks in range(min(self.o["eb"], self.o["P2"])): p.ext(self.tr(2, ks))
        e("s_waitcnt vmcnt(0)")
        l = self.label("nolast")
        e(f"v_mov_b32 v20, 1\ns_mov_b64 exec, 1\nds_add_rtn_u32 v20, {VSY}, v20 offset:{4*Y_G}\ns_mov_b64 exec, -1\ns_waitcnt lgkmcnt(0)\nv_readfirstlane_b32 s79, v20")
        e(f"s_cmp_lg_u32 s79, 3\ns_cbranch_scc1 {l}")
        self.flag_store(p, "s89", "@")
        e(f"{l}:")
        self.stamp(p)
    def gemm2(self, p, spare):
        e = p.e; o = self.o
        GR, ns = 24, o['ns2']
        e(f"s_mul_i32 s86, {WV}, {48*10240}\ns_mul_i32 s51, {DT2}, 1280\ns_add_u32 s86, s86, s51\ns_add_u32 s86, s86, {GB}")
        e(f"s_mul_i32 s88, {DT2}, {80*4096}\ns_and_b32 s51, s95, 0xffffffc0\ns_add_u32 s88, s88, s51\ns_add_u32 s88, s88, {YT}")
        e(f"v_and_b32 v116, 15, {LANE}\nv_mul_u32_u24 v116, 1280, v116\nv_and_b32 v117, 16, {LANE}\nv_lshl_add_u32 v116, v117, 1, v116\nv_lshrrev_b32 v117, 5, {LANE}\nv_lshl_add_u32 v116, v117, 4, v116")
        e(f"s_and_b32 s51, {WV}, 1\ns_lshl_b32 s51, s51, 26\nv_add_u32 v109, s51, v115\nv_xor_b32 v115, 0x4000000, v109")
        nd = o["eb"]; nt = min(o["eb"], o["P2"])
        self.spin(p, Y_G, 4, 20)
        def more():
            nonlocal nd
            if nd >= RS: p.wlg(f"t2_{nd-RS}")
            p.ext(self.dma(2, nd)); nd += 1
            if nd == o["PS2"]: self.sig(p, Y_P2, 20)
        while nd < min(o["D2"], nt + o["lead2"]): more()
        while nt < o["P2"]:
            p.ext(self.tr(2, nt)); nt += 1
            if nd < o["D2"]: more()
        while nd < o["D2"]:
            p.wvm(f"w2_{nd-o['lead2']}"); more()
        self.stamp(p)
        self.spin(p, Y_F2, 1, 20, sleep=1)
        self.stamp(p)
        def ld(i):
            ks, di = divmod(i, 5); q = Prog()
            if di == 0: self.kk(q, 2, ks, "s76", 40960, "s86")
            q.e(f"buffer_load_dwordx4 {v(GR + 4 * (i % ns), 4)}, v19, {SWS}, s76 offen offset:{256*di} sc1", f"act{ks}_{di}")
            return q
        def mfma(ks, di, ss):
            c = self.acc2(di, ss); src = "0" if (ks == 0 and ss > 0) else c
            return f"v_mfma_f32_16x16x32_bf16 {c}, {v(GR + 4 * ((5*ks+di) % ns), 4)}, {a(16*(ks%4)+4*ss,4)}, {src}"
        yk = o["ychk"]; assert yk >= 9
        def extra(ks):
            pre = Prog(); post = Prog()
            if ks == o["ytrig"]: self.sig(post, Y_P3, 20)
            if ks == yk:
                self.spin(post, Y_F3, 1, 20, sleep=2)
                for di in range(5):
                    post.e(f"buffer_load_dwordx4 {a(4*di,4)}, v{115 if di & 1 else 109}, {SWS}, s88 offen sc1", f"y{di}")
                    post.e("s_add_u32 s88, s88, 65536")
            if ks in (0, 3, 7): self.stamp(post)
            return Prog(), pre, post
        self.gemm_loop(p, 2, 12, 5, ns, nd, nt, ld, mfma, extra)
        self.stamp(p)
        e(f"v_add_u32 v20, {RINGB}, {L16}")
        for t in (3, 2):
            for di in range(5): e(f"ds_write_b128 v20, {self.acc2(di,t)} offset:{(t-1)*5120+di*1024}", "r2w")
        for t in range(1, 4):
            e(f"s_xor_b32 s51, {WV}, {t}\ns_mul_i32 s51, s51, {RINGW}\ns_add_u32 s51, s51, {RING0 + (t-1)*5120}\nv_add_u32 v{20+t}, s51, {L16}")
        if o.get("fine2"): self.stamp(p)
        for di in range(5):
            p.wvm(f"y{di}")
            e(f"v_mfma_f32_16x16x32_bf16 {self.acc2(di,1)}, {a(4*di,4)}, v[124:127], {self.acc2(di,1)}")
        for di in range(5):
            e(f"v_mfma_f32_16x16x32_bf16 {self.acc2(di,0)}, {a(4*di,4)}, v[120:123], {self.acc2(di,0)}")
        for di in range(5): e(f"ds_write_b128 v20, {self.acc2(di,1)} offset:{di*1024}", "r2w")
        if o.get("fine2"): self.stamp(p)
        e("s_waitcnt lgkmcnt(0)\ns_barrier")
        if o.get("fine2"): self.stamp(p)
        for di in range(5):
            for t in range(3): e(f"ds_read_b128 {v(GR+12*di+4*t,4)}, v{21+t} offset:{di*1024}", f"r2r{di}")
        for di in range(5):
            c = 84 + 4 * di; r = GR + 12 * di
            p.wlg(f"r2r{di}")
            for hq in range(2): e(f"v_pk_add_f32 {v(r+2*hq,2)}, {v(r+2*hq,2)}, {v(r+4+2*hq,2)}\nv_pk_add_f32 {v(c+2*hq,2)}, {v(c+2*hq,2)}, {v(r+8+2*hq,2)}")
            for hq in range(2): e(f"v_pk_add_f32 {v(c+2*hq,2)}, {v(c+2*hq,2)}, {v(r+2*hq,2)}")
            for hq in range(2): e(f"v_cvt_pk_bf16_f32 v{104+2*di+hq}, v{c+2*hq}, v{c+2*hq+1}")
            if o["ow4"] and di < 4:
                if di & 1:
                    b = 104 + 2 * (di - 1)
                    e(f"v_permlane16_swap_b32 v{b}, v{b+2}\nv_permlane16_swap_b32 v{b+1}, v{b+3}")
                    e(f"buffer_store_dwordx4 {v(b,4)}, v116, {SOUT}, s94 offen offset:{32*(di-1)} {o['oflag']}", "os")
            else: e(f"buffer_store_dwordx2 {v(104+2*di,2)}, v18, {SOUT}, s94 offen offset:{32*di} {o['oflag']}", "os")
        self.stamp(p)

    def main(self):
        self.role = "main"
        p = Prog(); e = p.e
        self.main_start(p)
        if self.o["xk"] == -1: self.xload(p)
        for ks in range(self.o["pre1"]): p.ext(self.dma(1, ks))
        if self.o["xk"] == -2: self.xload(p)
        self.ln(p)
        e(f"s_setprio {self.o['mprio']}")
        if self.o.get("dly_w"): e(f"s_sleep {self.o['dly_w']}")
        if self.o["xk"] == 0: self.xload(p)
        for ks in range(self.o["pre1"], self.o["free1"]): p.ext(self.dma(1, ks))
        if self.o["xk"] == 1: self.xload(p)
        self.stamp(p)
        self.main_setup2(p)
        e(f"s_cmp_lt_u32 {IDX}, 30\ns_cbranch_scc1 L_g1")
        q = Prog()
        q.e("s_waitcnt vmcnt(0)")
        self.xmm(q)
        self.spin(q, Y_PUB, 2, 20, sleep=4)
        for ks in range(self.o["eb"]): q.ext(self.dma(2, ks))
        for ks in range(min(self.o["eb"], self.o["P2"])): q.ext(self.tr(2, ks))
        self.sig(q, Y_G, 20)
        q.e("s_waitcnt vmcnt(0) lgkmcnt(0)\ns_branch L_g2")
        for line in finalize(q).split("\n"):
            if line.strip(): e(line.strip() if line.strip().endswith(":") else "@" + line.strip())
        e("L_g1:")
        self.gemm1(p)
        self.gemm1_epi(p)
        e("L_g2:")
        self.gemm2(p, False)
        e(f"s_or_b32 s51, {WG}, {WV}\ns_cmp_lg_u32 s51, 0\ns_cbranch_scc1 L_noep")
        e(f"s_mov_b64 exec, 1\nbuffer_store_dword {VTAG}, {VZ}, {SWS}, 0 offen\ns_mov_b64 exec, -1")
        e("L_noep:")
        if self.o.get("gmin"):
            e(f"global_load_dword v30, {VZ}, s[46:47] sc1\ns_waitcnt vmcnt(0)\nv_readfirstlane_b32 s96, v30\ns_nop 1\ns_not_b32 s96, s96")
        if self.o.get("hold"):
            e(f"L_hold:\ns_memrealtime s[82:83]\ns_waitcnt lgkmcnt(0)\ns_sub_u32 s82, s82, s96\ns_cmp_lt_u32 s82, {self.o['hold']}\ns_cbranch_scc1 L_hold")
        self.finish(p)
        return p

    def red32(self, p, regs, tmp):
        for m in ("quad_perm:[1,0,3,2]", "quad_perm:[2,3,0,1]", "row_half_mirror", "row_mirror"):
            for r in regs: p.e(f"v_add_f32_dpp v{r}, v{r}, v{r} {m} row_mask:0xf bank_mask:0xf")
        for i, r in enumerate(regs): p.e(f"v_mov_b32 v{tmp+i}, v{r}")
        for i, r in enumerate(regs): p.e(f"v_permlane16_swap_b32 v{r}, v{tmp+i}")
        for i, r in enumerate(regs): p.e(f"v_add_f32 v{r}, v{r}, v{tmp+i}")
    RAW = [4, 5, 6, 7, 8, 12, 13, 14, 15, 16, 17, 18]
    def conv_start(self, p):
        e = p.e
        e(f"s_setprio {self.o['kprio']}\ns_mul_i32 {REGB}, s14, {REGSZ}\ns_add_u32 {REGB}, {REGB}, {REG0}")
        e("s_waitcnt lgkmcnt(0)")
    def serv_start(self, p):
        p.e("s_setprio 3")
        self.srd(p, 60, 40, 6291456)
    def ln(self, p):
        e = p.e
        RAW, F, D, T, H = 20, 30, 50, 70, 90
        inv = fbits(1.0 / 640)
        e(f"s_lshr_b32 s51, {WV}, 1\ns_mul_i32 s51, s51, {REGSZ}\ns_and_b32 s15, {WV}, 1\ns_mul_i32 s15, s15, {2*PT}\ns_add_u32 s51, s51, s15\ns_add_u32 s51, s51, {LNT}")
        e(f"v_mul_u32_u24 v102, {PT}, v120\nv_add_u32 v102, s51, v102\nv_lshl_add_u32 v101, v122, 3, v102\nv_lshl_add_u32 v100, v122, 4, v102")
        p.wvm("x")
        self.stamp(p)
        self.unpack(p, RAW, F, 10)
        def psum(src, dst):
            e(f"v_pk_add_f32 {v(dst,2)}, {v(src,2)}, {v(src+2,2)}\nv_pk_add_f32 {v(dst+2,2)}, {v(src+4,2)}, {v(src+6,2)}")
            for i in range(4, 10): e(f"v_pk_add_f32 {v(dst+2*(i&1),2)}, {v(dst+2*(i&1),2)}, {v(src+2*i,2)}")
            e(f"v_pk_add_f32 {v(dst,2)}, {v(dst,2)}, {v(dst+2,2)}\nv_add_f32 v{dst}, v{dst}, v{dst+1}")
        def psq(src, dst):
            e(f"v_pk_mul_f32 {v(dst,2)}, {v(src,2)}, {v(src,2)}\nv_pk_mul_f32 {v(dst+2,2)}, {v(src+2,2)}, {v(src+2,2)}")
            for i in range(2, 10): e(f"v_pk_fma_f32 {v(dst+2*(i&1),2)}, {v(src+2*i,2)}, {v(src+2*i,2)}, {v(dst+2*(i&1),2)}")
            e(f"v_pk_add_f32 {v(dst,2)}, {v(dst,2)}, {v(dst+2,2)}\nv_add_f32 v{dst}, v{dst}, v{dst+1}")
        def rstd(var, out):
            e(f"v_max_f32 v{var}, 0, v{var}")
            self.rbf(p, var); e(f"v_add_f32 v{var}, {fbits(1e-5)}, v{var}"); self.rbf(p, var)
            e(f"v_sqrt_f32 v{var}, v{var}"); self.rbf(p, var); e(f"v_rcp_f32 v{out}, v{var}")
        psum(F, T); self.red32(p, [T], T + 2)
        e(f"v_mul_f32 v{T}, {inv}, v{T}\nv_mov_b32 v{T+4}, v{T}"); self.rbf(p, T + 4)
        for i in range(10): e(f"v_pk_add_f32 {v(D+2*i,2)}, {v(F+2*i,2)}, {v(T+4,2)} op_sel_hi:[1,0] neg_lo:[0,1] neg_hi:[0,1]")
        e(f"v_sub_f32 v{T+5}, v{T}, v{T+4}")
        psq(D, T); self.red32(p, [T], T + 2)
        e(f"v_mul_f32 v{T}, {inv}, v{T}\nv_fma_f32 v{T}, -v{T+5}, v{T+5}, v{T}")
        rstd(T, T + 6)
        for i in range(10): e(f"v_pk_mul_f32 {v(D+2*i,2)}, {v(D+2*i,2)}, {v(T+6,2)} op_sel_hi:[1,0]")
        for i in range(10): e(f"v_cvt_pk_bf16_f32 v{RAW+i}, v{D+2*i}, v{D+2*i+1}")
        self.unpack(p, RAW, F, 10)
        psum(F, T); psq(F, T + 4); self.red32(p, [T, T + 4], T + 2)
        e(f"v_mul_f32 v{T}, {inv}, v{T}\nv_mul_f32 v{T+4}, {inv}, v{T+4}\nv_fma_f32 v{T+4}, -v{T}, v{T}, v{T+4}")
        self.rbf(p, T)
        rstd(T + 4, T + 6)
        e(f"v_mul_f32 v{T+2}, v{T}, v{T+6}\nv_lshrrev_b32 v{T+4}, 16, v{T+4}\nv_or_b32 v{T+4}, v{T+4}, v{T}")
        for i in range(10): e(f"v_pk_fma_f32 {v(D+2*i,2)}, {v(F+2*i,2)}, {v(T+6,2)}, {v(T+2,2)} op_sel_hi:[1,0,0] neg_lo:[0,0,1] neg_hi:[0,0,1]")
        e(f"ds_write_b32 v102, v{T+4} offset:1280", "lnw")
        for i in range(10): e(f"v_cvt_pk_bf16_f32 v{H+i}, v{D+2*i}, v{D+2*i+1}")
        e(f"ds_write_b128 v100, {v(H,4)}\nds_write_b128 v100, {v(H+4,4)} offset:512\nds_write_b64 v101, {v(H+8,2)} offset:1024", "lnw")
        self.sig(p, Y_LN, T)

    def serv(self):
        self.role = "serv"
        p = Prog(); e = p.e; o = self.o
        self.serv_start(p)
        self.stamp(p)
        e(f"v_bfe_u32 v12, {LANE}, 2, 2\nv_mul_u32_u24 v12, {PT}, v12\nv_lshrrev_b32 v13, 4, {LANE}\nv_lshl_add_u32 v12, v13, 5, v12")
        e(f"v_and_b32 v13, 3, {LANE}\nv_lshl_add_u32 v12, v13, 3, v12\nv_add_u32 v12, {LNT}, v12")
        e(f"s_mul_i32 s84, {WG}, 10240\ns_add_u32 s84, s84, {HB}\ns_add_u32 s85, s84, 4096\ns_add_u32 s86, s84, 8192")
        e(f"s_lshl_b32 s87, {WG}, 4\ns_add_u32 s87, s87, {STAT}\nv_lshlrev_b32 v13, 12, {LANE}")
        e(f"s_lshr_b32 s89, {WG}, 2\ns_lshl_b32 s89, s89, 7\ns_and_b32 s51, {WG}, 3\ns_lshl2_add_u32 s89, s51, s89\ns_add_u32 s89, s89, {F1}\nv_lshlrev_b32 v14, 7, {LANE}")
        e("s_waitcnt lgkmcnt(0)")
        self.mktag(p)
        e(f"ds_write_b32 {VSY}, {VTAG} offset:{4*Y_TAG}")
        self.spin(p, Y_LN, 4, 20, sleep=1)
        if self.o.get("dly_p"): e(f"s_sleep {self.o['dly_p']}")
        self.stamp(p)
        for b in range(11):
            e(f"ds_read_b64_tr_b16 {v(24+4*b,2)}, v12 offset:{128*b}\nds_read_b64_tr_b16 {v(26+4*b,2)}, v12 offset:{128*b+REGSZ}", f"lr{b}")
            if b >= 3:
                c = b - 3; p.wlg(f"lr{c}")
                e(f"buffer_store_dwordx4 {v(24+4*c,4)}, {L16}, {SWS}, s{84 + c//4} offen offset:{(c%4)*1024} sc1")
        for c in range(8, 10):
            p.wlg(f"lr{c}")
            e(f"buffer_store_dwordx4 {v(24+4*c,4)}, {L16}, {SWS}, s{84 + c//4} offen offset:{(c%4)*1024} sc1")
        p.wlg("lr10")
        e(f"s_mov_b64 exec, 3\nbuffer_store_dwordx4 v[64:67], v13, {SWS}, s87 offen sc1\ns_mov_b64 exec, -1")
        self.sig(p, Y_PUB, 20)
        self.stamp(p)
        e(f"s_mul_i32 s50, {DT2}, 80\ns_lshr_b32 s50, s50, 6\ns_mul_i32 s92, s50, {24*128}\ns_add_u32 s92, s92, {F2}")
        e(f"v_min_u32 v15, 47, {LANE}\nv_lshlrev_b32 v15, 7, v15\nv_min_u32 v16, 29, {LANE}\nv_lshlrev_b32 v16, 7, v16")
        e(f"s_mul_i32 s93, {DT2}, {30*128}\ns_add_u32 s93, s93, {F3}")
        e("s_waitcnt vmcnt(0)")
        if self.o.get("dly_f"):
            self.sig(p, Y_PUB, 20); e(f"s_sleep {self.o['dly_f']}")
        self.flag_store(p, "s89")
        self.sig(p, Y_PUB, 20)
        self.stamp(p)
        e(f"s_cmp_lt_u32 {IDX}, 30\ns_cbranch_scc1 L_s1")
        e(f"v_lshrrev_b32 v17, 3, {LANE}\nv_lshlrev_b32 v17, 12, v17\nv_and_b32 v18, 7, {LANE}\nv_lshl_add_u32 v17, v18, 7, v17")
        e(f"s_lshl_b32 s88, {SUB}, 10\ns_and_b32 s51, {IDX}, 1\ns_lshl_b32 s51, s51, 15\ns_add_u32 s88, s88, s51\ns_and_b32 s51, {XCD}, 1\ns_lshl_b32 s51, s51, 16\ns_add_u32 s88, s88, s51")
        if o["slow"]:
            e(f"v_lshlrev_b32 v18, 12, {LANE}\ns_lshl_b32 s87, {SUB}, 10\ns_add_u32 s87, s87, 384\ns_and_b32 s51, {IDX}, 1\ns_lshl_b32 s51, s51, 18\ns_add_u32 s87, s87, s51")
            for i in range(12): e(f"buffer_load_dword v{70+i}, v18, {SW2}, s87 offen\ns_add_u32 s87, s87, {128*4096}")
        for i in range(o["nsp"]):
            e(f"buffer_load_dword v{24+i}, v17, {SW2}, s88 offen\ns_add_u32 s88, s88, 131072")
        e("s_waitcnt vmcnt(0)\ns_branch L_s2\nL_s1:")
        self.inverse_addr(p)
        self.spin(p, Y_P1, 1, 20, sleep=2)
        self.stamp(p)
        e(f"s_mov_b32 s50, {F1}")
        self.poll(p, "v14", "s50", 20, wide=True, sleep=o["psleep"])
        self.sig(p, Y_F1, 20)
        self.stamp(p)
        if self.debug: e(f"v_writelane_b32 {VDBG}, s78, 31")
        self.inverse(p)
        e("L_s2:")
        self.spin(p, Y_P2, 1, 20, sleep=4)
        self.stamp(p)
        self.poll(p, "v15", "s92", 20, sleep=o["psleep2"])
        self.sig(p, Y_F2, 20)
        self.stamp(p)
        if self.debug: e(f"v_writelane_b32 {VDBG}, s78, 30")
        self.spin(p, Y_P3, 1, 20, sleep=4)
        if o["sp3"]:
            e("s_add_u32 s94, s48, s93\ns_addc_u32 s95, s49, 0\ns_mov_b32 s78, 0\ns_branch L_sp3f\nL_sp3:")
            e(f"s_sleep {o['sp3']}\nL_sp3f:")
            for i in range(30): e(f"s_load_dword s{16+i}, s[94:95], {128*i} glc")
            e("s_add_u32 s78, s78, 1\ns_waitcnt lgkmcnt(0)")
            e(f"s_xor_b32 s79, s16, {TAG}")
            for i in range(1, 30): e(f"s_xor_b32 s51, s{16+i}, {TAG}\ns_or_b32 s79, s79, s51")
            e("s_cmp_gt_u32 s78, 0x8000\ns_cbranch_scc1 L_sp3d\ns_cmp_lg_u32 s79, 0\ns_cbranch_scc1 L_sp3\nL_sp3d:")
        else: self.poll(p, "v16", "s93", 20, sleep=o["psleep2"])
        self.sig(p, Y_F3, 20)
        if self.debug: e(f"v_writelane_b32 {VDBG}, s78, 29")
        self.finish(p)
        return p

    def kgen(self, p):
        e = p.e; RAW = self.RAW
        L2E = 1.4426950408889634
        l2e_hi = struct.unpack("<f", struct.pack("<f", L2E))[0]; l2e_lo = L2E - l2e_hi
        VDT, VD1, VD2, VDS, WA, RA, RB = 54, 55, 56, 57, 58, 59, 60
        e(f"s_and_b32 s51, {CH}, 1\ns_lshl_b32 s51, s51, 4\ns_lshr_b32 s80, s80, s51\ns_lshl_b32 s80, s80, 16\ns_lshr_b32 s81, s81, s51\ns_lshl_b32 s81, s81, 16")
        e(f"v_mov_b32 v62, s80\nv_mov_b32 v63, {fbits(l2e_hi)}\nv_mul_f32 v64, v62, v63\nv_fma_f32 v65, v62, v63, -v64\nv_fmac_f32 v65, {fbits(l2e_lo)}, v62")
        e(f"v_exp_f32 v64, v64\nv_mul_f32 v65, {fbits(0.6931471805599453)}, v65\nv_fma_f32 v{VDT}, v64, v65, v64")
        self.rbf(p, VDT)
        e(f"v_mul_f32 v{VD1}, {fbits(L2E)}, v{VDT}\nv_mul_f32 v{VD2}, 0.15915494, v{VDT}")
        e(f"v_cmp_eq_u32 vcc, 0, {LANE}\nv_mov_b32 v62, s81\nv_cndmask_b32 v{VDS}, 0, v62, vcc")
        e(f"s_mov_b32 m0, {REGB}")
        e(f"v_and_b32 v62, 31, {LANE}\nv_lshrrev_b32 v63, 5, {LANE}\nv_lshlrev_b32 v63, 4, v63\nv_add_u32 v63, {REGB}, v63")
        e(f"v_mul_u32_u24 v64, {KP}, v62\nv_add_u32 v{RB}, v64, v63")
        e(f"v_min_u32 v62, 20, v62\nv_mul_u32_u24 v64, {KP}, v62\nv_add_u32 v{RA}, v64, v63")
        e("v_mov_b32 v28, 0x3f80")
        e("s_waitcnt vmcnt(0)")
        self.stamp(p)
        PK = 116; pk = [0]; P = 62
        FA, FB = 16, 48
        def mf(rd):
            l = []
            for s in range(8):
                q = Prog()
                c = a(0, 16)
                q.e(f"v_mfma_f32_32x32x16_bf16 {a(0,16)}, {a(FA+4*s,4)}, {a(FB+4*s,4)}, {c}")
                l.append(q)
            return l
        p.e("s_mov_b32 s76, 0\nL_kg:")
        for rd in (1,):
            usepk = self.o["pk"]
            q = Prog(); e = q.e
            def cmul(sets):
                if usepk:
                    for d, x, y in sets: e(f"v_pk_mul_f32 {v(d,2)}, {v(x,2)}, {v(y,2)} op_sel_hi:[0,1]")
                    for d, x, y in sets: e(f"v_pk_fma_f32 {v(d,2)}, {v(x,2)}, {v(y,2)}, {v(d,2)} op_sel:[1,1,0] op_sel_hi:[1,0,1] neg_lo:[1,0,0]")
                else:
                    for d, x, y in sets: e(f"v_mul_f32 v{d}, v{x}, v{y}\nv_mul_f32 v{d+1}, v{x}, v{y+1}")
                    for d, x, y in sets: e(f"v_fma_f32 v{d}, -v{x+1}, v{y+1}, v{d}\nv_fmac_f32 v{d+1}, v{x+1}, v{y}")
            def puts(l, neg):
                rs = []
                for row, z in l:
                    r = PK + pk[0] % 8; pk[0] += 1; rs.append(r)
                    e(f"v_cvt_pk_bf16_f32 v{r}, v{z}, {'-' if neg else ''}v{z+1}")
                for (row, z), r in zip(l, rs): e(f"ds_write_addtid_b32 v{r} offset:{row*KP}", "kw")
            for i in range(6):
                e(f"v_lshlrev_b32 v{P+i}, 16, v{RAW[2*i]}\nv_alignbit_b32 v{RAW[2*i]}, v{RAW[2*i+1]}, v{RAW[2*i]}, 16")
            AR, AI = 68, 69
            e(f"v_mul_f32 v{AR}, v{P}, v{VD1}\nv_mul_f32 v{AI}, v{P+1}, v{VD2}")
            e(f"v_mul_f32 v{P+2}, v{P+2}, v{VDT}\nv_mul_f32 v{P+3}, v{P+3}, v{VDT}")
            E1, E8, E256 = 70, 72, 74
            TM_, TA = 76, 79
            for i, t in enumerate((1.0, 8.0, 256.0)):
                if i == 0: e(f"v_mov_b32 v{TM_}, v{AR}\nv_fract_f32 v{TA}, v{AI}")
                else: e(f"v_mul_f32 v{TM_+i}, {fbits(t)}, v{AR}\nv_mul_f32 v{TA+i}, {fbits(t)}, v{AI}\nv_fract_f32 v{TA+i}, v{TA+i}")
            X = 82
            cmul([(X, P + 4, P + 2)])
            for i in range(3):
                e(f"v_exp_f32 v{TM_+i}, v{TM_+i}\nv_cos_f32 v{E1+2*i}, v{TA+i}\nv_sin_f32 v{E1+2*i+1}, v{TA+i}")
            for i in range(3): e(f"v_mul_f32 v{E1+2*i}, v{E1+2*i}, v{TM_+i}\nv_mul_f32 v{E1+2*i+1}, v{E1+2*i+1}, v{TM_+i}")
            E2, E4, E16, E512 = 98, 100, 102, 104
            EA, EB, E32, Y, Z = 106, 20, 114, 30, 38
            cmul([(E2, E1, E1), (E16, E8, E8), (E512, E256, E256), (X + 2, X, E1)])
            cmul([(E4, E2, E2), (EA + 6, E16, E8), (E32, E16, E16), (X + 4, X, E2), (X + 6, X + 2, E2)])
            p.ext(q)
            p.e("s_waitcnt lgkmcnt(0)")
            q = Prog(); e = q.e
            e(f"ds_write_addtid_b32 v28", "kw")
            puts([(1, E8), (2, E16), (3, EA + 6), (4, E32)], False)
            cmul([(EB, E8, E32), (EB + 2, E16, E32), (EB + 4, EA + 6, E32), (EB + 6, E32, E32)])
            cur, nxt = EB, EA
            extra = [[(X + 8 + 2 * i, X + 2 * i, E4) for i in range(4)], [(Y + 2 * i, X + 4 * i, E256) for i in range(4)],
                     [(Z, X, E512), (Z + 2, X + 8, E512), (Z + 4, Y, E512), (Z + 6, Y + 4, E512)],
                     [(Z + 8, Z, E512), (Z + 10, Z + 4, E512)], [(Z + 12, Z + 8, E512), (Z + 14, Z + 10, E512)], [(E1, Z + 12, E512)]]
            for st in range(6):
                j0 = 9 + 4 * st
                n = min(4, 32 - j0)
                cmul([(nxt + 2 * i, cur + 2 * i, E32) for i in range(n)])
                puts([(j0 - 4 + i, cur + 2 * i) for i in range(4)], False)
                cmul(extra[st])
                cur, nxt = nxt, cur
            puts([(29 + i, cur + 2 * i) for i in range(3)], False)
            if rd > 0: p.ext(interleave(q, mf(rd - 1)))
            else: p.ext(q)
            for s_ in range(8): p.e(f"ds_read_b128 {a(FB+4*s_,4)}, v{RB} offset:{s_*32}", "kr")
            e = p.e
            puts([(i, X + 2 * i) for i in range(4)], True); puts([(4 + i, X + 8 + 2 * i) for i in range(4)], True)
            puts([(8 + i, Y + 2 * i) for i in range(4)], True); puts([(12 + i, Z + 2 * i) for i in range(4)], True)
            puts([(16 + i, Z + 8 + 2 * i) for i in range(4)] + [(20, E1)], True)
            for s_ in range(8): p.e(f"ds_read_b128 {a(FA+4*s_,4)}, v{RA} offset:{s_*32}", "kr")
            p.e("s_cmp_lg_u32 s76, 0\ns_cbranch_scc1 L_kg1")
            for i in range(16): p.e(f"v_accvgpr_write_b32 a{i}, 0")
            p.e("L_kg1:")
            if self.debug: p.e(f"s_memrealtime s[82:83]\ns_waitcnt lgkmcnt(0)\ns_add_u32 s50, s76, 20\nv_mov_b32 v61, s82\nv_cmp_eq_u32 vcc, s50, {LANE}\nv_cndmask_b32 {VDBG}, {VDBG}, v61, vcc")
            kp = self.o["kpause"]
            if kp == 9:
                p.e(f"ds_read_b32 v61, {VSY} offset:{4*Y_PUB}\ns_waitcnt lgkmcnt(0)\nv_readfirstlane_b32 s79, v61\ns_cmp_lt_u32 s79, 2\ns_cbranch_scc1 L_kg2\ns_cmp_eq_u32 s76, 0\ns_cbranch_scc1 L_kg2")
                self.spin(p, self.o["kword"], 1, 61, sleep=4)
                p.e("L_kg2:")
            elif kp:
                p.e(f"s_cmp_lg_u32 s76, {kp - 1}\ns_cbranch_scc1 L_kg2")
                self.spin(p, self.o["kword"], 1, 61, sleep=4)
                p.e("L_kg2:")
            p.e("s_add_u32 s76, s76, 1\ns_cmp_lt_u32 s76, 3\ns_cbranch_scc1 L_kg")
        e = p.e
        e(f"v_and_b32 v62, 31, {LANE}\nv_lshrrev_b32 v63, 5, {LANE}\ns_add_u32 s51, {REGB}, {KCO}")
        e(f"v_lshlrev_b32 v64, 4, v62\nv_lshl_add_u32 v64, v63, 3, v64\nv_add_u32 v64, s51, v64")
        e(f"v_cmp_eq_u32 vcc, 0, v63\nv_lshlrev_b32 v65, 3, v62\nv_add_u32 v65, 512, v65\nv_lshlrev_b32 v66, 2, v62\nv_add_u32 v66, 768, v66")
        e(f"v_cndmask_b32 v65, v66, v65, vcc\nv_add_u32 v65, s51, v65\nv_mov_b32 v66, 128\nv_cndmask_b32 v66, v66, 4, vcc\nv_add_u32 v66, v65, v66")
        e(f"v_lshlrev_b32 v67, 1, v62\nv_lshl_add_u32 v67, v63, 8, v67\nv_add_u32 v67, s51, v67")
        self.spin(p, Y_PUB, 1, 68)
        for q in mf(2): p.ext(q)
        e(f"v_mov_b32 v76, 0\nv_mov_b32 v77, 0\nv_mov_b32 v78, 0\nv_mov_b32 v79, 0\nv_add_u32 v15, {REGB}, {L16}")
        for i in range(4): e(f"ds_write_b128 v15, v[76:79] offset:{R0O + 1024*i}", "kc")
        e("s_mov_b64 exec, 3")
        e(f"ds_write_b128 v15, v[76:79] offset:{KCO - 32}", "kc")
        e("s_mov_b32 exec_lo, -1")
        e(f"ds_write_b128 v15, v[76:79] offset:{UO}", "kc")
        e("s_mov_b64 exec, -1")
        blocks = [(-2, 34, 8), (32, 32, 4)]
        info = []
        for bi, (v0, nl, stride) in enumerate(blocks):
            cis = lambda y: y if y < 0 else ci(y)
            base = cis(8 * v0)
            offs = {}
            for t in range(-1, 8):
                o = [cis(8 * (v0 + l) + 7 - t) - (base + stride * l) for l in range(nl)]
                offs[t] = o[0]
                assert all(x == o[0] for x in o)
            AD = 100 + 2 * bi
            e(f"s_add_u32 s51, {REGB}, {KCO + 2*base}\nv_mul_u32_u24 v{AD}, {2*stride}, {LANE}\nv_add_u32 v{AD}, s51, v{AD}")
            e(f"s_add_u32 s51, {REGB}, {(75 - v0) * 16}\nv_sub_u32 v{AD+1}, s51, {L16}")
            info.append(offs)
        e(f"v_cmp_gt_u32 vcc, 16, {LANE}\nv_mov_b32 v104, 563\nv_mov_b32 v105, 512\nv_cndmask_b32 v104, v104, v105, vcc\nv_add_u32 v104, v104, {LANE}")
        e(f"v_mov_b32 v106, 1011\nv_cndmask_b32 v105, v106, v105, vcc\nv_add_u32 v105, v105, {LANE}\nv_cvt_f32_u32 v105, v105\nv_cvt_pk_bf16_f32 v105, v105, v105\nv_and_b32 v105, 0xffff, v105")
        e(f"s_sub_u32 s51, {REGB}, {2*0x4280 - KCO}\nv_lshl_add_u32 v105, v105, 1, s51")
        e(f"s_add_u32 s51, {REGB}, {2*607}\nv_lshlrev_b32 v104, 1, v104\nv_sub_u32 v104, s51, v104")
        e(f"v_add_u32 v107, 1, {LANE}\nv_and_b32 v107, 0x7e, v107\ns_add_u32 s51, {REGB}, 4096\nv_sub_u32 v107, s51, v107\nv_and_b32 v106, 1, {LANE}")
        e(f"v_mul_u32_u24 v108, 192, v106\nv_add_u32 v108, v107, v108\nv_mul_u32_u24 v106, 272, v106\nv_add_u32 v107, v107, v106\nv_lshl_add_u32 v106, {LANE}, 1, {REGB}")
        for i in range(12): e(f"v_accvgpr_read_b32 v{82+i}, a{i}")
        e(f"v_add_f32 v82, v82, v{VDS}")
        for i in range(6): e(f"v_cvt_pk_bf16_f32 v{70+i}, v{82+2*i}, v{83+2*i}")
        e(f"ds_write_b64 v64, v[70:71]\nds_write_b32 v65, v72\nds_write_b32 v66, v73\nds_write_b16 v67, v74 offset:1024", "kc")
        e("s_mov_b32 exec_hi, 0")
        e(f"ds_write_b16_d16_hi v67, v74 offset:{1024+64}\nds_write_b16 v67, v75 offset:{1024+128}\nds_write_b16_d16_hi v67, v75 offset:{1024+192}", "kc")
        e("s_mov_b64 exec, -1")
        vrs = []
        for bi, (v0, nl, stride) in enumerate(blocks):
            RR = 20 + 9 * bi; AD = 100 + 2 * bi; offs = info[bi]
            e(f"s_mov_b32 exec_hi, {(1 << (nl - 32)) - 1}")
            seen = {}; vr = {}
            for t in range(-1, 8):
                o = offs[t]
                if o not in seen:
                    seen[o] = RR + len(seen)
                    e(f"ds_read_u16 v{seen[o]}, v{AD} offset:{2*o}", f"kx{bi}")
                vr[t] = seen[o]
            vrs.append(vr)
        e("ds_read_u16 v40, v105", "kq")
        e("s_mov_b64 exec, -1")
        for i in range(2):
            e(f"ds_read_u16 v{41+i}, v106 offset:{KCO + 2*(388 + 64*i)}\nds_read_u16 v{43+i}, v106 offset:{KCO + 2*(514 + 64*i)}", "kq")
        for bi, (v0, nl, stride) in enumerate(blocks):
            AD = 100 + 2 * bi; O = 70 + 8 * bi; vr = vrs[bi]
            p.wlg(f"kx{bi}")
            for i in range(4): e(f"v_lshl_or_b32 v{O+i}, v{vr[2*i+1]}, 16, v{vr[2*i]}")
            for i in range(4): e(f"v_lshl_or_b32 v{O+4+i}, v{vr[2*i]}, 16, v{vr[2*i-1]}")
            e(f"s_mov_b32 exec_hi, {(1 << (nl - 32)) - 1}")
            e(f"ds_write_b128 v{AD+1}, {v(O,4)} offset:{R0O}\nds_write_b128 v{AD+1}, {v(O+4,4)} offset:{R1O}", "kt")
            e("s_mov_b64 exec, -1")
        p.wlg("kq")
        e(f"ds_write_b16 v107, v41 offset:{Q2O - 4096 + 2*94}\nds_write_b16 v108, v43 offset:{Q3O - 4096 + 2*63}\nds_write_b16 v108, v43 offset:{Q3O - 4096 + 384 + 2*64}", "kt")
        e(f"s_mov_b32 exec_hi, {(1 << 31) - 1:#x}\nds_write_b16 v108, v44 offset:{Q3O - 4096 + 2*31}\nds_write_b16 v108, v44 offset:{Q3O - 4096 + 384 + 2*32}", "kt")
        e(f"s_mov_b32 exec_hi, {(1 << 29) - 1:#x}\nds_write_b16 v107, v42 offset:{Q2O - 4096 + 2*62}", "kt")
        e(f"s_mov_b32 exec_hi, 0\ns_mov_b32 exec_lo, 0x01ff3fff\nds_write_b16 v104, v40 offset:{R0O}\nds_write_b16 v104, v40 offset:{R1O + 2}\ns_mov_b64 exec, -1", "kt")

    def conv_setup(self, p):
        e = p.e
        e(f"v_lshrrev_b32 v32, 4, {LANE}\nv_and_b32 v31, 15, {LANE}\nv_bfe_u32 v33, {LANE}, 1, 3\nv_lshlrev_b32 v34, 2, v32\nv_sub_u32 v34, v34, v33")
        e(f"v_and_b32 v33, 1, {LANE}\nv_xor_b32 v33, 1, v33\nv_mul_u32_u24 v33, {(R1O - R0O)//4 + 1}, v33\nv_add_u32 v34, v34, v33")
        e(f"s_add_u32 s51, {REGB}, {R0O + 4*7}\nv_lshl_add_u32 v24, v34, 2, s51\nv_add_u32 v25, 512, v24")
        e(f"v_lshlrev_b32 v33, 3, v32\nv_lshlrev_b32 v34, 2, v31\nv_sub_u32 v26, v33, v34\ns_add_u32 s51, {REGB}, {Q2O + 60}\nv_add_u32 v26, s51, v26")
        e(f"v_lshlrev_b32 v34, 1, v31\nv_sub_u32 v27, v33, v34\nv_and_b32 v34, 1, v31\nv_mul_u32_u24 v34, 386, v34\nv_sub_u32 v27, v27, v34\ns_add_u32 s51, {REGB}, {Q3O + 384 + 32}\nv_add_u32 v27, s51, v27")
        for m in list(range(17)) + [18]:
            off = (18 - m) * 16; ad = 24; r = 4 * min(m, 17)
            if off >= 128: off -= 128; ad = 25
            e(f"ds_read2_b32 {a(r,2)}, v{ad} offset0:{off} offset1:{off+1}\nds_read2_b32 {a(r+2,2)}, v{ad} offset0:{off+2} offset1:{off+3}", "pf")
        for j in range(6): e(f"ds_read2_b32 {a(72+4*j,2)}, v26 offset0:{8*j} offset1:{8*j+1}\nds_read2_b32 {a(74+4*j,2)}, v26 offset0:{68+8*j} offset1:{68+8*j+1}", "pf")
        for j in range(4): e(f"ds_read2_b32 {a(96+4*j,2)}, v27 offset0:{8*j} offset1:{8*j+1}\nds_read2_b32 {a(98+4*j,2)}, v27 offset0:{48+8*j} offset1:{48+8*j+1}", "pf")
        e(f"v_lshl_add_u32 v34, v31, 1, v32\ns_add_u32 s51, {REGB}, {UO + 16*2}\nv_lshl_add_u32 v16, v34, 4, s51")
        e(f"v_add_u32 v34, v31, v32\ns_add_u32 s51, {REGB}, {UO + 512 - 48}\nv_lshl_add_u32 v12, v34, 4, s51")
        e(f"v_and_b32 v34, 1, v32\nv_lshlrev_b32 v34, 9, v34\nv_lshl_add_u32 v34, v31, 5, v34\nv_lshrrev_b32 v32, 1, v32\nv_lshl_add_u32 v17, v32, 4, v34")
        e(f"s_lshl_b32 s86, {CH}, 12\ns_add_u32 s86, s86, {YT}\ns_mul_i32 s89, {DT}, 24\ns_add_u32 s89, s89, {FT}\ns_lshl_b32 s89, s89, 7\ns_add_u32 s89, s89, {F3}\ns_sub_u32 s88, {NCH}, 1")
    def boxes(self, p):
        e = p.e
        e("v_mov_b32 v23, 0x3f80")
        e(f"v_and_b32 v124, 15, {LANE}\nv_lshrrev_b32 v125, 4, {LANE}\nv_lshlrev_b32 v125, 3, v125\ns_mov_b32 s50, 0x8001\ns_mov_b32 s51, 0x10001")
        for bi, (c_, h_) in enumerate(((8, 2), (12, 1), (8, 4), (8, 3))):
            e(f"v_mov_b32 v126, {((1 << (2*h_+1)) - 1) << (c_ - h_):#x}\nv_lshlrev_b32 v126, v124, v126\nv_lshrrev_b32 v126, v125, v126")
            for q in range(4):
                e(f"v_bfe_u32 v127, v126, {2*q}, 2\nv_mul_u32_u24 v127, s50, v127\nv_and_b32 v127, s51, v127\nv_mul_u32_u24 v127, v23, v127\nv_accvgpr_write_b32 a{112+4*bi+q}, v127")
        self.stamp(p)
        self.spin(p, Y_UR, 1, 22, sleep=2)
        e(f"ds_read_b32 {VTAG}, {VSY} offset:{4*Y_TAG}", "tag")
        self.stamp(p)
    def inverse_addr(self, p):
        e = p.e
        e(f"v_lshrrev_b32 v20, 4, {LANE}\nv_lshlrev_b32 v20, 10, v20\nv_and_b32 v21, 3, {LANE}\nv_lshl_add_u32 v20, v21, 4, v20\nv_and_b32 v21, 12, {LANE}")
        for q in range(4):
            e(f"v_add_u32 v22, {16*(q&1)}, v21\nv_bfe_u32 v22, s{74 + q//2}, v22, 4\nv_lshl_add_u32 v{4+q}, v22, 6, v20")
        e(f"s_mov_b32 s84, {STAT}\ns_mov_b32 s85, {STAT+4096}")
    def inverse(self, p):
        e = p.e
        S2, M2, SF, MF = 24, 40, 56, 88
        for q in range(4):
            e(f"buffer_load_dwordx4 {v(S2+4*q,4)}, v{4+q}, {SWS}, s84 offen sc1", "u")
            e(f"buffer_load_dwordx4 {v(M2+4*q,4)}, v{4+q}, {SWS}, s85 offen sc1", "u")
        e(f"s_setprio {self.o['iprio']}")
        p.wvm("u")
        self.unpack(p, S2, SF, 16); self.unpack(p, M2, MF, 16)
        for q in range(4):
            self.spin(p, Y_U + q, 4, 22, sleep=(2 if q < 3 else 1))
            for c in range(3): e(f"ds_read_b128 {v(24+4*c,4)}, v{4+q} offset:{REG0 + c*REGSZ + UO + 512}", f"ur{q}{c}")
            for c in range(3):
                p.wlg(f"ur{q}{c}")
                self.unpack(p, 24 + 4 * c, 40, 4)
                for i in range(8): e(f"v_fma_f32 v{40+i}, v{40+i}, v{SF+8*q+i}, v{MF+8*q+i}")
                o = 48 + 4 * (c & 1)
                for i in range(4): e(f"v_cvt_pk_bf16_f32 v{o+i}, v{40+2*i}, v{41+2*i}")
                e(f"ds_write_b128 v{4+q}, {v(o,4)} offset:{REG0 + c*REGSZ + UO + 512}", "uw")
        self.sig(p, Y_UR, 20)
        e("s_setprio 3")
    def conv(self, p):
        e = p.e
        YO, ACC, DT_, PKD = 17, 64, 116, 124
        slots = [24 + 4 * i for i in range(10)] + [96 + 4 * i for i in range(5)]
        slots = slots[:self.o["cns"]]; NS = len(slots)
        R = lambda n: v(slots[n % NS], 4)
        F = []
        for ph in range(8):
            for d in range(8):
                l = [(d + mu, 4 * (8 * mu + ph)) for mu in range(2) if d + mu <= 7]
                if ph == 0 and d <= 5: l.append((d + 2, 64))
                if ph == 0 and d <= 3: l.append((d + 4, 68))
                F.append((f"v16 offset:{512*d + (7-ph)*64}", l))
        S = []
        for st in range(4):
            S.append(([f"v16 offset:{16*(27 + 32*st)}", f"v16 offset:{16*(28 + 32*st)}"], 120, [(I, 96 + 4 * (st - I + 7)) for I in range(4, 8) if st <= I - 4]))
        for st in range(12):
            S.append(([f"v12 offset:{256*st}"], 112, [(I, 72 + 4 * (st - 2 * I + 8)) for I in range(2, 8) if 2 * I - 8 <= st <= 2 * I - 3]))
        loads = []; steps = []
        def ld(addr): loads.append(addr); return len(loads) - 1
        for i, (ad, box, l) in enumerate(S):
            ids = [ld(x) for x in ad]
            steps.append(("box", ids, box))
            for k in range(3): steps.append(("F", [ld(F[4*i+k][0])], F[4*i+k][1]))
            steps.append(("cvt", [], None))
            steps.append(("F", [ld(F[4*i+3][0])], F[4*i+3][1]))
            steps.append(("S", [], l))
        first = set(); nl = [0]
        def issue(upto):
            while nl[0] < min(upto, len(loads)):
                e(f"ds_read_b128 {R(nl[0])}, {loads[nl[0]]}", f"cj{nl[0]}"); nl[0] += 1
        def mm(I, A, B):
            acc = v(ACC + 4 * I, 4); src = acc if I in first else "0"; first.add(I)
            e(f"v_mfma_f32_16x16x32_bf16 {acc}, {A}, {B}, {src}")
        if self.o.get("dly_c"): e(f"s_sleep {self.o['dly_c']}")
        issue(NS)
        if self.o["cwait"]: self.spin(p, Y_EPI, self.o["cwait"], 22, sleep=1)
        e(f"s_setprio {self.o['cprio0']}")
        self.stamp(p)
        for si, (kind, ids, arg) in enumerate(steps):
            if si == self.o["cswitch"]: e(f"s_setprio {self.o['cprio']}")
            if ids: p.wlg(f"cj{ids[-1]}")
            if kind == "box":
                e(f"v_mfma_f32_16x16x32_bf16 {v(DT_,4)}, {R(ids[0])}, {a(arg,4)}, 0")
                issue(ids[0] + NS)
                e(f"v_mfma_f32_16x16x32_bf16 {v(DT_+4,4)}, {R(ids[-1])}, {a(arg+4,4)}, 0")
            elif kind == "F":
                for i, (I, kf) in enumerate(arg):
                    mm(I, a(kf, 4), R(ids[0]))
                    if i == 0: issue(ids[0] + NS)
            elif kind == "cvt":
                for i in range(4): e(f"v_cvt_pk_bf16_f32 v{PKD+i}, v{DT_+2*i}, v{DT_+2*i+1}")
            else:
                for I, kf in arg: mm(I, v(PKD, 4), a(kf, 4))
        for k in range(4):
            o = 24 + 4 * k
            for i in range(4): e(f"v_cvt_pk_bf16_f32 v{o+i}, v{ACC+8*k+2*i}, v{ACC+8*k+2*i+1}")
            e(f"v_permlane16_swap_b32 v{o}, v{o+2}\nv_permlane16_swap_b32 v{o+1}, v{o+3}")
            e(f"buffer_store_dwordx4 {v(o,4)}, v{YO}, {SWS}, s86 offen offset:{1024*k} sc1", "ys")
        self.stamp(p)
        e("s_waitcnt vmcnt(0)")
        e(f"v_mov_b32 v20, 1\ns_mov_b64 exec, 1\nds_add_rtn_u32 v20, {VSY}, v20 offset:{4*Y_Y}\ns_mov_b64 exec, -1\ns_waitcnt lgkmcnt(0)\nv_readfirstlane_b32 s79, v20")
        e(f"s_cmp_lg_u32 s79, s88\ns_cbranch_scc1 L_ynl")
        self.flag_store(p, "s89")
        e("L_ynl:")
    def convw(self):
        self.role = "conv"
        p = Prog(); e = p.e
        self.conv_start(p)
        self.stamp(p)
        if not self.o.get("skip_kgen"): self.kgen(p)
        else: self.stamp(p)
        self.stamp(p)
        if self.o.get("dly_k"): e(f"s_sleep {self.o['dly_k']}")
        self.conv_setup(p)
        e("s_setprio 0")
        self.boxes(p)
        self.conv(p)
        self.finish(p)
        return p

    def build(self):
        p = Prog(); self.prologue(p)
        p.ext(self.main())
        body = finalize(p)
        q = Prog(); q.e("L_aux:")
        q.e(f"s_cmp_eq_u32 {WV}, 7\ns_cbranch_scc1 L_serv"); q.ext(self.convw())
        body += finalize(q)
        q = Prog(); q.e("L_serv:"); q.ext(self.serv()); q.e("L_end:\nL_last:\ns_endpgm")
        body += finalize(q)
        body = body.replace("@", "")
        ref = open("cdna_kernels/" + NAME + ".s.ref").read()
        head = [l for l in ref.split("\n") if l.startswith(";") and "@launch" not in l]
        k = NAME + "_kernel"
        s = "\n".join(head) + f"\n; @launch grid=(256,1,1) block=(512,1,1) lds={LDS_BYTES}\n"
        s += f'.amdgcn_target "amdgcn-amd-amdhsa--gfx950"\n.text\n.globl {k}\n.p2align 8\n.type {k},@function\n{k}:\n'
        s += body
        s += f""".section .rodata,"a"
.p2align 6
.amdhsa_kernel {k}
  .amdhsa_next_free_vgpr 256
  .amdhsa_next_free_sgpr 102
  .amdhsa_accum_offset 128
  .amdhsa_group_segment_fixed_size 0
  .amdhsa_kernarg_size 136
  .amdhsa_user_sgpr_count 2
  .amdhsa_user_sgpr_kernarg_segment_ptr 1
  .amdhsa_system_sgpr_workgroup_id_x 1
.end_amdhsa_kernel
"""
        return s

if __name__ == "__main__":
    out = sys.argv[1]
    kw = eval("dict(" + (sys.argv[2] if len(sys.argv) > 2 else "") + ")")
    open(out, "w").write(G(**kw).build())
```

```python
import sys, struct
from asmlib import Prog, interleave, finalize

NAME = "parallel_sum__ssm_conv_s4__mixer_token_mlp__prompt"
STAT, TM, F2, F3, F1 = 0x4000, 0x8000, 0x50000, 0x58000, 0x60000
HB, GB, YT, WSEND = 0x80000, 0x300000, 0x4E0000, 0x760000
RINGW, RS = 28672, 7
PT = 1344
REG0, REGSZ = 0, 14976
SYNC = 3 * REGSZ
RING0 = 45056
KCO, R0O, R1O, Q2O, Q3O = 32, 1408, 1408 + 1344, 4096, 4672
Z5O, Z3O, Z9O, Z7O, UO = 0, 3104, 6208, 8288, 10368
LNT = REG0 + 8704
KP = 272
LDS_BYTES = 163840
assert SYNC + 128 <= RING0 and RING0 + 4 * RINGW <= LDS_BYTES
Y_EPI = 3
Y_Y = 16
Y_UR = 17
Y_LN, Y_F1, Y_PART, Y_PUB, Y_P1, Y_G, Y_P2, Y_F2, Y_P3, Y_F3, Y_TAG, Y_U = 0, 1, 2, 4, 5, 6, 7, 8, 9, 10, 11, 12

def fbits(x): return "0x%08x" % struct.unpack("<I", struct.pack("<f", x))[0]
def bf16r(l):
    u = struct.unpack("<I", struct.pack("<f", float(l)))[0]
    u = ((u + 0x7FFF + ((u >> 16) & 1)) >> 16) << 16
    return int(struct.unpack("<f", struct.pack("<I", u))[0])
def ci(l):
    v = bf16r(l)
    if v <= 256: return v
    if v <= 512: return 256 + (v - 256) // 2
    if v <= 1024: return 384 + (v - 512) // 4
    return 512 + (v - 1024) // 8

WG, WV, XCD, IDX, DT, FT, DT2, ST2, TAG, ROT1, ROT2, CH = "s2", "s3", "s4", "s5", "s6", "s7", "s8", "s9", "s10", "s11", "s12", "s13"
SUB, C0, NCH = "s97", "s98", "s99"
SX, SW1, SW2, SOUT, SWS = "s[52:55]", "s[56:59]", "s[60:63]", "s[64:67]", "s[68:71]"
RINGB, REGB = "s73", "s77"
VSY, LANE, L16, L4, VTAG, VZ, VDBG = "v0", "v1", "v2", "v3", "v9", "v10", "v11"

def v(i, n=1): return f"v{i}" if n == 1 else f"v[{i}:{i+n-1}]"
def a(i, n=1): return f"a{i}" if n == 1 else f"a[{i}:{i+n-1}]"

def groups_of(prog):
    groups = []
    for it in prog.items:
        prev = groups[-1][-1][0] if groups else None
        if isinstance(prev, str) and (prev.startswith(("s_add_u32 m0", "s_cmp", "s_sub_u32 s51", "s_mov_b64 exec, s", "s_mov_b64 exec, 1", "ds_write_b128 v125", "ds_add"))):
            groups[-1].append(it)
        else: groups.append([it])
    return groups

def make_perm(n, nw, first, duty0, per=1):
    own = list(range(0, n, 2)); oth = list(range(1, n, 2))
    order = [[] for _ in range(nw)]; touched = {}
    pool = own[:]
    for pos in range(first):
        for j in range(nw):
            pass
    deal = [[] for _ in range(nw)]
    k = 0
    for pos in range(first):
        for j in range(nw):
            if pool: st = pool.pop(0)
            else: st = oth.pop(0)
            deal[j].append(st); touched[st] = pos
    rest = pool + oth
    duty = {}
    for i, st in enumerate(rest): duty[(duty0 + i // per, i % nw)] = st
    for j in range(nw): order[j] = list(deal[j])
    for pos in range(first, n):
        for j in range(nw):
            if (pos, j) in duty: touched[duty[(pos, j)]] = pos
        for j in range(nw):
            if (pos, j) in duty: order[j].append(duty[(pos, j)]); continue
            mine = {st for (pp, jj), st in duty.items() if jj == j and pp > pos}
            cand = [st for st in range(n) if st not in order[j] and st not in mine]
            cand.sort(key=lambda st: (touched.get(st, 99), (st - 2 * j) % n))
            order[j].append(cand[0])
    for o in order: assert sorted(o) == list(range(n)), o
    return order
def pack_perm(o):
    x = sum(st << (4 * i) for i, st in enumerate(o)); return x & 0xffffffff, x >> 32

class G:
    def __init__(self, debug=False, **kw):
        self.debug = debug
        self.o = dict(P1=6, D1=13, PS1=11, lead1=4, xk=-1, epifirst=1, sp3=0, first1=1, dpp=3, P2=4, D2=11, PS2=9, lead2=4, wflag="", xflag="", nsp=30, thr=4,
                      ytrig=5, ychk=10, pk=1, psleep=4, psleep2=8, kprio=0, mprio=2, ebpos=0, kpause=9, kword=5, ipf0=0, defer=1, tch=0, cprio=3, ipf=2, ns1=12, ns2=15, perm=1, duty1=1, duty2=3, oflag='', eb=2, pfirst=1, free1=1, pre1=1, cns=15, sg1=0, sg2=0, epk=1, cprio0=0, cswitch=40, iprio=0, ow4=1, slow=1, ebk=99, nthr=6, pflag='nt', cwait=4)
        self.o.update(kw)
        self.nst = {}; self.nlab = 0; self.role = None
    def stamp(self, p):
        if not self.debug: return
        n = self.nst.get(self.role, 0)
        if n == 0: p.e(f"v_writelane_b32 {VDBG}, s100, 28")
        p.e(("s_memtime" if self.o.get("cyc") else "s_memrealtime") + " s[82:83]\ns_waitcnt lgkmcnt(0)")
        p.e(f"v_writelane_b32 {VDBG}, s82, {n}")
        self.nst[self.role] = n + 1
    def pre(self, p):
        if self.debug and self.o.get("prest"): p.e(f"s_memrealtime s[82:83]\ns_waitcnt lgkmcnt(0)\nv_writelane_b32 {VDBG}, s82, 27")
    def label(self, s):
        self.nlab += 1; return f"L{s}_{self.nlab}"
    def flag_store(self, p, soff, pre=""):
        p.e(f"s_mov_b64 exec, 1\n{pre}buffer_store_dword {VTAG}, {VZ}, {SWS}, {soff} offen sc1\ns_mov_b64 exec, -1")
    def poll(self, p, voff, soff, tmp, wide=False, sleep=0):
        l = self.label("poll"); d = self.label("polld"); f = self.label("pollf")
        p.e("s_mov_b32 s78, 0")
        if sleep: p.e(f"s_branch {f}")
        p.e(f"{l}:")
        if sleep: p.e(f"s_sleep {sleep}\n{f}:")
        if wide:
            p.e(f"buffer_load_dwordx4 {v(tmp,4)}, {voff}, {SWS}, {soff} offen sc1")
            p.e("s_add_u32 s78, s78, 1\ns_waitcnt vmcnt(0)")
            for i in range(4): p.e(f"v_xor_b32 {v(tmp+i)}, {TAG}, {v(tmp+i)}")
            p.e(f"v_or3_b32 {v(tmp)}, {v(tmp)}, {v(tmp+1)}, {v(tmp+2)}\nv_or_b32 {v(tmp)}, {v(tmp)}, {v(tmp+3)}")
            p.e(f"v_cmp_ne_u32 vcc, 0, {v(tmp)}")
        else:
            p.e(f"buffer_load_dword {v(tmp)}, {voff}, {SWS}, {soff} offen sc1")
            p.e("s_add_u32 s78, s78, 1\ns_waitcnt vmcnt(0)")
            p.e(f"v_cmp_ne_u32 vcc, {TAG}, {v(tmp)}")
        p.e(f"s_cmp_gt_u32 s78, 0x8000\ns_cbranch_scc1 {d}\ns_cbranch_vccz {d}\ns_mov_b64 exec, vcc\ns_branch {l}")
        p.e(f"{d}:\ns_mov_b64 exec, -1")
    def sig(self, p, word, tmp):
        p.e(f"v_mov_b32 v{tmp}, 1\ns_mov_b64 exec, 1\nds_add_u32 {VSY}, v{tmp} offset:{4*word}\ns_mov_b64 exec, -1", "sig")
    def spin(self, p, word, n, tmp, sleep=0):
        l = self.label("spin"); d = self.label("spind"); f = self.label("spinf")
        p.e("s_mov_b32 s78, 0")
        if sleep: p.e(f"s_branch {f}")
        p.e(f"{l}:")
        if sleep: p.e(f"s_sleep {sleep}\n{f}:")
        p.e(f"ds_read_b32 v{tmp}, {VSY} offset:{4*word}\ns_add_u32 s78, s78, 1\ns_waitcnt lgkmcnt(0)\nv_readfirstlane_b32 s79, v{tmp}")
        p.e(f"s_cmp_gt_u32 s78, 0x40000\ns_cbranch_scc1 {d}\ns_cmp_lt_u32 s79, {n}\ns_cbranch_scc1 {l}")
        p.e(f"{d}:")
    def mktag(self, p):
        p.e(f"s_mul_i32 {TAG}, {TAG}, 0x9E3779B1\ns_add_u32 {TAG}, {TAG}, 0x7F4A7C15\nv_mov_b32 {VTAG}, {TAG}")
    def finish(self, p):
        e = p.e
        if self.debug:
            e("s_waitcnt vmcnt(0)")
            self.stamp(p)
            e(f"s_lshl_b32 s50, {WG}, 3\ns_add_u32 s50, s50, {WV}\ns_lshl_b32 s50, s50, 7\ns_add_u32 s50, s50, {TM}")
            e(f"s_mov_b32 exec_hi, 0\nbuffer_store_dword {VDBG}, {L4}, {SWS}, s50 offen")
        e("s_endpgm")
    def srd(self, p, d, lo, size): p.e(f"s_mov_b32 s{d}, s{lo}\ns_mov_b32 s{d+1}, s{lo+1}\ns_mov_b32 s{d+2}, {size}\ns_mov_b32 s{d+3}, 0x20000")
    def unpack(self, p, src, dst, n):
        for i in range(n):
            p.e(f"v_lshlrev_b32 v{dst+2*i}, 16, v{src+i}\nv_and_b32 v{dst+2*i+1}, 0xffff0000, v{src+i}")
    def rbf(self, p, r):
        p.e(f"v_cvt_pk_bf16_f32 v{r}, v{r}, v{r}\nv_lshlrev_b32 v{r}, 16, v{r}")

    def prologue(self, p):
        e = p.e; RAW = self.RAW; o = self.o
        def ipf():
            e(f"s_getpc_b64 s[90:91]\nL_pc:\ns_bfe_u32 s51, {WG}, {(o['ipf'] << 16) | 3:#x}\ns_lshl_b32 s51, s51, 13")
            e(f"v_lshl_add_u32 v112, {LANE}, 7, s51\nv_min_u32 v112, L_last-L_pc, v112")
            e("v_mov_b32 v113, s91\nv_add_co_u32 v112, vcc, s90, v112\nv_addc_co_u32 v113, vcc, 0, v113, vcc")
            e("@global_load_dword v114, v[112:113], off")
        if self.debug: e("s_memrealtime s[100:101]")
        e(f"s_cmp_ge_u32 {WG}, 256\ns_cbranch_scc1 L_end0")
        e("s_load_dwordx16 s[16:31], s[0:1], 0\ns_load_dwordx16 s[32:47], s[0:1], 64\ns_load_dwordx2 s[48:49], s[0:1], 128")
        e(f"v_and_b32 {LANE}, 63, v0\nv_readfirstlane_b32 {WV}, v0\ns_lshr_b32 {WV}, {WV}, 6")
        if o["ipf0"]:
            e(f"s_cbranch_scc1 L_p0"); ipf(); e("L_p0:")
        e(f"s_cmp_ge_u32 {WV}, 4\ns_cbranch_scc1 L_p1")
        e(f"v_lshrrev_b32 v120, 5, {LANE}\nv_mul_u32_u24 v121, 1280, v120\nv_and_b32 v122, 31, {LANE}")
        e("v_lshl_add_u32 v123, v122, 4, v121\nv_lshl_add_u32 v124, v122, 3, v121")
        e(f"s_lshl_b32 s50, {WG}, 3\ns_lshl1_add_u32 s50, {WV}, s50\ns_mulk_i32 s50, 1280")
        e("s_mov_b32 s54, 2621440\ns_mov_b32 s55, 0x20000\ns_waitcnt lgkmcnt(0)\ns_mov_b32 s52, s16\ns_mov_b32 s53, s17")
        xf = o["xflag"]
        e(f"buffer_load_dwordx4 v[20:23], v123, {SX}, s50 offen {xf}", "x")
        e(f"buffer_load_dwordx4 v[24:27], v123, {SX}, s50 offen offset:512 {xf}", "x")
        e(f"buffer_load_dwordx2 v[28:29], v124, {SX}, s50 offen offset:1024 {xf}", "x")
        e("s_branch L_p4" if o["defer"] else "s_branch L_p3")
        e(f"L_p1:\nv_lshlrev_b32 {L4}, 2, {LANE}\ns_cmp_lg_u32 {WV}, 7\ns_cbranch_scc1 L_p2")
        if not o["ipf0"]: ipf()
        e(f"v_mov_b32 {VZ}, 0\ns_mov_b32 exec_hi, 0\nds_write_b32 {L4}, {VZ} offset:{SYNC}\ns_mov_b64 exec, -1")
        e(f"s_waitcnt lgkmcnt(0)\n@s_load_dword {TAG}, s[48:49], 0\ns_branch L_p3")
        e("L_end0:\ns_endpgm\nL_p2:")
        self.tiles(p)
        e(f"s_sub_u32 s14, {WV}, 4\ns_cmp_ge_u32 s14, {NCH}\ns_cbranch_scc1 L_end0")
        e(f"s_lshl_b32 {CH}, {DT}, 6\ns_lshl4_add_u32 {CH}, {SUB}, {CH}\ns_add_u32 {CH}, {CH}, {C0}\ns_add_u32 {CH}, {CH}, s14")
        e(f"s_mul_i32 s51, {CH}, 384\nv_add_u32 v110, s51, {L4}\nv_lshl_add_u32 v111, {LANE}, 1, s51")
        e(f"s_lshr_b32 s79, {CH}, 1\ns_lshl_b32 s79, s79, 2")
        e("s_waitcnt lgkmcnt(0)")
        for i in range(6):
            e(f"@global_load_dword v{RAW[2*i]}, v110, s[{18+2*i}:{19+2*i}] {o['pflag']}")
            e(f"@global_load_ushort v{RAW[2*i+1]}, v111, s[{18+2*i}:{19+2*i}] offset:256 {o['pflag']}")
        e(f"@s_load_dword s80, s[30:31], s79\n@s_load_dword s81, s[32:33], s79")
        e("L_p3:\ns_barrier\nL_p4:")
        e(f"v_lshlrev_b32 {L4}, 2, {LANE}\nv_mov_b32 {VZ}, 0\nv_mov_b32 {VSY}, {SYNC}")
        e(f"v_lshlrev_b32 {L16}, 4, {LANE}\nv_mov_b32 {VDBG}, 0")
        self.tiles(p)
        self.srd(p, 68, 48, WSEND)
        if o["perm"]: P1_ = make_perm(16, 5, o["first1"], o["duty1"], o["dpp"])
        else: P1_ = [[(((2 * j * 205) >> 7) + i) % 16 for i in range(16)] for j in range(5)]
        for j, o_ in enumerate(P1_):
            lo, hi = pack_perm(o_)
            if j == 0: e(f"s_mov_b32 s74, {lo:#x}\ns_mov_b32 s75, {hi:#x}")
            else: e(f"s_cmp_eq_u32 s11, {j}\ns_cselect_b32 s74, {lo:#x}, s74\ns_cselect_b32 s75, {hi:#x}, s75")
        e("s_mul_i32 s51, s12, 0x11111111\ns_xor_b32 s74, s74, s51\ns_xor_b32 s75, s75, s51")
        e(f"s_and_b32 {DT2}, {IDX}, 3\ns_lshr_b32 {ST2}, {IDX}, 2\ns_lshl2_add_u32 {DT2}, s12, {DT2}\ns_lshl3_add_u32 {ST2}, {SUB}, {ST2}")
        e(f"s_cmp_ge_u32 {WV}, 4\ns_cbranch_scc1 L_aux")
    def tiles(self, p):
        e = p.e
        e(f"s_and_b32 {XCD}, {WG}, 7\ns_lshr_b32 {IDX}, {WG}, 3\ns_lshr_b32 {SUB}, {XCD}, 1\ns_and_b32 s12, {XCD}, 1")
        e(f"s_min_u32 s15, {IDX}, 29\ns_mul_i32 {FT}, s15, 52\ns_lshr_b32 {FT}, {FT}, 8")
        e(f"s_mul_i32 s51, {FT}, 5\ns_sub_u32 s11, s15, s51")
        e(f"s_mul_i32 {C0}, {FT}, 3\ns_min_u32 {C0}, {C0}, 14\ns_cmp_lt_u32 {FT}, 4\ns_cselect_b32 {NCH}, 3, 2\ns_cmp_ge_u32 {IDX}, 30\ns_cselect_b32 {NCH}, 0, {NCH}")
        e(f"s_mul_i32 s51, s12, 5\ns_add_u32 {DT}, s11, s51\ns_mul_i32 s51, {SUB}, 6\ns_add_u32 {FT}, {FT}, s51")

    def kk(self, p, g, ks, dst, stride, base):
        p.e(f"s_bfe_u32 {dst}, s{(74 if g == 1 else 80) + ks // 8}, {(4 << 16) | (4 * (ks % 8)):#x}")
        p.e(f"s_mul_i32 {dst}, {dst}, {stride}")
        if base: p.e(f"s_add_u32 {dst}, {dst}, {base}")
    def slot(self, g, ks): return ((ks + (3 if g == 2 else 0)) % RS) * 4096
    def throttle(self, p):
        l = self.label("thr")
        p.e(f"s_cmp_lg_u32 s85, 0\ns_cbranch_scc1 {l}")
        p.e(f"@ds_read_b32 v20, {VSY} offset:{4*Y_PUB}\n@s_waitcnt vmcnt({self.o['thr']}) lgkmcnt(0)\nv_readfirstlane_b32 s85, v20\ns_nop 0\ns_lshr_b32 s85, s85, 1")
        p.e(f"{l}:")
    def dma(self, g, ks, thr=False):
        p = Prog()
        rs, vo, srd, base = (3072, 4, SW1, "s84") if g == 1 else (4096, 12, SW2, "s92")
        self.kk(p, g, ks, "s72", 32 * rs, base)
        for q in range(4):
            if thr and q % 2 == 0: self.throttle(p)
            p.e(f"s_add_u32 m0, {RINGB}, {self.slot(g, ks) + q * 1024}")
            p.e(f"buffer_load_dwordx4 v{vo + (q & 1)}, {srd}, s72 offen {self.o['wflag']} lds", f"w{g}_{ks}")
            if q < 3: p.e(f"s_add_u32 s72, s72, {8*rs}")
        return p
    NB = {1: 6, 2: 4}
    def tr(self, g, ks):
        p = Prog()
        r = 16 * (ks % self.NB[g]); o = self.slot(g, ks)
        p.wvm(f"w{g}_{ks}")
        for ss in range(4):
            p.e(f"ds_read_b64_tr_b16 {a(r+4*ss,2)}, v{14+ss} offset:{o}", f"t{g}_{ks}")
            p.e(f"ds_read_b64_tr_b16 {a(r+4*ss+2,2)}, v{14+ss} offset:{o+512}", f"t{g}_{ks}")
        return p
    def main_start(self, p):
        e = p.e
        e("s_setprio 3")
        e(f"s_mul_i32 {RINGB}, {WV}, {RINGW}\ns_add_u32 {RINGB}, {RINGB}, {RING0}\ns_mov_b32 s85, 0")
        e(f"v_lshrrev_b32 v30, 3, {LANE}\nv_and_b32 v31, 7, {LANE}\nv_and_b32 v32, 2, v30\nv_xor_b32 v31, v31, v32\nv_lshlrev_b32 v31, 4, v31")
        e("v_mul_u32_u24 v4, 3072, v30\nv_add_u32 v4, v4, v31\nv_xor_b32 v5, 64, v4\nv_lshl_add_u32 v12, v30, 12, v31\nv_xor_b32 v13, 64, v12")
        e(f"s_mul_i32 s84, {WV}, {512*3072}\ns_lshl_b32 s51, {FT}, 7\ns_add_u32 s84, s84, s51")
        e(f"s_mul_i32 s92, {WV}, {384*4096}\ns_lshl_b32 s51, {ST2}, 7\ns_add_u32 s92, s92, s51")
        self.srd(p, 56, 36, 6291456); self.srd(p, 60, 40, 6291456); self.srd(p, 64, 44, 2621440)
        if self.o["defer"]: e("s_barrier")
        self.stamp(p)
    def main_setup2(self, p):
        e = p.e
        e(f"v_bfe_u32 v20, {LANE}, 2, 2\nv_and_b32 v21, 3, {LANE}\nv_lshrrev_b32 v22, 4, {LANE}\nv_and_b32 v23, 15, {LANE}")
        e("v_lshlrev_b32 v24, 10, v22\nv_lshl_add_u32 v24, v20, 7, v24\nv_lshl_add_u32 v24, v21, 3, v24")
        e(f"v_lshrrev_b32 v20, 1, v20\nv_and_b32 v21, 1, v22\nv_lshl_or_b32 v20, v21, 1, v20\nv_xor_b32 v20, {WV}, v20\nv_lshlrev_b32 v20, 5, v20")
        e(f"v_add3_u32 v14, v24, v20, {RINGB}\nv_xor_b32 v15, 32, v14\nv_xor_b32 v16, 64, v14\nv_xor_b32 v17, 0x60, v14")
        e(f"s_lshl_b32 s51, {FT}, 7\ns_lshl_b32 s15, {WV}, 5\ns_add_u32 s51, s51, s15\nv_lshl_add_u32 v24, v22, 3, s51")
        e("global_load_dwordx2 v[126:127], v24, s[38:39]", "b1")
        e(f"v_mul_u32_u24 v19, 10240, v22\nv_lshl_add_u32 v19, v23, 4, v19\ns_lshl_b32 s51, {SUB}, 8\nv_add_u32 v120, s51, v19")
        e("v_xor_b32 v121, 0x100, v120\nv_xor_b32 v122, 0x200, v120\nv_xor_b32 v123, 0x300, v120")
        e(f"v_lshrrev_b32 v24, 1, v22\nv_mul_u32_u24 v24, 10240, v24\nv_lshl_add_u32 v24, v23, 4, v24\nv_xor_b32 v25, {SUB}, v21\nv_lshl_add_u32 v6, v25, 8, v24\nv_xor_b32 v7, 0x200, v6")
        e(f"v_subrev_u32 v124, {C0}, v23\nv_mul_u32_u24 v124, {REGSZ}, v124\nv_lshl_add_u32 v124, v22, 4, v124")
        e(f"s_lshl_b32 s51, {WV}, 10\ns_add_u32 s51, s51, {REG0 + UO + 512}\nv_add_u32 v124, s51, v124")
        e(f"s_bfm_b32 s100, {NCH}, {C0}\ns_lshl_b32 s51, s100, 16\ns_or_b32 s100, s100, s51\ns_mov_b32 s101, s100")
        e("v_mul_u32_u24 v18, 1280, v23\nv_lshl_add_u32 v18, v22, 3, v18\nv_lshlrev_b32 v115, 12, v23\nv_lshl_add_u32 v115, v22, 4, v115")
        e("v_lshl_add_u32 v8, v23, 1, s95")
        e("global_load_ushort v114, v8, s[42:43]", "b1")
        if self.o["perm"]: P2_ = make_perm(12, 4, 2, self.o["duty2"])
        else: P2_ = [[(3 * j + i) % 12 for i in range(12)] for j in range(4)]
        e(f"s_and_b32 s15, {IDX}, 3")
        for j, o_ in enumerate(P2_):
            lo, hi = pack_perm(o_)
            if j == 0: e(f"s_mov_b32 s80, {lo:#x}\ns_mov_b32 s81, {hi:#x}")
            else: e(f"s_cmp_eq_u32 s15, {j}\ns_cselect_b32 s80, {lo:#x}, s80\ns_cselect_b32 s81, {hi:#x}, s81")
        e(f"s_and_b32 s15, {ST2}, {self.o['sg2']}\ns_and_b32 s51, {XCD}, 1\ns_xor_b32 s51, s51, s15\ns_mul_i32 s51, s51, 0x11111111\ns_xor_b32 s80, s80, s51\ns_xor_b32 s81, s81, s51")
        e(f"s_mul_i32 s86, {WV}, {64*10240}\ns_lshl_b32 s51, {DT}, 10\ns_add_u32 s86, s86, s51\ns_add_u32 s86, s86, {HB}")
    def xr(self, j): return [v(104, 4), v(110, 4), v(116, 4)][j]
    def xload(self, p):
        e = p.e
        e(f"s_lshl_b32 s94, {ST2}, 6\ns_lshl_b32 s51, {WV}, 4\ns_add_u32 s94, s94, s51\ns_lshl_b32 s95, s94, 1")
        e(f"s_mul_i32 s94, s94, 1280\ns_mul_i32 s51, {DT2}, 160\ns_add_u32 s94, s94, s51")
        e(f"v_and_b32 v109, 15, {LANE}\nv_mul_u32_u24 v109, 1280, v109\nv_and_b32 v108, 48, {LANE}\nv_add_u32 v108, v108, v109")
        for j in range(3): e(f"buffer_load_dwordx4 {self.xr(j)}, v108, {SX}, s94 offen offset:{64*j}", f"x{j}")
    def xmm(self, p):
        e = p.e; ln_ = self.label("nsw")
        e("v_lshlrev_b32 v114, 16, v114")
        for i in range(20): e(f"v_mov_b32 v{84+i}, v114")
        e(f"v_lshrrev_b32 v22, 4, {LANE}\nv_and_b32 v23, 15, {LANE}")
        e("v_lshlrev_b32 v24, 3, v22\nv_sub_u32 v24, v23, v24\nv_and_b32 v25, 1, v24\nv_lshlrev_b32 v25, 4, v25\nv_mov_b32 v26, 0x3f80\nv_lshlrev_b32 v25, v25, v26\nv_ashrrev_i32 v24, 1, v24")
        for q in range(4): e(f"v_cmp_eq_u32 vcc, {q}, v24\nv_cndmask_b32 v{120+q}, 0, v25, vcc")
        for q in range(4): e(f"v_cmp_eq_i32 vcc, {q-8}, v24\nv_cndmask_b32 v{124+q}, 0, v25, vcc")
        for di in range(5):
            e(f"v_mfma_f32_16x16x32_bf16 {self.acc2(di,0)}, {v(124 if di & 1 else 120, 4)}, {self.xr(di//2)}, {self.acc2(di,0)}")
        e(f"s_and_b32 s51, {WV}, 1\ns_cmp_eq_u32 s51, 0\ns_cbranch_scc1 {ln_}")
        for q in range(4): e(f"v_swap_b32 v{120+q}, v{124+q}")
        e(f"{ln_}:")
    def acc1(self, t, ds): return [v(72 + 4 * ds, 4), v(88 + 4 * ds, 4), a(96 + 4 * ds, 4), a(112 + 4 * ds, 4)][t]
    def acc2(self, di, ss): return v(84 + 4 * di, 4) if ss == 0 else a(68 + 4 * (di * 3 + ss - 1), 4)

    def gemm_loop(self, p, g, nks, nf, ns, nd, nt, ld, mfma, extra):
        NB = self.NB[g]; n = nks * nf
        for i in range(ns): p.ext(ld(i))
        nl = ns
        G_ = 4 * nf
        for ks in range(nks):
            side = Prog()
            if nd < nks and nd - RS < nt:
                if nd >= RS: side.wlg(f"t{g}_{nd-RS}")
                side.ext(self.dma(g, nd)); nd += 1
            if nt < nks and nt < nd and nt - NB < ks:
                side.ext(self.tr(g, nt)); nt += 1
            early, pre, post = extra(ks)
            gaps = [[] for _ in range(G_)]
            cost = [0] * G_
            def c_of(grp):
                c = 0
                for it, _ in grp:
                    if isinstance(it, tuple): c += 1
                    elif it.startswith(("buffer_", "global_")): c += 3
                    else: c += 1
                return c
            for di in range(1, nf): cost[4 * di - 1] += 1
            cost[G_ - 1] += 2
            for di in range(nf):
                if nf * ks + di >= 1 and nl < n:
                    its = ld(nl).items; nl += 1
                    gi = 4 * di
                    gaps[gi].append(("z", its[-1:])); cost[gi] += 3
                    for k, it in enumerate(its[:-1]):
                        gj = gi - (len(its) - 1 - k)
                        assert gj >= 0
                        gaps[gj].append(("y", [it])); cost[gj] += 1
            pos = 0
            for grp in groups_of(early):
                gi = min(3, 1 + pos); pos += 1
                gaps[gi].append(("a", grp)); cost[gi] += c_of(grp)
            rest = groups_of(pre) + groups_of(side)
            start = 4 if early.items else 1
            tot = sum(c_of(x) for x in rest) + sum(cost[start:])
            gi = start
            for grp in rest:
                lvl = max(2.0, tot / (G_ - start))
                while gi < G_ - 1 and cost[gi] + c_of(grp) > lvl + 0.5 and cost[gi] > 0: gi += 1
                gaps[gi].append(("m", grp)); cost[gi] += c_of(grp)
            p.wlg(f"t{g}_{ks}")
            for di in range(nf):
                p.wvm(f"act{ks}_{di}")
                for ss in range(4):
                    p.e(mfma(ks, di, ss))
                    for key, grp in sorted(gaps[4 * di + ss], key=lambda x: x[0]): p.items.extend(grp)
            p.ext(post)
        assert nl == n and nd == nks and nt == nks

    def gemm1(self, p):
        e = p.e; o = self.o
        HR, ns = 24, o['ns1']
        nd = o['free1']
        def more():
            nonlocal nd
            if nd >= RS: p.wlg(f"t1_{nd-RS}")
            p.ext(self.dma(1, nd, thr=nd < o['nthr'])); nd += 1
            if nd == o["PS1"]: self.sig(p, Y_P1, 20)
            if o.get("fine") and nd <= 9: self.stamp(p)
        while nd < o["lead1"]: more()
        p.wvm("b1")
        for ds in range(4): self.unpack(p, 126, 72 + 4 * ds, 2)
        for j in range(o["P1"]):
            p.ext(self.tr(1, j))
            if j == 2 and not o.get('fine'): self.stamp(p)
            if nd < o["D1"]: more()
        while nd < o["D1"]:
            p.wvm(f"w1_{nd-o['lead1']}"); more()
        self.stamp(p)
        self.spin(p, Y_F1, 1, 20, sleep=1)
        e(f"ds_read_b32 {VTAG}, {VSY} offset:{4*Y_TAG}\ns_setprio 2", "tag")
        self.stamp(p)
        def ld(i):
            ks, ds = divmod(i, 4); q = Prog()
            if ds == 0: self.kk(q, 1, ks, "s76", 40960, "s86")
            q.e(f"buffer_load_dwordx4 {v(HR + 4 * (i % ns), 4)}, v{120+ds}, {SWS}, s76 offen sc1", f"act{ks}_{ds}")
            return q
        def mfma(ks, ds, t):
            c = self.acc1(t, ds); src = "0" if (ks == 0 and t > 0) else c
            return f"v_mfma_f32_16x16x32_bf16 {c}, {a(16*(ks%6)+4*t,4)}, {v(HR + 4 * ((4*ks+ds) % ns), 4)}, {src}"
        def extra(ks):
            pre = Prog(); post = Prog(); q = Prog()
            q.e(f"s_bfe_u32 s14, s{74 + ks // 8}, {(4 << 16) | (4 * (ks % 8)):#x}\nv_lshl_add_u32 v125, s14, 6, v124")
            q.e(f"s_mov_b64 exec, s[100:101]\nds_write_b128 v125, {v(HR + 4 * ((4 * ks) % ns), 4)}\ns_mov_b64 exec, -1", "uc")
            if ks % 4 == 3: self.sig(pre, Y_U + ks // 4, 20)
            if ks in (0, 5, 10): self.stamp(post)
            return q, pre, post
        self.gemm_loop(p, 1, 16, 4, ns, nd, o["P1"], ld, mfma, extra)
        self.stamp(p)
    def gemm1_epi(self, p):
        e = p.e; RD = 24
        if self.o["ebpos"] == 0:
            for ks in range(self.o["eb"]): p.ext(self.dma(2, ks))
        e(f"v_add_u32 v20, {RINGB}, {L16}")
        for t in range(1, 4):
            for ds in range(4): e(f"ds_write_b128 v20, {self.acc1(t, ds)} offset:{(t-1)*4096+ds*1024}", "r1w")
        self.sig(p, Y_PART, 21)
        if self.o["ebpos"] == 1:
            for ks in range(self.o["eb"]): p.ext(self.dma(2, ks))
        for t in range(1, 4):
            e(f"s_xor_b32 s51, {WV}, {t}\ns_mul_i32 s51, s51, {RINGW}\ns_add_u32 s51, s51, {RING0 + (t-1)*4096}\nv_add_u32 v{20+t}, s51, {L16}")
        e(f"s_lshl_b32 s50, {FT}, 3\ns_lshl_b32 s51, {WV}, 1\ns_add_u32 s50, s50, s51\ns_mul_i32 s50, s50, 10240")
        e(f"s_lshl_b32 s51, {DT}, 10\ns_add_u32 s50, s50, s51\ns_add_u32 s86, s50, {GB}")
        e(f"s_mul_i32 s89, {DT}, 24\ns_add_u32 s89, s89, {FT}\ns_lshl_b32 s89, s89, 7\ns_add_u32 s89, s89, {F2}")
        c1 = -2 * 0.7978845608028654 * 1.4426950408889634; c3 = c1 * 0.044715
        e(f"s_mov_b32 s90, {fbits(c3)}\nv_mov_b32 v126, {fbits(c1)}")
        if self.o.get("fine2"): self.stamp(p)
        self.spin(p, Y_PART, 4, 20)
        if self.o.get("fine2"): self.stamp(p)
        for q in range(4):
            for t in range(3): e(f"ds_read_b128 {v(RD+16*t+4*q,4)}, v{21+t} offset:{q*1024}", f"r1r{q}")
        if self.o["ebpos"] == 2:
            for ks in range(self.o["eb"]): p.ext(self.dma(2, ks))
        for pr in range(2):
            p.wlg(f"r1r{2*pr+1}")
            q = [(72 + 8 * pr + i, RD + 8 * pr + i, 88 + 8 * pr + i) for i in range(8)]
            if self.o["epk"]:
                q2 = q[::2]
                for x, r, t in q2: e(f"v_pk_add_f32 {v(x,2)}, {v(x,2)}, {v(r,2)}\nv_pk_add_f32 {v(r+16,2)}, {v(r+16,2)}, {v(r+32,2)}")
                for x, r, t in q2: e(f"v_pk_add_f32 {v(x,2)}, {v(x,2)}, {v(r+16,2)}")
                for x, r, t in q2: e(f"v_pk_mul_f32 {v(t,2)}, {v(x,2)}, {v(x,2)}")
                for x, r, t in q2: e(f"v_pk_fma_f32 {v(t,2)}, {v(t,2)}, s[90:91], v[126:127] op_sel_hi:[1,0,0]")
                for x, r, t in q2: e(f"v_pk_mul_f32 {v(t,2)}, {v(t,2)}, {v(x,2)}")
                for x, r, t in q: e(f"v_exp_f32 v{t}, v{t}")
                for x, r, t in q2: e(f"v_pk_add_f32 {v(t,2)}, {v(t,2)}, 1.0 op_sel_hi:[1,0]")
                for x, r, t in q: e(f"v_rcp_f32 v{t}, v{t}")
                for x, r, t in q2: e(f"v_pk_mul_f32 {v(t,2)}, {v(t,2)}, {v(x,2)}")
            else:
                for x, r, t in q: e(f"v_add_f32 v{x}, v{x}, v{r}\nv_add_f32 v{r+16}, v{r+16}, v{r+32}")
                for x, r, t in q: e(f"v_add_f32 v{x}, v{x}, v{r+16}")
                for x, r, t in q: e(f"v_mul_f32 v{t}, v{x}, v{x}")
                for x, r, t in q: e(f"v_fma_f32 v{t}, v{t}, s90, v126")
                for x, r, t in q: e(f"v_mul_f32 v{t}, v{t}, v{x}")
                for x, r, t in q: e(f"v_exp_f32 v{t}, v{t}")
                for x, r, t in q: e(f"v_add_f32 v{t}, 1.0, v{t}")
                for x, r, t in q: e(f"v_rcp_f32 v{t}, v{t}")
                for x, r, t in q: e(f"v_mul_f32 v{t}, v{t}, v{x}")
            o = 56 + 8 * pr
            for i in range(4): e(f"v_cvt_pk_bf16_f32 v{o+i}, v{q[2*i][2]}, v{q[2*i+1][2]}")
            e(f"v_permlane16_swap_b32 v{o}, v{o+2}\nv_permlane16_swap_b32 v{o+1}, v{o+3}")
            e(f"buffer_store_dwordx4 {v(o,4)}, v{6+pr}, {SWS}, s86 offen sc1", "gs")
        if self.o["epifirst"]: self.sig(p, Y_EPI, 20)
        self.stamp(p)
        self.xmm(p)
        if not self.o["epifirst"]: self.sig(p, Y_EPI, 20)
        for ks in range(min(self.o["eb"], self.o["P2"])): p.ext(self.tr(2, ks))
        e("s_waitcnt vmcnt(0)")
        l = self.label("nolast")
        e(f"v_mov_b32 v20, 1\ns_mov_b64 exec, 1\nds_add_rtn_u32 v20, {VSY}, v20 offset:{4*Y_G}\ns_mov_b64 exec, -1\ns_waitcnt lgkmcnt(0)\nv_readfirstlane_b32 s79, v20")
        e(f"s_cmp_lg_u32 s79, 3\ns_cbranch_scc1 {l}")
        self.flag_store(p, "s89", "@")
        e(f"{l}:")
        self.stamp(p)
    def gemm2(self, p, spare):
        e = p.e; o = self.o
        GR, ns = 24, o['ns2']
        e(f"s_mul_i32 s86, {WV}, {48*10240}\ns_mul_i32 s51, {DT2}, 1280\ns_add_u32 s86, s86, s51\ns_add_u32 s86, s86, {GB}")
        e(f"s_mul_i32 s88, {DT2}, {80*4096}\ns_and_b32 s51, s95, 0xffffffc0\ns_add_u32 s88, s88, s51\ns_add_u32 s88, s88, {YT}")
        e(f"v_and_b32 v116, 15, {LANE}\nv_mul_u32_u24 v116, 1280, v116\nv_and_b32 v117, 16, {LANE}\nv_lshl_add_u32 v116, v117, 1, v116\nv_lshrrev_b32 v117, 5, {LANE}\nv_lshl_add_u32 v116, v117, 4, v116")
        e(f"s_and_b32 s51, {WV}, 1\ns_lshl_b32 s51, s51, 26\nv_add_u32 v109, s51, v115\nv_xor_b32 v115, 0x4000000, v109")
        nd = o["eb"]; nt = min(o["eb"], o["P2"])
        self.spin(p, Y_G, 4, 20)
        def more():
            nonlocal nd
            if nd >= RS: p.wlg(f"t2_{nd-RS}")
            p.ext(self.dma(2, nd)); nd += 1
            if nd == o["PS2"]: self.sig(p, Y_P2, 20)
        while nd < min(o["D2"], nt + o["lead2"]): more()
        while nt < o["P2"]:
            p.ext(self.tr(2, nt)); nt += 1
            if nd < o["D2"]: more()
        while nd < o["D2"]:
            p.wvm(f"w2_{nd-o['lead2']}"); more()
        self.stamp(p)
        self.spin(p, Y_F2, 1, 20, sleep=1)
        self.stamp(p)
        def ld(i):
            ks, di = divmod(i, 5); q = Prog()
            if di == 0: self.kk(q, 2, ks, "s76", 40960, "s86")
            q.e(f"buffer_load_dwordx4 {v(GR + 4 * (i % ns), 4)}, v19, {SWS}, s76 offen offset:{256*di} sc1", f"act{ks}_{di}")
            return q
        def mfma(ks, di, ss):
            c = self.acc2(di, ss); src = "0" if (ks == 0 and ss > 0) else c
            return f"v_mfma_f32_16x16x32_bf16 {c}, {v(GR + 4 * ((5*ks+di) % ns), 4)}, {a(16*(ks%4)+4*ss,4)}, {src}"
        yk = o["ychk"]; assert yk >= 9
        def extra(ks):
            pre = Prog(); post = Prog()
            if ks == o["ytrig"]: self.sig(post, Y_P3, 20)
            if ks == yk:
                self.spin(post, Y_F3, 1, 20, sleep=2)
                for di in range(5):
                    post.e(f"buffer_load_dwordx4 {a(4*di,4)}, v{115 if di & 1 else 109}, {SWS}, s88 offen sc1", f"y{di}")
                    post.e("s_add_u32 s88, s88, 65536")
            if ks in (0, 3, 7): self.stamp(post)
            return Prog(), pre, post
        self.gemm_loop(p, 2, 12, 5, ns, nd, nt, ld, mfma, extra)
        self.stamp(p)
        e(f"v_add_u32 v20, {RINGB}, {L16}")
        for t in (3, 2):
            for di in range(5): e(f"ds_write_b128 v20, {self.acc2(di,t)} offset:{(t-1)*5120+di*1024}", "r2w")
        for t in range(1, 4):
            e(f"s_xor_b32 s51, {WV}, {t}\ns_mul_i32 s51, s51, {RINGW}\ns_add_u32 s51, s51, {RING0 + (t-1)*5120}\nv_add_u32 v{20+t}, s51, {L16}")
        if o.get("fine2"): self.stamp(p)
        for di in range(5):
            p.wvm(f"y{di}")
            e(f"v_mfma_f32_16x16x32_bf16 {self.acc2(di,1)}, {a(4*di,4)}, v[124:127], {self.acc2(di,1)}")
        for di in range(5):
            e(f"v_mfma_f32_16x16x32_bf16 {self.acc2(di,0)}, {a(4*di,4)}, v[120:123], {self.acc2(di,0)}")
        for di in range(5): e(f"ds_write_b128 v20, {self.acc2(di,1)} offset:{di*1024}", "r2w")
        if o.get("fine2"): self.stamp(p)
        e("s_waitcnt lgkmcnt(0)\ns_barrier")
        if o.get("fine2"): self.stamp(p)
        for di in range(5):
            for t in range(3): e(f"ds_read_b128 {v(GR+12*di+4*t,4)}, v{21+t} offset:{di*1024}", f"r2r{di}")
        for di in range(5):
            c = 84 + 4 * di; r = GR + 12 * di
            p.wlg(f"r2r{di}")
            for hq in range(2): e(f"v_pk_add_f32 {v(r+2*hq,2)}, {v(r+2*hq,2)}, {v(r+4+2*hq,2)}\nv_pk_add_f32 {v(c+2*hq,2)}, {v(c+2*hq,2)}, {v(r+8+2*hq,2)}")
            for hq in range(2): e(f"v_pk_add_f32 {v(c+2*hq,2)}, {v(c+2*hq,2)}, {v(r+2*hq,2)}")
            for hq in range(2): e(f"v_cvt_pk_bf16_f32 v{104+2*di+hq}, v{c+2*hq}, v{c+2*hq+1}")
            if o["ow4"] and di < 4:
                if di & 1:
                    b = 104 + 2 * (di - 1)
                    e(f"v_permlane16_swap_b32 v{b}, v{b+2}\nv_permlane16_swap_b32 v{b+1}, v{b+3}")
                    e(f"buffer_store_dwordx4 {v(b,4)}, v116, {SOUT}, s94 offen offset:{32*(di-1)} {o['oflag']}", "os")
            else: e(f"buffer_store_dwordx2 {v(104+2*di,2)}, v18, {SOUT}, s94 offen offset:{32*di} {o['oflag']}", "os")
        self.stamp(p)

    def main(self):
        self.role = "main"
        p = Prog(); e = p.e
        self.main_start(p)
        if self.o["xk"] == -1: self.xload(p)
        for ks in range(self.o["pre1"]): p.ext(self.dma(1, ks))
        if self.o["xk"] == -2: self.xload(p)
        self.ln(p)
        e(f"s_setprio {self.o['mprio']}")
        if self.o.get("dly_w"): e(f"s_sleep {self.o['dly_w']}")
        if self.o["xk"] == 0: self.xload(p)
        for ks in range(self.o["pre1"], self.o["free1"]): p.ext(self.dma(1, ks))
        if self.o["xk"] == 1: self.xload(p)
        self.stamp(p)
        self.main_setup2(p)
        e(f"s_cmp_lt_u32 {IDX}, 30\ns_cbranch_scc1 L_g1")
        q = Prog()
        q.e("s_waitcnt vmcnt(0)")
        self.xmm(q)
        self.spin(q, Y_PUB, 2, 20, sleep=4)
        for ks in range(self.o["eb"]): q.ext(self.dma(2, ks))
        for ks in range(min(self.o["eb"], self.o["P2"])): q.ext(self.tr(2, ks))
        self.sig(q, Y_G, 20)
        q.e("s_waitcnt vmcnt(0) lgkmcnt(0)\ns_branch L_g2")
        for line in finalize(q).split("\n"):
            if line.strip(): e(line.strip() if line.strip().endswith(":") else "@" + line.strip())
        e("L_g1:")
        self.gemm1(p)
        self.gemm1_epi(p)
        e("L_g2:")
        self.gemm2(p, False)
        e(f"s_or_b32 s51, {WG}, {WV}\ns_cmp_lg_u32 s51, 0\ns_cbranch_scc1 L_noep")
        e(f"s_mov_b64 exec, 1\nbuffer_store_dword {VTAG}, {VZ}, {SWS}, 0 offen\ns_mov_b64 exec, -1")
        e("L_noep:")
        if self.o.get("gmin"):
            e(f"global_load_dword v30, {VZ}, s[46:47] sc1\ns_waitcnt vmcnt(0)\nv_readfirstlane_b32 s96, v30\ns_nop 1\ns_not_b32 s96, s96")
        if self.o.get("hold"):
            e(f"L_hold:\ns_memrealtime s[82:83]\ns_waitcnt lgkmcnt(0)\ns_sub_u32 s82, s82, s96\ns_cmp_lt_u32 s82, {self.o['hold']}\ns_cbranch_scc1 L_hold")
        self.finish(p)
        return p

    def red32(self, p, regs, tmp):
        for m in ("quad_perm:[1,0,3,2]", "quad_perm:[2,3,0,1]", "row_half_mirror", "row_mirror"):
            for r in regs: p.e(f"v_add_f32_dpp v{r}, v{r}, v{r} {m} row_mask:0xf bank_mask:0xf")
        for i, r in enumerate(regs): p.e(f"v_mov_b32 v{tmp+i}, v{r}")
        for i, r in enumerate(regs): p.e(f"v_permlane16_swap_b32 v{r}, v{tmp+i}")
        for i, r in enumerate(regs): p.e(f"v_add_f32 v{r}, v{r}, v{tmp+i}")
    RAW = [4, 5, 6, 7, 8, 12, 13, 14, 15, 16, 17, 18]
    def conv_start(self, p):
        e = p.e
        e(f"s_setprio {self.o['kprio']}\ns_mul_i32 {REGB}, s14, {REGSZ}\ns_add_u32 {REGB}, {REGB}, {REG0}")
        e("s_waitcnt lgkmcnt(0)")
    def serv_start(self, p):
        p.e("s_setprio 3")
        self.srd(p, 60, 40, 6291456)
    def ln(self, p):
        e = p.e
        RAW, F, D, T, H = 20, 30, 50, 70, 90
        inv = fbits(1.0 / 640)
        e(f"s_lshr_b32 s51, {WV}, 1\ns_mul_i32 s51, s51, {REGSZ}\ns_and_b32 s15, {WV}, 1\ns_mul_i32 s15, s15, {2*PT}\ns_add_u32 s51, s51, s15\ns_add_u32 s51, s51, {LNT}")
        e(f"v_mul_u32_u24 v102, {PT}, v120\nv_add_u32 v102, s51, v102\nv_lshl_add_u32 v101, v122, 3, v102\nv_lshl_add_u32 v100, v122, 4, v102")
        p.wvm("x")
        self.stamp(p)
        self.unpack(p, RAW, F, 10)
        def psum(src, dst):
            e(f"v_pk_add_f32 {v(dst,2)}, {v(src,2)}, {v(src+2,2)}\nv_pk_add_f32 {v(dst+2,2)}, {v(src+4,2)}, {v(src+6,2)}")
            for i in range(4, 10): e(f"v_pk_add_f32 {v(dst+2*(i&1),2)}, {v(dst+2*(i&1),2)}, {v(src+2*i,2)}")
            e(f"v_pk_add_f32 {v(dst,2)}, {v(dst,2)}, {v(dst+2,2)}\nv_add_f32 v{dst}, v{dst}, v{dst+1}")
        def psq(src, dst):
            e(f"v_pk_mul_f32 {v(dst,2)}, {v(src,2)}, {v(src,2)}\nv_pk_mul_f32 {v(dst+2,2)}, {v(src+2,2)}, {v(src+2,2)}")
            for i in range(2, 10): e(f"v_pk_fma_f32 {v(dst+2*(i&1),2)}, {v(src+2*i,2)}, {v(src+2*i,2)}, {v(dst+2*(i&1),2)}")
            e(f"v_pk_add_f32 {v(dst,2)}, {v(dst,2)}, {v(dst+2,2)}\nv_add_f32 v{dst}, v{dst}, v{dst+1}")
        def rstd(var, out):
            e(f"v_max_f32 v{var}, 0, v{var}")
            self.rbf(p, var); e(f"v_add_f32 v{var}, {fbits(1e-5)}, v{var}"); self.rbf(p, var)
            e(f"v_sqrt_f32 v{var}, v{var}"); self.rbf(p, var); e(f"v_rcp_f32 v{out}, v{var}")
        psum(F, T); self.red32(p, [T], T + 2)
        e(f"v_mul_f32 v{T}, {inv}, v{T}\nv_mov_b32 v{T+4}, v{T}"); self.rbf(p, T + 4)
        for i in range(10): e(f"v_pk_add_f32 {v(D+2*i,2)}, {v(F+2*i,2)}, {v(T+4,2)} op_sel_hi:[1,0] neg_lo:[0,1] neg_hi:[0,1]")
        e(f"v_sub_f32 v{T+5}, v{T}, v{T+4}")
        psq(D, T); self.red32(p, [T], T + 2)
        e(f"v_mul_f32 v{T}, {inv}, v{T}\nv_fma_f32 v{T}, -v{T+5}, v{T+5}, v{T}")
        rstd(T, T + 6)
        for i in range(10): e(f"v_pk_mul_f32 {v(D+2*i,2)}, {v(D+2*i,2)}, {v(T+6,2)} op_sel_hi:[1,0]")
        for i in range(10): e(f"v_cvt_pk_bf16_f32 v{RAW+i}, v{D+2*i}, v{D+2*i+1}")
        self.unpack(p, RAW, F, 10)
        psum(F, T); psq(F, T + 4); self.red32(p, [T, T + 4], T + 2)
        e(f"v_mul_f32 v{T}, {inv}, v{T}\nv_mul_f32 v{T+4}, {inv}, v{T+4}\nv_fma_f32 v{T+4}, -v{T}, v{T}, v{T+4}")
        self.rbf(p, T)
        rstd(T + 4, T + 6)
        e(f"v_mul_f32 v{T+2}, v{T}, v{T+6}\nv_lshrrev_b32 v{T+4}, 16, v{T+4}\nv_or_b32 v{T+4}, v{T+4}, v{T}")
        for i in range(10): e(f"v_pk_fma_f32 {v(D+2*i,2)}, {v(F+2*i,2)}, {v(T+6,2)}, {v(T+2,2)} op_sel_hi:[1,0,0] neg_lo:[0,0,1] neg_hi:[0,0,1]")
        e(f"ds_write_b32 v102, v{T+4} offset:1280", "lnw")
        for i in range(10): e(f"v_cvt_pk_bf16_f32 v{H+i}, v{D+2*i}, v{D+2*i+1}")
        e(f"ds_write_b128 v100, {v(H,4)}\nds_write_b128 v100, {v(H+4,4)} offset:512\nds_write_b64 v101, {v(H+8,2)} offset:1024", "lnw")
        self.sig(p, Y_LN, T)

    def serv(self):
        self.role = "serv"
        p = Prog(); e = p.e; o = self.o
        self.serv_start(p)
        self.stamp(p)
        e(f"v_bfe_u32 v12, {LANE}, 2, 2\nv_mul_u32_u24 v12, {PT}, v12\nv_lshrrev_b32 v13, 4, {LANE}\nv_lshl_add_u32 v12, v13, 5, v12")
        e(f"v_and_b32 v13, 3, {LANE}\nv_lshl_add_u32 v12, v13, 3, v12\nv_add_u32 v12, {LNT}, v12")
        e(f"s_mul_i32 s84, {WG}, 10240\ns_add_u32 s84, s84, {HB}\ns_add_u32 s85, s84, 4096\ns_add_u32 s86, s84, 8192")
        e(f"s_lshl_b32 s87, {WG}, 4\ns_add_u32 s87, s87, {STAT}\nv_lshlrev_b32 v13, 12, {LANE}")
        e(f"s_lshr_b32 s89, {WG}, 2\ns_lshl_b32 s89, s89, 7\ns_and_b32 s51, {WG}, 3\ns_lshl2_add_u32 s89, s51, s89\ns_add_u32 s89, s89, {F1}\nv_lshlrev_b32 v14, 7, {LANE}")
        e("s_waitcnt lgkmcnt(0)")
        self.mktag(p)
        e(f"ds_write_b32 {VSY}, {VTAG} offset:{4*Y_TAG}")
        self.spin(p, Y_LN, 4, 20, sleep=1)
        if self.o.get("dly_p"): e(f"s_sleep {self.o['dly_p']}")
        self.stamp(p)
        for b in range(11):
            e(f"ds_read_b64_tr_b16 {v(24+4*b,2)}, v12 offset:{128*b}\nds_read_b64_tr_b16 {v(26+4*b,2)}, v12 offset:{128*b+REGSZ}", f"lr{b}")
            if b >= 3:
                c = b - 3; p.wlg(f"lr{c}")
                e(f"buffer_store_dwordx4 {v(24+4*c,4)}, {L16}, {SWS}, s{84 + c//4} offen offset:{(c%4)*1024} sc1")
        for c in range(8, 10):
            p.wlg(f"lr{c}")
            e(f"buffer_store_dwordx4 {v(24+4*c,4)}, {L16}, {SWS}, s{84 + c//4} offen offset:{(c%4)*1024} sc1")
        p.wlg("lr10")
        e(f"s_mov_b64 exec, 3\nbuffer_store_dwordx4 v[64:67], v13, {SWS}, s87 offen sc1\ns_mov_b64 exec, -1")
        self.sig(p, Y_PUB, 20)
        self.stamp(p)
        e(f"s_mul_i32 s50, {DT2}, 80\ns_lshr_b32 s50, s50, 6\ns_mul_i32 s92, s50, {24*128}\ns_add_u32 s92, s92, {F2}")
        e(f"v_min_u32 v15, 47, {LANE}\nv_lshlrev_b32 v15, 7, v15\nv_min_u32 v16, 29, {LANE}\nv_lshlrev_b32 v16, 7, v16")
        e(f"s_mul_i32 s93, {DT2}, {30*128}\ns_add_u32 s93, s93, {F3}")
        e("s_waitcnt vmcnt(0)")
        if self.o.get("dly_f"):
            self.sig(p, Y_PUB, 20); e(f"s_sleep {self.o['dly_f']}")
        self.flag_store(p, "s89")
        self.sig(p, Y_PUB, 20)
        self.stamp(p)
        e(f"s_cmp_lt_u32 {IDX}, 30\ns_cbranch_scc1 L_s1")
        e(f"v_lshrrev_b32 v17, 3, {LANE}\nv_lshlrev_b32 v17, 12, v17\nv_and_b32 v18, 7, {LANE}\nv_lshl_add_u32 v17, v18, 7, v17")
        e(f"s_lshl_b32 s88, {SUB}, 10\ns_and_b32 s51, {IDX}, 1\ns_lshl_b32 s51, s51, 15\ns_add_u32 s88, s88, s51\ns_and_b32 s51, {XCD}, 1\ns_lshl_b32 s51, s51, 16\ns_add_u32 s88, s88, s51")
        if o["slow"]:
            e(f"v_lshlrev_b32 v18, 12, {LANE}\ns_lshl_b32 s87, {SUB}, 10\ns_add_u32 s87, s87, 384\ns_and_b32 s51, {IDX}, 1\ns_lshl_b32 s51, s51, 18\ns_add_u32 s87, s87, s51")
            for i in range(12): e(f"buffer_load_dword v{70+i}, v18, {SW2}, s87 offen\ns_add_u32 s87, s87, {128*4096}")
        for i in range(o["nsp"]):
            e(f"buffer_load_dword v{24+i}, v17, {SW2}, s88 offen\ns_add_u32 s88, s88, 131072")
        e("s_waitcnt vmcnt(0)\ns_branch L_s2\nL_s1:")
        self.inverse_addr(p)
        self.spin(p, Y_P1, 1, 20, sleep=2)
        self.stamp(p)
        e(f"s_mov_b32 s50, {F1}")
        self.poll(p, "v14", "s50", 20, wide=True, sleep=o["psleep"])
        self.sig(p, Y_F1, 20)
        self.stamp(p)
        if self.debug: e(f"v_writelane_b32 {VDBG}, s78, 31")
        self.inverse(p)
        e("L_s2:")
        self.spin(p, Y_P2, 1, 20, sleep=4)
        self.stamp(p)
        self.poll(p, "v15", "s92", 20, sleep=o["psleep2"])
        self.sig(p, Y_F2, 20)
        self.stamp(p)
        if self.debug: e(f"v_writelane_b32 {VDBG}, s78, 30")
        self.spin(p, Y_P3, 1, 20, sleep=4)
        if o["sp3"]:
            e("s_add_u32 s94, s48, s93\ns_addc_u32 s95, s49, 0\ns_mov_b32 s78, 0\ns_branch L_sp3f\nL_sp3:")
            e(f"s_sleep {o['sp3']}\nL_sp3f:")
            for i in range(30): e(f"s_load_dword s{16+i}, s[94:95], {128*i} glc")
            e("s_add_u32 s78, s78, 1\ns_waitcnt lgkmcnt(0)")
            e(f"s_xor_b32 s79, s16, {TAG}")
            for i in range(1, 30): e(f"s_xor_b32 s51, s{16+i}, {TAG}\ns_or_b32 s79, s79, s51")
            e("s_cmp_gt_u32 s78, 0x8000\ns_cbranch_scc1 L_sp3d\ns_cmp_lg_u32 s79, 0\ns_cbranch_scc1 L_sp3\nL_sp3d:")
        else: self.poll(p, "v16", "s93", 20, sleep=o["psleep2"])
        self.sig(p, Y_F3, 20)
        if self.debug: e(f"v_writelane_b32 {VDBG}, s78, 29")
        self.finish(p)
        return p

    def kgen(self, p):
        e = p.e; RAW = self.RAW
        L2E = 1.4426950408889634
        l2e_hi = struct.unpack("<f", struct.pack("<f", L2E))[0]; l2e_lo = L2E - l2e_hi
        VDT, VD1, VD2, VDS, WA, RA, RB = 54, 55, 56, 57, 58, 59, 60
        e(f"s_and_b32 s51, {CH}, 1\ns_lshl_b32 s51, s51, 4\ns_lshr_b32 s80, s80, s51\ns_lshl_b32 s80, s80, 16\ns_lshr_b32 s81, s81, s51\ns_lshl_b32 s81, s81, 16")
        e(f"v_mov_b32 v62, s80\nv_mov_b32 v63, {fbits(l2e_hi)}\nv_mul_f32 v64, v62, v63\nv_fma_f32 v65, v62, v63, -v64\nv_fmac_f32 v65, {fbits(l2e_lo)}, v62")
        e(f"v_exp_f32 v64, v64\nv_mul_f32 v65, {fbits(0.6931471805599453)}, v65\nv_fma_f32 v{VDT}, v64, v65, v64")
        self.rbf(p, VDT)
        e(f"v_mul_f32 v{VD1}, {fbits(L2E)}, v{VDT}\nv_mul_f32 v{VD2}, 0.15915494, v{VDT}")
        e(f"v_cmp_eq_u32 vcc, 0, {LANE}\nv_mov_b32 v62, s81\nv_cndmask_b32 v{VDS}, 0, v62, vcc")
        e(f"s_mov_b32 m0, {REGB}")
        e(f"v_and_b32 v62, 31, {LANE}\nv_lshrrev_b32 v63, 5, {LANE}\nv_lshlrev_b32 v63, 4, v63\nv_add_u32 v63, {REGB}, v63")
        e(f"v_mul_u32_u24 v64, {KP}, v62\nv_add_u32 v{RB}, v64, v63")
        e(f"v_min_u32 v62, 20, v62\nv_mul_u32_u24 v64, {KP}, v62\nv_add_u32 v{RA}, v64, v63")
        e("v_mov_b32 v28, 0x3f80")
        e("s_waitcnt vmcnt(0)")
        self.stamp(p)
        PK = 116; pk = [0]; P = 62
        FA, FB = 16, 48
        def mf(rd):
            l = []
            for s in range(8):
                q = Prog()
                c = a(0, 16)
                q.e(f"v_mfma_f32_32x32x16_bf16 {a(0,16)}, {a(FA+4*s,4)}, {a(FB+4*s,4)}, {c}")
                l.append(q)
            return l
        p.e("s_mov_b32 s76, 0\nL_kg:")
        for rd in (1,):
            usepk = self.o["pk"]
            q = Prog(); e = q.e
            def cmul(sets):
                if usepk:
                    for d, x, y in sets: e(f"v_pk_mul_f32 {v(d,2)}, {v(x,2)}, {v(y,2)} op_sel_hi:[0,1]")
                    for d, x, y in sets: e(f"v_pk_fma_f32 {v(d,2)}, {v(x,2)}, {v(y,2)}, {v(d,2)} op_sel:[1,1,0] op_sel_hi:[1,0,1] neg_lo:[1,0,0]")
                else:
                    for d, x, y in sets: e(f"v_mul_f32 v{d}, v{x}, v{y}\nv_mul_f32 v{d+1}, v{x}, v{y+1}")
                    for d, x, y in sets: e(f"v_fma_f32 v{d}, -v{x+1}, v{y+1}, v{d}\nv_fmac_f32 v{d+1}, v{x+1}, v{y}")
            def puts(l, neg):
                rs = []
                for row, z in l:
                    r = PK + pk[0] % 8; pk[0] += 1; rs.append(r)
                    e(f"v_cvt_pk_bf16_f32 v{r}, v{z}, {'-' if neg else ''}v{z+1}")
                for (row, z), r in zip(l, rs): e(f"ds_write_addtid_b32 v{r} offset:{row*KP}", "kw")
            for i in range(6):
                e(f"v_lshlrev_b32 v{P+i}, 16, v{RAW[2*i]}\nv_alignbit_b32 v{RAW[2*i]}, v{RAW[2*i+1]}, v{RAW[2*i]}, 16")
            AR, AI = 68, 69
            e(f"v_mul_f32 v{AR}, v{P}, v{VD1}\nv_mul_f32 v{AI}, v{P+1}, v{VD2}")
            e(f"v_mul_f32 v{P+2}, v{P+2}, v{VDT}\nv_mul_f32 v{P+3}, v{P+3}, v{VDT}")
            E1, E8, E256 = 70, 72, 74
            TM_, TA = 76, 79
            for i, t in enumerate((1.0, 8.0, 256.0)):
                if i == 0: e(f"v_mov_b32 v{TM_}, v{AR}\nv_fract_f32 v{TA}, v{AI}")
                else: e(f"v_mul_f32 v{TM_+i}, {fbits(t)}, v{AR}\nv_mul_f32 v{TA+i}, {fbits(t)}, v{AI}\nv_fract_f32 v{TA+i}, v{TA+i}")
            X = 82
            cmul([(X, P + 4, P + 2)])
            for i in range(3):
                e(f"v_exp_f32 v{TM_+i}, v{TM_+i}\nv_cos_f32 v{E1+2*i}, v{TA+i}\nv_sin_f32 v{E1+2*i+1}, v{TA+i}")
            for i in range(3): e(f"v_mul_f32 v{E1+2*i}, v{E1+2*i}, v{TM_+i}\nv_mul_f32 v{E1+2*i+1}, v{E1+2*i+1}, v{TM_+i}")
            E2, E4, E16, E512 = 98, 100, 102, 104
            EA, EB, E32, Y, Z = 106, 20, 114, 30, 38
            cmul([(E2, E1, E1), (E16, E8, E8), (E512, E256, E256), (X + 2, X, E1)])
            cmul([(E4, E2, E2), (EA + 6, E16, E8), (E32, E16, E16), (X + 4, X, E2), (X + 6, X + 2, E2)])
            p.ext(q)
            p.e("s_waitcnt lgkmcnt(0)")
            q = Prog(); e = q.e
            e(f"ds_write_addtid_b32 v28", "kw")
            puts([(1, E8), (2, E16), (3, EA + 6), (4, E32)], False)
            cmul([(EB, E8, E32), (EB + 2, E16, E32), (EB + 4, EA + 6, E32), (EB + 6, E32, E32)])
            cur, nxt = EB, EA
            extra = [[(X + 8 + 2 * i, X + 2 * i, E4) for i in range(4)], [(Y + 2 * i, X + 4 * i, E256) for i in range(4)],
                     [(Z, X, E512), (Z + 2, X + 8, E512), (Z + 4, Y, E512), (Z + 6, Y + 4, E512)],
                     [(Z + 8, Z, E512), (Z + 10, Z + 4, E512)], [(Z + 12, Z + 8, E512), (Z + 14, Z + 10, E512)], [(E1, Z + 12, E512)]]
            for st in range(6):
                j0 = 9 + 4 * st
                n = min(4, 32 - j0)
                cmul([(nxt + 2 * i, cur + 2 * i, E32) for i in range(n)])
                puts([(j0 - 4 + i, cur + 2 * i) for i in range(4)], False)
                cmul(extra[st])
                cur, nxt = nxt, cur
            puts([(29 + i, cur + 2 * i) for i in range(3)], False)
            if rd > 0: p.ext(interleave(q, mf(rd - 1)))
            else: p.ext(q)
            for s_ in range(8): p.e(f"ds_read_b128 {a(FB+4*s_,4)}, v{RB} offset:{s_*32}", "kr")
            e = p.e
            puts([(i, X + 2 * i) for i in range(4)], True); puts([(4 + i, X + 8 + 2 * i) for i in range(4)], True)
            puts([(8 + i, Y + 2 * i) for i in range(4)], True); puts([(12 + i, Z + 2 * i) for i in range(4)], True)
            puts([(16 + i, Z + 8 + 2 * i) for i in range(4)] + [(20, E1)], True)
            for s_ in range(8): p.e(f"ds_read_b128 {a(FA+4*s_,4)}, v{RA} offset:{s_*32}", "kr")
            p.e("s_cmp_lg_u32 s76, 0\ns_cbranch_scc1 L_kg1")
            for i in range(16): p.e(f"v_accvgpr_write_b32 a{i}, 0")
            p.e("L_kg1:")
            if self.debug: p.e(f"s_memrealtime s[82:83]\ns_waitcnt lgkmcnt(0)\ns_add_u32 s50, s76, 20\nv_mov_b32 v61, s82\nv_cmp_eq_u32 vcc, s50, {LANE}\nv_cndmask_b32 {VDBG}, {VDBG}, v61, vcc")
            kp = self.o["kpause"]
            if kp == 9:
                p.e(f"ds_read_b32 v61, {VSY} offset:{4*Y_PUB}\ns_waitcnt lgkmcnt(0)\nv_readfirstlane_b32 s79, v61\ns_cmp_lt_u32 s79, 2\ns_cbranch_scc1 L_kg2\ns_cmp_eq_u32 s76, 0\ns_cbranch_scc1 L_kg2")
                self.spin(p, self.o["kword"], 1, 61, sleep=4)
                p.e("L_kg2:")
            elif kp:
                p.e(f"s_cmp_lg_u32 s76, {kp - 1}\ns_cbranch_scc1 L_kg2")
                self.spin(p, self.o["kword"], 1, 61, sleep=4)
                p.e("L_kg2:")
            p.e("s_add_u32 s76, s76, 1\ns_cmp_lt_u32 s76, 3\ns_cbranch_scc1 L_kg")
        e = p.e
        e(f"v_and_b32 v62, 31, {LANE}\nv_lshrrev_b32 v63, 5, {LANE}\ns_add_u32 s51, {REGB}, {KCO}")
        e(f"v_lshlrev_b32 v64, 4, v62\nv_lshl_add_u32 v64, v63, 3, v64\nv_add_u32 v64, s51, v64")
        e(f"v_cmp_eq_u32 vcc, 0, v63\nv_lshlrev_b32 v65, 3, v62\nv_add_u32 v65, 512, v65\nv_lshlrev_b32 v66, 2, v62\nv_add_u32 v66, 768, v66")
        e(f"v_cndmask_b32 v65, v66, v65, vcc\nv_add_u32 v65, s51, v65\nv_mov_b32 v66, 128\nv_cndmask_b32 v66, v66, 4, vcc\nv_add_u32 v66, v65, v66")
        e(f"v_lshlrev_b32 v67, 1, v62\nv_lshl_add_u32 v67, v63, 8, v67\nv_add_u32 v67, s51, v67")
        self.spin(p, Y_PUB, 1, 68)
        for q in mf(2): p.ext(q)
        e(f"v_mov_b32 v76, 0\nv_mov_b32 v77, 0\nv_mov_b32 v78, 0\nv_mov_b32 v79, 0\nv_add_u32 v15, {REGB}, {L16}")
        for i in range(4): e(f"ds_write_b128 v15, v[76:79] offset:{R0O + 1024*i}", "kc")
        e("s_mov_b64 exec, 3")
        e(f"ds_write_b128 v15, v[76:79] offset:{KCO - 32}", "kc")
        e("s_mov_b32 exec_lo, -1")
        e(f"ds_write_b128 v15, v[76:79] offset:{UO}", "kc")
        e("s_mov_b64 exec, -1")
        blocks = [(-2, 34, 8), (32, 32, 4)]
        info = []
        for bi, (v0, nl, stride) in enumerate(blocks):
            cis = lambda y: y if y < 0 else ci(y)
            base = cis(8 * v0)
            offs = {}
            for t in range(-1, 8):
                o = [cis(8 * (v0 + l) + 7 - t) - (base + stride * l) for l in range(nl)]
                offs[t] = o[0]
                assert all(x == o[0] for x in o)
            AD = 100 + 2 * bi
            e(f"s_add_u32 s51, {REGB}, {KCO + 2*base}\nv_mul_u32_u24 v{AD}, {2*stride}, {LANE}\nv_add_u32 v{AD}, s51, v{AD}")
            e(f"s_add_u32 s51, {REGB}, {(75 - v0) * 16}\nv_sub_u32 v{AD+1}, s51, {L16}")
            info.append(offs)
        e(f"v_cmp_gt_u32 vcc, 16, {LANE}\nv_mov_b32 v104, 563\nv_mov_b32 v105, 512\nv_cndmask_b32 v104, v104, v105, vcc\nv_add_u32 v104, v104, {LANE}")
        e(f"v_mov_b32 v106, 1011\nv_cndmask_b32 v105, v106, v105, vcc\nv_add_u32 v105, v105, {LANE}\nv_cvt_f32_u32 v105, v105\nv_cvt_pk_bf16_f32 v105, v105, v105\nv_and_b32 v105, 0xffff, v105")
        e(f"s_sub_u32 s51, {REGB}, {2*0x4280 - KCO}\nv_lshl_add_u32 v105, v105, 1, s51")
        e(f"s_add_u32 s51, {REGB}, {2*607}\nv_lshlrev_b32 v104, 1, v104\nv_sub_u32 v104, s51, v104")
        e(f"v_add_u32 v107, 1, {LANE}\nv_and_b32 v107, 0x7e, v107\ns_add_u32 s51, {REGB}, 4096\nv_sub_u32 v107, s51, v107\nv_and_b32 v106, 1, {LANE}")
        e(f"v_mul_u32_u24 v108, 192, v106\nv_add_u32 v108, v107, v108\nv_mul_u32_u24 v106, 272, v106\nv_add_u32 v107, v107, v106\nv_lshl_add_u32 v106, {LANE}, 1, {REGB}")
        for i in range(12): e(f"v_accvgpr_read_b32 v{82+i}, a{i}")
        e(f"v_add_f32 v82, v82, v{VDS}")
        for i in range(6): e(f"v_cvt_pk_bf16_f32 v{70+i}, v{82+2*i}, v{83+2*i}")
        e(f"ds_write_b64 v64, v[70:71]\nds_write_b32 v65, v72\nds_write_b32 v66, v73\nds_write_b16 v67, v74 offset:1024", "kc")
        e("s_mov_b32 exec_hi, 0")
        e(f"ds_write_b16_d16_hi v67, v74 offset:{1024+64}\nds_write_b16 v67, v75 offset:{1024+128}\nds_write_b16_d16_hi v67, v75 offset:{1024+192}", "kc")
        e("s_mov_b64 exec, -1")
        vrs = []
        for bi, (v0, nl, stride) in enumerate(blocks):
            RR = 20 + 9 * bi; AD = 100 + 2 * bi; offs = info[bi]
            e(f"s_mov_b32 exec_hi, {(1 << (nl - 32)) - 1}")
            seen = {}; vr = {}
            for t in range(-1, 8):
                o = offs[t]
                if o not in seen:
                    seen[o] = RR + len(seen)
                    e(f"ds_read_u16 v{seen[o]}, v{AD} offset:{2*o}", f"kx{bi}")
                vr[t] = seen[o]
            vrs.append(vr)
        e("ds_read_u16 v40, v105", "kq")
        e("s_mov_b64 exec, -1")
        for i in range(2):
            e(f"ds_read_u16 v{41+i}, v106 offset:{KCO + 2*(388 + 64*i)}\nds_read_u16 v{43+i}, v106 offset:{KCO + 2*(514 + 64*i)}", "kq")
        for bi, (v0, nl, stride) in enumerate(blocks):
            AD = 100 + 2 * bi; O = 70 + 8 * bi; vr = vrs[bi]
            p.wlg(f"kx{bi}")
            for i in range(4): e(f"v_lshl_or_b32 v{O+i}, v{vr[2*i+1]}, 16, v{vr[2*i]}")
            for i in range(4): e(f"v_lshl_or_b32 v{O+4+i}, v{vr[2*i]}, 16, v{vr[2*i-1]}")
            e(f"s_mov_b32 exec_hi, {(1 << (nl - 32)) - 1}")
            e(f"ds_write_b128 v{AD+1}, {v(O,4)} offset:{R0O}\nds_write_b128 v{AD+1}, {v(O+4,4)} offset:{R1O}", "kt")
            e("s_mov_b64 exec, -1")
        p.wlg("kq")
        e(f"ds_write_b16 v107, v41 offset:{Q2O - 4096 + 2*94}\nds_write_b16 v108, v43 offset:{Q3O - 4096 + 2*63}\nds_write_b16 v108, v43 offset:{Q3O - 4096 + 384 + 2*64}", "kt")
        e(f"s_mov_b32 exec_hi, {(1 << 31) - 1:#x}\nds_write_b16 v108, v44 offset:{Q3O - 4096 + 2*31}\nds_write_b16 v108, v44 offset:{Q3O - 4096 + 384 + 2*32}", "kt")
        e(f"s_mov_b32 exec_hi, {(1 << 29) - 1:#x}\nds_write_b16 v107, v42 offset:{Q2O - 4096 + 2*62}", "kt")
        e(f"s_mov_b32 exec_hi, 0\ns_mov_b32 exec_lo, 0x01ff3fff\nds_write_b16 v104, v40 offset:{R0O}\nds_write_b16 v104, v40 offset:{R1O + 2}\ns_mov_b64 exec, -1", "kt")

    def conv_setup(self, p):
        e = p.e
        e(f"v_lshrrev_b32 v32, 4, {LANE}\nv_and_b32 v31, 15, {LANE}\nv_bfe_u32 v33, {LANE}, 1, 3\nv_lshlrev_b32 v34, 2, v32\nv_sub_u32 v34, v34, v33")
        e(f"v_and_b32 v33, 1, {LANE}\nv_xor_b32 v33, 1, v33\nv_mul_u32_u24 v33, {(R1O - R0O)//4 + 1}, v33\nv_add_u32 v34, v34, v33")
        e(f"s_add_u32 s51, {REGB}, {R0O + 4*7}\nv_lshl_add_u32 v24, v34, 2, s51\nv_add_u32 v25, 512, v24")
        e(f"v_lshlrev_b32 v33, 3, v32\nv_lshlrev_b32 v34, 2, v31\nv_sub_u32 v26, v33, v34\ns_add_u32 s51, {REGB}, {Q2O + 60}\nv_add_u32 v26, s51, v26")
        e(f"v_lshlrev_b32 v34, 1, v31\nv_sub_u32 v27, v33, v34\nv_and_b32 v34, 1, v31\nv_mul_u32_u24 v34, 386, v34\nv_sub_u32 v27, v27, v34\ns_add_u32 s51, {REGB}, {Q3O + 384 + 32}\nv_add_u32 v27, s51, v27")
        for m in list(range(17)) + [18]:
            off = (18 - m) * 16; ad = 24; r = 4 * min(m, 17)
            if off >= 128: off -= 128; ad = 25
            e(f"ds_read2_b32 {a(r,2)}, v{ad} offset0:{off} offset1:{off+1}\nds_read2_b32 {a(r+2,2)}, v{ad} offset0:{off+2} offset1:{off+3}", "pf")
        for j in range(6): e(f"ds_read2_b32 {a(72+4*j,2)}, v26 offset0:{8*j} offset1:{8*j+1}\nds_read2_b32 {a(74+4*j,2)}, v26 offset0:{68+8*j} offset1:{68+8*j+1}", "pf")
        for j in range(4): e(f"ds_read2_b32 {a(96+4*j,2)}, v27 offset0:{8*j} offset1:{8*j+1}\nds_read2_b32 {a(98+4*j,2)}, v27 offset0:{48+8*j} offset1:{48+8*j+1}", "pf")
        e(f"v_lshl_add_u32 v34, v31, 1, v32\ns_add_u32 s51, {REGB}, {UO + 16*2}\nv_lshl_add_u32 v16, v34, 4, s51")
        e(f"v_add_u32 v34, v31, v32\ns_add_u32 s51, {REGB}, {UO + 512 - 48}\nv_lshl_add_u32 v12, v34, 4, s51")
        e(f"v_and_b32 v34, 1, v32\nv_lshlrev_b32 v34, 9, v34\nv_lshl_add_u32 v34, v31, 5, v34\nv_lshrrev_b32 v32, 1, v32\nv_lshl_add_u32 v17, v32, 4, v34")
        e(f"s_lshl_b32 s86, {CH}, 12\ns_add_u32 s86, s86, {YT}\ns_mul_i32 s89, {DT}, 24\ns_add_u32 s89, s89, {FT}\ns_lshl_b32 s89, s89, 7\ns_add_u32 s89, s89, {F3}\ns_sub_u32 s88, {NCH}, 1")
    def boxes(self, p):
        e = p.e
        e("v_mov_b32 v23, 0x3f80")
        e(f"v_and_b32 v124, 15, {LANE}\nv_lshrrev_b32 v125, 4, {LANE}\nv_lshlrev_b32 v125, 3, v125\ns_mov_b32 s50, 0x8001\ns_mov_b32 s51, 0x10001")
        for bi, (c_, h_) in enumerate(((8, 2), (12, 1), (8, 4), (8, 3))):
            e(f"v_mov_b32 v126, {((1 << (2*h_+1)) - 1) << (c_ - h_):#x}\nv_lshlrev_b32 v126, v124, v126\nv_lshrrev_b32 v126, v125, v126")
            for q in range(4):
                e(f"v_bfe_u32 v127, v126, {2*q}, 2\nv_mul_u32_u24 v127, s50, v127\nv_and_b32 v127, s51, v127\nv_mul_u32_u24 v127, v23, v127\nv_accvgpr_write_b32 a{112+4*bi+q}, v127")
        self.stamp(p)
        self.spin(p, Y_UR, 1, 22, sleep=2)
        e(f"ds_read_b32 {VTAG}, {VSY} offset:{4*Y_TAG}", "tag")
        self.stamp(p)
    def inverse_addr(self, p):
        e = p.e
        e(f"v_lshrrev_b32 v20, 4, {LANE}\nv_lshlrev_b32 v20, 10, v20\nv_and_b32 v21, 3, {LANE}\nv_lshl_add_u32 v20, v21, 4, v20\nv_and_b32 v21, 12, {LANE}")
        for q in range(4):
            e(f"v_add_u32 v22, {16*(q&1)}, v21\nv_bfe_u32 v22, s{74 + q//2}, v22, 4\nv_lshl_add_u32 v{4+q}, v22, 6, v20")
        e(f"s_mov_b32 s84, {STAT}\ns_mov_b32 s85, {STAT+4096}")
    def inverse(self, p):
        e = p.e
        S2, M2, SF, MF = 24, 40, 56, 88
        for q in range(4):
            e(f"buffer_load_dwordx4 {v(S2+4*q,4)}, v{4+q}, {SWS}, s84 offen sc1", "u")
            e(f"buffer_load_dwordx4 {v(M2+4*q,4)}, v{4+q}, {SWS}, s85 offen sc1", "u")
        e(f"s_setprio {self.o['iprio']}")
        p.wvm("u")
        self.unpack(p, S2, SF, 16); self.unpack(p, M2, MF, 16)
        for q in range(4):
            self.spin(p, Y_U + q, 4, 22, sleep=(2 if q < 3 else 1))
            for c in range(3): e(f"ds_read_b128 {v(24+4*c,4)}, v{4+q} offset:{REG0 + c*REGSZ + UO + 512}", f"ur{q}{c}")
            for c in range(3):
                p.wlg(f"ur{q}{c}")
                self.unpack(p, 24 + 4 * c, 40, 4)
                for i in range(8): e(f"v_fma_f32 v{40+i}, v{40+i}, v{SF+8*q+i}, v{MF+8*q+i}")
                o = 48 + 4 * (c & 1)
                for i in range(4): e(f"v_cvt_pk_bf16_f32 v{o+i}, v{40+2*i}, v{41+2*i}")
                e(f"ds_write_b128 v{4+q}, {v(o,4)} offset:{REG0 + c*REGSZ + UO + 512}", "uw")
        self.sig(p, Y_UR, 20)
        e("s_setprio 3")
    def conv(self, p):
        e = p.e
        YO, ACC, DT_, PKD = 17, 64, 116, 124
        slots = [24 + 4 * i for i in range(10)] + [96 + 4 * i for i in range(5)]
        slots = slots[:self.o["cns"]]; NS = len(slots)
        R = lambda n: v(slots[n % NS], 4)
        F = []
        for ph in range(8):
            for d in range(8):
                l = [(d + mu, 4 * (8 * mu + ph)) for mu in range(2) if d + mu <= 7]
                if ph == 0 and d <= 5: l.append((d + 2, 64))
                if ph == 0 and d <= 3: l.append((d + 4, 68))
                F.append((f"v16 offset:{512*d + (7-ph)*64}", l))
        S = []
        for st in range(4):
            S.append(([f"v16 offset:{16*(27 + 32*st)}", f"v16 offset:{16*(28 + 32*st)}"], 120, [(I, 96 + 4 * (st - I + 7)) for I in range(4, 8) if st <= I - 4]))
        for st in range(12):
            S.append(([f"v12 offset:{256*st}"], 112, [(I, 72 + 4 * (st - 2 * I + 8)) for I in range(2, 8) if 2 * I - 8 <= st <= 2 * I - 3]))
        loads = []; steps = []
        def ld(addr): loads.append(addr); return len(loads) - 1
        for i, (ad, box, l) in enumerate(S):
            ids = [ld(x) for x in ad]
            steps.append(("box", ids, box))
            for k in range(3): steps.append(("F", [ld(F[4*i+k][0])], F[4*i+k][1]))
            steps.append(("cvt", [], None))
            steps.append(("F", [ld(F[4*i+3][0])], F[4*i+3][1]))
            steps.append(("S", [], l))
        first = set(); nl = [0]
        def issue(upto):
            while nl[0] < min(upto, len(loads)):
                e(f"ds_read_b128 {R(nl[0])}, {loads[nl[0]]}", f"cj{nl[0]}"); nl[0] += 1
        def mm(I, A, B):
            acc = v(ACC + 4 * I, 4); src = acc if I in first else "0"; first.add(I)
            e(f"v_mfma_f32_16x16x32_bf16 {acc}, {A}, {B}, {src}")
        if self.o.get("dly_c"): e(f"s_sleep {self.o['dly_c']}")
        issue(NS)
        if self.o["cwait"]: self.spin(p, Y_EPI, self.o["cwait"], 22, sleep=1)
        e(f"s_setprio {self.o['cprio0']}")
        self.stamp(p)
        for si, (kind, ids, arg) in enumerate(steps):
            if si == self.o["cswitch"]: e(f"s_setprio {self.o['cprio']}")
            if ids: p.wlg(f"cj{ids[-1]}")
            if kind == "box":
                e(f"v_mfma_f32_16x16x32_bf16 {v(DT_,4)}, {R(ids[0])}, {a(arg,4)}, 0")
                issue(ids[0] + NS)
                e(f"v_mfma_f32_16x16x32_bf16 {v(DT_+4,4)}, {R(ids[-1])}, {a(arg+4,4)}, 0")
            elif kind == "F":
                for i, (I, kf) in enumerate(arg):
                    mm(I, a(kf, 4), R(ids[0]))
                    if i == 0: issue(ids[0] + NS)
            elif kind == "cvt":
                for i in range(4): e(f"v_cvt_pk_bf16_f32 v{PKD+i}, v{DT_+2*i}, v{DT_+2*i+1}")
            else:
                for I, kf in arg: mm(I, v(PKD, 4), a(kf, 4))
        for k in range(4):
            o = 24 + 4 * k
            for i in range(4): e(f"v_cvt_pk_bf16_f32 v{o+i}, v{ACC+8*k+2*i}, v{ACC+8*k+2*i+1}")
            e(f"v_permlane16_swap_b32 v{o}, v{o+2}\nv_permlane16_swap_b32 v{o+1}, v{o+3}")
            e(f"buffer_store_dwordx4 {v(o,4)}, v{YO}, {SWS}, s86 offen offset:{1024*k} sc1", "ys")
        self.stamp(p)
        e("s_waitcnt vmcnt(0)")
        e(f"v_mov_b32 v20, 1\ns_mov_b64 exec, 1\nds_add_rtn_u32 v20, {VSY}, v20 offset:{4*Y_Y}\ns_mov_b64 exec, -1\ns_waitcnt lgkmcnt(0)\nv_readfirstlane_b32 s79, v20")
        e(f"s_cmp_lg_u32 s79, s88\ns_cbranch_scc1 L_ynl")
        self.flag_store(p, "s89")
        e("L_ynl:")
    def convw(self):
        self.role = "conv"
        p = Prog(); e = p.e
        self.conv_start(p)
        self.stamp(p)
        if not self.o.get("skip_kgen"): self.kgen(p)
        else: self.stamp(p)
        self.stamp(p)
        if self.o.get("dly_k"): e(f"s_sleep {self.o['dly_k']}")
        self.conv_setup(p)
        e("s_setprio 0")
        self.boxes(p)
        self.conv(p)
        self.finish(p)
        return p

    def build(self):
        p = Prog(); self.prologue(p)
        p.ext(self.main())
        body = finalize(p)
        q = Prog(); q.e("L_aux:")
        q.e(f"s_cmp_eq_u32 {WV}, 7\ns_cbranch_scc1 L_serv"); q.ext(self.convw())
        body += finalize(q)
        q = Prog(); q.e("L_serv:"); q.ext(self.serv()); q.e("L_end:\nL_last:\ns_endpgm")
        body += finalize(q)
        body = body.replace("@", "")
        ref = open("cdna_kernels/" + NAME + ".s.ref").read()
        head = [l for l in ref.split("\n") if l.startswith(";") and "@launch" not in l]
        k = NAME + "_kernel"
        s = "\n".join(head) + f"\n; @launch grid=(256,1,1) block=(512,1,1) lds={LDS_BYTES}\n"
        s += f'.amdgcn_target "amdgcn-amd-amdhsa--gfx950"\n.text\n.globl {k}\n.p2align 8\n.type {k},@function\n{k}:\n'
        s += body
        s += f""".section .rodata,"a"
.p2align 6
.amdhsa_kernel {k}
  .amdhsa_next_free_vgpr 256
  .amdhsa_next_free_sgpr 102
  .amdhsa_accum_offset 128
  .amdhsa_group_segment_fixed_size 0
  .amdhsa_kernarg_size 136
  .amdhsa_user_sgpr_count 2
  .amdhsa_user_sgpr_kernarg_segment_ptr 1
  .amdhsa_system_sgpr_workgroup_id_x 1
.end_amdhsa_kernel
"""
        return s

if __name__ == "__main__":
    out = sys.argv[1]
    kw = eval("dict(" + (sys.argv[2] if len(sys.argv) > 2 else "") + ")")
    open(out, "w").write(G(**kw).build())
```

```python
import sys, struct
from asmlib import Prog, interleave, finalize

NAME = "parallel_sum__ssm_conv_s4__mixer_token_mlp__prompt"
STAT, TM, F2, F3, F1 = 0x4000, 0x8000, 0x50000, 0x58000, 0x60000
HB, GB, YT, WSEND = 0x80000, 0x300000, 0x4E0000, 0x760000
RINGW, RS = 28672, 7
PT = 1344
REG0, REGSZ = 0, 14976
SYNC = 3 * REGSZ
RING0 = 45056
KCO, R0O, R1O, Q2O, Q3O = 32, 1408, 1408 + 1344, 4096, 4672
Z5O, Z3O, Z9O, Z7O, UO = 0, 3104, 6208, 8288, 10368
LNT = REG0 + 8704
KP = 272
LDS_BYTES = 163840
assert SYNC + 128 <= RING0 and RING0 + 4 * RINGW <= LDS_BYTES
Y_EPI = 3
Y_Y = 16
Y_UR = 17
Y_LN, Y_F1, Y_PART, Y_PUB, Y_P1, Y_G, Y_P2, Y_F2, Y_P3, Y_F3, Y_TAG, Y_U = 0, 1, 2, 4, 5, 6, 7, 8, 9, 10, 11, 12

def fbits(x): return "0x%08x" % struct.unpack("<I", struct.pack("<f", x))[0]
def bf16r(l):
    u = struct.unpack("<I", struct.pack("<f", float(l)))[0]
    u = ((u + 0x7FFF + ((u >> 16) & 1)) >> 16) << 16
    return int(struct.unpack("<f", struct.pack("<I", u))[0])
def ci(l):
    v = bf16r(l)
    if v <= 256: return v
    if v <= 512: return 256 + (v - 256) // 2
    if v <= 1024: return 384 + (v - 512) // 4
    return 512 + (v - 1024) // 8

WG, WV, XCD, IDX, DT, FT, DT2, ST2, TAG, ROT1, ROT2, CH = "s2", "s3", "s4", "s5", "s6", "s7", "s8", "s9", "s10", "s11", "s12", "s13"
SUB, C0, NCH = "s97", "s98", "s99"
SX, SW1, SW2, SOUT, SWS = "s[52:55]", "s[56:59]", "s[60:63]", "s[64:67]", "s[68:71]"
RINGB, REGB = "s73", "s77"
VSY, LANE, L16, L4, VTAG, VZ, VDBG = "v0", "v1", "v2", "v3", "v9", "v10", "v11"

def v(i, n=1): return f"v{i}" if n == 1 else f"v[{i}:{i+n-1}]"
def a(i, n=1): return f"a{i}" if n == 1 else f"a[{i}:{i+n-1}]"

def groups_of(prog):
    groups = []
    for it in prog.items:
        prev = groups[-1][-1][0] if groups else None
        if isinstance(prev, str) and (prev.startswith(("s_add_u32 m0", "s_cmp", "s_sub_u32 s51", "s_mov_b64 exec, s", "s_mov_b64 exec, 1", "ds_write_b128 v125", "ds_add"))):
            groups[-1].append(it)
        else: groups.append([it])
    return groups

def make_perm(n, nw, first, duty0, per=1):
    own = list(range(0, n, 2)); oth = list(range(1, n, 2))
    order = [[] for _ in range(nw)]; touched = {}
    pool = own[:]
    for pos in range(first):
        for j in range(nw):
            pass
    deal = [[] for _ in range(nw)]
    k = 0
    for pos in range(first):
        for j in range(nw):
            if pool: st = pool.pop(0)
            else: st = oth.pop(0)
            deal[j].append(st); touched[st] = pos
    rest = pool + oth
    duty = {}
    for i, st in enumerate(rest): duty[(duty0 + i // per, i % nw)] = st
    for j in range(nw): order[j] = list(deal[j])
    for pos in range(first, n):
        for j in range(nw):
            if (pos, j) in duty: touched[duty[(pos, j)]] = pos
        for j in range(nw):
            if (pos, j) in duty: order[j].append(duty[(pos, j)]); continue
            mine = {st for (pp, jj), st in duty.items() if jj == j and pp > pos}
            cand = [st for st in range(n) if st not in order[j] and st not in mine]
            cand.sort(key=lambda st: (touched.get(st, 99), (st - 2 * j) % n))
            order[j].append(cand[0])
    for o in order: assert sorted(o) == list(range(n)), o
    return order
def pack_perm(o):
    x = sum(st << (4 * i) for i, st in enumerate(o)); return x & 0xffffffff, x >> 32

class G:
    def __init__(self, debug=False, **kw):
        self.debug = debug
        self.o = dict(P1=6, D1=13, PS1=11, lead1=4, xk=-1, epifirst=1, sp3=0, first1=1, dpp=3, P2=4, D2=11, PS2=9, lead2=4, wflag="", xflag="", nsp=12, thr=4,
                      ytrig=5, ychk=10, pk=1, psleep=4, psleep2=8, kprio=0, mprio=2, ebpos=0, kpause=9, kword=5, spk=0, spw=0, sx=0, tch=0, cprio=3, ipf=2, ns1=12, ns2=15, perm=1, duty1=1, duty2=3, oflag='', eb=2, pfirst=1, free1=1, pre1=1, cns=15, sg1=0, sg2=0, epk=1, cprio0=0, cswitch=40, iprio=0, ow4=1, slow=1, ebk=99, nthr=6, pflag='nt', cwait=4)
        self.o.update(kw)
        self.nst = {}; self.nlab = 0; self.role = None
    def stamp(self, p):
        if not self.debug: return
        n = self.nst.get(self.role, 0)
        if n == 0: p.e(f"v_writelane_b32 {VDBG}, s100, 28")
        p.e(("s_memtime" if self.o.get("cyc") else "s_memrealtime") + " s[82:83]\ns_waitcnt lgkmcnt(0)")
        p.e(f"v_writelane_b32 {VDBG}, s82, {n}")
        self.nst[self.role] = n + 1
    def pre(self, p):
        if self.debug and self.o.get("prest"): p.e(f"s_memrealtime s[82:83]\ns_waitcnt lgkmcnt(0)\nv_writelane_b32 {VDBG}, s82, 27")
    def label(self, s):
        self.nlab += 1; return f"L{s}_{self.nlab}"
    def flag_store(self, p, soff, pre=""):
        p.e(f"s_mov_b64 exec, 1\n{pre}buffer_store_dword {VTAG}, {VZ}, {SWS}, {soff} offen sc1\ns_mov_b64 exec, -1")
    def poll(self, p, voff, soff, tmp, wide=False, sleep=0):
        l = self.label("poll"); d = self.label("polld"); f = self.label("pollf")
        p.e("s_mov_b32 s78, 0")
        if sleep: p.e(f"s_branch {f}")
        p.e(f"{l}:")
        if sleep: p.e(f"s_sleep {sleep}\n{f}:")
        if wide:
            p.e(f"buffer_load_dwordx4 {v(tmp,4)}, {voff}, {SWS}, {soff} offen sc1")
            p.e("s_add_u32 s78, s78, 1\ns_waitcnt vmcnt(0)")
            for i in range(4): p.e(f"v_xor_b32 {v(tmp+i)}, {TAG}, {v(tmp+i)}")
            p.e(f"v_or3_b32 {v(tmp)}, {v(tmp)}, {v(tmp+1)}, {v(tmp+2)}\nv_or_b32 {v(tmp)}, {v(tmp)}, {v(tmp+3)}")
            p.e(f"v_cmp_ne_u32 vcc, 0, {v(tmp)}")
        else:
            p.e(f"buffer_load_dword {v(tmp)}, {voff}, {SWS}, {soff} offen sc1")
            p.e("s_add_u32 s78, s78, 1\ns_waitcnt vmcnt(0)")
            p.e(f"v_cmp_ne_u32 vcc, {TAG}, {v(tmp)}")
        p.e(f"s_cmp_gt_u32 s78, 0x8000\ns_cbranch_scc1 {d}\ns_cbranch_vccz {d}\ns_mov_b64 exec, vcc\ns_branch {l}")
        p.e(f"{d}:\ns_mov_b64 exec, -1")
    def sig(self, p, word, tmp):
        p.e(f"v_mov_b32 v{tmp}, 1\ns_mov_b64 exec, 1\nds_add_u32 {VSY}, v{tmp} offset:{4*word}\ns_mov_b64 exec, -1", "sig")
    def spin(self, p, word, n, tmp, sleep=0):
        l = self.label("spin"); d = self.label("spind"); f = self.label("spinf")
        p.e("s_mov_b32 s78, 0")
        if sleep: p.e(f"s_branch {f}")
        p.e(f"{l}:")
        if sleep: p.e(f"s_sleep {sleep}\n{f}:")
        p.e(f"ds_read_b32 v{tmp}, {VSY} offset:{4*word}\ns_add_u32 s78, s78, 1\ns_waitcnt lgkmcnt(0)\nv_readfirstlane_b32 s79, v{tmp}")
        p.e(f"s_cmp_gt_u32 s78, 0x40000\ns_cbranch_scc1 {d}\ns_cmp_lt_u32 s79, {n}\ns_cbranch_scc1 {l}")
        p.e(f"{d}:")
    def mktag(self, p):
        p.e(f"s_mul_i32 {TAG}, {TAG}, 0x9E3779B1\ns_add_u32 {TAG}, {TAG}, 0x7F4A7C15\nv_mov_b32 {VTAG}, {TAG}")
    def finish(self, p):
        e = p.e
        if self.debug:
            e("s_waitcnt vmcnt(0)")
            self.stamp(p)
            e(f"s_lshl_b32 s50, {WG}, 3\ns_add_u32 s50, s50, {WV}\ns_lshl_b32 s50, s50, 7\ns_add_u32 s50, s50, {TM}")
            e(f"s_mov_b32 exec_hi, 0\nbuffer_store_dword {VDBG}, {L4}, {SWS}, s50 offen")
        e("s_endpgm")
    def srd(self, p, d, lo, size): p.e(f"s_mov_b32 s{d}, s{lo}\ns_mov_b32 s{d+1}, s{lo+1}\ns_mov_b32 s{d+2}, {size}\ns_mov_b32 s{d+3}, 0x20000")
    def unpack(self, p, src, dst, n):
        for i in range(n):
            p.e(f"v_lshlrev_b32 v{dst+2*i}, 16, v{src+i}\nv_and_b32 v{dst+2*i+1}, 0xffff0000, v{src+i}")
    def rbf(self, p, r):
        p.e(f"v_cvt_pk_bf16_f32 v{r}, v{r}, v{r}\nv_lshlrev_b32 v{r}, 16, v{r}")

    def prologue(self, p):
        e = p.e; RAW = self.RAW; o = self.o
        if self.debug: e("s_memrealtime s[100:101]")
        e(f"s_cmp_ge_u32 {WG}, 256\ns_cbranch_scc1 L_end0")
        e("s_load_dwordx16 s[16:31], s[0:1], 0\ns_load_dwordx16 s[32:47], s[0:1], 64\ns_load_dwordx2 s[48:49], s[0:1], 128")
        e(f"v_and_b32 {LANE}, 63, v0\nv_lshrrev_b32 v12, 6, v0\nv_readfirstlane_b32 {WV}, v12")
        e(f"v_lshlrev_b32 {L4}, 2, {LANE}\nv_mov_b32 {VZ}, 0\nv_mov_b32 {VSY}, {SYNC}")
        e(f"s_cmp_lg_u32 {WV}, 7\ns_cbranch_scc1 L_p1")
        if o["ipf"]:
            e(f"s_getpc_b64 s[90:91]\nL_pc:\ns_bfe_u32 s51, {WG}, {(o['ipf'] << 16) | 3:#x}\ns_lshl_b32 s51, s51, 13")
            e(f"v_lshl_add_u32 v112, {LANE}, 7, s51\nv_min_u32 v112, L_last-L_pc, v112")
            e("v_mov_b32 v113, s91\nv_add_co_u32 v112, vcc, s90, v112\nv_addc_co_u32 v113, vcc, 0, v113, vcc")
            e("@global_load_dword v114, v[112:113], off")
        e(f"s_mov_b32 exec_hi, 0\nds_write_b32 {L4}, {VZ} offset:{SYNC}\ns_mov_b64 exec, -1")
        e(f"s_waitcnt lgkmcnt(0)\n@s_load_dword {TAG}, s[48:49], 0\ns_branch L_p3")
        e("L_end0:\ns_endpgm\nL_p1:")
        e(f"s_cmp_ge_u32 {WV}, 4\ns_cbranch_scc1 L_p2")
        e(f"v_lshrrev_b32 v120, 5, {LANE}\nv_mul_u32_u24 v121, 1280, v120\nv_and_b32 v122, 31, {LANE}")
        e("v_lshl_add_u32 v123, v122, 4, v121\nv_lshl_add_u32 v124, v122, 3, v121")
        e(f"s_lshl_b32 s50, {WG}, 3\ns_lshl1_add_u32 s50, {WV}, s50\ns_mul_i32 s50, s50, 1280")
        e("s_mov_b32 s54, 2621440\ns_mov_b32 s55, 0x20000\ns_waitcnt lgkmcnt(0)\ns_mov_b32 s52, s16\ns_mov_b32 s53, s17")
        xf = o["xflag"]
        e(f"buffer_load_dwordx4 v[20:23], v123, {SX}, s50 offen {xf}", "x")
        e(f"buffer_load_dwordx4 v[24:27], v123, {SX}, s50 offen offset:512 {xf}", "x")
        e(f"buffer_load_dwordx2 v[28:29], v124, {SX}, s50 offen offset:1024 {xf}", "x")
        e("s_branch L_p3")
        e("L_p2:")
        self.tiles(p)
        e(f"s_sub_u32 s14, {WV}, 4\ns_cmp_ge_u32 s14, {NCH}\ns_cbranch_scc1 L_end0")
        e(f"s_lshl_b32 {CH}, {DT}, 6\ns_lshl4_add_u32 {CH}, {SUB}, {CH}\ns_add_u32 {CH}, {CH}, {C0}\ns_add_u32 {CH}, {CH}, s14")
        e(f"s_mul_i32 s51, {CH}, 384\nv_add_u32 v110, s51, {L4}\nv_lshl_add_u32 v111, {LANE}, 1, s51")
        e(f"s_lshr_b32 s79, {CH}, 1\ns_lshl_b32 s79, s79, 2")
        e("s_waitcnt lgkmcnt(0)")
        for i in range(6):
            e(f"@global_load_dword v{RAW[2*i]}, v110, s[{18+2*i}:{19+2*i}] {o['pflag']}")
            e(f"@global_load_ushort v{RAW[2*i+1]}, v111, s[{18+2*i}:{19+2*i}] offset:256 {o['pflag']}")
        e(f"@s_load_dword s80, s[30:31], s79\n@s_load_dword s81, s[32:33], s79")
        e("L_p3:\ns_barrier")
        e(f"v_lshlrev_b32 {L16}, 4, {LANE}\nv_mov_b32 {VDBG}, 0")
        self.tiles(p)
        self.srd(p, 68, 48, WSEND)
        if o["perm"]: P1_ = make_perm(16, 5, o["first1"], o["duty1"], o["dpp"])
        else: P1_ = [[(((2 * j * 205) >> 7) + i) % 16 for i in range(16)] for j in range(5)]
        for j, o_ in enumerate(P1_):
            lo, hi = pack_perm(o_)
            if j == 0: e(f"s_mov_b32 s74, {lo:#x}\ns_mov_b32 s75, {hi:#x}")
            else: e(f"s_cmp_eq_u32 s11, {j}\ns_cselect_b32 s74, {lo:#x}, s74\ns_cselect_b32 s75, {hi:#x}, s75")
        e("s_mul_i32 s51, s12, 0x11111111\ns_xor_b32 s74, s74, s51\ns_xor_b32 s75, s75, s51")
        e(f"s_and_b32 {DT2}, {IDX}, 3\ns_lshr_b32 {ST2}, {IDX}, 2\ns_xor_b32 {ST2}, {ST2}, {o['sx']}\ns_lshl2_add_u32 {DT2}, s12, {DT2}\ns_lshl3_add_u32 {ST2}, {SUB}, {ST2}")
        e(f"s_cmp_ge_u32 {WV}, 4\ns_cbranch_scc1 L_aux")
    def tiles(self, p):
        e = p.e
        e(f"s_and_b32 {XCD}, {WG}, 7\ns_lshr_b32 {IDX}, {WG}, 3\ns_lshr_b32 {SUB}, {XCD}, 1\ns_and_b32 s12, {XCD}, 1")
        e(f"s_min_u32 s15, {IDX}, 29\ns_mul_i32 {FT}, s15, 52\ns_lshr_b32 {FT}, {FT}, 8")
        e(f"s_mul_i32 s51, {FT}, 5\ns_sub_u32 s11, s15, s51")
        e(f"s_mul_i32 {C0}, {FT}, 3\ns_min_u32 {C0}, {C0}, 14\ns_cmp_lt_u32 {FT}, 4\ns_cselect_b32 {NCH}, 3, 2\ns_cmp_ge_u32 {IDX}, 30\ns_cselect_b32 {NCH}, 0, {NCH}")
        e(f"s_mul_i32 s51, s12, 5\ns_add_u32 {DT}, s11, s51\ns_mul_i32 s51, {SUB}, 6\ns_add_u32 {FT}, {FT}, s51")

    def kk(self, p, g, ks, dst, stride, base):
        p.e(f"s_bfe_u32 {dst}, s{(74 if g == 1 else 80) + ks // 8}, {(4 << 16) | (4 * (ks % 8)):#x}")
        p.e(f"s_mul_i32 {dst}, {dst}, {stride}")
        if base: p.e(f"s_add_u32 {dst}, {dst}, {base}")
    def slot(self, g, ks): return ((ks + (3 if g == 2 else 0)) % RS) * 4096
    def throttle(self, p):
        l = self.label("thr")
        p.e(f"s_cmp_lg_u32 s85, 0\ns_cbranch_scc1 {l}")
        p.e(f"@ds_read_b32 v20, {VSY} offset:{4*Y_PUB}\n@s_waitcnt vmcnt({self.o['thr']}) lgkmcnt(0)\nv_readfirstlane_b32 s85, v20\ns_nop 0\ns_lshr_b32 s85, s85, 1")
        p.e(f"{l}:")
    def dma(self, g, ks, thr=False):
        p = Prog()
        rs, vo, srd, base = (3072, 4, SW1, "s84") if g == 1 else (4096, 12, SW2, "s92")
        self.kk(p, g, ks, "s72", 32 * rs, base)
        for q in range(4):
            if thr and q % 2 == 0: self.throttle(p)
            p.e(f"s_add_u32 m0, {RINGB}, {self.slot(g, ks) + q * 1024}")
            p.e(f"buffer_load_dwordx4 v{vo + (q & 1)}, {srd}, s72 offen {self.o['wflag']} lds", f"w{g}_{ks}")
            if q < 3: p.e(f"s_add_u32 s72, s72, {8*rs}")
        return p
    NB = {1: 6, 2: 4}
    def tr(self, g, ks):
        p = Prog()
        r = 16 * (ks % self.NB[g]); o = self.slot(g, ks)
        p.wvm(f"w{g}_{ks}")
        for ss in range(4):
            p.e(f"ds_read_b64_tr_b16 {a(r+4*ss,2)}, v{14+ss} offset:{o}", f"t{g}_{ks}")
            p.e(f"ds_read_b64_tr_b16 {a(r+4*ss+2,2)}, v{14+ss} offset:{o+512}", f"t{g}_{ks}")
        return p
    def main_start(self, p):
        e = p.e
        e("s_setprio 3")
        e(f"s_mul_i32 {RINGB}, {WV}, {RINGW}\ns_add_u32 {RINGB}, {RINGB}, {RING0}\ns_mov_b32 s85, 0")
        e(f"v_lshrrev_b32 v30, 3, {LANE}\nv_and_b32 v31, 7, {LANE}\nv_and_b32 v32, 2, v30\nv_xor_b32 v31, v31, v32\nv_lshlrev_b32 v31, 4, v31")
        e("v_mul_u32_u24 v4, 3072, v30\nv_add_u32 v4, v4, v31\nv_xor_b32 v5, 64, v4\nv_lshl_add_u32 v12, v30, 12, v31\nv_xor_b32 v13, 64, v12")
        e(f"s_mul_i32 s84, {WV}, {512*3072}\ns_lshl_b32 s51, {FT}, 7\ns_add_u32 s84, s84, s51")
        e(f"s_mul_i32 s92, {WV}, {384*4096}\ns_lshl_b32 s51, {ST2}, 7\ns_add_u32 s92, s92, s51")
        self.srd(p, 56, 36, 6291456); self.srd(p, 60, 40, 6291456); self.srd(p, 64, 44, 2621440)
        self.stamp(p)
    def main_setup2(self, p):
        e = p.e
        e(f"v_bfe_u32 v20, {LANE}, 2, 2\nv_and_b32 v21, 3, {LANE}\nv_lshrrev_b32 v22, 4, {LANE}\nv_and_b32 v23, 15, {LANE}")
        e("v_lshlrev_b32 v24, 10, v22\nv_lshl_add_u32 v24, v20, 7, v24\nv_lshl_add_u32 v24, v21, 3, v24")
        e(f"v_lshrrev_b32 v20, 1, v20\nv_and_b32 v21, 1, v22\nv_lshl_or_b32 v20, v21, 1, v20\nv_xor_b32 v20, {WV}, v20\nv_lshlrev_b32 v20, 5, v20")
        e(f"v_add3_u32 v14, v24, v20, {RINGB}\nv_xor_b32 v15, 32, v14\nv_xor_b32 v16, 64, v14\nv_xor_b32 v17, 0x60, v14")
        e(f"s_lshl_b32 s51, {FT}, 7\ns_lshl_b32 s15, {WV}, 5\ns_add_u32 s51, s51, s15\nv_lshl_add_u32 v24, v22, 3, s51")
        e("global_load_dwordx2 v[126:127], v24, s[38:39]", "b1")
        e(f"v_mul_u32_u24 v19, 10240, v22\nv_lshl_add_u32 v19, v23, 4, v19\ns_lshl_b32 s51, {SUB}, 8\nv_add_u32 v120, s51, v19")
        e("v_xor_b32 v121, 0x100, v120\nv_xor_b32 v122, 0x200, v120\nv_xor_b32 v123, 0x300, v120")
        e(f"v_lshrrev_b32 v24, 1, v22\nv_mul_u32_u24 v24, 10240, v24\nv_lshl_add_u32 v24, v23, 4, v24\nv_xor_b32 v25, {SUB}, v21\nv_lshl_add_u32 v6, v25, 8, v24\nv_xor_b32 v7, 0x200, v6")
        e(f"v_subrev_u32 v124, {C0}, v23\nv_mul_u32_u24 v124, {REGSZ}, v124\nv_lshl_add_u32 v124, v22, 4, v124")
        e(f"s_lshl_b32 s51, {WV}, 10\ns_add_u32 s51, s51, {REG0 + UO + 512}\nv_add_u32 v124, s51, v124")
        e(f"s_bfm_b32 s100, {NCH}, {C0}\ns_lshl_b32 s51, s100, 16\ns_or_b32 s100, s100, s51\ns_mov_b32 s101, s100")
        e("v_mul_u32_u24 v18, 1280, v23\nv_lshl_add_u32 v18, v22, 3, v18\nv_lshlrev_b32 v115, 12, v23\nv_lshl_add_u32 v115, v22, 4, v115")
        e("v_lshl_add_u32 v8, v23, 1, s95")
        e("global_load_ushort v114, v8, s[42:43]", "b1")
        if self.o["spk"]:
            n_ = self.o["spk"]; own = [2 * i for i in range(n_)]
            rest = [st for st in range(2 * n_, 12, 2)] + [st for st in range(1, 12, 2)]
            P2_ = [own + rest[(j * len(rest)) // 4:] + rest[:(j * len(rest)) // 4] for j in range(4)]
        elif self.o["perm"]: P2_ = make_perm(12, 4, 2, self.o["duty2"])
        else: P2_ = [[(3 * j + i) % 12 for i in range(12)] for j in range(4)]
        e(f"s_and_b32 s15, {IDX}, 3")
        for j, o_ in enumerate(P2_):
            lo, hi = pack_perm(o_)
            if j == 0: e(f"s_mov_b32 s80, {lo:#x}\ns_mov_b32 s81, {hi:#x}")
            else: e(f"s_cmp_eq_u32 s15, {j}\ns_cselect_b32 s80, {lo:#x}, s80\ns_cselect_b32 s81, {hi:#x}, s81")
        e(f"s_and_b32 s15, {ST2}, {self.o['sg2']}\ns_and_b32 s51, {XCD}, 1\ns_xor_b32 s51, s51, s15\ns_mul_i32 s51, s51, 0x11111111\ns_xor_b32 s80, s80, s51\ns_xor_b32 s81, s81, s51")
        e(f"s_mul_i32 s86, {WV}, {64*10240}\ns_lshl_b32 s51, {DT}, 10\ns_add_u32 s86, s86, s51\ns_add_u32 s86, s86, {HB}")
    def xr(self, j): return [v(104, 4), v(110, 4), v(116, 4)][j]
    def xload(self, p):
        e = p.e
        e(f"s_lshl_b32 s94, {ST2}, 6\ns_lshl_b32 s51, {WV}, 4\ns_add_u32 s94, s94, s51\ns_lshl_b32 s95, s94, 1")
        e(f"s_mul_i32 s94, s94, 1280\ns_mul_i32 s51, {DT2}, 160\ns_add_u32 s94, s94, s51")
        e(f"v_and_b32 v109, 15, {LANE}\nv_mul_u32_u24 v109, 1280, v109\nv_and_b32 v108, 48, {LANE}\nv_add_u32 v108, v108, v109")
        for j in range(3): e(f"buffer_load_dwordx4 {self.xr(j)}, v108, {SX}, s94 offen offset:{64*j}", f"x{j}")
    def xmm(self, p):
        e = p.e; ln_ = self.label("nsw")
        e("v_lshlrev_b32 v114, 16, v114")
        for i in range(20): e(f"v_mov_b32 v{84+i}, v114")
        e(f"v_lshrrev_b32 v22, 4, {LANE}\nv_and_b32 v23, 15, {LANE}")
        e("v_lshlrev_b32 v24, 3, v22\nv_sub_u32 v24, v23, v24\nv_and_b32 v25, 1, v24\nv_lshlrev_b32 v25, 4, v25\nv_mov_b32 v26, 0x3f80\nv_lshlrev_b32 v25, v25, v26\nv_ashrrev_i32 v24, 1, v24")
        for q in range(4): e(f"v_cmp_eq_u32 vcc, {q}, v24\nv_cndmask_b32 v{120+q}, 0, v25, vcc")
        for q in range(4): e(f"v_cmp_eq_i32 vcc, {q-8}, v24\nv_cndmask_b32 v{124+q}, 0, v25, vcc")
        for di in range(5):
            e(f"v_mfma_f32_16x16x32_bf16 {self.acc2(di,0)}, {v(124 if di & 1 else 120, 4)}, {self.xr(di//2)}, {self.acc2(di,0)}")
        e(f"s_and_b32 s51, {WV}, 1\ns_cmp_eq_u32 s51, 0\ns_cbranch_scc1 {ln_}")
        for q in range(4): e(f"v_swap_b32 v{120+q}, v{124+q}")
        e(f"{ln_}:")
    def acc1(self, t, ds): return [v(72 + 4 * ds, 4), v(88 + 4 * ds, 4), a(96 + 4 * ds, 4), a(112 + 4 * ds, 4)][t]
    def acc2(self, di, ss): return v(84 + 4 * di, 4) if ss == 0 else a(68 + 4 * (di * 3 + ss - 1), 4)

    def gemm_loop(self, p, g, nks, nf, ns, nd, nt, ld, mfma, extra):
        NB = self.NB[g]; n = nks * nf
        for i in range(ns): p.ext(ld(i))
        nl = ns
        G_ = 4 * nf
        for ks in range(nks):
            side = Prog()
            if nd < nks and nd - RS < nt:
                if nd >= RS: side.wlg(f"t{g}_{nd-RS}")
                side.ext(self.dma(g, nd)); nd += 1
            if nt < nks and nt < nd and nt - NB < ks:
                side.ext(self.tr(g, nt)); nt += 1
            early, pre, post = extra(ks)
            gaps = [[] for _ in range(G_)]
            cost = [0] * G_
            def c_of(grp):
                c = 0
                for it, _ in grp:
                    if isinstance(it, tuple): c += 1
                    elif it.startswith(("buffer_", "global_")): c += 3
                    else: c += 1
                return c
            for di in range(1, nf): cost[4 * di - 1] += 1
            cost[G_ - 1] += 2
            for di in range(nf):
                if nf * ks + di >= 1 and nl < n:
                    its = ld(nl).items; nl += 1
                    gi = 4 * di
                    gaps[gi].append(("z", its[-1:])); cost[gi] += 3
                    for k, it in enumerate(its[:-1]):
                        gj = gi - (len(its) - 1 - k)
                        assert gj >= 0
                        gaps[gj].append(("y", [it])); cost[gj] += 1
            pos = 0
            for grp in groups_of(early):
                gi = min(3, 1 + pos); pos += 1
                gaps[gi].append(("a", grp)); cost[gi] += c_of(grp)
            rest = groups_of(pre) + groups_of(side)
            start = 4 if early.items else 1
            tot = sum(c_of(x) for x in rest) + sum(cost[start:])
            gi = start
            for grp in rest:
                lvl = max(2.0, tot / (G_ - start))
                while gi < G_ - 1 and cost[gi] + c_of(grp) > lvl + 0.5 and cost[gi] > 0: gi += 1
                gaps[gi].append(("m", grp)); cost[gi] += c_of(grp)
            p.wlg(f"t{g}_{ks}")
            for di in range(nf):
                p.wvm(f"act{ks}_{di}")
                for ss in range(4):
                    p.e(mfma(ks, di, ss))
                    for key, grp in sorted(gaps[4 * di + ss], key=lambda x: x[0]): p.items.extend(grp)
            p.ext(post)
        assert nl == n and nd == nks and nt == nks

    def gemm1(self, p):
        e = p.e; o = self.o
        HR, ns = 24, o['ns1']
        nd = o['free1']
        def more():
            nonlocal nd
            if nd >= RS: p.wlg(f"t1_{nd-RS}")
            p.ext(self.dma(1, nd, thr=nd < o['nthr'])); nd += 1
            if nd == o["PS1"]: self.sig(p, Y_P1, 20)
            if o.get("fine") and nd <= 9: self.stamp(p)
        while nd < o["lead1"]: more()
        p.wvm("b1")
        for ds in range(4): self.unpack(p, 126, 72 + 4 * ds, 2)
        for j in range(o["P1"]):
            p.ext(self.tr(1, j))
            if j == 2 and not o.get('fine'): self.stamp(p)
            if nd < o["D1"]: more()
        while nd < o["D1"]:
            p.wvm(f"w1_{nd-o['lead1']}"); more()
        self.stamp(p)
        self.spin(p, Y_F1, 1, 20, sleep=1)
        e(f"ds_read_b32 {VTAG}, {VSY} offset:{4*Y_TAG}\ns_setprio 2", "tag")
        self.stamp(p)
        def ld(i):
            ks, ds = divmod(i, 4); q = Prog()
            if ds == 0: self.kk(q, 1, ks, "s76", 40960, "s86")
            q.e(f"buffer_load_dwordx4 {v(HR + 4 * (i % ns), 4)}, v{120+ds}, {SWS}, s76 offen sc1", f"act{ks}_{ds}")
            return q
        def mfma(ks, ds, t):
            c = self.acc1(t, ds); src = "0" if (ks == 0 and t > 0) else c
            return f"v_mfma_f32_16x16x32_bf16 {c}, {a(16*(ks%6)+4*t,4)}, {v(HR + 4 * ((4*ks+ds) % ns), 4)}, {src}"
        def extra(ks):
            pre = Prog(); post = Prog(); q = Prog()
            q.e(f"s_bfe_u32 s14, s{74 + ks // 8}, {(4 << 16) | (4 * (ks % 8)):#x}\nv_lshl_add_u32 v125, s14, 6, v124")
            q.e(f"s_mov_b64 exec, s[100:101]\nds_write_b128 v125, {v(HR + 4 * ((4 * ks) % ns), 4)}\ns_mov_b64 exec, -1", "uc")
            if ks % 4 == 3: self.sig(pre, Y_U + ks // 4, 20)
            if o["ebpos"] == 3:
                assert o["ebk"] >= 13
                per = -(-o["eb"] // (16 - o["ebk"]))
                for j in range(o["eb"]):
                    if o["ebk"] + j // per == ks: pre.ext(self.dma(2, j))
            if ks in (0, 5, 10): self.stamp(post)
            return q, pre, post
        self.gemm_loop(p, 1, 16, 4, ns, nd, o["P1"], ld, mfma, extra)
        self.stamp(p)
    def gemm1_epi(self, p):
        e = p.e; RD = 24
        if self.o["ebpos"] == 0:
            for ks in range(self.o["eb"]): p.ext(self.dma(2, ks))
        e(f"v_add_u32 v20, {RINGB}, {L16}")
        for t in range(1, 4):
            for ds in range(4): e(f"ds_write_b128 v20, {self.acc1(t, ds)} offset:{(t-1)*4096+ds*1024}", "r1w")
        self.sig(p, Y_PART, 21)
        if self.o["ebpos"] == 1:
            for ks in range(self.o["eb"]): p.ext(self.dma(2, ks))
        for t in range(1, 4):
            e(f"s_xor_b32 s51, {WV}, {t}\ns_mul_i32 s51, s51, {RINGW}\ns_add_u32 s51, s51, {RING0 + (t-1)*4096}\nv_add_u32 v{20+t}, s51, {L16}")
        e(f"s_lshl_b32 s50, {FT}, 3\ns_lshl_b32 s51, {WV}, 1\ns_add_u32 s50, s50, s51\ns_mul_i32 s50, s50, 10240")
        e(f"s_lshl_b32 s51, {DT}, 10\ns_add_u32 s50, s50, s51\ns_add_u32 s86, s50, {GB}")
        e(f"s_mul_i32 s89, {DT}, 24\ns_add_u32 s89, s89, {FT}\ns_lshl_b32 s89, s89, 7\ns_add_u32 s89, s89, {F2}")
        c1 = -2 * 0.7978845608028654 * 1.4426950408889634; c3 = c1 * 0.044715
        e(f"s_mov_b32 s90, {fbits(c3)}\nv_mov_b32 v126, {fbits(c1)}")
        if self.o.get("fine2"): self.stamp(p)
        self.spin(p, Y_PART, 4, 20)
        if self.o.get("fine2"): self.stamp(p)
        for q in range(4):
            for t in range(3): e(f"ds_read_b128 {v(RD+16*t+4*q,4)}, v{21+t} offset:{q*1024}", f"r1r{q}")
        if self.o["ebpos"] == 2:
            for ks in range(self.o["eb"]): p.ext(self.dma(2, ks))
        for pr in range(2):
            p.wlg(f"r1r{2*pr+1}")
            q = [(72 + 8 * pr + i, RD + 8 * pr + i, 88 + 8 * pr + i) for i in range(8)]
            if self.o["epk"]:
                q2 = q[::2]
                for x, r, t in q2: e(f"v_pk_add_f32 {v(x,2)}, {v(x,2)}, {v(r,2)}\nv_pk_add_f32 {v(r+16,2)}, {v(r+16,2)}, {v(r+32,2)}")
                for x, r, t in q2: e(f"v_pk_add_f32 {v(x,2)}, {v(x,2)}, {v(r+16,2)}")
                for x, r, t in q2: e(f"v_pk_mul_f32 {v(t,2)}, {v(x,2)}, {v(x,2)}")
                for x, r, t in q2: e(f"v_pk_fma_f32 {v(t,2)}, {v(t,2)}, s[90:91], v[126:127] op_sel_hi:[1,0,0]")
                for x, r, t in q2: e(f"v_pk_mul_f32 {v(t,2)}, {v(t,2)}, {v(x,2)}")
                for x, r, t in q: e(f"v_exp_f32 v{t}, v{t}")
                for x, r, t in q2: e(f"v_pk_add_f32 {v(t,2)}, {v(t,2)}, 1.0 op_sel_hi:[1,0]")
                for x, r, t in q: e(f"v_rcp_f32 v{t}, v{t}")
                for x, r, t in q2: e(f"v_pk_mul_f32 {v(t,2)}, {v(t,2)}, {v(x,2)}")
            else:
                for x, r, t in q: e(f"v_add_f32 v{x}, v{x}, v{r}\nv_add_f32 v{r+16}, v{r+16}, v{r+32}")
                for x, r, t in q: e(f"v_add_f32 v{x}, v{x}, v{r+16}")
                for x, r, t in q: e(f"v_mul_f32 v{t}, v{x}, v{x}")
                for x, r, t in q: e(f"v_fma_f32 v{t}, v{t}, s90, v126")
                for x, r, t in q: e(f"v_mul_f32 v{t}, v{t}, v{x}")
                for x, r, t in q: e(f"v_exp_f32 v{t}, v{t}")
                for x, r, t in q: e(f"v_add_f32 v{t}, 1.0, v{t}")
                for x, r, t in q: e(f"v_rcp_f32 v{t}, v{t}")
                for x, r, t in q: e(f"v_mul_f32 v{t}, v{t}, v{x}")
            o = 56 + 8 * pr
            for i in range(4): e(f"v_cvt_pk_bf16_f32 v{o+i}, v{q[2*i][2]}, v{q[2*i+1][2]}")
            e(f"v_permlane16_swap_b32 v{o}, v{o+2}\nv_permlane16_swap_b32 v{o+1}, v{o+3}")
            e(f"buffer_store_dwordx4 {v(o,4)}, v{6+pr}, {SWS}, s86 offen sc1", "gs")
        if self.o["epifirst"]: self.sig(p, Y_EPI, 20)
        self.stamp(p)
        self.xmm(p)
        if not self.o["epifirst"]: self.sig(p, Y_EPI, 20)
        for ks in range(min(self.o["eb"], self.o["P2"])): p.ext(self.tr(2, ks))
        e("s_waitcnt vmcnt(0)")
        l = self.label("nolast")
        e(f"v_mov_b32 v20, 1\ns_mov_b64 exec, 1\nds_add_rtn_u32 v20, {VSY}, v20 offset:{4*Y_G}\ns_mov_b64 exec, -1\ns_waitcnt lgkmcnt(0)\nv_readfirstlane_b32 s79, v20")
        e(f"s_cmp_lg_u32 s79, 3\ns_cbranch_scc1 {l}")
        self.flag_store(p, "s89", "@")
        e(f"{l}:")
        self.stamp(p)
    def gemm2(self, p, spare):
        e = p.e; o = self.o
        GR, ns = 24, o['ns2']
        e(f"s_mul_i32 s86, {WV}, {48*10240}\ns_mul_i32 s51, {DT2}, 1280\ns_add_u32 s86, s86, s51\ns_add_u32 s86, s86, {GB}")
        e(f"s_mul_i32 s88, {DT2}, {80*4096}\ns_and_b32 s51, s95, 0xffffffc0\ns_add_u32 s88, s88, s51\ns_add_u32 s88, s88, {YT}")
        e(f"v_and_b32 v116, 15, {LANE}\nv_mul_u32_u24 v116, 1280, v116\nv_and_b32 v117, 16, {LANE}\nv_lshl_add_u32 v116, v117, 1, v116\nv_lshrrev_b32 v117, 5, {LANE}\nv_lshl_add_u32 v116, v117, 4, v116")
        e(f"s_and_b32 s51, {WV}, 1\ns_lshl_b32 s51, s51, 26\nv_add_u32 v109, s51, v115\nv_xor_b32 v115, 0x4000000, v109")
        nd = o["eb"]; nt = min(o["eb"], o["P2"])
        self.spin(p, Y_G, 4, 20)
        def more():
            nonlocal nd
            if nd >= RS: p.wlg(f"t2_{nd-RS}")
            p.ext(self.dma(2, nd)); nd += 1
            if nd == o["PS2"]: self.sig(p, Y_P2, 20)
        while nd < min(o["D2"], nt + o["lead2"]): more()
        while nt < o["P2"]:
            p.ext(self.tr(2, nt)); nt += 1
            if nd < o["D2"]: more()
        while nd < o["D2"]:
            p.wvm(f"w2_{nd-o['lead2']}"); more()
        self.stamp(p)
        self.spin(p, Y_F2, 1, 20, sleep=1)
        self.stamp(p)
        def ld(i):
            ks, di = divmod(i, 5); q = Prog()
            if di == 0: self.kk(q, 2, ks, "s76", 40960, "s86")
            q.e(f"buffer_load_dwordx4 {v(GR + 4 * (i % ns), 4)}, v19, {SWS}, s76 offen offset:{256*di} sc1", f"act{ks}_{di}")
            return q
        def mfma(ks, di, ss):
            c = self.acc2(di, ss); src = "0" if (ks == 0 and ss > 0) else c
            return f"v_mfma_f32_16x16x32_bf16 {c}, {v(GR + 4 * ((5*ks+di) % ns), 4)}, {a(16*(ks%4)+4*ss,4)}, {src}"
        yk = o["ychk"]; assert yk >= 9
        def extra(ks):
            pre = Prog(); post = Prog()
            if ks == o["ytrig"]: self.sig(post, Y_P3, 20)
            if ks == yk:
                self.spin(post, Y_F3, 1, 20, sleep=2)
                for di in range(5):
                    post.e(f"buffer_load_dwordx4 {a(4*di,4)}, v{115 if di & 1 else 109}, {SWS}, s88 offen sc1", f"y{di}")
                    post.e("s_add_u32 s88, s88, 65536")
            if ks in (0, 3, 7): self.stamp(post)
            return Prog(), pre, post
        self.gemm_loop(p, 2, 12, 5, ns, nd, nt, ld, mfma, extra)
        self.stamp(p)
        e(f"v_add_u32 v20, {RINGB}, {L16}")
        for t in (3, 2):
            for di in range(5): e(f"ds_write_b128 v20, {self.acc2(di,t)} offset:{(t-1)*5120+di*1024}", "r2w")
        for t in range(1, 4):
            e(f"s_xor_b32 s51, {WV}, {t}\ns_mul_i32 s51, s51, {RINGW}\ns_add_u32 s51, s51, {RING0 + (t-1)*5120}\nv_add_u32 v{20+t}, s51, {L16}")
        if o.get("fine2"): self.stamp(p)
        for di in range(5):
            p.wvm(f"y{di}")
            e(f"v_mfma_f32_16x16x32_bf16 {self.acc2(di,1)}, {a(4*di,4)}, v[124:127], {self.acc2(di,1)}")
        for di in range(5):
            e(f"v_mfma_f32_16x16x32_bf16 {self.acc2(di,0)}, {a(4*di,4)}, v[120:123], {self.acc2(di,0)}")
        for di in range(5): e(f"ds_write_b128 v20, {self.acc2(di,1)} offset:{di*1024}", "r2w")
        if o.get("fine2"): self.stamp(p)
        e("s_waitcnt lgkmcnt(0)\ns_barrier")
        if o.get("fine2"): self.stamp(p)
        for di in range(5):
            for t in range(3): e(f"ds_read_b128 {v(GR+12*di+4*t,4)}, v{21+t} offset:{di*1024}", f"r2r{di}")
        for di in range(5):
            c = 84 + 4 * di; r = GR + 12 * di
            p.wlg(f"r2r{di}")
            for hq in range(2): e(f"v_pk_add_f32 {v(r+2*hq,2)}, {v(r+2*hq,2)}, {v(r+4+2*hq,2)}\nv_pk_add_f32 {v(c+2*hq,2)}, {v(c+2*hq,2)}, {v(r+8+2*hq,2)}")
            for hq in range(2): e(f"v_pk_add_f32 {v(c+2*hq,2)}, {v(c+2*hq,2)}, {v(r+2*hq,2)}")
            for hq in range(2): e(f"v_cvt_pk_bf16_f32 v{104+2*di+hq}, v{c+2*hq}, v{c+2*hq+1}")
            if o["ow4"] and di < 4:
                if di & 1:
                    b = 104 + 2 * (di - 1)
                    e(f"v_permlane16_swap_b32 v{b}, v{b+2}\nv_permlane16_swap_b32 v{b+1}, v{b+3}")
                    e(f"buffer_store_dwordx4 {v(b,4)}, v116, {SOUT}, s94 offen offset:{32*(di-1)} {o['oflag']}", "os")
            else: e(f"buffer_store_dwordx2 {v(104+2*di,2)}, v18, {SOUT}, s94 offen offset:{32*di} {o['oflag']}", "os")
        self.stamp(p)

    def main(self):
        self.role = "main"
        p = Prog(); e = p.e
        self.main_start(p)
        if self.o["xk"] == -1: self.xload(p)
        for ks in range(self.o["pre1"]): p.ext(self.dma(1, ks))
        if self.o["xk"] == -2: self.xload(p)
        self.ln(p)
        e(f"s_setprio {self.o['mprio']}")
        if self.o.get("dly_w"): e(f"s_sleep {self.o['dly_w']}")
        if self.o["xk"] == 0: self.xload(p)
        for ks in range(self.o["pre1"], self.o["free1"]): p.ext(self.dma(1, ks))
        if self.o["xk"] == 1: self.xload(p)
        self.stamp(p)
        self.main_setup2(p)
        e(f"s_cmp_lt_u32 {IDX}, 30\ns_cbranch_scc1 L_g1")
        q = Prog()
        q.e("s_waitcnt vmcnt(0)")
        self.xmm(q)
        if self.o["spw"]: self.spin(q, Y_F1, 1, 20, sleep=16)
        else: self.spin(q, Y_PUB, 2, 20, sleep=4)
        for ks in range(self.o["eb"]): q.ext(self.dma(2, ks))
        for ks in range(min(self.o["eb"], self.o["P2"])): q.ext(self.tr(2, ks))
        self.sig(q, Y_G, 20)
        q.e("s_waitcnt vmcnt(0) lgkmcnt(0)\ns_branch L_g2")
        for line in finalize(q).split("\n"):
            if line.strip(): e(line.strip() if line.strip().endswith(":") else "@" + line.strip())
        e("L_g1:")
        self.gemm1(p)
        self.gemm1_epi(p)
        e("L_g2:")
        self.gemm2(p, False)
        e(f"s_or_b32 s51, {WG}, {WV}\ns_cmp_lg_u32 s51, 0\ns_cbranch_scc1 L_noep")
        e(f"s_mov_b64 exec, 1\nbuffer_store_dword {VTAG}, {VZ}, {SWS}, 0 offen\ns_mov_b64 exec, -1")
        e("L_noep:")
        if self.o.get("gmin"):
            e(f"global_load_dword v30, {VZ}, s[46:47] sc1\ns_waitcnt vmcnt(0)\nv_readfirstlane_b32 s96, v30\ns_nop 1\ns_not_b32 s96, s96")
        if self.o.get("hold"):
            e(f"L_hold:\ns_memrealtime s[82:83]\ns_waitcnt lgkmcnt(0)\ns_sub_u32 s82, s82, s96\ns_cmp_lt_u32 s82, {self.o['hold']}\ns_cbranch_scc1 L_hold")
        self.finish(p)
        return p

    def red32(self, p, regs, tmp):
        for m in ("quad_perm:[1,0,3,2]", "quad_perm:[2,3,0,1]", "row_half_mirror", "row_mirror"):
            for r in regs: p.e(f"v_add_f32_dpp v{r}, v{r}, v{r} {m} row_mask:0xf bank_mask:0xf")
        for i, r in enumerate(regs): p.e(f"v_mov_b32 v{tmp+i}, v{r}")
        for i, r in enumerate(regs): p.e(f"v_permlane16_swap_b32 v{r}, v{tmp+i}")
        for i, r in enumerate(regs): p.e(f"v_add_f32 v{r}, v{r}, v{tmp+i}")
    RAW = [4, 5, 6, 7, 8, 12, 13, 14, 15, 16, 17, 18]
    def conv_start(self, p):
        e = p.e
        e(f"s_setprio {self.o['kprio']}\ns_mul_i32 {REGB}, s14, {REGSZ}\ns_add_u32 {REGB}, {REGB}, {REG0}")
        e("s_waitcnt lgkmcnt(0)")
    def serv_start(self, p):
        p.e("s_setprio 3")
        self.srd(p, 60, 40, 6291456)
    def ln(self, p):
        e = p.e
        RAW, F, D, T, H = 20, 30, 50, 70, 90
        inv = fbits(1.0 / 640)
        e(f"s_lshr_b32 s51, {WV}, 1\ns_mul_i32 s51, s51, {REGSZ}\ns_and_b32 s15, {WV}, 1\ns_mul_i32 s15, s15, {2*PT}\ns_add_u32 s51, s51, s15\ns_add_u32 s51, s51, {LNT}")
        e(f"v_mul_u32_u24 v102, {PT}, v120\nv_add_u32 v102, s51, v102\nv_lshl_add_u32 v101, v122, 3, v102\nv_lshl_add_u32 v100, v122, 4, v102")
        p.wvm("x")
        self.stamp(p)
        self.unpack(p, RAW, F, 10)
        def psum(src, dst):
            e(f"v_pk_add_f32 {v(dst,2)}, {v(src,2)}, {v(src+2,2)}\nv_pk_add_f32 {v(dst+2,2)}, {v(src+4,2)}, {v(src+6,2)}")
            for i in range(4, 10): e(f"v_pk_add_f32 {v(dst+2*(i&1),2)}, {v(dst+2*(i&1),2)}, {v(src+2*i,2)}")
            e(f"v_pk_add_f32 {v(dst,2)}, {v(dst,2)}, {v(dst+2,2)}\nv_add_f32 v{dst}, v{dst}, v{dst+1}")
        def psq(src, dst):
            e(f"v_pk_mul_f32 {v(dst,2)}, {v(src,2)}, {v(src,2)}\nv_pk_mul_f32 {v(dst+2,2)}, {v(src+2,2)}, {v(src+2,2)}")
            for i in range(2, 10): e(f"v_pk_fma_f32 {v(dst+2*(i&1),2)}, {v(src+2*i,2)}, {v(src+2*i,2)}, {v(dst+2*(i&1),2)}")
            e(f"v_pk_add_f32 {v(dst,2)}, {v(dst,2)}, {v(dst+2,2)}\nv_add_f32 v{dst}, v{dst}, v{dst+1}")
        def rstd(var, out):
            e(f"v_max_f32 v{var}, 0, v{var}")
            self.rbf(p, var); e(f"v_add_f32 v{var}, {fbits(1e-5)}, v{var}"); self.rbf(p, var)
            e(f"v_sqrt_f32 v{var}, v{var}"); self.rbf(p, var); e(f"v_rcp_f32 v{out}, v{var}")
        psum(F, T); self.red32(p, [T], T + 2)
        e(f"v_mul_f32 v{T}, {inv}, v{T}\nv_mov_b32 v{T+4}, v{T}"); self.rbf(p, T + 4)
        for i in range(10): e(f"v_pk_add_f32 {v(D+2*i,2)}, {v(F+2*i,2)}, {v(T+4,2)} op_sel_hi:[1,0] neg_lo:[0,1] neg_hi:[0,1]")
        e(f"v_sub_f32 v{T+5}, v{T}, v{T+4}")
        psq(D, T); self.red32(p, [T], T + 2)
        e(f"v_mul_f32 v{T}, {inv}, v{T}\nv_fma_f32 v{T}, -v{T+5}, v{T+5}, v{T}")
        rstd(T, T + 6)
        for i in range(10): e(f"v_pk_mul_f32 {v(D+2*i,2)}, {v(D+2*i,2)}, {v(T+6,2)} op_sel_hi:[1,0]")
        for i in range(10): e(f"v_cvt_pk_bf16_f32 v{RAW+i}, v{D+2*i}, v{D+2*i+1}")
        self.unpack(p, RAW, F, 10)
        psum(F, T); psq(F, T + 4); self.red32(p, [T, T + 4], T + 2)
        e(f"v_mul_f32 v{T}, {inv}, v{T}\nv_mul_f32 v{T+4}, {inv}, v{T+4}\nv_fma_f32 v{T+4}, -v{T}, v{T}, v{T+4}")
        self.rbf(p, T)
        rstd(T + 4, T + 6)
        e(f"v_mul_f32 v{T+2}, v{T}, v{T+6}\nv_lshrrev_b32 v{T+4}, 16, v{T+4}\nv_or_b32 v{T+4}, v{T+4}, v{T}")
        for i in range(10): e(f"v_pk_fma_f32 {v(D+2*i,2)}, {v(F+2*i,2)}, {v(T+6,2)}, {v(T+2,2)} op_sel_hi:[1,0,0] neg_lo:[0,0,1] neg_hi:[0,0,1]")
        e(f"ds_write_b32 v102, v{T+4} offset:1280", "lnw")
        for i in range(10): e(f"v_cvt_pk_bf16_f32 v{H+i}, v{D+2*i}, v{D+2*i+1}")
        e(f"ds_write_b128 v100, {v(H,4)}\nds_write_b128 v100, {v(H+4,4)} offset:512\nds_write_b64 v101, {v(H+8,2)} offset:1024", "lnw")
        self.sig(p, Y_LN, T)

    def serv(self):
        self.role = "serv"
        p = Prog(); e = p.e; o = self.o
        self.serv_start(p)
        self.stamp(p)
        e(f"v_bfe_u32 v12, {LANE}, 2, 2\nv_mul_u32_u24 v12, {PT}, v12\nv_lshrrev_b32 v13, 4, {LANE}\nv_lshl_add_u32 v12, v13, 5, v12")
        e(f"v_and_b32 v13, 3, {LANE}\nv_lshl_add_u32 v12, v13, 3, v12\nv_add_u32 v12, {LNT}, v12")
        e(f"s_mul_i32 s84, {WG}, 10240\ns_add_u32 s84, s84, {HB}\ns_add_u32 s85, s84, 4096\ns_add_u32 s86, s84, 8192")
        e(f"s_lshl_b32 s87, {WG}, 4\ns_add_u32 s87, s87, {STAT}\nv_lshlrev_b32 v13, 12, {LANE}")
        e(f"s_lshr_b32 s89, {WG}, 2\ns_lshl_b32 s89, s89, 7\ns_and_b32 s51, {WG}, 3\ns_lshl2_add_u32 s89, s51, s89\ns_add_u32 s89, s89, {F1}\nv_lshlrev_b32 v14, 7, {LANE}")
        e("s_waitcnt lgkmcnt(0)")
        self.mktag(p)
        e(f"ds_write_b32 {VSY}, {VTAG} offset:{4*Y_TAG}")
        self.spin(p, Y_LN, 4, 20, sleep=1)
        if self.o.get("dly_p"): e(f"s_sleep {self.o['dly_p']}")
        self.stamp(p)
        for b in range(11):
            e(f"ds_read_b64_tr_b16 {v(24+4*b,2)}, v12 offset:{128*b}\nds_read_b64_tr_b16 {v(26+4*b,2)}, v12 offset:{128*b+REGSZ}", f"lr{b}")
            if b >= 3:
                c = b - 3; p.wlg(f"lr{c}")
                e(f"buffer_store_dwordx4 {v(24+4*c,4)}, {L16}, {SWS}, s{84 + c//4} offen offset:{(c%4)*1024} sc1")
        for c in range(8, 10):
            p.wlg(f"lr{c}")
            e(f"buffer_store_dwordx4 {v(24+4*c,4)}, {L16}, {SWS}, s{84 + c//4} offen offset:{(c%4)*1024} sc1")
        p.wlg("lr10")
        e(f"s_mov_b64 exec, 3\nbuffer_store_dwordx4 v[64:67], v13, {SWS}, s87 offen sc1\ns_mov_b64 exec, -1")
        self.sig(p, Y_PUB, 20)
        self.stamp(p)
        e(f"s_mul_i32 s50, {DT2}, 80\ns_lshr_b32 s50, s50, 6\ns_mul_i32 s92, s50, {24*128}\ns_add_u32 s92, s92, {F2}")
        e(f"v_min_u32 v15, 47, {LANE}\nv_lshlrev_b32 v15, 7, v15\nv_min_u32 v16, 29, {LANE}\nv_lshlrev_b32 v16, 7, v16")
        e(f"s_mul_i32 s93, {DT2}, {30*128}\ns_add_u32 s93, s93, {F3}")
        e("s_waitcnt vmcnt(0)")
        if self.o.get("dly_f"):
            self.sig(p, Y_PUB, 20); e(f"s_sleep {self.o['dly_f']}")
        self.flag_store(p, "s89")
        self.sig(p, Y_PUB, 20)
        self.stamp(p)
        e(f"s_cmp_lt_u32 {IDX}, 30\ns_cbranch_scc1 L_s1")
        e(f"v_lshrrev_b32 v17, 3, {LANE}\nv_lshlrev_b32 v17, 12, v17\nv_and_b32 v18, 7, {LANE}\nv_lshl_add_u32 v17, v18, 7, v17")
        if o["spk"]:
            e(f"s_lshl_b32 s88, {SUB}, 10\ns_and_b32 s51, {IDX}, 1\ns_mul_i32 s51, s51, {768*4096}\ns_add_u32 s88, s88, s51\ns_and_b32 s51, {XCD}, 1\ns_lshl_b32 s51, s51, 17\ns_add_u32 s88, s88, s51")
            e(f"s_mov_b32 s87, 0\nL_spf:")
            for q in range(2):
                for i in range(4):
                    e(f"s_add_u32 s51, s88, {(q*384 + 8*i)*4096}\nbuffer_load_dword v{24+4*q+i}, v17, {SW2}, s51 offen")
            e(f"s_add_u32 s88, s88, {64*4096}\ns_add_u32 s87, s87, 1\ns_waitcnt vmcnt(8)\ns_cmp_lt_u32 s87, {o['spk'] + o.get('spx', 0)}\ns_cbranch_scc1 L_spf")
        else:
            e(f"s_lshl_b32 s88, {SUB}, 10\ns_and_b32 s51, {IDX}, 1\ns_lshl_b32 s51, s51, 15\ns_add_u32 s88, s88, s51\ns_and_b32 s51, {XCD}, 1\ns_lshl_b32 s51, s51, 16\ns_add_u32 s88, s88, s51")
            if o["slow"]:
                e(f"v_lshlrev_b32 v18, 12, {LANE}\ns_lshl_b32 s87, {SUB}, 10\ns_add_u32 s87, s87, 384\ns_and_b32 s51, {IDX}, 1\ns_lshl_b32 s51, s51, 18\ns_add_u32 s87, s87, s51")
                for i in range(12): e(f"buffer_load_dword v{70+i}, v18, {SW2}, s87 offen\ns_add_u32 s87, s87, {128*4096}")
            for i in range(o["nsp"]):
                e(f"buffer_load_dword v{24+i}, v17, {SW2}, s88 offen\ns_add_u32 s88, s88, 131072")
        e("s_waitcnt vmcnt(0)")
        self.sig(p, Y_F1, 20)
        e("s_branch L_s2\nL_s1:")
        self.inverse_addr(p)
        self.spin(p, Y_P1, 1, 20, sleep=2)
        self.stamp(p)
        e(f"s_mov_b32 s50, {F1}")
        self.poll(p, "v14", "s50", 20, wide=True, sleep=o["psleep"])
        self.sig(p, Y_F1, 20)
        self.stamp(p)
        if self.debug: e(f"v_writelane_b32 {VDBG}, s78, 31")
        self.inverse(p)
        e("L_s2:")
        self.spin(p, Y_P2, 1, 20, sleep=4)
        self.stamp(p)
        self.poll(p, "v15", "s92", 20, sleep=o["psleep2"])
        self.sig(p, Y_F2, 20)
        self.stamp(p)
        if self.debug: e(f"v_writelane_b32 {VDBG}, s78, 30")
        self.spin(p, Y_P3, 1, 20, sleep=4)
        if o["sp3"]:
            e("s_add_u32 s94, s48, s93\ns_addc_u32 s95, s49, 0\ns_mov_b32 s78, 0\ns_branch L_sp3f\nL_sp3:")
            e(f"s_sleep {o['sp3']}\nL_sp3f:")
            for i in range(30): e(f"s_load_dword s{16+i}, s[94:95], {128*i} glc")
            e("s_add_u32 s78, s78, 1\ns_waitcnt lgkmcnt(0)")
            e(f"s_xor_b32 s79, s16, {TAG}")
            for i in range(1, 30): e(f"s_xor_b32 s51, s{16+i}, {TAG}\ns_or_b32 s79, s79, s51")
            e("s_cmp_gt_u32 s78, 0x8000\ns_cbranch_scc1 L_sp3d\ns_cmp_lg_u32 s79, 0\ns_cbranch_scc1 L_sp3\nL_sp3d:")
        else: self.poll(p, "v16", "s93", 20, sleep=o["psleep2"])
        self.sig(p, Y_F3, 20)
        if self.debug: e(f"v_writelane_b32 {VDBG}, s78, 29")
        self.finish(p)
        return p

    def kgen(self, p):
        e = p.e; RAW = self.RAW
        L2E = 1.4426950408889634
        l2e_hi = struct.unpack("<f", struct.pack("<f", L2E))[0]; l2e_lo = L2E - l2e_hi
        VDT, VD1, VD2, VDS, WA, RA, RB = 54, 55, 56, 57, 58, 59, 60
        e(f"s_and_b32 s51, {CH}, 1\ns_lshl_b32 s51, s51, 4\ns_lshr_b32 s80, s80, s51\ns_lshl_b32 s80, s80, 16\ns_lshr_b32 s81, s81, s51\ns_lshl_b32 s81, s81, 16")
        e(f"v_mov_b32 v62, s80\nv_mov_b32 v63, {fbits(l2e_hi)}\nv_mul_f32 v64, v62, v63\nv_fma_f32 v65, v62, v63, -v64\nv_fmac_f32 v65, {fbits(l2e_lo)}, v62")
        e(f"v_exp_f32 v64, v64\nv_mul_f32 v65, {fbits(0.6931471805599453)}, v65\nv_fma_f32 v{VDT}, v64, v65, v64")
        self.rbf(p, VDT)
        e(f"v_mul_f32 v{VD1}, {fbits(L2E)}, v{VDT}\nv_mul_f32 v{VD2}, 0.15915494, v{VDT}")
        e(f"v_cmp_eq_u32 vcc, 0, {LANE}\nv_mov_b32 v62, s81\nv_cndmask_b32 v{VDS}, 0, v62, vcc")
        e(f"s_mov_b32 m0, {REGB}")
        e(f"v_and_b32 v62, 31, {LANE}\nv_lshrrev_b32 v63, 5, {LANE}\nv_lshlrev_b32 v63, 4, v63\nv_add_u32 v63, {REGB}, v63")
        e(f"v_mul_u32_u24 v64, {KP}, v62\nv_add_u32 v{RB}, v64, v63")
        e(f"v_min_u32 v62, 20, v62\nv_mul_u32_u24 v64, {KP}, v62\nv_add_u32 v{RA}, v64, v63")
        e("v_mov_b32 v28, 0x3f80")
        e("s_waitcnt vmcnt(0)")
        self.stamp(p)
        PK = 116; pk = [0]; P = 62
        FA, FB = 16, 48
        def mf(rd):
            l = []
            for s in range(8):
                q = Prog()
                c = a(0, 16)
                q.e(f"v_mfma_f32_32x32x16_bf16 {a(0,16)}, {a(FA+4*s,4)}, {a(FB+4*s,4)}, {c}")
                l.append(q)
            return l
        p.e("s_mov_b32 s76, 0\nL_kg:")
        for rd in (1,):
            usepk = self.o["pk"]
            q = Prog(); e = q.e
            def cmul(sets):
                if usepk:
                    for d, x, y in sets: e(f"v_pk_mul_f32 {v(d,2)}, {v(x,2)}, {v(y,2)} op_sel_hi:[0,1]")
                    for d, x, y in sets: e(f"v_pk_fma_f32 {v(d,2)}, {v(x,2)}, {v(y,2)}, {v(d,2)} op_sel:[1,1,0] op_sel_hi:[1,0,1] neg_lo:[1,0,0]")
                else:
                    for d, x, y in sets: e(f"v_mul_f32 v{d}, v{x}, v{y}\nv_mul_f32 v{d+1}, v{x}, v{y+1}")
                    for d, x, y in sets: e(f"v_fma_f32 v{d}, -v{x+1}, v{y+1}, v{d}\nv_fmac_f32 v{d+1}, v{x+1}, v{y}")
            def puts(l, neg):
                rs = []
                for row, z in l:
                    r = PK + pk[0] % 8; pk[0] += 1; rs.append(r)
                    e(f"v_cvt_pk_bf16_f32 v{r}, v{z}, {'-' if neg else ''}v{z+1}")
                for (row, z), r in zip(l, rs): e(f"ds_write_addtid_b32 v{r} offset:{row*KP}", "kw")
            for i in range(6):
                e(f"v_lshlrev_b32 v{P+i}, 16, v{RAW[2*i]}\nv_alignbit_b32 v{RAW[2*i]}, v{RAW[2*i+1]}, v{RAW[2*i]}, 16")
            AR, AI = 68, 69
            e(f"v_mul_f32 v{AR}, v{P}, v{VD1}\nv_mul_f32 v{AI}, v{P+1}, v{VD2}")
            e(f"v_mul_f32 v{P+2}, v{P+2}, v{VDT}\nv_mul_f32 v{P+3}, v{P+3}, v{VDT}")
            E1, E8, E256 = 70, 72, 74
            TM_, TA = 76, 79
            for i, t in enumerate((1.0, 8.0, 256.0)):
                if i == 0: e(f"v_mov_b32 v{TM_}, v{AR}\nv_fract_f32 v{TA}, v{AI}")
                else: e(f"v_mul_f32 v{TM_+i}, {fbits(t)}, v{AR}\nv_mul_f32 v{TA+i}, {fbits(t)}, v{AI}\nv_fract_f32 v{TA+i}, v{TA+i}")
            X = 82
            cmul([(X, P + 4, P + 2)])
            for i in range(3):
                e(f"v_exp_f32 v{TM_+i}, v{TM_+i}\nv_cos_f32 v{E1+2*i}, v{TA+i}\nv_sin_f32 v{E1+2*i+1}, v{TA+i}")
            for i in range(3): e(f"v_mul_f32 v{E1+2*i}, v{E1+2*i}, v{TM_+i}\nv_mul_f32 v{E1+2*i+1}, v{E1+2*i+1}, v{TM_+i}")
            E2, E4, E16, E512 = 98, 100, 102, 104
            EA, EB, E32, Y, Z = 106, 20, 114, 30, 38
            cmul([(E2, E1, E1), (E16, E8, E8), (E512, E256, E256), (X + 2, X, E1)])
            cmul([(E4, E2, E2), (EA + 6, E16, E8), (E32, E16, E16), (X + 4, X, E2), (X + 6, X + 2, E2)])
            p.ext(q)
            p.e("s_waitcnt lgkmcnt(0)")
            q = Prog(); e = q.e
            e(f"ds_write_addtid_b32 v28", "kw")
            puts([(1, E8), (2, E16), (3, EA + 6), (4, E32)], False)
            cmul([(EB, E8, E32), (EB + 2, E16, E32), (EB + 4, EA + 6, E32), (EB + 6, E32, E32)])
            cur, nxt = EB, EA
            extra = [[(X + 8 + 2 * i, X + 2 * i, E4) for i in range(4)], [(Y + 2 * i, X + 4 * i, E256) for i in range(4)],
                     [(Z, X, E512), (Z + 2, X + 8, E512), (Z + 4, Y, E512), (Z + 6, Y + 4, E512)],
                     [(Z + 8, Z, E512), (Z + 10, Z + 4, E512)], [(Z + 12, Z + 8, E512), (Z + 14, Z + 10, E512)], [(E1, Z + 12, E512)]]
            for st in range(6):
                j0 = 9 + 4 * st
                n = min(4, 32 - j0)
                cmul([(nxt + 2 * i, cur + 2 * i, E32) for i in range(n)])
                puts([(j0 - 4 + i, cur + 2 * i) for i in range(4)], False)
                cmul(extra[st])
                cur, nxt = nxt, cur
            puts([(29 + i, cur + 2 * i) for i in range(3)], False)
            if rd > 0: p.ext(interleave(q, mf(rd - 1)))
            else: p.ext(q)
            for s_ in range(8): p.e(f"ds_read_b128 {a(FB+4*s_,4)}, v{RB} offset:{s_*32}", "kr")
            e = p.e
            puts([(i, X + 2 * i) for i in range(4)], True); puts([(4 + i, X + 8 + 2 * i) for i in range(4)], True)
            puts([(8 + i, Y + 2 * i) for i in range(4)], True); puts([(12 + i, Z + 2 * i) for i in range(4)], True)
            puts([(16 + i, Z + 8 + 2 * i) for i in range(4)] + [(20, E1)], True)
            for s_ in range(8): p.e(f"ds_read_b128 {a(FA+4*s_,4)}, v{RA} offset:{s_*32}", "kr")
            p.e("s_cmp_lg_u32 s76, 0\ns_cbranch_scc1 L_kg1")
            for i in range(16): p.e(f"v_accvgpr_write_b32 a{i}, 0")
            p.e("L_kg1:")
            if self.debug: p.e(f"s_memrealtime s[82:83]\ns_waitcnt lgkmcnt(0)\ns_add_u32 s50, s76, 20\nv_mov_b32 v61, s82\nv_cmp_eq_u32 vcc, s50, {LANE}\nv_cndmask_b32 {VDBG}, {VDBG}, v61, vcc")
            kp = self.o["kpause"]
            if kp == 9:
                p.e(f"ds_read_b32 v61, {VSY} offset:{4*Y_PUB}\ns_waitcnt lgkmcnt(0)\nv_readfirstlane_b32 s79, v61\ns_cmp_lt_u32 s79, 2\ns_cbranch_scc1 L_kg2\ns_cmp_eq_u32 s76, 0\ns_cbranch_scc1 L_kg2")
                self.spin(p, self.o["kword"], 1, 61, sleep=4)
                p.e("L_kg2:")
            elif kp:
                p.e(f"s_cmp_lg_u32 s76, {kp - 1}\ns_cbranch_scc1 L_kg2")
                self.spin(p, self.o["kword"], 1, 61, sleep=4)
                p.e("L_kg2:")
            p.e("s_add_u32 s76, s76, 1\ns_cmp_lt_u32 s76, 3\ns_cbranch_scc1 L_kg")
        e = p.e
        e(f"v_and_b32 v62, 31, {LANE}\nv_lshrrev_b32 v63, 5, {LANE}\ns_add_u32 s51, {REGB}, {KCO}")
        e(f"v_lshlrev_b32 v64, 4, v62\nv_lshl_add_u32 v64, v63, 3, v64\nv_add_u32 v64, s51, v64")
        e(f"v_cmp_eq_u32 vcc, 0, v63\nv_lshlrev_b32 v65, 3, v62\nv_add_u32 v65, 512, v65\nv_lshlrev_b32 v66, 2, v62\nv_add_u32 v66, 768, v66")
        e(f"v_cndmask_b32 v65, v66, v65, vcc\nv_add_u32 v65, s51, v65\nv_mov_b32 v66, 128\nv_cndmask_b32 v66, v66, 4, vcc\nv_add_u32 v66, v65, v66")
        e(f"v_lshlrev_b32 v67, 1, v62\nv_lshl_add_u32 v67, v63, 8, v67\nv_add_u32 v67, s51, v67")
        self.spin(p, Y_PUB, 1, 68)
        for q in mf(2): p.ext(q)
        e(f"v_mov_b32 v76, 0\nv_mov_b32 v77, 0\nv_mov_b32 v78, 0\nv_mov_b32 v79, 0\nv_add_u32 v15, {REGB}, {L16}")
        for i in range(4): e(f"ds_write_b128 v15, v[76:79] offset:{R0O + 1024*i}", "kc")
        e("s_mov_b64 exec, 3")
        e(f"ds_write_b128 v15, v[76:79] offset:{KCO - 32}", "kc")
        e("s_mov_b32 exec_lo, -1")
        e(f"ds_write_b128 v15, v[76:79] offset:{UO}", "kc")
        e("s_mov_b64 exec, -1")
        blocks = [(-2, 34, 8), (32, 32, 4)]
        info = []
        for bi, (v0, nl, stride) in enumerate(blocks):
            cis = lambda y: y if y < 0 else ci(y)
            base = cis(8 * v0)
            offs = {}
            for t in range(-1, 8):
                o = [cis(8 * (v0 + l) + 7 - t) - (base + stride * l) for l in range(nl)]
                offs[t] = o[0]
                assert all(x == o[0] for x in o)
            AD = 100 + 2 * bi
            e(f"s_add_u32 s51, {REGB}, {KCO + 2*base}\nv_mul_u32_u24 v{AD}, {2*stride}, {LANE}\nv_add_u32 v{AD}, s51, v{AD}")
            e(f"s_add_u32 s51, {REGB}, {(75 - v0) * 16}\nv_sub_u32 v{AD+1}, s51, {L16}")
            info.append(offs)
        e(f"v_cmp_gt_u32 vcc, 16, {LANE}\nv_mov_b32 v104, 563\nv_mov_b32 v105, 512\nv_cndmask_b32 v104, v104, v105, vcc\nv_add_u32 v104, v104, {LANE}")
        e(f"v_mov_b32 v106, 1011\nv_cndmask_b32 v105, v106, v105, vcc\nv_add_u32 v105, v105, {LANE}\nv_cvt_f32_u32 v105, v105\nv_cvt_pk_bf16_f32 v105, v105, v105\nv_and_b32 v105, 0xffff, v105")
        e(f"s_sub_u32 s51, {REGB}, {2*0x4280 - KCO}\nv_lshl_add_u32 v105, v105, 1, s51")
        e(f"s_add_u32 s51, {REGB}, {2*607}\nv_lshlrev_b32 v104, 1, v104\nv_sub_u32 v104, s51, v104")
        e(f"v_add_u32 v107, 1, {LANE}\nv_and_b32 v107, 0x7e, v107\ns_add_u32 s51, {REGB}, 4096\nv_sub_u32 v107, s51, v107\nv_and_b32 v106, 1, {LANE}")
        e(f"v_mul_u32_u24 v108, 192, v106\nv_add_u32 v108, v107, v108\nv_mul_u32_u24 v106, 272, v106\nv_add_u32 v107, v107, v106\nv_lshl_add_u32 v106, {LANE}, 1, {REGB}")
        for i in range(12): e(f"v_accvgpr_read_b32 v{82+i}, a{i}")
        e(f"v_add_f32 v82, v82, v{VDS}")
        for i in range(6): e(f"v_cvt_pk_bf16_f32 v{70+i}, v{82+2*i}, v{83+2*i}")
        e(f"ds_write_b64 v64, v[70:71]\nds_write_b32 v65, v72\nds_write_b32 v66, v73\nds_write_b16 v67, v74 offset:1024", "kc")
        e("s_mov_b32 exec_hi, 0")
        e(f"ds_write_b16_d16_hi v67, v74 offset:{1024+64}\nds_write_b16 v67, v75 offset:{1024+128}\nds_write_b16_d16_hi v67, v75 offset:{1024+192}", "kc")
        e("s_mov_b64 exec, -1")
        vrs = []
        for bi, (v0, nl, stride) in enumerate(blocks):
            RR = 20 + 9 * bi; AD = 100 + 2 * bi; offs = info[bi]
            e(f"s_mov_b32 exec_hi, {(1 << (nl - 32)) - 1}")
            seen = {}; vr = {}
            for t in range(-1, 8):
                o = offs[t]
                if o not in seen:
                    seen[o] = RR + len(seen)
                    e(f"ds_read_u16 v{seen[o]}, v{AD} offset:{2*o}", f"kx{bi}")
                vr[t] = seen[o]
            vrs.append(vr)
        e("ds_read_u16 v40, v105", "kq")
        e("s_mov_b64 exec, -1")
        for i in range(2):
            e(f"ds_read_u16 v{41+i}, v106 offset:{KCO + 2*(388 + 64*i)}\nds_read_u16 v{43+i}, v106 offset:{KCO + 2*(514 + 64*i)}", "kq")
        for bi, (v0, nl, stride) in enumerate(blocks):
            AD = 100 + 2 * bi; O = 70 + 8 * bi; vr = vrs[bi]
            p.wlg(f"kx{bi}")
            for i in range(4): e(f"v_lshl_or_b32 v{O+i}, v{vr[2*i+1]}, 16, v{vr[2*i]}")
            for i in range(4): e(f"v_lshl_or_b32 v{O+4+i}, v{vr[2*i]}, 16, v{vr[2*i-1]}")
            e(f"s_mov_b32 exec_hi, {(1 << (nl - 32)) - 1}")
            e(f"ds_write_b128 v{AD+1}, {v(O,4)} offset:{R0O}\nds_write_b128 v{AD+1}, {v(O+4,4)} offset:{R1O}", "kt")
            e("s_mov_b64 exec, -1")
        p.wlg("kq")
        e(f"ds_write_b16 v107, v41 offset:{Q2O - 4096 + 2*94}\nds_write_b16 v108, v43 offset:{Q3O - 4096 + 2*63}\nds_write_b16 v108, v43 offset:{Q3O - 4096 + 384 + 2*64}", "kt")
        e(f"s_mov_b32 exec_hi, {(1 << 31) - 1:#x}\nds_write_b16 v108, v44 offset:{Q3O - 4096 + 2*31}\nds_write_b16 v108, v44 offset:{Q3O - 4096 + 384 + 2*32}", "kt")
        e(f"s_mov_b32 exec_hi, {(1 << 29) - 1:#x}\nds_write_b16 v107, v42 offset:{Q2O - 4096 + 2*62}", "kt")
        e(f"s_mov_b32 exec_hi, 0\ns_mov_b32 exec_lo, 0x01ff3fff\nds_write_b16 v104, v40 offset:{R0O}\nds_write_b16 v104, v40 offset:{R1O + 2}\ns_mov_b64 exec, -1", "kt")

    def conv_setup(self, p):
        e = p.e
        e(f"v_lshrrev_b32 v32, 4, {LANE}\nv_and_b32 v31, 15, {LANE}\nv_bfe_u32 v33, {LANE}, 1, 3\nv_lshlrev_b32 v34, 2, v32\nv_sub_u32 v34, v34, v33")
        e(f"v_and_b32 v33, 1, {LANE}\nv_xor_b32 v33, 1, v33\nv_mul_u32_u24 v33, {(R1O - R0O)//4 + 1}, v33\nv_add_u32 v34, v34, v33")
        e(f"s_add_u32 s51, {REGB}, {R0O + 4*7}\nv_lshl_add_u32 v24, v34, 2, s51\nv_add_u32 v25, 512, v24")
        e(f"v_lshlrev_b32 v33, 3, v32\nv_lshlrev_b32 v34, 2, v31\nv_sub_u32 v26, v33, v34\ns_add_u32 s51, {REGB}, {Q2O + 60}\nv_add_u32 v26, s51, v26")
        e(f"v_lshlrev_b32 v34, 1, v31\nv_sub_u32 v27, v33, v34\nv_and_b32 v34, 1, v31\nv_mul_u32_u24 v34, 386, v34\nv_sub_u32 v27, v27, v34\ns_add_u32 s51, {REGB}, {Q3O + 384 + 32}\nv_add_u32 v27, s51, v27")
        for m in list(range(17)) + [18]:
            off = (18 - m) * 16; ad = 24; r = 4 * min(m, 17)
            if off >= 128: off -= 128; ad = 25
            e(f"ds_read2_b32 {a(r,2)}, v{ad} offset0:{off} offset1:{off+1}\nds_read2_b32 {a(r+2,2)}, v{ad} offset0:{off+2} offset1:{off+3}", "pf")
        for j in range(6): e(f"ds_read2_b32 {a(72+4*j,2)}, v26 offset0:{8*j} offset1:{8*j+1}\nds_read2_b32 {a(74+4*j,2)}, v26 offset0:{68+8*j} offset1:{68+8*j+1}", "pf")
        for j in range(4): e(f"ds_read2_b32 {a(96+4*j,2)}, v27 offset0:{8*j} offset1:{8*j+1}\nds_read2_b32 {a(98+4*j,2)}, v27 offset0:{48+8*j} offset1:{48+8*j+1}", "pf")
        e(f"v_lshl_add_u32 v34, v31, 1, v32\ns_add_u32 s51, {REGB}, {UO + 16*2}\nv_lshl_add_u32 v16, v34, 4, s51")
        e(f"v_add_u32 v34, v31, v32\ns_add_u32 s51, {REGB}, {UO + 512 - 48}\nv_lshl_add_u32 v12, v34, 4, s51")
        e(f"v_and_b32 v34, 1, v32\nv_lshlrev_b32 v34, 9, v34\nv_lshl_add_u32 v34, v31, 5, v34\nv_lshrrev_b32 v32, 1, v32\nv_lshl_add_u32 v17, v32, 4, v34")
        e(f"s_lshl_b32 s86, {CH}, 12\ns_add_u32 s86, s86, {YT}\ns_mul_i32 s89, {DT}, 24\ns_add_u32 s89, s89, {FT}\ns_lshl_b32 s89, s89, 7\ns_add_u32 s89, s89, {F3}\ns_sub_u32 s88, {NCH}, 1")
    def boxes(self, p):
        e = p.e
        e("v_mov_b32 v23, 0x3f80")
        e(f"v_and_b32 v124, 15, {LANE}\nv_lshrrev_b32 v125, 4, {LANE}\nv_lshlrev_b32 v125, 3, v125\ns_mov_b32 s50, 0x8001\ns_mov_b32 s51, 0x10001")
        for bi, (c_, h_) in enumerate(((8, 2), (12, 1), (8, 4), (8, 3))):
            e(f"v_mov_b32 v126, {((1 << (2*h_+1)) - 1) << (c_ - h_):#x}\nv_lshlrev_b32 v126, v124, v126\nv_lshrrev_b32 v126, v125, v126")
            for q in range(4):
                e(f"v_bfe_u32 v127, v126, {2*q}, 2\nv_mul_u32_u24 v127, s50, v127\nv_and_b32 v127, s51, v127\nv_mul_u32_u24 v127, v23, v127\nv_accvgpr_write_b32 a{112+4*bi+q}, v127")
        self.stamp(p)
        self.spin(p, Y_UR, 1, 22, sleep=2)
        e(f"ds_read_b32 {VTAG}, {VSY} offset:{4*Y_TAG}", "tag")
        self.stamp(p)
    def inverse_addr(self, p):
        e = p.e
        e(f"v_lshrrev_b32 v20, 4, {LANE}\nv_lshlrev_b32 v20, 10, v20\nv_and_b32 v21, 3, {LANE}\nv_lshl_add_u32 v20, v21, 4, v20\nv_and_b32 v21, 12, {LANE}")
        for q in range(4):
            e(f"v_add_u32 v22, {16*(q&1)}, v21\nv_bfe_u32 v22, s{74 + q//2}, v22, 4\nv_lshl_add_u32 v{4+q}, v22, 6, v20")
        e(f"s_mov_b32 s84, {STAT}\ns_mov_b32 s85, {STAT+4096}")
    def inverse(self, p):
        e = p.e
        S2, M2, SF, MF = 24, 40, 56, 88
        for q in range(4):
            e(f"buffer_load_dwordx4 {v(S2+4*q,4)}, v{4+q}, {SWS}, s84 offen sc1", "u")
            e(f"buffer_load_dwordx4 {v(M2+4*q,4)}, v{4+q}, {SWS}, s85 offen sc1", "u")
        e(f"s_setprio {self.o['iprio']}")
        p.wvm("u")
        self.unpack(p, S2, SF, 16); self.unpack(p, M2, MF, 16)
        for q in range(4):
            self.spin(p, Y_U + q, 4, 22, sleep=(2 if q < 3 else 1))
            for c in range(3): e(f"ds_read_b128 {v(24+4*c,4)}, v{4+q} offset:{REG0 + c*REGSZ + UO + 512}", f"ur{q}{c}")
            for c in range(3):
                p.wlg(f"ur{q}{c}")
                self.unpack(p, 24 + 4 * c, 40, 4)
                for i in range(8): e(f"v_fma_f32 v{40+i}, v{40+i}, v{SF+8*q+i}, v{MF+8*q+i}")
                o = 48 + 4 * (c & 1)
                for i in range(4): e(f"v_cvt_pk_bf16_f32 v{o+i}, v{40+2*i}, v{41+2*i}")
                e(f"ds_write_b128 v{4+q}, {v(o,4)} offset:{REG0 + c*REGSZ + UO + 512}", "uw")
        self.sig(p, Y_UR, 20)
        e("s_setprio 3")
    def conv(self, p):
        e = p.e
        YO, ACC, DT_, PKD = 17, 64, 116, 124
        slots = [24 + 4 * i for i in range(10)] + [96 + 4 * i for i in range(5)]
        slots = slots[:self.o["cns"]]; NS = len(slots)
        R = lambda n: v(slots[n % NS], 4)
        F = []
        for ph in range(8):
            for d in range(8):
                l = [(d + mu, 4 * (8 * mu + ph)) for mu in range(2) if d + mu <= 7]
                if ph == 0 and d <= 5: l.append((d + 2, 64))
                if ph == 0 and d <= 3: l.append((d + 4, 68))
                F.append((f"v16 offset:{512*d + (7-ph)*64}", l))
        S = []
        for st in range(4):
            S.append(([f"v16 offset:{16*(27 + 32*st)}", f"v16 offset:{16*(28 + 32*st)}"], 120, [(I, 96 + 4 * (st - I + 7)) for I in range(4, 8) if st <= I - 4]))
        for st in range(12):
            S.append(([f"v12 offset:{256*st}"], 112, [(I, 72 + 4 * (st - 2 * I + 8)) for I in range(2, 8) if 2 * I - 8 <= st <= 2 * I - 3]))
        loads = []; steps = []
        def ld(addr): loads.append(addr); return len(loads) - 1
        for i, (ad, box, l) in enumerate(S):
            ids = [ld(x) for x in ad]
            steps.append(("box", ids, box))
            for k in range(3): steps.append(("F", [ld(F[4*i+k][0])], F[4*i+k][1]))
            steps.append(("cvt", [], None))
            steps.append(("F", [ld(F[4*i+3][0])], F[4*i+3][1]))
            steps.append(("S", [], l))
        first = set(); nl = [0]
        def issue(upto):
            while nl[0] < min(upto, len(loads)):
                e(f"ds_read_b128 {R(nl[0])}, {loads[nl[0]]}", f"cj{nl[0]}"); nl[0] += 1
        def mm(I, A, B):
            acc = v(ACC + 4 * I, 4); src = acc if I in first else "0"; first.add(I)
            e(f"v_mfma_f32_16x16x32_bf16 {acc}, {A}, {B}, {src}")
        if self.o.get("dly_c"): e(f"s_sleep {self.o['dly_c']}")
        issue(NS)
        if self.o["cwait"]: self.spin(p, Y_EPI, self.o["cwait"], 22, sleep=1)
        e(f"s_setprio {self.o['cprio0']}")
        self.stamp(p)
        for si, (kind, ids, arg) in enumerate(steps):
            if si == self.o["cswitch"]: e(f"s_setprio {self.o['cprio']}")
            if ids: p.wlg(f"cj{ids[-1]}")
            if kind == "box":
                e(f"v_mfma_f32_16x16x32_bf16 {v(DT_,4)}, {R(ids[0])}, {a(arg,4)}, 0")
                issue(ids[0] + NS)
                e(f"v_mfma_f32_16x16x32_bf16 {v(DT_+4,4)}, {R(ids[-1])}, {a(arg+4,4)}, 0")
            elif kind == "F":
                for i, (I, kf) in enumerate(arg):
                    mm(I, a(kf, 4), R(ids[0]))
                    if i == 0: issue(ids[0] + NS)
            elif kind == "cvt":
                for i in range(4): e(f"v_cvt_pk_bf16_f32 v{PKD+i}, v{DT_+2*i}, v{DT_+2*i+1}")
            else:
                for I, kf in arg: mm(I, v(PKD, 4), a(kf, 4))
        for k in range(4):
            o = 24 + 4 * k
            for i in range(4): e(f"v_cvt_pk_bf16_f32 v{o+i}, v{ACC+8*k+2*i}, v{ACC+8*k+2*i+1}")
            e(f"v_permlane16_swap_b32 v{o}, v{o+2}\nv_permlane16_swap_b32 v{o+1}, v{o+3}")
            e(f"buffer_store_dwordx4 {v(o,4)}, v{YO}, {SWS}, s86 offen offset:{1024*k} sc1", "ys")
        self.stamp(p)
        e("s_waitcnt vmcnt(0)")
        e(f"v_mov_b32 v20, 1\ns_mov_b64 exec, 1\nds_add_rtn_u32 v20, {VSY}, v20 offset:{4*Y_Y}\ns_mov_b64 exec, -1\ns_waitcnt lgkmcnt(0)\nv_readfirstlane_b32 s79, v20")
        e(f"s_cmp_lg_u32 s79, s88\ns_cbranch_scc1 L_ynl")
        self.flag_store(p, "s89")
        e("L_ynl:")
    def convw(self):
        self.role = "conv"
        p = Prog(); e = p.e
        self.conv_start(p)
        self.stamp(p)
        if not self.o.get("skip_kgen"): self.kgen(p)
        else: self.stamp(p)
        self.stamp(p)
        if self.o.get("dly_k"): e(f"s_sleep {self.o['dly_k']}")
        self.conv_setup(p)
        e("s_setprio 0")
        self.boxes(p)
        self.conv(p)
        self.finish(p)
        return p

    def build(self):
        p = Prog(); self.prologue(p)
        p.ext(self.main())
        body = finalize(p)
        q = Prog(); q.e("L_aux:")
        q.e(f"s_cmp_eq_u32 {WV}, 7\ns_cbranch_scc1 L_serv"); q.ext(self.convw())
        body += finalize(q)
        q = Prog(); q.e("L_serv:"); q.ext(self.serv()); q.e("L_end:\nL_last:\ns_endpgm")
        body += finalize(q)
        body = body.replace("@", "")
        ref = open("cdna_kernels/" + NAME + ".s.ref").read()
        head = [l for l in ref.split("\n") if l.startswith(";") and "@launch" not in l]
        k = NAME + "_kernel"
        s = "\n".join(head) + f"\n; @launch grid=(256,1,1) block=(512,1,1) lds={LDS_BYTES}\n"
        s += f'.amdgcn_target "amdgcn-amd-amdhsa--gfx950"\n.text\n.globl {k}\n.p2align 8\n.type {k},@function\n{k}:\n'
        s += body
        s += f""".section .rodata,"a"
.p2align 6
.amdhsa_kernel {k}
  .amdhsa_next_free_vgpr 256
  .amdhsa_next_free_sgpr 102
  .amdhsa_accum_offset 128
  .amdhsa_group_segment_fixed_size 0
  .amdhsa_kernarg_size 136
  .amdhsa_user_sgpr_count 2
  .amdhsa_user_sgpr_kernarg_segment_ptr 1
  .amdhsa_system_sgpr_workgroup_id_x 1
.end_amdhsa_kernel
"""
        return s

if __name__ == "__main__":
    out = sys.argv[1]
    kw = eval("dict(" + (sys.argv[2] if len(sys.argv) > 2 else "") + ")")
    open(out, "w").write(G(**kw).build())
```

```python
import sys, struct
from asmlib import Prog, interleave, finalize

NAME = "parallel_sum__ssm_conv_s4__mixer_token_mlp__prompt"
STAT, TM, F2, F3, F1 = 0x4000, 0x8000, 0x50000, 0x58000, 0x60000
HB, GB, YT, WSEND = 0x80000, 0x300000, 0x4E0000, 0x760000
RINGW, RS = 28672, 7
PT = 1344
REG0, REGSZ = 0, 14976
SYNC = 3 * REGSZ
RING0 = 45056
KCO, R0O, R1O, Q2O, Q3O = 32, 1408, 1408 + 1344, 4096, 4672
Z5O, Z3O, Z9O, Z7O, UO = 0, 3104, 6208, 8288, 10368
LNT = REG0 + 8704
KP = 272
LDS_BYTES = 163840
assert SYNC + 128 <= RING0 and RING0 + 4 * RINGW <= LDS_BYTES
Y_EPI = 3
Y_Y = 16
Y_UR = 17
Y_LN, Y_F1, Y_PART, Y_PUB, Y_P1, Y_G, Y_P2, Y_F2, Y_P3, Y_F3, Y_TAG, Y_U = 0, 1, 2, 4, 5, 6, 7, 8, 9, 10, 11, 12

DOC = '; One persistent launch, 256 workgroups (one per CU) of 8 waves; generated by a hand-written script.\n'

def fbits(x): return "0x%08x" % struct.unpack("<I", struct.pack("<f", x))[0]
def bf16r(l):
    u = struct.unpack("<I", struct.pack("<f", float(l)))[0]
    u = ((u + 0x7FFF + ((u >> 16) & 1)) >> 16) << 16
    return int(struct.unpack("<f", struct.pack("<I", u))[0])
def ci(l):
    v = bf16r(l)
    if v <= 256: return v
    if v <= 512: return 256 + (v - 256) // 2
    if v <= 1024: return 384 + (v - 512) // 4
    return 512 + (v - 1024) // 8

WG, WV, XCD, IDX, DT, FT, DT2, ST2, TAG, ROT1, ROT2, CH = "s2", "s3", "s4", "s5", "s6", "s7", "s8", "s9", "s10", "s11", "s12", "s13"
SUB, C0, NCH = "s97", "s98", "s99"
SX, SW1, SW2, SOUT, SWS = "s[52:55]", "s[56:59]", "s[60:63]", "s[64:67]", "s[68:71]"
RINGB, REGB = "s73", "s77"
VSY, LANE, L16, L4, VTAG, VZ, VDBG = "v0", "v1", "v2", "v3", "v9", "v10", "v11"

def v(i, n=1): return f"v{i}" if n == 1 else f"v[{i}:{i+n-1}]"
def a(i, n=1): return f"a{i}" if n == 1 else f"a[{i}:{i+n-1}]"

def groups_of(prog):
    groups = []
    for it in prog.items:
        prev = groups[-1][-1][0] if groups else None
        if isinstance(prev, str) and (prev.startswith(("s_add_u32 m0", "s_cmp", "s_sub_u32 s51", "s_mov_b64 exec, s", "s_mov_b64 exec, 1", "ds_write_b128 v125", "ds_add"))):
            groups[-1].append(it)
        else: groups.append([it])
    return groups

def make_perm(n, nw, first, duty0, per=1):
    own = list(range(0, n, 2)); oth = list(range(1, n, 2))
    order = [[] for _ in range(nw)]; touched = {}
    pool = own[:]
    for pos in range(first):
        for j in range(nw):
            pass
    deal = [[] for _ in range(nw)]
    k = 0
    for pos in range(first):
        for j in range(nw):
            if pool: st = pool.pop(0)
            else: st = oth.pop(0)
            deal[j].append(st); touched[st] = pos
    rest = pool + oth
    duty = {}
    for i, st in enumerate(rest): duty[(duty0 + i // per, i % nw)] = st
    for j in range(nw): order[j] = list(deal[j])
    for pos in range(first, n):
        for j in range(nw):
            if (pos, j) in duty: touched[duty[(pos, j)]] = pos
        for j in range(nw):
            if (pos, j) in duty: order[j].append(duty[(pos, j)]); continue
            mine = {st for (pp, jj), st in duty.items() if jj == j and pp > pos}
            cand = [st for st in range(n) if st not in order[j] and st not in mine]
            cand.sort(key=lambda st: (touched.get(st, 99), (st - 2 * j) % n))
            order[j].append(cand[0])
    for o in order: assert sorted(o) == list(range(n)), o
    return order
def pack_perm(o):
    x = sum(st << (4 * i) for i, st in enumerate(o)); return x & 0xffffffff, x >> 32

class G:
    def __init__(self, debug=False, **kw):
        self.debug = debug
        self.o = dict(P1=6, D1=13, PS1=11, lead1=4, xk=-1, epifirst=1, sp3=0, first1=1, dpp=3, P2=4, D2=11, PS2=9, lead2=4, wflag="", xflag="", nsp=0, thr=4,
                      ytrig=5, ychk=10, pk=1, psleep=4, psleep2=8, kprio=0, mprio=2, ebpos=0, kpause=9, kword=5, spk=0, spw=0, sx=4, spa=0, tch=0, cprio=3, ipf=2, ns1=12, ns2=15, perm=1, duty1=1, duty2=3, oflag='', eb=2, pfirst=1, free1=1, pre1=1, cns=15, sg1=0, sg2=0, epk=1, cprio0=0, cswitch=40, iprio=0, ow4=1, slow=0, ebk=99, nthr=6, pflag='nt', cwait=4)
        self.o.update(kw)
        self.nst = {}; self.nlab = 0; self.role = None
    def stamp(self, p):
        if not self.debug: return
        n = self.nst.get(self.role, 0)
        if n == 0: p.e(f"v_writelane_b32 {VDBG}, s100, 28")
        p.e(("s_memtime" if self.o.get("cyc") else "s_memrealtime") + " s[82:83]\ns_waitcnt lgkmcnt(0)")
        p.e(f"v_writelane_b32 {VDBG}, s82, {n}")
        self.nst[self.role] = n + 1
    def pre(self, p):
        if self.debug and self.o.get("prest"): p.e(f"s_memrealtime s[82:83]\ns_waitcnt lgkmcnt(0)\nv_writelane_b32 {VDBG}, s82, 27")
    def label(self, s):
        self.nlab += 1; return f"L{s}_{self.nlab}"
    def flag_store(self, p, soff, pre=""):
        p.e(f"s_mov_b64 exec, 1\n{pre}buffer_store_dword {VTAG}, {VZ}, {SWS}, {soff} offen sc1\ns_mov_b64 exec, -1")
    def poll(self, p, voff, soff, tmp, wide=False, sleep=0):
        l = self.label("poll"); d = self.label("polld"); f = self.label("pollf")
        p.e("s_mov_b32 s78, 0")
        if sleep: p.e(f"s_branch {f}")
        p.e(f"{l}:")
        if sleep: p.e(f"s_sleep {sleep}\n{f}:")
        if wide:
            p.e(f"buffer_load_dwordx4 {v(tmp,4)}, {voff}, {SWS}, {soff} offen sc1")
            p.e("s_add_u32 s78, s78, 1\ns_waitcnt vmcnt(0)")
            for i in range(4): p.e(f"v_xor_b32 {v(tmp+i)}, {TAG}, {v(tmp+i)}")
            p.e(f"v_or3_b32 {v(tmp)}, {v(tmp)}, {v(tmp+1)}, {v(tmp+2)}\nv_or_b32 {v(tmp)}, {v(tmp)}, {v(tmp+3)}")
            p.e(f"v_cmp_ne_u32 vcc, 0, {v(tmp)}")
        else:
            p.e(f"buffer_load_dword {v(tmp)}, {voff}, {SWS}, {soff} offen sc1")
            p.e("s_add_u32 s78, s78, 1\ns_waitcnt vmcnt(0)")
            p.e(f"v_cmp_ne_u32 vcc, {TAG}, {v(tmp)}")
        p.e(f"s_cmp_gt_u32 s78, 0x40000\ns_cbranch_scc1 {d}\ns_cbranch_vccz {d}\ns_mov_b64 exec, vcc\ns_branch {l}")
        p.e(f"{d}:\ns_mov_b64 exec, -1")
    def sig(self, p, word, tmp):
        p.e(f"v_mov_b32 v{tmp}, 1\ns_mov_b64 exec, 1\nds_add_u32 {VSY}, v{tmp} offset:{4*word}\ns_mov_b64 exec, -1", "sig")
    def spin(self, p, word, n, tmp, sleep=0):
        l = self.label("spin"); d = self.label("spind"); f = self.label("spinf")
        p.e("s_mov_b32 s78, 0")
        if sleep: p.e(f"s_branch {f}")
        p.e(f"{l}:")
        if sleep: p.e(f"s_sleep {sleep}\n{f}:")
        p.e(f"ds_read_b32 v{tmp}, {VSY} offset:{4*word}\ns_add_u32 s78, s78, 1\ns_waitcnt lgkmcnt(0)\nv_readfirstlane_b32 s79, v{tmp}")
        p.e(f"s_cmp_gt_u32 s78, 0x200000\ns_cbranch_scc1 {d}\ns_cmp_lt_u32 s79, {n}\ns_cbranch_scc1 {l}")
        p.e(f"{d}:")
    def mktag(self, p):
        p.e(f"s_mul_i32 {TAG}, {TAG}, 0x9E3779B1\ns_add_u32 {TAG}, {TAG}, 0x7F4A7C15\nv_mov_b32 {VTAG}, {TAG}")
    def finish(self, p):
        e = p.e
        if self.debug:
            e("s_waitcnt vmcnt(0)")
            self.stamp(p)
            e(f"s_lshl_b32 s50, {WG}, 3\ns_add_u32 s50, s50, {WV}\ns_lshl_b32 s50, s50, 7\ns_add_u32 s50, s50, {TM}")
            e(f"s_mov_b32 exec_hi, 0\nbuffer_store_dword {VDBG}, {L4}, {SWS}, s50 offen")
        e("s_endpgm")
    def srd(self, p, d, lo, size): p.e(f"s_mov_b32 s{d}, s{lo}\ns_mov_b32 s{d+1}, s{lo+1}\ns_mov_b32 s{d+2}, {size}\ns_mov_b32 s{d+3}, 0x20000")
    def unpack(self, p, src, dst, n):
        for i in range(n):
            p.e(f"v_lshlrev_b32 v{dst+2*i}, 16, v{src+i}\nv_and_b32 v{dst+2*i+1}, 0xffff0000, v{src+i}")
    def rbf(self, p, r):
        p.e(f"v_cvt_pk_bf16_f32 v{r}, v{r}, v{r}\nv_lshlrev_b32 v{r}, 16, v{r}")

    def prologue(self, p):
        e = p.e; RAW = self.RAW; o = self.o
        if self.debug: e("s_memrealtime s[100:101]")
        e(f"s_cmp_ge_u32 {WG}, 256\ns_cbranch_scc1 L_end0")
        e("s_load_dwordx16 s[16:31], s[0:1], 0\ns_load_dwordx16 s[32:47], s[0:1], 64\ns_load_dwordx2 s[48:49], s[0:1], 128")
        e(f"v_and_b32 {LANE}, 63, v0\nv_lshrrev_b32 v12, 6, v0\nv_readfirstlane_b32 {WV}, v12")
        e(f"v_lshlrev_b32 {L4}, 2, {LANE}\nv_mov_b32 {VZ}, 0\nv_mov_b32 {VSY}, {SYNC}")
        e(f"s_cmp_lg_u32 {WV}, 7\ns_cbranch_scc1 L_p1")
        if o["ipf"]:
            e(f"s_getpc_b64 s[90:91]\nL_pc:\ns_bfe_u32 s51, {WG}, {(o['ipf'] << 16) | 3:#x}\ns_lshl_b32 s51, s51, 13")
            e(f"v_lshl_add_u32 v112, {LANE}, 7, s51\nv_min_u32 v112, L_last-L_pc, v112")
            e("v_mov_b32 v113, s91\nv_add_co_u32 v112, vcc, s90, v112\nv_addc_co_u32 v113, vcc, 0, v113, vcc")
            e("@global_load_dword v114, v[112:113], off")
        e(f"s_mov_b32 exec_hi, 0\nds_write_b32 {L4}, {VZ} offset:{SYNC}\ns_mov_b64 exec, -1")
        e(f"s_waitcnt lgkmcnt(0)\n@s_load_dword {TAG}, s[48:49], 0\ns_branch L_p3")
        e("L_end0:\ns_endpgm\nL_p1:")
        e(f"s_cmp_ge_u32 {WV}, 4\ns_cbranch_scc1 L_p2")
        e(f"v_lshrrev_b32 v120, 5, {LANE}\nv_mul_u32_u24 v121, 1280, v120\nv_and_b32 v122, 31, {LANE}")
        e("v_lshl_add_u32 v123, v122, 4, v121\nv_lshl_add_u32 v124, v122, 3, v121")
        e(f"s_lshl_b32 s50, {WG}, 3\ns_lshl1_add_u32 s50, {WV}, s50\ns_mul_i32 s50, s50, 1280")
        e("s_mov_b32 s54, 2621440\ns_mov_b32 s55, 0x20000\ns_waitcnt lgkmcnt(0)\ns_mov_b32 s52, s16\ns_mov_b32 s53, s17")
        xf = o["xflag"]
        e(f"buffer_load_dwordx4 v[20:23], v123, {SX}, s50 offen {xf}", "x")
        e(f"buffer_load_dwordx4 v[24:27], v123, {SX}, s50 offen offset:512 {xf}", "x")
        e(f"buffer_load_dwordx2 v[28:29], v124, {SX}, s50 offen offset:1024 {xf}", "x")
        e("s_branch L_p3")
        e("L_p2:")
        self.tiles(p)
        e(f"s_sub_u32 s14, {WV}, 4\ns_cmp_ge_u32 s14, {NCH}\ns_cbranch_scc1 L_end0")
        e(f"s_lshl_b32 {CH}, {DT}, 6\ns_lshl4_add_u32 {CH}, {SUB}, {CH}\ns_add_u32 {CH}, {CH}, {C0}\ns_add_u32 {CH}, {CH}, s14")
        e(f"s_mul_i32 s51, {CH}, 384\nv_add_u32 v110, s51, {L4}\nv_lshl_add_u32 v111, {LANE}, 1, s51")
        e(f"s_lshr_b32 s79, {CH}, 1\ns_lshl_b32 s79, s79, 2")
        e("s_waitcnt lgkmcnt(0)")
        for i in range(6):
            e(f"@global_load_dword v{RAW[2*i]}, v110, s[{18+2*i}:{19+2*i}] {o['pflag']}")
            e(f"@global_load_ushort v{RAW[2*i+1]}, v111, s[{18+2*i}:{19+2*i}] offset:256 {o['pflag']}")
        e(f"@s_load_dword s80, s[30:31], s79\n@s_load_dword s81, s[32:33], s79")
        e("L_p3:\ns_barrier")
        e(f"v_lshlrev_b32 {L16}, 4, {LANE}\nv_mov_b32 {VDBG}, 0")
        self.tiles(p)
        self.srd(p, 68, 48, WSEND)
        if o["perm"]: P1_ = make_perm(16, 5, o["first1"], o["duty1"], o["dpp"])
        else: P1_ = [[(((2 * j * 205) >> 7) + i) % 16 for i in range(16)] for j in range(5)]
        for j, o_ in enumerate(P1_):
            lo, hi = pack_perm(o_)
            if j == 0: e(f"s_mov_b32 s74, {lo:#x}\ns_mov_b32 s75, {hi:#x}")
            else: e(f"s_cmp_eq_u32 s11, {j}\ns_cselect_b32 s74, {lo:#x}, s74\ns_cselect_b32 s75, {hi:#x}, s75")
        e("s_mul_i32 s51, s12, 0x11111111\ns_xor_b32 s74, s74, s51\ns_xor_b32 s75, s75, s51")
        e(f"s_and_b32 {DT2}, {IDX}, 3\ns_lshr_b32 {ST2}, {IDX}, 2\ns_xor_b32 {ST2}, {ST2}, {o['sx']}\ns_lshl2_add_u32 {DT2}, s12, {DT2}\ns_lshl3_add_u32 {ST2}, {SUB}, {ST2}")
        e(f"s_cmp_ge_u32 {WV}, 4\ns_cbranch_scc1 L_aux")
    def tiles(self, p):
        e = p.e
        e(f"s_and_b32 {XCD}, {WG}, 7\ns_lshr_b32 {IDX}, {WG}, 3\ns_lshr_b32 {SUB}, {XCD}, 1\ns_and_b32 s12, {XCD}, 1")
        e(f"s_min_u32 s15, {IDX}, 29\ns_mul_i32 {FT}, s15, 52\ns_lshr_b32 {FT}, {FT}, 8")
        e(f"s_mul_i32 s51, {FT}, 5\ns_sub_u32 s11, s15, s51")
        e(f"s_mul_i32 {C0}, {FT}, 3\ns_min_u32 {C0}, {C0}, 14\ns_cmp_lt_u32 {FT}, 4\ns_cselect_b32 {NCH}, 3, 2\ns_cmp_ge_u32 {IDX}, 30\ns_cselect_b32 {NCH}, 0, {NCH}")
        e(f"s_mul_i32 s51, s12, 5\ns_add_u32 {DT}, s11, s51\ns_mul_i32 s51, {SUB}, 6\ns_add_u32 {FT}, {FT}, s51")

    def kk(self, p, g, ks, dst, stride, base):
        p.e(f"s_bfe_u32 {dst}, s{(74 if g == 1 else 80) + ks // 8}, {(4 << 16) | (4 * (ks % 8)):#x}")
        p.e(f"s_mul_i32 {dst}, {dst}, {stride}")
        if base: p.e(f"s_add_u32 {dst}, {dst}, {base}")
    def slot(self, g, ks): return ((ks + (3 if g == 2 else 0)) % RS) * 4096
    def throttle(self, p):
        l = self.label("thr")
        p.e(f"s_cmp_lg_u32 s85, 0\ns_cbranch_scc1 {l}")
        p.e(f"@ds_read_b32 v20, {VSY} offset:{4*Y_PUB}\n@s_waitcnt vmcnt({self.o['thr']}) lgkmcnt(0)\nv_readfirstlane_b32 s85, v20\ns_nop 0\ns_lshr_b32 s85, s85, 1")
        p.e(f"{l}:")
    def dma(self, g, ks, thr=False):
        p = Prog()
        rs, vo, srd, base = (3072, 4, SW1, "s84") if g == 1 else (4096, 12, SW2, "s92")
        self.kk(p, g, ks, "s72", 32 * rs, base)
        for q in range(4):
            if thr and q % 2 == 0: self.throttle(p)
            p.e(f"s_add_u32 m0, {RINGB}, {self.slot(g, ks) + q * 1024}")
            p.e(f"buffer_load_dwordx4 v{vo + (q & 1)}, {srd}, s72 offen {self.o['wflag']} lds", f"w{g}_{ks}")
            if q < 3: p.e(f"s_add_u32 s72, s72, {8*rs}")
        return p
    NB = {1: 6, 2: 4}
    def tr(self, g, ks):
        p = Prog()
        r = 16 * (ks % self.NB[g]); o = self.slot(g, ks)
        p.wvm(f"w{g}_{ks}")
        for ss in range(4):
            p.e(f"ds_read_b64_tr_b16 {a(r+4*ss,2)}, v{14+ss} offset:{o}", f"t{g}_{ks}")
            p.e(f"ds_read_b64_tr_b16 {a(r+4*ss+2,2)}, v{14+ss} offset:{o+512}", f"t{g}_{ks}")
        return p
    def main_start(self, p):
        e = p.e
        e("s_setprio 3")
        e(f"s_mul_i32 {RINGB}, {WV}, {RINGW}\ns_add_u32 {RINGB}, {RINGB}, {RING0}\ns_mov_b32 s85, 0")
        e(f"v_lshrrev_b32 v30, 3, {LANE}\nv_and_b32 v31, 7, {LANE}\nv_and_b32 v32, 2, v30\nv_xor_b32 v31, v31, v32\nv_lshlrev_b32 v31, 4, v31")
        e("v_mul_u32_u24 v4, 3072, v30\nv_add_u32 v4, v4, v31\nv_xor_b32 v5, 64, v4\nv_lshl_add_u32 v12, v30, 12, v31\nv_xor_b32 v13, 64, v12")
        e(f"s_mul_i32 s84, {WV}, {512*3072}\ns_lshl_b32 s51, {FT}, 7\ns_add_u32 s84, s84, s51")
        e(f"s_mul_i32 s92, {WV}, {384*4096}\ns_lshl_b32 s51, {ST2}, 7\ns_add_u32 s92, s92, s51")
        self.srd(p, 56, 36, 6291456); self.srd(p, 60, 40, 6291456); self.srd(p, 64, 44, 2621440)
        self.stamp(p)
    def main_setup2(self, p):
        e = p.e
        e(f"v_bfe_u32 v20, {LANE}, 2, 2\nv_and_b32 v21, 3, {LANE}\nv_lshrrev_b32 v22, 4, {LANE}\nv_and_b32 v23, 15, {LANE}")
        e("v_lshlrev_b32 v24, 10, v22\nv_lshl_add_u32 v24, v20, 7, v24\nv_lshl_add_u32 v24, v21, 3, v24")
        e(f"v_lshrrev_b32 v20, 1, v20\nv_and_b32 v21, 1, v22\nv_lshl_or_b32 v20, v21, 1, v20\nv_xor_b32 v20, {WV}, v20\nv_lshlrev_b32 v20, 5, v20")
        e(f"v_add3_u32 v14, v24, v20, {RINGB}\nv_xor_b32 v15, 32, v14\nv_xor_b32 v16, 64, v14\nv_xor_b32 v17, 0x60, v14")
        e(f"s_lshl_b32 s51, {FT}, 7\ns_lshl_b32 s15, {WV}, 5\ns_add_u32 s51, s51, s15\nv_lshl_add_u32 v24, v22, 3, s51")
        e("global_load_dwordx2 v[126:127], v24, s[38:39]", "b1")
        e(f"v_mul_u32_u24 v19, 10240, v22\nv_lshl_add_u32 v19, v23, 4, v19\ns_lshl_b32 s51, {SUB}, 8\nv_add_u32 v120, s51, v19")
        e("v_xor_b32 v121, 0x100, v120\nv_xor_b32 v122, 0x200, v120\nv_xor_b32 v123, 0x300, v120")
        e(f"v_lshrrev_b32 v24, 1, v22\nv_mul_u32_u24 v24, 10240, v24\nv_lshl_add_u32 v24, v23, 4, v24\nv_xor_b32 v25, {SUB}, v21\nv_lshl_add_u32 v6, v25, 8, v24\nv_xor_b32 v7, 0x200, v6")
        e(f"v_subrev_u32 v124, {C0}, v23\nv_mul_u32_u24 v124, {REGSZ}, v124\nv_lshl_add_u32 v124, v22, 4, v124")
        e(f"s_lshl_b32 s51, {WV}, 10\ns_add_u32 s51, s51, {REG0 + UO + 512}\nv_add_u32 v124, s51, v124")
        e(f"s_bfm_b32 s100, {NCH}, {C0}\ns_lshl_b32 s51, s100, 16\ns_or_b32 s100, s100, s51\ns_mov_b32 s101, s100")
        e("v_mul_u32_u24 v18, 1280, v23\nv_lshl_add_u32 v18, v22, 3, v18\nv_lshlrev_b32 v115, 12, v23\nv_lshl_add_u32 v115, v22, 4, v115")
        e("v_lshl_add_u32 v8, v23, 1, s95")
        e("global_load_ushort v114, v8, s[42:43]", "b1")
        if self.o["spa"]:
            n_ = self.o["spa"]; f_ = 12 - n_
            P2_ = [o_ + list(range(f_, 12)) for o_ in make_perm(f_, 4, min(2, f_ // 4), self.o["duty2"])] if f_ else [list(range(12))] * 4
        elif self.o["spk"]:
            n_ = self.o["spk"]; own = [2 * i for i in range(n_)]
            rest = [st for st in range(2 * n_, 12, 2)] + [st for st in range(1, 12, 2)]
            P2_ = [own + rest[(j * len(rest)) // 4:] + rest[:(j * len(rest)) // 4] for j in range(4)]
        elif self.o["perm"]: P2_ = make_perm(12, 4, 2, self.o["duty2"])
        else: P2_ = [[(3 * j + i) % 12 for i in range(12)] for j in range(4)]
        e(f"s_and_b32 s15, {IDX}, 3")
        for j, o_ in enumerate(P2_):
            lo, hi = pack_perm(o_)
            if j == 0: e(f"s_mov_b32 s80, {lo:#x}\ns_mov_b32 s81, {hi:#x}")
            else: e(f"s_cmp_eq_u32 s15, {j}\ns_cselect_b32 s80, {lo:#x}, s80\ns_cselect_b32 s81, {hi:#x}, s81")
        e(f"s_and_b32 s15, {ST2}, {self.o['sg2']}\ns_and_b32 s51, {XCD}, 1\ns_xor_b32 s51, s51, s15\ns_mul_i32 s51, s51, 0x11111111\ns_xor_b32 s80, s80, s51\ns_xor_b32 s81, s81, s51")
        e(f"s_mul_i32 s86, {WV}, {64*10240}\ns_lshl_b32 s51, {DT}, 10\ns_add_u32 s86, s86, s51\ns_add_u32 s86, s86, {HB}")
    def xr(self, j): return [v(104, 4), v(110, 4), v(116, 4)][j]
    def xload(self, p):
        e = p.e
        e(f"s_lshl_b32 s94, {ST2}, 6\ns_lshl_b32 s51, {WV}, 4\ns_add_u32 s94, s94, s51\ns_lshl_b32 s95, s94, 1")
        e(f"s_mul_i32 s94, s94, 1280\ns_mul_i32 s51, {DT2}, 160\ns_add_u32 s94, s94, s51")
        e(f"v_and_b32 v109, 15, {LANE}\nv_mul_u32_u24 v109, 1280, v109\nv_and_b32 v108, 48, {LANE}\nv_add_u32 v108, v108, v109")
        for j in range(3): e(f"buffer_load_dwordx4 {self.xr(j)}, v108, {SX}, s94 offen offset:{64*j}", f"x{j}")
    def xmm(self, p):
        e = p.e; ln_ = self.label("nsw")
        e("v_lshlrev_b32 v114, 16, v114")
        for i in range(20): e(f"v_mov_b32 v{84+i}, v114")
        e(f"v_lshrrev_b32 v22, 4, {LANE}\nv_and_b32 v23, 15, {LANE}")
        e("v_lshlrev_b32 v24, 3, v22\nv_sub_u32 v24, v23, v24\nv_and_b32 v25, 1, v24\nv_lshlrev_b32 v25, 4, v25\nv_mov_b32 v26, 0x3f80\nv_lshlrev_b32 v25, v25, v26\nv_ashrrev_i32 v24, 1, v24")
        for q in range(4): e(f"v_cmp_eq_u32 vcc, {q}, v24\nv_cndmask_b32 v{120+q}, 0, v25, vcc")
        for q in range(4): e(f"v_cmp_eq_i32 vcc, {q-8}, v24\nv_cndmask_b32 v{124+q}, 0, v25, vcc")
        for di in range(5):
            e(f"v_mfma_f32_16x16x32_bf16 {self.acc2(di,0)}, {v(124 if di & 1 else 120, 4)}, {self.xr(di//2)}, {self.acc2(di,0)}")
        e(f"s_and_b32 s51, {WV}, 1\ns_cmp_eq_u32 s51, 0\ns_cbranch_scc1 {ln_}")
        for q in range(4): e(f"v_swap_b32 v{120+q}, v{124+q}")
        e(f"{ln_}:")
    def acc1(self, t, ds): return [v(72 + 4 * ds, 4), v(88 + 4 * ds, 4), a(96 + 4 * ds, 4), a(112 + 4 * ds, 4)][t]
    def acc2(self, di, ss): return v(84 + 4 * di, 4) if ss == 0 else a(68 + 4 * (di * 3 + ss - 1), 4)

    def gemm_loop(self, p, g, nks, nf, ns, nd, nt, ld, mfma, extra):
        NB = self.NB[g]; n = nks * nf
        for i in range(ns): p.ext(ld(i))
        nl = ns
        G_ = 4 * nf
        for ks in range(nks):
            side = Prog()
            if nd < nks and nd - RS < nt:
                if nd >= RS: side.wlg(f"t{g}_{nd-RS}")
                side.ext(self.dma(g, nd)); nd += 1
            if nt < nks and nt < nd and nt - NB < ks:
                side.ext(self.tr(g, nt)); nt += 1
            early, pre, post = extra(ks)
            gaps = [[] for _ in range(G_)]
            cost = [0] * G_
            def c_of(grp):
                c = 0
                for it, _ in grp:
                    if isinstance(it, tuple): c += 1
                    elif it.startswith(("buffer_", "global_")): c += 3
                    else: c += 1
                return c
            for di in range(1, nf): cost[4 * di - 1] += 1
            cost[G_ - 1] += 2
            for di in range(nf):
                if nf * ks + di >= 1 and nl < n:
                    its = ld(nl).items; nl += 1
                    gi = 4 * di
                    gaps[gi].append(("z", its[-1:])); cost[gi] += 3
                    for k, it in enumerate(its[:-1]):
                        gj = gi - (len(its) - 1 - k)
                        assert gj >= 0
                        gaps[gj].append(("y", [it])); cost[gj] += 1
            pos = 0
            for grp in groups_of(early):
                gi = min(3, 1 + pos); pos += 1
                gaps[gi].append(("a", grp)); cost[gi] += c_of(grp)
            rest = groups_of(pre) + groups_of(side)
            start = 4 if early.items else 1
            tot = sum(c_of(x) for x in rest) + sum(cost[start:])
            gi = start
            for grp in rest:
                lvl = max(2.0, tot / (G_ - start))
                while gi < G_ - 1 and cost[gi] + c_of(grp) > lvl + 0.5 and cost[gi] > 0: gi += 1
                gaps[gi].append(("m", grp)); cost[gi] += c_of(grp)
            p.wlg(f"t{g}_{ks}")
            for di in range(nf):
                p.wvm(f"act{ks}_{di}")
                for ss in range(4):
                    p.e(mfma(ks, di, ss))
                    for key, grp in sorted(gaps[4 * di + ss], key=lambda x: x[0]): p.items.extend(grp)
            p.ext(post)
        assert nl == n and nd == nks and nt == nks

    def gemm1(self, p):
        e = p.e; o = self.o
        HR, ns = 24, o['ns1']
        nd = o['free1']
        def more():
            nonlocal nd
            if nd >= RS: p.wlg(f"t1_{nd-RS}")
            p.ext(self.dma(1, nd, thr=nd < o['nthr'])); nd += 1
            if nd == o["PS1"]: self.sig(p, Y_P1, 20)
            if o.get("fine") and nd <= 9: self.stamp(p)
        while nd < o["lead1"]: more()
        p.wvm("b1")
        for ds in range(4): self.unpack(p, 126, 72 + 4 * ds, 2)
        for j in range(o["P1"]):
            p.ext(self.tr(1, j))
            if j == 2 and not o.get('fine'): self.stamp(p)
            if nd < o["D1"]: more()
        while nd < o["D1"]:
            p.wvm(f"w1_{nd-o['lead1']}"); more()
        self.stamp(p)
        self.spin(p, Y_F1, 1, 20, sleep=1)
        e(f"ds_read_b32 {VTAG}, {VSY} offset:{4*Y_TAG}\ns_setprio 2", "tag")
        self.stamp(p)
        def ld(i):
            ks, ds = divmod(i, 4); q = Prog()
            if ds == 0: self.kk(q, 1, ks, "s76", 40960, "s86")
            q.e(f"buffer_load_dwordx4 {v(HR + 4 * (i % ns), 4)}, v{120+ds}, {SWS}, s76 offen sc1", f"act{ks}_{ds}")
            return q
        def mfma(ks, ds, t):
            c = self.acc1(t, ds); src = "0" if (ks == 0 and t > 0) else c
            return f"v_mfma_f32_16x16x32_bf16 {c}, {a(16*(ks%6)+4*t,4)}, {v(HR + 4 * ((4*ks+ds) % ns), 4)}, {src}"
        def extra(ks):
            pre = Prog(); post = Prog(); q = Prog()
            q.e(f"s_bfe_u32 s14, s{74 + ks // 8}, {(4 << 16) | (4 * (ks % 8)):#x}\nv_lshl_add_u32 v125, s14, 6, v124")
            q.e(f"s_mov_b64 exec, s[100:101]\nds_write_b128 v125, {v(HR + 4 * ((4 * ks) % ns), 4)}\ns_mov_b64 exec, -1", "uc")
            if ks % 4 == 3: self.sig(pre, Y_U + ks // 4, 20)
            if o["ebpos"] == 3:
                assert o["ebk"] >= 13
                per = -(-o["eb"] // (16 - o["ebk"]))
                for j in range(o["eb"]):
                    if o["ebk"] + j // per == ks: pre.ext(self.dma(2, j))
            if ks in (0, 5, 10): self.stamp(post)
            return q, pre, post
        self.gemm_loop(p, 1, 16, 4, ns, nd, o["P1"], ld, mfma, extra)
        self.stamp(p)
    def gemm1_epi(self, p):
        e = p.e; RD = 24
        if self.o["ebpos"] == 0:
            for ks in range(self.o["eb"]): p.ext(self.dma(2, ks))
        e(f"v_add_u32 v20, {RINGB}, {L16}")
        for t in range(1, 4):
            for ds in range(4): e(f"ds_write_b128 v20, {self.acc1(t, ds)} offset:{(t-1)*4096+ds*1024}", "r1w")
        self.sig(p, Y_PART, 21)
        if self.o["ebpos"] == 1:
            for ks in range(self.o["eb"]): p.ext(self.dma(2, ks))
        for t in range(1, 4):
            e(f"s_xor_b32 s51, {WV}, {t}\ns_mul_i32 s51, s51, {RINGW}\ns_add_u32 s51, s51, {RING0 + (t-1)*4096}\nv_add_u32 v{20+t}, s51, {L16}")
        e(f"s_lshl_b32 s50, {FT}, 3\ns_lshl_b32 s51, {WV}, 1\ns_add_u32 s50, s50, s51\ns_mul_i32 s50, s50, 10240")
        e(f"s_lshl_b32 s51, {DT}, 10\ns_add_u32 s50, s50, s51\ns_add_u32 s86, s50, {GB}")
        e(f"s_mul_i32 s89, {DT}, 24\ns_add_u32 s89, s89, {FT}\ns_lshl_b32 s89, s89, 7\ns_add_u32 s89, s89, {F2}")
        c1 = -2 * 0.7978845608028654 * 1.4426950408889634; c3 = c1 * 0.044715
        e(f"s_mov_b32 s90, {fbits(c3)}\nv_mov_b32 v126, {fbits(c1)}")
        if self.o.get("fine2"): self.stamp(p)
        self.spin(p, Y_PART, 4, 20)
        if self.o.get("fine2"): self.stamp(p)
        for q in range(4):
            for t in range(3): e(f"ds_read_b128 {v(RD+16*t+4*q,4)}, v{21+t} offset:{q*1024}", f"r1r{q}")
        if self.o["ebpos"] == 2:
            for ks in range(self.o["eb"]): p.ext(self.dma(2, ks))
        for pr in range(2):
            p.wlg(f"r1r{2*pr+1}")
            q = [(72 + 8 * pr + i, RD + 8 * pr + i, 88 + 8 * pr + i) for i in range(8)]
            if self.o["epk"]:
                q2 = q[::2]
                for x, r, t in q2: e(f"v_pk_add_f32 {v(x,2)}, {v(x,2)}, {v(r,2)}\nv_pk_add_f32 {v(r+16,2)}, {v(r+16,2)}, {v(r+32,2)}")
                for x, r, t in q2: e(f"v_pk_add_f32 {v(x,2)}, {v(x,2)}, {v(r+16,2)}")
                for x, r, t in q2: e(f"v_pk_mul_f32 {v(t,2)}, {v(x,2)}, {v(x,2)}")
                for x, r, t in q2: e(f"v_pk_fma_f32 {v(t,2)}, {v(t,2)}, s[90:91], v[126:127] op_sel_hi:[1,0,0]")
                for x, r, t in q2: e(f"v_pk_mul_f32 {v(t,2)}, {v(t,2)}, {v(x,2)}")
                for x, r, t in q: e(f"v_exp_f32 v{t}, v{t}")
                for x, r, t in q2: e(f"v_pk_add_f32 {v(t,2)}, {v(t,2)}, 1.0 op_sel_hi:[1,0]")
                for x, r, t in q: e(f"v_rcp_f32 v{t}, v{t}")
                for x, r, t in q2: e(f"v_pk_mul_f32 {v(t,2)}, {v(t,2)}, {v(x,2)}")
            else:
                for x, r, t in q: e(f"v_add_f32 v{x}, v{x}, v{r}\nv_add_f32 v{r+16}, v{r+16}, v{r+32}")
                for x, r, t in q: e(f"v_add_f32 v{x}, v{x}, v{r+16}")
                for x, r, t in q: e(f"v_mul_f32 v{t}, v{x}, v{x}")
                for x, r, t in q: e(f"v_fma_f32 v{t}, v{t}, s90, v126")
                for x, r, t in q: e(f"v_mul_f32 v{t}, v{t}, v{x}")
                for x, r, t in q: e(f"v_exp_f32 v{t}, v{t}")
                for x, r, t in q: e(f"v_add_f32 v{t}, 1.0, v{t}")
                for x, r, t in q: e(f"v_rcp_f32 v{t}, v{t}")
                for x, r, t in q: e(f"v_mul_f32 v{t}, v{t}, v{x}")
            o = 56 + 8 * pr
            for i in range(4): e(f"v_cvt_pk_bf16_f32 v{o+i}, v{q[2*i][2]}, v{q[2*i+1][2]}")
            e(f"v_permlane16_swap_b32 v{o}, v{o+2}\nv_permlane16_swap_b32 v{o+1}, v{o+3}")
            e(f"buffer_store_dwordx4 {v(o,4)}, v{6+pr}, {SWS}, s86 offen sc1", "gs")
        if self.o["epifirst"]: self.sig(p, Y_EPI, 20)
        self.stamp(p)
        self.xmm(p)
        if not self.o["epifirst"]: self.sig(p, Y_EPI, 20)
        for ks in range(min(self.o["eb"], self.o["P2"])): p.ext(self.tr(2, ks))
        e("s_waitcnt vmcnt(0)")
        l = self.label("nolast")
        e(f"v_mov_b32 v20, 1\ns_mov_b64 exec, 1\nds_add_rtn_u32 v20, {VSY}, v20 offset:{4*Y_G}\ns_mov_b64 exec, -1\ns_waitcnt lgkmcnt(0)\nv_readfirstlane_b32 s79, v20")
        e(f"s_cmp_lg_u32 s79, 3\ns_cbranch_scc1 {l}")
        self.flag_store(p, "s89", "@")
        e(f"{l}:")
        self.stamp(p)
    def gemm2(self, p, spare):
        e = p.e; o = self.o
        GR, ns = 24, o['ns2']
        e(f"s_mul_i32 s86, {WV}, {48*10240}\ns_mul_i32 s51, {DT2}, 1280\ns_add_u32 s86, s86, s51\ns_add_u32 s86, s86, {GB}")
        e(f"s_mul_i32 s88, {DT2}, {80*4096}\ns_and_b32 s51, s95, 0xffffffc0\ns_add_u32 s88, s88, s51\ns_add_u32 s88, s88, {YT}")
        e(f"v_and_b32 v116, 15, {LANE}\nv_mul_u32_u24 v116, 1280, v116\nv_and_b32 v117, 16, {LANE}\nv_lshl_add_u32 v116, v117, 1, v116\nv_lshrrev_b32 v117, 5, {LANE}\nv_lshl_add_u32 v116, v117, 4, v116")
        e(f"s_and_b32 s51, {WV}, 1\ns_lshl_b32 s51, s51, 26\nv_add_u32 v109, s51, v115\nv_xor_b32 v115, 0x4000000, v109")
        nd = o["eb"]; nt = min(o["eb"], o["P2"])
        self.spin(p, Y_G, 4, 20)
        def more():
            nonlocal nd
            if nd >= RS: p.wlg(f"t2_{nd-RS}")
            p.ext(self.dma(2, nd)); nd += 1
            if nd == o["PS2"]: self.sig(p, Y_P2, 20)
        while nd < min(o["D2"], nt + o["lead2"]): more()
        while nt < o["P2"]:
            p.ext(self.tr(2, nt)); nt += 1
            if nd < o["D2"]: more()
        while nd < o["D2"]:
            p.wvm(f"w2_{nd-o['lead2']}"); more()
        self.stamp(p)
        self.spin(p, Y_F2, 1, 20, sleep=1)
        self.stamp(p)
        def ld(i):
            ks, di = divmod(i, 5); q = Prog()
            if di == 0: self.kk(q, 2, ks, "s76", 40960, "s86")
            q.e(f"buffer_load_dwordx4 {v(GR + 4 * (i % ns), 4)}, v19, {SWS}, s76 offen offset:{256*di} sc1", f"act{ks}_{di}")
            return q
        def mfma(ks, di, ss):
            c = self.acc2(di, ss); src = "0" if (ks == 0 and ss > 0) else c
            return f"v_mfma_f32_16x16x32_bf16 {c}, {v(GR + 4 * ((5*ks+di) % ns), 4)}, {a(16*(ks%4)+4*ss,4)}, {src}"
        yk = o["ychk"]; assert yk >= 9
        def extra(ks):
            pre = Prog(); post = Prog()
            if ks == o["ytrig"]: self.sig(post, Y_P3, 20)
            if ks == yk:
                self.spin(post, Y_F3, 1, 20, sleep=2)
                for di in range(5):
                    post.e(f"buffer_load_dwordx4 {a(4*di,4)}, v{115 if di & 1 else 109}, {SWS}, s88 offen sc1", f"y{di}")
                    post.e("s_add_u32 s88, s88, 65536")
            if ks in (0, 3, 7): self.stamp(post)
            return Prog(), pre, post
        self.gemm_loop(p, 2, 12, 5, ns, nd, nt, ld, mfma, extra)
        self.stamp(p)
        e(f"v_add_u32 v20, {RINGB}, {L16}")
        for t in (3, 2):
            for di in range(5): e(f"ds_write_b128 v20, {self.acc2(di,t)} offset:{(t-1)*5120+di*1024}", "r2w")
        for t in range(1, 4):
            e(f"s_xor_b32 s51, {WV}, {t}\ns_mul_i32 s51, s51, {RINGW}\ns_add_u32 s51, s51, {RING0 + (t-1)*5120}\nv_add_u32 v{20+t}, s51, {L16}")
        if o.get("fine2"): self.stamp(p)
        for di in range(5):
            p.wvm(f"y{di}")
            e(f"v_mfma_f32_16x16x32_bf16 {self.acc2(di,1)}, {a(4*di,4)}, v[124:127], {self.acc2(di,1)}")
        for di in range(5):
            e(f"v_mfma_f32_16x16x32_bf16 {self.acc2(di,0)}, {a(4*di,4)}, v[120:123], {self.acc2(di,0)}")
        for di in range(5): e(f"ds_write_b128 v20, {self.acc2(di,1)} offset:{di*1024}", "r2w")
        if o.get("fine2"): self.stamp(p)
        e("s_waitcnt lgkmcnt(0)\ns_barrier")
        if o.get("fine2"): self.stamp(p)
        for di in range(5):
            for t in range(3): e(f"ds_read_b128 {v(GR+12*di+4*t,4)}, v{21+t} offset:{di*1024}", f"r2r{di}")
        for di in range(5):
            c = 84 + 4 * di; r = GR + 12 * di
            p.wlg(f"r2r{di}")
            for hq in range(2): e(f"v_pk_add_f32 {v(r+2*hq,2)}, {v(r+2*hq,2)}, {v(r+4+2*hq,2)}\nv_pk_add_f32 {v(c+2*hq,2)}, {v(c+2*hq,2)}, {v(r+8+2*hq,2)}")
            for hq in range(2): e(f"v_pk_add_f32 {v(c+2*hq,2)}, {v(c+2*hq,2)}, {v(r+2*hq,2)}")
            for hq in range(2): e(f"v_cvt_pk_bf16_f32 v{104+2*di+hq}, v{c+2*hq}, v{c+2*hq+1}")
            if o["ow4"] and di < 4:
                if di & 1:
                    b = 104 + 2 * (di - 1)
                    e(f"v_permlane16_swap_b32 v{b}, v{b+2}\nv_permlane16_swap_b32 v{b+1}, v{b+3}")
                    e(f"buffer_store_dwordx4 {v(b,4)}, v116, {SOUT}, s94 offen offset:{32*(di-1)} {o['oflag']}", "os")
            else: e(f"buffer_store_dwordx2 {v(104+2*di,2)}, v18, {SOUT}, s94 offen offset:{32*di} {o['oflag']}", "os")
        self.stamp(p)

    def main(self):
        self.role = "main"
        p = Prog(); e = p.e
        self.main_start(p)
        if self.o["xk"] == -1: self.xload(p)
        for ks in range(self.o["pre1"]): p.ext(self.dma(1, ks))
        if self.o["xk"] == -2: self.xload(p)
        self.ln(p)
        e(f"s_setprio {self.o['mprio']}")
        if self.o.get("dly_w"): e(f"s_sleep {self.o['dly_w']}")
        if self.o["xk"] == 0: self.xload(p)
        for ks in range(self.o["pre1"], self.o["free1"]): p.ext(self.dma(1, ks))
        if self.o["xk"] == 1: self.xload(p)
        self.stamp(p)
        self.main_setup2(p)
        e(f"s_cmp_lt_u32 {IDX}, 30\ns_cbranch_scc1 L_g1")
        q = Prog()
        q.e("s_waitcnt vmcnt(0)")
        self.xmm(q)
        if self.o["spw"]: self.spin(q, Y_F1, 1, 20, sleep=16)
        else: self.spin(q, Y_PUB, 2, 20, sleep=4)
        for ks in range(self.o["eb"]): q.ext(self.dma(2, ks))
        for ks in range(min(self.o["eb"], self.o["P2"])): q.ext(self.tr(2, ks))
        self.sig(q, Y_G, 20)
        q.e("s_waitcnt vmcnt(0) lgkmcnt(0)\ns_branch L_g2")
        for line in finalize(q).split("\n"):
            if line.strip(): e(line.strip() if line.strip().endswith(":") else "@" + line.strip())
        e("L_g1:")
        self.gemm1(p)
        self.gemm1_epi(p)
        e("L_g2:")
        self.gemm2(p, False)
        e(f"s_or_b32 s51, {WG}, {WV}\ns_cmp_lg_u32 s51, 0\ns_cbranch_scc1 L_noep")
        e(f"s_mov_b64 exec, 1\nbuffer_store_dword {VTAG}, {VZ}, {SWS}, 0 offen\ns_mov_b64 exec, -1")
        e("L_noep:")
        if self.o.get("gmin"):
            e(f"global_load_dword v30, {VZ}, s[46:47] sc1\ns_waitcnt vmcnt(0)\nv_readfirstlane_b32 s96, v30\ns_nop 1\ns_not_b32 s96, s96")
        if self.o.get("hold"):
            e(f"L_hold:\ns_memrealtime s[82:83]\ns_waitcnt lgkmcnt(0)\ns_sub_u32 s82, s82, s96\ns_cmp_lt_u32 s82, {self.o['hold']}\ns_cbranch_scc1 L_hold")
        self.finish(p)
        return p

    def red32(self, p, regs, tmp):
        for m in ("quad_perm:[1,0,3,2]", "quad_perm:[2,3,0,1]", "row_half_mirror", "row_mirror"):
            for r in regs: p.e(f"v_add_f32_dpp v{r}, v{r}, v{r} {m} row_mask:0xf bank_mask:0xf")
        for i, r in enumerate(regs): p.e(f"v_mov_b32 v{tmp+i}, v{r}")
        for i, r in enumerate(regs): p.e(f"v_permlane16_swap_b32 v{r}, v{tmp+i}")
        for i, r in enumerate(regs): p.e(f"v_add_f32 v{r}, v{r}, v{tmp+i}")
    RAW = [4, 5, 6, 7, 8, 12, 13, 14, 15, 16, 17, 18]
    def conv_start(self, p):
        e = p.e
        e(f"s_setprio {self.o['kprio']}\ns_mul_i32 {REGB}, s14, {REGSZ}\ns_add_u32 {REGB}, {REGB}, {REG0}")
        e("s_waitcnt lgkmcnt(0)")
    def serv_start(self, p):
        p.e("s_setprio 3")
        self.srd(p, 60, 40, 6291456)
    def ln(self, p):
        e = p.e
        RAW, F, D, T, H = 20, 30, 50, 70, 90
        inv = fbits(1.0 / 640)
        e(f"s_lshr_b32 s51, {WV}, 1\ns_mul_i32 s51, s51, {REGSZ}\ns_and_b32 s15, {WV}, 1\ns_mul_i32 s15, s15, {2*PT}\ns_add_u32 s51, s51, s15\ns_add_u32 s51, s51, {LNT}")
        e(f"v_mul_u32_u24 v102, {PT}, v120\nv_add_u32 v102, s51, v102\nv_lshl_add_u32 v101, v122, 3, v102\nv_lshl_add_u32 v100, v122, 4, v102")
        p.wvm("x")
        self.stamp(p)
        self.unpack(p, RAW, F, 10)
        def psum(src, dst):
            e(f"v_pk_add_f32 {v(dst,2)}, {v(src,2)}, {v(src+2,2)}\nv_pk_add_f32 {v(dst+2,2)}, {v(src+4,2)}, {v(src+6,2)}")
            for i in range(4, 10): e(f"v_pk_add_f32 {v(dst+2*(i&1),2)}, {v(dst+2*(i&1),2)}, {v(src+2*i,2)}")
            e(f"v_pk_add_f32 {v(dst,2)}, {v(dst,2)}, {v(dst+2,2)}\nv_add_f32 v{dst}, v{dst}, v{dst+1}")
        def psq(src, dst):
            e(f"v_pk_mul_f32 {v(dst,2)}, {v(src,2)}, {v(src,2)}\nv_pk_mul_f32 {v(dst+2,2)}, {v(src+2,2)}, {v(src+2,2)}")
            for i in range(2, 10): e(f"v_pk_fma_f32 {v(dst+2*(i&1),2)}, {v(src+2*i,2)}, {v(src+2*i,2)}, {v(dst+2*(i&1),2)}")
            e(f"v_pk_add_f32 {v(dst,2)}, {v(dst,2)}, {v(dst+2,2)}\nv_add_f32 v{dst}, v{dst}, v{dst+1}")
        def rstd(var, out):
            e(f"v_max_f32 v{var}, 0, v{var}")
            self.rbf(p, var); e(f"v_add_f32 v{var}, {fbits(1e-5)}, v{var}"); self.rbf(p, var)
            e(f"v_sqrt_f32 v{var}, v{var}"); self.rbf(p, var); e(f"v_rcp_f32 v{out}, v{var}")
        psum(F, T); self.red32(p, [T], T + 2)
        e(f"v_mul_f32 v{T}, {inv}, v{T}\nv_mov_b32 v{T+4}, v{T}"); self.rbf(p, T + 4)
        for i in range(10): e(f"v_pk_add_f32 {v(D+2*i,2)}, {v(F+2*i,2)}, {v(T+4,2)} op_sel_hi:[1,0] neg_lo:[0,1] neg_hi:[0,1]")
        e(f"v_sub_f32 v{T+5}, v{T}, v{T+4}")
        psq(D, T); self.red32(p, [T], T + 2)
        e(f"v_mul_f32 v{T}, {inv}, v{T}\nv_fma_f32 v{T}, -v{T+5}, v{T+5}, v{T}")
        rstd(T, T + 6)
        for i in range(10): e(f"v_pk_mul_f32 {v(D+2*i,2)}, {v(D+2*i,2)}, {v(T+6,2)} op_sel_hi:[1,0]")
        for i in range(10): e(f"v_cvt_pk_bf16_f32 v{RAW+i}, v{D+2*i}, v{D+2*i+1}")
        self.unpack(p, RAW, F, 10)
        psum(F, T); psq(F, T + 4); self.red32(p, [T, T + 4], T + 2)
        e(f"v_mul_f32 v{T}, {inv}, v{T}\nv_mul_f32 v{T+4}, {inv}, v{T+4}\nv_fma_f32 v{T+4}, -v{T}, v{T}, v{T+4}")
        self.rbf(p, T)
        rstd(T + 4, T + 6)
        e(f"v_mul_f32 v{T+2}, v{T}, v{T+6}\nv_lshrrev_b32 v{T+4}, 16, v{T+4}\nv_or_b32 v{T+4}, v{T+4}, v{T}")
        for i in range(10): e(f"v_pk_fma_f32 {v(D+2*i,2)}, {v(F+2*i,2)}, {v(T+6,2)}, {v(T+2,2)} op_sel_hi:[1,0,0] neg_lo:[0,0,1] neg_hi:[0,0,1]")
        e(f"ds_write_b32 v102, v{T+4} offset:1280", "lnw")
        for i in range(10): e(f"v_cvt_pk_bf16_f32 v{H+i}, v{D+2*i}, v{D+2*i+1}")
        e(f"ds_write_b128 v100, {v(H,4)}\nds_write_b128 v100, {v(H+4,4)} offset:512\nds_write_b64 v101, {v(H+8,2)} offset:1024", "lnw")
        self.sig(p, Y_LN, T)

    def serv(self):
        self.role = "serv"
        p = Prog(); e = p.e; o = self.o
        self.serv_start(p)
        self.stamp(p)
        e(f"v_bfe_u32 v12, {LANE}, 2, 2\nv_mul_u32_u24 v12, {PT}, v12\nv_lshrrev_b32 v13, 4, {LANE}\nv_lshl_add_u32 v12, v13, 5, v12")
        e(f"v_and_b32 v13, 3, {LANE}\nv_lshl_add_u32 v12, v13, 3, v12\nv_add_u32 v12, {LNT}, v12")
        e(f"s_mul_i32 s84, {WG}, 10240\ns_add_u32 s84, s84, {HB}\ns_add_u32 s85, s84, 4096\ns_add_u32 s86, s84, 8192")
        e(f"s_lshl_b32 s87, {WG}, 4\ns_add_u32 s87, s87, {STAT}\nv_lshlrev_b32 v13, 12, {LANE}")
        e(f"s_lshr_b32 s89, {WG}, 2\ns_lshl_b32 s89, s89, 7\ns_and_b32 s51, {WG}, 3\ns_lshl2_add_u32 s89, s51, s89\ns_add_u32 s89, s89, {F1}\nv_lshlrev_b32 v14, 7, {LANE}")
        e("s_waitcnt lgkmcnt(0)")
        self.mktag(p)
        e(f"ds_write_b32 {VSY}, {VTAG} offset:{4*Y_TAG}")
        self.spin(p, Y_LN, 4, 20, sleep=1)
        if self.o.get("dly_p"): e(f"s_sleep {self.o['dly_p']}")
        self.stamp(p)
        for b in range(11):
            e(f"ds_read_b64_tr_b16 {v(24+4*b,2)}, v12 offset:{128*b}\nds_read_b64_tr_b16 {v(26+4*b,2)}, v12 offset:{128*b+REGSZ}", f"lr{b}")
            if b >= 3:
                c = b - 3; p.wlg(f"lr{c}")
                e(f"buffer_store_dwordx4 {v(24+4*c,4)}, {L16}, {SWS}, s{84 + c//4} offen offset:{(c%4)*1024} sc1")
        for c in range(8, 10):
            p.wlg(f"lr{c}")
            e(f"buffer_store_dwordx4 {v(24+4*c,4)}, {L16}, {SWS}, s{84 + c//4} offen offset:{(c%4)*1024} sc1")
        p.wlg("lr10")
        e(f"s_mov_b64 exec, 3\nbuffer_store_dwordx4 v[64:67], v13, {SWS}, s87 offen sc1\ns_mov_b64 exec, -1")
        self.sig(p, Y_PUB, 20)
        self.stamp(p)
        e(f"s_mul_i32 s50, {DT2}, 80\ns_lshr_b32 s50, s50, 6\ns_mul_i32 s92, s50, {24*128}\ns_add_u32 s92, s92, {F2}")
        e(f"v_min_u32 v15, 47, {LANE}\nv_lshlrev_b32 v15, 7, v15\nv_min_u32 v16, 29, {LANE}\nv_lshlrev_b32 v16, 7, v16")
        e(f"s_mul_i32 s93, {DT2}, {30*128}\ns_add_u32 s93, s93, {F3}")
        e("s_waitcnt vmcnt(0)")
        if self.o.get("dly_f"):
            self.sig(p, Y_PUB, 20); e(f"s_sleep {self.o['dly_f']}")
        self.flag_store(p, "s89")
        self.sig(p, Y_PUB, 20)
        self.stamp(p)
        e(f"s_cmp_lt_u32 {IDX}, 30\ns_cbranch_scc1 L_s1")
        e(f"v_lshrrev_b32 v17, 3, {LANE}\nv_lshlrev_b32 v17, 12, v17\nv_and_b32 v18, 7, {LANE}\nv_lshl_add_u32 v17, v18, 7, v17")
        if o["spa"]:
            e(f"s_lshl_b32 s88, {SUB}, 10\ns_and_b32 s51, {IDX}, 1\ns_mul_i32 s51, s51, {768*4096}\ns_add_u32 s88, s88, s51\ns_add_u32 s88, s88, {(12 - o['spa']) * 32 * 4096}")
            e(f"s_mov_b32 s87, 0\nL_spf:")
            for q in range(2):
                for i in range(4):
                    e(f"s_add_u32 s51, s88, {(q*384 + 8*i)*4096}\nbuffer_load_dword v{24+4*q+i}, v17, {SW2}, s51 offen")
            e(f"s_add_u32 s88, s88, {32*4096}\ns_add_u32 s87, s87, 1\ns_waitcnt vmcnt(8)\ns_cmp_lt_u32 s87, {o['spa']}\ns_cbranch_scc1 L_spf")
        elif o["spk"]:
            e(f"s_lshl_b32 s88, {SUB}, 10\ns_and_b32 s51, {IDX}, 1\ns_mul_i32 s51, s51, {768*4096}\ns_add_u32 s88, s88, s51\ns_and_b32 s51, {XCD}, 1\ns_lshl_b32 s51, s51, 17\ns_add_u32 s88, s88, s51")
            e(f"s_mov_b32 s87, 0\nL_spf:")
            for q in range(2):
                for i in range(4):
                    e(f"s_add_u32 s51, s88, {(q*384 + 8*i)*4096}\nbuffer_load_dword v{24+4*q+i}, v17, {SW2}, s51 offen")
            e(f"s_add_u32 s88, s88, {64*4096}\ns_add_u32 s87, s87, 1\ns_waitcnt vmcnt(8)\ns_cmp_lt_u32 s87, {o['spk'] + o.get('spx', 0)}\ns_cbranch_scc1 L_spf")
        else:
            e(f"s_lshl_b32 s88, {SUB}, 10\ns_and_b32 s51, {IDX}, 1\ns_lshl_b32 s51, s51, 15\ns_add_u32 s88, s88, s51\ns_and_b32 s51, {XCD}, 1\ns_lshl_b32 s51, s51, 16\ns_add_u32 s88, s88, s51")
            if o["slow"]:
                e(f"v_lshlrev_b32 v18, 12, {LANE}\ns_lshl_b32 s87, {SUB}, 10\ns_add_u32 s87, s87, 384\ns_and_b32 s51, {IDX}, 1\ns_lshl_b32 s51, s51, 18\ns_add_u32 s87, s87, s51")
                for i in range(12): e(f"buffer_load_dword v{70+i}, v18, {SW2}, s87 offen\ns_add_u32 s87, s87, {128*4096}")
            for i in range(o["nsp"]):
                e(f"buffer_load_dword v{24+i}, v17, {SW2}, s88 offen\ns_add_u32 s88, s88, 131072")
        e("s_waitcnt vmcnt(0)")
        self.sig(p, Y_F1, 20)
        e("s_branch L_s2\nL_s1:")
        self.inverse_addr(p)
        self.spin(p, Y_P1, 1, 20, sleep=2)
        self.stamp(p)
        e(f"s_mov_b32 s50, {F1}")
        self.poll(p, "v14", "s50", 20, wide=True, sleep=o["psleep"])
        self.sig(p, Y_F1, 20)
        self.stamp(p)
        if self.debug: e(f"v_writelane_b32 {VDBG}, s78, 31")
        self.inverse(p)
        e("L_s2:")
        self.spin(p, Y_P2, 1, 20, sleep=4)
        self.stamp(p)
        self.poll(p, "v15", "s92", 20, sleep=o["psleep2"])
        self.sig(p, Y_F2, 20)
        self.stamp(p)
        if self.debug: e(f"v_writelane_b32 {VDBG}, s78, 30")
        self.spin(p, Y_P3, 1, 20, sleep=4)
        if o["sp3"]:
            e("s_add_u32 s94, s48, s93\ns_addc_u32 s95, s49, 0\ns_mov_b32 s78, 0\ns_branch L_sp3f\nL_sp3:")
            e(f"s_sleep {o['sp3']}\nL_sp3f:")
            for i in range(30): e(f"s_load_dword s{16+i}, s[94:95], {128*i} glc")
            e("s_add_u32 s78, s78, 1\ns_waitcnt lgkmcnt(0)")
            e(f"s_xor_b32 s79, s16, {TAG}")
            for i in range(1, 30): e(f"s_xor_b32 s51, s{16+i}, {TAG}\ns_or_b32 s79, s79, s51")
            e("s_cmp_gt_u32 s78, 0x40000\ns_cbranch_scc1 L_sp3d\ns_cmp_lg_u32 s79, 0\ns_cbranch_scc1 L_sp3\nL_sp3d:")
        else: self.poll(p, "v16", "s93", 20, sleep=o["psleep2"])
        self.sig(p, Y_F3, 20)
        if self.debug: e(f"v_writelane_b32 {VDBG}, s78, 29")
        self.finish(p)
        return p

    def kgen(self, p):
        e = p.e; RAW = self.RAW
        L2E = 1.4426950408889634
        l2e_hi = struct.unpack("<f", struct.pack("<f", L2E))[0]; l2e_lo = L2E - l2e_hi
        VDT, VD1, VD2, VDS, WA, RA, RB = 54, 55, 56, 57, 58, 59, 60
        e(f"s_and_b32 s51, {CH}, 1\ns_lshl_b32 s51, s51, 4\ns_lshr_b32 s80, s80, s51\ns_lshl_b32 s80, s80, 16\ns_lshr_b32 s81, s81, s51\ns_lshl_b32 s81, s81, 16")
        e(f"v_mov_b32 v62, s80\nv_mov_b32 v63, {fbits(l2e_hi)}\nv_mul_f32 v64, v62, v63\nv_fma_f32 v65, v62, v63, -v64\nv_fmac_f32 v65, {fbits(l2e_lo)}, v62")
        e(f"v_exp_f32 v64, v64\nv_mul_f32 v65, {fbits(0.6931471805599453)}, v65\nv_fma_f32 v{VDT}, v64, v65, v64")
        self.rbf(p, VDT)
        e(f"v_mul_f32 v{VD1}, {fbits(L2E)}, v{VDT}\nv_mul_f32 v{VD2}, 0.15915494, v{VDT}")
        e(f"v_cmp_eq_u32 vcc, 0, {LANE}\nv_mov_b32 v62, s81\nv_cndmask_b32 v{VDS}, 0, v62, vcc")
        e(f"s_mov_b32 m0, {REGB}")
        e(f"v_and_b32 v62, 31, {LANE}\nv_lshrrev_b32 v63, 5, {LANE}\nv_lshlrev_b32 v63, 4, v63\nv_add_u32 v63, {REGB}, v63")
        e(f"v_mul_u32_u24 v64, {KP}, v62\nv_add_u32 v{RB}, v64, v63")
        e(f"v_min_u32 v62, 20, v62\nv_mul_u32_u24 v64, {KP}, v62\nv_add_u32 v{RA}, v64, v63")
        e("v_mov_b32 v28, 0x3f80")
        e("s_waitcnt vmcnt(0)")
        self.stamp(p)
        PK = 116; pk = [0]; P = 62
        FA, FB = 16, 48
        def mf(rd):
            l = []
            for s in range(8):
                q = Prog()
                c = a(0, 16)
                q.e(f"v_mfma_f32_32x32x16_bf16 {a(0,16)}, {a(FA+4*s,4)}, {a(FB+4*s,4)}, {c}")
                l.append(q)
            return l
        p.e("s_mov_b32 s76, 0\nL_kg:")
        for rd in (1,):
            usepk = self.o["pk"]
            q = Prog(); e = q.e
            def cmul(sets):
                if usepk:
                    for d, x, y in sets: e(f"v_pk_mul_f32 {v(d,2)}, {v(x,2)}, {v(y,2)} op_sel_hi:[0,1]")
                    for d, x, y in sets: e(f"v_pk_fma_f32 {v(d,2)}, {v(x,2)}, {v(y,2)}, {v(d,2)} op_sel:[1,1,0] op_sel_hi:[1,0,1] neg_lo:[1,0,0]")
                else:
                    for d, x, y in sets: e(f"v_mul_f32 v{d}, v{x}, v{y}\nv_mul_f32 v{d+1}, v{x}, v{y+1}")
                    for d, x, y in sets: e(f"v_fma_f32 v{d}, -v{x+1}, v{y+1}, v{d}\nv_fmac_f32 v{d+1}, v{x+1}, v{y}")
            def puts(l, neg):
                rs = []
                for row, z in l:
                    r = PK + pk[0] % 8; pk[0] += 1; rs.append(r)
                    e(f"v_cvt_pk_bf16_f32 v{r}, v{z}, {'-' if neg else ''}v{z+1}")
                for (row, z), r in zip(l, rs): e(f"ds_write_addtid_b32 v{r} offset:{row*KP}", "kw")
            for i in range(6):
                e(f"v_lshlrev_b32 v{P+i}, 16, v{RAW[2*i]}\nv_alignbit_b32 v{RAW[2*i]}, v{RAW[2*i+1]}, v{RAW[2*i]}, 16")
            AR, AI = 68, 69
            e(f"v_mul_f32 v{AR}, v{P}, v{VD1}\nv_mul_f32 v{AI}, v{P+1}, v{VD2}")
            e(f"v_mul_f32 v{P+2}, v{P+2}, v{VDT}\nv_mul_f32 v{P+3}, v{P+3}, v{VDT}")
            E1, E8, E256 = 70, 72, 74
            TM_, TA = 76, 79
            for i, t in enumerate((1.0, 8.0, 256.0)):
                if i == 0: e(f"v_mov_b32 v{TM_}, v{AR}\nv_fract_f32 v{TA}, v{AI}")
                else: e(f"v_mul_f32 v{TM_+i}, {fbits(t)}, v{AR}\nv_mul_f32 v{TA+i}, {fbits(t)}, v{AI}\nv_fract_f32 v{TA+i}, v{TA+i}")
            X = 82
            cmul([(X, P + 4, P + 2)])
            for i in range(3):
                e(f"v_exp_f32 v{TM_+i}, v{TM_+i}\nv_cos_f32 v{E1+2*i}, v{TA+i}\nv_sin_f32 v{E1+2*i+1}, v{TA+i}")
            for i in range(3): e(f"v_mul_f32 v{E1+2*i}, v{E1+2*i}, v{TM_+i}\nv_mul_f32 v{E1+2*i+1}, v{E1+2*i+1}, v{TM_+i}")
            E2, E4, E16, E512 = 98, 100, 102, 104
            EA, EB, E32, Y, Z = 106, 20, 114, 30, 38
            cmul([(E2, E1, E1), (E16, E8, E8), (E512, E256, E256), (X + 2, X, E1)])
            cmul([(E4, E2, E2), (EA + 6, E16, E8), (E32, E16, E16), (X + 4, X, E2), (X + 6, X + 2, E2)])
            p.ext(q)
            p.e("s_waitcnt lgkmcnt(0)")
            q = Prog(); e = q.e
            e(f"ds_write_addtid_b32 v28", "kw")
            puts([(1, E8), (2, E16), (3, EA + 6), (4, E32)], False)
            cmul([(EB, E8, E32), (EB + 2, E16, E32), (EB + 4, EA + 6, E32), (EB + 6, E32, E32)])
            cur, nxt = EB, EA
            extra = [[(X + 8 + 2 * i, X + 2 * i, E4) for i in range(4)], [(Y + 2 * i, X + 4 * i, E256) for i in range(4)],
                     [(Z, X, E512), (Z + 2, X + 8, E512), (Z + 4, Y, E512), (Z + 6, Y + 4, E512)],
                     [(Z + 8, Z, E512), (Z + 10, Z + 4, E512)], [(Z + 12, Z + 8, E512), (Z + 14, Z + 10, E512)], [(E1, Z + 12, E512)]]
            for st in range(6):
                j0 = 9 + 4 * st
                n = min(4, 32 - j0)
                cmul([(nxt + 2 * i, cur + 2 * i, E32) for i in range(n)])
                puts([(j0 - 4 + i, cur + 2 * i) for i in range(4)], False)
                cmul(extra[st])
                cur, nxt = nxt, cur
            puts([(29 + i, cur + 2 * i) for i in range(3)], False)
            if rd > 0: p.ext(interleave(q, mf(rd - 1)))
            else: p.ext(q)
            for s_ in range(8): p.e(f"ds_read_b128 {a(FB+4*s_,4)}, v{RB} offset:{s_*32}", "kr")
            e = p.e
            puts([(i, X + 2 * i) for i in range(4)], True); puts([(4 + i, X + 8 + 2 * i) for i in range(4)], True)
            puts([(8 + i, Y + 2 * i) for i in range(4)], True); puts([(12 + i, Z + 2 * i) for i in range(4)], True)
            puts([(16 + i, Z + 8 + 2 * i) for i in range(4)] + [(20, E1)], True)
            for s_ in range(8): p.e(f"ds_read_b128 {a(FA+4*s_,4)}, v{RA} offset:{s_*32}", "kr")
            p.e("s_cmp_lg_u32 s76, 0\ns_cbranch_scc1 L_kg1")
            for i in range(16): p.e(f"v_accvgpr_write_b32 a{i}, 0")
            p.e("L_kg1:")
            if self.debug: p.e(f"s_memrealtime s[82:83]\ns_waitcnt lgkmcnt(0)\ns_add_u32 s50, s76, 20\nv_mov_b32 v61, s82\nv_cmp_eq_u32 vcc, s50, {LANE}\nv_cndmask_b32 {VDBG}, {VDBG}, v61, vcc")
            kp = self.o["kpause"]
            if kp == 9:
                p.e(f"ds_read_b32 v61, {VSY} offset:{4*Y_PUB}\ns_waitcnt lgkmcnt(0)\nv_readfirstlane_b32 s79, v61\ns_cmp_lt_u32 s79, 2\ns_cbranch_scc1 L_kg2\ns_cmp_eq_u32 s76, 0\ns_cbranch_scc1 L_kg2")
                self.spin(p, self.o["kword"], 1, 61, sleep=4)
                p.e("L_kg2:")
            elif kp:
                p.e(f"s_cmp_lg_u32 s76, {kp - 1}\ns_cbranch_scc1 L_kg2")
                self.spin(p, self.o["kword"], 1, 61, sleep=4)
                p.e("L_kg2:")
            p.e("s_add_u32 s76, s76, 1\ns_cmp_lt_u32 s76, 3\ns_cbranch_scc1 L_kg")
        e = p.e
        e(f"v_and_b32 v62, 31, {LANE}\nv_lshrrev_b32 v63, 5, {LANE}\ns_add_u32 s51, {REGB}, {KCO}")
        e(f"v_lshlrev_b32 v64, 4, v62\nv_lshl_add_u32 v64, v63, 3, v64\nv_add_u32 v64, s51, v64")
        e(f"v_cmp_eq_u32 vcc, 0, v63\nv_lshlrev_b32 v65, 3, v62\nv_add_u32 v65, 512, v65\nv_lshlrev_b32 v66, 2, v62\nv_add_u32 v66, 768, v66")
        e(f"v_cndmask_b32 v65, v66, v65, vcc\nv_add_u32 v65, s51, v65\nv_mov_b32 v66, 128\nv_cndmask_b32 v66, v66, 4, vcc\nv_add_u32 v66, v65, v66")
        e(f"v_lshlrev_b32 v67, 1, v62\nv_lshl_add_u32 v67, v63, 8, v67\nv_add_u32 v67, s51, v67")
        self.spin(p, Y_PUB, 1, 68)
        for q in mf(2): p.ext(q)
        e(f"v_mov_b32 v76, 0\nv_mov_b32 v77, 0\nv_mov_b32 v78, 0\nv_mov_b32 v79, 0\nv_add_u32 v15, {REGB}, {L16}")
        for i in range(4): e(f"ds_write_b128 v15, v[76:79] offset:{R0O + 1024*i}", "kc")
        e("s_mov_b64 exec, 3")
        e(f"ds_write_b128 v15, v[76:79] offset:{KCO - 32}", "kc")
        e("s_mov_b32 exec_lo, -1")
        e(f"ds_write_b128 v15, v[76:79] offset:{UO}", "kc")
        e("s_mov_b64 exec, -1")
        blocks = [(-2, 34, 8), (32, 32, 4)]
        info = []
        for bi, (v0, nl, stride) in enumerate(blocks):
            cis = lambda y: y if y < 0 else ci(y)
            base = cis(8 * v0)
            offs = {}
            for t in range(-1, 8):
                o = [cis(8 * (v0 + l) + 7 - t) - (base + stride * l) for l in range(nl)]
                offs[t] = o[0]
                assert all(x == o[0] for x in o)
            AD = 100 + 2 * bi
            e(f"s_add_u32 s51, {REGB}, {KCO + 2*base}\nv_mul_u32_u24 v{AD}, {2*stride}, {LANE}\nv_add_u32 v{AD}, s51, v{AD}")
            e(f"s_add_u32 s51, {REGB}, {(75 - v0) * 16}\nv_sub_u32 v{AD+1}, s51, {L16}")
            info.append(offs)
        e(f"v_cmp_gt_u32 vcc, 16, {LANE}\nv_mov_b32 v104, 563\nv_mov_b32 v105, 512\nv_cndmask_b32 v104, v104, v105, vcc\nv_add_u32 v104, v104, {LANE}")
        e(f"v_mov_b32 v106, 1011\nv_cndmask_b32 v105, v106, v105, vcc\nv_add_u32 v105, v105, {LANE}\nv_cvt_f32_u32 v105, v105\nv_cvt_pk_bf16_f32 v105, v105, v105\nv_and_b32 v105, 0xffff, v105")
        e(f"s_sub_u32 s51, {REGB}, {2*0x4280 - KCO}\nv_lshl_add_u32 v105, v105, 1, s51")
        e(f"s_add_u32 s51, {REGB}, {2*607}\nv_lshlrev_b32 v104, 1, v104\nv_sub_u32 v104, s51, v104")
        e(f"v_add_u32 v107, 1, {LANE}\nv_and_b32 v107, 0x7e, v107\ns_add_u32 s51, {REGB}, 4096\nv_sub_u32 v107, s51, v107\nv_and_b32 v106, 1, {LANE}")
        e(f"v_mul_u32_u24 v108, 192, v106\nv_add_u32 v108, v107, v108\nv_mul_u32_u24 v106, 272, v106\nv_add_u32 v107, v107, v106\nv_lshl_add_u32 v106, {LANE}, 1, {REGB}")
        for i in range(12): e(f"v_accvgpr_read_b32 v{82+i}, a{i}")
        e(f"v_add_f32 v82, v82, v{VDS}")
        for i in range(6): e(f"v_cvt_pk_bf16_f32 v{70+i}, v{82+2*i}, v{83+2*i}")
        e(f"ds_write_b64 v64, v[70:71]\nds_write_b32 v65, v72\nds_write_b32 v66, v73\nds_write_b16 v67, v74 offset:1024", "kc")
        e("s_mov_b32 exec_hi, 0")
        e(f"ds_write_b16_d16_hi v67, v74 offset:{1024+64}\nds_write_b16 v67, v75 offset:{1024+128}\nds_write_b16_d16_hi v67, v75 offset:{1024+192}", "kc")
        e("s_mov_b64 exec, -1")
        vrs = []
        for bi, (v0, nl, stride) in enumerate(blocks):
            RR = 20 + 9 * bi; AD = 100 + 2 * bi; offs = info[bi]
            e(f"s_mov_b32 exec_hi, {(1 << (nl - 32)) - 1}")
            seen = {}; vr = {}
            for t in range(-1, 8):
                o = offs[t]
                if o not in seen:
                    seen[o] = RR + len(seen)
                    e(f"ds_read_u16 v{seen[o]}, v{AD} offset:{2*o}", f"kx{bi}")
                vr[t] = seen[o]
            vrs.append(vr)
        e("ds_read_u16 v40, v105", "kq")
        e("s_mov_b64 exec, -1")
        for i in range(2):
            e(f"ds_read_u16 v{41+i}, v106 offset:{KCO + 2*(388 + 64*i)}\nds_read_u16 v{43+i}, v106 offset:{KCO + 2*(514 + 64*i)}", "kq")
        for bi, (v0, nl, stride) in enumerate(blocks):
            AD = 100 + 2 * bi; O = 70 + 8 * bi; vr = vrs[bi]
            p.wlg(f"kx{bi}")
            for i in range(4): e(f"v_lshl_or_b32 v{O+i}, v{vr[2*i+1]}, 16, v{vr[2*i]}")
            for i in range(4): e(f"v_lshl_or_b32 v{O+4+i}, v{vr[2*i]}, 16, v{vr[2*i-1]}")
            e(f"s_mov_b32 exec_hi, {(1 << (nl - 32)) - 1}")
            e(f"ds_write_b128 v{AD+1}, {v(O,4)} offset:{R0O}\nds_write_b128 v{AD+1}, {v(O+4,4)} offset:{R1O}", "kt")
            e("s_mov_b64 exec, -1")
        p.wlg("kq")
        e(f"ds_write_b16 v107, v41 offset:{Q2O - 4096 + 2*94}\nds_write_b16 v108, v43 offset:{Q3O - 4096 + 2*63}\nds_write_b16 v108, v43 offset:{Q3O - 4096 + 384 + 2*64}", "kt")
        e(f"s_mov_b32 exec_hi, {(1 << 31) - 1:#x}\nds_write_b16 v108, v44 offset:{Q3O - 4096 + 2*31}\nds_write_b16 v108, v44 offset:{Q3O - 4096 + 384 + 2*32}", "kt")
        e(f"s_mov_b32 exec_hi, {(1 << 29) - 1:#x}\nds_write_b16 v107, v42 offset:{Q2O - 4096 + 2*62}", "kt")
        e(f"s_mov_b32 exec_hi, 0\ns_mov_b32 exec_lo, 0x01ff3fff\nds_write_b16 v104, v40 offset:{R0O}\nds_write_b16 v104, v40 offset:{R1O + 2}\ns_mov_b64 exec, -1", "kt")

    def conv_setup(self, p):
        e = p.e
        e(f"v_lshrrev_b32 v32, 4, {LANE}\nv_and_b32 v31, 15, {LANE}\nv_bfe_u32 v33, {LANE}, 1, 3\nv_lshlrev_b32 v34, 2, v32\nv_sub_u32 v34, v34, v33")
        e(f"v_and_b32 v33, 1, {LANE}\nv_xor_b32 v33, 1, v33\nv_mul_u32_u24 v33, {(R1O - R0O)//4 + 1}, v33\nv_add_u32 v34, v34, v33")
        e(f"s_add_u32 s51, {REGB}, {R0O + 4*7}\nv_lshl_add_u32 v24, v34, 2, s51\nv_add_u32 v25, 512, v24")
        e(f"v_lshlrev_b32 v33, 3, v32\nv_lshlrev_b32 v34, 2, v31\nv_sub_u32 v26, v33, v34\ns_add_u32 s51, {REGB}, {Q2O + 60}\nv_add_u32 v26, s51, v26")
        e(f"v_lshlrev_b32 v34, 1, v31\nv_sub_u32 v27, v33, v34\nv_and_b32 v34, 1, v31\nv_mul_u32_u24 v34, 386, v34\nv_sub_u32 v27, v27, v34\ns_add_u32 s51, {REGB}, {Q3O + 384 + 32}\nv_add_u32 v27, s51, v27")
        for m in list(range(17)) + [18]:
            off = (18 - m) * 16; ad = 24; r = 4 * min(m, 17)
            if off >= 128: off -= 128; ad = 25
            e(f"ds_read2_b32 {a(r,2)}, v{ad} offset0:{off} offset1:{off+1}\nds_read2_b32 {a(r+2,2)}, v{ad} offset0:{off+2} offset1:{off+3}", "pf")
        for j in range(6): e(f"ds_read2_b32 {a(72+4*j,2)}, v26 offset0:{8*j} offset1:{8*j+1}\nds_read2_b32 {a(74+4*j,2)}, v26 offset0:{68+8*j} offset1:{68+8*j+1}", "pf")
        for j in range(4): e(f"ds_read2_b32 {a(96+4*j,2)}, v27 offset0:{8*j} offset1:{8*j+1}\nds_read2_b32 {a(98+4*j,2)}, v27 offset0:{48+8*j} offset1:{48+8*j+1}", "pf")
        e(f"v_lshl_add_u32 v34, v31, 1, v32\ns_add_u32 s51, {REGB}, {UO + 16*2}\nv_lshl_add_u32 v16, v34, 4, s51")
        e(f"v_add_u32 v34, v31, v32\ns_add_u32 s51, {REGB}, {UO + 512 - 48}\nv_lshl_add_u32 v12, v34, 4, s51")
        e(f"v_and_b32 v34, 1, v32\nv_lshlrev_b32 v34, 9, v34\nv_lshl_add_u32 v34, v31, 5, v34\nv_lshrrev_b32 v32, 1, v32\nv_lshl_add_u32 v17, v32, 4, v34")
        e(f"s_lshl_b32 s86, {CH}, 12\ns_add_u32 s86, s86, {YT}\ns_mul_i32 s89, {DT}, 24\ns_add_u32 s89, s89, {FT}\ns_lshl_b32 s89, s89, 7\ns_add_u32 s89, s89, {F3}\ns_sub_u32 s88, {NCH}, 1")
    def boxes(self, p):
        e = p.e
        e("v_mov_b32 v23, 0x3f80")
        e(f"v_and_b32 v124, 15, {LANE}\nv_lshrrev_b32 v125, 4, {LANE}\nv_lshlrev_b32 v125, 3, v125\ns_mov_b32 s50, 0x8001\ns_mov_b32 s51, 0x10001")
        for bi, (c_, h_) in enumerate(((8, 2), (12, 1), (8, 4), (8, 3))):
            e(f"v_mov_b32 v126, {((1 << (2*h_+1)) - 1) << (c_ - h_):#x}\nv_lshlrev_b32 v126, v124, v126\nv_lshrrev_b32 v126, v125, v126")
            for q in range(4):
                e(f"v_bfe_u32 v127, v126, {2*q}, 2\nv_mul_u32_u24 v127, s50, v127\nv_and_b32 v127, s51, v127\nv_mul_u32_u24 v127, v23, v127\nv_accvgpr_write_b32 a{112+4*bi+q}, v127")
        self.stamp(p)
        self.spin(p, Y_UR, 1, 22, sleep=2)
        e(f"ds_read_b32 {VTAG}, {VSY} offset:{4*Y_TAG}", "tag")
        self.stamp(p)
    def inverse_addr(self, p):
        e = p.e
        e(f"v_lshrrev_b32 v20, 4, {LANE}\nv_lshlrev_b32 v20, 10, v20\nv_and_b32 v21, 3, {LANE}\nv_lshl_add_u32 v20, v21, 4, v20\nv_and_b32 v21, 12, {LANE}")
        for q in range(4):
            e(f"v_add_u32 v22, {16*(q&1)}, v21\nv_bfe_u32 v22, s{74 + q//2}, v22, 4\nv_lshl_add_u32 v{4+q}, v22, 6, v20")
        e(f"s_mov_b32 s84, {STAT}\ns_mov_b32 s85, {STAT+4096}")
    def inverse(self, p):
        e = p.e
        S2, M2, SF, MF = 24, 40, 56, 88
        for q in range(4):
            e(f"buffer_load_dwordx4 {v(S2+4*q,4)}, v{4+q}, {SWS}, s84 offen sc1", "u")
            e(f"buffer_load_dwordx4 {v(M2+4*q,4)}, v{4+q}, {SWS}, s85 offen sc1", "u")
        e(f"s_setprio {self.o['iprio']}")
        p.wvm("u")
        self.unpack(p, S2, SF, 16); self.unpack(p, M2, MF, 16)
        for q in range(4):
            self.spin(p, Y_U + q, 4, 22, sleep=(2 if q < 3 else 1))
            for c in range(3): e(f"ds_read_b128 {v(24+4*c,4)}, v{4+q} offset:{REG0 + c*REGSZ + UO + 512}", f"ur{q}{c}")
            for c in range(3):
                p.wlg(f"ur{q}{c}")
                self.unpack(p, 24 + 4 * c, 40, 4)
                for i in range(8): e(f"v_fma_f32 v{40+i}, v{40+i}, v{SF+8*q+i}, v{MF+8*q+i}")
                o = 48 + 4 * (c & 1)
                for i in range(4): e(f"v_cvt_pk_bf16_f32 v{o+i}, v{40+2*i}, v{41+2*i}")
                e(f"ds_write_b128 v{4+q}, {v(o,4)} offset:{REG0 + c*REGSZ + UO + 512}", "uw")
        self.sig(p, Y_UR, 20)
        e("s_setprio 3")
    def conv(self, p):
        e = p.e
        YO, ACC, DT_, PKD = 17, 64, 116, 124
        slots = [24 + 4 * i for i in range(10)] + [96 + 4 * i for i in range(5)]
        slots = slots[:self.o["cns"]]; NS = len(slots)
        R = lambda n: v(slots[n % NS], 4)
        F = []
        for ph in range(8):
            for d in range(8):
                l = [(d + mu, 4 * (8 * mu + ph)) for mu in range(2) if d + mu <= 7]
                if ph == 0 and d <= 5: l.append((d + 2, 64))
                if ph == 0 and d <= 3: l.append((d + 4, 68))
                F.append((f"v16 offset:{512*d + (7-ph)*64}", l))
        S = []
        for st in range(4):
            S.append(([f"v16 offset:{16*(27 + 32*st)}", f"v16 offset:{16*(28 + 32*st)}"], 120, [(I, 96 + 4 * (st - I + 7)) for I in range(4, 8) if st <= I - 4]))
        for st in range(12):
            S.append(([f"v12 offset:{256*st}"], 112, [(I, 72 + 4 * (st - 2 * I + 8)) for I in range(2, 8) if 2 * I - 8 <= st <= 2 * I - 3]))
        loads = []; steps = []
        def ld(addr): loads.append(addr); return len(loads) - 1
        for i, (ad, box, l) in enumerate(S):
            ids = [ld(x) for x in ad]
            steps.append(("box", ids, box))
            for k in range(3): steps.append(("F", [ld(F[4*i+k][0])], F[4*i+k][1]))
            steps.append(("cvt", [], None))
            steps.append(("F", [ld(F[4*i+3][0])], F[4*i+3][1]))
            steps.append(("S", [], l))
        first = set(); nl = [0]
        def issue(upto):
            while nl[0] < min(upto, len(loads)):
                e(f"ds_read_b128 {R(nl[0])}, {loads[nl[0]]}", f"cj{nl[0]}"); nl[0] += 1
        def mm(I, A, B):
            acc = v(ACC + 4 * I, 4); src = acc if I in first else "0"; first.add(I)
            e(f"v_mfma_f32_16x16x32_bf16 {acc}, {A}, {B}, {src}")
        if self.o.get("dly_c"): e(f"s_sleep {self.o['dly_c']}")
        issue(NS)
        if self.o["cwait"]: self.spin(p, Y_EPI, self.o["cwait"], 22, sleep=1)
        e(f"s_setprio {self.o['cprio0']}")
        self.stamp(p)
        for si, (kind, ids, arg) in enumerate(steps):
            if si == self.o["cswitch"]: e(f"s_setprio {self.o['cprio']}")
            if ids: p.wlg(f"cj{ids[-1]}")
            if kind == "box":
                e(f"v_mfma_f32_16x16x32_bf16 {v(DT_,4)}, {R(ids[0])}, {a(arg,4)}, 0")
                issue(ids[0] + NS)
                e(f"v_mfma_f32_16x16x32_bf16 {v(DT_+4,4)}, {R(ids[-1])}, {a(arg+4,4)}, 0")
            elif kind == "F":
                for i, (I, kf) in enumerate(arg):
                    mm(I, a(kf, 4), R(ids[0]))
                    if i == 0: issue(ids[0] + NS)
            elif kind == "cvt":
                for i in range(4): e(f"v_cvt_pk_bf16_f32 v{PKD+i}, v{DT_+2*i}, v{DT_+2*i+1}")
            else:
                for I, kf in arg: mm(I, v(PKD, 4), a(kf, 4))
        for k in range(4):
            o = 24 + 4 * k
            for i in range(4): e(f"v_cvt_pk_bf16_f32 v{o+i}, v{ACC+8*k+2*i}, v{ACC+8*k+2*i+1}")
            e(f"v_permlane16_swap_b32 v{o}, v{o+2}\nv_permlane16_swap_b32 v{o+1}, v{o+3}")
            e(f"buffer_store_dwordx4 {v(o,4)}, v{YO}, {SWS}, s86 offen offset:{1024*k} sc1", "ys")
        self.stamp(p)
        e("s_waitcnt vmcnt(0)")
        e(f"v_mov_b32 v20, 1\ns_mov_b64 exec, 1\nds_add_rtn_u32 v20, {VSY}, v20 offset:{4*Y_Y}\ns_mov_b64 exec, -1\ns_waitcnt lgkmcnt(0)\nv_readfirstlane_b32 s79, v20")
        e(f"s_cmp_lg_u32 s79, s88\ns_cbranch_scc1 L_ynl")
        self.flag_store(p, "s89")
        e("L_ynl:")
    def convw(self):
        self.role = "conv"
        p = Prog(); e = p.e
        self.conv_start(p)
        self.stamp(p)
        if not self.o.get("skip_kgen"): self.kgen(p)
        else: self.stamp(p)
        self.stamp(p)
        if self.o.get("dly_k"): e(f"s_sleep {self.o['dly_k']}")
        self.conv_setup(p)
        e("s_setprio 0")
        self.boxes(p)
        self.conv(p)
        self.finish(p)
        return p

    def build(self):
        p = Prog(); self.prologue(p)
        p.ext(self.main())
        body = finalize(p)
        q = Prog(); q.e("L_aux:")
        q.e(f"s_cmp_eq_u32 {WV}, 7\ns_cbranch_scc1 L_serv"); q.ext(self.convw())
        body += finalize(q)
        q = Prog(); q.e("L_serv:"); q.ext(self.serv()); q.e("L_end:\nL_last:\ns_endpgm")
        body += finalize(q)
        body = body.replace("@", "")
        ref = open("cdna_kernels/" + NAME + ".s.ref").read()
        head = [l for l in ref.split("\n") if l.startswith(";") and "@launch" not in l]
        k = NAME + "_kernel"
        s = "\n".join(head) + f"\n; @launch grid=(256,1,1) block=(512,1,1) lds={LDS_BYTES}\n" + DOC
        s += f'.amdgcn_target "amdgcn-amd-amdhsa--gfx950"\n.text\n.globl {k}\n.p2align 8\n.type {k},@function\n{k}:\n'
        s += body
        s += f""".section .rodata,"a"
.p2align 6
.amdhsa_kernel {k}
  .amdhsa_next_free_vgpr 256
  .amdhsa_next_free_sgpr 102
  .amdhsa_accum_offset 128
  .amdhsa_group_segment_fixed_size 0
  .amdhsa_kernarg_size 136
  .amdhsa_user_sgpr_count 2
  .amdhsa_user_sgpr_kernarg_segment_ptr 1
  .amdhsa_system_sgpr_workgroup_id_x 1
.end_amdhsa_kernel
"""
        return s

if __name__ == "__main__":
    out = sys.argv[1]
    kw = eval("dict(" + (sys.argv[2] if len(sys.argv) > 2 else "") + ")")
    open(out, "w").write(G(**kw).build())
```

```python
import sys, struct
from asmlib import Prog, interleave, finalize

NAME = "parallel_sum__ssm_conv_s4__mixer_token_mlp__prompt"
STAT, TM, F2, F3, F1 = 0x4000, 0x8000, 0x50000, 0x58000, 0x60000
HB, GB, YT, WSEND = 0x80000, 0x300000, 0x4E0000, 0x760000
RINGW, RS = 28672, 7
PT = 1344
REG0, REGSZ = 0, 14976
SYNC = 3 * REGSZ
RING0 = 45056
KCO, R0O, R1O, Q2O, Q3O = 32, 1408, 1408 + 1344, 4096, 4672
Z5O, Z3O, Z9O, Z7O, UO = 0, 3104, 6208, 8288, 10368
LNT = REG0 + 8704
BOXO = RING0 + 4 * RINGW
KP = 272
LDS_BYTES = 163840
assert SYNC + 128 <= RING0 and RING0 + 4 * RINGW <= LDS_BYTES
Y_EPI = 3
Y_Y = 16
Y_UR = 17
Y_Q = 20
Y_LN, Y_F1, Y_PART, Y_PUB, Y_P1, Y_G, Y_P2, Y_F2, Y_P3, Y_F3, Y_TAG, Y_U = 0, 1, 2, 4, 5, 6, 7, 8, 9, 10, 11, 12

DOC = '; One persistent launch, 256 workgroups (one per CU) of 8 waves; generated by a hand-written script.\n'

def fbits(x): return "0x%08x" % struct.unpack("<I", struct.pack("<f", x))[0]
def bf16r(l):
    u = struct.unpack("<I", struct.pack("<f", float(l)))[0]
    u = ((u + 0x7FFF + ((u >> 16) & 1)) >> 16) << 16
    return int(struct.unpack("<f", struct.pack("<I", u))[0])
def ci(l):
    v = bf16r(l)
    if v <= 256: return v
    if v <= 512: return 256 + (v - 256) // 2
    if v <= 1024: return 384 + (v - 512) // 4
    return 512 + (v - 1024) // 8

WG, WV, XCD, IDX, DT, FT, DT2, ST2, TAG, ROT1, ROT2, CH = "s2", "s3", "s4", "s5", "s6", "s7", "s8", "s9", "s10", "s11", "s12", "s13"
SUB, C0, NCH = "s97", "s98", "s99"
SX, SW1, SW2, SOUT, SWS = "s[52:55]", "s[56:59]", "s[60:63]", "s[64:67]", "s[68:71]"
RINGB, REGB = "s73", "s77"
VSY, LANE, L16, L4, VTAG, VZ, VDBG = "v0", "v1", "v2", "v3", "v9", "v10", "v11"

def v(i, n=1): return f"v{i}" if n == 1 else f"v[{i}:{i+n-1}]"
def a(i, n=1): return f"a{i}" if n == 1 else f"a[{i}:{i+n-1}]"

def groups_of(prog):
    groups = []
    for it in prog.items:
        prev = groups[-1][-1][0] if groups else None
        if isinstance(prev, str) and (prev.startswith(("s_add_u32 m0", "s_cmp", "s_sub_u32 s51", "s_mov_b64 exec, s", "s_mov_b64 exec, 1", "ds_write_b128 v125", "ds_add"))):
            groups[-1].append(it)
        else: groups.append([it])
    return groups

def make_perm(n, nw, first, duty0, per=1):
    own = list(range(0, n, 2)); oth = list(range(1, n, 2))
    order = [[] for _ in range(nw)]; touched = {}
    pool = own[:]
    for pos in range(first):
        for j in range(nw):
            pass
    deal = [[] for _ in range(nw)]
    k = 0
    for pos in range(first):
        for j in range(nw):
            if pool: st = pool.pop(0)
            else: st = oth.pop(0)
            deal[j].append(st); touched[st] = pos
    rest = pool + oth
    duty = {}
    for i, st in enumerate(rest): duty[(duty0 + i // per, i % nw)] = st
    for j in range(nw): order[j] = list(deal[j])
    for pos in range(first, n):
        for j in range(nw):
            if (pos, j) in duty: touched[duty[(pos, j)]] = pos
        for j in range(nw):
            if (pos, j) in duty: order[j].append(duty[(pos, j)]); continue
            mine = {st for (pp, jj), st in duty.items() if jj == j and pp > pos}
            cand = [st for st in range(n) if st not in order[j] and st not in mine]
            cand.sort(key=lambda st: (touched.get(st, 99), (st - 2 * j) % n))
            order[j].append(cand[0])
    for o in order: assert sorted(o) == list(range(n)), o
    return order
def pack_perm(o):
    x = sum(st << (4 * i) for i, st in enumerate(o)); return x & 0xffffffff, x >> 32

class G:
    def __init__(self, debug=False, **kw):
        self.debug = debug
        self.o = dict(P1=6, D1=13, PS1=11, lead1=4, xk=-1, epifirst=1, sp3=0, first1=1, dpp=3, P2=4, D2=11, PS2=9, lead2=4, wflag="", xflag="", nsp=0, thr=4,
                      ytrig=5, ychk=10, pk=1, psleep=4, psleep2=8, kprio=0, mprio=2, ebpos=0, kpause=9, kword=5, spk=0, spw=0, sx=4, spa=0, fg=0, tprio=0, rprio=0, mfp=1, p1=0, p2=0, first2=2, dpp2=1, e2=0, tch=0, cprio=3, ipf=2, ns1=12, ns2=15, perm=1, duty1=1, duty2=3, oflag='', eb=2, pfirst=1, free1=1, pre1=1, cns=15, sg1=0, sg2=0, epk=1, cprio0=0, cswitch=40, iprio=0, ow4=1, slow=0, ebk=99, nthr=6, pflag='nt', cwait=4)
        self.o.update(kw)
        self.nst = {}; self.nlab = 0; self.role = None
    def stamp(self, p):
        if not self.debug: return
        n = self.nst.get(self.role, 0)
        if n == 0: p.e(f"v_writelane_b32 {VDBG}, s100, 28")
        p.e(("s_memtime" if self.o.get("cyc") else "s_memrealtime") + " s[82:83]\ns_waitcnt lgkmcnt(0)")
        p.e(f"v_writelane_b32 {VDBG}, s82, {n}")
        self.nst[self.role] = n + 1
    def pre(self, p):
        if self.debug and self.o.get("prest"): p.e(f"s_memrealtime s[82:83]\ns_waitcnt lgkmcnt(0)\nv_writelane_b32 {VDBG}, s82, 27")
    def label(self, s):
        self.nlab += 1; return f"L{s}_{self.nlab}"
    def flag_store(self, p, soff, pre=""):
        p.e(f"s_mov_b64 exec, 1\n{pre}buffer_store_dword {VTAG}, {VZ}, {SWS}, {soff} offen sc1\ns_mov_b64 exec, -1")
    def poll(self, p, voff, soff, tmp, wide=False, sleep=0, fine=False):
        l = self.label("poll"); d = self.label("polld"); f = self.label("pollf")
        p.e("s_mov_b32 s78, 0")
        if sleep: p.e(f"s_branch {f}")
        p.e(f"{l}:")
        if sleep: p.e(f"s_sleep {sleep}\n{f}:")
        if wide:
            p.e(f"buffer_load_dwordx4 {v(tmp,4)}, {voff}, {SWS}, {soff} offen sc1")
            p.e("s_add_u32 s78, s78, 1\ns_waitcnt vmcnt(0)")
            for i in range(4): p.e(f"v_xor_b32 {v(tmp+i)}, {TAG}, {v(tmp+i)}")
            p.e(f"v_or3_b32 {v(tmp)}, {v(tmp)}, {v(tmp+1)}, {v(tmp+2)}\nv_or_b32 {v(tmp)}, {v(tmp)}, {v(tmp+3)}")
            p.e(f"v_cmp_ne_u32 vcc, 0, {v(tmp)}")
        else:
            p.e(f"buffer_load_dword {v(tmp)}, {voff}, {SWS}, {soff} offen sc1")
            p.e("s_add_u32 s78, s78, 1\ns_waitcnt vmcnt(0)")
            p.e(f"v_cmp_ne_u32 vcc, {TAG}, {v(tmp)}")
        if fine:
            p.e(f"s_mov_b64 exec, 15\nv_and_b32 v21, vcc_lo, v17\nv_and_b32 v22, vcc_hi, v18\nv_or_b32 v21, v21, v22\nv_cmp_eq_u32 s[94:95], 0, v21\nv_cndmask_b32 v21, 0, 1, s[94:95]")
            p.e(f"ds_write_b32 {L4}, v21 offset:{SYNC + 4*Y_Q}")
        p.e(f"s_cmp_gt_u32 s78, 0x40000\ns_cbranch_scc1 {d}\ns_cbranch_vccz {d}\ns_mov_b64 exec, vcc\ns_branch {l}")
        p.e(f"{d}:\ns_mov_b64 exec, -1")
    def sig(self, p, word, tmp):
        p.e(f"v_mov_b32 v{tmp}, 1\ns_mov_b64 exec, 1\nds_add_u32 {VSY}, v{tmp} offset:{4*word}\ns_mov_b64 exec, -1", "sig")
    def spin(self, p, word, n, tmp, sleep=0, base=VSY):
        l = self.label("spin"); d = self.label("spind"); f = self.label("spinf")
        p.e("s_mov_b32 s78, 0")
        if sleep: p.e(f"s_branch {f}")
        p.e(f"{l}:")
        if sleep: p.e(f"s_sleep {sleep}\n{f}:")
        p.e(f"ds_read_b32 v{tmp}, {base} offset:{4*word}\ns_add_u32 s78, s78, 1\ns_waitcnt lgkmcnt(0)\nv_readfirstlane_b32 s79, v{tmp}")
        p.e(f"s_cmp_gt_u32 s78, 0x200000\ns_cbranch_scc1 {d}\ns_cmp_lt_u32 s79, {n}\ns_cbranch_scc1 {l}")
        p.e(f"{d}:")
    def mktag(self, p):
        p.e(f"s_mul_i32 {TAG}, {TAG}, 0x9E3779B1\ns_add_u32 {TAG}, {TAG}, 0x7F4A7C15\nv_mov_b32 {VTAG}, {TAG}")
    def finish(self, p):
        e = p.e
        if self.debug:
            e("s_waitcnt vmcnt(0)")
            self.stamp(p)
            e(f"s_lshl_b32 s50, {WG}, 3\ns_add_u32 s50, s50, {WV}\ns_lshl_b32 s50, s50, 7\ns_add_u32 s50, s50, {TM}")
            e(f"s_mov_b32 exec_hi, 0\nbuffer_store_dword {VDBG}, {L4}, {SWS}, s50 offen")
        e("s_endpgm")
    def srd(self, p, d, lo, size): p.e(f"s_mov_b32 s{d}, s{lo}\ns_mov_b32 s{d+1}, s{lo+1}\ns_mov_b32 s{d+2}, {size}\ns_mov_b32 s{d+3}, 0x20000")
    def unpack(self, p, src, dst, n):
        for i in range(n):
            p.e(f"v_lshlrev_b32 v{dst+2*i}, 16, v{src+i}\nv_and_b32 v{dst+2*i+1}, 0xffff0000, v{src+i}")
    def rbf(self, p, r):
        p.e(f"v_cvt_pk_bf16_f32 v{r}, v{r}, v{r}\nv_lshlrev_b32 v{r}, 16, v{r}")

    def prologue(self, p):
        e = p.e; RAW = self.RAW; o = self.o
        if self.debug: e("s_memrealtime s[100:101]")
        e(f"s_cmp_ge_u32 {WG}, 256\ns_cbranch_scc1 L_end0")
        e("s_load_dwordx16 s[16:31], s[0:1], 0\ns_load_dwordx16 s[32:47], s[0:1], 64\ns_load_dwordx2 s[48:49], s[0:1], 128")
        e(f"v_and_b32 {LANE}, 63, v0\nv_lshrrev_b32 v12, 6, v0\nv_readfirstlane_b32 {WV}, v12")
        e(f"v_lshlrev_b32 {L4}, 2, {LANE}\nv_mov_b32 {VZ}, 0\nv_mov_b32 {VSY}, {SYNC}")
        e(f"s_cmp_lg_u32 {WV}, 7\ns_cbranch_scc1 L_p1")
        if o["ipf"]:
            e(f"s_getpc_b64 s[90:91]\nL_pc:\ns_bfe_u32 s51, {WG}, {(o['ipf'] << 16) | 3:#x}\ns_lshl_b32 s51, s51, 13")
            e(f"v_lshl_add_u32 v112, {LANE}, 7, s51\nv_min_u32 v112, L_last-L_pc, v112")
            e("v_mov_b32 v113, s91\nv_add_co_u32 v112, vcc, s90, v112\nv_addc_co_u32 v113, vcc, 0, v113, vcc")
            e("@global_load_dword v114, v[112:113], off")
        e(f"s_mov_b32 exec_hi, 0\nds_write_b32 {L4}, {VZ} offset:{SYNC}\ns_mov_b64 exec, -1")
        e(f"s_waitcnt lgkmcnt(0)\n@s_load_dword {TAG}, s[48:49], 0\ns_branch L_p3")
        e("L_end0:\ns_endpgm\nL_p1:")
        e(f"s_cmp_ge_u32 {WV}, 4\ns_cbranch_scc1 L_p2")
        e(f"v_lshrrev_b32 v120, 5, {LANE}\nv_mul_u32_u24 v121, 1280, v120\nv_and_b32 v122, 31, {LANE}")
        e("v_lshl_add_u32 v123, v122, 4, v121\nv_lshl_add_u32 v124, v122, 3, v121")
        e(f"s_lshl_b32 s50, {WG}, 3\ns_lshl1_add_u32 s50, {WV}, s50\ns_mul_i32 s50, s50, 1280")
        e("s_mov_b32 s54, 2621440\ns_mov_b32 s55, 0x20000\ns_waitcnt lgkmcnt(0)\ns_mov_b32 s52, s16\ns_mov_b32 s53, s17")
        xf = o["xflag"]
        e(f"buffer_load_dwordx4 v[20:23], v123, {SX}, s50 offen {xf}", "x")
        e(f"buffer_load_dwordx4 v[24:27], v123, {SX}, s50 offen offset:512 {xf}", "x")
        e(f"buffer_load_dwordx2 v[28:29], v124, {SX}, s50 offen offset:1024 {xf}", "x")
        e("s_branch L_p3")
        e("L_p2:")
        self.tiles(p)
        e(f"s_sub_u32 s14, {WV}, 4\ns_cmp_ge_u32 s14, {NCH}\ns_cbranch_scc1 L_end0")
        e(f"s_lshl_b32 {CH}, {DT}, 6\ns_lshl4_add_u32 {CH}, {SUB}, {CH}\ns_add_u32 {CH}, {CH}, {C0}\ns_add_u32 {CH}, {CH}, s14")
        e(f"s_mul_i32 s51, {CH}, 384\nv_add_u32 v110, s51, {L4}\nv_lshl_add_u32 v111, {LANE}, 1, s51")
        e(f"s_lshr_b32 s79, {CH}, 1\ns_lshl_b32 s79, s79, 2")
        e("s_waitcnt lgkmcnt(0)")
        for i in range(6):
            e(f"@global_load_dword v{RAW[2*i]}, v110, s[{18+2*i}:{19+2*i}] {o['pflag']}")
            e(f"@global_load_ushort v{RAW[2*i+1]}, v111, s[{18+2*i}:{19+2*i}] offset:256 {o['pflag']}")
        e(f"@s_load_dword s80, s[30:31], s79\n@s_load_dword s81, s[32:33], s79")
        e("L_p3:\ns_barrier")
        e(f"v_lshlrev_b32 {L16}, 4, {LANE}\nv_mov_b32 {VDBG}, 0")
        self.tiles(p)
        self.srd(p, 68, 48, WSEND)
        if o["perm"]: P1_ = make_perm(16, 5, o["first1"], o["duty1"], o["dpp"])
        else: P1_ = [[(((2 * j * 205) >> 7) + i) % 16 for i in range(16)] for j in range(5)]
        for j, o_ in enumerate(P1_):
            lo, hi = pack_perm(o_)
            if j == 0: e(f"s_mov_b32 s74, {lo:#x}\ns_mov_b32 s75, {hi:#x}")
            else: e(f"s_cmp_eq_u32 s11, {j}\ns_cselect_b32 s74, {lo:#x}, s74\ns_cselect_b32 s75, {hi:#x}, s75")
        e(f"s_mul_i32 s51, {'s96' if o['p1'] else 's12'}, 0x11111111\ns_xor_b32 s74, s74, s51\ns_xor_b32 s75, s75, s51")
        if o["p2"]: e(f"s_and_b32 {DT2}, {IDX}, 7\ns_lshr_b32 {ST2}, {IDX}, 3\ns_lshl2_add_u32 {ST2}, {XCD}, {ST2}")
        else: e(f"s_and_b32 {DT2}, {IDX}, 3\ns_lshr_b32 {ST2}, {IDX}, 2\ns_xor_b32 {ST2}, {ST2}, {o['sx']}\ns_lshl2_add_u32 {DT2}, s12, {DT2}\ns_lshl3_add_u32 {ST2}, {SUB}, {ST2}")
        e(f"s_cmp_ge_u32 {WV}, 4\ns_cbranch_scc1 L_aux")
    def tiles(self, p):
        e = p.e
        e(f"s_and_b32 {XCD}, {WG}, 7\ns_lshr_b32 {IDX}, {WG}, 3\ns_lshr_b32 {SUB}, {XCD}, 1\ns_and_b32 s12, {XCD}, 1")
        if self.o["p1"]:
            e(f"s_min_u32 s15, {IDX}, 29\ns_mul_i32 {FT}, s15, 26\ns_lshr_b32 {FT}, {FT}, 8\ns_mul_i32 s51, {FT}, 10\ns_sub_u32 {DT}, s15, s51")
            e(f"s_mul_i32 s51, s12, 3\ns_add_u32 {FT}, {FT}, s51\ns_lshr_b32 s11, {DT}, 1\ns_and_b32 s96, {DT}, 1")
        else:
            e(f"s_min_u32 s15, {IDX}, 29\ns_mul_i32 {FT}, s15, 52\ns_lshr_b32 {FT}, {FT}, 8")
            e(f"s_mul_i32 s51, {FT}, 5\ns_sub_u32 s11, s15, s51")
        e(f"s_mul_i32 {C0}, {FT}, 3\ns_min_u32 {C0}, {C0}, 14\ns_cmp_lt_u32 {FT}, 4\ns_cselect_b32 {NCH}, 3, 2\ns_cmp_ge_u32 {IDX}, 30\ns_cselect_b32 {NCH}, 0, {NCH}")
        if self.o["p1"]: e(f"s_mul_i32 s51, {SUB}, 6\ns_add_u32 {FT}, {FT}, s51")
        else: e(f"s_mul_i32 s51, s12, 5\ns_add_u32 {DT}, s11, s51\ns_mul_i32 s51, {SUB}, 6\ns_add_u32 {FT}, {FT}, s51")

    def kk(self, p, g, ks, dst, stride, base):
        p.e(f"s_bfe_u32 {dst}, s{(74 if g == 1 else 80) + ks // 8}, {(4 << 16) | (4 * (ks % 8)):#x}")
        p.e(f"s_mul_i32 {dst}, {dst}, {stride}")
        if base: p.e(f"s_add_u32 {dst}, {dst}, {base}")
    def slot(self, g, ks): return ((ks + (3 if g == 2 else 0)) % RS) * 4096
    def throttle(self, p):
        l = self.label("thr")
        p.e(f"s_cmp_lg_u32 s85, 0\ns_cbranch_scc1 {l}")
        p.e(f"@ds_read_b32 v20, {VSY} offset:{4*Y_PUB}\n@s_waitcnt vmcnt({self.o['thr']}) lgkmcnt(0)\nv_readfirstlane_b32 s85, v20\ns_nop 0\ns_lshr_b32 s85, s85, 1")
        p.e(f"{l}:")
    def dma(self, g, ks, thr=False):
        p = Prog()
        rs, vo, srd, base = (3072, 4, SW1, "s84") if g == 1 else (4096, 12, SW2, "s92")
        self.kk(p, g, ks, "s72", 32 * rs, base)
        for q in range(4):
            if thr and q % 2 == 0: self.throttle(p)
            p.e(f"s_add_u32 m0, {RINGB}, {self.slot(g, ks) + q * 1024}")
            p.e(f"buffer_load_dwordx4 v{vo + (q & 1)}, {srd}, s72 offen {self.o['wflag']} lds", f"w{g}_{ks}")
            if q < 3: p.e(f"s_add_u32 s72, s72, {8*rs}")
        return p
    NB = {1: 6, 2: 4}
    def tr(self, g, ks):
        p = Prog()
        r = 16 * (ks % self.NB[g]); o = self.slot(g, ks)
        p.wvm(f"w{g}_{ks}")
        for ss in range(4):
            p.e(f"ds_read_b64_tr_b16 {a(r+4*ss,2)}, v{14+ss} offset:{o}", f"t{g}_{ks}")
            p.e(f"ds_read_b64_tr_b16 {a(r+4*ss+2,2)}, v{14+ss} offset:{o+512}", f"t{g}_{ks}")
        return p
    def main_start(self, p):
        e = p.e
        e("s_setprio 3")
        e(f"s_mul_i32 {RINGB}, {WV}, {RINGW}\ns_add_u32 {RINGB}, {RINGB}, {RING0}\ns_mov_b32 s85, 0")
        e(f"v_lshrrev_b32 v30, 3, {LANE}\nv_and_b32 v31, 7, {LANE}\nv_and_b32 v32, 2, v30\nv_xor_b32 v31, v31, v32\nv_lshlrev_b32 v31, 4, v31")
        e("v_mul_u32_u24 v4, 3072, v30\nv_add_u32 v4, v4, v31\nv_xor_b32 v5, 64, v4\nv_lshl_add_u32 v12, v30, 12, v31\nv_xor_b32 v13, 64, v12")
        e(f"s_mul_i32 s84, {WV}, {512*3072}\ns_lshl_b32 s51, {FT}, 7\ns_add_u32 s84, s84, s51")
        e(f"s_mul_i32 s92, {WV}, {384*4096}\ns_lshl_b32 s51, {ST2}, 7\ns_add_u32 s92, s92, s51")
        self.srd(p, 56, 36, 6291456); self.srd(p, 60, 40, 6291456); self.srd(p, 64, 44, 2621440)
        self.stamp(p)
    def main_setup2(self, p):
        e = p.e
        e(f"v_bfe_u32 v20, {LANE}, 2, 2\nv_and_b32 v21, 3, {LANE}\nv_lshrrev_b32 v22, 4, {LANE}\nv_and_b32 v23, 15, {LANE}")
        e("v_lshlrev_b32 v24, 10, v22\nv_lshl_add_u32 v24, v20, 7, v24\nv_lshl_add_u32 v24, v21, 3, v24")
        e(f"v_lshrrev_b32 v20, 1, v20\nv_and_b32 v21, 1, v22\nv_lshl_or_b32 v20, v21, 1, v20\nv_xor_b32 v20, {WV}, v20\nv_lshlrev_b32 v20, 5, v20")
        e(f"v_add3_u32 v14, v24, v20, {RINGB}\nv_xor_b32 v15, 32, v14\nv_xor_b32 v16, 64, v14\nv_xor_b32 v17, 0x60, v14")
        e(f"s_lshl_b32 s51, {FT}, 7\ns_lshl_b32 s15, {WV}, 5\ns_add_u32 s51, s51, s15\nv_lshl_add_u32 v24, v22, 3, s51")
        e("global_load_dwordx2 v[126:127], v24, s[38:39]", "b1")
        e(f"v_mul_u32_u24 v19, 10240, v22\nv_lshl_add_u32 v19, v23, 4, v19\ns_lshl_b32 s51, {SUB}, 8\nv_add_u32 v120, s51, v19")
        e("v_xor_b32 v121, 0x100, v120\nv_xor_b32 v122, 0x200, v120\nv_xor_b32 v123, 0x300, v120")
        e(f"v_lshrrev_b32 v24, 1, v22\nv_mul_u32_u24 v24, 10240, v24\nv_lshl_add_u32 v24, v23, 4, v24\nv_xor_b32 v25, {SUB}, v21\nv_lshl_add_u32 v6, v25, 8, v24\nv_xor_b32 v7, 0x200, v6")
        e(f"v_subrev_u32 v124, {C0}, v23\nv_mul_u32_u24 v124, {REGSZ}, v124\nv_lshl_add_u32 v124, v22, 4, v124")
        e(f"s_lshl_b32 s51, {WV}, 10\ns_add_u32 s51, s51, {REG0 + UO + 512}\nv_add_u32 v124, s51, v124")
        e(f"s_bfm_b32 s100, {NCH}, {C0}\ns_lshl_b32 s51, s100, 16\ns_or_b32 s100, s100, s51\ns_mov_b32 s101, s100")
        e("v_mul_u32_u24 v18, 1280, v23\nv_lshl_add_u32 v18, v22, 3, v18\nv_lshlrev_b32 v115, 12, v23\nv_lshl_add_u32 v115, v22, 4, v115")
        e("v_lshl_add_u32 v8, v23, 1, s95")
        e("global_load_ushort v114, v8, s[42:43]", "b1")
        if self.o["spa"]:
            n_ = self.o["spa"]; f_ = 12 - n_
            P2_ = [o_ + list(range(f_, 12)) for o_ in make_perm(f_, 4, min(2, f_ // 4), self.o["duty2"])] if f_ else [list(range(12))] * 4
        elif self.o["spk"]:
            n_ = self.o["spk"]; own = [2 * i for i in range(n_)]
            rest = [st for st in range(2 * n_, 12, 2)] + [st for st in range(1, 12, 2)]
            P2_ = [own + rest[(j * len(rest)) // 4:] + rest[:(j * len(rest)) // 4] for j in range(4)]
        elif self.o["perm"]: P2_ = make_perm(12, 4, self.o["first2"], self.o["duty2"], self.o["dpp2"])
        else: P2_ = [[(3 * j + i) % 12 for i in range(12)] for j in range(4)]
        e(f"s_lshr_b32 s15, {DT2}, 1" if self.o["p2"] else f"s_and_b32 s15, {IDX}, 3")
        for j, o_ in enumerate(P2_):
            lo, hi = pack_perm(o_)
            if j == 0: e(f"s_mov_b32 s80, {lo:#x}\ns_mov_b32 s81, {hi:#x}")
            else: e(f"s_cmp_eq_u32 s15, {j}\ns_cselect_b32 s80, {lo:#x}, s80\ns_cselect_b32 s81, {hi:#x}, s81")
        e(f"s_and_b32 s15, {ST2}, {self.o['sg2']}\ns_and_b32 s51, {DT2 if self.o['p2'] else XCD}, 1\ns_xor_b32 s51, s51, s15\ns_mul_i32 s51, s51, 0x11111111\ns_xor_b32 s80, s80, s51\ns_xor_b32 s81, s81, s51")
        e(f"s_mul_i32 s86, {WV}, {64*10240}\ns_lshl_b32 s51, {DT}, 10\ns_add_u32 s86, s86, s51\ns_add_u32 s86, s86, {HB}")
    def xr(self, j): return [v(104, 4), v(110, 4), v(116, 4)][j]
    def xload(self, p):
        e = p.e
        e(f"s_lshl_b32 s94, {ST2}, 6\ns_lshl_b32 s51, {WV}, 4\ns_add_u32 s94, s94, s51\ns_lshl_b32 s95, s94, 1")
        e(f"s_mul_i32 s94, s94, 1280\ns_mul_i32 s51, {DT2}, 160\ns_add_u32 s94, s94, s51")
        e(f"v_and_b32 v109, 15, {LANE}\nv_mul_u32_u24 v109, 1280, v109\nv_and_b32 v108, 48, {LANE}\nv_add_u32 v108, v108, v109")
        for j in range(3): e(f"buffer_load_dwordx4 {self.xr(j)}, v108, {SX}, s94 offen offset:{64*j}", f"x{j}")
    def xmm(self, p):
        e = p.e; ln_ = self.label("nsw")
        e("v_lshlrev_b32 v114, 16, v114")
        for i in range(20): e(f"v_mov_b32 v{84+i}, v114")
        e(f"v_lshrrev_b32 v22, 4, {LANE}\nv_and_b32 v23, 15, {LANE}")
        e("v_lshlrev_b32 v24, 3, v22\nv_sub_u32 v24, v23, v24\nv_and_b32 v25, 1, v24\nv_lshlrev_b32 v25, 4, v25\nv_mov_b32 v26, 0x3f80\nv_lshlrev_b32 v25, v25, v26\nv_ashrrev_i32 v24, 1, v24")
        for q in range(4): e(f"v_cmp_eq_u32 vcc, {q}, v24\nv_cndmask_b32 v{120+q}, 0, v25, vcc")
        for q in range(4): e(f"v_cmp_eq_i32 vcc, {q-8}, v24\nv_cndmask_b32 v{124+q}, 0, v25, vcc")
        for di in range(5):
            e(f"v_mfma_f32_16x16x32_bf16 {self.acc2(di,0)}, {v(124 if di & 1 else 120, 4)}, {self.xr(di//2)}, {self.acc2(di,0)}")
        e(f"s_and_b32 s51, {WV}, 1\ns_cmp_eq_u32 s51, 0\ns_cbranch_scc1 {ln_}")
        for q in range(4): e(f"v_swap_b32 v{120+q}, v{124+q}")
        e(f"{ln_}:")
    def acc1(self, t, ds): return [v(72 + 4 * ds, 4), v(88 + 4 * ds, 4), a(96 + 4 * ds, 4), a(112 + 4 * ds, 4)][t]
    def acc2(self, di, ss): return v(84 + 4 * di, 4) if ss == 0 else a(68 + 4 * (di * 3 + ss - 1), 4)

    def gemm_loop(self, p, g, nks, nf, ns, nd, nt, ld, mfma, extra):
        NB = self.NB[g]; n = nks * nf
        for i in range(ns): p.ext(ld(i))
        nl = ns
        G_ = 4 * nf
        for ks in range(nks):
            side = Prog()
            if nd < nks and nd - RS < nt:
                if nd >= RS: side.wlg(f"t{g}_{nd-RS}")
                side.ext(self.dma(g, nd)); nd += 1
            if nt < nks and nt < nd and nt - NB < ks:
                side.ext(self.tr(g, nt)); nt += 1
            early, pre, post = extra(ks)
            gaps = [[] for _ in range(G_)]
            cost = [0] * G_
            def c_of(grp):
                c = 0
                for it, _ in grp:
                    if isinstance(it, tuple): c += 1
                    elif it.startswith(("buffer_", "global_")): c += 3
                    else: c += 1
                return c
            for di in range(1, nf): cost[4 * di - 1] += 1
            cost[G_ - 1] += 2
            for di in range(nf):
                if nf * ks + di >= 1 and nl < n:
                    its = ld(nl).items; nl += 1
                    gi = 4 * di
                    gaps[gi].append(("z", its[-1:])); cost[gi] += 3
                    for k, it in enumerate(its[:-1]):
                        gj = gi - (len(its) - 1 - k)
                        assert gj >= 0
                        gaps[gj].append(("y", [it])); cost[gj] += 1
            pos = 0
            for grp in groups_of(early):
                gi = min(3, 1 + pos); pos += 1
                gaps[gi].append(("a", grp)); cost[gi] += c_of(grp)
            rest = groups_of(pre) + groups_of(side)
            start = 4 if early.items else 1
            tot = sum(c_of(x) for x in rest) + sum(cost[start:])
            gi = start
            for grp in rest:
                lvl = max(2.0, tot / (G_ - start))
                while gi < G_ - 1 and cost[gi] + c_of(grp) > lvl + 0.5 and cost[gi] > 0: gi += 1
                gaps[gi].append(("m", grp)); cost[gi] += c_of(grp)
            p.wlg(f"t{g}_{ks}")
            for di in range(nf):
                p.wvm(f"act{ks}_{di}")
                for ss in range(4):
                    p.e(mfma(ks, di, ss))
                    for key, grp in sorted(gaps[4 * di + ss], key=lambda x: x[0]): p.items.extend(grp)
            p.ext(post)
        assert nl == n and nd == nks and nt == nks

    def gemm1(self, p):
        e = p.e; o = self.o
        HR, ns = 24, o['ns1']
        nd = o['free1']
        def more():
            nonlocal nd
            if nd >= RS: p.wlg(f"t1_{nd-RS}")
            p.ext(self.dma(1, nd, thr=nd < o['nthr'])); nd += 1
            if nd == o["PS1"]: self.sig(p, Y_P1, 20)
            if o.get("fine") and nd <= 9: self.stamp(p)
        while nd < o["lead1"]: more()
        p.wvm("b1")
        for ds in range(4): self.unpack(p, 126, 72 + 4 * ds, 2)
        for j in range(o["P1"]):
            p.ext(self.tr(1, j))
            if j == 2 and not o.get('fine'): self.stamp(p)
            if nd < o["D1"]: more()
        while nd < o["D1"]:
            p.wvm(f"w1_{nd-o['lead1']}"); more()
        self.stamp(p)
        self.spin(p, Y_F1, 1, 20, sleep=1)
        e(f"ds_read_b32 {VTAG}, {VSY} offset:{4*Y_TAG}\ns_setprio 2", "tag")
        self.stamp(p)
        def ld(i):
            ks, ds = divmod(i, 4); q = Prog()
            if ds == 0: self.kk(q, 1, ks, "s76", 40960, "s86")
            q.e(f"buffer_load_dwordx4 {v(HR + 4 * (i % ns), 4)}, v{120+ds}, {SWS}, s76 offen sc1", f"act{ks}_{ds}")
            return q
        def mfma(ks, ds, t):
            c = self.acc1(t, ds); src = "0" if (ks == 0 and t > 0) else c
            return f"v_mfma_f32_16x16x32_bf16 {c}, {a(16*(ks%6)+4*t,4)}, {v(HR + 4 * ((4*ks+ds) % ns), 4)}, {src}"
        def extra(ks):
            pre = Prog(); post = Prog(); q = Prog()
            q.e(f"s_bfe_u32 s14, s{74 + ks // 8}, {(4 << 16) | (4 * (ks % 8)):#x}\nv_lshl_add_u32 v125, s14, 6, v124")
            q.e(f"s_mov_b64 exec, s[100:101]\nds_write_b128 v125, {v(HR + 4 * ((4 * ks) % ns), 4)}\ns_mov_b64 exec, -1", "uc")
            if ks % 4 == 3: self.sig(pre, Y_U + ks // 4, 20)
            if o["ebpos"] == 3:
                assert o["ebk"] >= 13
                per = -(-o["eb"] // (16 - o["ebk"]))
                for j in range(o["eb"]):
                    if o["ebk"] + j // per == ks: pre.ext(self.dma(2, j))
            if ks in (0, 5, 10): self.stamp(post)
            return q, pre, post
        self.gemm_loop(p, 1, 16, 4, ns, nd, o["P1"], ld, mfma, extra)
        self.stamp(p)
    def gemm1_epi(self, p):
        e = p.e; RD = 24
        if self.o["ebpos"] == 0:
            for ks in range(self.o["eb"]): p.ext(self.dma(2, ks))
        e(f"v_add_u32 v20, {RINGB}, {L16}")
        for t in range(1, 4):
            for ds in range(4): e(f"ds_write_b128 v20, {self.acc1(t, ds)} offset:{(t-1)*4096+ds*1024}", "r1w")
        self.sig(p, Y_PART, 21)
        if self.o["ebpos"] == 1:
            for ks in range(self.o["eb"]): p.ext(self.dma(2, ks))
        for t in range(1, 4):
            e(f"s_xor_b32 s51, {WV}, {t}\ns_mul_i32 s51, s51, {RINGW}\ns_add_u32 s51, s51, {RING0 + (t-1)*4096}\nv_add_u32 v{20+t}, s51, {L16}")
        e(f"s_lshl_b32 s50, {FT}, 3\ns_lshl_b32 s51, {WV}, 1\ns_add_u32 s50, s50, s51\ns_mul_i32 s50, s50, 10240")
        e(f"s_lshl_b32 s51, {DT}, 10\ns_add_u32 s50, s50, s51\ns_add_u32 s86, s50, {GB}")
        e(f"s_mul_i32 s89, {DT}, 24\ns_add_u32 s89, s89, {FT}\ns_lshl_b32 s89, s89, 7\ns_add_u32 s89, s89, {F2}")
        c1 = -2 * 0.7978845608028654 * 1.4426950408889634; c3 = c1 * 0.044715
        e(f"s_mov_b32 s90, {fbits(c3)}\nv_mov_b32 v126, {fbits(c1)}")
        if self.o.get("fine2"): self.stamp(p)
        self.spin(p, Y_PART, 4, 20)
        if self.o.get("fine2"): self.stamp(p)
        for q in range(4):
            for t in range(3): e(f"ds_read_b128 {v(RD+16*t+4*q,4)}, v{21+t} offset:{q*1024}", f"r1r{q}")
        if self.o["ebpos"] == 2:
            for ks in range(self.o["eb"]): p.ext(self.dma(2, ks))
        for pr in range(2):
            p.wlg(f"r1r{2*pr+1}")
            q = [(72 + 8 * pr + i, RD + 8 * pr + i, 88 + 8 * pr + i) for i in range(8)]
            if self.o["epk"]:
                q2 = q[::2]
                for x, r, t in q2: e(f"v_pk_add_f32 {v(x,2)}, {v(x,2)}, {v(r,2)}\nv_pk_add_f32 {v(r+16,2)}, {v(r+16,2)}, {v(r+32,2)}")
                for x, r, t in q2: e(f"v_pk_add_f32 {v(x,2)}, {v(x,2)}, {v(r+16,2)}")
                for x, r, t in q2: e(f"v_pk_mul_f32 {v(t,2)}, {v(x,2)}, {v(x,2)}")
                for x, r, t in q2: e(f"v_pk_fma_f32 {v(t,2)}, {v(t,2)}, s[90:91], v[126:127] op_sel_hi:[1,0,0]")
                for x, r, t in q2: e(f"v_pk_mul_f32 {v(t,2)}, {v(t,2)}, {v(x,2)}")
                for x, r, t in q: e(f"v_exp_f32 v{t}, v{t}")
                for x, r, t in q2: e(f"v_pk_add_f32 {v(t,2)}, {v(t,2)}, 1.0 op_sel_hi:[1,0]")
                for x, r, t in q: e(f"v_rcp_f32 v{t}, v{t}")
                for x, r, t in q2: e(f"v_pk_mul_f32 {v(t,2)}, {v(t,2)}, {v(x,2)}")
            else:
                for x, r, t in q: e(f"v_add_f32 v{x}, v{x}, v{r}\nv_add_f32 v{r+16}, v{r+16}, v{r+32}")
                for x, r, t in q: e(f"v_add_f32 v{x}, v{x}, v{r+16}")
                for x, r, t in q: e(f"v_mul_f32 v{t}, v{x}, v{x}")
                for x, r, t in q: e(f"v_fma_f32 v{t}, v{t}, s90, v126")
                for x, r, t in q: e(f"v_mul_f32 v{t}, v{t}, v{x}")
                for x, r, t in q: e(f"v_exp_f32 v{t}, v{t}")
                for x, r, t in q: e(f"v_add_f32 v{t}, 1.0, v{t}")
                for x, r, t in q: e(f"v_rcp_f32 v{t}, v{t}")
                for x, r, t in q: e(f"v_mul_f32 v{t}, v{t}, v{x}")
            o = 56 + 8 * pr
            for i in range(4): e(f"v_cvt_pk_bf16_f32 v{o+i}, v{q[2*i][2]}, v{q[2*i+1][2]}")
            e(f"v_permlane16_swap_b32 v{o}, v{o+2}\nv_permlane16_swap_b32 v{o+1}, v{o+3}")
            e(f"buffer_store_dwordx4 {v(o,4)}, v{6+pr}, {SWS}, s86 offen sc1", "gs")
        if self.o["epifirst"]: self.sig(p, Y_EPI, 20)
        self.stamp(p)
        assert self.o["eb"] + self.o["e2"] <= 4
        for ks in range(self.o["eb"], self.o["eb"] + self.o["e2"]): p.ext(self.dma(2, ks))
        self.xmm(p)
        if not self.o["epifirst"]: self.sig(p, Y_EPI, 20)
        for ks in range(min(self.o["eb"], self.o["P2"])): p.ext(self.tr(2, ks))
        p.wvm("gs")
        l = self.label("nolast")
        e(f"v_mov_b32 v20, 1\ns_mov_b64 exec, 1\nds_add_rtn_u32 v20, {VSY}, v20 offset:{4*Y_G}\ns_mov_b64 exec, -1\ns_waitcnt lgkmcnt(0)\nv_readfirstlane_b32 s79, v20")
        e(f"s_cmp_lg_u32 s79, 3\ns_cbranch_scc1 {l}")
        self.flag_store(p, "s89", "@")
        e(f"{l}:")
        self.stamp(p)
    def gemm2(self, p, spare):
        e = p.e; o = self.o
        GR, ns = 24, o['ns2']
        e(f"s_mul_i32 s86, {WV}, {48*10240}\ns_mul_i32 s51, {DT2}, 1280\ns_add_u32 s86, s86, s51\ns_add_u32 s86, s86, {GB}")
        e(f"s_mul_i32 s88, {DT2}, {80*4096}\ns_and_b32 s51, s95, 0xffffffc0\ns_add_u32 s88, s88, s51\ns_add_u32 s88, s88, {YT}")
        e(f"v_and_b32 v116, 15, {LANE}\nv_mul_u32_u24 v116, 1280, v116\nv_and_b32 v117, 16, {LANE}\nv_lshl_add_u32 v116, v117, 1, v116\nv_lshrrev_b32 v117, 5, {LANE}\nv_lshl_add_u32 v116, v117, 4, v116")
        e(f"s_and_b32 s51, {WV}, 1\ns_lshl_b32 s51, s51, 26\nv_add_u32 v109, s51, v115\nv_xor_b32 v115, 0x4000000, v109")
        nd = o["eb"] + o["e2"]; nt = min(o["eb"], o["P2"])
        self.spin(p, Y_G, 4, 20)
        def more():
            nonlocal nd
            if nd >= RS: p.wlg(f"t2_{nd-RS}")
            p.ext(self.dma(2, nd)); nd += 1
            if nd == o["PS2"]: self.sig(p, Y_P2, 20)
        while nd < min(o["D2"], nt + o["lead2"]): more()
        while nt < o["P2"]:
            p.ext(self.tr(2, nt)); nt += 1
            if nd < o["D2"]: more()
        while nd < o["D2"]:
            p.wvm(f"w2_{nd-o['lead2']}"); more()
        self.stamp(p)
        if o["fg"]:
            e(f"s_lshl_b32 s51, {WV}, 2\nv_add_u32 v21, s51, {VSY}")
            self.spin(p, Y_Q, 1, 20, sleep=1, base="v21")
        else: self.spin(p, Y_F2, 1, 20, sleep=1)
        self.stamp(p)
        def ld(i):
            ks, di = divmod(i, 5); q = Prog()
            if di == 0: self.kk(q, 2, ks, "s76", 40960, "s86")
            q.e(f"buffer_load_dwordx4 {v(GR + 4 * (i % ns), 4)}, v19, {SWS}, s76 offen offset:{256*di} sc1", f"act{ks}_{di}")
            return q
        def mfma(ks, di, ss):
            c = self.acc2(di, ss); src = "0" if (ks == 0 and ss > 0) else c
            return f"v_mfma_f32_16x16x32_bf16 {c}, {v(GR + 4 * ((5*ks+di) % ns), 4)}, {a(16*(ks%4)+4*ss,4)}, {src}"
        yk = o["ychk"]; assert yk >= 9
        def extra(ks):
            pre = Prog(); post = Prog()
            if ks == o["ytrig"]: self.sig(post, Y_P3, 20)
            if ks == yk:
                self.spin(post, Y_F3, 1, 20, sleep=2)
                for di in range(5):
                    post.e(f"buffer_load_dwordx4 {a(4*di,4)}, v{115 if di & 1 else 109}, {SWS}, s88 offen sc1", f"y{di}")
                    post.e("s_add_u32 s88, s88, 65536")
            if ks in (0, 3, 7): self.stamp(post)
            return Prog(), pre, post
        self.gemm_loop(p, 2, 12, 5, ns, nd, nt, ld, mfma, extra)
        self.stamp(p)
        e(f"v_add_u32 v20, {RINGB}, {L16}")
        for t in (3, 2):
            for di in range(5): e(f"ds_write_b128 v20, {self.acc2(di,t)} offset:{(t-1)*5120+di*1024}", "r2w")
        for t in range(1, 4):
            e(f"s_xor_b32 s51, {WV}, {t}\ns_mul_i32 s51, s51, {RINGW}\ns_add_u32 s51, s51, {RING0 + (t-1)*5120}\nv_add_u32 v{20+t}, s51, {L16}")
        if o.get("fine2"): self.stamp(p)
        for di in range(5):
            p.wvm(f"y{di}")
            e(f"v_mfma_f32_16x16x32_bf16 {self.acc2(di,1)}, {a(4*di,4)}, v[124:127], {self.acc2(di,1)}")
        for di in range(5):
            e(f"v_mfma_f32_16x16x32_bf16 {self.acc2(di,0)}, {a(4*di,4)}, v[120:123], {self.acc2(di,0)}")
        for di in range(5): e(f"ds_write_b128 v20, {self.acc2(di,1)} offset:{di*1024}", "r2w")
        if o.get("fine2"): self.stamp(p)
        e("s_waitcnt lgkmcnt(0)\ns_barrier")
        if o.get("fine2"): self.stamp(p)
        for di in range(5):
            for t in range(3): e(f"ds_read_b128 {v(GR+12*di+4*t,4)}, v{21+t} offset:{di*1024}", f"r2r{di}")
        for di in range(5):
            c = 84 + 4 * di; r = GR + 12 * di
            p.wlg(f"r2r{di}")
            for hq in range(2): e(f"v_pk_add_f32 {v(r+2*hq,2)}, {v(r+2*hq,2)}, {v(r+4+2*hq,2)}\nv_pk_add_f32 {v(c+2*hq,2)}, {v(c+2*hq,2)}, {v(r+8+2*hq,2)}")
            for hq in range(2): e(f"v_pk_add_f32 {v(c+2*hq,2)}, {v(c+2*hq,2)}, {v(r+2*hq,2)}")
            for hq in range(2): e(f"v_cvt_pk_bf16_f32 v{104+2*di+hq}, v{c+2*hq}, v{c+2*hq+1}")
            if o["ow4"] and di < 4:
                if di & 1:
                    b = 104 + 2 * (di - 1)
                    e(f"v_permlane16_swap_b32 v{b}, v{b+2}\nv_permlane16_swap_b32 v{b+1}, v{b+3}")
                    e(f"buffer_store_dwordx4 {v(b,4)}, v116, {SOUT}, s94 offen offset:{32*(di-1)} {o['oflag']}", "os")
            else: e(f"buffer_store_dwordx2 {v(104+2*di,2)}, v18, {SOUT}, s94 offen offset:{32*di} {o['oflag']}", "os")
        self.stamp(p)

    def main(self):
        self.role = "main"
        p = Prog(); e = p.e
        self.main_start(p)
        if self.o["xk"] == -1: self.xload(p)
        for ks in range(self.o["pre1"]): p.ext(self.dma(1, ks))
        if self.o["xk"] == -2: self.xload(p)
        self.ln(p)
        e(f"s_setprio {self.o['mprio']}")
        if self.o.get("dly_w"): e(f"s_sleep {self.o['dly_w']}")
        if self.o["xk"] == 0: self.xload(p)
        for ks in range(self.o["pre1"], self.o["free1"]): p.ext(self.dma(1, ks))
        if self.o["xk"] == 1: self.xload(p)
        self.stamp(p)
        self.main_setup2(p)
        e(f"s_cmp_lt_u32 {IDX}, 30\ns_cbranch_scc1 L_g1")
        q = Prog()
        q.e("s_waitcnt vmcnt(0)")
        self.xmm(q)
        if self.o["spw"]: self.spin(q, Y_F1, 1, 20, sleep=16)
        else: self.spin(q, Y_PUB, 2, 20, sleep=4)
        for ks in range(self.o["eb"] + self.o["e2"]): q.ext(self.dma(2, ks))
        for ks in range(min(self.o["eb"], self.o["P2"])): q.ext(self.tr(2, ks))
        self.sig(q, Y_G, 20)
        q.e("s_waitcnt vmcnt(0) lgkmcnt(0)\ns_branch L_g2")
        for line in finalize(q).split("\n"):
            if line.strip(): e(line.strip() if line.strip().endswith(":") else "@" + line.strip())
        e("L_g1:")
        self.gemm1(p)
        self.gemm1_epi(p)
        e("L_g2:")
        self.gemm2(p, False)
        e(f"s_or_b32 s51, {WG}, {WV}\ns_cmp_lg_u32 s51, 0\ns_cbranch_scc1 L_noep")
        e(f"s_mov_b64 exec, 1\nbuffer_store_dword {VTAG}, {VZ}, {SWS}, 0 offen\ns_mov_b64 exec, -1")
        e("L_noep:")
        if self.o.get("gmin"):
            e(f"global_load_dword v30, {VZ}, s[46:47] sc1\ns_waitcnt vmcnt(0)\nv_readfirstlane_b32 s96, v30\ns_nop 1\ns_not_b32 s96, s96")
        if self.o.get("hold"):
            e(f"L_hold:\ns_memrealtime s[82:83]\ns_waitcnt lgkmcnt(0)\ns_sub_u32 s82, s82, s96\ns_cmp_lt_u32 s82, {self.o['hold']}\ns_cbranch_scc1 L_hold")
        self.finish(p)
        return p

    def red32(self, p, regs, tmp):
        for m in ("quad_perm:[1,0,3,2]", "quad_perm:[2,3,0,1]", "row_half_mirror", "row_mirror"):
            for r in regs: p.e(f"v_add_f32_dpp v{r}, v{r}, v{r} {m} row_mask:0xf bank_mask:0xf")
        for i, r in enumerate(regs): p.e(f"v_mov_b32 v{tmp+i}, v{r}")
        for i, r in enumerate(regs): p.e(f"v_permlane16_swap_b32 v{r}, v{tmp+i}")
        for i, r in enumerate(regs): p.e(f"v_add_f32 v{r}, v{r}, v{tmp+i}")
    RAW = [4, 5, 6, 7, 8, 12, 13, 14, 15, 16, 17, 18]
    def conv_start(self, p):
        e = p.e
        e(f"s_setprio {self.o['kprio']}\ns_mul_i32 {REGB}, s14, {REGSZ}\ns_add_u32 {REGB}, {REGB}, {REG0}")
        e("s_waitcnt lgkmcnt(0)")
    def serv_start(self, p):
        p.e("s_setprio 3")
        self.srd(p, 60, 40, 6291456)
    def ln(self, p):
        e = p.e
        RAW, F, D, T, H = 20, 30, 50, 70, 90
        inv = fbits(1.0 / 640)
        e(f"s_lshr_b32 s51, {WV}, 1\ns_mul_i32 s51, s51, {REGSZ}\ns_and_b32 s15, {WV}, 1\ns_mul_i32 s15, s15, {2*PT}\ns_add_u32 s51, s51, s15\ns_add_u32 s51, s51, {LNT}")
        e(f"v_mul_u32_u24 v102, {PT}, v120\nv_add_u32 v102, s51, v102\nv_lshl_add_u32 v101, v122, 3, v102\nv_lshl_add_u32 v100, v122, 4, v102")
        p.wvm("x")
        self.stamp(p)
        self.unpack(p, RAW, F, 10)
        def psum(src, dst):
            e(f"v_pk_add_f32 {v(dst,2)}, {v(src,2)}, {v(src+2,2)}\nv_pk_add_f32 {v(dst+2,2)}, {v(src+4,2)}, {v(src+6,2)}")
            for i in range(4, 10): e(f"v_pk_add_f32 {v(dst+2*(i&1),2)}, {v(dst+2*(i&1),2)}, {v(src+2*i,2)}")
            e(f"v_pk_add_f32 {v(dst,2)}, {v(dst,2)}, {v(dst+2,2)}\nv_add_f32 v{dst}, v{dst}, v{dst+1}")
        def psq(src, dst):
            e(f"v_pk_mul_f32 {v(dst,2)}, {v(src,2)}, {v(src,2)}\nv_pk_mul_f32 {v(dst+2,2)}, {v(src+2,2)}, {v(src+2,2)}")
            for i in range(2, 10): e(f"v_pk_fma_f32 {v(dst+2*(i&1),2)}, {v(src+2*i,2)}, {v(src+2*i,2)}, {v(dst+2*(i&1),2)}")
            e(f"v_pk_add_f32 {v(dst,2)}, {v(dst,2)}, {v(dst+2,2)}\nv_add_f32 v{dst}, v{dst}, v{dst+1}")
        def rstd(var, out):
            e(f"v_max_f32 v{var}, 0, v{var}")
            self.rbf(p, var); e(f"v_add_f32 v{var}, {fbits(1e-5)}, v{var}"); self.rbf(p, var)
            e(f"v_sqrt_f32 v{var}, v{var}"); self.rbf(p, var); e(f"v_rcp_f32 v{out}, v{var}")
        psum(F, T); self.red32(p, [T], T + 2)
        e(f"v_mul_f32 v{T}, {inv}, v{T}\nv_mov_b32 v{T+4}, v{T}"); self.rbf(p, T + 4)
        for i in range(10): e(f"v_pk_add_f32 {v(D+2*i,2)}, {v(F+2*i,2)}, {v(T+4,2)} op_sel_hi:[1,0] neg_lo:[0,1] neg_hi:[0,1]")
        e(f"v_sub_f32 v{T+5}, v{T}, v{T+4}")
        psq(D, T); self.red32(p, [T], T + 2)
        e(f"v_mul_f32 v{T}, {inv}, v{T}\nv_fma_f32 v{T}, -v{T+5}, v{T+5}, v{T}")
        rstd(T, T + 6)
        for i in range(10): e(f"v_pk_mul_f32 {v(D+2*i,2)}, {v(D+2*i,2)}, {v(T+6,2)} op_sel_hi:[1,0]")
        for i in range(10): e(f"v_cvt_pk_bf16_f32 v{RAW+i}, v{D+2*i}, v{D+2*i+1}")
        self.unpack(p, RAW, F, 10)
        psum(F, T); psq(F, T + 4); self.red32(p, [T, T + 4], T + 2)
        e(f"v_mul_f32 v{T}, {inv}, v{T}\nv_mul_f32 v{T+4}, {inv}, v{T+4}\nv_fma_f32 v{T+4}, -v{T}, v{T}, v{T+4}")
        self.rbf(p, T)
        rstd(T + 4, T + 6)
        e(f"v_mul_f32 v{T+2}, v{T}, v{T+6}\nv_lshrrev_b32 v{T+4}, 16, v{T+4}\nv_or_b32 v{T+4}, v{T+4}, v{T}")
        for i in range(10): e(f"v_pk_fma_f32 {v(D+2*i,2)}, {v(F+2*i,2)}, {v(T+6,2)}, {v(T+2,2)} op_sel_hi:[1,0,0] neg_lo:[0,0,1] neg_hi:[0,0,1]")
        e(f"ds_write_b32 v102, v{T+4} offset:1280", "lnw")
        for i in range(10): e(f"v_cvt_pk_bf16_f32 v{H+i}, v{D+2*i}, v{D+2*i+1}")
        e(f"ds_write_b128 v100, {v(H,4)}\nds_write_b128 v100, {v(H+4,4)} offset:512\nds_write_b64 v101, {v(H+8,2)} offset:1024", "lnw")
        self.sig(p, Y_LN, T)

    def serv(self):
        self.role = "serv"
        p = Prog(); e = p.e; o = self.o
        self.serv_start(p)
        self.stamp(p)
        e(f"v_bfe_u32 v12, {LANE}, 2, 2\nv_mul_u32_u24 v12, {PT}, v12\nv_lshrrev_b32 v13, 4, {LANE}\nv_lshl_add_u32 v12, v13, 5, v12")
        e(f"v_and_b32 v13, 3, {LANE}\nv_lshl_add_u32 v12, v13, 3, v12\nv_add_u32 v12, {LNT}, v12")
        e(f"s_mul_i32 s84, {WG}, 10240\ns_add_u32 s84, s84, {HB}\ns_add_u32 s85, s84, 4096\ns_add_u32 s86, s84, 8192")
        e(f"s_lshl_b32 s87, {WG}, 4\ns_add_u32 s87, s87, {STAT}\nv_lshlrev_b32 v13, 12, {LANE}")
        e(f"s_lshr_b32 s89, {WG}, 2\ns_lshl_b32 s89, s89, 7\ns_and_b32 s51, {WG}, 3\ns_lshl2_add_u32 s89, s51, s89\ns_add_u32 s89, s89, {F1}\nv_lshlrev_b32 v14, 7, {LANE}")
        self.boxes_build(p)
        e("s_waitcnt lgkmcnt(0)")
        self.mktag(p)
        e(f"ds_write_b32 {VSY}, {VTAG} offset:{4*Y_TAG}")
        self.spin(p, Y_LN, 4, 20, sleep=1)
        if self.o.get("dly_p"): e(f"s_sleep {self.o['dly_p']}")
        self.stamp(p)
        for b in range(11):
            e(f"ds_read_b64_tr_b16 {v(24+4*b,2)}, v12 offset:{128*b}\nds_read_b64_tr_b16 {v(26+4*b,2)}, v12 offset:{128*b+REGSZ}", f"lr{b}")
            if b >= 3:
                c = b - 3; p.wlg(f"lr{c}")
                e(f"buffer_store_dwordx4 {v(24+4*c,4)}, {L16}, {SWS}, s{84 + c//4} offen offset:{(c%4)*1024} sc1")
        for c in range(8, 10):
            p.wlg(f"lr{c}")
            e(f"buffer_store_dwordx4 {v(24+4*c,4)}, {L16}, {SWS}, s{84 + c//4} offen offset:{(c%4)*1024} sc1")
        p.wlg("lr10")
        e(f"s_mov_b64 exec, 3\nbuffer_store_dwordx4 v[64:67], v13, {SWS}, s87 offen sc1\ns_mov_b64 exec, -1")
        self.sig(p, Y_PUB, 20)
        self.stamp(p)
        e(f"s_mul_i32 s50, {DT2}, 80\ns_lshr_b32 s50, s50, 6\ns_mul_i32 s92, s50, {24*128}\ns_add_u32 s92, s92, {F2}")
        e(f"v_min_u32 v15, 47, {LANE}\nv_lshlrev_b32 v15, 7, v15\nv_min_u32 v16, 29, {LANE}\nv_lshlrev_b32 v16, 7, v16")
        e(f"s_mul_i32 s93, {DT2}, {30*128}\ns_add_u32 s93, s93, {F3}")
        e("s_waitcnt vmcnt(0)")
        if self.o.get("dly_f"):
            self.sig(p, Y_PUB, 20); e(f"s_sleep {self.o['dly_f']}")
        self.flag_store(p, "s89")
        self.sig(p, Y_PUB, 20)
        self.stamp(p)
        e(f"s_cmp_lt_u32 {IDX}, 30\ns_cbranch_scc1 L_s1")
        e(f"v_lshrrev_b32 v17, 3, {LANE}\nv_lshlrev_b32 v17, 12, v17\nv_and_b32 v18, 7, {LANE}\nv_lshl_add_u32 v17, v18, 7, v17")
        if o["spa"]:
            e(f"s_lshl_b32 s88, {SUB}, 10\ns_and_b32 s51, {IDX}, 1\ns_mul_i32 s51, s51, {768*4096}\ns_add_u32 s88, s88, s51\ns_add_u32 s88, s88, {(12 - o['spa']) * 32 * 4096}")
            e(f"s_mov_b32 s87, 0\nL_spf:")
            for q in range(2):
                for i in range(4):
                    e(f"s_add_u32 s51, s88, {(q*384 + 8*i)*4096}\nbuffer_load_dword v{24+4*q+i}, v17, {SW2}, s51 offen")
            e(f"s_add_u32 s88, s88, {32*4096}\ns_add_u32 s87, s87, 1\ns_waitcnt vmcnt(8)\ns_cmp_lt_u32 s87, {o['spa']}\ns_cbranch_scc1 L_spf")
        elif o["spk"]:
            e(f"s_lshl_b32 s88, {SUB}, 10\ns_and_b32 s51, {IDX}, 1\ns_mul_i32 s51, s51, {768*4096}\ns_add_u32 s88, s88, s51\ns_and_b32 s51, {XCD}, 1\ns_lshl_b32 s51, s51, 17\ns_add_u32 s88, s88, s51")
            e(f"s_mov_b32 s87, 0\nL_spf:")
            for q in range(2):
                for i in range(4):
                    e(f"s_add_u32 s51, s88, {(q*384 + 8*i)*4096}\nbuffer_load_dword v{24+4*q+i}, v17, {SW2}, s51 offen")
            e(f"s_add_u32 s88, s88, {64*4096}\ns_add_u32 s87, s87, 1\ns_waitcnt vmcnt(8)\ns_cmp_lt_u32 s87, {o['spk'] + o.get('spx', 0)}\ns_cbranch_scc1 L_spf")
        else:
            e(f"s_lshl_b32 s88, {SUB}, 10\ns_and_b32 s51, {IDX}, 1\ns_lshl_b32 s51, s51, 15\ns_add_u32 s88, s88, s51\ns_and_b32 s51, {XCD}, 1\ns_lshl_b32 s51, s51, 16\ns_add_u32 s88, s88, s51")
            if o["slow"]:
                e(f"v_lshlrev_b32 v18, 12, {LANE}\ns_lshl_b32 s87, {SUB}, 10\ns_add_u32 s87, s87, 384\ns_and_b32 s51, {IDX}, 1\ns_lshl_b32 s51, s51, 18\ns_add_u32 s87, s87, s51")
                for i in range(12): e(f"buffer_load_dword v{70+i}, v18, {SW2}, s87 offen\ns_add_u32 s87, s87, {128*4096}")
            for i in range(o["nsp"]):
                e(f"buffer_load_dword v{24+i}, v17, {SW2}, s88 offen\ns_add_u32 s88, s88, 131072")
        e("s_waitcnt vmcnt(0)")
        self.sig(p, Y_F1, 20)
        e("s_branch L_s2\nL_s1:")
        self.inverse_addr(p)
        self.spin(p, Y_P1, 1, 20, sleep=2)
        self.stamp(p)
        e(f"s_mov_b32 s50, {F1}")
        self.poll(p, "v14", "s50", 20, wide=True, sleep=o["psleep"])
        self.sig(p, Y_F1, 20)
        self.stamp(p)
        if self.debug: e(f"v_writelane_b32 {VDBG}, s78, 31")
        self.inverse(p)
        e("L_s2:")
        self.spin(p, Y_P2, 1, 20, sleep=4)
        self.stamp(p)
        if o["fg"]:
            e(f"v_mul_u32_u24 v19, 6, {LANE}\ns_mov_b32 s94, 0x3f00003f\ns_mov_b32 s95, 0\nv_lshlrev_b64 v[18:19], v19, s[94:95]\nv_mov_b32 v17, v18\nv_mov_b32 v18, v19")
        self.poll(p, "v15", "s92", 20, sleep=o["psleep2"], fine=o["fg"])
        if o["fg"]: e(f"v_mov_b32 v21, 1\ns_mov_b64 exec, 15\nds_write_b32 {L4}, v21 offset:{SYNC + 4*Y_Q}\ns_mov_b64 exec, -1")
        else: self.sig(p, Y_F2, 20)
        self.stamp(p)
        if self.debug: e(f"v_writelane_b32 {VDBG}, s78, 30")
        self.spin(p, Y_P3, 1, 20, sleep=4)
        if o["sp3"]:
            e("s_add_u32 s94, s48, s93\ns_addc_u32 s95, s49, 0\ns_mov_b32 s78, 0\ns_branch L_sp3f\nL_sp3:")
            e(f"s_sleep {o['sp3']}\nL_sp3f:")
            for i in range(30): e(f"s_load_dword s{16+i}, s[94:95], {128*i} glc")
            e("s_add_u32 s78, s78, 1\ns_waitcnt lgkmcnt(0)")
            e(f"s_xor_b32 s79, s16, {TAG}")
            for i in range(1, 30): e(f"s_xor_b32 s51, s{16+i}, {TAG}\ns_or_b32 s79, s79, s51")
            e("s_cmp_gt_u32 s78, 0x40000\ns_cbranch_scc1 L_sp3d\ns_cmp_lg_u32 s79, 0\ns_cbranch_scc1 L_sp3\nL_sp3d:")
        else: self.poll(p, "v16", "s93", 20, sleep=o["psleep2"])
        self.sig(p, Y_F3, 20)
        if self.debug: e(f"v_writelane_b32 {VDBG}, s78, 29")
        self.finish(p)
        return p

    def kgen(self, p):
        e = p.e; RAW = self.RAW
        L2E = 1.4426950408889634
        l2e_hi = struct.unpack("<f", struct.pack("<f", L2E))[0]; l2e_lo = L2E - l2e_hi
        VDT, VD1, VD2, VDS, WA, RA, RB = 54, 55, 56, 57, 58, 59, 60
        e(f"s_and_b32 s51, {CH}, 1\ns_lshl_b32 s51, s51, 4\ns_lshr_b32 s80, s80, s51\ns_lshl_b32 s80, s80, 16\ns_lshr_b32 s81, s81, s51\ns_lshl_b32 s81, s81, 16")
        e(f"v_mov_b32 v62, s80\nv_mov_b32 v63, {fbits(l2e_hi)}\nv_mul_f32 v64, v62, v63\nv_fma_f32 v65, v62, v63, -v64\nv_fmac_f32 v65, {fbits(l2e_lo)}, v62")
        e(f"v_exp_f32 v64, v64\nv_mul_f32 v65, {fbits(0.6931471805599453)}, v65\nv_fma_f32 v{VDT}, v64, v65, v64")
        self.rbf(p, VDT)
        e(f"v_mul_f32 v{VD1}, {fbits(L2E)}, v{VDT}\nv_mul_f32 v{VD2}, 0.15915494, v{VDT}")
        e(f"v_cmp_eq_u32 vcc, 0, {LANE}\nv_mov_b32 v62, s81\nv_cndmask_b32 v{VDS}, 0, v62, vcc")
        e(f"s_mov_b32 m0, {REGB}")
        e(f"v_and_b32 v62, 31, {LANE}\nv_lshrrev_b32 v63, 5, {LANE}\nv_lshlrev_b32 v63, 4, v63\nv_add_u32 v63, {REGB}, v63")
        e(f"v_mul_u32_u24 v64, {KP}, v62\nv_add_u32 v{RB}, v64, v63")
        e(f"v_min_u32 v62, 20, v62\nv_mul_u32_u24 v64, {KP}, v62\nv_add_u32 v{RA}, v64, v63")
        e("v_mov_b32 v28, 0x3f80")
        e(f"v_and_b32 v62, 31, {LANE}\nv_lshrrev_b32 v63, 5, {LANE}\ns_add_u32 s51, {REGB}, {KCO}")
        e(f"v_lshlrev_b32 v64, 4, v62\nv_lshl_add_u32 v64, v63, 3, v64\nv_add_u32 v64, s51, v64")
        e(f"v_cmp_eq_u32 vcc, 0, v63\nv_lshlrev_b32 v65, 3, v62\nv_add_u32 v65, 512, v65\nv_lshlrev_b32 v66, 2, v62\nv_add_u32 v66, 768, v66")
        e(f"v_cndmask_b32 v65, v66, v65, vcc\nv_add_u32 v65, s51, v65\nv_mov_b32 v66, 128\nv_cndmask_b32 v66, v66, 4, vcc\nv_add_u32 v66, v65, v66")
        e(f"v_lshlrev_b32 v67, 1, v62\nv_lshl_add_u32 v67, v63, 8, v67\nv_add_u32 v67, s51, v67")
        blocks = [(-2, 34, 8), (32, 32, 4)]
        info = []
        for bi, (v0, nl, stride) in enumerate(blocks):
            cis = lambda y: y if y < 0 else ci(y)
            base = cis(8 * v0)
            offs = {}
            for t in range(-1, 8):
                o = [cis(8 * (v0 + l) + 7 - t) - (base + stride * l) for l in range(nl)]
                offs[t] = o[0]
                assert all(x == o[0] for x in o)
            AD = 100 + 2 * bi
            e(f"s_add_u32 s51, {REGB}, {KCO + 2*base}\nv_mul_u32_u24 v{AD}, {2*stride}, {LANE}\nv_add_u32 v{AD}, s51, v{AD}")
            e(f"s_add_u32 s51, {REGB}, {(75 - v0) * 16}\nv_sub_u32 v{AD+1}, s51, {L16}")
            info.append(offs)
        e(f"v_cmp_gt_u32 vcc, 16, {LANE}\nv_mov_b32 v104, 563\nv_mov_b32 v105, 512\nv_cndmask_b32 v104, v104, v105, vcc\nv_add_u32 v104, v104, {LANE}")
        e(f"v_mov_b32 v106, 1011\nv_cndmask_b32 v105, v106, v105, vcc\nv_add_u32 v105, v105, {LANE}\nv_cvt_f32_u32 v105, v105\nv_cvt_pk_bf16_f32 v105, v105, v105\nv_and_b32 v105, 0xffff, v105")
        e(f"s_sub_u32 s51, {REGB}, {2*0x4280 - KCO}\nv_lshl_add_u32 v105, v105, 1, s51")
        e(f"s_add_u32 s51, {REGB}, {2*607}\nv_lshlrev_b32 v104, 1, v104\nv_sub_u32 v104, s51, v104")
        e(f"v_add_u32 v107, 1, {LANE}\nv_and_b32 v107, 0x7e, v107\ns_add_u32 s51, {REGB}, 4096\nv_sub_u32 v107, s51, v107\nv_and_b32 v106, 1, {LANE}")
        e(f"v_mul_u32_u24 v108, 192, v106\nv_add_u32 v108, v107, v108\nv_mul_u32_u24 v106, 272, v106\nv_add_u32 v107, v107, v106\nv_lshl_add_u32 v106, {LANE}, 1, {REGB}")
        e(f"v_lshrrev_b32 v32, 4, {LANE}\nv_and_b32 v31, 15, {LANE}\nv_bfe_u32 v33, {LANE}, 1, 3\nv_lshlrev_b32 v34, 2, v32\nv_sub_u32 v34, v34, v33")
        e(f"v_and_b32 v33, 1, {LANE}\nv_xor_b32 v33, 1, v33\nv_mul_u32_u24 v33, {(R1O - R0O)//4 + 1}, v33\nv_add_u32 v34, v34, v33")
        e(f"s_add_u32 s51, {REGB}, {R0O + 4*7}\nv_lshl_add_u32 v44, v34, 2, s51\nv_add_u32 v45, 512, v44")
        e(f"v_lshlrev_b32 v33, 3, v32\nv_lshlrev_b32 v34, 2, v31\nv_sub_u32 v46, v33, v34\ns_add_u32 s51, {REGB}, {Q2O + 60}\nv_add_u32 v46, s51, v46")
        e(f"v_lshlrev_b32 v34, 1, v31\nv_sub_u32 v47, v33, v34\nv_and_b32 v34, 1, v31\nv_mul_u32_u24 v34, 386, v34\nv_sub_u32 v47, v47, v34\ns_add_u32 s51, {REGB}, {Q3O + 384 + 32}\nv_add_u32 v47, s51, v47")
        e(f"v_lshl_add_u32 v34, v31, 1, v32\ns_add_u32 s51, {REGB}, {UO + 16*2}\nv_lshl_add_u32 v40, v34, 4, s51")
        e(f"v_add_u32 v34, v31, v32\ns_add_u32 s51, {REGB}, {UO + 512 - 48}\nv_lshl_add_u32 v41, v34, 4, s51")
        e(f"v_and_b32 v34, 1, v32\nv_lshlrev_b32 v34, 9, v34\nv_lshl_add_u32 v34, v31, 5, v34\nv_lshrrev_b32 v32, 1, v32\nv_lshl_add_u32 v42, v32, 4, v34")
        e(f"s_lshl_b32 s86, {CH}, 12\ns_add_u32 s86, s86, {YT}\ns_mul_i32 s89, {DT}, 24\ns_add_u32 s89, s89, {FT}\ns_lshl_b32 s89, s89, 7\ns_add_u32 s89, s89, {F3}\ns_sub_u32 s88, {NCH}, 1")
        ST = [(64, 64), (65, 65), (66, 66), (67, 67)] + [(r, r) for r in range(100, 109)] + [(44, 46), (45, 47), (46, 48), (47, 49), (40, 16), (41, 12), (42, 17)]
        for i, (src, dst) in enumerate(ST): e(f"v_accvgpr_write_b32 a{80+i}, v{src}")
        e("s_waitcnt vmcnt(0)")
        self.stamp(p)
        PK = 116; pk = [0]; P = 62
        FA, FB = 16, 48
        def mf(rd):
            l = []
            for s in range(8):
                q = Prog()
                c = a(0, 16)
                q.e(f"v_mfma_f32_32x32x16_bf16 {a(0,16)}, {a(FA+4*s,4)}, {a(FB+4*s,4)}, {c}")
                l.append(q)
            return l
        p.e("s_mov_b32 s76, 0\nL_kg:")
        for rd in (1,):
            usepk = self.o["pk"]
            q = Prog(); e = q.e
            def cmul(sets):
                if usepk:
                    for d, x, y in sets: e(f"v_pk_mul_f32 {v(d,2)}, {v(x,2)}, {v(y,2)} op_sel_hi:[0,1]")
                    for d, x, y in sets: e(f"v_pk_fma_f32 {v(d,2)}, {v(x,2)}, {v(y,2)}, {v(d,2)} op_sel:[1,1,0] op_sel_hi:[1,0,1] neg_lo:[1,0,0]")
                else:
                    for d, x, y in sets: e(f"v_mul_f32 v{d}, v{x}, v{y}\nv_mul_f32 v{d+1}, v{x}, v{y+1}")
                    for d, x, y in sets: e(f"v_fma_f32 v{d}, -v{x+1}, v{y+1}, v{d}\nv_fmac_f32 v{d+1}, v{x+1}, v{y}")
            mfl = mf(0)
            def puts(l, neg):
                rs = []
                if self.o["mfp"] and not neg: e(mfl.pop(0).items[0][0])
                for row, z in l:
                    r = PK + pk[0] % 8; pk[0] += 1; rs.append(r)
                    e(f"v_cvt_pk_bf16_f32 v{r}, v{z}, {'-' if neg else ''}v{z+1}")
                for (row, z), r in zip(l, rs): e(f"ds_write_addtid_b32 v{r} offset:{row*KP}", "kw")
            for i in range(6):
                e(f"v_lshlrev_b32 v{P+i}, 16, v{RAW[2*i]}\nv_alignbit_b32 v{RAW[2*i]}, v{RAW[2*i+1]}, v{RAW[2*i]}, 16")
            AR, AI = 68, 69
            e(f"v_mul_f32 v{AR}, v{P}, v{VD1}\nv_mul_f32 v{AI}, v{P+1}, v{VD2}")
            e(f"v_mul_f32 v{P+2}, v{P+2}, v{VDT}\nv_mul_f32 v{P+3}, v{P+3}, v{VDT}")
            E1, E8, E256 = 70, 72, 74
            TM_, TA = 76, 79
            for i, t in enumerate((1.0, 8.0, 256.0)):
                if i == 0: e(f"v_mov_b32 v{TM_}, v{AR}\nv_fract_f32 v{TA}, v{AI}")
                else: e(f"v_mul_f32 v{TM_+i}, {fbits(t)}, v{AR}\nv_mul_f32 v{TA+i}, {fbits(t)}, v{AI}\nv_fract_f32 v{TA+i}, v{TA+i}")
            X = 82
            cmul([(X, P + 4, P + 2)])
            for i in range(3):
                e(f"v_exp_f32 v{TM_+i}, v{TM_+i}\nv_cos_f32 v{E1+2*i}, v{TA+i}\nv_sin_f32 v{E1+2*i+1}, v{TA+i}")
            for i in range(3): e(f"v_mul_f32 v{E1+2*i}, v{E1+2*i}, v{TM_+i}\nv_mul_f32 v{E1+2*i+1}, v{E1+2*i+1}, v{TM_+i}")
            E2, E4, E16, E512 = 98, 100, 102, 104
            EA, EB, E32, Y, Z = 106, 20, 114, 30, 38
            cmul([(E2, E1, E1), (E16, E8, E8), (E512, E256, E256), (X + 2, X, E1)])
            cmul([(E4, E2, E2), (EA + 6, E16, E8), (E32, E16, E16), (X + 4, X, E2), (X + 6, X + 2, E2)])
            p.ext(q)
            p.e("s_waitcnt lgkmcnt(0)")
            q = Prog(); e = q.e
            e(f"ds_write_addtid_b32 v28", "kw")
            puts([(1, E8), (2, E16), (3, EA + 6), (4, E32)], False)
            cmul([(EB, E8, E32), (EB + 2, E16, E32), (EB + 4, EA + 6, E32), (EB + 6, E32, E32)])
            cur, nxt = EB, EA
            extra = [[(X + 8 + 2 * i, X + 2 * i, E4) for i in range(4)], [(Y + 2 * i, X + 4 * i, E256) for i in range(4)],
                     [(Z, X, E512), (Z + 2, X + 8, E512), (Z + 4, Y, E512), (Z + 6, Y + 4, E512)],
                     [(Z + 8, Z, E512), (Z + 10, Z + 4, E512)], [(Z + 12, Z + 8, E512), (Z + 14, Z + 10, E512)], [(E1, Z + 12, E512)]]
            for st in range(6):
                j0 = 9 + 4 * st
                n = min(4, 32 - j0)
                cmul([(nxt + 2 * i, cur + 2 * i, E32) for i in range(n)])
                puts([(j0 - 4 + i, cur + 2 * i) for i in range(4)], False)
                cmul(extra[st])
                cur, nxt = nxt, cur
            puts([(29 + i, cur + 2 * i) for i in range(3)], False)
            if self.o["mfp"]:
                assert not mfl
                p.ext(q)
            else: p.ext(interleave(q, mf(rd - 1)))
            for s_ in range(8): p.e(f"ds_read_b128 {a(FB+4*s_,4)}, v{RB} offset:{s_*32}", "kr")
            e = p.e
            puts([(i, X + 2 * i) for i in range(4)], True); puts([(4 + i, X + 8 + 2 * i) for i in range(4)], True)
            puts([(8 + i, Y + 2 * i) for i in range(4)], True); puts([(12 + i, Z + 2 * i) for i in range(4)], True)
            puts([(16 + i, Z + 8 + 2 * i) for i in range(4)] + [(20, E1)], True)
            for s_ in range(8): p.e(f"ds_read_b128 {a(FA+4*s_,4)}, v{RA} offset:{s_*32}", "kr")
            p.e("s_cmp_lg_u32 s76, 0\ns_cbranch_scc1 L_kg1")
            for i in range(16): p.e(f"v_accvgpr_write_b32 a{i}, 0")
            p.e("L_kg1:")
            if self.debug: p.e(f"s_memrealtime s[82:83]\ns_waitcnt lgkmcnt(0)\ns_add_u32 s50, s76, 20\nv_mov_b32 v61, s82\nv_cmp_eq_u32 vcc, s50, {LANE}\nv_cndmask_b32 {VDBG}, {VDBG}, v61, vcc")
            kp = self.o["kpause"]
            if kp == 9:
                p.e(f"ds_read_b32 v61, {VSY} offset:{4*Y_PUB}\ns_waitcnt lgkmcnt(0)\nv_readfirstlane_b32 s79, v61\ns_cmp_lt_u32 s79, 2\ns_cbranch_scc1 L_kg2\ns_cmp_eq_u32 s76, 0\ns_cbranch_scc1 L_kg2")
                self.spin(p, self.o["kword"], 1, 61, sleep=4)
                if self.o["rprio"]: p.e(f"s_setprio {self.o['rprio']}")
                p.e("L_kg2:")
            elif kp:
                p.e(f"s_cmp_lg_u32 s76, {kp - 1}\ns_cbranch_scc1 L_kg2")
                self.spin(p, self.o["kword"], 1, 61, sleep=4)
                p.e("L_kg2:")
            p.e("s_add_u32 s76, s76, 1\ns_cmp_lt_u32 s76, 3\ns_cbranch_scc1 L_kg")
        e = p.e
        e(f"s_setprio {self.o['tprio']}")
        self.spin(p, Y_PUB, 1, 68, sleep=1)
        rs_ = Prog()
        for i, (src, dst) in enumerate(ST): rs_.e(f"v_accvgpr_read_b32 v{dst}, a{80+i}")
        for i in range(4): rs_.e(f"ds_read_b128 {a(112+4*i,4)}, v29 offset:{1024*i}", "bx")
        e(f"v_add_u32 v29, {BOXO}, {L16}")
        p.ext(mf(2)[0]); p.ext(interleave(rs_, mf(2)[1:]))
        e(f"v_mov_b32 v76, 0\nv_mov_b32 v77, 0\nv_mov_b32 v78, 0\nv_mov_b32 v79, 0\nv_add_u32 v15, {REGB}, {L16}")
        for i in range(4): e(f"ds_write_b128 v15, v[76:79] offset:{R0O + 1024*i}", "kc")
        e("s_mov_b64 exec, 3")
        e(f"ds_write_b128 v15, v[76:79] offset:{KCO - 32}", "kc")
        e("s_mov_b32 exec_lo, -1")
        e(f"ds_write_b128 v15, v[76:79] offset:{UO}", "kc")
        e("s_mov_b64 exec, -1")
        for i in range(12): e(f"v_accvgpr_read_b32 v{82+i}, a{i}")
        e(f"v_add_f32 v82, v82, v{VDS}")
        for i in range(6): e(f"v_cvt_pk_bf16_f32 v{70+i}, v{82+2*i}, v{83+2*i}")
        e(f"ds_write_b64 v64, v[70:71]\nds_write_b32 v65, v72\nds_write_b32 v66, v73\nds_write_b16 v67, v74 offset:1024", "kc")
        e("s_mov_b32 exec_hi, 0")
        e(f"ds_write_b16_d16_hi v67, v74 offset:{1024+64}\nds_write_b16 v67, v75 offset:{1024+128}\nds_write_b16_d16_hi v67, v75 offset:{1024+192}", "kc")
        e("s_mov_b64 exec, -1")
        vrs = []
        for bi, (v0, nl, stride) in enumerate(blocks):
            RR = 20 + 9 * bi; AD = 100 + 2 * bi; offs = info[bi]
            e(f"s_mov_b32 exec_hi, {(1 << (nl - 32)) - 1}")
            seen = {}; vr = {}
            for t in range(-1, 8):
                o = offs[t]
                if o not in seen:
                    seen[o] = RR + len(seen)
                    e(f"ds_read_u16 v{seen[o]}, v{AD} offset:{2*o}", f"kx{bi}")
                vr[t] = seen[o]
            vrs.append(vr)
        e("ds_read_u16 v40, v105", "kq")
        e("s_mov_b64 exec, -1")
        for i in range(2):
            e(f"ds_read_u16 v{41+i}, v106 offset:{KCO + 2*(388 + 64*i)}\nds_read_u16 v{43+i}, v106 offset:{KCO + 2*(514 + 64*i)}", "kq")
        for bi, (v0, nl, stride) in enumerate(blocks):
            AD = 100 + 2 * bi; O = 70 + 8 * bi; vr = vrs[bi]
            p.wlg(f"kx{bi}")
            for i in range(4): e(f"v_lshl_or_b32 v{O+i}, v{vr[2*i+1]}, 16, v{vr[2*i]}")
            for i in range(4): e(f"v_lshl_or_b32 v{O+4+i}, v{vr[2*i]}, 16, v{vr[2*i-1]}")
            e(f"s_mov_b32 exec_hi, {(1 << (nl - 32)) - 1}")
            e(f"ds_write_b128 v{AD+1}, {v(O,4)} offset:{R0O}\nds_write_b128 v{AD+1}, {v(O+4,4)} offset:{R1O}", "kt")
            e("s_mov_b64 exec, -1")
        p.wlg("kq")
        e(f"ds_write_b16 v107, v41 offset:{Q2O - 4096 + 2*94}\nds_write_b16 v108, v43 offset:{Q3O - 4096 + 2*63}\nds_write_b16 v108, v43 offset:{Q3O - 4096 + 384 + 2*64}", "kt")
        e(f"s_mov_b32 exec_hi, {(1 << 31) - 1:#x}\nds_write_b16 v108, v44 offset:{Q3O - 4096 + 2*31}\nds_write_b16 v108, v44 offset:{Q3O - 4096 + 384 + 2*32}", "kt")
        e(f"s_mov_b32 exec_hi, {(1 << 29) - 1:#x}\nds_write_b16 v107, v42 offset:{Q2O - 4096 + 2*62}", "kt")
        e(f"s_mov_b32 exec_hi, 0\ns_mov_b32 exec_lo, 0x01ff3fff\nds_write_b16 v104, v40 offset:{R0O}\nds_write_b16 v104, v40 offset:{R1O + 2}\ns_mov_b64 exec, -1", "kt")

    def conv_setup(self, p):
        e = p.e
        for m in list(range(17)) + [18]:
            off = (18 - m) * 16; ad = 46; r = 4 * min(m, 17)
            if off >= 128: off -= 128; ad = 47
            e(f"ds_read2_b32 {a(r,2)}, v{ad} offset0:{off} offset1:{off+1}\nds_read2_b32 {a(r+2,2)}, v{ad} offset0:{off+2} offset1:{off+3}", "pf")
        for j in range(6): e(f"ds_read2_b32 {a(72+4*j,2)}, v48 offset0:{8*j} offset1:{8*j+1}\nds_read2_b32 {a(74+4*j,2)}, v48 offset0:{68+8*j} offset1:{68+8*j+1}", "pf")
        for j in range(4): e(f"ds_read2_b32 {a(96+4*j,2)}, v49 offset0:{8*j} offset1:{8*j+1}\nds_read2_b32 {a(98+4*j,2)}, v49 offset0:{48+8*j} offset1:{48+8*j+1}", "pf")
    def boxes_build(self, p):
        e = p.e
        e(f"v_mov_b32 v23, 0x3f80\nv_add_u32 v22, {BOXO}, {L16}")
        e(f"v_and_b32 v124, 15, {LANE}\nv_lshrrev_b32 v125, 4, {LANE}\nv_lshlrev_b32 v125, 3, v125\ns_mov_b32 s50, 0x8001\ns_mov_b32 s51, 0x10001")
        for bi, (c_, h_) in enumerate(((8, 2), (12, 1), (8, 4), (8, 3))):
            e(f"v_mov_b32 v126, {((1 << (2*h_+1)) - 1) << (c_ - h_):#x}\nv_lshlrev_b32 v126, v124, v126\nv_lshrrev_b32 v126, v125, v126")
            for q in range(4):
                r = 24 + 4 * bi + q
                e(f"v_bfe_u32 v{r}, v126, {2*q}, 2\nv_mul_u32_u24 v{r}, s50, v{r}\nv_and_b32 v{r}, s51, v{r}\nv_mul_u32_u24 v{r}, v23, v{r}")
            e(f"ds_write_b128 v22, {v(24+4*bi,4)} offset:{1024*bi}")
    def boxes(self, p):
        e = p.e
        self.stamp(p)
        self.spin(p, Y_UR, 1, 22, sleep=2)
        e(f"ds_read_b32 {VTAG}, {VSY} offset:{4*Y_TAG}", "tag")
        self.stamp(p)
    def inverse_addr(self, p):
        e = p.e
        e(f"v_lshrrev_b32 v20, 4, {LANE}\nv_lshlrev_b32 v20, 10, v20\nv_and_b32 v21, 3, {LANE}\nv_lshl_add_u32 v20, v21, 4, v20\nv_and_b32 v21, 12, {LANE}")
        for q in range(4):
            e(f"v_add_u32 v22, {16*(q&1)}, v21\nv_bfe_u32 v22, s{74 + q//2}, v22, 4\nv_lshl_add_u32 v{4+q}, v22, 6, v20")
        e(f"s_mov_b32 s84, {STAT}\ns_mov_b32 s85, {STAT+4096}")
    def inverse(self, p):
        e = p.e
        S2, M2, SF, MF = 24, 40, 56, 88
        for q in range(4):
            e(f"buffer_load_dwordx4 {v(S2+4*q,4)}, v{4+q}, {SWS}, s84 offen sc1", "u")
            e(f"buffer_load_dwordx4 {v(M2+4*q,4)}, v{4+q}, {SWS}, s85 offen sc1", "u")
        e(f"s_setprio {self.o['iprio']}")
        p.wvm("u")
        self.unpack(p, S2, SF, 16); self.unpack(p, M2, MF, 16)
        for q in range(4):
            self.spin(p, Y_U + q, 4, 22, sleep=(2 if q < 3 else 1))
            for c in range(3): e(f"ds_read_b128 {v(24+4*c,4)}, v{4+q} offset:{REG0 + c*REGSZ + UO + 512}", f"ur{q}{c}")
            for c in range(3):
                p.wlg(f"ur{q}{c}")
                self.unpack(p, 24 + 4 * c, 40, 4)
                for i in range(8): e(f"v_fma_f32 v{40+i}, v{40+i}, v{SF+8*q+i}, v{MF+8*q+i}")
                o = 48 + 4 * (c & 1)
                for i in range(4): e(f"v_cvt_pk_bf16_f32 v{o+i}, v{40+2*i}, v{41+2*i}")
                e(f"ds_write_b128 v{4+q}, {v(o,4)} offset:{REG0 + c*REGSZ + UO + 512}", "uw")
        self.sig(p, Y_UR, 20)
        e("s_setprio 3")
    def conv(self, p):
        e = p.e
        YO, ACC, DT_, PKD = 17, 64, 116, 124
        slots = [24 + 4 * i for i in range(10)] + [96 + 4 * i for i in range(5)]
        slots = slots[:self.o["cns"]]; NS = len(slots)
        R = lambda n: v(slots[n % NS], 4)
        F = []
        for ph in range(8):
            for d in range(8):
                l = [(d + mu, 4 * (8 * mu + ph)) for mu in range(2) if d + mu <= 7]
                if ph == 0 and d <= 5: l.append((d + 2, 64))
                if ph == 0 and d <= 3: l.append((d + 4, 68))
                F.append((f"v16 offset:{512*d + (7-ph)*64}", l))
        S = []
        for st in range(4):
            S.append(([f"v16 offset:{16*(27 + 32*st)}", f"v16 offset:{16*(28 + 32*st)}"], 120, [(I, 96 + 4 * (st - I + 7)) for I in range(4, 8) if st <= I - 4]))
        for st in range(12):
            S.append(([f"v12 offset:{256*st}"], 112, [(I, 72 + 4 * (st - 2 * I + 8)) for I in range(2, 8) if 2 * I - 8 <= st <= 2 * I - 3]))
        loads = []; steps = []
        def ld(addr): loads.append(addr); return len(loads) - 1
        for i, (ad, box, l) in enumerate(S):
            ids = [ld(x) for x in ad]
            steps.append(("box", ids, box))
            for k in range(3): steps.append(("F", [ld(F[4*i+k][0])], F[4*i+k][1]))
            steps.append(("cvt", [], None))
            steps.append(("F", [ld(F[4*i+3][0])], F[4*i+3][1]))
            steps.append(("S", [], l))
        first = set(); nl = [0]
        def issue(upto):
            while nl[0] < min(upto, len(loads)):
                e(f"ds_read_b128 {R(nl[0])}, {loads[nl[0]]}", f"cj{nl[0]}"); nl[0] += 1
        def mm(I, A, B):
            acc = v(ACC + 4 * I, 4); src = acc if I in first else "0"; first.add(I)
            e(f"v_mfma_f32_16x16x32_bf16 {acc}, {A}, {B}, {src}")
        if self.o.get("dly_c"): e(f"s_sleep {self.o['dly_c']}")
        issue(NS)
        if self.o["cwait"]: self.spin(p, Y_EPI, self.o["cwait"], 22, sleep=1)
        e(f"s_setprio {self.o['cprio0']}")
        self.stamp(p)
        for si, (kind, ids, arg) in enumerate(steps):
            if si == self.o["cswitch"]: e(f"s_setprio {self.o['cprio']}")
            if ids: p.wlg(f"cj{ids[-1]}")
            if kind == "box":
                e(f"v_mfma_f32_16x16x32_bf16 {v(DT_,4)}, {R(ids[0])}, {a(arg,4)}, 0")
                issue(ids[0] + NS)
                e(f"v_mfma_f32_16x16x32_bf16 {v(DT_+4,4)}, {R(ids[-1])}, {a(arg+4,4)}, 0")
            elif kind == "F":
                for i, (I, kf) in enumerate(arg):
                    mm(I, a(kf, 4), R(ids[0]))
                    if i == 0: issue(ids[0] + NS)
            elif kind == "cvt":
                for i in range(4): e(f"v_cvt_pk_bf16_f32 v{PKD+i}, v{DT_+2*i}, v{DT_+2*i+1}")
            else:
                for I, kf in arg: mm(I, v(PKD, 4), a(kf, 4))
        for k in range(4):
            o = 24 + 4 * k
            for i in range(4): e(f"v_cvt_pk_bf16_f32 v{o+i}, v{ACC+8*k+2*i}, v{ACC+8*k+2*i+1}")
            e(f"v_permlane16_swap_b32 v{o}, v{o+2}\nv_permlane16_swap_b32 v{o+1}, v{o+3}")
            e(f"buffer_store_dwordx4 {v(o,4)}, v{YO}, {SWS}, s86 offen offset:{1024*k} sc1", "ys")
        self.stamp(p)
        e("s_waitcnt vmcnt(0)")
        e(f"v_mov_b32 v20, 1\ns_mov_b64 exec, 1\nds_add_rtn_u32 v20, {VSY}, v20 offset:{4*Y_Y}\ns_mov_b64 exec, -1\ns_waitcnt lgkmcnt(0)\nv_readfirstlane_b32 s79, v20")
        e(f"s_cmp_lg_u32 s79, s88\ns_cbranch_scc1 L_ynl")
        self.flag_store(p, "s89")
        e("L_ynl:")
    def convw(self):
        self.role = "conv"
        p = Prog(); e = p.e
        self.conv_start(p)
        self.stamp(p)
        if not self.o.get("skip_kgen"): self.kgen(p)
        else: self.stamp(p)
        self.stamp(p)
        if self.o.get("dly_k"): e(f"s_sleep {self.o['dly_k']}")
        self.conv_setup(p)
        e("s_setprio 0")
        self.boxes(p)
        self.conv(p)
        self.finish(p)
        return p

    def build(self):
        p = Prog(); self.prologue(p)
        p.ext(self.main())
        body = finalize(p)
        q = Prog(); q.e("L_aux:")
        q.e(f"s_cmp_eq_u32 {WV}, 7\ns_cbranch_scc1 L_serv"); q.ext(self.convw())
        body += finalize(q)
        q = Prog(); q.e("L_serv:"); q.ext(self.serv()); q.e("L_end:\nL_last:\ns_endpgm")
        body += finalize(q)
        body = body.replace("@", "")
        ref = open("cdna_kernels/" + NAME + ".s.ref").read()
        head = [l for l in ref.split("\n") if l.startswith(";") and "@launch" not in l]
        k = NAME + "_kernel"
        s = "\n".join(head) + f"\n; @launch grid=(256,1,1) block=(512,1,1) lds={LDS_BYTES}\n" + DOC
        s += f'.amdgcn_target "amdgcn-amd-amdhsa--gfx950"\n.text\n.globl {k}\n.p2align 8\n.type {k},@function\n{k}:\n'
        s += body
        s += f""".section .rodata,"a"
.p2align 6
.amdhsa_kernel {k}
  .amdhsa_next_free_vgpr 256
  .amdhsa_next_free_sgpr 102
  .amdhsa_accum_offset 128
  .amdhsa_group_segment_fixed_size 0
  .amdhsa_kernarg_size 136
  .amdhsa_user_sgpr_count 2
  .amdhsa_user_sgpr_kernarg_segment_ptr 1
  .amdhsa_system_sgpr_workgroup_id_x 1
.end_amdhsa_kernel
"""
        return s

if __name__ == "__main__":
    out = sys.argv[1]
    kw = eval("dict(" + (sys.argv[2] if len(sys.argv) > 2 else "") + ")")
    open(out, "w").write(G(**kw).build())
```

```python
import sys, struct
from asmlib import Prog, interleave, finalize

NAME = "parallel_sum__ssm_conv_s4__mixer_token_mlp__prompt"
STAT, TM, F2, F3, F1 = 0x4000, 0x8000, 0x50000, 0x58000, 0x60000
HB, GB, YT, WSEND = 0x80000, 0x300000, 0x4E0000, 0x760000
RINGW, RS = 28672, 7
PT = 1344
REG0, REGSZ = 0, 14976
SYNC = 3 * REGSZ
RING0 = 45056
KCO, R0O, R1O, Q2O, Q3O = 32, 1408, 1408 + 1344, 4096, 4672
Z5O, Z3O, Z9O, Z7O, UO = 0, 3104, 6208, 8288, 10368
LNT = REG0 + 8704
BOXO = RING0 + 4 * RINGW
KP = 272
LDS_BYTES = 163840
assert SYNC + 128 <= RING0 and RING0 + 4 * RINGW <= LDS_BYTES
Y_EPI = 3
Y_Y = 16
Y_UR = 17
Y_Q = 20
Y_LN, Y_F1, Y_PART, Y_PUB, Y_P1, Y_G, Y_P2, Y_F2, Y_P3, Y_F3, Y_TAG, Y_U = 0, 1, 2, 4, 5, 6, 7, 8, 9, 10, 11, 12

DOC = '; One persistent launch, 256 workgroups (one per CU) of 8 waves; generated by a hand-written script.\n'

def fbits(x): return "0x%08x" % struct.unpack("<I", struct.pack("<f", x))[0]
def bf16r(l):
    u = struct.unpack("<I", struct.pack("<f", float(l)))[0]
    u = ((u + 0x7FFF + ((u >> 16) & 1)) >> 16) << 16
    return int(struct.unpack("<f", struct.pack("<I", u))[0])
def ci(l):
    v = bf16r(l)
    if v <= 256: return v
    if v <= 512: return 256 + (v - 256) // 2
    if v <= 1024: return 384 + (v - 512) // 4
    return 512 + (v - 1024) // 8

WG, WV, XCD, IDX, DT, FT, DT2, ST2, TAG, ROT1, ROT2, CH = "s2", "s3", "s4", "s5", "s6", "s7", "s8", "s9", "s10", "s11", "s12", "s13"
SUB, C0, NCH = "s97", "s98", "s99"
SX, SW1, SW2, SOUT, SWS = "s[52:55]", "s[56:59]", "s[60:63]", "s[64:67]", "s[68:71]"
RINGB, REGB = "s73", "s77"
VSY, LANE, L16, L4, VTAG, VZ, VDBG = "v0", "v1", "v2", "v3", "v9", "v10", "v11"

def v(i, n=1): return f"v{i}" if n == 1 else f"v[{i}:{i+n-1}]"
def a(i, n=1): return f"a{i}" if n == 1 else f"a[{i}:{i+n-1}]"

def groups_of(prog):
    groups = []
    for it in prog.items:
        prev = groups[-1][-1][0] if groups else None
        if isinstance(prev, str) and (prev.startswith(("s_add_u32 m0", "s_cmp", "s_sub_u32 s51", "s_mov_b64 exec, s", "s_mov_b64 exec, 1", "ds_write_b128 v125", "ds_add"))):
            groups[-1].append(it)
        else: groups.append([it])
    return groups

def make_perm(n, nw, first, duty0, per=1):
    own = list(range(0, n, 2)); oth = list(range(1, n, 2))
    order = [[] for _ in range(nw)]; touched = {}
    pool = own[:]
    for pos in range(first):
        for j in range(nw):
            pass
    deal = [[] for _ in range(nw)]
    k = 0
    for pos in range(first):
        for j in range(nw):
            if pool: st = pool.pop(0)
            else: st = oth.pop(0)
            deal[j].append(st); touched[st] = pos
    rest = pool + oth
    duty = {}
    for i, st in enumerate(rest): duty[(duty0 + i // per, i % nw)] = st
    for j in range(nw): order[j] = list(deal[j])
    for pos in range(first, n):
        for j in range(nw):
            if (pos, j) in duty: touched[duty[(pos, j)]] = pos
        for j in range(nw):
            if (pos, j) in duty: order[j].append(duty[(pos, j)]); continue
            mine = {st for (pp, jj), st in duty.items() if jj == j and pp > pos}
            cand = [st for st in range(n) if st not in order[j] and st not in mine]
            cand.sort(key=lambda st: (touched.get(st, 99), (st - 2 * j) % n))
            order[j].append(cand[0])
    for o in order: assert sorted(o) == list(range(n)), o
    return order
def pack_perm(o):
    x = sum(st << (4 * i) for i, st in enumerate(o)); return x & 0xffffffff, x >> 32

class G:
    def __init__(self, debug=False, **kw):
        self.debug = debug
        self.o = dict(P1=6, D1=13, PS1=11, lead1=4, xk=-1, epifirst=1, sp3=0, first1=1, dpp=3, P2=4, D2=11, PS2=9, lead2=4, wflag="", xflag="", nsp=0, thr=4,
                      ytrig=5, ychk=10, pk=1, psleep=4, psleep2=8, kprio=0, mprio=2, ebpos=0, kpause=9, kword=5, spk=0, spw=0, sx=4, spa=0, fg=0, ew=1, df1=3, df2=3, tprio=0, rprio=0, mfp=1, p1=0, p2=0, first2=2, dpp2=1, e2=0, tch=0, cprio=3, ipf=2, ns1=12, ns2=15, perm=1, duty1=1, duty2=3, oflag='', eb=2, pfirst=1, free1=1, pre1=1, cns=15, sg1=0, sg2=0, epk=1, cprio0=0, cswitch=40, iprio=0, ow4=1, slow=0, ebk=99, nthr=6, pflag='nt', cwait=4)
        self.o.update(kw)
        self.nst = {}; self.nlab = 0; self.role = None
    def stamp(self, p):
        if not self.debug: return
        n = self.nst.get(self.role, 0)
        if n == 0: p.e(f"v_writelane_b32 {VDBG}, s100, 28")
        p.e(("s_memtime" if self.o.get("cyc") else "s_memrealtime") + " s[82:83]\ns_waitcnt lgkmcnt(0)")
        p.e(f"v_writelane_b32 {VDBG}, s82, {n}")
        self.nst[self.role] = n + 1
    def pre(self, p):
        if self.debug and self.o.get("prest"): p.e(f"s_memrealtime s[82:83]\ns_waitcnt lgkmcnt(0)\nv_writelane_b32 {VDBG}, s82, 27")
    def label(self, s):
        self.nlab += 1; return f"L{s}_{self.nlab}"
    def flag_store(self, p, soff, pre=""):
        p.e(f"s_mov_b64 exec, 1\n{pre}buffer_store_dword {VTAG}, {VZ}, {SWS}, {soff} offen sc1\ns_mov_b64 exec, -1")
    def poll(self, p, voff, soff, tmp, wide=False, sleep=0, fine=False):
        l = self.label("poll"); d = self.label("polld"); f = self.label("pollf")
        p.e("s_mov_b32 s78, 0")
        if sleep: p.e(f"s_branch {f}")
        p.e(f"{l}:")
        if sleep: p.e(f"s_sleep {sleep}\n{f}:")
        if wide:
            p.e(f"buffer_load_dwordx4 {v(tmp,4)}, {voff}, {SWS}, {soff} offen sc1")
            p.e("s_add_u32 s78, s78, 1\ns_waitcnt vmcnt(0)")
            for i in range(4): p.e(f"v_xor_b32 {v(tmp+i)}, {TAG}, {v(tmp+i)}")
            p.e(f"v_or3_b32 {v(tmp)}, {v(tmp)}, {v(tmp+1)}, {v(tmp+2)}\nv_or_b32 {v(tmp)}, {v(tmp)}, {v(tmp+3)}")
            p.e(f"v_cmp_ne_u32 vcc, 0, {v(tmp)}")
        else:
            p.e(f"buffer_load_dword {v(tmp)}, {voff}, {SWS}, {soff} offen sc1")
            p.e("s_add_u32 s78, s78, 1\ns_waitcnt vmcnt(0)")
            p.e(f"v_cmp_ne_u32 vcc, {TAG}, {v(tmp)}")
        if fine:
            p.e(f"s_mov_b64 exec, 15\nv_and_b32 v21, vcc_lo, v17\nv_and_b32 v22, vcc_hi, v18\nv_or_b32 v21, v21, v22\nv_cmp_eq_u32 s[94:95], 0, v21\nv_cndmask_b32 v21, 0, 1, s[94:95]")
            p.e(f"ds_write_b32 {L4}, v21 offset:{SYNC + 4*Y_Q}")
        p.e(f"s_cmp_gt_u32 s78, 0x40000\ns_cbranch_scc1 {d}\ns_cbranch_vccz {d}\ns_mov_b64 exec, vcc\ns_branch {l}")
        p.e(f"{d}:\ns_mov_b64 exec, -1")
    def sig(self, p, word, tmp):
        p.e(f"v_mov_b32 v{tmp}, 1\ns_mov_b64 exec, 1\nds_add_u32 {VSY}, v{tmp} offset:{4*word}\ns_mov_b64 exec, -1", "sig")
    def spin(self, p, word, n, tmp, sleep=0, base=VSY):
        l = self.label("spin"); d = self.label("spind"); f = self.label("spinf")
        p.e("s_mov_b32 s78, 0")
        if sleep: p.e(f"s_branch {f}")
        p.e(f"{l}:")
        if sleep: p.e(f"s_sleep {sleep}\n{f}:")
        p.e(f"ds_read_b32 v{tmp}, {base} offset:{4*word}\ns_add_u32 s78, s78, 1\ns_waitcnt lgkmcnt(0)\nv_readfirstlane_b32 s79, v{tmp}")
        p.e(f"s_cmp_gt_u32 s78, 0x200000\ns_cbranch_scc1 {d}\ns_cmp_lt_u32 s79, {n}\ns_cbranch_scc1 {l}")
        p.e(f"{d}:")
    def mktag(self, p):
        p.e(f"s_mul_i32 {TAG}, {TAG}, 0x9E3779B1\ns_add_u32 {TAG}, {TAG}, 0x7F4A7C15\nv_mov_b32 {VTAG}, {TAG}")
    def finish(self, p):
        e = p.e
        if self.debug:
            e("s_waitcnt vmcnt(0)")
            self.stamp(p)
            e(f"s_lshl_b32 s50, {WG}, 3\ns_add_u32 s50, s50, {WV}\ns_lshl_b32 s50, s50, 7\ns_add_u32 s50, s50, {TM}")
            e(f"s_mov_b32 exec_hi, 0\nbuffer_store_dword {VDBG}, {L4}, {SWS}, s50 offen")
        e("s_endpgm")
    def srd(self, p, d, lo, size): p.e(f"s_mov_b32 s{d}, s{lo}\ns_mov_b32 s{d+1}, s{lo+1}\ns_mov_b32 s{d+2}, {size}\ns_mov_b32 s{d+3}, 0x20000")
    def unpack(self, p, src, dst, n):
        for i in range(n):
            p.e(f"v_lshlrev_b32 v{dst+2*i}, 16, v{src+i}\nv_and_b32 v{dst+2*i+1}, 0xffff0000, v{src+i}")
    def rbf(self, p, r):
        p.e(f"v_cvt_pk_bf16_f32 v{r}, v{r}, v{r}\nv_lshlrev_b32 v{r}, 16, v{r}")

    def prologue(self, p):
        e = p.e; RAW = self.RAW; o = self.o
        if self.debug: e("s_memrealtime s[100:101]")
        e(f"s_cmp_ge_u32 {WG}, 256\ns_cbranch_scc1 L_end0")
        e("s_load_dwordx16 s[16:31], s[0:1], 0\ns_load_dwordx16 s[32:47], s[0:1], 64\ns_load_dwordx2 s[48:49], s[0:1], 128")
        e(f"v_and_b32 {LANE}, 63, v0\nv_lshrrev_b32 v12, 6, v0\nv_readfirstlane_b32 {WV}, v12")
        e(f"v_lshlrev_b32 {L4}, 2, {LANE}\nv_mov_b32 {VZ}, 0\nv_mov_b32 {VSY}, {SYNC}")
        e(f"s_cmp_lg_u32 {WV}, 7\ns_cbranch_scc1 L_p1")
        if o["ipf"]:
            e(f"s_getpc_b64 s[90:91]\nL_pc:\ns_bfe_u32 s51, {WG}, {(o['ipf'] << 16) | 3:#x}\ns_lshl_b32 s51, s51, 13")
            e(f"v_lshl_add_u32 v112, {LANE}, 7, s51\nv_min_u32 v112, L_last-L_pc, v112")
            e("v_mov_b32 v113, s91\nv_add_co_u32 v112, vcc, s90, v112\nv_addc_co_u32 v113, vcc, 0, v113, vcc")
            e("@global_load_dword v114, v[112:113], off")
        e(f"s_mov_b32 exec_hi, 0\nds_write_b32 {L4}, {VZ} offset:{SYNC}\ns_mov_b64 exec, -1")
        e(f"s_waitcnt lgkmcnt(0)\n@s_load_dword {TAG}, s[48:49], 0\ns_branch L_p3")
        e("L_end0:\ns_endpgm\nL_p1:")
        e(f"s_cmp_ge_u32 {WV}, 4\ns_cbranch_scc1 L_p2")
        e(f"v_lshrrev_b32 v120, 5, {LANE}\nv_mul_u32_u24 v121, 1280, v120\nv_and_b32 v122, 31, {LANE}")
        e("v_lshl_add_u32 v123, v122, 4, v121\nv_lshl_add_u32 v124, v122, 3, v121")
        e(f"s_lshl_b32 s50, {WG}, 3\ns_lshl1_add_u32 s50, {WV}, s50\ns_mul_i32 s50, s50, 1280")
        e("s_mov_b32 s54, 2621440\ns_mov_b32 s55, 0x20000\ns_waitcnt lgkmcnt(0)\ns_mov_b32 s52, s16\ns_mov_b32 s53, s17")
        xf = o["xflag"]
        e(f"buffer_load_dwordx4 v[20:23], v123, {SX}, s50 offen {xf}", "x")
        e(f"buffer_load_dwordx4 v[24:27], v123, {SX}, s50 offen offset:512 {xf}", "x")
        e(f"buffer_load_dwordx2 v[28:29], v124, {SX}, s50 offen offset:1024 {xf}", "x")
        e("s_branch L_p3")
        e("L_p2:")
        self.tiles(p)
        e(f"s_sub_u32 s14, {WV}, 4\ns_cmp_ge_u32 s14, {NCH}\ns_cbranch_scc1 L_end0")
        e(f"s_lshl_b32 {CH}, {DT}, 6\ns_lshl4_add_u32 {CH}, {SUB}, {CH}\ns_add_u32 {CH}, {CH}, {C0}\ns_add_u32 {CH}, {CH}, s14")
        e(f"s_mul_i32 s51, {CH}, 384\nv_add_u32 v110, s51, {L4}\nv_lshl_add_u32 v111, {LANE}, 1, s51")
        e(f"s_lshr_b32 s79, {CH}, 1\ns_lshl_b32 s79, s79, 2")
        e("s_waitcnt lgkmcnt(0)")
        for i in range(6):
            e(f"@global_load_dword v{RAW[2*i]}, v110, s[{18+2*i}:{19+2*i}] {o['pflag']}")
            e(f"@global_load_ushort v{RAW[2*i+1]}, v111, s[{18+2*i}:{19+2*i}] offset:256 {o['pflag']}")
        e(f"@s_load_dword s80, s[30:31], s79\n@s_load_dword s81, s[32:33], s79")
        e("L_p3:\ns_barrier")
        e(f"v_lshlrev_b32 {L16}, 4, {LANE}\nv_mov_b32 {VDBG}, 0")
        self.tiles(p)
        self.srd(p, 68, 48, WSEND)
        if o["perm"]: P1_ = make_perm(16, 5, o["first1"], o["duty1"], o["dpp"])
        else: P1_ = [[(((2 * j * 205) >> 7) + i) % 16 for i in range(16)] for j in range(5)]
        for j, o_ in enumerate(P1_):
            lo, hi = pack_perm(o_)
            if j == 0: e(f"s_mov_b32 s74, {lo:#x}\ns_mov_b32 s75, {hi:#x}")
            else: e(f"s_cmp_eq_u32 s11, {j}\ns_cselect_b32 s74, {lo:#x}, s74\ns_cselect_b32 s75, {hi:#x}, s75")
        e(f"s_mul_i32 s51, {'s96' if o['p1'] else 's12'}, 0x11111111\ns_xor_b32 s74, s74, s51\ns_xor_b32 s75, s75, s51")
        if o["p2"]: e(f"s_and_b32 {DT2}, {IDX}, 7\ns_lshr_b32 {ST2}, {IDX}, 3\ns_lshl2_add_u32 {ST2}, {XCD}, {ST2}")
        else: e(f"s_and_b32 {DT2}, {IDX}, 3\ns_lshr_b32 {ST2}, {IDX}, 2\ns_xor_b32 {ST2}, {ST2}, {o['sx']}\ns_lshl2_add_u32 {DT2}, s12, {DT2}\ns_lshl3_add_u32 {ST2}, {SUB}, {ST2}")
        e(f"s_cmp_ge_u32 {WV}, 4\ns_cbranch_scc1 L_aux")
    def tiles(self, p):
        e = p.e
        e(f"s_and_b32 {XCD}, {WG}, 7\ns_lshr_b32 {IDX}, {WG}, 3\ns_lshr_b32 {SUB}, {XCD}, 1\ns_and_b32 s12, {XCD}, 1")
        if self.o["p1"]:
            e(f"s_min_u32 s15, {IDX}, 29\ns_mul_i32 {FT}, s15, 26\ns_lshr_b32 {FT}, {FT}, 8\ns_mul_i32 s51, {FT}, 10\ns_sub_u32 {DT}, s15, s51")
            e(f"s_mul_i32 s51, s12, 3\ns_add_u32 {FT}, {FT}, s51\ns_lshr_b32 s11, {DT}, 1\ns_and_b32 s96, {DT}, 1")
        else:
            e(f"s_min_u32 s15, {IDX}, 29\ns_mul_i32 {FT}, s15, 52\ns_lshr_b32 {FT}, {FT}, 8")
            e(f"s_mul_i32 s51, {FT}, 5\ns_sub_u32 s11, s15, s51")
        e(f"s_mul_i32 {C0}, {FT}, 3\ns_min_u32 {C0}, {C0}, 14\ns_cmp_lt_u32 {FT}, 4\ns_cselect_b32 {NCH}, 3, 2\ns_cmp_ge_u32 {IDX}, 30\ns_cselect_b32 {NCH}, 0, {NCH}")
        if self.o["p1"]: e(f"s_mul_i32 s51, {SUB}, 6\ns_add_u32 {FT}, {FT}, s51")
        else: e(f"s_mul_i32 s51, s12, 5\ns_add_u32 {DT}, s11, s51\ns_mul_i32 s51, {SUB}, 6\ns_add_u32 {FT}, {FT}, s51")

    def kk(self, p, g, ks, dst, stride, base):
        p.e(f"s_bfe_u32 {dst}, s{(74 if g == 1 else 80) + ks // 8}, {(4 << 16) | (4 * (ks % 8)):#x}")
        p.e(f"s_mul_i32 {dst}, {dst}, {stride}")
        if base: p.e(f"s_add_u32 {dst}, {dst}, {base}")
    def slot(self, g, ks): return ((ks + (3 if g == 2 else 0)) % RS) * 4096
    def throttle(self, p):
        l = self.label("thr")
        p.e(f"s_cmp_lg_u32 s85, 0\ns_cbranch_scc1 {l}")
        p.e(f"@ds_read_b32 v20, {VSY} offset:{4*Y_PUB}\n@s_waitcnt vmcnt({self.o['thr']}) lgkmcnt(0)\nv_readfirstlane_b32 s85, v20\ns_nop 0\ns_lshr_b32 s85, s85, 1")
        p.e(f"{l}:")
    def dma(self, g, ks, thr=False):
        p = Prog()
        rs, vo, srd, base = (3072, 4, SW1, "s84") if g == 1 else (4096, 12, SW2, "s92")
        self.kk(p, g, ks, "s72", 32 * rs, base)
        for q in range(4):
            if thr and q % 2 == 0: self.throttle(p)
            p.e(f"s_add_u32 m0, {RINGB}, {self.slot(g, ks) + q * 1024}")
            p.e(f"buffer_load_dwordx4 v{vo + (q & 1)}, {srd}, s72 offen {self.o['wflag']} lds", f"w{g}_{ks}")
            if q < 3: p.e(f"s_add_u32 s72, s72, {8*rs}")
        return p
    NB = {1: 6, 2: 4}
    def tr(self, g, ks):
        p = Prog()
        r = 16 * (ks % self.NB[g]); o = self.slot(g, ks)
        p.wvm(f"w{g}_{ks}")
        for ss in range(4):
            p.e(f"ds_read_b64_tr_b16 {a(r+4*ss,2)}, v{14+ss} offset:{o}", f"t{g}_{ks}")
            p.e(f"ds_read_b64_tr_b16 {a(r+4*ss+2,2)}, v{14+ss} offset:{o+512}", f"t{g}_{ks}")
        return p
    def main_start(self, p):
        e = p.e
        e("s_setprio 3")
        e(f"s_mul_i32 {RINGB}, {WV}, {RINGW}\ns_add_u32 {RINGB}, {RINGB}, {RING0}\ns_mov_b32 s85, 0")
        e(f"v_lshrrev_b32 v30, 3, {LANE}\nv_and_b32 v31, 7, {LANE}\nv_and_b32 v32, 2, v30\nv_xor_b32 v31, v31, v32\nv_lshlrev_b32 v31, 4, v31")
        e("v_mul_u32_u24 v4, 3072, v30\nv_add_u32 v4, v4, v31\nv_xor_b32 v5, 64, v4\nv_lshl_add_u32 v12, v30, 12, v31\nv_xor_b32 v13, 64, v12")
        e(f"s_mul_i32 s84, {WV}, {512*3072}\ns_lshl_b32 s51, {FT}, 7\ns_add_u32 s84, s84, s51")
        e(f"s_mul_i32 s92, {WV}, {384*4096}\ns_lshl_b32 s51, {ST2}, 7\ns_add_u32 s92, s92, s51")
        self.srd(p, 56, 36, 6291456); self.srd(p, 60, 40, 6291456); self.srd(p, 64, 44, 2621440)
        self.stamp(p)
    def main_setup2(self, p):
        e = p.e
        e(f"v_bfe_u32 v20, {LANE}, 2, 2\nv_and_b32 v21, 3, {LANE}\nv_lshrrev_b32 v22, 4, {LANE}\nv_and_b32 v23, 15, {LANE}")
        e("v_lshlrev_b32 v24, 10, v22\nv_lshl_add_u32 v24, v20, 7, v24\nv_lshl_add_u32 v24, v21, 3, v24")
        e(f"v_lshrrev_b32 v20, 1, v20\nv_and_b32 v21, 1, v22\nv_lshl_or_b32 v20, v21, 1, v20\nv_xor_b32 v20, {WV}, v20\nv_lshlrev_b32 v20, 5, v20")
        e(f"v_add3_u32 v14, v24, v20, {RINGB}\nv_xor_b32 v15, 32, v14\nv_xor_b32 v16, 64, v14\nv_xor_b32 v17, 0x60, v14")
        e(f"s_lshl_b32 s51, {FT}, 7\ns_lshl_b32 s15, {WV}, 5\ns_add_u32 s51, s51, s15\nv_lshl_add_u32 v24, v22, 3, s51")
        e("global_load_dwordx2 v[126:127], v24, s[38:39]", "b1")
        e(f"v_mul_u32_u24 v19, 10240, v22\nv_lshl_add_u32 v19, v23, 4, v19\ns_lshl_b32 s51, {SUB}, 8\nv_add_u32 v120, s51, v19")
        e("v_xor_b32 v121, 0x100, v120\nv_xor_b32 v122, 0x200, v120\nv_xor_b32 v123, 0x300, v120")
        e(f"v_lshrrev_b32 v24, 1, v22\nv_mul_u32_u24 v24, 10240, v24\nv_lshl_add_u32 v24, v23, 4, v24\nv_xor_b32 v25, {SUB}, v21\nv_lshl_add_u32 v6, v25, 8, v24\nv_xor_b32 v7, 0x200, v6")
        e(f"v_subrev_u32 v124, {C0}, v23\nv_mul_u32_u24 v124, {REGSZ}, v124\nv_lshl_add_u32 v124, v22, 4, v124")
        e(f"s_lshl_b32 s51, {WV}, 10\ns_add_u32 s51, s51, {REG0 + UO + 512}\nv_add_u32 v124, s51, v124")
        e(f"s_bfm_b32 s100, {NCH}, {C0}\ns_lshl_b32 s51, s100, 16\ns_or_b32 s100, s100, s51\ns_mov_b32 s101, s100")
        e("v_mul_u32_u24 v18, 1280, v23\nv_lshl_add_u32 v18, v22, 3, v18\nv_lshlrev_b32 v115, 12, v23\nv_lshl_add_u32 v115, v22, 4, v115")
        e("v_lshl_add_u32 v8, v23, 1, s95")
        e("global_load_ushort v114, v8, s[42:43]", "b1")
        if self.o["spa"]:
            n_ = self.o["spa"]; f_ = 12 - n_
            P2_ = [o_ + list(range(f_, 12)) for o_ in make_perm(f_, 4, min(2, f_ // 4), self.o["duty2"])] if f_ else [list(range(12))] * 4
        elif self.o["spk"]:
            n_ = self.o["spk"]; own = [2 * i for i in range(n_)]
            rest = [st for st in range(2 * n_, 12, 2)] + [st for st in range(1, 12, 2)]
            P2_ = [own + rest[(j * len(rest)) // 4:] + rest[:(j * len(rest)) // 4] for j in range(4)]
        elif self.o["perm"]: P2_ = make_perm(12, 4, self.o["first2"], self.o["duty2"], self.o["dpp2"])
        else: P2_ = [[(3 * j + i) % 12 for i in range(12)] for j in range(4)]
        e(f"s_lshr_b32 s15, {DT2}, 1" if self.o["p2"] else f"s_and_b32 s15, {IDX}, 3")
        for j, o_ in enumerate(P2_):
            lo, hi = pack_perm(o_)
            if j == 0: e(f"s_mov_b32 s80, {lo:#x}\ns_mov_b32 s81, {hi:#x}")
            else: e(f"s_cmp_eq_u32 s15, {j}\ns_cselect_b32 s80, {lo:#x}, s80\ns_cselect_b32 s81, {hi:#x}, s81")
        e(f"s_and_b32 s15, {ST2}, {self.o['sg2']}\ns_and_b32 s51, {DT2 if self.o['p2'] else XCD}, 1\ns_xor_b32 s51, s51, s15\ns_mul_i32 s51, s51, 0x11111111\ns_xor_b32 s80, s80, s51\ns_xor_b32 s81, s81, s51")
        e(f"s_mul_i32 s86, {WV}, {64*10240}\ns_lshl_b32 s51, {DT}, 10\ns_add_u32 s86, s86, s51\ns_add_u32 s86, s86, {HB}")
    def xr(self, j): return [v(104, 4), v(110, 4), v(116, 4)][j]
    def xload(self, p):
        e = p.e
        e(f"s_lshl_b32 s94, {ST2}, 6\ns_lshl_b32 s51, {WV}, 4\ns_add_u32 s94, s94, s51\ns_lshl_b32 s95, s94, 1")
        e(f"s_mul_i32 s94, s94, 1280\ns_mul_i32 s51, {DT2}, 160\ns_add_u32 s94, s94, s51")
        e(f"v_and_b32 v109, 15, {LANE}\nv_mul_u32_u24 v109, 1280, v109\nv_and_b32 v108, 48, {LANE}\nv_add_u32 v108, v108, v109")
        for j in range(3): e(f"buffer_load_dwordx4 {self.xr(j)}, v108, {SX}, s94 offen offset:{64*j}", f"x{j}")
    def xmm(self, p):
        e = p.e; ln_ = self.label("nsw")
        e("v_lshlrev_b32 v114, 16, v114")
        for i in range(20): e(f"v_mov_b32 v{84+i}, v114")
        e(f"v_lshrrev_b32 v22, 4, {LANE}\nv_and_b32 v23, 15, {LANE}")
        e("v_lshlrev_b32 v24, 3, v22\nv_sub_u32 v24, v23, v24\nv_and_b32 v25, 1, v24\nv_lshlrev_b32 v25, 4, v25\nv_mov_b32 v26, 0x3f80\nv_lshlrev_b32 v25, v25, v26\nv_ashrrev_i32 v24, 1, v24")
        for q in range(4): e(f"v_cmp_eq_u32 vcc, {q}, v24\nv_cndmask_b32 v{120+q}, 0, v25, vcc")
        for q in range(4): e(f"v_cmp_eq_i32 vcc, {q-8}, v24\nv_cndmask_b32 v{124+q}, 0, v25, vcc")
        for di in range(5):
            e(f"v_mfma_f32_16x16x32_bf16 {self.acc2(di,0)}, {v(124 if di & 1 else 120, 4)}, {self.xr(di//2)}, {self.acc2(di,0)}")
        e(f"s_and_b32 s51, {WV}, 1\ns_cmp_eq_u32 s51, 0\ns_cbranch_scc1 {ln_}")
        for q in range(4): e(f"v_swap_b32 v{120+q}, v{124+q}")
        e(f"{ln_}:")
    def acc1(self, t, ds): return [v(72 + 4 * ds, 4), v(88 + 4 * ds, 4), a(96 + 4 * ds, 4), a(112 + 4 * ds, 4)][t]
    def acc2(self, di, ss): return v(84 + 4 * di, 4) if ss == 0 else a(68 + 4 * (di * 3 + ss - 1), 4)

    def pwrite(self, p, g, col):
        nf = 4 if g == 1 else 5
        for t in ((1, 2, 3) if g == 1 else (2, 3)):
            left = (nf - col) * (3 if g == 1 else 2) - (t - (1 if g == 1 else 2))
            for _ in range(-(-len(self.deferred) // left) if col == nf - 1 else (2 if len(self.deferred) > left else 1)):
                if self.deferred: p.e(self.deferred.pop(0))
            if g == 1: p.e(f"ds_write_b128 v21, {self.acc1(t, col)} offset:{(t-1)*4096+col*1024}", "r1w")
            else: p.e(f"ds_write_b128 v21, {self.acc2(col, t)} offset:{(t-1)*5120+col*1024}", "r2w")
    def gemm_loop(self, p, g, nks, nf, ns, nd, nt, ld, mfma, extra):
        NB = self.NB[g]; n = nks * nf
        self.deferred = []
        assert ns == 3 * nf or not self.o["df%d" % g]
        for i in range(ns): p.ext(ld(i))
        nl = ns
        G_ = 4 * nf
        for ks in range(nks):
            side = Prog()
            if nd < nks and nd - RS < nt:
                if nd >= RS: side.wlg(f"t{g}_{nd-RS}")
                side.ext(self.dma(g, nd)); nd += 1
            if nt < nks and nt < nd and nt - NB < ks:
                side.ext(self.tr(g, nt)); nt += 1
            early, pre, post = extra(ks)
            gaps = [[] for _ in range(G_)]
            cost = [0] * G_
            def c_of(grp):
                c = 0
                for it, _ in grp:
                    if isinstance(it, tuple): c += 1
                    elif it.startswith(("buffer_", "global_")): c += 3
                    else: c += 1
                return c
            for di in range(1, nf): cost[4 * di - 1] += 1
            cost[G_ - 1] += 2
            for di in range(nf):
                if nf * ks + di >= 1 and nl < n:
                    its = ld(nl).items; nl += 1
                    gi = 4 * di
                    gaps[gi].append(("z", its[-1:])); cost[gi] += 3
                    for k, it in enumerate(its[:-1]):
                        gj = gi - (len(its) - 1 - k)
                        assert gj >= 0
                        gaps[gj].append(("y", [it])); cost[gj] += 1
            pos = 0
            for grp in groups_of(early):
                gi = min(3, 1 + pos); pos += 1
                gaps[gi].append(("a", grp)); cost[gi] += c_of(grp)
            rest = groups_of(pre) + groups_of(side)
            start = 4 if early.items else 1
            tot = sum(c_of(x) for x in rest) + sum(cost[start:])
            gi = start
            for grp in rest:
                lvl = max(2.0, tot / (G_ - start))
                while gi < G_ - 1 and cost[gi] + c_of(grp) > lvl + 0.5 and cost[gi] > 0: gi += 1
                gaps[gi].append(("m", grp)); cost[gi] += c_of(grp)
            if ks == nks - 1: p.e(f"v_add_u32 v21, {RINGB}, {L16}")
            p.wlg(f"t{g}_{ks}")
            for di in range(nf):
                p.wvm(f"act{ks}_{di}")
                for ss in range(4):
                    if ss == 0 and ks >= nks - self.o["df%d" % g] and not (ks == nks - 3 and di == 0): self.deferred.append(mfma(ks, di, ss))
                    else: p.e(mfma(ks, di, ss))
                    for key, grp in sorted(gaps[4 * di + ss], key=lambda x: x[0]): p.items.extend(grp)
                if ks == nks - 1 and self.o["ew"] and di >= 1: self.pwrite(p, g, di - 1)
            p.ext(post)
        assert nl == n and nd == nks and nt == nks

    def gemm1(self, p):
        e = p.e; o = self.o
        HR, ns = 24, o['ns1']
        nd = o['free1']
        def more():
            nonlocal nd
            if nd >= RS: p.wlg(f"t1_{nd-RS}")
            p.ext(self.dma(1, nd, thr=nd < o['nthr'])); nd += 1
            if nd == o["PS1"]: self.sig(p, Y_P1, 20)
            if o.get("fine") and nd <= 9: self.stamp(p)
        while nd < o["lead1"]: more()
        p.wvm("b1")
        for ds in range(4): self.unpack(p, 126, 72 + 4 * ds, 2)
        for j in range(o["P1"]):
            p.ext(self.tr(1, j))
            if j == 2 and not o.get('fine'): self.stamp(p)
            if nd < o["D1"]: more()
        while nd < o["D1"]:
            p.wvm(f"w1_{nd-o['lead1']}"); more()
        self.stamp(p)
        self.spin(p, Y_F1, 1, 20, sleep=1)
        e(f"ds_read_b32 {VTAG}, {VSY} offset:{4*Y_TAG}\ns_setprio 2", "tag")
        self.stamp(p)
        def ld(i):
            ks, ds = divmod(i, 4); q = Prog()
            if ds == 0: self.kk(q, 1, ks, "s76", 40960, "s86")
            q.e(f"buffer_load_dwordx4 {v(HR + 4 * (i % ns), 4)}, v{120+ds}, {SWS}, s76 offen sc1", f"act{ks}_{ds}")
            return q
        def mfma(ks, ds, t):
            c = self.acc1(t, ds); src = "0" if (ks == 0 and t > 0) else c
            return f"v_mfma_f32_16x16x32_bf16 {c}, {a(16*(ks%6)+4*t,4)}, {v(HR + 4 * ((4*ks+ds) % ns), 4)}, {src}"
        def extra(ks):
            pre = Prog(); post = Prog(); q = Prog()
            q.e(f"s_bfe_u32 s14, s{74 + ks // 8}, {(4 << 16) | (4 * (ks % 8)):#x}\nv_lshl_add_u32 v125, s14, 6, v124")
            q.e(f"s_mov_b64 exec, s[100:101]\nds_write_b128 v125, {v(HR + 4 * ((4 * ks) % ns), 4)}\ns_mov_b64 exec, -1", "uc")
            if ks % 4 == 3: self.sig(pre, Y_U + ks // 4, 20)
            if o["ebpos"] == 3:
                assert o["ebk"] >= 13
                per = -(-o["eb"] // (16 - o["ebk"]))
                for j in range(o["eb"]):
                    if o["ebk"] + j // per == ks: pre.ext(self.dma(2, j))
            if ks in (0, 5, 10): self.stamp(post)
            return q, pre, post
        self.gemm_loop(p, 1, 16, 4, ns, nd, o["P1"], ld, mfma, extra)
        self.stamp(p)
    def gemm1_epi(self, p):
        e = p.e; RD = 24
        if self.o["ebpos"] == 0:
            for ks in range(self.o["eb"]): p.ext(self.dma(2, ks))
        for ds in range(3 if self.o["ew"] else 0, 4): self.pwrite(p, 1, ds)
        assert not self.deferred
        self.sig(p, Y_PART, 20)
        if self.o["ebpos"] == 1:
            for ks in range(self.o["eb"]): p.ext(self.dma(2, ks))
        for t in range(1, 4):
            e(f"s_xor_b32 s51, {WV}, {t}\ns_mul_i32 s51, s51, {RINGW}\ns_add_u32 s51, s51, {RING0 + (t-1)*4096}\nv_add_u32 v{20+t}, s51, {L16}")
        e(f"s_lshl_b32 s50, {FT}, 3\ns_lshl_b32 s51, {WV}, 1\ns_add_u32 s50, s50, s51\ns_mul_i32 s50, s50, 10240")
        e(f"s_lshl_b32 s51, {DT}, 10\ns_add_u32 s50, s50, s51\ns_add_u32 s86, s50, {GB}")
        e(f"s_mul_i32 s89, {DT}, 24\ns_add_u32 s89, s89, {FT}\ns_lshl_b32 s89, s89, 7\ns_add_u32 s89, s89, {F2}")
        c1 = -2 * 0.7978845608028654 * 1.4426950408889634; c3 = c1 * 0.044715
        e(f"s_mov_b32 s90, {fbits(c3)}\nv_mov_b32 v126, {fbits(c1)}")
        if self.o.get("fine2"): self.stamp(p)
        self.spin(p, Y_PART, 4, 20)
        if self.o.get("fine2"): self.stamp(p)
        for q in range(4):
            for t in range(3): e(f"ds_read_b128 {v(RD+16*t+4*q,4)}, v{21+t} offset:{q*1024}", f"r1r{q}")
        if self.o["ebpos"] == 2:
            for ks in range(self.o["eb"]): p.ext(self.dma(2, ks))
        for pr in range(2):
            p.wlg(f"r1r{2*pr+1}")
            q = [(72 + 8 * pr + i, RD + 8 * pr + i, 88 + 8 * pr + i) for i in range(8)]
            if self.o["epk"]:
                q2 = q[::2]
                for x, r, t in q2: e(f"v_pk_add_f32 {v(x,2)}, {v(x,2)}, {v(r,2)}\nv_pk_add_f32 {v(r+16,2)}, {v(r+16,2)}, {v(r+32,2)}")
                for x, r, t in q2: e(f"v_pk_add_f32 {v(x,2)}, {v(x,2)}, {v(r+16,2)}")
                for x, r, t in q2: e(f"v_pk_mul_f32 {v(t,2)}, {v(x,2)}, {v(x,2)}")
                for x, r, t in q2: e(f"v_pk_fma_f32 {v(t,2)}, {v(t,2)}, s[90:91], v[126:127] op_sel_hi:[1,0,0]")
                for x, r, t in q2: e(f"v_pk_mul_f32 {v(t,2)}, {v(t,2)}, {v(x,2)}")
                for x, r, t in q: e(f"v_exp_f32 v{t}, v{t}")
                for x, r, t in q2: e(f"v_pk_add_f32 {v(t,2)}, {v(t,2)}, 1.0 op_sel_hi:[1,0]")
                for x, r, t in q: e(f"v_rcp_f32 v{t}, v{t}")
                for x, r, t in q2: e(f"v_pk_mul_f32 {v(t,2)}, {v(t,2)}, {v(x,2)}")
            else:
                for x, r, t in q: e(f"v_add_f32 v{x}, v{x}, v{r}\nv_add_f32 v{r+16}, v{r+16}, v{r+32}")
                for x, r, t in q: e(f"v_add_f32 v{x}, v{x}, v{r+16}")
                for x, r, t in q: e(f"v_mul_f32 v{t}, v{x}, v{x}")
                for x, r, t in q: e(f"v_fma_f32 v{t}, v{t}, s90, v126")
                for x, r, t in q: e(f"v_mul_f32 v{t}, v{t}, v{x}")
                for x, r, t in q: e(f"v_exp_f32 v{t}, v{t}")
                for x, r, t in q: e(f"v_add_f32 v{t}, 1.0, v{t}")
                for x, r, t in q: e(f"v_rcp_f32 v{t}, v{t}")
                for x, r, t in q: e(f"v_mul_f32 v{t}, v{t}, v{x}")
            o = 56 + 8 * pr
            for i in range(4): e(f"v_cvt_pk_bf16_f32 v{o+i}, v{q[2*i][2]}, v{q[2*i+1][2]}")
            e(f"v_permlane16_swap_b32 v{o}, v{o+2}\nv_permlane16_swap_b32 v{o+1}, v{o+3}")
            e(f"buffer_store_dwordx4 {v(o,4)}, v{6+pr}, {SWS}, s86 offen sc1", "gs")
        if self.o["epifirst"]: self.sig(p, Y_EPI, 20)
        self.stamp(p)
        assert self.o["eb"] + self.o["e2"] <= 4
        for ks in range(self.o["eb"], self.o["eb"] + self.o["e2"]): p.ext(self.dma(2, ks))
        self.xmm(p)
        if not self.o["epifirst"]: self.sig(p, Y_EPI, 20)
        for ks in range(min(self.o["eb"], self.o["P2"])): p.ext(self.tr(2, ks))
        p.wvm("gs")
        l = self.label("nolast")
        e(f"v_mov_b32 v20, 1\ns_mov_b64 exec, 1\nds_add_rtn_u32 v20, {VSY}, v20 offset:{4*Y_G}\ns_mov_b64 exec, -1\ns_waitcnt lgkmcnt(0)\nv_readfirstlane_b32 s79, v20")
        e(f"s_cmp_lg_u32 s79, 3\ns_cbranch_scc1 {l}")
        self.flag_store(p, "s89", "@")
        e(f"{l}:")
        self.stamp(p)
    def gemm2(self, p, spare):
        e = p.e; o = self.o
        GR, ns = 24, o['ns2']
        e(f"s_mul_i32 s86, {WV}, {48*10240}\ns_mul_i32 s51, {DT2}, 1280\ns_add_u32 s86, s86, s51\ns_add_u32 s86, s86, {GB}")
        e(f"s_mul_i32 s88, {DT2}, {80*4096}\ns_and_b32 s51, s95, 0xffffffc0\ns_add_u32 s88, s88, s51\ns_add_u32 s88, s88, {YT}")
        e(f"v_and_b32 v116, 15, {LANE}\nv_mul_u32_u24 v116, 1280, v116\nv_and_b32 v117, 16, {LANE}\nv_lshl_add_u32 v116, v117, 1, v116\nv_lshrrev_b32 v117, 5, {LANE}\nv_lshl_add_u32 v116, v117, 4, v116")
        e(f"s_and_b32 s51, {WV}, 1\ns_lshl_b32 s51, s51, 26\nv_add_u32 v109, s51, v115\nv_xor_b32 v115, 0x4000000, v109")
        nd = o["eb"] + o["e2"]; nt = min(o["eb"], o["P2"])
        self.spin(p, Y_G, 4, 20)
        def more():
            nonlocal nd
            if nd >= RS: p.wlg(f"t2_{nd-RS}")
            p.ext(self.dma(2, nd)); nd += 1
            if nd == o["PS2"]: self.sig(p, Y_P2, 20)
        while nd < min(o["D2"], nt + o["lead2"]): more()
        while nt < o["P2"]:
            p.ext(self.tr(2, nt)); nt += 1
            if nd < o["D2"]: more()
        while nd < o["D2"]:
            p.wvm(f"w2_{nd-o['lead2']}"); more()
        self.stamp(p)
        if o["fg"]:
            e(f"s_lshl_b32 s51, {WV}, 2\nv_add_u32 v21, s51, {VSY}")
            self.spin(p, Y_Q, 1, 20, sleep=1, base="v21")
        else: self.spin(p, Y_F2, 1, 20, sleep=1)
        self.stamp(p)
        def ld(i):
            ks, di = divmod(i, 5); q = Prog()
            if di == 0: self.kk(q, 2, ks, "s76", 40960, "s86")
            q.e(f"buffer_load_dwordx4 {v(GR + 4 * (i % ns), 4)}, v19, {SWS}, s76 offen offset:{256*di} sc1", f"act{ks}_{di}")
            return q
        def mfma(ks, di, ss):
            c = self.acc2(di, ss); src = "0" if (ks == 0 and ss > 0) else c
            return f"v_mfma_f32_16x16x32_bf16 {c}, {v(GR + 4 * ((5*ks+di) % ns), 4)}, {a(16*(ks%4)+4*ss,4)}, {src}"
        yk = o["ychk"]; assert yk >= 9
        def extra(ks):
            pre = Prog(); post = Prog()
            if ks == o["ytrig"]: self.sig(post, Y_P3, 20)
            if ks == yk:
                self.spin(post, Y_F3, 1, 20, sleep=2)
                for di in range(5):
                    post.e(f"buffer_load_dwordx4 {a(64 if di == 4 else 4*di,4)}, v{115 if di & 1 else 109}, {SWS}, s88 offen sc1", f"y{di}")
                    post.e("s_add_u32 s88, s88, 65536")
            if ks in (0, 3, 7): self.stamp(post)
            return Prog(), pre, post
        self.gemm_loop(p, 2, 12, 5, ns, nd, nt, ld, mfma, extra)
        self.stamp(p)
        for di in range(4 if o["ew"] else 0, 5): self.pwrite(p, 2, di)
        assert not self.deferred
        e("v_mov_b32 v20, v21")
        for t in range(1, 4):
            e(f"s_xor_b32 s51, {WV}, {t}\ns_mul_i32 s51, s51, {RINGW}\ns_add_u32 s51, s51, {RING0 + (t-1)*5120}\nv_add_u32 v{20+t}, s51, {L16}")
        if o.get("fine2"): self.stamp(p)
        for di in range(5):
            p.wvm(f"y{di}")
            e(f"v_mfma_f32_16x16x32_bf16 {self.acc2(di,1)}, {a(64 if di == 4 else 4*di,4)}, v[124:127], {self.acc2(di,1)}")
        for di in range(5):
            e(f"v_mfma_f32_16x16x32_bf16 {self.acc2(di,0)}, {a(64 if di == 4 else 4*di,4)}, v[120:123], {self.acc2(di,0)}")
        for di in range(5): e(f"ds_write_b128 v20, {self.acc2(di,1)} offset:{di*1024}", "r2w")
        if o.get("fine2"): self.stamp(p)
        e("s_waitcnt lgkmcnt(0)\ns_barrier")
        if o.get("fine2"): self.stamp(p)
        for di in range(5):
            for t in range(3): e(f"ds_read_b128 {v(GR+12*di+4*t,4)}, v{21+t} offset:{di*1024}", f"r2r{di}")
        for di in range(5):
            c = 84 + 4 * di; r = GR + 12 * di
            p.wlg(f"r2r{di}")
            for hq in range(2): e(f"v_pk_add_f32 {v(r+2*hq,2)}, {v(r+2*hq,2)}, {v(r+4+2*hq,2)}\nv_pk_add_f32 {v(c+2*hq,2)}, {v(c+2*hq,2)}, {v(r+8+2*hq,2)}")
            for hq in range(2): e(f"v_pk_add_f32 {v(c+2*hq,2)}, {v(c+2*hq,2)}, {v(r+2*hq,2)}")
            for hq in range(2): e(f"v_cvt_pk_bf16_f32 v{104+2*di+hq}, v{c+2*hq}, v{c+2*hq+1}")
            if o["ow4"] and di < 4:
                if di & 1:
                    b = 104 + 2 * (di - 1)
                    e(f"v_permlane16_swap_b32 v{b}, v{b+2}\nv_permlane16_swap_b32 v{b+1}, v{b+3}")
                    e(f"buffer_store_dwordx4 {v(b,4)}, v116, {SOUT}, s94 offen offset:{32*(di-1)} {o['oflag']}", "os")
            else: e(f"buffer_store_dwordx2 {v(104+2*di,2)}, v18, {SOUT}, s94 offen offset:{32*di} {o['oflag']}", "os")
        self.stamp(p)

    def main(self):
        self.role = "main"
        p = Prog(); e = p.e
        self.main_start(p)
        if self.o["xk"] == -1: self.xload(p)
        for ks in range(self.o["pre1"]): p.ext(self.dma(1, ks))
        if self.o["xk"] == -2: self.xload(p)
        self.ln(p)
        e(f"s_setprio {self.o['mprio']}")
        if self.o.get("dly_w"): e(f"s_sleep {self.o['dly_w']}")
        if self.o["xk"] == 0: self.xload(p)
        for ks in range(self.o["pre1"], self.o["free1"]): p.ext(self.dma(1, ks))
        if self.o["xk"] == 1: self.xload(p)
        self.stamp(p)
        self.main_setup2(p)
        e(f"s_cmp_lt_u32 {IDX}, 30\ns_cbranch_scc1 L_g1")
        q = Prog()
        q.e("s_waitcnt vmcnt(0)")
        self.xmm(q)
        if self.o["spw"]: self.spin(q, Y_F1, 1, 20, sleep=16)
        else: self.spin(q, Y_PUB, 2, 20, sleep=4)
        for ks in range(self.o["eb"] + self.o["e2"]): q.ext(self.dma(2, ks))
        for ks in range(min(self.o["eb"], self.o["P2"])): q.ext(self.tr(2, ks))
        self.sig(q, Y_G, 20)
        q.e("s_waitcnt vmcnt(0) lgkmcnt(0)\ns_branch L_g2")
        for line in finalize(q).split("\n"):
            if line.strip(): e(line.strip() if line.strip().endswith(":") else "@" + line.strip())
        e("L_g1:")
        self.gemm1(p)
        self.gemm1_epi(p)
        e("L_g2:")
        self.gemm2(p, False)
        e(f"s_or_b32 s51, {WG}, {WV}\ns_cmp_lg_u32 s51, 0\ns_cbranch_scc1 L_noep")
        e(f"s_mov_b64 exec, 1\nbuffer_store_dword {VTAG}, {VZ}, {SWS}, 0 offen\ns_mov_b64 exec, -1")
        e("L_noep:")
        if self.o.get("gmin"):
            e(f"global_load_dword v30, {VZ}, s[46:47] sc1\ns_waitcnt vmcnt(0)\nv_readfirstlane_b32 s96, v30\ns_nop 1\ns_not_b32 s96, s96")
        if self.o.get("hold"):
            e(f"L_hold:\ns_memrealtime s[82:83]\ns_waitcnt lgkmcnt(0)\ns_sub_u32 s82, s82, s96\ns_cmp_lt_u32 s82, {self.o['hold']}\ns_cbranch_scc1 L_hold")
        self.finish(p)
        return p

    def red32(self, p, regs, tmp):
        for m in ("quad_perm:[1,0,3,2]", "quad_perm:[2,3,0,1]", "row_half_mirror", "row_mirror"):
            for r in regs: p.e(f"v_add_f32_dpp v{r}, v{r}, v{r} {m} row_mask:0xf bank_mask:0xf")
        for i, r in enumerate(regs): p.e(f"v_mov_b32 v{tmp+i}, v{r}")
        for i, r in enumerate(regs): p.e(f"v_permlane16_swap_b32 v{r}, v{tmp+i}")
        for i, r in enumerate(regs): p.e(f"v_add_f32 v{r}, v{r}, v{tmp+i}")
    RAW = [4, 5, 6, 7, 8, 12, 13, 14, 15, 16, 17, 18]
    def conv_start(self, p):
        e = p.e
        e(f"s_setprio {self.o['kprio']}\ns_mul_i32 {REGB}, s14, {REGSZ}\ns_add_u32 {REGB}, {REGB}, {REG0}")
        e("s_waitcnt lgkmcnt(0)")
    def serv_start(self, p):
        p.e("s_setprio 3")
        self.srd(p, 60, 40, 6291456)
    def ln(self, p):
        e = p.e
        RAW, F, D, T, H = 20, 30, 50, 70, 90
        inv = fbits(1.0 / 640)
        e(f"s_lshr_b32 s51, {WV}, 1\ns_mul_i32 s51, s51, {REGSZ}\ns_and_b32 s15, {WV}, 1\ns_mul_i32 s15, s15, {2*PT}\ns_add_u32 s51, s51, s15\ns_add_u32 s51, s51, {LNT}")
        e(f"v_mul_u32_u24 v102, {PT}, v120\nv_add_u32 v102, s51, v102\nv_lshl_add_u32 v101, v122, 3, v102\nv_lshl_add_u32 v100, v122, 4, v102")
        p.wvm("x")
        self.stamp(p)
        self.unpack(p, RAW, F, 10)
        def psum(src, dst):
            e(f"v_pk_add_f32 {v(dst,2)}, {v(src,2)}, {v(src+2,2)}\nv_pk_add_f32 {v(dst+2,2)}, {v(src+4,2)}, {v(src+6,2)}")
            for i in range(4, 10): e(f"v_pk_add_f32 {v(dst+2*(i&1),2)}, {v(dst+2*(i&1),2)}, {v(src+2*i,2)}")
            e(f"v_pk_add_f32 {v(dst,2)}, {v(dst,2)}, {v(dst+2,2)}\nv_add_f32 v{dst}, v{dst}, v{dst+1}")
        def psq(src, dst):
            e(f"v_pk_mul_f32 {v(dst,2)}, {v(src,2)}, {v(src,2)}\nv_pk_mul_f32 {v(dst+2,2)}, {v(src+2,2)}, {v(src+2,2)}")
            for i in range(2, 10): e(f"v_pk_fma_f32 {v(dst+2*(i&1),2)}, {v(src+2*i,2)}, {v(src+2*i,2)}, {v(dst+2*(i&1),2)}")
            e(f"v_pk_add_f32 {v(dst,2)}, {v(dst,2)}, {v(dst+2,2)}\nv_add_f32 v{dst}, v{dst}, v{dst+1}")
        def rstd(var, out):
            e(f"v_max_f32 v{var}, 0, v{var}")
            self.rbf(p, var); e(f"v_add_f32 v{var}, {fbits(1e-5)}, v{var}"); self.rbf(p, var)
            e(f"v_sqrt_f32 v{var}, v{var}"); self.rbf(p, var); e(f"v_rcp_f32 v{out}, v{var}")
        psum(F, T); self.red32(p, [T], T + 2)
        e(f"v_mul_f32 v{T}, {inv}, v{T}\nv_mov_b32 v{T+4}, v{T}"); self.rbf(p, T + 4)
        for i in range(10): e(f"v_pk_add_f32 {v(D+2*i,2)}, {v(F+2*i,2)}, {v(T+4,2)} op_sel_hi:[1,0] neg_lo:[0,1] neg_hi:[0,1]")
        e(f"v_sub_f32 v{T+5}, v{T}, v{T+4}")
        psq(D, T); self.red32(p, [T], T + 2)
        e(f"v_mul_f32 v{T}, {inv}, v{T}\nv_fma_f32 v{T}, -v{T+5}, v{T+5}, v{T}")
        rstd(T, T + 6)
        for i in range(10): e(f"v_pk_mul_f32 {v(D+2*i,2)}, {v(D+2*i,2)}, {v(T+6,2)} op_sel_hi:[1,0]")
        for i in range(10): e(f"v_cvt_pk_bf16_f32 v{RAW+i}, v{D+2*i}, v{D+2*i+1}")
        self.unpack(p, RAW, F, 10)
        psum(F, T); psq(F, T + 4); self.red32(p, [T, T + 4], T + 2)
        e(f"v_mul_f32 v{T}, {inv}, v{T}\nv_mul_f32 v{T+4}, {inv}, v{T+4}\nv_fma_f32 v{T+4}, -v{T}, v{T}, v{T+4}")
        self.rbf(p, T)
        rstd(T + 4, T + 6)
        e(f"v_mul_f32 v{T+2}, v{T}, v{T+6}\nv_lshrrev_b32 v{T+4}, 16, v{T+4}\nv_or_b32 v{T+4}, v{T+4}, v{T}")
        for i in range(10): e(f"v_pk_fma_f32 {v(D+2*i,2)}, {v(F+2*i,2)}, {v(T+6,2)}, {v(T+2,2)} op_sel_hi:[1,0,0] neg_lo:[0,0,1] neg_hi:[0,0,1]")
        e(f"ds_write_b32 v102, v{T+4} offset:1280", "lnw")
        for i in range(10): e(f"v_cvt_pk_bf16_f32 v{H+i}, v{D+2*i}, v{D+2*i+1}")
        e(f"ds_write_b128 v100, {v(H,4)}\nds_write_b128 v100, {v(H+4,4)} offset:512\nds_write_b64 v101, {v(H+8,2)} offset:1024", "lnw")
        self.sig(p, Y_LN, T)

    def serv(self):
        self.role = "serv"
        p = Prog(); e = p.e; o = self.o
        self.serv_start(p)
        self.stamp(p)
        e(f"v_bfe_u32 v12, {LANE}, 2, 2\nv_mul_u32_u24 v12, {PT}, v12\nv_lshrrev_b32 v13, 4, {LANE}\nv_lshl_add_u32 v12, v13, 5, v12")
        e(f"v_and_b32 v13, 3, {LANE}\nv_lshl_add_u32 v12, v13, 3, v12\nv_add_u32 v12, {LNT}, v12")
        e(f"s_mul_i32 s84, {WG}, 10240\ns_add_u32 s84, s84, {HB}\ns_add_u32 s85, s84, 4096\ns_add_u32 s86, s84, 8192")
        e(f"s_lshl_b32 s87, {WG}, 4\ns_add_u32 s87, s87, {STAT}\nv_lshlrev_b32 v13, 12, {LANE}")
        e(f"s_lshr_b32 s89, {WG}, 2\ns_lshl_b32 s89, s89, 7\ns_and_b32 s51, {WG}, 3\ns_lshl2_add_u32 s89, s51, s89\ns_add_u32 s89, s89, {F1}\nv_lshlrev_b32 v14, 7, {LANE}")
        self.boxes_build(p)
        e("s_waitcnt lgkmcnt(0)")
        self.mktag(p)
        e(f"ds_write_b32 {VSY}, {VTAG} offset:{4*Y_TAG}")
        self.spin(p, Y_LN, 4, 20, sleep=1)
        if self.o.get("dly_p"): e(f"s_sleep {self.o['dly_p']}")
        self.stamp(p)
        for b in range(11):
            e(f"ds_read_b64_tr_b16 {v(24+4*b,2)}, v12 offset:{128*b}\nds_read_b64_tr_b16 {v(26+4*b,2)}, v12 offset:{128*b+REGSZ}", f"lr{b}")
            if b >= 3:
                c = b - 3; p.wlg(f"lr{c}")
                e(f"buffer_store_dwordx4 {v(24+4*c,4)}, {L16}, {SWS}, s{84 + c//4} offen offset:{(c%4)*1024} sc1")
        for c in range(8, 10):
            p.wlg(f"lr{c}")
            e(f"buffer_store_dwordx4 {v(24+4*c,4)}, {L16}, {SWS}, s{84 + c//4} offen offset:{(c%4)*1024} sc1")
        p.wlg("lr10")
        e(f"s_mov_b64 exec, 3\nbuffer_store_dwordx4 v[64:67], v13, {SWS}, s87 offen sc1\ns_mov_b64 exec, -1")
        self.sig(p, Y_PUB, 20)
        self.stamp(p)
        e(f"s_mul_i32 s50, {DT2}, 80\ns_lshr_b32 s50, s50, 6\ns_mul_i32 s92, s50, {24*128}\ns_add_u32 s92, s92, {F2}")
        e(f"v_min_u32 v15, 47, {LANE}\nv_lshlrev_b32 v15, 7, v15\nv_min_u32 v16, 29, {LANE}\nv_lshlrev_b32 v16, 7, v16")
        e(f"s_mul_i32 s93, {DT2}, {30*128}\ns_add_u32 s93, s93, {F3}")
        e("s_waitcnt vmcnt(0)")
        if self.o.get("dly_f"):
            self.sig(p, Y_PUB, 20); e(f"s_sleep {self.o['dly_f']}")
        self.flag_store(p, "s89")
        self.sig(p, Y_PUB, 20)
        self.stamp(p)
        e(f"s_cmp_lt_u32 {IDX}, 30\ns_cbranch_scc1 L_s1")
        e(f"v_lshrrev_b32 v17, 3, {LANE}\nv_lshlrev_b32 v17, 12, v17\nv_and_b32 v18, 7, {LANE}\nv_lshl_add_u32 v17, v18, 7, v17")
        if o["spa"]:
            e(f"s_lshl_b32 s88, {SUB}, 10\ns_and_b32 s51, {IDX}, 1\ns_mul_i32 s51, s51, {768*4096}\ns_add_u32 s88, s88, s51\ns_add_u32 s88, s88, {(12 - o['spa']) * 32 * 4096}")
            e(f"s_mov_b32 s87, 0\nL_spf:")
            for q in range(2):
                for i in range(4):
                    e(f"s_add_u32 s51, s88, {(q*384 + 8*i)*4096}\nbuffer_load_dword v{24+4*q+i}, v17, {SW2}, s51 offen")
            e(f"s_add_u32 s88, s88, {32*4096}\ns_add_u32 s87, s87, 1\ns_waitcnt vmcnt(8)\ns_cmp_lt_u32 s87, {o['spa']}\ns_cbranch_scc1 L_spf")
        elif o["spk"]:
            e(f"s_lshl_b32 s88, {SUB}, 10\ns_and_b32 s51, {IDX}, 1\ns_mul_i32 s51, s51, {768*4096}\ns_add_u32 s88, s88, s51\ns_and_b32 s51, {XCD}, 1\ns_lshl_b32 s51, s51, 17\ns_add_u32 s88, s88, s51")
            e(f"s_mov_b32 s87, 0\nL_spf:")
            for q in range(2):
                for i in range(4):
                    e(f"s_add_u32 s51, s88, {(q*384 + 8*i)*4096}\nbuffer_load_dword v{24+4*q+i}, v17, {SW2}, s51 offen")
            e(f"s_add_u32 s88, s88, {64*4096}\ns_add_u32 s87, s87, 1\ns_waitcnt vmcnt(8)\ns_cmp_lt_u32 s87, {o['spk'] + o.get('spx', 0)}\ns_cbranch_scc1 L_spf")
        else:
            e(f"s_lshl_b32 s88, {SUB}, 10\ns_and_b32 s51, {IDX}, 1\ns_lshl_b32 s51, s51, 15\ns_add_u32 s88, s88, s51\ns_and_b32 s51, {XCD}, 1\ns_lshl_b32 s51, s51, 16\ns_add_u32 s88, s88, s51")
            if o["slow"]:
                e(f"v_lshlrev_b32 v18, 12, {LANE}\ns_lshl_b32 s87, {SUB}, 10\ns_add_u32 s87, s87, 384\ns_and_b32 s51, {IDX}, 1\ns_lshl_b32 s51, s51, 18\ns_add_u32 s87, s87, s51")
                for i in range(12): e(f"buffer_load_dword v{70+i}, v18, {SW2}, s87 offen\ns_add_u32 s87, s87, {128*4096}")
            for i in range(o["nsp"]):
                e(f"buffer_load_dword v{24+i}, v17, {SW2}, s88 offen\ns_add_u32 s88, s88, 131072")
        e("s_waitcnt vmcnt(0)")
        self.sig(p, Y_F1, 20)
        e("s_branch L_s2\nL_s1:")
        self.inverse_addr(p)
        self.spin(p, Y_P1, 1, 20, sleep=2)
        self.stamp(p)
        e(f"s_mov_b32 s50, {F1}")
        self.poll(p, "v14", "s50", 20, wide=True, sleep=o["psleep"])
        self.sig(p, Y_F1, 20)
        self.stamp(p)
        if self.debug: e(f"v_writelane_b32 {VDBG}, s78, 31")
        self.inverse(p)
        e("L_s2:")
        self.spin(p, Y_P2, 1, 20, sleep=4)
        self.stamp(p)
        if o["fg"]:
            e(f"v_mul_u32_u24 v19, 6, {LANE}\ns_mov_b32 s94, 0x3f00003f\ns_mov_b32 s95, 0\nv_lshlrev_b64 v[18:19], v19, s[94:95]\nv_mov_b32 v17, v18\nv_mov_b32 v18, v19")
        self.poll(p, "v15", "s92", 20, sleep=o["psleep2"], fine=o["fg"])
        if o["fg"]: e(f"v_mov_b32 v21, 1\ns_mov_b64 exec, 15\nds_write_b32 {L4}, v21 offset:{SYNC + 4*Y_Q}\ns_mov_b64 exec, -1")
        else: self.sig(p, Y_F2, 20)
        self.stamp(p)
        if self.debug: e(f"v_writelane_b32 {VDBG}, s78, 30")
        self.spin(p, Y_P3, 1, 20, sleep=4)
        if o["sp3"]:
            e("s_add_u32 s94, s48, s93\ns_addc_u32 s95, s49, 0\ns_mov_b32 s78, 0\ns_branch L_sp3f\nL_sp3:")
            e(f"s_sleep {o['sp3']}\nL_sp3f:")
            for i in range(30): e(f"s_load_dword s{16+i}, s[94:95], {128*i} glc")
            e("s_add_u32 s78, s78, 1\ns_waitcnt lgkmcnt(0)")
            e(f"s_xor_b32 s79, s16, {TAG}")
            for i in range(1, 30): e(f"s_xor_b32 s51, s{16+i}, {TAG}\ns_or_b32 s79, s79, s51")
            e("s_cmp_gt_u32 s78, 0x40000\ns_cbranch_scc1 L_sp3d\ns_cmp_lg_u32 s79, 0\ns_cbranch_scc1 L_sp3\nL_sp3d:")
        else: self.poll(p, "v16", "s93", 20, sleep=o["psleep2"])
        self.sig(p, Y_F3, 20)
        if self.debug: e(f"v_writelane_b32 {VDBG}, s78, 29")
        self.finish(p)
        return p

    def kgen(self, p):
        e = p.e; RAW = self.RAW
        L2E = 1.4426950408889634
        l2e_hi = struct.unpack("<f", struct.pack("<f", L2E))[0]; l2e_lo = L2E - l2e_hi
        VDT, VD1, VD2, VDS, WA, RA, RB = 54, 55, 56, 57, 58, 59, 60
        e(f"s_and_b32 s51, {CH}, 1\ns_lshl_b32 s51, s51, 4\ns_lshr_b32 s80, s80, s51\ns_lshl_b32 s80, s80, 16\ns_lshr_b32 s81, s81, s51\ns_lshl_b32 s81, s81, 16")
        e(f"v_mov_b32 v62, s80\nv_mov_b32 v63, {fbits(l2e_hi)}\nv_mul_f32 v64, v62, v63\nv_fma_f32 v65, v62, v63, -v64\nv_fmac_f32 v65, {fbits(l2e_lo)}, v62")
        e(f"v_exp_f32 v64, v64\nv_mul_f32 v65, {fbits(0.6931471805599453)}, v65\nv_fma_f32 v{VDT}, v64, v65, v64")
        self.rbf(p, VDT)
        e(f"v_mul_f32 v{VD1}, {fbits(L2E)}, v{VDT}\nv_mul_f32 v{VD2}, 0.15915494, v{VDT}")
        e(f"v_cmp_eq_u32 vcc, 0, {LANE}\nv_mov_b32 v62, s81\nv_cndmask_b32 v{VDS}, 0, v62, vcc")
        e(f"s_mov_b32 m0, {REGB}")
        e(f"v_and_b32 v62, 31, {LANE}\nv_lshrrev_b32 v63, 5, {LANE}\nv_lshlrev_b32 v63, 4, v63\nv_add_u32 v63, {REGB}, v63")
        e(f"v_mul_u32_u24 v64, {KP}, v62\nv_add_u32 v{RB}, v64, v63")
        e(f"v_min_u32 v62, 20, v62\nv_mul_u32_u24 v64, {KP}, v62\nv_add_u32 v{RA}, v64, v63")
        e("v_mov_b32 v28, 0x3f80")
        e(f"v_and_b32 v62, 31, {LANE}\nv_lshrrev_b32 v63, 5, {LANE}\ns_add_u32 s51, {REGB}, {KCO}")
        e(f"v_lshlrev_b32 v64, 4, v62\nv_lshl_add_u32 v64, v63, 3, v64\nv_add_u32 v64, s51, v64")
        e(f"v_cmp_eq_u32 vcc, 0, v63\nv_lshlrev_b32 v65, 3, v62\nv_add_u32 v65, 512, v65\nv_lshlrev_b32 v66, 2, v62\nv_add_u32 v66, 768, v66")
        e(f"v_cndmask_b32 v65, v66, v65, vcc\nv_add_u32 v65, s51, v65\nv_mov_b32 v66, 128\nv_cndmask_b32 v66, v66, 4, vcc\nv_add_u32 v66, v65, v66")
        e(f"v_lshlrev_b32 v67, 1, v62\nv_lshl_add_u32 v67, v63, 8, v67\nv_add_u32 v67, s51, v67")
        blocks = [(-2, 34, 8), (32, 32, 4)]
        info = []
        for bi, (v0, nl, stride) in enumerate(blocks):
            cis = lambda y: y if y < 0 else ci(y)
            base = cis(8 * v0)
            offs = {}
            for t in range(-1, 8):
                o = [cis(8 * (v0 + l) + 7 - t) - (base + stride * l) for l in range(nl)]
                offs[t] = o[0]
                assert all(x == o[0] for x in o)
            AD = 100 + 2 * bi
            e(f"s_add_u32 s51, {REGB}, {KCO + 2*base}\nv_mul_u32_u24 v{AD}, {2*stride}, {LANE}\nv_add_u32 v{AD}, s51, v{AD}")
            e(f"s_add_u32 s51, {REGB}, {(75 - v0) * 16}\nv_sub_u32 v{AD+1}, s51, {L16}")
            info.append(offs)
        e(f"v_cmp_gt_u32 vcc, 16, {LANE}\nv_mov_b32 v104, 563\nv_mov_b32 v105, 512\nv_cndmask_b32 v104, v104, v105, vcc\nv_add_u32 v104, v104, {LANE}")
        e(f"v_mov_b32 v106, 1011\nv_cndmask_b32 v105, v106, v105, vcc\nv_add_u32 v105, v105, {LANE}\nv_cvt_f32_u32 v105, v105\nv_cvt_pk_bf16_f32 v105, v105, v105\nv_and_b32 v105, 0xffff, v105")
        e(f"s_sub_u32 s51, {REGB}, {2*0x4280 - KCO}\nv_lshl_add_u32 v105, v105, 1, s51")
        e(f"s_add_u32 s51, {REGB}, {2*607}\nv_lshlrev_b32 v104, 1, v104\nv_sub_u32 v104, s51, v104")
        e(f"v_add_u32 v107, 1, {LANE}\nv_and_b32 v107, 0x7e, v107\ns_add_u32 s51, {REGB}, 4096\nv_sub_u32 v107, s51, v107\nv_and_b32 v106, 1, {LANE}")
        e(f"v_mul_u32_u24 v108, 192, v106\nv_add_u32 v108, v107, v108\nv_mul_u32_u24 v106, 272, v106\nv_add_u32 v107, v107, v106\nv_lshl_add_u32 v106, {LANE}, 1, {REGB}")
        e(f"v_lshrrev_b32 v32, 4, {LANE}\nv_and_b32 v31, 15, {LANE}\nv_bfe_u32 v33, {LANE}, 1, 3\nv_lshlrev_b32 v34, 2, v32\nv_sub_u32 v34, v34, v33")
        e(f"v_and_b32 v33, 1, {LANE}\nv_xor_b32 v33, 1, v33\nv_mul_u32_u24 v33, {(R1O - R0O)//4 + 1}, v33\nv_add_u32 v34, v34, v33")
        e(f"s_add_u32 s51, {REGB}, {R0O + 4*7}\nv_lshl_add_u32 v44, v34, 2, s51\nv_add_u32 v45, 512, v44")
        e(f"v_lshlrev_b32 v33, 3, v32\nv_lshlrev_b32 v34, 2, v31\nv_sub_u32 v46, v33, v34\ns_add_u32 s51, {REGB}, {Q2O + 60}\nv_add_u32 v46, s51, v46")
        e(f"v_lshlrev_b32 v34, 1, v31\nv_sub_u32 v47, v33, v34\nv_and_b32 v34, 1, v31\nv_mul_u32_u24 v34, 386, v34\nv_sub_u32 v47, v47, v34\ns_add_u32 s51, {REGB}, {Q3O + 384 + 32}\nv_add_u32 v47, s51, v47")
        e(f"v_lshl_add_u32 v34, v31, 1, v32\ns_add_u32 s51, {REGB}, {UO + 16*2}\nv_lshl_add_u32 v40, v34, 4, s51")
        e(f"v_add_u32 v34, v31, v32\ns_add_u32 s51, {REGB}, {UO + 512 - 48}\nv_lshl_add_u32 v41, v34, 4, s51")
        e(f"v_and_b32 v34, 1, v32\nv_lshlrev_b32 v34, 9, v34\nv_lshl_add_u32 v34, v31, 5, v34\nv_lshrrev_b32 v32, 1, v32\nv_lshl_add_u32 v42, v32, 4, v34")
        e(f"s_lshl_b32 s86, {CH}, 12\ns_add_u32 s86, s86, {YT}\ns_mul_i32 s89, {DT}, 24\ns_add_u32 s89, s89, {FT}\ns_lshl_b32 s89, s89, 7\ns_add_u32 s89, s89, {F3}\ns_sub_u32 s88, {NCH}, 1")
        ST = [(64, 64), (65, 65), (66, 66), (67, 67)] + [(r, r) for r in range(100, 109)] + [(44, 46), (45, 47), (46, 48), (47, 49), (40, 16), (41, 12), (42, 17)]
        for i, (src, dst) in enumerate(ST): e(f"v_accvgpr_write_b32 a{80+i}, v{src}")
        e("s_waitcnt vmcnt(0)")
        self.stamp(p)
        PK = 116; pk = [0]; P = 62
        FA, FB = 16, 48
        def mf(rd):
            l = []
            for s in range(8):
                q = Prog()
                c = a(0, 16)
                q.e(f"v_mfma_f32_32x32x16_bf16 {a(0,16)}, {a(FA+4*s,4)}, {a(FB+4*s,4)}, {c}")
                l.append(q)
            return l
        p.e("s_mov_b32 s76, 0\nL_kg:")
        for rd in (1,):
            usepk = self.o["pk"]
            q = Prog(); e = q.e
            def cmul(sets):
                if usepk:
                    for d, x, y in sets: e(f"v_pk_mul_f32 {v(d,2)}, {v(x,2)}, {v(y,2)} op_sel_hi:[0,1]")
                    for d, x, y in sets: e(f"v_pk_fma_f32 {v(d,2)}, {v(x,2)}, {v(y,2)}, {v(d,2)} op_sel:[1,1,0] op_sel_hi:[1,0,1] neg_lo:[1,0,0]")
                else:
                    for d, x, y in sets: e(f"v_mul_f32 v{d}, v{x}, v{y}\nv_mul_f32 v{d+1}, v{x}, v{y+1}")
                    for d, x, y in sets: e(f"v_fma_f32 v{d}, -v{x+1}, v{y+1}, v{d}\nv_fmac_f32 v{d+1}, v{x+1}, v{y}")
            mfl = mf(0)
            def puts(l, neg):
                rs = []
                if self.o["mfp"] and not neg: e(mfl.pop(0).items[0][0])
                for row, z in l:
                    r = PK + pk[0] % 8; pk[0] += 1; rs.append(r)
                    e(f"v_cvt_pk_bf16_f32 v{r}, v{z}, {'-' if neg else ''}v{z+1}")
                for (row, z), r in zip(l, rs): e(f"ds_write_addtid_b32 v{r} offset:{row*KP}", "kw")
            for i in range(6):
                e(f"v_lshlrev_b32 v{P+i}, 16, v{RAW[2*i]}\nv_alignbit_b32 v{RAW[2*i]}, v{RAW[2*i+1]}, v{RAW[2*i]}, 16")
            AR, AI = 68, 69
            e(f"v_mul_f32 v{AR}, v{P}, v{VD1}\nv_mul_f32 v{AI}, v{P+1}, v{VD2}")
            e(f"v_mul_f32 v{P+2}, v{P+2}, v{VDT}\nv_mul_f32 v{P+3}, v{P+3}, v{VDT}")
            E1, E8, E256 = 70, 72, 74
            TM_, TA = 76, 79
            for i, t in enumerate((1.0, 8.0, 256.0)):
                if i == 0: e(f"v_mov_b32 v{TM_}, v{AR}\nv_fract_f32 v{TA}, v{AI}")
                else: e(f"v_mul_f32 v{TM_+i}, {fbits(t)}, v{AR}\nv_mul_f32 v{TA+i}, {fbits(t)}, v{AI}\nv_fract_f32 v{TA+i}, v{TA+i}")
            X = 82
            cmul([(X, P + 4, P + 2)])
            for i in range(3):
                e(f"v_exp_f32 v{TM_+i}, v{TM_+i}\nv_cos_f32 v{E1+2*i}, v{TA+i}\nv_sin_f32 v{E1+2*i+1}, v{TA+i}")
            for i in range(3): e(f"v_mul_f32 v{E1+2*i}, v{E1+2*i}, v{TM_+i}\nv_mul_f32 v{E1+2*i+1}, v{E1+2*i+1}, v{TM_+i}")
            E2, E4, E16, E512 = 98, 100, 102, 104
            EA, EB, E32, Y, Z = 106, 20, 114, 30, 38
            cmul([(E2, E1, E1), (E16, E8, E8), (E512, E256, E256), (X + 2, X, E1)])
            cmul([(E4, E2, E2), (EA + 6, E16, E8), (E32, E16, E16), (X + 4, X, E2), (X + 6, X + 2, E2)])
            p.ext(q)
            p.e("s_waitcnt lgkmcnt(0)")
            q = Prog(); e = q.e
            e(f"ds_write_addtid_b32 v28", "kw")
            puts([(1, E8), (2, E16), (3, EA + 6), (4, E32)], False)
            cmul([(EB, E8, E32), (EB + 2, E16, E32), (EB + 4, EA + 6, E32), (EB + 6, E32, E32)])
            cur, nxt = EB, EA
            extra = [[(X + 8 + 2 * i, X + 2 * i, E4) for i in range(4)], [(Y + 2 * i, X + 4 * i, E256) for i in range(4)],
                     [(Z, X, E512), (Z + 2, X + 8, E512), (Z + 4, Y, E512), (Z + 6, Y + 4, E512)],
                     [(Z + 8, Z, E512), (Z + 10, Z + 4, E512)], [(Z + 12, Z + 8, E512), (Z + 14, Z + 10, E512)], [(E1, Z + 12, E512)]]
            for st in range(6):
                j0 = 9 + 4 * st
                n = min(4, 32 - j0)
                cmul([(nxt + 2 * i, cur + 2 * i, E32) for i in range(n)])
                puts([(j0 - 4 + i, cur + 2 * i) for i in range(4)], False)
                cmul(extra[st])
                cur, nxt = nxt, cur
            puts([(29 + i, cur + 2 * i) for i in range(3)], False)
            if self.o["mfp"]:
                assert not mfl
                p.ext(q)
            else: p.ext(interleave(q, mf(rd - 1)))
            for s_ in range(8): p.e(f"ds_read_b128 {a(FB+4*s_,4)}, v{RB} offset:{s_*32}", "kr")
            e = p.e
            puts([(i, X + 2 * i) for i in range(4)], True); puts([(4 + i, X + 8 + 2 * i) for i in range(4)], True)
            puts([(8 + i, Y + 2 * i) for i in range(4)], True); puts([(12 + i, Z + 2 * i) for i in range(4)], True)
            puts([(16 + i, Z + 8 + 2 * i) for i in range(4)] + [(20, E1)], True)
            for s_ in range(8): p.e(f"ds_read_b128 {a(FA+4*s_,4)}, v{RA} offset:{s_*32}", "kr")
            p.e("s_cmp_lg_u32 s76, 0\ns_cbranch_scc1 L_kg1")
            for i in range(16): p.e(f"v_accvgpr_write_b32 a{i}, 0")
            p.e("L_kg1:")
            if self.debug: p.e(f"s_memrealtime s[82:83]\ns_waitcnt lgkmcnt(0)\ns_add_u32 s50, s76, 20\nv_mov_b32 v61, s82\nv_cmp_eq_u32 vcc, s50, {LANE}\nv_cndmask_b32 {VDBG}, {VDBG}, v61, vcc")
            kp = self.o["kpause"]
            if kp == 9:
                p.e(f"ds_read_b32 v61, {VSY} offset:{4*Y_PUB}\ns_waitcnt lgkmcnt(0)\nv_readfirstlane_b32 s79, v61\ns_cmp_lt_u32 s79, 2\ns_cbranch_scc1 L_kg2\ns_cmp_eq_u32 s76, 0\ns_cbranch_scc1 L_kg2")
                self.spin(p, self.o["kword"], 1, 61, sleep=4)
                if self.o["rprio"]: p.e(f"s_setprio {self.o['rprio']}")
                p.e("L_kg2:")
            elif kp:
                p.e(f"s_cmp_lg_u32 s76, {kp - 1}\ns_cbranch_scc1 L_kg2")
                self.spin(p, self.o["kword"], 1, 61, sleep=4)
                p.e("L_kg2:")
            p.e("s_add_u32 s76, s76, 1\ns_cmp_lt_u32 s76, 3\ns_cbranch_scc1 L_kg")
        e = p.e
        e(f"s_setprio {self.o['tprio']}")
        self.spin(p, Y_PUB, 1, 68, sleep=1)
        rs_ = Prog()
        for i, (src, dst) in enumerate(ST): rs_.e(f"v_accvgpr_read_b32 v{dst}, a{80+i}")
        for i in range(4): rs_.e(f"ds_read_b128 {a(112+4*i,4)}, v29 offset:{1024*i}", "bx")
        e(f"v_add_u32 v29, {BOXO}, {L16}")
        p.ext(mf(2)[0]); p.ext(interleave(rs_, mf(2)[1:]))
        e(f"v_mov_b32 v76, 0\nv_mov_b32 v77, 0\nv_mov_b32 v78, 0\nv_mov_b32 v79, 0\nv_add_u32 v15, {REGB}, {L16}")
        for i in range(4): e(f"ds_write_b128 v15, v[76:79] offset:{R0O + 1024*i}", "kc")
        e("s_mov_b64 exec, 3")
        e(f"ds_write_b128 v15, v[76:79] offset:{KCO - 32}", "kc")
        e("s_mov_b32 exec_lo, -1")
        e(f"ds_write_b128 v15, v[76:79] offset:{UO}", "kc")
        e("s_mov_b64 exec, -1")
        for i in range(12): e(f"v_accvgpr_read_b32 v{82+i}, a{i}")
        e(f"v_add_f32 v82, v82, v{VDS}")
        for i in range(6): e(f"v_cvt_pk_bf16_f32 v{70+i}, v{82+2*i}, v{83+2*i}")
        e(f"ds_write_b64 v64, v[70:71]\nds_write_b32 v65, v72\nds_write_b32 v66, v73\nds_write_b16 v67, v74 offset:1024", "kc")
        e("s_mov_b32 exec_hi, 0")
        e(f"ds_write_b16_d16_hi v67, v74 offset:{1024+64}\nds_write_b16 v67, v75 offset:{1024+128}\nds_write_b16_d16_hi v67, v75 offset:{1024+192}", "kc")
        e("s_mov_b64 exec, -1")
        vrs = []
        for bi, (v0, nl, stride) in enumerate(blocks):
            RR = 20 + 9 * bi; AD = 100 + 2 * bi; offs = info[bi]
            e(f"s_mov_b32 exec_hi, {(1 << (nl - 32)) - 1}")
            seen = {}; vr = {}
            for t in range(-1, 8):
                o = offs[t]
                if o not in seen:
                    seen[o] = RR + len(seen)
                    e(f"ds_read_u16 v{seen[o]}, v{AD} offset:{2*o}", f"kx{bi}")
                vr[t] = seen[o]
            vrs.append(vr)
        e("ds_read_u16 v40, v105", "kq")
        e("s_mov_b64 exec, -1")
        for i in range(2):
            e(f"ds_read_u16 v{41+i}, v106 offset:{KCO + 2*(388 + 64*i)}\nds_read_u16 v{43+i}, v106 offset:{KCO + 2*(514 + 64*i)}", "kq")
        for bi, (v0, nl, stride) in enumerate(blocks):
            AD = 100 + 2 * bi; O = 70 + 8 * bi; vr = vrs[bi]
            p.wlg(f"kx{bi}")
            for i in range(4): e(f"v_lshl_or_b32 v{O+i}, v{vr[2*i+1]}, 16, v{vr[2*i]}")
            for i in range(4): e(f"v_lshl_or_b32 v{O+4+i}, v{vr[2*i]}, 16, v{vr[2*i-1]}")
            e(f"s_mov_b32 exec_hi, {(1 << (nl - 32)) - 1}")
            e(f"ds_write_b128 v{AD+1}, {v(O,4)} offset:{R0O}\nds_write_b128 v{AD+1}, {v(O+4,4)} offset:{R1O}", "kt")
            e("s_mov_b64 exec, -1")
        p.wlg("kq")
        e(f"ds_write_b16 v107, v41 offset:{Q2O - 4096 + 2*94}\nds_write_b16 v108, v43 offset:{Q3O - 4096 + 2*63}\nds_write_b16 v108, v43 offset:{Q3O - 4096 + 384 + 2*64}", "kt")
        e(f"s_mov_b32 exec_hi, {(1 << 31) - 1:#x}\nds_write_b16 v108, v44 offset:{Q3O - 4096 + 2*31}\nds_write_b16 v108, v44 offset:{Q3O - 4096 + 384 + 2*32}", "kt")
        e(f"s_mov_b32 exec_hi, {(1 << 29) - 1:#x}\nds_write_b16 v107, v42 offset:{Q2O - 4096 + 2*62}", "kt")
        e(f"s_mov_b32 exec_hi, 0\ns_mov_b32 exec_lo, 0x01ff3fff\nds_write_b16 v104, v40 offset:{R0O}\nds_write_b16 v104, v40 offset:{R1O + 2}\ns_mov_b64 exec, -1", "kt")

    def conv_setup(self, p):
        e = p.e
        for m in list(range(17)) + [18]:
            off = (18 - m) * 16; ad = 46; r = 4 * min(m, 17)
            if off >= 128: off -= 128; ad = 47
            e(f"ds_read2_b32 {a(r,2)}, v{ad} offset0:{off} offset1:{off+1}\nds_read2_b32 {a(r+2,2)}, v{ad} offset0:{off+2} offset1:{off+3}", "pf")
        for j in range(6): e(f"ds_read2_b32 {a(72+4*j,2)}, v48 offset0:{8*j} offset1:{8*j+1}\nds_read2_b32 {a(74+4*j,2)}, v48 offset0:{68+8*j} offset1:{68+8*j+1}", "pf")
        for j in range(4): e(f"ds_read2_b32 {a(96+4*j,2)}, v49 offset0:{8*j} offset1:{8*j+1}\nds_read2_b32 {a(98+4*j,2)}, v49 offset0:{48+8*j} offset1:{48+8*j+1}", "pf")
    def boxes_build(self, p):
        e = p.e
        e(f"v_mov_b32 v23, 0x3f80\nv_add_u32 v22, {BOXO}, {L16}")
        e(f"v_and_b32 v124, 15, {LANE}\nv_lshrrev_b32 v125, 4, {LANE}\nv_lshlrev_b32 v125, 3, v125\ns_mov_b32 s50, 0x8001\ns_mov_b32 s51, 0x10001")
        for bi, (c_, h_) in enumerate(((8, 2), (12, 1), (8, 4), (8, 3))):
            e(f"v_mov_b32 v126, {((1 << (2*h_+1)) - 1) << (c_ - h_):#x}\nv_lshlrev_b32 v126, v124, v126\nv_lshrrev_b32 v126, v125, v126")
            for q in range(4):
                r = 24 + 4 * bi + q
                e(f"v_bfe_u32 v{r}, v126, {2*q}, 2\nv_mul_u32_u24 v{r}, s50, v{r}\nv_and_b32 v{r}, s51, v{r}\nv_mul_u32_u24 v{r}, v23, v{r}")
            e(f"ds_write_b128 v22, {v(24+4*bi,4)} offset:{1024*bi}")
    def boxes(self, p):
        e = p.e
        self.stamp(p)
        self.spin(p, Y_UR, 1, 22, sleep=2)
        e(f"ds_read_b32 {VTAG}, {VSY} offset:{4*Y_TAG}", "tag")
        self.stamp(p)
    def inverse_addr(self, p):
        e = p.e
        e(f"v_lshrrev_b32 v20, 4, {LANE}\nv_lshlrev_b32 v20, 10, v20\nv_and_b32 v21, 3, {LANE}\nv_lshl_add_u32 v20, v21, 4, v20\nv_and_b32 v21, 12, {LANE}")
        for q in range(4):
            e(f"v_add_u32 v22, {16*(q&1)}, v21\nv_bfe_u32 v22, s{74 + q//2}, v22, 4\nv_lshl_add_u32 v{4+q}, v22, 6, v20")
        e(f"s_mov_b32 s84, {STAT}\ns_mov_b32 s85, {STAT+4096}")
    def inverse(self, p):
        e = p.e
        S2, M2, SF, MF = 24, 40, 56, 88
        for q in range(4):
            e(f"buffer_load_dwordx4 {v(S2+4*q,4)}, v{4+q}, {SWS}, s84 offen sc1", "u")
            e(f"buffer_load_dwordx4 {v(M2+4*q,4)}, v{4+q}, {SWS}, s85 offen sc1", "u")
        e(f"s_setprio {self.o['iprio']}")
        p.wvm("u")
        self.unpack(p, S2, SF, 16); self.unpack(p, M2, MF, 16)
        for q in range(4):
            self.spin(p, Y_U + q, 4, 22, sleep=(2 if q < 3 else 1))
            for c in range(3): e(f"ds_read_b128 {v(24+4*c,4)}, v{4+q} offset:{REG0 + c*REGSZ + UO + 512}", f"ur{q}{c}")
            for c in range(3):
                p.wlg(f"ur{q}{c}")
                self.unpack(p, 24 + 4 * c, 40, 4)
                for i in range(8): e(f"v_fma_f32 v{40+i}, v{40+i}, v{SF+8*q+i}, v{MF+8*q+i}")
                o = 48 + 4 * (c & 1)
                for i in range(4): e(f"v_cvt_pk_bf16_f32 v{o+i}, v{40+2*i}, v{41+2*i}")
                e(f"ds_write_b128 v{4+q}, {v(o,4)} offset:{REG0 + c*REGSZ + UO + 512}", "uw")
        self.sig(p, Y_UR, 20)
        e("s_setprio 3")
    def conv(self, p):
        e = p.e
        YO, ACC, DT_, PKD = 17, 64, 116, 124
        slots = [24 + 4 * i for i in range(10)] + [96 + 4 * i for i in range(5)]
        slots = slots[:self.o["cns"]]; NS = len(slots)
        R = lambda n: v(slots[n % NS], 4)
        F = []
        for ph in range(8):
            for d in range(8):
                l = [(d + mu, 4 * (8 * mu + ph)) for mu in range(2) if d + mu <= 7]
                if ph == 0 and d <= 5: l.append((d + 2, 64))
                if ph == 0 and d <= 3: l.append((d + 4, 68))
                F.append((f"v16 offset:{512*d + (7-ph)*64}", l))
        S = []
        for st in range(4):
            S.append(([f"v16 offset:{16*(27 + 32*st)}", f"v16 offset:{16*(28 + 32*st)}"], 120, [(I, 96 + 4 * (st - I + 7)) for I in range(4, 8) if st <= I - 4]))
        for st in range(12):
            S.append(([f"v12 offset:{256*st}"], 112, [(I, 72 + 4 * (st - 2 * I + 8)) for I in range(2, 8) if 2 * I - 8 <= st <= 2 * I - 3]))
        loads = []; steps = []
        def ld(addr): loads.append(addr); return len(loads) - 1
        for i, (ad, box, l) in enumerate(S):
            ids = [ld(x) for x in ad]
            steps.append(("box", ids, box))
            for k in range(3): steps.append(("F", [ld(F[4*i+k][0])], F[4*i+k][1]))
            steps.append(("cvt", [], None))
            steps.append(("F", [ld(F[4*i+3][0])], F[4*i+3][1]))
            steps.append(("S", [], l))
        first = set(); nl = [0]
        def issue(upto):
            while nl[0] < min(upto, len(loads)):
                e(f"ds_read_b128 {R(nl[0])}, {loads[nl[0]]}", f"cj{nl[0]}"); nl[0] += 1
        def mm(I, A, B):
            acc = v(ACC + 4 * I, 4); src = acc if I in first else "0"; first.add(I)
            e(f"v_mfma_f32_16x16x32_bf16 {acc}, {A}, {B}, {src}")
        if self.o.get("dly_c"): e(f"s_sleep {self.o['dly_c']}")
        issue(NS)
        if self.o["cwait"]: self.spin(p, Y_EPI, self.o["cwait"], 22, sleep=1)
        e(f"s_setprio {self.o['cprio0']}")
        self.stamp(p)
        for si, (kind, ids, arg) in enumerate(steps):
            if si == self.o["cswitch"]: e(f"s_setprio {self.o['cprio']}")
            if ids: p.wlg(f"cj{ids[-1]}")
            if kind == "box":
                e(f"v_mfma_f32_16x16x32_bf16 {v(DT_,4)}, {R(ids[0])}, {a(arg,4)}, 0")
                issue(ids[0] + NS)
                e(f"v_mfma_f32_16x16x32_bf16 {v(DT_+4,4)}, {R(ids[-1])}, {a(arg+4,4)}, 0")
            elif kind == "F":
                for i, (I, kf) in enumerate(arg):
                    mm(I, a(kf, 4), R(ids[0]))
                    if i == 0: issue(ids[0] + NS)
            elif kind == "cvt":
                for i in range(4): e(f"v_cvt_pk_bf16_f32 v{PKD+i}, v{DT_+2*i}, v{DT_+2*i+1}")
            else:
                for I, kf in arg: mm(I, v(PKD, 4), a(kf, 4))
        for k in range(4):
            o = 24 + 4 * k
            for i in range(4): e(f"v_cvt_pk_bf16_f32 v{o+i}, v{ACC+8*k+2*i}, v{ACC+8*k+2*i+1}")
            e(f"v_permlane16_swap_b32 v{o}, v{o+2}\nv_permlane16_swap_b32 v{o+1}, v{o+3}")
            e(f"buffer_store_dwordx4 {v(o,4)}, v{YO}, {SWS}, s86 offen offset:{1024*k} sc1", "ys")
        self.stamp(p)
        e("s_waitcnt vmcnt(0)")
        e(f"v_mov_b32 v20, 1\ns_mov_b64 exec, 1\nds_add_rtn_u32 v20, {VSY}, v20 offset:{4*Y_Y}\ns_mov_b64 exec, -1\ns_waitcnt lgkmcnt(0)\nv_readfirstlane_b32 s79, v20")
        e(f"s_cmp_lg_u32 s79, s88\ns_cbranch_scc1 L_ynl")
        self.flag_store(p, "s89")
        e("L_ynl:")
    def convw(self):
        self.role = "conv"
        p = Prog(); e = p.e
        self.conv_start(p)
        self.stamp(p)
        if not self.o.get("skip_kgen"): self.kgen(p)
        else: self.stamp(p)
        self.stamp(p)
        if self.o.get("dly_k"): e(f"s_sleep {self.o['dly_k']}")
        self.conv_setup(p)
        e("s_setprio 0")
        self.boxes(p)
        self.conv(p)
        self.finish(p)
        return p

    def build(self):
        p = Prog(); self.prologue(p)
        p.ext(self.main())
        body = finalize(p)
        q = Prog(); q.e("L_aux:")
        q.e(f"s_cmp_eq_u32 {WV}, 7\ns_cbranch_scc1 L_serv"); q.ext(self.convw())
        body += finalize(q)
        q = Prog(); q.e("L_serv:"); q.ext(self.serv()); q.e("L_end:\nL_last:\ns_endpgm")
        body += finalize(q)
        body = body.replace("@", "")
        ref = open("cdna_kernels/" + NAME + ".s.ref").read()
        head = [l for l in ref.split("\n") if l.startswith(";") and "@launch" not in l]
        k = NAME + "_kernel"
        s = "\n".join(head) + f"\n; @launch grid=(256,1,1) block=(512,1,1) lds={LDS_BYTES}\n" + DOC
        s += f'.amdgcn_target "amdgcn-amd-amdhsa--gfx950"\n.text\n.globl {k}\n.p2align 8\n.type {k},@function\n{k}:\n'
        s += body
        s += f""".section .rodata,"a"
.p2align 6
.amdhsa_kernel {k}
  .amdhsa_next_free_vgpr 256
  .amdhsa_next_free_sgpr 102
  .amdhsa_accum_offset 128
  .amdhsa_group_segment_fixed_size 0
  .amdhsa_kernarg_size 136
  .amdhsa_user_sgpr_count 2
  .amdhsa_user_sgpr_kernarg_segment_ptr 1
  .amdhsa_system_sgpr_workgroup_id_x 1
.end_amdhsa_kernel
"""
        return s

if __name__ == "__main__":
    out = sys.argv[1]
    kw = eval("dict(" + (sys.argv[2] if len(sys.argv) > 2 else "") + ")")
    open(out, "w").write(G(**kw).build())
```

```python
import sys, struct
from asmlib import Prog, interleave, finalize

NAME = "parallel_sum__ssm_conv_s4__mixer_token_mlp__prompt"
STAT, TM, F2, F3, F1 = 0x4000, 0x8000, 0x50000, 0x58000, 0x60000
HB, GB, YT, WSEND = 0x80000, 0x300000, 0x4E0000, 0x760000
RINGW, RS = 28672, 7
PT = 1344
REG0, REGSZ = 0, 14976
SYNC = 3 * REGSZ
RING0 = 45056
KCO, R0O, R1O, Q2O, Q3O = 32, 1408, 1408 + 1344, 4096, 4672
Z5O, Z3O, Z9O, Z7O, UO = 0, 3104, 6208, 8288, 10368
LNT = REG0 + 8704
BOXO = RING0 + 4 * RINGW
KP = 272
LDS_BYTES = 163840
assert SYNC + 128 <= RING0 and RING0 + 4 * RINGW <= LDS_BYTES
Y_EPI = 3
Y_Y = 16
Y_UR = 17
Y_Q = 20
Y_L = 18
Y_LN, Y_F1, Y_PART, Y_PUB, Y_P1, Y_G, Y_P2, Y_F2, Y_P3, Y_F3, Y_TAG, Y_U = 0, 1, 2, 4, 5, 6, 7, 8, 9, 10, 11, 12

DOC = '; One persistent launch, 256 workgroups (one per CU) of 8 waves; generated by a hand-written script.\n'

def fbits(x): return "0x%08x" % struct.unpack("<I", struct.pack("<f", x))[0]
def bf16r(l):
    u = struct.unpack("<I", struct.pack("<f", float(l)))[0]
    u = ((u + 0x7FFF + ((u >> 16) & 1)) >> 16) << 16
    return int(struct.unpack("<f", struct.pack("<I", u))[0])
def ci(l):
    v = bf16r(l)
    if v <= 256: return v
    if v <= 512: return 256 + (v - 256) // 2
    if v <= 1024: return 384 + (v - 512) // 4
    return 512 + (v - 1024) // 8

WG, WV, XCD, IDX, DT, FT, DT2, ST2, TAG, ROT1, ROT2, CH = "s2", "s3", "s4", "s5", "s6", "s7", "s8", "s9", "s10", "s11", "s12", "s13"
SUB, C0, NCH = "s97", "s98", "s99"
SX, SW1, SW2, SOUT, SWS = "s[52:55]", "s[56:59]", "s[60:63]", "s[64:67]", "s[68:71]"
RINGB, REGB = "s73", "s77"
VSY, LANE, L16, L4, VTAG, VZ, VDBG = "v0", "v1", "v2", "v3", "v9", "v10", "v11"

def v(i, n=1): return f"v{i}" if n == 1 else f"v[{i}:{i+n-1}]"
def a(i, n=1): return f"a{i}" if n == 1 else f"a[{i}:{i+n-1}]"

def groups_of(prog):
    groups = []
    for it in prog.items:
        prev = groups[-1][-1][0] if groups else None
        if isinstance(prev, str) and (prev.startswith(("s_add_u32 m0", "s_cmp", "s_sub_u32 s51", "s_mov_b64 exec, s", "s_mov_b64 exec, 1", "ds_write_b128 v125", "ds_add"))):
            groups[-1].append(it)
        else: groups.append([it])
    return groups

def make_perm(n, nw, first, duty0, per=1):
    own = list(range(0, n, 2)); oth = list(range(1, n, 2))
    order = [[] for _ in range(nw)]; touched = {}
    pool = own[:]
    for pos in range(first):
        for j in range(nw):
            pass
    deal = [[] for _ in range(nw)]
    k = 0
    for pos in range(first):
        for j in range(nw):
            if pool: st = pool.pop(0)
            else: st = oth.pop(0)
            deal[j].append(st); touched[st] = pos
    rest = pool + oth
    duty = {}
    for i, st in enumerate(rest): duty[(duty0 + i // per, i % nw)] = st
    for j in range(nw): order[j] = list(deal[j])
    for pos in range(first, n):
        for j in range(nw):
            if (pos, j) in duty: touched[duty[(pos, j)]] = pos
        for j in range(nw):
            if (pos, j) in duty: order[j].append(duty[(pos, j)]); continue
            mine = {st for (pp, jj), st in duty.items() if jj == j and pp > pos}
            cand = [st for st in range(n) if st not in order[j] and st not in mine]
            cand.sort(key=lambda st: (touched.get(st, 99), (st - 2 * j) % n))
            order[j].append(cand[0])
    for o in order: assert sorted(o) == list(range(n)), o
    return order
def pack_perm(o):
    x = sum(st << (4 * i) for i, st in enumerate(o)); return x & 0xffffffff, x >> 32

class G:
    def __init__(self, debug=False, **kw):
        self.debug = debug
        self.o = dict(P1=6, D1=13, PS1=11, lead1=4, xk=-1, epifirst=1, sp3=0, first1=1, dpp=3, P2=4, D2=11, PS2=9, lead2=4, wflag="", xflag="", nsp=0, thr=4,
                      ytrig=5, ychk=10, pk=1, psleep=4, psleep2=8, kprio=0, mprio=2, ebpos=0, kpause=9, kword=5, spk=0, spw=0, sx=4, spa=0, fg=0, ew=0, df1=3, df2=3, tprio=0, rprio=0, mfp=1, p1=0, p2=0, first2=2, dpp2=1, e2=0, tch=0, cprio=3, ipf=2, ns1=12, ns2=15, perm=1, duty1=1, duty2=3, oflag='', eb=2, pfirst=1, free1=1, pre1=1, cns=15, sg1=0, sg2=0, epk=1, cprio0=0, cswitch=40, iprio=0, ow4=1, slow=0, ebk=99, nthr=6, pflag='nt', cwait=4)
        self.o.update(kw)
        self.nst = {}; self.nlab = 0; self.role = None
    def stamp(self, p):
        if not self.debug: return
        n = self.nst.get(self.role, 0)
        if n == 0: p.e(f"v_writelane_b32 {VDBG}, s100, 28")
        p.e(("s_memtime" if self.o.get("cyc") else "s_memrealtime") + " s[82:83]\ns_waitcnt lgkmcnt(0)")
        p.e(f"v_writelane_b32 {VDBG}, s82, {n}")
        self.nst[self.role] = n + 1
    def pre(self, p):
        if self.debug and self.o.get("prest"): p.e(f"s_memrealtime s[82:83]\ns_waitcnt lgkmcnt(0)\nv_writelane_b32 {VDBG}, s82, 27")
    def label(self, s):
        self.nlab += 1; return f"L{s}_{self.nlab}"
    def flag_store(self, p, soff, pre=""):
        p.e(f"s_mov_b64 exec, 1\n{pre}buffer_store_dword {VTAG}, {VZ}, {SWS}, {soff} offen sc1\ns_mov_b64 exec, -1")
    def poll(self, p, voff, soff, tmp, wide=False, sleep=0, fine=False):
        l = self.label("poll"); d = self.label("polld"); f = self.label("pollf")
        p.e("s_mov_b32 s78, 0")
        if sleep: p.e(f"s_branch {f}")
        p.e(f"{l}:")
        if sleep: p.e(f"s_sleep {sleep}\n{f}:")
        if wide:
            p.e(f"buffer_load_dwordx4 {v(tmp,4)}, {voff}, {SWS}, {soff} offen sc1")
            p.e("s_add_u32 s78, s78, 1\ns_waitcnt vmcnt(0)")
            for i in range(4): p.e(f"v_xor_b32 {v(tmp+i)}, {TAG}, {v(tmp+i)}")
            p.e(f"v_or3_b32 {v(tmp)}, {v(tmp)}, {v(tmp+1)}, {v(tmp+2)}\nv_or_b32 {v(tmp)}, {v(tmp)}, {v(tmp+3)}")
            p.e(f"v_cmp_ne_u32 vcc, 0, {v(tmp)}")
        else:
            p.e(f"buffer_load_dword {v(tmp)}, {voff}, {SWS}, {soff} offen sc1")
            p.e("s_add_u32 s78, s78, 1\ns_waitcnt vmcnt(0)")
            p.e(f"v_cmp_ne_u32 vcc, {TAG}, {v(tmp)}")
        if fine:
            p.e(f"s_mov_b64 exec, 15\nv_and_b32 v21, vcc_lo, v17\nv_and_b32 v22, vcc_hi, v18\nv_or_b32 v21, v21, v22\nv_cmp_eq_u32 s[94:95], 0, v21\nv_cndmask_b32 v21, 0, 1, s[94:95]")
            p.e(f"ds_write_b32 {L4}, v21 offset:{SYNC + 4*Y_Q}")
        p.e(f"s_cmp_gt_u32 s78, 0x40000\ns_cbranch_scc1 {d}\ns_cbranch_vccz {d}\ns_mov_b64 exec, vcc\ns_branch {l}")
        p.e(f"{d}:\ns_mov_b64 exec, -1")
    def sig(self, p, word, tmp):
        p.e(f"v_mov_b32 v{tmp}, 1\ns_mov_b64 exec, 1\nds_add_u32 {VSY}, v{tmp} offset:{4*word}\ns_mov_b64 exec, -1", "sig")
    def spin(self, p, word, n, tmp, sleep=0, base=VSY):
        l = self.label("spin"); d = self.label("spind"); f = self.label("spinf")
        p.e("s_mov_b32 s78, 0")
        if sleep: p.e(f"s_branch {f}")
        p.e(f"{l}:")
        if sleep: p.e(f"s_sleep {sleep}\n{f}:")
        p.e(f"ds_read_b32 v{tmp}, {base} offset:{4*word}\ns_add_u32 s78, s78, 1\ns_waitcnt lgkmcnt(0)\nv_readfirstlane_b32 s79, v{tmp}")
        p.e(f"s_cmp_gt_u32 s78, 0x200000\ns_cbranch_scc1 {d}\ns_cmp_lt_u32 s79, {n}\ns_cbranch_scc1 {l}")
        p.e(f"{d}:")
    def mktag(self, p):
        p.e(f"s_mul_i32 {TAG}, {TAG}, 0x9E3779B1\ns_add_u32 {TAG}, {TAG}, 0x7F4A7C15\nv_mov_b32 {VTAG}, {TAG}")
    def finish(self, p):
        e = p.e
        if self.debug:
            e("s_waitcnt vmcnt(0)")
            self.stamp(p)
            e(f"s_lshl_b32 s50, {WG}, 3\ns_add_u32 s50, s50, {WV}\ns_lshl_b32 s50, s50, 7\ns_add_u32 s50, s50, {TM}")
            e(f"s_mov_b32 exec_hi, 0\nbuffer_store_dword {VDBG}, {L4}, {SWS}, s50 offen")
        e("s_endpgm")
    def srd(self, p, d, lo, size): p.e(f"s_mov_b32 s{d}, s{lo}\ns_mov_b32 s{d+1}, s{lo+1}\ns_mov_b32 s{d+2}, {size}\ns_mov_b32 s{d+3}, 0x20000")
    def unpack(self, p, src, dst, n):
        for i in range(n):
            p.e(f"v_lshlrev_b32 v{dst+2*i}, 16, v{src+i}\nv_and_b32 v{dst+2*i+1}, 0xffff0000, v{src+i}")
    def rbf(self, p, r):
        p.e(f"v_cvt_pk_bf16_f32 v{r}, v{r}, v{r}\nv_lshlrev_b32 v{r}, 16, v{r}")

    def prologue(self, p):
        e = p.e; RAW = self.RAW; o = self.o
        if self.debug: e("s_memrealtime s[100:101]")
        e(f"s_cmp_ge_u32 {WG}, 256\ns_cbranch_scc1 L_end0")
        e("s_load_dwordx16 s[16:31], s[0:1], 0\ns_load_dwordx16 s[32:47], s[0:1], 64\ns_load_dwordx2 s[48:49], s[0:1], 128")
        e(f"v_and_b32 {LANE}, 63, v0\nv_lshrrev_b32 v12, 6, v0\nv_readfirstlane_b32 {WV}, v12")
        e(f"v_lshlrev_b32 {L4}, 2, {LANE}\nv_mov_b32 {VZ}, 0\nv_mov_b32 {VSY}, {SYNC}")
        e(f"s_cmp_lg_u32 {WV}, 7\ns_cbranch_scc1 L_p1")
        if o["ipf"]:
            e(f"s_getpc_b64 s[90:91]\nL_pc:\ns_bfe_u32 s51, {WG}, {(o['ipf'] << 16) | 3:#x}\ns_lshl_b32 s51, s51, 13")
            e(f"v_lshl_add_u32 v112, {LANE}, 7, s51\nv_min_u32 v112, L_last-L_pc, v112")
            e("v_mov_b32 v113, s91\nv_add_co_u32 v112, vcc, s90, v112\nv_addc_co_u32 v113, vcc, 0, v113, vcc")
            e("@global_load_dword v114, v[112:113], off")
        e(f"s_mov_b32 exec_hi, 0\nds_write_b32 {L4}, {VZ} offset:{SYNC}\ns_mov_b64 exec, -1")
        e(f"s_waitcnt lgkmcnt(0)\n@s_load_dword {TAG}, s[48:49], 0\ns_branch L_p3")
        e("L_end0:\ns_endpgm\nL_p1:")
        e(f"s_cmp_ge_u32 {WV}, 4\ns_cbranch_scc1 L_p2")
        e(f"v_lshrrev_b32 v120, 5, {LANE}\nv_mul_u32_u24 v121, 1280, v120\nv_and_b32 v122, 31, {LANE}")
        e("v_lshl_add_u32 v123, v122, 4, v121\nv_lshl_add_u32 v124, v122, 3, v121")
        e(f"s_lshl_b32 s50, {WG}, 3\ns_lshl1_add_u32 s50, {WV}, s50\ns_mul_i32 s50, s50, 1280")
        e("s_mov_b32 s54, 2621440\ns_mov_b32 s55, 0x20000\ns_waitcnt lgkmcnt(0)\ns_mov_b32 s52, s16\ns_mov_b32 s53, s17")
        xf = o["xflag"]
        e(f"buffer_load_dwordx4 v[20:23], v123, {SX}, s50 offen {xf}", "x")
        e(f"buffer_load_dwordx4 v[24:27], v123, {SX}, s50 offen offset:512 {xf}", "x")
        e(f"buffer_load_dwordx2 v[28:29], v124, {SX}, s50 offen offset:1024 {xf}", "x")
        e("s_branch L_p3")
        e("L_p2:")
        self.tiles(p)
        e(f"s_sub_u32 s14, {WV}, 4\ns_cmp_ge_u32 s14, {NCH}\ns_cbranch_scc1 L_end0")
        e(f"s_lshl_b32 {CH}, {DT}, 6\ns_lshl4_add_u32 {CH}, {SUB}, {CH}\ns_add_u32 {CH}, {CH}, {C0}\ns_add_u32 {CH}, {CH}, s14")
        e(f"s_mul_i32 s51, {CH}, 384\nv_add_u32 v110, s51, {L4}\nv_lshl_add_u32 v111, {LANE}, 1, s51")
        e(f"s_lshr_b32 s79, {CH}, 1\ns_lshl_b32 s79, s79, 2")
        e("s_waitcnt lgkmcnt(0)")
        for i in range(6):
            e(f"@global_load_dword v{RAW[2*i]}, v110, s[{18+2*i}:{19+2*i}] {o['pflag']}")
            e(f"@global_load_ushort v{RAW[2*i+1]}, v111, s[{18+2*i}:{19+2*i}] offset:256 {o['pflag']}")
        e(f"@s_load_dword s80, s[30:31], s79\n@s_load_dword s81, s[32:33], s79")
        e("L_p3:\ns_barrier")
        e(f"v_lshlrev_b32 {L16}, 4, {LANE}\nv_mov_b32 {VDBG}, 0")
        self.tiles(p)
        self.srd(p, 68, 48, WSEND)
        if o["perm"]: P1_ = make_perm(16, 5, o["first1"], o["duty1"], o["dpp"])
        else: P1_ = [[(((2 * j * 205) >> 7) + i) % 16 for i in range(16)] for j in range(5)]
        for j, o_ in enumerate(P1_):
            lo, hi = pack_perm(o_)
            if j == 0: e(f"s_mov_b32 s74, {lo:#x}\ns_mov_b32 s75, {hi:#x}")
            else: e(f"s_cmp_eq_u32 s11, {j}\ns_cselect_b32 s74, {lo:#x}, s74\ns_cselect_b32 s75, {hi:#x}, s75")
        e(f"s_mul_i32 s51, {'s96' if o['p1'] else 's12'}, 0x11111111\ns_xor_b32 s74, s74, s51\ns_xor_b32 s75, s75, s51")
        if o["p2"]: e(f"s_and_b32 {DT2}, {IDX}, 7\ns_lshr_b32 {ST2}, {IDX}, 3\ns_lshl2_add_u32 {ST2}, {XCD}, {ST2}")
        else: e(f"s_and_b32 {DT2}, {IDX}, 3\ns_lshr_b32 {ST2}, {IDX}, 2\ns_xor_b32 {ST2}, {ST2}, {o['sx']}\ns_lshl2_add_u32 {DT2}, s12, {DT2}\ns_lshl3_add_u32 {ST2}, {SUB}, {ST2}")
        e(f"s_cmp_ge_u32 {WV}, 4\ns_cbranch_scc1 L_aux")
    def tiles(self, p):
        e = p.e
        e(f"s_and_b32 {XCD}, {WG}, 7\ns_lshr_b32 {IDX}, {WG}, 3\ns_lshr_b32 {SUB}, {XCD}, 1\ns_and_b32 s12, {XCD}, 1")
        if self.o["p1"]:
            e(f"s_min_u32 s15, {IDX}, 29\ns_mul_i32 {FT}, s15, 26\ns_lshr_b32 {FT}, {FT}, 8\ns_mul_i32 s51, {FT}, 10\ns_sub_u32 {DT}, s15, s51")
            e(f"s_mul_i32 s51, s12, 3\ns_add_u32 {FT}, {FT}, s51\ns_lshr_b32 s11, {DT}, 1\ns_and_b32 s96, {DT}, 1")
        else:
            e(f"s_min_u32 s15, {IDX}, 29\ns_mul_i32 {FT}, s15, 52\ns_lshr_b32 {FT}, {FT}, 8")
            e(f"s_mul_i32 s51, {FT}, 5\ns_sub_u32 s11, s15, s51")
        e(f"s_mul_i32 {C0}, {FT}, 3\ns_min_u32 {C0}, {C0}, 14\ns_cmp_lt_u32 {FT}, 4\ns_cselect_b32 {NCH}, 3, 2\ns_cmp_ge_u32 {IDX}, 30\ns_cselect_b32 {NCH}, 0, {NCH}")
        if self.o["p1"]: e(f"s_mul_i32 s51, {SUB}, 6\ns_add_u32 {FT}, {FT}, s51")
        else: e(f"s_mul_i32 s51, s12, 5\ns_add_u32 {DT}, s11, s51\ns_mul_i32 s51, {SUB}, 6\ns_add_u32 {FT}, {FT}, s51")

    def kk(self, p, g, ks, dst, stride, base):
        p.e(f"s_bfe_u32 {dst}, s{(74 if g == 1 else 80) + ks // 8}, {(4 << 16) | (4 * (ks % 8)):#x}")
        p.e(f"s_mul_i32 {dst}, {dst}, {stride}")
        if base: p.e(f"s_add_u32 {dst}, {dst}, {base}")
    def slot(self, g, ks): return ((ks + (3 if g == 2 else 0)) % RS) * 4096
    def throttle(self, p):
        l = self.label("thr")
        p.e(f"s_cmp_lg_u32 s85, 0\ns_cbranch_scc1 {l}")
        p.e(f"@ds_read_b32 v20, {VSY} offset:{4*Y_PUB}\n@s_waitcnt vmcnt({self.o['thr']}) lgkmcnt(0)\nv_readfirstlane_b32 s85, v20\ns_nop 0\ns_lshr_b32 s85, s85, 1")
        p.e(f"{l}:")
    def dma(self, g, ks, thr=False):
        p = Prog()
        rs, vo, srd, base = (3072, 4, SW1, "s84") if g == 1 else (4096, 12, SW2, "s92")
        self.kk(p, g, ks, "s72", 32 * rs, base)
        for q in range(4):
            if thr and q % 2 == 0: self.throttle(p)
            p.e(f"s_add_u32 m0, {RINGB}, {self.slot(g, ks) + q * 1024}")
            p.e(f"buffer_load_dwordx4 v{vo + (q & 1)}, {srd}, s72 offen {self.o['wflag']} lds", f"w{g}_{ks}")
            if q < 3: p.e(f"s_add_u32 s72, s72, {8*rs}")
        return p
    NB = {1: 6, 2: 4}
    def tr(self, g, ks):
        p = Prog()
        r = 16 * (ks % self.NB[g]); o = self.slot(g, ks)
        p.wvm(f"w{g}_{ks}")
        for ss in range(4):
            p.e(f"ds_read_b64_tr_b16 {a(r+4*ss,2)}, v{14+ss} offset:{o}", f"t{g}_{ks}")
            p.e(f"ds_read_b64_tr_b16 {a(r+4*ss+2,2)}, v{14+ss} offset:{o+512}", f"t{g}_{ks}")
        return p
    def main_start(self, p):
        e = p.e
        e("s_setprio 3")
        e(f"s_mul_i32 {RINGB}, {WV}, {RINGW}\ns_add_u32 {RINGB}, {RINGB}, {RING0}\ns_mov_b32 s85, 0")
        e(f"v_lshrrev_b32 v30, 3, {LANE}\nv_and_b32 v31, 7, {LANE}\nv_and_b32 v32, 2, v30\nv_xor_b32 v31, v31, v32\nv_lshlrev_b32 v31, 4, v31")
        e("v_mul_u32_u24 v4, 3072, v30\nv_add_u32 v4, v4, v31\nv_xor_b32 v5, 64, v4\nv_lshl_add_u32 v12, v30, 12, v31\nv_xor_b32 v13, 64, v12")
        e(f"s_mul_i32 s84, {WV}, {512*3072}\ns_lshl_b32 s51, {FT}, 7\ns_add_u32 s84, s84, s51")
        e(f"s_mul_i32 s92, {WV}, {384*4096}\ns_lshl_b32 s51, {ST2}, 7\ns_add_u32 s92, s92, s51")
        self.srd(p, 56, 36, 6291456); self.srd(p, 60, 40, 6291456); self.srd(p, 64, 44, 2621440)
        self.stamp(p)
    def main_setup2(self, p):
        e = p.e
        e(f"v_bfe_u32 v20, {LANE}, 2, 2\nv_and_b32 v21, 3, {LANE}\nv_lshrrev_b32 v22, 4, {LANE}\nv_and_b32 v23, 15, {LANE}")
        e("v_lshlrev_b32 v24, 10, v22\nv_lshl_add_u32 v24, v20, 7, v24\nv_lshl_add_u32 v24, v21, 3, v24")
        e(f"v_lshrrev_b32 v20, 1, v20\nv_and_b32 v21, 1, v22\nv_lshl_or_b32 v20, v21, 1, v20\nv_xor_b32 v20, {WV}, v20\nv_lshlrev_b32 v20, 5, v20")
        e(f"v_add3_u32 v14, v24, v20, {RINGB}\nv_xor_b32 v15, 32, v14\nv_xor_b32 v16, 64, v14\nv_xor_b32 v17, 0x60, v14")
        e(f"s_lshl_b32 s51, {FT}, 7\ns_lshl_b32 s15, {WV}, 5\ns_add_u32 s51, s51, s15\nv_lshl_add_u32 v24, v22, 3, s51")
        e("global_load_dwordx2 v[126:127], v24, s[38:39]", "b1")
        e(f"v_mul_u32_u24 v19, 10240, v22\nv_lshl_add_u32 v19, v23, 4, v19\ns_lshl_b32 s51, {SUB}, 8\nv_add_u32 v120, s51, v19")
        e("v_xor_b32 v121, 0x100, v120\nv_xor_b32 v122, 0x200, v120\nv_xor_b32 v123, 0x300, v120")
        e(f"v_lshrrev_b32 v24, 1, v22\nv_mul_u32_u24 v24, 10240, v24\nv_lshl_add_u32 v24, v23, 4, v24\nv_xor_b32 v25, {SUB}, v21\nv_lshl_add_u32 v6, v25, 8, v24\nv_xor_b32 v7, 0x200, v6")
        e(f"v_subrev_u32 v124, {C0}, v23\nv_mul_u32_u24 v124, {REGSZ}, v124\nv_lshl_add_u32 v124, v22, 4, v124")
        e(f"s_lshl_b32 s51, {WV}, 10\ns_add_u32 s51, s51, {REG0 + UO + 512}\nv_add_u32 v124, s51, v124")
        e(f"s_bfm_b32 s100, {NCH}, {C0}\ns_lshl_b32 s51, s100, 16\ns_or_b32 s100, s100, s51\ns_mov_b32 s101, s100")
        e("v_mul_u32_u24 v18, 1280, v23\nv_lshl_add_u32 v18, v22, 3, v18\nv_lshlrev_b32 v115, 12, v23\nv_lshl_add_u32 v115, v22, 4, v115")
        e("v_lshl_add_u32 v8, v23, 1, s95")
        e("global_load_ushort v114, v8, s[42:43]", "b1")
        if self.o["spa"]:
            n_ = self.o["spa"]; f_ = 12 - n_
            P2_ = [o_ + list(range(f_, 12)) for o_ in make_perm(f_, 4, min(2, f_ // 4), self.o["duty2"])] if f_ else [list(range(12))] * 4
        elif self.o["spk"]:
            n_ = self.o["spk"]; own = [2 * i for i in range(n_)]
            rest = [st for st in range(2 * n_, 12, 2)] + [st for st in range(1, 12, 2)]
            P2_ = [own + rest[(j * len(rest)) // 4:] + rest[:(j * len(rest)) // 4] for j in range(4)]
        elif self.o["perm"]: P2_ = make_perm(12, 4, self.o["first2"], self.o["duty2"], self.o["dpp2"])
        else: P2_ = [[(3 * j + i) % 12 for i in range(12)] for j in range(4)]
        e(f"s_lshr_b32 s15, {DT2}, 1" if self.o["p2"] else f"s_and_b32 s15, {IDX}, 3")
        for j, o_ in enumerate(P2_):
            lo, hi = pack_perm(o_)
            if j == 0: e(f"s_mov_b32 s80, {lo:#x}\ns_mov_b32 s81, {hi:#x}")
            else: e(f"s_cmp_eq_u32 s15, {j}\ns_cselect_b32 s80, {lo:#x}, s80\ns_cselect_b32 s81, {hi:#x}, s81")
        e(f"s_and_b32 s15, {ST2}, {self.o['sg2']}\ns_and_b32 s51, {DT2 if self.o['p2'] else XCD}, 1\ns_xor_b32 s51, s51, s15\ns_mul_i32 s51, s51, 0x11111111\ns_xor_b32 s80, s80, s51\ns_xor_b32 s81, s81, s51")
        e(f"s_mul_i32 s86, {WV}, {64*10240}\ns_lshl_b32 s51, {DT}, 10\ns_add_u32 s86, s86, s51\ns_add_u32 s86, s86, {HB}")
    def xr(self, j): return [v(104, 4), v(110, 4), v(116, 4)][j]
    def xload(self, p):
        e = p.e
        e(f"s_lshl_b32 s94, {ST2}, 6\ns_lshl_b32 s51, {WV}, 4\ns_add_u32 s94, s94, s51\ns_lshl_b32 s95, s94, 1")
        e(f"s_mul_i32 s94, s94, 1280\ns_mul_i32 s51, {DT2}, 160\ns_add_u32 s94, s94, s51")
        e(f"v_and_b32 v109, 15, {LANE}\nv_mul_u32_u24 v109, 1280, v109\nv_and_b32 v108, 48, {LANE}\nv_add_u32 v108, v108, v109")
        for j in range(3): e(f"buffer_load_dwordx4 {self.xr(j)}, v108, {SX}, s94 offen offset:{64*j}", f"x{j}")
    def xmm(self, p):
        e = p.e; ln_ = self.label("nsw")
        e("v_lshlrev_b32 v114, 16, v114")
        for i in range(20): e(f"v_mov_b32 v{84+i}, v114")
        e(f"v_lshrrev_b32 v22, 4, {LANE}\nv_and_b32 v23, 15, {LANE}")
        e("v_lshlrev_b32 v24, 3, v22\nv_sub_u32 v24, v23, v24\nv_and_b32 v25, 1, v24\nv_lshlrev_b32 v25, 4, v25\nv_mov_b32 v26, 0x3f80\nv_lshlrev_b32 v25, v25, v26\nv_ashrrev_i32 v24, 1, v24")
        for q in range(4): e(f"v_cmp_eq_u32 vcc, {q}, v24\nv_cndmask_b32 v{120+q}, 0, v25, vcc")
        for q in range(4): e(f"v_cmp_eq_i32 vcc, {q-8}, v24\nv_cndmask_b32 v{124+q}, 0, v25, vcc")
        for di in range(5):
            e(f"v_mfma_f32_16x16x32_bf16 {self.acc2(di,0)}, {v(124 if di & 1 else 120, 4)}, {self.xr(di//2)}, {self.acc2(di,0)}")
        e(f"s_and_b32 s51, {WV}, 1\ns_cmp_eq_u32 s51, 0\ns_cbranch_scc1 {ln_}")
        for q in range(4): e(f"v_swap_b32 v{120+q}, v{124+q}")
        e(f"{ln_}:")
    def acc1(self, t, ds): return [v(72 + 4 * ds, 4), v(88 + 4 * ds, 4), a(96 + 4 * ds, 4), a(112 + 4 * ds, 4)][t]
    def acc2(self, di, ss): return v(84 + 4 * di, 4) if ss == 0 else a(68 + 4 * (di * 3 + ss - 1), 4)

    def pwrite(self, p, g, col):
        nf = 4 if g == 1 else 5
        for t in ((1, 2, 3) if g == 1 else (2, 3)):
            left = (nf - col) * (3 if g == 1 else 2) - (t - (1 if g == 1 else 2))
            for _ in range(-(-len(self.deferred) // left) if col == nf - 1 else (2 if len(self.deferred) > left else 1)):
                if self.deferred: p.e(self.deferred.pop(0))
            if g == 1: p.e(f"ds_write_b128 v21, {self.acc1(t, col)} offset:{(t-1)*4096+col*1024}", "r1w")
            else: p.e(f"ds_write_b128 v21, {self.acc2(col, t)} offset:{(t-1)*5120+col*1024}", "r2w")
    def gemm_loop(self, p, g, nks, nf, ns, nd, nt, ld, mfma, extra):
        NB = self.NB[g]; n = nks * nf
        self.deferred = []
        assert ns == 3 * nf or not self.o["df%d" % g]
        for i in range(ns): p.ext(ld(i))
        nl = ns
        G_ = 4 * nf
        for ks in range(nks):
            side = Prog()
            if nd < nks and nd - RS < nt:
                if nd >= RS: side.wlg(f"t{g}_{nd-RS}")
                side.ext(self.dma(g, nd)); nd += 1
            if nt < nks and nt < nd and nt - NB < ks:
                side.ext(self.tr(g, nt)); nt += 1
            early, pre, post = extra(ks)
            gaps = [[] for _ in range(G_)]
            cost = [0] * G_
            def c_of(grp):
                c = 0
                for it, _ in grp:
                    if isinstance(it, tuple): c += 1
                    elif it.startswith(("buffer_", "global_")): c += 3
                    else: c += 1
                return c
            for di in range(1, nf): cost[4 * di - 1] += 1
            cost[G_ - 1] += 2
            for di in range(nf):
                if nf * ks + di >= 1 and nl < n:
                    its = ld(nl).items; nl += 1
                    gi = 4 * di
                    gaps[gi].append(("z", its[-1:])); cost[gi] += 3
                    for k, it in enumerate(its[:-1]):
                        gj = gi - (len(its) - 1 - k)
                        assert gj >= 0
                        gaps[gj].append(("y", [it])); cost[gj] += 1
            pos = 0
            for grp in groups_of(early):
                gi = min(3, 1 + pos); pos += 1
                gaps[gi].append(("a", grp)); cost[gi] += c_of(grp)
            rest = groups_of(pre) + groups_of(side)
            start = 4 if early.items else 1
            tot = sum(c_of(x) for x in rest) + sum(cost[start:])
            gi = start
            for grp in rest:
                lvl = max(2.0, tot / (G_ - start))
                while gi < G_ - 1 and cost[gi] + c_of(grp) > lvl + 0.5 and cost[gi] > 0: gi += 1
                gaps[gi].append(("m", grp)); cost[gi] += c_of(grp)
            if ks == nks - 1: p.e(f"v_add_u32 v21, {RINGB}, {L16}")
            p.wlg(f"t{g}_{ks}")
            for di in range(nf):
                p.wvm(f"act{ks}_{di}")
                for ss in range(4):
                    if ss == 0 and ks >= nks - self.o["df%d" % g] and not (ks == nks - 3 and di == 0): self.deferred.append(mfma(ks, di, ss))
                    else: p.e(mfma(ks, di, ss))
                    for key, grp in sorted(gaps[4 * di + ss], key=lambda x: x[0]): p.items.extend(grp)
                if ks == nks - 1 and self.o["ew"] and di >= 1: self.pwrite(p, g, di - 1)
            p.ext(post)
        assert nl == n and nd == nks and nt == nks

    def gemm1(self, p):
        e = p.e; o = self.o
        HR, ns = 24, o['ns1']
        nd = o['free1']
        def more():
            nonlocal nd
            if nd >= RS: p.wlg(f"t1_{nd-RS}")
            p.ext(self.dma(1, nd, thr=nd < o['nthr'])); nd += 1
            if nd == o["PS1"]: self.sig(p, Y_P1, 20)
            if o.get("fine") and nd <= 9: self.stamp(p)
        while nd < o["lead1"]: more()
        p.wvm("b1")
        for ds in range(4): self.unpack(p, 126, 72 + 4 * ds, 2)
        for j in range(o["P1"]):
            p.ext(self.tr(1, j))
            if j == 2 and not o.get('fine'): self.stamp(p)
            if nd < o["D1"]: more()
        while nd < o["D1"]:
            p.wvm(f"w1_{nd-o['lead1']}"); more()
        self.stamp(p)
        self.spin(p, Y_F1, 1, 20, sleep=1)
        e(f"ds_read_b32 {VTAG}, {VSY} offset:{4*Y_TAG}\ns_setprio 2", "tag")
        self.stamp(p)
        def ld(i):
            ks, ds = divmod(i, 4); q = Prog()
            if ds == 0: self.kk(q, 1, ks, "s76", 40960, "s86")
            q.e(f"buffer_load_dwordx4 {v(HR + 4 * (i % ns), 4)}, v{120+ds}, {SWS}, s76 offen sc1", f"act{ks}_{ds}")
            return q
        def mfma(ks, ds, t):
            c = self.acc1(t, ds); src = "0" if (ks == 0 and t > 0) else c
            return f"v_mfma_f32_16x16x32_bf16 {c}, {a(16*(ks%6)+4*t,4)}, {v(HR + 4 * ((4*ks+ds) % ns), 4)}, {src}"
        def extra(ks):
            pre = Prog(); post = Prog(); q = Prog()
            q.e(f"s_bfe_u32 s14, s{74 + ks // 8}, {(4 << 16) | (4 * (ks % 8)):#x}\nv_lshl_add_u32 v125, s14, 6, v124")
            q.e(f"s_mov_b64 exec, s[100:101]\nds_write_b128 v125, {v(HR + 4 * ((4 * ks) % ns), 4)}\ns_mov_b64 exec, -1", "uc")
            if ks % 4 == 3: self.sig(pre, Y_U + ks // 4, 20)
            if o["ebpos"] == 4 and ks == 13: self.sig(pre, Y_L, 20)
            if o["ebpos"] == 4 and ks == 15: pre.e(f"ds_read_b32 v22, {VSY} offset:{4*Y_L}", "yl")
            if o["ebpos"] == 3:
                assert o["ebk"] >= 13
                per = -(-o["eb"] // (16 - o["ebk"]))
                for j in range(o["eb"]):
                    if o["ebk"] + j // per == ks: pre.ext(self.dma(2, j))
            if ks in (0, 5, 10): self.stamp(post)
            return q, pre, post
        self.gemm_loop(p, 1, 16, 4, ns, nd, o["P1"], ld, mfma, extra)
        self.stamp(p)
    def gemm1_epi(self, p):
        e = p.e; RD = 24
        if self.o["ebpos"] == 0:
            for ks in range(self.o["eb"]): p.ext(self.dma(2, ks))
        if self.o["ebpos"] == 4:
            p.wlg("yl")
            e("v_readfirstlane_b32 s87, v22\ns_cmp_lt_u32 s87, 4\ns_cbranch_scc1 L_eb1")
            q = Prog()
            for ks in range(self.o["eb"]): q.ext(self.dma(2, ks))
            for line in finalize(q).split("\n"):
                if line.strip(): e("@" + line.strip())
            e("L_eb1:")
        for ds in range(3 if self.o["ew"] else 0, 4): self.pwrite(p, 1, ds)
        assert not self.deferred
        self.sig(p, Y_PART, 20)
        if self.o["ebpos"] == 1:
            for ks in range(self.o["eb"]): p.ext(self.dma(2, ks))
        if self.o["ebpos"] == 4:
            e("s_cmp_ge_u32 s87, 4\ns_cbranch_scc1 L_eb2")
            self.spin(p, Y_L, 4, 22, sleep=1)
            for ks in range(self.o["eb"]): p.ext(self.dma(2, ks))
            e("L_eb2:")
        for t in range(1, 4):
            e(f"s_xor_b32 s51, {WV}, {t}\ns_mul_i32 s51, s51, {RINGW}\ns_add_u32 s51, s51, {RING0 + (t-1)*4096}\nv_add_u32 v{20+t}, s51, {L16}")
        e(f"s_lshl_b32 s50, {FT}, 3\ns_lshl_b32 s51, {WV}, 1\ns_add_u32 s50, s50, s51\ns_mul_i32 s50, s50, 10240")
        e(f"s_lshl_b32 s51, {DT}, 10\ns_add_u32 s50, s50, s51\ns_add_u32 s86, s50, {GB}")
        e(f"s_mul_i32 s89, {DT}, 24\ns_add_u32 s89, s89, {FT}\ns_lshl_b32 s89, s89, 7\ns_add_u32 s89, s89, {F2}")
        c1 = -2 * 0.7978845608028654 * 1.4426950408889634; c3 = c1 * 0.044715
        e(f"s_mov_b32 s90, {fbits(c3)}\nv_mov_b32 v126, {fbits(c1)}")
        if self.o.get("fine2"): self.stamp(p)
        self.spin(p, Y_PART, 4, 20)
        if self.o.get("fine2"): self.stamp(p)
        for q in range(4):
            for t in range(3): e(f"ds_read_b128 {v(RD+16*t+4*q,4)}, v{21+t} offset:{q*1024}", f"r1r{q}")
        if self.o["ebpos"] == 2:
            for ks in range(self.o["eb"]): p.ext(self.dma(2, ks))
        for pr in range(2):
            p.wlg(f"r1r{2*pr+1}")
            q = [(72 + 8 * pr + i, RD + 8 * pr + i, 88 + 8 * pr + i) for i in range(8)]
            if self.o["epk"]:
                q2 = q[::2]
                for x, r, t in q2: e(f"v_pk_add_f32 {v(x,2)}, {v(x,2)}, {v(r,2)}\nv_pk_add_f32 {v(r+16,2)}, {v(r+16,2)}, {v(r+32,2)}")
                for x, r, t in q2: e(f"v_pk_add_f32 {v(x,2)}, {v(x,2)}, {v(r+16,2)}")
                for x, r, t in q2: e(f"v_pk_mul_f32 {v(t,2)}, {v(x,2)}, {v(x,2)}")
                for x, r, t in q2: e(f"v_pk_fma_f32 {v(t,2)}, {v(t,2)}, s[90:91], v[126:127] op_sel_hi:[1,0,0]")
                for x, r, t in q2: e(f"v_pk_mul_f32 {v(t,2)}, {v(t,2)}, {v(x,2)}")
                for x, r, t in q: e(f"v_exp_f32 v{t}, v{t}")
                for x, r, t in q2: e(f"v_pk_add_f32 {v(t,2)}, {v(t,2)}, 1.0 op_sel_hi:[1,0]")
                for x, r, t in q: e(f"v_rcp_f32 v{t}, v{t}")
                for x, r, t in q2: e(f"v_pk_mul_f32 {v(t,2)}, {v(t,2)}, {v(x,2)}")
            else:
                for x, r, t in q: e(f"v_add_f32 v{x}, v{x}, v{r}\nv_add_f32 v{r+16}, v{r+16}, v{r+32}")
                for x, r, t in q: e(f"v_add_f32 v{x}, v{x}, v{r+16}")
                for x, r, t in q: e(f"v_mul_f32 v{t}, v{x}, v{x}")
                for x, r, t in q: e(f"v_fma_f32 v{t}, v{t}, s90, v126")
                for x, r, t in q: e(f"v_mul_f32 v{t}, v{t}, v{x}")
                for x, r, t in q: e(f"v_exp_f32 v{t}, v{t}")
                for x, r, t in q: e(f"v_add_f32 v{t}, 1.0, v{t}")
                for x, r, t in q: e(f"v_rcp_f32 v{t}, v{t}")
                for x, r, t in q: e(f"v_mul_f32 v{t}, v{t}, v{x}")
            o = 56 + 8 * pr
            for i in range(4): e(f"v_cvt_pk_bf16_f32 v{o+i}, v{q[2*i][2]}, v{q[2*i+1][2]}")
            e(f"v_permlane16_swap_b32 v{o}, v{o+2}\nv_permlane16_swap_b32 v{o+1}, v{o+3}")
            e(f"buffer_store_dwordx4 {v(o,4)}, v{6+pr}, {SWS}, s86 offen sc1", "gs")
        if self.o["epifirst"]: self.sig(p, Y_EPI, 20)
        self.stamp(p)
        assert self.o["eb"] + self.o["e2"] <= 4
        for ks in range(self.o["eb"], self.o["eb"] + self.o["e2"]): p.ext(self.dma(2, ks))
        self.xmm(p)
        if not self.o["epifirst"]: self.sig(p, Y_EPI, 20)
        for ks in range(min(self.o["eb"], self.o["P2"])): p.ext(self.tr(2, ks))
        p.wvm("gs")
        l = self.label("nolast")
        e(f"v_mov_b32 v20, 1\ns_mov_b64 exec, 1\nds_add_rtn_u32 v20, {VSY}, v20 offset:{4*Y_G}\ns_mov_b64 exec, -1\ns_waitcnt lgkmcnt(0)\nv_readfirstlane_b32 s79, v20")
        e(f"s_cmp_lg_u32 s79, 3\ns_cbranch_scc1 {l}")
        self.flag_store(p, "s89", "@")
        e(f"{l}:")
        self.stamp(p)
    def gemm2(self, p, spare):
        e = p.e; o = self.o
        GR, ns = 24, o['ns2']
        e(f"s_mul_i32 s86, {WV}, {48*10240}\ns_mul_i32 s51, {DT2}, 1280\ns_add_u32 s86, s86, s51\ns_add_u32 s86, s86, {GB}")
        e(f"s_mul_i32 s88, {DT2}, {80*4096}\ns_and_b32 s51, s95, 0xffffffc0\ns_add_u32 s88, s88, s51\ns_add_u32 s88, s88, {YT}")
        e(f"v_and_b32 v116, 15, {LANE}\nv_mul_u32_u24 v116, 1280, v116\nv_and_b32 v117, 16, {LANE}\nv_lshl_add_u32 v116, v117, 1, v116\nv_lshrrev_b32 v117, 5, {LANE}\nv_lshl_add_u32 v116, v117, 4, v116")
        e(f"s_and_b32 s51, {WV}, 1\ns_lshl_b32 s51, s51, 26\nv_add_u32 v109, s51, v115\nv_xor_b32 v115, 0x4000000, v109")
        nd = o["eb"] + o["e2"]; nt = min(o["eb"], o["P2"])
        self.spin(p, Y_G, 4, 20)
        def more():
            nonlocal nd
            if nd >= RS: p.wlg(f"t2_{nd-RS}")
            p.ext(self.dma(2, nd)); nd += 1
            if nd == o["PS2"]: self.sig(p, Y_P2, 20)
        while nd < min(o["D2"], nt + o["lead2"]): more()
        while nt < o["P2"]:
            p.ext(self.tr(2, nt)); nt += 1
            if nd < o["D2"]: more()
        while nd < o["D2"]:
            p.wvm(f"w2_{nd-o['lead2']}"); more()
        self.stamp(p)
        if o["fg"]:
            e(f"s_lshl_b32 s51, {WV}, 2\nv_add_u32 v21, s51, {VSY}")
            self.spin(p, Y_Q, 1, 20, sleep=1, base="v21")
        else: self.spin(p, Y_F2, 1, 20, sleep=1)
        self.stamp(p)
        def ld(i):
            ks, di = divmod(i, 5); q = Prog()
            if di == 0: self.kk(q, 2, ks, "s76", 40960, "s86")
            q.e(f"buffer_load_dwordx4 {v(GR + 4 * (i % ns), 4)}, v19, {SWS}, s76 offen offset:{256*di} sc1", f"act{ks}_{di}")
            return q
        def mfma(ks, di, ss):
            c = self.acc2(di, ss); src = "0" if (ks == 0 and ss > 0) else c
            return f"v_mfma_f32_16x16x32_bf16 {c}, {v(GR + 4 * ((5*ks+di) % ns), 4)}, {a(16*(ks%4)+4*ss,4)}, {src}"
        yk = o["ychk"]; assert yk >= 9
        def extra(ks):
            pre = Prog(); post = Prog()
            if ks == o["ytrig"]: self.sig(post, Y_P3, 20)
            if ks == yk:
                self.spin(post, Y_F3, 1, 20, sleep=2)
                for di in range(5):
                    post.e(f"buffer_load_dwordx4 {a(64 if di == 4 else 4*di,4)}, v{115 if di & 1 else 109}, {SWS}, s88 offen sc1", f"y{di}")
                    post.e("s_add_u32 s88, s88, 65536")
            if ks in (0, 3, 7): self.stamp(post)
            return Prog(), pre, post
        self.gemm_loop(p, 2, 12, 5, ns, nd, nt, ld, mfma, extra)
        self.stamp(p)
        for di in range(4 if o["ew"] else 0, 5): self.pwrite(p, 2, di)
        assert not self.deferred
        e("v_mov_b32 v20, v21")
        for t in range(1, 4):
            e(f"s_xor_b32 s51, {WV}, {t}\ns_mul_i32 s51, s51, {RINGW}\ns_add_u32 s51, s51, {RING0 + (t-1)*5120}\nv_add_u32 v{20+t}, s51, {L16}")
        if o.get("fine2"): self.stamp(p)
        for di in range(5):
            p.wvm(f"y{di}")
            e(f"v_mfma_f32_16x16x32_bf16 {self.acc2(di,1)}, {a(64 if di == 4 else 4*di,4)}, v[124:127], {self.acc2(di,1)}")
        for di in range(5):
            e(f"v_mfma_f32_16x16x32_bf16 {self.acc2(di,0)}, {a(64 if di == 4 else 4*di,4)}, v[120:123], {self.acc2(di,0)}")
        for di in range(5): e(f"ds_write_b128 v20, {self.acc2(di,1)} offset:{di*1024}", "r2w")
        if o.get("fine2"): self.stamp(p)
        e("s_waitcnt lgkmcnt(0)\ns_barrier")
        if o.get("fine2"): self.stamp(p)
        for di in range(5):
            for t in range(3): e(f"ds_read_b128 {v(GR+12*di+4*t,4)}, v{21+t} offset:{di*1024}", f"r2r{di}")
        for di in range(5):
            c = 84 + 4 * di; r = GR + 12 * di
            p.wlg(f"r2r{di}")
            for hq in range(2): e(f"v_pk_add_f32 {v(r+2*hq,2)}, {v(r+2*hq,2)}, {v(r+4+2*hq,2)}\nv_pk_add_f32 {v(c+2*hq,2)}, {v(c+2*hq,2)}, {v(r+8+2*hq,2)}")
            for hq in range(2): e(f"v_pk_add_f32 {v(c+2*hq,2)}, {v(c+2*hq,2)}, {v(r+2*hq,2)}")
            for hq in range(2): e(f"v_cvt_pk_bf16_f32 v{104+2*di+hq}, v{c+2*hq}, v{c+2*hq+1}")
            if o["ow4"] and di < 4:
                if di & 1:
                    b = 104 + 2 * (di - 1)
                    e(f"v_permlane16_swap_b32 v{b}, v{b+2}\nv_permlane16_swap_b32 v{b+1}, v{b+3}")
                    e(f"buffer_store_dwordx4 {v(b,4)}, v116, {SOUT}, s94 offen offset:{32*(di-1)} {o['oflag']}", "os")
            else: e(f"buffer_store_dwordx2 {v(104+2*di,2)}, v18, {SOUT}, s94 offen offset:{32*di} {o['oflag']}", "os")
        self.stamp(p)

    def main(self):
        self.role = "main"
        p = Prog(); e = p.e
        self.main_start(p)
        if self.o["xk"] == -1: self.xload(p)
        for ks in range(self.o["pre1"]): p.ext(self.dma(1, ks))
        if self.o["xk"] == -2: self.xload(p)
        self.ln(p)
        e(f"s_setprio {self.o['mprio']}")
        if self.o.get("dly_w"): e(f"s_sleep {self.o['dly_w']}")
        if self.o["xk"] == 0: self.xload(p)
        for ks in range(self.o["pre1"], self.o["free1"]): p.ext(self.dma(1, ks))
        if self.o["xk"] == 1: self.xload(p)
        self.stamp(p)
        self.main_setup2(p)
        e(f"s_cmp_lt_u32 {IDX}, 30\ns_cbranch_scc1 L_g1")
        q = Prog()
        q.e("s_waitcnt vmcnt(0)")
        self.xmm(q)
        if self.o["spw"]: self.spin(q, Y_F1, 1, 20, sleep=16)
        else: self.spin(q, Y_PUB, 2, 20, sleep=4)
        for ks in range(self.o["eb"] + self.o["e2"]): q.ext(self.dma(2, ks))
        for ks in range(min(self.o["eb"], self.o["P2"])): q.ext(self.tr(2, ks))
        self.sig(q, Y_G, 20)
        q.e("s_waitcnt vmcnt(0) lgkmcnt(0)\ns_branch L_g2")
        for line in finalize(q).split("\n"):
            if line.strip(): e(line.strip() if line.strip().endswith(":") else "@" + line.strip())
        e("L_g1:")
        self.gemm1(p)
        self.gemm1_epi(p)
        e("L_g2:")
        self.gemm2(p, False)
        e(f"s_or_b32 s51, {WG}, {WV}\ns_cmp_lg_u32 s51, 0\ns_cbranch_scc1 L_noep")
        e(f"s_mov_b64 exec, 1\nbuffer_store_dword {VTAG}, {VZ}, {SWS}, 0 offen\ns_mov_b64 exec, -1")
        e("L_noep:")
        if self.o.get("gmin"):
            e(f"global_load_dword v30, {VZ}, s[46:47] sc1\ns_waitcnt vmcnt(0)\nv_readfirstlane_b32 s96, v30\ns_nop 1\ns_not_b32 s96, s96")
        if self.o.get("hold"):
            e(f"L_hold:\ns_memrealtime s[82:83]\ns_waitcnt lgkmcnt(0)\ns_sub_u32 s82, s82, s96\ns_cmp_lt_u32 s82, {self.o['hold']}\ns_cbranch_scc1 L_hold")
        self.finish(p)
        return p

    def red32(self, p, regs, tmp):
        for m in ("quad_perm:[1,0,3,2]", "quad_perm:[2,3,0,1]", "row_half_mirror", "row_mirror"):
            for r in regs: p.e(f"v_add_f32_dpp v{r}, v{r}, v{r} {m} row_mask:0xf bank_mask:0xf")
        for i, r in enumerate(regs): p.e(f"v_mov_b32 v{tmp+i}, v{r}")
        for i, r in enumerate(regs): p.e(f"v_permlane16_swap_b32 v{r}, v{tmp+i}")
        for i, r in enumerate(regs): p.e(f"v_add_f32 v{r}, v{r}, v{tmp+i}")
    RAW = [4, 5, 6, 7, 8, 12, 13, 14, 15, 16, 17, 18]
    def conv_start(self, p):
        e = p.e
        e(f"s_setprio {self.o['kprio']}\ns_mul_i32 {REGB}, s14, {REGSZ}\ns_add_u32 {REGB}, {REGB}, {REG0}")
        e("s_waitcnt lgkmcnt(0)")
    def serv_start(self, p):
        p.e("s_setprio 3")
        self.srd(p, 60, 40, 6291456)
    def ln(self, p):
        e = p.e
        RAW, F, D, T, H = 20, 30, 50, 70, 90
        inv = fbits(1.0 / 640)
        e(f"s_lshr_b32 s51, {WV}, 1\ns_mul_i32 s51, s51, {REGSZ}\ns_and_b32 s15, {WV}, 1\ns_mul_i32 s15, s15, {2*PT}\ns_add_u32 s51, s51, s15\ns_add_u32 s51, s51, {LNT}")
        e(f"v_mul_u32_u24 v102, {PT}, v120\nv_add_u32 v102, s51, v102\nv_lshl_add_u32 v101, v122, 3, v102\nv_lshl_add_u32 v100, v122, 4, v102")
        p.wvm("x")
        self.stamp(p)
        self.unpack(p, RAW, F, 10)
        def psum(src, dst):
            e(f"v_pk_add_f32 {v(dst,2)}, {v(src,2)}, {v(src+2,2)}\nv_pk_add_f32 {v(dst+2,2)}, {v(src+4,2)}, {v(src+6,2)}")
            for i in range(4, 10): e(f"v_pk_add_f32 {v(dst+2*(i&1),2)}, {v(dst+2*(i&1),2)}, {v(src+2*i,2)}")
            e(f"v_pk_add_f32 {v(dst,2)}, {v(dst,2)}, {v(dst+2,2)}\nv_add_f32 v{dst}, v{dst}, v{dst+1}")
        def psq(src, dst):
            e(f"v_pk_mul_f32 {v(dst,2)}, {v(src,2)}, {v(src,2)}\nv_pk_mul_f32 {v(dst+2,2)}, {v(src+2,2)}, {v(src+2,2)}")
            for i in range(2, 10): e(f"v_pk_fma_f32 {v(dst+2*(i&1),2)}, {v(src+2*i,2)}, {v(src+2*i,2)}, {v(dst+2*(i&1),2)}")
            e(f"v_pk_add_f32 {v(dst,2)}, {v(dst,2)}, {v(dst+2,2)}\nv_add_f32 v{dst}, v{dst}, v{dst+1}")
        def rstd(var, out):
            e(f"v_max_f32 v{var}, 0, v{var}")
            self.rbf(p, var); e(f"v_add_f32 v{var}, {fbits(1e-5)}, v{var}"); self.rbf(p, var)
            e(f"v_sqrt_f32 v{var}, v{var}"); self.rbf(p, var); e(f"v_rcp_f32 v{out}, v{var}")
        psum(F, T); self.red32(p, [T], T + 2)
        e(f"v_mul_f32 v{T}, {inv}, v{T}\nv_mov_b32 v{T+4}, v{T}"); self.rbf(p, T + 4)
        for i in range(10): e(f"v_pk_add_f32 {v(D+2*i,2)}, {v(F+2*i,2)}, {v(T+4,2)} op_sel_hi:[1,0] neg_lo:[0,1] neg_hi:[0,1]")
        e(f"v_sub_f32 v{T+5}, v{T}, v{T+4}")
        psq(D, T); self.red32(p, [T], T + 2)
        e(f"v_mul_f32 v{T}, {inv}, v{T}\nv_fma_f32 v{T}, -v{T+5}, v{T+5}, v{T}")
        rstd(T, T + 6)
        for i in range(10): e(f"v_pk_mul_f32 {v(D+2*i,2)}, {v(D+2*i,2)}, {v(T+6,2)} op_sel_hi:[1,0]")
        for i in range(10): e(f"v_cvt_pk_bf16_f32 v{RAW+i}, v{D+2*i}, v{D+2*i+1}")
        self.unpack(p, RAW, F, 10)
        psum(F, T); psq(F, T + 4); self.red32(p, [T, T + 4], T + 2)
        e(f"v_mul_f32 v{T}, {inv}, v{T}\nv_mul_f32 v{T+4}, {inv}, v{T+4}\nv_fma_f32 v{T+4}, -v{T}, v{T}, v{T+4}")
        self.rbf(p, T)
        rstd(T + 4, T + 6)
        e(f"v_mul_f32 v{T+2}, v{T}, v{T+6}\nv_lshrrev_b32 v{T+4}, 16, v{T+4}\nv_or_b32 v{T+4}, v{T+4}, v{T}")
        for i in range(10): e(f"v_pk_fma_f32 {v(D+2*i,2)}, {v(F+2*i,2)}, {v(T+6,2)}, {v(T+2,2)} op_sel_hi:[1,0,0] neg_lo:[0,0,1] neg_hi:[0,0,1]")
        e(f"ds_write_b32 v102, v{T+4} offset:1280", "lnw")
        for i in range(10): e(f"v_cvt_pk_bf16_f32 v{H+i}, v{D+2*i}, v{D+2*i+1}")
        e(f"ds_write_b128 v100, {v(H,4)}\nds_write_b128 v100, {v(H+4,4)} offset:512\nds_write_b64 v101, {v(H+8,2)} offset:1024", "lnw")
        self.sig(p, Y_LN, T)

    def serv(self):
        self.role = "serv"
        p = Prog(); e = p.e; o = self.o
        self.serv_start(p)
        self.stamp(p)
        e(f"v_bfe_u32 v12, {LANE}, 2, 2\nv_mul_u32_u24 v12, {PT}, v12\nv_lshrrev_b32 v13, 4, {LANE}\nv_lshl_add_u32 v12, v13, 5, v12")
        e(f"v_and_b32 v13, 3, {LANE}\nv_lshl_add_u32 v12, v13, 3, v12\nv_add_u32 v12, {LNT}, v12")
        e(f"s_mul_i32 s84, {WG}, 10240\ns_add_u32 s84, s84, {HB}\ns_add_u32 s85, s84, 4096\ns_add_u32 s86, s84, 8192")
        e(f"s_lshl_b32 s87, {WG}, 4\ns_add_u32 s87, s87, {STAT}\nv_lshlrev_b32 v13, 12, {LANE}")
        e(f"s_lshr_b32 s89, {WG}, 2\ns_lshl_b32 s89, s89, 7\ns_and_b32 s51, {WG}, 3\ns_lshl2_add_u32 s89, s51, s89\ns_add_u32 s89, s89, {F1}\nv_lshlrev_b32 v14, 7, {LANE}")
        self.boxes_build(p)
        e("s_waitcnt lgkmcnt(0)")
        self.mktag(p)
        e(f"ds_write_b32 {VSY}, {VTAG} offset:{4*Y_TAG}")
        self.spin(p, Y_LN, 4, 20, sleep=1)
        if self.o.get("dly_p"): e(f"s_sleep {self.o['dly_p']}")
        self.stamp(p)
        for b in range(11):
            e(f"ds_read_b64_tr_b16 {v(24+4*b,2)}, v12 offset:{128*b}\nds_read_b64_tr_b16 {v(26+4*b,2)}, v12 offset:{128*b+REGSZ}", f"lr{b}")
            if b >= 3:
                c = b - 3; p.wlg(f"lr{c}")
                e(f"buffer_store_dwordx4 {v(24+4*c,4)}, {L16}, {SWS}, s{84 + c//4} offen offset:{(c%4)*1024} sc1")
        for c in range(8, 10):
            p.wlg(f"lr{c}")
            e(f"buffer_store_dwordx4 {v(24+4*c,4)}, {L16}, {SWS}, s{84 + c//4} offen offset:{(c%4)*1024} sc1")
        p.wlg("lr10")
        e(f"s_mov_b64 exec, 3\nbuffer_store_dwordx4 v[64:67], v13, {SWS}, s87 offen sc1\ns_mov_b64 exec, -1")
        self.sig(p, Y_PUB, 20)
        self.stamp(p)
        e(f"s_mul_i32 s50, {DT2}, 80\ns_lshr_b32 s50, s50, 6\ns_mul_i32 s92, s50, {24*128}\ns_add_u32 s92, s92, {F2}")
        e(f"v_min_u32 v15, 47, {LANE}\nv_lshlrev_b32 v15, 7, v15\nv_min_u32 v16, 29, {LANE}\nv_lshlrev_b32 v16, 7, v16")
        e(f"s_mul_i32 s93, {DT2}, {30*128}\ns_add_u32 s93, s93, {F3}")
        e("s_waitcnt vmcnt(0)")
        if self.o.get("dly_f"):
            self.sig(p, Y_PUB, 20); e(f"s_sleep {self.o['dly_f']}")
        self.flag_store(p, "s89")
        self.sig(p, Y_PUB, 20)
        self.stamp(p)
        e(f"s_cmp_lt_u32 {IDX}, 30\ns_cbranch_scc1 L_s1")
        e(f"v_lshrrev_b32 v17, 3, {LANE}\nv_lshlrev_b32 v17, 12, v17\nv_and_b32 v18, 7, {LANE}\nv_lshl_add_u32 v17, v18, 7, v17")
        if o["spa"]:
            e(f"s_lshl_b32 s88, {SUB}, 10\ns_and_b32 s51, {IDX}, 1\ns_mul_i32 s51, s51, {768*4096}\ns_add_u32 s88, s88, s51\ns_add_u32 s88, s88, {(12 - o['spa']) * 32 * 4096}")
            e(f"s_mov_b32 s87, 0\nL_spf:")
            for q in range(2):
                for i in range(4):
                    e(f"s_add_u32 s51, s88, {(q*384 + 8*i)*4096}\nbuffer_load_dword v{24+4*q+i}, v17, {SW2}, s51 offen")
            e(f"s_add_u32 s88, s88, {32*4096}\ns_add_u32 s87, s87, 1\ns_waitcnt vmcnt(8)\ns_cmp_lt_u32 s87, {o['spa']}\ns_cbranch_scc1 L_spf")
        elif o["spk"]:
            e(f"s_lshl_b32 s88, {SUB}, 10\ns_and_b32 s51, {IDX}, 1\ns_mul_i32 s51, s51, {768*4096}\ns_add_u32 s88, s88, s51\ns_and_b32 s51, {XCD}, 1\ns_lshl_b32 s51, s51, 17\ns_add_u32 s88, s88, s51")
            e(f"s_mov_b32 s87, 0\nL_spf:")
            for q in range(2):
                for i in range(4):
                    e(f"s_add_u32 s51, s88, {(q*384 + 8*i)*4096}\nbuffer_load_dword v{24+4*q+i}, v17, {SW2}, s51 offen")
            e(f"s_add_u32 s88, s88, {64*4096}\ns_add_u32 s87, s87, 1\ns_waitcnt vmcnt(8)\ns_cmp_lt_u32 s87, {o['spk'] + o.get('spx', 0)}\ns_cbranch_scc1 L_spf")
        else:
            e(f"s_lshl_b32 s88, {SUB}, 10\ns_and_b32 s51, {IDX}, 1\ns_lshl_b32 s51, s51, 15\ns_add_u32 s88, s88, s51\ns_and_b32 s51, {XCD}, 1\ns_lshl_b32 s51, s51, 16\ns_add_u32 s88, s88, s51")
            if o["slow"]:
                e(f"v_lshlrev_b32 v18, 12, {LANE}\ns_lshl_b32 s87, {SUB}, 10\ns_add_u32 s87, s87, 384\ns_and_b32 s51, {IDX}, 1\ns_lshl_b32 s51, s51, 18\ns_add_u32 s87, s87, s51")
                for i in range(12): e(f"buffer_load_dword v{70+i}, v18, {SW2}, s87 offen\ns_add_u32 s87, s87, {128*4096}")
            for i in range(o["nsp"]):
                e(f"buffer_load_dword v{24+i}, v17, {SW2}, s88 offen\ns_add_u32 s88, s88, 131072")
        e("s_waitcnt vmcnt(0)")
        self.sig(p, Y_F1, 20)
        e("s_branch L_s2\nL_s1:")
        self.inverse_addr(p)
        self.spin(p, Y_P1, 1, 20, sleep=2)
        self.stamp(p)
        e(f"s_mov_b32 s50, {F1}")
        self.poll(p, "v14", "s50", 20, wide=True, sleep=o["psleep"])
        self.sig(p, Y_F1, 20)
        self.stamp(p)
        if self.debug: e(f"v_writelane_b32 {VDBG}, s78, 31")
        self.inverse(p)
        e("L_s2:")
        self.spin(p, Y_P2, 1, 20, sleep=4)
        self.stamp(p)
        if o["fg"]:
            e(f"v_mul_u32_u24 v19, 6, {LANE}\ns_mov_b32 s94, 0x3f00003f\ns_mov_b32 s95, 0\nv_lshlrev_b64 v[18:19], v19, s[94:95]\nv_mov_b32 v17, v18\nv_mov_b32 v18, v19")
        self.poll(p, "v15", "s92", 20, sleep=o["psleep2"], fine=o["fg"])
        if o["fg"]: e(f"v_mov_b32 v21, 1\ns_mov_b64 exec, 15\nds_write_b32 {L4}, v21 offset:{SYNC + 4*Y_Q}\ns_mov_b64 exec, -1")
        else: self.sig(p, Y_F2, 20)
        self.stamp(p)
        if self.debug: e(f"v_writelane_b32 {VDBG}, s78, 30")
        self.spin(p, Y_P3, 1, 20, sleep=4)
        if o["sp3"]:
            e("s_add_u32 s94, s48, s93\ns_addc_u32 s95, s49, 0\ns_mov_b32 s78, 0\ns_branch L_sp3f\nL_sp3:")
            e(f"s_sleep {o['sp3']}\nL_sp3f:")
            for i in range(30): e(f"s_load_dword s{16+i}, s[94:95], {128*i} glc")
            e("s_add_u32 s78, s78, 1\ns_waitcnt lgkmcnt(0)")
            e(f"s_xor_b32 s79, s16, {TAG}")
            for i in range(1, 30): e(f"s_xor_b32 s51, s{16+i}, {TAG}\ns_or_b32 s79, s79, s51")
            e("s_cmp_gt_u32 s78, 0x40000\ns_cbranch_scc1 L_sp3d\ns_cmp_lg_u32 s79, 0\ns_cbranch_scc1 L_sp3\nL_sp3d:")
        else: self.poll(p, "v16", "s93", 20, sleep=o["psleep2"])
        self.sig(p, Y_F3, 20)
        if self.debug: e(f"v_writelane_b32 {VDBG}, s78, 29")
        self.finish(p)
        return p

    def kgen(self, p):
        e = p.e; RAW = self.RAW
        L2E = 1.4426950408889634
        l2e_hi = struct.unpack("<f", struct.pack("<f", L2E))[0]; l2e_lo = L2E - l2e_hi
        VDT, VD1, VD2, VDS, WA, RA, RB = 54, 55, 56, 57, 58, 59, 60
        e(f"s_and_b32 s51, {CH}, 1\ns_lshl_b32 s51, s51, 4\ns_lshr_b32 s80, s80, s51\ns_lshl_b32 s80, s80, 16\ns_lshr_b32 s81, s81, s51\ns_lshl_b32 s81, s81, 16")
        e(f"v_mov_b32 v62, s80\nv_mov_b32 v63, {fbits(l2e_hi)}\nv_mul_f32 v64, v62, v63\nv_fma_f32 v65, v62, v63, -v64\nv_fmac_f32 v65, {fbits(l2e_lo)}, v62")
        e(f"v_exp_f32 v64, v64\nv_mul_f32 v65, {fbits(0.6931471805599453)}, v65\nv_fma_f32 v{VDT}, v64, v65, v64")
        self.rbf(p, VDT)
        e(f"v_mul_f32 v{VD1}, {fbits(L2E)}, v{VDT}\nv_mul_f32 v{VD2}, 0.15915494, v{VDT}")
        e(f"v_cmp_eq_u32 vcc, 0, {LANE}\nv_mov_b32 v62, s81\nv_cndmask_b32 v{VDS}, 0, v62, vcc")
        e(f"s_mov_b32 m0, {REGB}")
        e(f"v_and_b32 v62, 31, {LANE}\nv_lshrrev_b32 v63, 5, {LANE}\nv_lshlrev_b32 v63, 4, v63\nv_add_u32 v63, {REGB}, v63")
        e(f"v_mul_u32_u24 v64, {KP}, v62\nv_add_u32 v{RB}, v64, v63")
        e(f"v_min_u32 v62, 20, v62\nv_mul_u32_u24 v64, {KP}, v62\nv_add_u32 v{RA}, v64, v63")
        e("v_mov_b32 v28, 0x3f80")
        e(f"v_and_b32 v62, 31, {LANE}\nv_lshrrev_b32 v63, 5, {LANE}\ns_add_u32 s51, {REGB}, {KCO}")
        e(f"v_lshlrev_b32 v64, 4, v62\nv_lshl_add_u32 v64, v63, 3, v64\nv_add_u32 v64, s51, v64")
        e(f"v_cmp_eq_u32 vcc, 0, v63\nv_lshlrev_b32 v65, 3, v62\nv_add_u32 v65, 512, v65\nv_lshlrev_b32 v66, 2, v62\nv_add_u32 v66, 768, v66")
        e(f"v_cndmask_b32 v65, v66, v65, vcc\nv_add_u32 v65, s51, v65\nv_mov_b32 v66, 128\nv_cndmask_b32 v66, v66, 4, vcc\nv_add_u32 v66, v65, v66")
        e(f"v_lshlrev_b32 v67, 1, v62\nv_lshl_add_u32 v67, v63, 8, v67\nv_add_u32 v67, s51, v67")
        blocks = [(-2, 34, 8), (32, 32, 4)]
        info = []
        for bi, (v0, nl, stride) in enumerate(blocks):
            cis = lambda y: y if y < 0 else ci(y)
            base = cis(8 * v0)
            offs = {}
            for t in range(-1, 8):
                o = [cis(8 * (v0 + l) + 7 - t) - (base + stride * l) for l in range(nl)]
                offs[t] = o[0]
                assert all(x == o[0] for x in o)
            AD = 100 + 2 * bi
            e(f"s_add_u32 s51, {REGB}, {KCO + 2*base}\nv_mul_u32_u24 v{AD}, {2*stride}, {LANE}\nv_add_u32 v{AD}, s51, v{AD}")
            e(f"s_add_u32 s51, {REGB}, {(75 - v0) * 16}\nv_sub_u32 v{AD+1}, s51, {L16}")
            info.append(offs)
        e(f"v_cmp_gt_u32 vcc, 16, {LANE}\nv_mov_b32 v104, 563\nv_mov_b32 v105, 512\nv_cndmask_b32 v104, v104, v105, vcc\nv_add_u32 v104, v104, {LANE}")
        e(f"v_mov_b32 v106, 1011\nv_cndmask_b32 v105, v106, v105, vcc\nv_add_u32 v105, v105, {LANE}\nv_cvt_f32_u32 v105, v105\nv_cvt_pk_bf16_f32 v105, v105, v105\nv_and_b32 v105, 0xffff, v105")
        e(f"s_sub_u32 s51, {REGB}, {2*0x4280 - KCO}\nv_lshl_add_u32 v105, v105, 1, s51")
        e(f"s_add_u32 s51, {REGB}, {2*607}\nv_lshlrev_b32 v104, 1, v104\nv_sub_u32 v104, s51, v104")
        e(f"v_add_u32 v107, 1, {LANE}\nv_and_b32 v107, 0x7e, v107\ns_add_u32 s51, {REGB}, 4096\nv_sub_u32 v107, s51, v107\nv_and_b32 v106, 1, {LANE}")
        e(f"v_mul_u32_u24 v108, 192, v106\nv_add_u32 v108, v107, v108\nv_mul_u32_u24 v106, 272, v106\nv_add_u32 v107, v107, v106\nv_lshl_add_u32 v106, {LANE}, 1, {REGB}")
        e(f"v_lshrrev_b32 v32, 4, {LANE}\nv_and_b32 v31, 15, {LANE}\nv_bfe_u32 v33, {LANE}, 1, 3\nv_lshlrev_b32 v34, 2, v32\nv_sub_u32 v34, v34, v33")
        e(f"v_and_b32 v33, 1, {LANE}\nv_xor_b32 v33, 1, v33\nv_mul_u32_u24 v33, {(R1O - R0O)//4 + 1}, v33\nv_add_u32 v34, v34, v33")
        e(f"s_add_u32 s51, {REGB}, {R0O + 4*7}\nv_lshl_add_u32 v44, v34, 2, s51\nv_add_u32 v45, 512, v44")
        e(f"v_lshlrev_b32 v33, 3, v32\nv_lshlrev_b32 v34, 2, v31\nv_sub_u32 v46, v33, v34\ns_add_u32 s51, {REGB}, {Q2O + 60}\nv_add_u32 v46, s51, v46")
        e(f"v_lshlrev_b32 v34, 1, v31\nv_sub_u32 v47, v33, v34\nv_and_b32 v34, 1, v31\nv_mul_u32_u24 v34, 386, v34\nv_sub_u32 v47, v47, v34\ns_add_u32 s51, {REGB}, {Q3O + 384 + 32}\nv_add_u32 v47, s51, v47")
        e(f"v_lshl_add_u32 v34, v31, 1, v32\ns_add_u32 s51, {REGB}, {UO + 16*2}\nv_lshl_add_u32 v40, v34, 4, s51")
        e(f"v_add_u32 v34, v31, v32\ns_add_u32 s51, {REGB}, {UO + 512 - 48}\nv_lshl_add_u32 v41, v34, 4, s51")
        e(f"v_and_b32 v34, 1, v32\nv_lshlrev_b32 v34, 9, v34\nv_lshl_add_u32 v34, v31, 5, v34\nv_lshrrev_b32 v32, 1, v32\nv_lshl_add_u32 v42, v32, 4, v34")
        e(f"s_lshl_b32 s86, {CH}, 12\ns_add_u32 s86, s86, {YT}\ns_mul_i32 s89, {DT}, 24\ns_add_u32 s89, s89, {FT}\ns_lshl_b32 s89, s89, 7\ns_add_u32 s89, s89, {F3}\ns_sub_u32 s88, {NCH}, 1")
        ST = [(64, 64), (65, 65), (66, 66), (67, 67)] + [(r, r) for r in range(100, 109)] + [(44, 46), (45, 47), (46, 48), (47, 49), (40, 16), (41, 12), (42, 17)]
        for i, (src, dst) in enumerate(ST): e(f"v_accvgpr_write_b32 a{80+i}, v{src}")
        e("s_waitcnt vmcnt(0)")
        self.stamp(p)
        PK = 116; pk = [0]; P = 62
        FA, FB = 16, 48
        def mf(rd):
            l = []
            for s in range(8):
                q = Prog()
                c = a(0, 16)
                q.e(f"v_mfma_f32_32x32x16_bf16 {a(0,16)}, {a(FA+4*s,4)}, {a(FB+4*s,4)}, {c}")
                l.append(q)
            return l
        p.e("s_mov_b32 s76, 0\nL_kg:")
        for rd in (1,):
            usepk = self.o["pk"]
            q = Prog(); e = q.e
            def cmul(sets):
                if usepk:
                    for d, x, y in sets: e(f"v_pk_mul_f32 {v(d,2)}, {v(x,2)}, {v(y,2)} op_sel_hi:[0,1]")
                    for d, x, y in sets: e(f"v_pk_fma_f32 {v(d,2)}, {v(x,2)}, {v(y,2)}, {v(d,2)} op_sel:[1,1,0] op_sel_hi:[1,0,1] neg_lo:[1,0,0]")
                else:
                    for d, x, y in sets: e(f"v_mul_f32 v{d}, v{x}, v{y}\nv_mul_f32 v{d+1}, v{x}, v{y+1}")
                    for d, x, y in sets: e(f"v_fma_f32 v{d}, -v{x+1}, v{y+1}, v{d}\nv_fmac_f32 v{d+1}, v{x+1}, v{y}")
            mfl = mf(0)
            def puts(l, neg):
                rs = []
                if self.o["mfp"] and not neg: e(mfl.pop(0).items[0][0])
                for row, z in l:
                    r = PK + pk[0] % 8; pk[0] += 1; rs.append(r)
                    e(f"v_cvt_pk_bf16_f32 v{r}, v{z}, {'-' if neg else ''}v{z+1}")
                for (row, z), r in zip(l, rs): e(f"ds_write_addtid_b32 v{r} offset:{row*KP}", "kw")
            for i in range(6):
                e(f"v_lshlrev_b32 v{P+i}, 16, v{RAW[2*i]}\nv_alignbit_b32 v{RAW[2*i]}, v{RAW[2*i+1]}, v{RAW[2*i]}, 16")
            AR, AI = 68, 69
            e(f"v_mul_f32 v{AR}, v{P}, v{VD1}\nv_mul_f32 v{AI}, v{P+1}, v{VD2}")
            e(f"v_mul_f32 v{P+2}, v{P+2}, v{VDT}\nv_mul_f32 v{P+3}, v{P+3}, v{VDT}")
            E1, E8, E256 = 70, 72, 74
            TM_, TA = 76, 79
            for i, t in enumerate((1.0, 8.0, 256.0)):
                if i == 0: e(f"v_mov_b32 v{TM_}, v{AR}\nv_fract_f32 v{TA}, v{AI}")
                else: e(f"v_mul_f32 v{TM_+i}, {fbits(t)}, v{AR}\nv_mul_f32 v{TA+i}, {fbits(t)}, v{AI}\nv_fract_f32 v{TA+i}, v{TA+i}")
            X = 82
            cmul([(X, P + 4, P + 2)])
            for i in range(3):
                e(f"v_exp_f32 v{TM_+i}, v{TM_+i}\nv_cos_f32 v{E1+2*i}, v{TA+i}\nv_sin_f32 v{E1+2*i+1}, v{TA+i}")
            for i in range(3): e(f"v_mul_f32 v{E1+2*i}, v{E1+2*i}, v{TM_+i}\nv_mul_f32 v{E1+2*i+1}, v{E1+2*i+1}, v{TM_+i}")
            E2, E4, E16, E512 = 98, 100, 102, 104
            EA, EB, E32, Y, Z = 106, 20, 114, 30, 38
            cmul([(E2, E1, E1), (E16, E8, E8), (E512, E256, E256), (X + 2, X, E1)])
            cmul([(E4, E2, E2), (EA + 6, E16, E8), (E32, E16, E16), (X + 4, X, E2), (X + 6, X + 2, E2)])
            p.ext(q)
            p.e("s_waitcnt lgkmcnt(0)")
            q = Prog(); e = q.e
            e(f"ds_write_addtid_b32 v28", "kw")
            puts([(1, E8), (2, E16), (3, EA + 6), (4, E32)], False)
            cmul([(EB, E8, E32), (EB + 2, E16, E32), (EB + 4, EA + 6, E32), (EB + 6, E32, E32)])
            cur, nxt = EB, EA
            extra = [[(X + 8 + 2 * i, X + 2 * i, E4) for i in range(4)], [(Y + 2 * i, X + 4 * i, E256) for i in range(4)],
                     [(Z, X, E512), (Z + 2, X + 8, E512), (Z + 4, Y, E512), (Z + 6, Y + 4, E512)],
                     [(Z + 8, Z, E512), (Z + 10, Z + 4, E512)], [(Z + 12, Z + 8, E512), (Z + 14, Z + 10, E512)], [(E1, Z + 12, E512)]]
            for st in range(6):
                j0 = 9 + 4 * st
                n = min(4, 32 - j0)
                cmul([(nxt + 2 * i, cur + 2 * i, E32) for i in range(n)])
                puts([(j0 - 4 + i, cur + 2 * i) for i in range(4)], False)
                cmul(extra[st])
                cur, nxt = nxt, cur
            puts([(29 + i, cur + 2 * i) for i in range(3)], False)
            if self.o["mfp"]:
                assert not mfl
                p.ext(q)
            else: p.ext(interleave(q, mf(rd - 1)))
            for s_ in range(8): p.e(f"ds_read_b128 {a(FB+4*s_,4)}, v{RB} offset:{s_*32}", "kr")
            e = p.e
            puts([(i, X + 2 * i) for i in range(4)], True); puts([(4 + i, X + 8 + 2 * i) for i in range(4)], True)
            puts([(8 + i, Y + 2 * i) for i in range(4)], True); puts([(12 + i, Z + 2 * i) for i in range(4)], True)
            puts([(16 + i, Z + 8 + 2 * i) for i in range(4)] + [(20, E1)], True)
            for s_ in range(8): p.e(f"ds_read_b128 {a(FA+4*s_,4)}, v{RA} offset:{s_*32}", "kr")
            p.e("s_cmp_lg_u32 s76, 0\ns_cbranch_scc1 L_kg1")
            for i in range(16): p.e(f"v_accvgpr_write_b32 a{i}, 0")
            p.e("L_kg1:")
            if self.debug: p.e(f"s_memrealtime s[82:83]\ns_waitcnt lgkmcnt(0)\ns_add_u32 s50, s76, 20\nv_mov_b32 v61, s82\nv_cmp_eq_u32 vcc, s50, {LANE}\nv_cndmask_b32 {VDBG}, {VDBG}, v61, vcc")
            kp = self.o["kpause"]
            if kp == 9:
                p.e(f"ds_read_b32 v61, {VSY} offset:{4*Y_PUB}\ns_waitcnt lgkmcnt(0)\nv_readfirstlane_b32 s79, v61\ns_cmp_lt_u32 s79, 2\ns_cbranch_scc1 L_kg2\ns_cmp_eq_u32 s76, 0\ns_cbranch_scc1 L_kg2")
                self.spin(p, self.o["kword"], 1, 61, sleep=4)
                if self.o["rprio"]: p.e(f"s_setprio {self.o['rprio']}")
                p.e("L_kg2:")
            elif kp:
                p.e(f"s_cmp_lg_u32 s76, {kp - 1}\ns_cbranch_scc1 L_kg2")
                self.spin(p, self.o["kword"], 1, 61, sleep=4)
                p.e("L_kg2:")
            p.e("s_add_u32 s76, s76, 1\ns_cmp_lt_u32 s76, 3\ns_cbranch_scc1 L_kg")
        e = p.e
        e(f"s_setprio {self.o['tprio']}")
        self.spin(p, Y_PUB, 1, 68, sleep=1)
        rs_ = Prog()
        for i, (src, dst) in enumerate(ST): rs_.e(f"v_accvgpr_read_b32 v{dst}, a{80+i}")
        for i in range(4): rs_.e(f"ds_read_b128 {a(112+4*i,4)}, v29 offset:{1024*i}", "bx")
        e(f"v_add_u32 v29, {BOXO}, {L16}")
        p.ext(mf(2)[0]); p.ext(interleave(rs_, mf(2)[1:]))
        e(f"v_mov_b32 v76, 0\nv_mov_b32 v77, 0\nv_mov_b32 v78, 0\nv_mov_b32 v79, 0\nv_add_u32 v15, {REGB}, {L16}")
        for i in range(4): e(f"ds_write_b128 v15, v[76:79] offset:{R0O + 1024*i}", "kc")
        e("s_mov_b64 exec, 3")
        e(f"ds_write_b128 v15, v[76:79] offset:{KCO - 32}", "kc")
        e("s_mov_b32 exec_lo, -1")
        e(f"ds_write_b128 v15, v[76:79] offset:{UO}", "kc")
        e("s_mov_b64 exec, -1")
        for i in range(12): e(f"v_accvgpr_read_b32 v{82+i}, a{i}")
        e(f"v_add_f32 v82, v82, v{VDS}")
        for i in range(6): e(f"v_cvt_pk_bf16_f32 v{70+i}, v{82+2*i}, v{83+2*i}")
        e(f"ds_write_b64 v64, v[70:71]\nds_write_b32 v65, v72\nds_write_b32 v66, v73\nds_write_b16 v67, v74 offset:1024", "kc")
        e("s_mov_b32 exec_hi, 0")
        e(f"ds_write_b16_d16_hi v67, v74 offset:{1024+64}\nds_write_b16 v67, v75 offset:{1024+128}\nds_write_b16_d16_hi v67, v75 offset:{1024+192}", "kc")
        e("s_mov_b64 exec, -1")
        vrs = []
        for bi, (v0, nl, stride) in enumerate(blocks):
            RR = 20 + 9 * bi; AD = 100 + 2 * bi; offs = info[bi]
            e(f"s_mov_b32 exec_hi, {(1 << (nl - 32)) - 1}")
            seen = {}; vr = {}
            for t in range(-1, 8):
                o = offs[t]
                if o not in seen:
                    seen[o] = RR + len(seen)
                    e(f"ds_read_u16 v{seen[o]}, v{AD} offset:{2*o}", f"kx{bi}")
                vr[t] = seen[o]
            vrs.append(vr)
        e("ds_read_u16 v40, v105", "kq")
        e("s_mov_b64 exec, -1")
        for i in range(2):
            e(f"ds_read_u16 v{41+i}, v106 offset:{KCO + 2*(388 + 64*i)}\nds_read_u16 v{43+i}, v106 offset:{KCO + 2*(514 + 64*i)}", "kq")
        for bi, (v0, nl, stride) in enumerate(blocks):
            AD = 100 + 2 * bi; O = 70 + 8 * bi; vr = vrs[bi]
            p.wlg(f"kx{bi}")
            for i in range(4): e(f"v_lshl_or_b32 v{O+i}, v{vr[2*i+1]}, 16, v{vr[2*i]}")
            for i in range(4): e(f"v_lshl_or_b32 v{O+4+i}, v{vr[2*i]}, 16, v{vr[2*i-1]}")
            e(f"s_mov_b32 exec_hi, {(1 << (nl - 32)) - 1}")
            e(f"ds_write_b128 v{AD+1}, {v(O,4)} offset:{R0O}\nds_write_b128 v{AD+1}, {v(O+4,4)} offset:{R1O}", "kt")
            e("s_mov_b64 exec, -1")
        p.wlg("kq")
        e(f"ds_write_b16 v107, v41 offset:{Q2O - 4096 + 2*94}\nds_write_b16 v108, v43 offset:{Q3O - 4096 + 2*63}\nds_write_b16 v108, v43 offset:{Q3O - 4096 + 384 + 2*64}", "kt")
        e(f"s_mov_b32 exec_hi, {(1 << 31) - 1:#x}\nds_write_b16 v108, v44 offset:{Q3O - 4096 + 2*31}\nds_write_b16 v108, v44 offset:{Q3O - 4096 + 384 + 2*32}", "kt")
        e(f"s_mov_b32 exec_hi, {(1 << 29) - 1:#x}\nds_write_b16 v107, v42 offset:{Q2O - 4096 + 2*62}", "kt")
        e(f"s_mov_b32 exec_hi, 0\ns_mov_b32 exec_lo, 0x01ff3fff\nds_write_b16 v104, v40 offset:{R0O}\nds_write_b16 v104, v40 offset:{R1O + 2}\ns_mov_b64 exec, -1", "kt")

    def conv_setup(self, p):
        e = p.e
        for m in list(range(17)) + [18]:
            off = (18 - m) * 16; ad = 46; r = 4 * min(m, 17)
            if off >= 128: off -= 128; ad = 47
            e(f"ds_read2_b32 {a(r,2)}, v{ad} offset0:{off} offset1:{off+1}\nds_read2_b32 {a(r+2,2)}, v{ad} offset0:{off+2} offset1:{off+3}", "pf")
        for j in range(6): e(f"ds_read2_b32 {a(72+4*j,2)}, v48 offset0:{8*j} offset1:{8*j+1}\nds_read2_b32 {a(74+4*j,2)}, v48 offset0:{68+8*j} offset1:{68+8*j+1}", "pf")
        for j in range(4): e(f"ds_read2_b32 {a(96+4*j,2)}, v49 offset0:{8*j} offset1:{8*j+1}\nds_read2_b32 {a(98+4*j,2)}, v49 offset0:{48+8*j} offset1:{48+8*j+1}", "pf")
    def boxes_build(self, p):
        e = p.e
        e(f"v_mov_b32 v23, 0x3f80\nv_add_u32 v22, {BOXO}, {L16}")
        e(f"v_and_b32 v124, 15, {LANE}\nv_lshrrev_b32 v125, 4, {LANE}\nv_lshlrev_b32 v125, 3, v125\ns_mov_b32 s50, 0x8001\ns_mov_b32 s51, 0x10001")
        for bi, (c_, h_) in enumerate(((8, 2), (12, 1), (8, 4), (8, 3))):
            e(f"v_mov_b32 v126, {((1 << (2*h_+1)) - 1) << (c_ - h_):#x}\nv_lshlrev_b32 v126, v124, v126\nv_lshrrev_b32 v126, v125, v126")
            for q in range(4):
                r = 24 + 4 * bi + q
                e(f"v_bfe_u32 v{r}, v126, {2*q}, 2\nv_mul_u32_u24 v{r}, s50, v{r}\nv_and_b32 v{r}, s51, v{r}\nv_mul_u32_u24 v{r}, v23, v{r}")
            e(f"ds_write_b128 v22, {v(24+4*bi,4)} offset:{1024*bi}")
    def boxes(self, p):
        e = p.e
        self.stamp(p)
        self.spin(p, Y_UR, 1, 22, sleep=2)
        e(f"ds_read_b32 {VTAG}, {VSY} offset:{4*Y_TAG}", "tag")
        self.stamp(p)
    def inverse_addr(self, p):
        e = p.e
        e(f"v_lshrrev_b32 v20, 4, {LANE}\nv_lshlrev_b32 v20, 10, v20\nv_and_b32 v21, 3, {LANE}\nv_lshl_add_u32 v20, v21, 4, v20\nv_and_b32 v21, 12, {LANE}")
        for q in range(4):
            e(f"v_add_u32 v22, {16*(q&1)}, v21\nv_bfe_u32 v22, s{74 + q//2}, v22, 4\nv_lshl_add_u32 v{4+q}, v22, 6, v20")
        e(f"s_mov_b32 s84, {STAT}\ns_mov_b32 s85, {STAT+4096}")
    def inverse(self, p):
        e = p.e
        S2, M2, SF, MF = 24, 40, 56, 88
        for q in range(4):
            e(f"buffer_load_dwordx4 {v(S2+4*q,4)}, v{4+q}, {SWS}, s84 offen sc1", "u")
            e(f"buffer_load_dwordx4 {v(M2+4*q,4)}, v{4+q}, {SWS}, s85 offen sc1", "u")
        e(f"s_setprio {self.o['iprio']}")
        p.wvm("u")
        self.unpack(p, S2, SF, 16); self.unpack(p, M2, MF, 16)
        for q in range(4):
            self.spin(p, Y_U + q, 4, 22, sleep=(2 if q < 3 else 1))
            for c in range(3): e(f"ds_read_b128 {v(24+4*c,4)}, v{4+q} offset:{REG0 + c*REGSZ + UO + 512}", f"ur{q}{c}")
            for c in range(3):
                p.wlg(f"ur{q}{c}")
                self.unpack(p, 24 + 4 * c, 40, 4)
                for i in range(8): e(f"v_fma_f32 v{40+i}, v{40+i}, v{SF+8*q+i}, v{MF+8*q+i}")
                o = 48 + 4 * (c & 1)
                for i in range(4): e(f"v_cvt_pk_bf16_f32 v{o+i}, v{40+2*i}, v{41+2*i}")
                e(f"ds_write_b128 v{4+q}, {v(o,4)} offset:{REG0 + c*REGSZ + UO + 512}", "uw")
        self.sig(p, Y_UR, 20)
        e("s_setprio 3")
    def conv(self, p):
        e = p.e
        YO, ACC, DT_, PKD = 17, 64, 116, 124
        slots = [24 + 4 * i for i in range(10)] + [96 + 4 * i for i in range(5)]
        slots = slots[:self.o["cns"]]; NS = len(slots)
        R = lambda n: v(slots[n % NS], 4)
        F = []
        for ph in range(8):
            for d in range(8):
                l = [(d + mu, 4 * (8 * mu + ph)) for mu in range(2) if d + mu <= 7]
                if ph == 0 and d <= 5: l.append((d + 2, 64))
                if ph == 0 and d <= 3: l.append((d + 4, 68))
                F.append((f"v16 offset:{512*d + (7-ph)*64}", l))
        S = []
        for st in range(4):
            S.append(([f"v16 offset:{16*(27 + 32*st)}", f"v16 offset:{16*(28 + 32*st)}"], 120, [(I, 96 + 4 * (st - I + 7)) for I in range(4, 8) if st <= I - 4]))
        for st in range(12):
            S.append(([f"v12 offset:{256*st}"], 112, [(I, 72 + 4 * (st - 2 * I + 8)) for I in range(2, 8) if 2 * I - 8 <= st <= 2 * I - 3]))
        loads = []; steps = []
        def ld(addr): loads.append(addr); return len(loads) - 1
        for i, (ad, box, l) in enumerate(S):
            ids = [ld(x) for x in ad]
            steps.append(("box", ids, box))
            for k in range(3): steps.append(("F", [ld(F[4*i+k][0])], F[4*i+k][1]))
            steps.append(("cvt", [], None))
            steps.append(("F", [ld(F[4*i+3][0])], F[4*i+3][1]))
            steps.append(("S", [], l))
        first = set(); nl = [0]
        def issue(upto):
            while nl[0] < min(upto, len(loads)):
                e(f"ds_read_b128 {R(nl[0])}, {loads[nl[0]]}", f"cj{nl[0]}"); nl[0] += 1
        def mm(I, A, B):
            acc = v(ACC + 4 * I, 4); src = acc if I in first else "0"; first.add(I)
            e(f"v_mfma_f32_16x16x32_bf16 {acc}, {A}, {B}, {src}")
        if self.o.get("dly_c"): e(f"s_sleep {self.o['dly_c']}")
        issue(NS)
        if self.o["cwait"]: self.spin(p, Y_EPI, self.o["cwait"], 22, sleep=1)
        e(f"s_setprio {self.o['cprio0']}")
        self.stamp(p)
        for si, (kind, ids, arg) in enumerate(steps):
            if si == self.o["cswitch"]: e(f"s_setprio {self.o['cprio']}")
            if ids: p.wlg(f"cj{ids[-1]}")
            if kind == "box":
                e(f"v_mfma_f32_16x16x32_bf16 {v(DT_,4)}, {R(ids[0])}, {a(arg,4)}, 0")
                issue(ids[0] + NS)
                e(f"v_mfma_f32_16x16x32_bf16 {v(DT_+4,4)}, {R(ids[-1])}, {a(arg+4,4)}, 0")
            elif kind == "F":
                for i, (I, kf) in enumerate(arg):
                    mm(I, a(kf, 4), R(ids[0]))
                    if i == 0: issue(ids[0] + NS)
            elif kind == "cvt":
                for i in range(4): e(f"v_cvt_pk_bf16_f32 v{PKD+i}, v{DT_+2*i}, v{DT_+2*i+1}")
            else:
                for I, kf in arg: mm(I, v(PKD, 4), a(kf, 4))
        for k in range(4):
            o = 24 + 4 * k
            for i in range(4): e(f"v_cvt_pk_bf16_f32 v{o+i}, v{ACC+8*k+2*i}, v{ACC+8*k+2*i+1}")
            e(f"v_permlane16_swap_b32 v{o}, v{o+2}\nv_permlane16_swap_b32 v{o+1}, v{o+3}")
            e(f"buffer_store_dwordx4 {v(o,4)}, v{YO}, {SWS}, s86 offen offset:{1024*k} sc1", "ys")
        self.stamp(p)
        e("s_waitcnt vmcnt(0)")
        e(f"v_mov_b32 v20, 1\ns_mov_b64 exec, 1\nds_add_rtn_u32 v20, {VSY}, v20 offset:{4*Y_Y}\ns_mov_b64 exec, -1\ns_waitcnt lgkmcnt(0)\nv_readfirstlane_b32 s79, v20")
        e(f"s_cmp_lg_u32 s79, s88\ns_cbranch_scc1 L_ynl")
        self.flag_store(p, "s89")
        e("L_ynl:")
    def convw(self):
        self.role = "conv"
        p = Prog(); e = p.e
        self.conv_start(p)
        self.stamp(p)
        if not self.o.get("skip_kgen"): self.kgen(p)
        else: self.stamp(p)
        self.stamp(p)
        if self.o.get("dly_k"): e(f"s_sleep {self.o['dly_k']}")
        self.conv_setup(p)
        e("s_setprio 0")
        self.boxes(p)
        self.conv(p)
        self.finish(p)
        return p

    def build(self):
        p = Prog(); self.prologue(p)
        p.ext(self.main())
        body = finalize(p)
        q = Prog(); q.e("L_aux:")
        q.e(f"s_cmp_eq_u32 {WV}, 7\ns_cbranch_scc1 L_serv"); q.ext(self.convw())
        body += finalize(q)
        q = Prog(); q.e("L_serv:"); q.ext(self.serv()); q.e("L_end:\nL_last:\ns_endpgm")
        body += finalize(q)
        body = body.replace("@", "")
        ref = open("cdna_kernels/" + NAME + ".s.ref").read()
        head = [l for l in ref.split("\n") if l.startswith(";") and "@launch" not in l]
        k = NAME + "_kernel"
        s = "\n".join(head) + f"\n; @launch grid=(256,1,1) block=(512,1,1) lds={LDS_BYTES}\n" + DOC
        s += f'.amdgcn_target "amdgcn-amd-amdhsa--gfx950"\n.text\n.globl {k}\n.p2align 8\n.type {k},@function\n{k}:\n'
        s += body
        s += f""".section .rodata,"a"
.p2align 6
.amdhsa_kernel {k}
  .amdhsa_next_free_vgpr 256
  .amdhsa_next_free_sgpr 102
  .amdhsa_accum_offset 128
  .amdhsa_group_segment_fixed_size 0
  .amdhsa_kernarg_size 136
  .amdhsa_user_sgpr_count 2
  .amdhsa_user_sgpr_kernarg_segment_ptr 1
  .amdhsa_system_sgpr_workgroup_id_x 1
.end_amdhsa_kernel
"""
        return s

if __name__ == "__main__":
    out = sys.argv[1]
    kw = eval("dict(" + (sys.argv[2] if len(sys.argv) > 2 else "") + ")")
    open(out, "w").write(G(**kw).build())
```
